```python
import torch

def _softmax(x, axis=-1):
    return torch.softmax(x, dim=axis)
def _gelu(x):
    return torch.nn.functional.gelu(x, approximate="tanh")
def _silu(x):
    return torch.nn.functional.silu(x)
def _sigmoid(x):
    return torch.sigmoid(x)
def _layernorm(x, axis=-1, eps=1e-5):
    m = x.mean(dim=axis, keepdim=True)
    v = x.var(dim=axis, keepdim=True, unbiased=False)
    return (x - m) / torch.sqrt(v + eps)
def _scatter_add(tgt, idx, src, axis=0):
    return tgt.clone().index_add_(axis, idx, src)
def _segment_sum(src, seg, n):
    out = torch.zeros((n,) + src.shape[1:], dtype=src.dtype)
    return out.index_add_(0, seg, src)
def _pad(x, pw):
    flat = tuple(v for pair in reversed(pw) for v in pair)
    return torch.nn.functional.pad(x, flat)

kernel_name = 'parallel_sum__ssm_conv_s4d__mixer_token_mlp__prompt'

def setup_inputs():

    _w = (lambda a: (lambda t: t.to(torch.bfloat16) if t.is_floating_point() else t)(torch.as_tensor(a)))
    def _A_setup():
        Bsz, L, D, N = 1, 2048, 576, 128
        return {
            "u": _w((lambda *s: torch.randn(*s, dtype=torch.bfloat16) * 0.05)(Bsz, L, D)),
            "log_A_real": _w((lambda *s: torch.randn(*s, dtype=torch.bfloat16) * 6.4)(D, N) * 0.5),
            "A_imag": _w((lambda *s: torch.randn(*s, dtype=torch.bfloat16) * 0.05)(D, N) * 3.14),
            "C_real": _w((lambda *s: torch.randn(*s, dtype=torch.bfloat16) * 0.05)(D, N) / N ** 0.5),
            "C_imag": _w((lambda *s: torch.randn(*s, dtype=torch.bfloat16) * 0.1)(D, N) / N ** 0.5),
            "log_dt": _w((lambda *s: torch.randn(*s, dtype=torch.bfloat16) * 0.05)(D) * 0.5 - 4.0),
            "D_skip": _w((lambda *s: torch.randn(*s, dtype=torch.bfloat16) * 0.05)(D)),
        }
    _A_in = _A_setup()

    def _B_setup():
        B, S, D, F = 1, 2048, 576, 4608
        return {
            "x": _w((lambda *s: torch.randn(*s, dtype=torch.bfloat16) * 0.05)(B, S, D)),
            "w1": _w((lambda *s: torch.randn(*s, dtype=torch.bfloat16) * 0.8)(S, F) * (S ** -0.5)),
            "b1": _w((lambda *s: torch.randn(*s, dtype=torch.bfloat16) * 12.8)(F) * 0.02),
            "w2": _w((lambda *s: torch.randn(*s, dtype=torch.bfloat16) * 0.2)(F, S) * (F ** -0.5)),
            "b2": _w((lambda *s: torch.randn(*s, dtype=torch.bfloat16) * 1.6)(S) * 0.02),
        }
    _B_in = _B_setup()

    return {
        "A_u": _A_in["u"],
        "A_log_A_real": _A_in["log_A_real"],
        "A_A_imag": _A_in["A_imag"],
        "A_C_real": _A_in["C_real"],
        "A_C_imag": _A_in["C_imag"],
        "A_log_dt": _A_in["log_dt"],
        "A_D_skip": _A_in["D_skip"],
        "B_x": _B_in["x"],
        "B_w1": _B_in["w1"],
        "B_b1": _B_in["b1"],
        "B_w2": _B_in["w2"],
        "B_b2": _B_in["b2"],
    }

def reference(A_u, A_log_A_real, A_A_imag, A_C_real, A_C_imag, A_log_dt, A_D_skip, B_x, B_w1, B_b1, B_w2, B_b2):
    def _A_ref(u, log_A_real, A_imag, C_real, C_imag, log_dt, D_skip):
        L = u.shape[1]
        dt = torch.exp(log_dt)
        A = -torch.exp(log_A_real) + 1j * A_imag
        C = (C_real + 1j * C_imag) * dt[:, None]
        pos = (lambda x, dt: x.to(dt))(torch.arange(L), log_dt.dtype)
        P = torch.exp((A * dt[:, None])[:, :, None] * pos[None, None, :])
        K = 2.0 * torch.einsum("dn,dnl->dl", C, P).real
        L2 = 2 * L
        u_t = (lambda x, *d: x.permute(*d))(u, 0, 2, 1)
        Kf = (lambda x, *a, **k: torch.fft.rfft(x.float(), *a, **k))(K, L2)
        Uf = (lambda x, *a, **k: torch.fft.rfft(x.float(), *a, **k))(u_t, L2)
        y = (lambda x, *a, **k: torch.fft.irfft(x, *a, **k).to(torch.bfloat16))(Uf * Kf[None, :, :], L2)[:, :, :L]
        y = (lambda x, *d: x.permute(*d))(y, 0, 2, 1)
        return y + u * D_skip[None, None, :]

    def _B_ref(x, w1, b1, w2, b2):
        B, S, D = x.shape
        h = _layernorm(x, axis=-1)
        u = torch.einsum("bsd,sf->bdf", h, w1) + b1
        u = _gelu(u)
        y = torch.einsum("bdf,fs->bds", u, w2) + b2
        return (lambda x, *d: x.permute(*d))(y, 0, 2, 1)

    x = A_u
    xn = _layernorm(x, axis=-1)
    return x + _A_ref(xn, A_log_A_real, A_A_imag, A_C_real, A_C_imag, A_log_dt, A_D_skip) + _B_ref(xn, B_w1, B_b1, B_w2, B_b2)
```

```python
class Asm:
    def __init__(self):
        self.lines = []

    def __call__(self, text):
        for ln in text.split("\n"):
            ln = ln.strip()
            if ln:
                self.lines.append(ln if ln.endswith(":") or ln.startswith(".") or ln.startswith(";") else "  " + ln)

    def extend(self, lst):
        for x in lst:
            self(x)

    def text(self):
        return "\n".join(self.lines) + "\n"


def vr(base, n=1):
    return f"v{base}" if n == 1 else f"v[{base}:{base+n-1}]"


def ar(base, n=1):
    return f"a{base}" if n == 1 else f"a[{base}:{base+n-1}]"


def sr(base, n=1):
    return f"s{base}" if n == 1 else f"s[{base}:{base+n-1}]"


def interleave(mfmas, gaps):
    out = []
    for m, g in zip(mfmas, gaps):
        out.append(m)
        out.extend(g)
    return out


def spread(items, ngaps, first=0, last=None, per=2):
    last = ngaps - 1 if last is None else last
    gaps = [[] for _ in range(ngaps)]
    n = last - first + 1
    per = max(per, -(-len(items) // n))
    g = first
    for it in items:
        while len(gaps[g]) >= per:
            g += 1
        gaps[g].append(it)
    return gaps


def srd(a, d, base, nbytes):
    a(f"s_mov_b32 s{d}, s{base}\ns_mov_b32 s{d+1}, s{base+1}\ns_mov_b32 s{d+2}, {nbytes:#x}\ns_mov_b32 s{d+3}, 0x20000")


def srd_off(a, d, base, off, nbytes):
    a(f"s_add_u32 s{d}, s{base}, {off:#x}\ns_addc_u32 s{d+1}, s{base+1}, 0\ns_mov_b32 s{d+2}, {nbytes:#x}\ns_mov_b32 s{d+3}, 0x20000")
```

```python
from asmlib import *
from layout import *

OFF_B = 4160
OFF_UPAD = 8320
OFF_U = 8832
BUF = 12928
CONV_LDS = 8 * BUF

V_T = (64, 128)
V_U = (96, 160)
V_ACC = 192
V_AT, V_AU = 20, 24
V_ID = 28


def reads(s, rho):
    r = 2*rho + 1
    T = lambda q, h: (f"ds_read2_b32 {vr(V_T[s]+4*q+2*h, 2)}, v{V_AT + (q >> 1)} "
                      f"offset0:{128*(1-(q & 1)) + 16*(7-rho) + 2*h} offset1:{128*(1-(q & 1)) + 16*(7-rho) + 2*h + 1}")
    U = lambda p: f"ds_read_b128 {vr(V_U[s]+4*p, 4)}, v{V_AU} offset:{512*(p+1) - 32*r}"
    out = [T(0, 0), T(0, 1)] + [U(p) for p in range(8)]
    for q in range(1, 8):
        out += [T(q, 0), T(q, 1)]
    return out


def dma(a, s_lds):
    a("s_lshl_b32 s31, s30, 13\ns_add_u32 s32, s31, 4096\ns_lshl_b32 s33, s30, 12")
    for off, so, rs in ((0, 31, 12), (OFF_B, 32, 12), (OFF_U, 33, 16)):
        a(f"s_add_u32 m0, s{s_lds}, {off}")
        for e in range(4):
            a(f"buffer_load_dwordx4 v2, s[{rs}:{rs+3}], s{so} offen offset:{1024*e} lds")


def conv_wg(a, tag, nrounds, ch_expr, stflags=""):
    a(f"s_load_dwordx2 s[4:5], s[0:1], {KA['ws']}\ns_load_dwordx2 s[6:7], s[0:1], {KA['dsk']}")
    ch_expr(a)
    a(f"v_and_b32 v1, 63, v0\nv_lshlrev_b32 v2, 4, v1\ns_mul_i32 s34, s20, {2*BUF}\ns_add_u32 s35, s34, {BUF}\ns_waitcnt lgkmcnt(0)")
    srd_off(a, 12, 4, WS_KC, KC_BYTES); srd_off(a, 16, 4, WS_XNT, XNT_BYTES)
    dma(a, 34)
    srd_off(a, 24, 4, WS_AT, AT_BYTES); srd(a, 8, 6, D*2)
    a("v_mov_b32 v3, 0\ns_lshl_b32 s36, s30, 1")
    for k in range(nrounds):
        a(f"buffer_load_ushort v{40+k}, v3, s[8:11], s36 offen offset:{8*k}")
    a("v_mov_b32 v4, 0\nv_mov_b32 v5, 0\nv_lshlrev_b32 v6, 3, v1\nv_add_u32 v6, s34, v6\nv_and_b32 v7, 7, v1\nv_lshlrev_b32 v7, 3, v7\nv_add_u32 v7, s34, v7")
    for b in range(2):
        a(f"ds_write_b64 v6, v[4:5] offset:{b*BUF + OFF_UPAD}\nds_write_b64 v7, v[4:5] offset:{b*BUF + 4096}\nds_write_b64 v7, v[4:5] offset:{b*BUF + OFF_B + 4096}")
    a("v_and_b32 v8, 15, v1\nv_lshrrev_b32 v9, 4, v1")
    a("v_add_u32 v10, 1, v8\nv_lshrrev_b32 v10, 1, v10\nv_lshlrev_b32 v11, 2, v9\nv_sub_u32 v10, v11, v10\nv_add_u32 v10, 776, v10")
    a(f"v_and_b32 v11, 1, v8\nv_xor_b32 v11, 1, v11\nv_mul_u32_u24 v11, {OFF_B//4 - 1}, v11\nv_add_u32 v10, v10, v11\nv_lshlrev_b32 v10, 2, v10\nv_add_u32 v{V_AT}, s34, v10")
    for k in range(1, 4):
        a(f"v_subrev_u32 v{V_AT+k}, {1024*k}, v{V_AT}")
    a(f"v_lshlrev_b32 v10, 5, v8\nv_lshl_add_u32 v10, v9, 4, v10\ns_add_u32 s36, s34, {OFF_UPAD}\nv_add_u32 v{V_AU}, s36, v10")
    a("v_lshlrev_b32 v10, 5, v8\nv_lshl_add_u32 v25, v9, 3, v10")
    a("v_lshlrev_b32 v10, 3, v9\nv_sub_u32 v10, v8, v10\nv_add_u32 v10, 16, v10\nv_mov_b32 v11, 0xffff\nv_mov_b32 v12, 0xffff0000")
    for m in range(4):
        a(f"v_cmp_eq_u32 vcc, {2*m}, v10\nv_cndmask_b32 v13, 0, v11, vcc\nv_cmp_eq_u32 vcc, {2*m+1}, v10\nv_cndmask_b32 v{V_ID+m}, v13, v12, vcc")
    a(f"s_mov_b32 s37, {BUF}\ns_mov_b32 s38, 0\ns_waitcnt vmcnt(0) lgkmcnt(0)")
    a(f"L_{tag}_round:")
    a("s_lshl_b32 s39, s30, 12\ns_add_u32 s30, s30, 4")
    a.extend(reads(0, 0)[:14])
    a(f"s_cmp_eq_u32 s38, {nrounds-1}\ns_cbranch_scc1 L_{tag}_nodma")
    dma(a, 35)
    a(f"L_{tag}_nodma:")
    a("v_lshl_or_b32 v14, v40, 16, v40")
    for m in range(4):
        a(f"v_and_b32 v{V_ID+4+m}, v14, v{V_ID+m}")
    for k in range(nrounds-1):
        a(f"v_mov_b32 v{40+k}, v{41+k}")
    a("s_waitcnt lgkmcnt(4)")
    a.extend(reads(0, 0)[14:])
    for rho in range(8):
        s = rho & 1
        ms = []
        for q in range(8):
            for p in range(8-q):
                c = "0" if (rho == 0 and q == 0) else vr(V_ACC+4*(q+p), 4)
                ms.append(f"v_mfma_f32_16x16x32_bf16 {vr(V_ACC+4*(q+p),4)}, {vr(V_T[s]+4*q,4)}, {vr(V_U[s]+4*p,4)}, {c}")
            if rho == 0 and q == 0:
                for p in range(8):
                    ms.append(f"v_mfma_f32_16x16x32_bf16 {vr(V_ACC+4*p,4)}, {vr(V_ID+4,4)}, {vr(V_U[s]+4*p,4)}, {vr(V_ACC+4*p,4)}")
        gaps = [[] for _ in ms]
        if rho == 0:
            a("s_waitcnt lgkmcnt(10)")
            gaps[14].append("s_waitcnt lgkmcnt(0)")
            first = 15
        else:
            a("s_waitcnt lgkmcnt(0)")
            first = 0
        if rho < 7:
            for i, x in enumerate(reads(s ^ 1, rho+1)):
                gaps[first + i].append(x)
        a.extend(interleave(ms, gaps))
    for t in range(8):
        b = V_ACC + 4*t
        a(f"v_cvt_pk_bf16_f32 v{48+2*t}, v{b}, v{b+1}\nv_cvt_pk_bf16_f32 v{49+2*t}, v{b+2}, v{b+3}")
        a(f"buffer_store_dwordx2 {vr(48+2*t,2)}, v25, s[24:27], s39 offen offset:{512*t}{stflags}")
    for k in range(4):
        a(f"v_add_u32 v{V_AT+k}, s37, v{V_AT+k}")
    a(f"v_add_u32 v{V_AU}, s37, v{V_AU}\ns_sub_u32 s37, 0, s37")
    a("s_mov_b32 s36, s34\ns_mov_b32 s34, s35\ns_mov_b32 s35, s36")
    a(f"s_add_u32 s38, s38, 1\ns_waitcnt vmcnt(8)\ns_cmp_lt_u32 s38, {nrounds}\ns_cbranch_scc1 L_{tag}_round")
```

```python
from asmlib import *

SLOT = 28672
W_BYTES = 16384
NSLOT = 4
LDS_RING = SLOT * NSLOT

V_ACC = 64
V_SET = (112, 140)
V_DW = 40
V_DA = 44
V_RW = 48
V_RA = 56

S_WAVE = 20
S_ACT0 = 21
S_W0 = 22
S_M0W = 23
S_M0A = 24
S_CNT = 25
SRD_ACT = 28
SRD_W = 32


def acc(nu, dl):
    return V_ACC + 4 * (nu * 3 + dl)


def wfrag(s, nu):
    return V_SET[s] + 4 * nu


def afrag(s, dl):
    return V_SET[s] + 16 + 4 * dl


def gemm_setup(a, dt_stride, w_stride, kmap, s_kh=None):
    a("v_and_b32 v1, 63, v0")
    a("v_and_b32 v2, 15, v1\nv_lshrrev_b32 v3, 4, v1")
    a(f"s_lshl_b32 s26, s{S_WAVE}, 4")
    for e in range(4):
        a(f"v_add_u32 v4, {4*e}, v3\nv_add_u32 v4, s26, v4")
        if kmap == "A":
            a("v_and_b32 v5, 3, v4\nv_bfe_u32 v6, v4, 3, 1\nv_lshl_add_u32 v5, v6, 2, v5")
        else:
            a("v_and_b32 v5, 7, v4")
        a("v_lshlrev_b32 v5, 1, v5\nv_xor_b32 v5, v5, v2\nv_lshlrev_b32 v5, 4, v5")
        a(f"s_mov_b32 s27, {w_stride}\nv_mul_lo_u32 v4, v4, s27\nv_add_u32 v4, v4, v5")
        a(f"v_subrev_u32 v{V_DW+e}, {1024*e}, v4")
    a(f"s_mul_i32 s26, s{S_WAVE}, 3\nv_lshlrev_b32 v7, 4, v1")
    for e in range(3):
        a(f"s_add_u32 s27, s26, {e}\ns_and_b32 s36, s27, 1\ns_lshl_b32 s36, s36, 10\ns_lshr_b32 s27, s27, 1\ns_mul_i32 s27, s27, {dt_stride}")
        a(f"s_add_u32 s27, s27, s36\ns_sub_u32 s27, s27, {1024*e}\nv_add_u32 v{V_DA+e}, s27, v7")
    a(f"s_lshl_b32 s{S_M0W}, s{S_WAVE}, 12")
    a(f"s_mul_i32 s{S_M0A}, s{S_WAVE}, 3072\ns_add_u32 s{S_M0A}, s{S_M0A}, {W_BYTES}")
    a("v_bfe_u32 v4, v1, 2, 2")
    if kmap == "A":
        a("v_lshl_add_u32 v5, v3, 3, v4\nv_and_b32 v6, 1, v3\nv_lshl_add_u32 v6, v6, 2, v4")
    else:
        a("v_lshl_add_u32 v5, v3, 2, v4\nv_and_b32 v6, 7, v5")
    a("v_lshlrev_b32 v5, 8, v5\nv_and_b32 v8, 3, v1\nv_lshl_add_u32 v5, v8, 3, v5")
    if s_kh is None:
        a(f"s_lshr_b32 s26, s{S_WAVE}, 1\ns_lshl_b32 s26, s26, 2")
    else:
        a(f"s_and_b32 s26, s{S_WAVE}, 2\ns_lshl_b32 s27, s{s_kh}, 2\ns_add_u32 s26, s26, s27")
    for nu in range(4):
        if s_kh is None:
            a(f"s_add_u32 s27, s26, {nu}")
        else:
            a(f"s_add_u32 s27, s26, {nu & 1}\ns_xor_b32 s27, s27, {4*(nu >> 1)}")
        a(f"v_xor_b32 v8, s27, v6\nv_lshl_add_u32 v{V_RW+nu}, v8, 5, v5")
        a(f"v_add_u32 v{V_RW+4+nu}, {2*SLOT}, v{V_RW+nu}")
    a(f"s_and_b32 s26, s{S_WAVE}, 1\ns_mul_i32 s26, s26, 6144\ns_add_u32 s26, s26, {W_BYTES}")
    a(f"v_add_u32 v{V_RA}, s26, v7\nv_add_u32 v{V_RA+1}, {2*SLOT}, v{V_RA}")


def dma_w(slot, w_stride, flags=""):
    out = [f"s_add_u32 m0, s{S_M0W}, {slot*SLOT}"]
    out += [f"buffer_load_dwordx4 v{V_DW+e}, s[{SRD_W}:{SRD_W+3}], s{S_W0} offen offset:{1024*e}{flags} lds" for e in range(4)]
    out += [f"s_add_u32 s{S_W0}, s{S_W0}, {64*w_stride}"]
    return out


def dma_a(slot, flags=""):
    out = [f"s_add_u32 m0, s{S_M0A}, {slot*SLOT}"]
    out += [f"buffer_load_dwordx4 v{V_DA+e}, s[{SRD_ACT}:{SRD_ACT+3}], s{S_ACT0} offen offset:{1024*e}{flags} lds" for e in range(3)]
    out += [f"s_add_u32 s{S_ACT0}, s{S_ACT0}, 2048"]
    return out


def pad_m0(lst):
    return [lst[0], "s_nop 0"] + lst[1:]


def reads(s, slot, ks, kmap):
    win, so = slot >> 1, (slot & 1) * SLOT
    hoff = 4 * 256 if kmap == "A" else 16 * 256
    ra = lambda dl: f"ds_read_b128 {vr(afrag(s, dl), 4)}, v{V_RA+win} offset:{so + (2*dl + ks)*1024}"
    rw = lambda nu, h: f"ds_read_b64_tr_b16 {vr(wfrag(s, nu)+2*h, 2)}, v{V_RW+4*win+nu} offset:{so + ks*8192 + h*hoff}"
    return [ra(0), rw(0, 0), rw(0, 1), ra(1), ra(2), rw(1, 0), rw(1, 1), rw(2, 0), rw(2, 1), rw(3, 0), rw(3, 1)]


def mfmas(s, swap, zero=False):
    out = []
    for nu in range(4):
        for dl in range(3):
            w, x = vr(wfrag(s, nu), 4), vr(afrag(s, dl), 4)
            p, q = (x, w) if swap else (w, x)
            c = "0" if zero else vr(acc(nu, dl), 4)
            out.append(f"v_mfma_f32_16x16x32_bf16 {vr(acc(nu, dl), 4)}, {p}, {q}, {c}")
    return out


def stage(a, slot, kmap, swap, w_stride, issue_a, issue_w, vm, last, aflags="", wflags=""):
    m = mfmas(0, swap)
    rd = reads(1, slot, 1, kmap)
    gaps = [[] for _ in range(12)]
    a("s_waitcnt lgkmcnt(6)")
    gaps[0] = [rd[0], rd[1]]
    gaps[1] = [rd[2], rd[3]]
    gaps[2] = ["s_waitcnt lgkmcnt(8)", rd[4]]
    gaps[3] = [rd[5], rd[6]]
    gaps[4] = [rd[7], rd[8]]
    gaps[5] = ["s_waitcnt lgkmcnt(9)", rd[9]]
    gaps[6] = [rd[10]]
    if issue_a:
        d = dma_a((slot + 3) % NSLOT, aflags)
        gaps[6] += [d[0]]
        gaps[7] = [d[1]]
        gaps[8] = [d[2]]
        gaps[9] = [d[3], d[4]]
    if last:
        gaps[11] = ["s_waitcnt lgkmcnt(0)"]
    else:
        gaps[11] = [f"s_waitcnt vmcnt({vm}) lgkmcnt(0)", "s_barrier"]
    a.extend(interleave(m, gaps))
    m = mfmas(1, swap)
    gaps = [[] for _ in range(12)]
    if not last:
        rd = reads(0, (slot + 1) % NSLOT, 0, kmap)
        for g in range(5):
            gaps[g] = [rd[2*g], rd[2*g+1]]
        gaps[5] = [rd[10]]
    if issue_w:
        d = dma_w(slot, w_stride, wflags)
        gaps[5] += [d[0]]
        gaps[6] = [d[1]]
        gaps[7] = [d[2]]
        gaps[8] = [d[3]]
        gaps[9] = [d[4], d[5]]
    a.extend(interleave(m, gaps))


def gemm_prologue(a, w_stride, aflags="", wflags=""):
    for st in range(4):
        a.extend(pad_m0(dma_w(st, w_stride, wflags)))
        if st < 3:
            a.extend(pad_m0(dma_a(st, aflags)))


def gemm_main(a, nstages, kmap, swap, w_stride, tag, aflags="", wflags="", hook=None):
    assert nstages % 4 == 0
    a("s_waitcnt vmcnt(18)\ns_barrier")
    a.extend(reads(0, 0, 0, kmap))
    a(f"s_mov_b32 s{S_CNT}, {nstages//4 - 1}")
    a(f".p2align 6\nL_{tag}_loop:")
    if hook:
        hook(a)
    for slot in range(4):
        stage(a, slot, kmap, swap, w_stride, True, True, 14, False, aflags, wflags)
    a(f"s_sub_u32 s{S_CNT}, s{S_CNT}, 1\ns_cmp_lg_u32 s{S_CNT}, 0\ns_cbranch_scc1 L_{tag}_loop")
    for slot, vm in enumerate((14, 7, 0, 0)):
        stage(a, slot, kmap, swap, w_stride, slot == 0, False, vm, slot == 3, aflags, wflags)
```

```python
import re

TRANS = ("v_exp_f32", "v_log_f32", "v_rcp_f32", "v_rsq_f32", "v_sqrt_f32", "v_sin_f32", "v_cos_f32", "v_rcp_iflag_f32")
REG = re.compile(r"(?<![\w.])(-|abs\()?([vsa])(?:(\d+)|\[(\d+):(\d+)\])")


def regs(op):
    out = set()
    for m in REG.finditer(op):
        k = m.group(2)
        if m.group(3) is not None:
            out.add((k, int(m.group(3))))
        else:
            out.update((k, i) for i in range(int(m.group(4)), int(m.group(5)) + 1))
    if re.search(r"\bvcc(_lo|_hi)?\b", op):
        out.add(("s", "vcc"))
    if re.search(r"\bm0\b", op):
        out.add(("s", "m0"))
    return out


class Ins:
    def __init__(self, line):
        self.line = line
        t = line.split(";")[0].strip()
        self.is_code = bool(t) and not t.endswith(":") and not t.startswith(".")
        self.op = t.split()[0] if self.is_code else ""
        rest = t[len(self.op):].strip() if self.is_code else ""
        ops, depth, cur = [], 0, ""
        for ch in rest:
            if ch == "[":
                depth += 1
            if ch == "]":
                depth -= 1
            if ch == "," and depth == 0:
                ops.append(cur.strip()); cur = ""
            else:
                cur += ch
        if cur.strip():
            ops.append(cur.strip())
        self.ops = ops
        o = self.op
        self.mfma = o.startswith("v_mfma")
        self.valu = o.startswith("v_") and not self.mfma
        self.salu = o.startswith("s_")
        self.ds = o.startswith("ds_")
        self.vmem = o.startswith("buffer_") or o.startswith("global_")
        self.dpp = "_dpp" in o
        self.trans = o.replace("_e32", "").replace("_e64", "") in TRANS
        self.lds_dma = self.vmem and (" lds" in t or "load_lds" in o)
        self.passes = 8 if "32x32" in o else 4
        self.states = (int(ops[0], 0) + 1) if o == "s_nop" else 1
        w, r = set(), set()
        R = [regs(x) for x in ops]
        if self.mfma:
            w = R[0]; self.ab = R[1] | R[2]; self.c = R[3]; r = self.ab | self.c
        elif self.valu:
            if o.startswith("v_permlane") and "swap" in o:
                w = R[0] | R[1]; r = set(w)
            elif o.startswith(("v_add_co", "v_sub_co", "v_subrev_co", "v_addc_co", "v_subb_co")):
                w = R[0] | R[1]; r = set().union(*R[2:])
            else:
                w = R[0]; r = set().union(*R[1:]) if len(R) > 1 else set()
                if o.startswith(("v_fmac", "v_writelane", "v_dot2c")) or self.dpp:
                    r |= R[0]
        elif self.ds:
            if o.startswith("ds_read") or "permute" in o or "swizzle" in o:
                w = R[0]; r = set().union(*R[1:])
            else:
                r = set().union(*R)
        elif self.vmem:
            if "load" in o and not self.lds_dma:
                w = R[0]; r = set().union(*R[1:])
            elif "atomic" in o and " sc0" in t:
                w = R[0]; r = set().union(*R)
            else:
                r = set().union(*R) if R else set()
            if self.lds_dma:
                r.add(("s", "m0"))
            self.wide_store = "store" in o and ("x4" in o or "x3" in o)
            self.data = R[0] if R else set()
        elif self.salu and R:
            if o.startswith(("s_cmp", "s_cbranch", "s_waitcnt", "s_branch", "s_barrier", "s_nop", "s_sleep", "s_setprio", "s_endpgm")):
                r = set().union(*R)
            else:
                w = R[0]; r = set().union(*R[1:]) if len(R) > 1 else set()
        self.w, self.r = w, r


def need(p, c):
    n = 0
    vw = {x for x in p.w if x[0] in "va"}
    sw = {x for x in p.w if x[0] == "s"}
    if p.valu:
        if vw & c.r:
            if c.dpp or c.mfma or c.op.startswith("v_permlane"):
                n = max(n, 2)
            if c.op.startswith(("v_readlane", "v_readfirstlane")):
                n = max(n, 1)
            if p.trans and (c.valu or c.mfma):
                n = max(n, 1)
        if sw & c.r:
            if c.valu:
                n = max(n, 4 if c.op.startswith(("v_readlane", "v_writelane")) else 2)
            if c.vmem:
                n = max(n, 5)
            if c.salu:
                n = max(n, 1)
    if p.mfma:
        big = 12 if p.passes == 8 else 8
        if c.mfma:
            if p.w & c.ab:
                n = max(n, big)
            if p.w & c.c and not (p.w == c.c and p.passes == c.passes):
                n = max(n, big - 2)
            if p.w & c.w and not (p.w == c.w and p.w == c.c):
                n = max(n, big)
        elif (c.valu or c.ds or c.vmem) and p.w & (c.r | c.w):
            n = max(n, big)
        if c.valu and p.c & c.w:
            n = max(n, 7 if p.passes == 8 else 3)
    if p.vmem and p.wide_store and p.data & c.w:
        n = max(n, 2)
    if p.salu and ("s", "m0") in p.w and (c.lds_dma or (c.valu and ("s", "m0") in c.r)):
        n = max(n, 1)
    return n


def fix(lines, window=14, report=None):
    out, hist = [], []
    for ln in lines:
        c = Ins(ln)
        if not c.is_code:
            out.append(ln)
            continue
        dist, pad = 0, 0
        for p in reversed(hist):
            pad = max(pad, need(p, c) - dist)
            dist += p.states
            if dist >= window:
                break
        if pad > 0:
            nop = f"  s_nop {pad-1}"
            out.append(nop); hist.append(Ins(nop))
            if report is not None:
                report.append((ln.strip(), pad))
        out.append(ln); hist.append(c)
        if c.op in ("s_endpgm", "s_branch"):
            hist = []
        hist = hist[-window:]
    return out


def check_loops(lines):
    labels = {ln.strip()[:-1]: i for i, ln in enumerate(lines) if ln.strip().endswith(":") and not ln.strip().startswith(";")}
    bad = []
    for i, ln in enumerate(lines):
        t = ln.split(";")[0].split()
        if t and t[0].startswith(("s_cbranch", "s_branch")) and t[1] in labels:
            j = labels[t[1]]
            before = [x for x in lines[max(0, i-16):i+1]]
            if t[0] == "s_branch":
                before[-1] = "  s_nop 0"
            rep = []
            fix(before + lines[j:j+16], report=rep)
            bad += [(t[1], r) for r in rep]
    return bad
```

```python
from asmlib import *
from layout import *

PITCH = 1216
LN_T = 8 * PITCH
KG_BASE = 2 * LN_T
KP = 528
KG_TAB = 57 * KP
KG_R = 4096 + 32
KG_CH = KG_TAB + KG_R
K1_LDS = KG_BASE + 3 * KG_CH


def wave_sum(a, v, s):
    for c in ("row_ror:1", "row_ror:2", "row_ror:4", "row_ror:8"):
        a(f"v_add_f32_dpp v{v}, v{v}, v{v} {c} row_mask:0xf bank_mask:0xf")
    a(f"v_add_f32_dpp v{v}, v{v}, v{v} row_bcast:15 row_mask:0xa bank_mask:0xf")
    a(f"v_add_f32_dpp v{v}, v{v}, v{v} row_bcast:31 row_mask:0xc bank_mask:0xf")
    a(f"v_readlane_b32 s{s}, v{v}, 63")


def unpack(a, p, x):
    for k in range(4):
        a(f"v_lshlrev_b32 v{x+2*k}, 16, v{p+k}\nv_and_b32 v{x+2*k+1}, 0xffff0000, v{p+k}")
    a(f"v_lshlrev_b32 v{x+8}, 16, v{p+4}")


def rnd(a, v):
    a(f"v_cvt_pk_bf16_f32 v{v}, v{v}, v{v}\nv_lshlrev_b32 v{v}, 16, v{v}")


def layernorm(a, x, p):
    pr = lambda b: vr(b, 2)
    a(f"v_pk_add_f32 v[30:31], {pr(x)}, {pr(x+2)}\nv_pk_add_f32 v[32:33], {pr(x+4)}, {pr(x+6)}")
    a(f"v_pk_add_f32 v[30:31], v[30:31], v[32:33]\nv_add_f32 v30, v30, v31\nv_add_f32 v30, v30, v{x+8}")
    wave_sum(a, 30, 40)
    a("v_mov_b32 v34, 0x3ae38e39\nv_mul_f32 v44, s40, v34")
    for k in range(4):
        a(f"v_pk_add_f32 {pr(36+2*k)}, {pr(x+2*k)}, v[44:45] op_sel_hi:[1,0] neg_lo:[0,1] neg_hi:[0,1]")
    a(f"v_sub_f32 v35, v{x+8}, v44")
    a("v_pk_mul_f32 v[30:31], v[36:37], v[36:37]\nv_pk_mul_f32 v[32:33], v[38:39], v[38:39]")
    a("v_pk_fma_f32 v[30:31], v[40:41], v[40:41], v[30:31]\nv_pk_fma_f32 v[32:33], v[42:43], v[42:43], v[32:33]")
    a("v_pk_add_f32 v[30:31], v[30:31], v[32:33]\nv_add_f32 v30, v30, v31\nv_fmac_f32 v30, v35, v35")
    wave_sum(a, 30, 41)
    rnd(a, 44)
    for k in range(4):
        a(f"v_pk_add_f32 {pr(36+2*k)}, {pr(x+2*k)}, v[44:45] op_sel_hi:[1,0] neg_lo:[0,1] neg_hi:[0,1]")
    a(f"v_sub_f32 v35, v{x+8}, v44")
    a("v_mul_f32 v46, s41, v34")
    rnd(a, 46)
    a("v_add_f32 v46, 0x3727c5ac, v46")
    rnd(a, 46)
    a("v_sqrt_f32 v46, v46")
    for k in range(4):
        a(f"v_cvt_pk_bf16_f32 v{p+k}, v{36+2*k}, v{37+2*k}")
    a(f"v_cvt_pk_bf16_f32 v{p+4}, v35, v35")
    rnd(a, 46)
    a("v_rcp_f32 v46, v46")
    unpack(a, p, x)
    for k in range(4):
        a(f"v_pk_mul_f32 {pr(x+2*k)}, {pr(x+2*k)}, v[46:47] op_sel_hi:[1,0]")
    a(f"v_mul_f32 v{x+8}, v{x+8}, v46")
    for k in range(4):
        a(f"v_cvt_pk_bf16_f32 v{p+k}, v{x+2*k}, v{x+2*k+1}")
    a(f"v_cvt_pk_bf16_f32 v{p+4}, v{x+8}, v{x+8}")


def cmul(a, d, x, y):
    a(f"v_pk_mul_f32 {vr(d,2)}, {vr(x,2)}, {vr(y,2)} op_sel_hi:[0,1]")
    a(f"v_pk_fma_f32 {vr(d,2)}, {vr(x,2)}, {vr(y,2)}, {vr(d,2)} op_sel:[1,1,0] op_sel_hi:[1,0,1] neg_lo:[0,1,0]")


def ln_part(a, prefetch_kb, pf_flags='', pf_match=False):
    a(f"s_load_dwordx2 s[4:5], s[0:1], {KA['x']}\ns_load_dwordx2 s[6:7], s[0:1], {KA['ws']}\ns_load_dwordx2 s[16:17], s[0:1], {KA['w1']}")
    a("s_and_b32 s21, s2, 7\ns_lshl_b32 s21, s21, 5\ns_lshr_b32 s22, s2, 3\ns_add_u32 s21, s21, s22")
    a("s_lshl_b32 s22, s21, 3\ns_add_u32 s22, s22, s20\ns_mul_i32 s22, s22, 1152")
    a("v_lshlrev_b32 v2, 3, v1\nv_lshlrev_b32 v3, 1, v1\nv_lshlrev_b32 v4, 4, v1")
    a("s_waitcnt lgkmcnt(0)")
    srd(a, 8, 4, X_BYTES)
    a("buffer_load_dwordx2 v[10:11], v2, s[8:11], s22 offen\nbuffer_load_dwordx2 v[12:13], v2, s[8:11], s22 offen offset:512")
    a("buffer_load_ushort v14, v3, s[8:11], s22 offen offset:1024")
    if prefetch_kb:
        srd(a, 24, 16, W_BYTES_TOTAL)
        if pf_match:
            a("s_and_b32 s23, s2, 7\ns_mul_i32 s23, s23, 9\ns_lshr_b32 s23, s23, 1\ns_lshl_b32 s23, s23, 8")
            a("s_lshr_b32 s36, s2, 3\ns_lshl_b32 s36, s36, 3\ns_add_u32 s36, s36, s20\ns_mul_i32 s36, s36, 36864\ns_add_u32 s23, s23, s36")
            a("v_lshrrev_b32 v5, 4, v1\nv_mul_u32_u24 v5, 9216, v5\nv_and_b32 v6, 15, v1\nv_lshl_add_u32 v4, v6, 4, v5")
            for i in range(prefetch_kb):
                if i == 5:
                    a(f"s_add_u32 s23, s23, {1024*9216}")
                a(f"buffer_load_dwordx4 v[{64+4*i}:{67+4*i}], v4, s[24:27], s23 offen offset:{256*(i % 5)}{pf_flags}")
        else:
            a(f"s_lshl_b32 s23, s2, 3\ns_add_u32 s23, s23, s20\ns_lshl_b32 s23, s23, 10")
            for i in range(prefetch_kb):
                a(f"buffer_load_dwordx4 v[{64+4*i}:{67+4*i}], v4, s[24:27], s23 offen{pf_flags}\ns_add_u32 s23, s23, {2048*1024}")
    srd_off(a, 12, 6, WS_HT, HT_BYTES)
    srd_off(a, 28, 6, WS_XNT, XNT_BYTES)
    srd_off(a, 32, 6, WS_FLG, FLG_BYTES)
    a("s_cmp_lg_u32 s20, 0\ns_cbranch_scc1 L_k1_noflag\ns_lshl_b32 s23, s2, 7\nv_mov_b32 v5, 0\nv_lshlrev_b32 v6, 2, v1")
    a("s_mov_b32 exec_hi, 0\nbuffer_store_dword v5, v6, s[32:35], s23 offen\ns_mov_b32 exec_hi, -1\nL_k1_noflag:")
    a(f"s_mul_i32 s23, s20, {PITCH}\nv_add_u32 v2, s23, v2\nv_add_u32 v3, s23, v3")
    a(f"s_cmp_lg_u32 s20, 0\ns_cbranch_scc1 L_k1_w1\ns_waitcnt vmcnt({prefetch_kb+1})\ns_branch L_k1_w2\nL_k1_w1:\ns_waitcnt vmcnt({prefetch_kb})\nL_k1_w2:")
    a("; STAMP 0")
    unpack(a, 10, 20)
    layernorm(a, 20, 10)
    a("ds_write_b64 v2, v[10:11]\nds_write_b64 v2, v[12:13] offset:512\nds_write_b16 v3, v14 offset:1024")
    unpack(a, 10, 20)
    layernorm(a, 20, 50)
    a(f"ds_write_b64 v2, v[50:51] offset:{LN_T}\nds_write_b64 v2, v[52:53] offset:{LN_T+512}\nds_write_b16 v3, v54 offset:{LN_T+1024}")
    a("v_and_b32 v5, 15, v1\nv_lshrrev_b32 v6, 4, v1\nv_bfe_u32 v7, v1, 2, 2\nv_and_b32 v8, 3, v1")
    a(f"v_mul_u32_u24 v7, {PITCH}, v7\nv_lshl_add_u32 v7, v8, 3, v7\nv_lshl_add_u32 v7, v6, 5, v7")
    a("v_lshlrev_b32 v15, 12, v1")
    a("v_lshlrev_b32 v16, 16, v6\nv_lshl_add_u32 v16, v5, 4, v16")
    a("s_waitcnt lgkmcnt(0)\ns_barrier\n; STAMP 1")
    for k in range(3):
        a(f"s_add_u32 s36, s20, {8*k}")
        if k == 2:
            a("s_cmp_ge_u32 s36, 18\ns_cbranch_scc1 L_k1_end")
        a("s_cmp_ge_u32 s36, 9\ns_cselect_b32 s37, 9, 0\ns_sub_u32 s38, s36, s37")
        a(f"s_cselect_b32 s37, {LN_T}, 0".replace("s_cselect", "s_cmp_ge_u32 s36, 9\ns_cselect"))
        a("s_lshl_b32 s39, s38, 7\ns_add_u32 s39, s39, s37\nv_add_u32 v9, s39, v7")
        a(f"ds_read_b64_tr_b16 v[56:57], v9\nds_read_b64_tr_b16 v[58:59], v9 offset:{4*PITCH}")
        a(f"s_cmp_ge_u32 s36, 9\ns_cbranch_scc1 L_k1_h{k}")
        a("s_lshl_b32 s39, s38, 18\ns_lshl_b32 s37, s21, 4\ns_add_u32 s39, s39, s37\ns_waitcnt lgkmcnt(0)")
        a(f"buffer_store_dwordx4 v[56:59], v15, s[28:31], s39 offen\ns_branch L_k1_j{k}\nL_k1_h{k}:")
        a("s_lshl_b32 s39, s38, 18\ns_lshl_b32 s37, s21, 8\ns_add_u32 s39, s39, s37\ns_waitcnt lgkmcnt(0)")
        a(f"buffer_store_dwordx4 v[56:59], v16, s[12:15], s39 offen\nL_k1_j{k}:\ns_nop 1")
    a("s_branch L_k1_end")


def kgen_part(a):
    a("s_cmp_ge_u32 s2, 192\ns_cbranch_scc1 L_k1_end")
    a(f"s_load_dwordx8 s[4:11], s[0:1], {KA['lar']}\ns_load_dwordx2 s[12:13], s[0:1], {KA['ldt']}\ns_load_dwordx2 s[14:15], s[0:1], {KA['ws']}")
    a("s_sub_u32 s21, s20, 8\ns_and_b32 s22, s21, 1\ns_lshr_b32 s21, s21, 1")
    a("s_mul_i32 s23, s2, 3\ns_add_u32 s23, s23, s21")
    a("s_lshl_b32 s16, s23, 8\ns_lshl_b32 s17, s22, 7\ns_add_u32 s16, s16, s17\ns_lshl_b32 s17, s23, 1")
    a("v_lshlrev_b32 v2, 1, v1\nv_mov_b32 v3, 0\ns_waitcnt lgkmcnt(0)")
    for i, d in enumerate((24, 28, 32, 36)):
        srd(a, d, 4 + 2*i, D*NST*2)
    srd(a, 40, 12, D*2)
    for i, d in enumerate((24, 28, 32, 36)):
        a(f"buffer_load_ushort v{10+i}, v2, s[{d}:{d+3}], s16 offen")
    a("buffer_load_ushort v14, v3, s[40:43], s17 offen")
    srd_off(a, 44, 14, WS_KC, KC_BYTES)
    a(f"s_mul_i32 s18, s21, {KG_CH}\ns_add_u32 s18, s18, {KG_BASE}\ns_lshl_b32 s19, s22, 8\ns_add_u32 s19, s19, s18")
    a("v_lshl_add_u32 v4, v1, 2, s19")
    a(f"s_mov_b32 s48, {LOG2E:#x}\ns_waitcnt vmcnt(0)\n; STAMP 0")
    for i in range(5):
        a(f"v_lshlrev_b32 v{10+i}, 16, v{10+i}")
    a("v_mul_f32 v14, s48, v14\nv_mul_f32 v10, s48, v10\nv_exp_f32 v14, v14\nv_exp_f32 v10, v10")
    rnd(a, 14); rnd(a, 10)
    a("v_mul_f32 v10, v10, v14\nv_mul_f32 v11, v11, v14\nv_mul_f32 v12, v12, v14\nv_mul_f32 v13, v13, v14")
    a("v_mul_f32 v10, s48, v10\nv_mul_f32 v11, 0.15915494, v11\nv_add_f32 v16, v12, v12\nv_add_f32 v17, v13, v13")
    W = lambda c: 20 + 2*(c-1)
    U1, T = 34, 36
    for dst, p in ((W(1), 1.0), (U1, 8.0), (T, 128.0)):
        a(f"v_mul_f32 v5, {-p}, v10\nv_mul_f32 v6, {p}, v11".replace("-1.0", "-1.0"))
        a("v_exp_f32 v5, v5\nv_fract_f32 v6, v6\nv_cos_f32 v7, v6\nv_sin_f32 v8, v6")
        a(f"v_mul_f32 v{dst}, v5, v7\nv_mul_f32 v{dst+1}, v5, v8")
    tmp = [60, 61, 62, 63]
    cnt = [0]
    def put(row, src, conj):
        t = tmp[cnt[0] % 4]; cnt[0] += 1
        a(f"v_cvt_pk_bf16_f32 v{t}, v{src}, {'-' if conj else ''}v{src+1}\nds_write_b32 v4, v{t} offset:{row*KP}")
    cmul(a, W(2), W(1), W(1)); cmul(a, W(3), W(2), W(1)); cmul(a, W(4), W(2), W(2))
    cmul(a, W(5), W(4), W(1)); cmul(a, W(6), W(4), W(2)); cmul(a, W(7), W(4), W(3))
    a(f"v_mov_b32 v59, 0x3f80\nds_write_b32 v4, v59 offset:{41*KP}")
    put(42, U1, False)
    ub = [38, 40]; Y = [16, 18]; Z = [42, 44]
    prev_u = U1
    for i in range(17):
        y = Y[i % 2]
        if i < 16:
            cmul(a, Y[(i+1) % 2], y, T)
        if 0 <= i < 14:
            cmul(a, ub[i % 2], prev_u, U1)
        if i < 2:
            put(8*i, y, True)
            for c in range(1, 8):
                cmul(a, Z[c % 2], y, W(c)); put(8*i + c, Z[c % 2], True)
        elif i < 4:
            put(16 + 4*(i-2), y, True)
            for c in range(1, 4):
                cmul(a, Z[c % 2], y, W(2*c)); put(16 + 4*(i-2) + c, Z[c % 2], True)
        elif i < 8:
            put(24 + 2*(i-4), y, True)
            cmul(a, Z[0], y, W(4)); put(24 + 2*(i-4) + 1, Z[0], True)
        else:
            put(32 + i - 8, y, True)
        if i < 14:
            put(43 + i, ub[i % 2], False); prev_u = ub[i % 2]
    a("s_waitcnt lgkmcnt(0)\ns_barrier\n; STAMP 1")
    a("s_cmp_lg_u32 s22, 0\ns_cbranch_scc1 L_k1_end")
    a(f"v_and_b32 v5, 15, v1\nv_lshrrev_b32 v6, 4, v1\nv_mul_u32_u24 v7, {KP}, v5\nv_lshl_add_u32 v7, v6, 4, v7\nv_add_u32 v7, s18, v7")
    fs = lambda ks, k: 64 + 16*(ks % 2) + 4*k
    def rd(ks):
        a(f"ds_read_b128 {vr(fs(ks,3),4)}, v7 offset:{41*KP + 64*ks}")
        for t in range(3):
            a(f"ds_read_b128 {vr(fs(ks,t),4)}, v7 offset:{16*t*KP + 64*ks}")
    rd(0)
    for ks in range(8):
        if ks < 7:
            rd(ks+1); a("s_waitcnt lgkmcnt(4)")
        else:
            a("s_waitcnt lgkmcnt(0)")
        for t in range(3):
            a(f"v_mfma_f32_16x16x32_bf16 {vr(100+4*t,4)}, {vr(fs(ks,t),4)}, {vr(fs(ks,3),4)}, {'0' if ks == 0 else vr(100+4*t,4)}")
    a(f"s_add_u32 s19, s18, {KG_TAB+16}\nv_lshlrev_b32 v8, 4, v5")
    a("v_lshl_add_u32 v9, v6, 10, v8\nv_sub_u32 v20, 1272, v9\nv_add_u32 v20, s19, v20")
    a("v_lshl_add_u32 v9, v6, 9, v8\nv_sub_u32 v21, 3828, v9\nv_add_u32 v21, s19, v21")
    a("v_lshl_add_u32 v9, v6, 8, v8\nv_sub_u32 v22, 3570, v9\nv_add_u32 v22, s19, v22\nv_add_u32 v23, 2, v22")
    a("v_lshrrev_b32 v9, 1, v6\nv_lshl_add_u32 v9, v9, 8, v8\nv_and_b32 v24, 1, v6\nv_lshl_add_u32 v9, v24, 3, v9\nv_sub_u32 v24, 4088, v9\nv_add_u32 v24, s19, v24")
    a("v_mov_b32 v25, 0\nv_mov_b32 v26, s19\nds_write_b32 v26, v25 offset:4096")
    for r in range(4):
        v = 108 + r; b = 28 + 4*r
        a(f"v_mov_b32_dpp v{44+r}, v{v} quad_perm:[0,0,2,2] row_mask:0xf bank_mask:0xf")
        a(f"v_cvt_pk_bf16_f32 v{b}, v{v}, v{v}\nv_cvt_pk_bf16_f32 v{b+3}, v{v}, v{44+r}\nv_mov_b32 v{b+1}, v{b}\nv_mov_b32 v{b+2}, v{b}")
    for r in range(4):
        b = 28 + 4*r
        a(f"s_mov_b32 exec_hi, {1 if r == 0 else 0}")
        a(f"ds_write2_b64 v20, {vr(b,2)}, {vr(b+2,2)} offset0:{32*(3-r)} offset1:{32*(3-r)+1}")
    a("s_mov_b32 exec_hi, -1")
    for q in range(2):
        v0, v1 = 104 + 2*q, 105 + 2*q
        a(f"v_cvt_pk_bf16_f32 v{48+3*q}, v{v1}, v{v1}\nv_cvt_pk_bf16_f32 v{49+3*q}, v{v1}, v{v0}\nv_cvt_pk_bf16_f32 v{50+3*q}, v{v0}, v{v0}")
    a("v_cvt_pk_bf16_f32 v54, v107, v107\nv_cvt_pk_bf16_f32 v55, v106, v106\nv_cvt_pk_bf16_f32 v56, v106, v105\nv_cvt_pk_bf16_f32 v57, v104, v104")
    a("v_cvt_pk_bf16_f32 v58, v103, v102\nv_cvt_pk_bf16_f32 v59, v101, v100")
    a("s_mov_b32 exec_lo, 0")
    for q in range(2):
        o = 64*(1-q)
        a(f"ds_write2_b32 v21, v{48+3*q}, v{49+3*q} offset0:{o} offset1:{o+1}\nds_write2_b32 v21, v{50+3*q}, v{50+3*q} offset0:{o+2} offset1:{o+3}")
    a("s_mov_b32 exec_lo, -1\ns_mov_b32 exec_hi, 0")
    a("ds_write_b16 v22, v54\nds_write2_b32 v23, v55, v56 offset0:0 offset1:1\nds_write_b32 v23, v57 offset:8\nds_write_b16 v22, v57 offset:14")
    a("s_mov_b32 exec_hi, -1\nds_write_b64 v24, v[58:59]")
    a("v_lshlrev_b32 v27, 4, v1\nv_add_u32 v9, s19, v27\ns_lshl_b32 s17, s23, 13\ns_add_u32 s16, s17, 4096")
    for k in range(4):
        a(f"ds_read_b128 {vr(64+4*k,4)}, v9 offset:{1024*k}\nds_read_b32 v{80+k}, v9 offset:{1024*k+16}")
    for k in range(4):
        a(f"s_waitcnt lgkmcnt({6-2*k})")
        b = 64 + 4*k
        a(f"buffer_store_dwordx4 {vr(b,4)}, v27, s[44:47], s17 offen offset:{1024*k}")
        for m in range(4):
            a(f"v_alignbit_b32 v{84+4*k+m}, v{b+m+1 if m < 3 else 80+k}, v{b+m}, 16")
        a(f"buffer_store_dwordx4 {vr(84+4*k,4)}, v27, s[44:47], s16 offen offset:{1024*k}")


def k1(a, name, prefetch_kb=0, pf_flags='', pf_match=False):
    a(f".globl {name}\n.p2align 8\n.type {name},@function\n{name}:")
    a("s_cmp_ge_u32 s2, 256\ns_cbranch_scc1 L_k1_end")
    a("v_lshrrev_b32 v1, 6, v0\nv_readfirstlane_b32 s20, v1\nv_and_b32 v1, 63, v0")
    a("s_cmp_ge_u32 s20, 8\ns_cbranch_scc1 L_k1_kgen")
    ln_part(a, prefetch_kb, pf_flags, pf_match)
    a("L_k1_kgen:")
    kgen_part(a)
    a("L_k1_end:\ns_endpgm")
```

```python
import struct
from asmlib import *
from layout import *
import gemm_core as gc
import conv

K2_LDS = max(gc.LDS_RING, conv.CONV_LDS)
AT_LDS = gc.LDS_RING
K3_LDS = gc.LDS_RING + 12288


def f32hex(x):
    return "0x%08x" % struct.unpack("<I", struct.pack("<f", x))[0]


def entry(a, name):
    a(f".globl {name}\n.p2align 8\n.type {name},@function\n{name}:")


def div6(a, d, r, x):
    a(f"s_mul_i32 s{d}, s{x}, 10923\ns_lshr_b32 s{d}, s{d}, 16\ns_mul_i32 s{r}, s{d}, 6\ns_sub_u32 s{r}, s{x}, s{r}")


def unpk(a, x, p):
    a(f"v_lshlrev_b32 v{x}, 16, v{p}\nv_and_b32 v{x+1}, 0xffff0000, v{p}")


def k2(a, name, conv_wgs=36, conv_rounds=4):
    entry(a, name)
    a(f"s_cmp_ge_u32 s2, {216+conv_wgs}\ns_cbranch_scc1 L_k2_end")
    a(f"v_lshrrev_b32 v1, 6, v0\nv_readfirstlane_b32 s{gc.S_WAVE}, v1")
    a("s_cmp_ge_u32 s2, 216\ns_cbranch_scc1 L_k2_conv")
    a(f"s_load_dwordx4 s[4:7], s[0:1], {KA['w1']}\ns_load_dwordx2 s[8:9], s[0:1], {KA['ws']}")
    a("s_and_b32 s12, s2, 7\ns_lshr_b32 s13, s2, 3\ns_mul_i32 s12, s12, 27\ns_add_u32 s12, s12, s13")
    div6(a, 14, 15, 12)
    a(f"s_mul_i32 s{gc.S_ACT0}, s15, {6*65536}\ns_lshl_b32 s{gc.S_W0}, s14, 8")
    gc.gemm_setup(a, 65536, 9216, "A")
    a("s_waitcnt lgkmcnt(0)")
    srd_off(a, gc.SRD_ACT, 8, WS_HT, HT_BYTES)
    srd(a, gc.SRD_W, 4, W_BYTES_TOTAL)
    srd(a, 40, 6, F*2)
    a(f"s_lshr_b32 s16, s{gc.S_WAVE}, 1\ns_lshl_b32 s17, s16, 7\ns_lshl_b32 s18, s14, 8\ns_add_u32 s17, s17, s18\nv_lshlrev_b32 v9, 3, v3")
    for nu in range(4):
        a(f"buffer_load_dwordx2 {vr(12+2*nu,2)}, v9, s[40:43], s17 offen offset:{32*nu}")
    gc.gemm_prologue(a, 9216)
    for i in range(48):
        a(f"v_mov_b32 v{gc.V_ACC+i}, 0")
    srd_off(a, 44, 8, WS_G, G_BYTES)
    a(f"s_and_b32 s17, s{gc.S_WAVE}, 1\ns_mul_i32 s17, s17, 3\ns_mul_i32 s18, s15, 6\ns_add_u32 s17, s17, s18\ns_mul_i32 s17, s17, 147456")
    a("s_lshl_b32 s18, s14, 2\ns_lshl_b32 s16, s16, 1\ns_add_u32 s18, s18, s16\ns_lshl_b32 s18, s18, 10\ns_add_u32 s17, s17, s18")
    a("; STAMP 0")
    gc.gemm_main(a, 32, "A", False, 9216, "g1")
    a("; STAMP 1")
    c1 = -2.0 * 0.7978845608028654 * 1.4426950408889634
    a(f"s_mov_b32 s48, {f32hex(c1*0.044715)}\ns_mov_b32 s49, s48\nv_mov_b32 v36, {f32hex(c1)}\nv_mov_b32 v37, v36")
    for nu in range(4):
        unpk(a, 20+4*nu, 12+2*nu); unpk(a, 22+4*nu, 13+2*nu)
    B = 112
    for dl in range(3):
        for pi in range(2):
            src = [(gc.acc(2*pi + (k >> 1), dl) + 2*(k & 1), 20 + 4*(2*pi + (k >> 1)) + 2*(k & 1)) for k in range(4)]
            U = [B + 2*k for k in range(4)]; T = [B + 8 + 2*k for k in range(4)]; P = [B + 16 + k for k in range(4)]
            O = B + 20 + 4*((2*dl + pi) % 2)
            for k in range(4): a(f"v_cvt_pk_bf16_f32 v{P[k]}, v{src[k][0]}, v{src[k][0]+1}")
            for k in range(4): unpk(a, U[k], P[k])
            for k in range(4): a(f"v_pk_add_f32 {vr(U[k],2)}, {vr(U[k],2)}, {vr(src[k][1],2)}")
            for k in range(4): a(f"v_cvt_pk_bf16_f32 v{P[k]}, v{U[k]}, v{U[k]+1}")
            for k in range(4): unpk(a, U[k], P[k])
            for k in range(4): a(f"v_pk_mul_f32 {vr(T[k],2)}, {vr(U[k],2)}, {vr(U[k],2)}")
            for k in range(4): a(f"v_pk_fma_f32 {vr(T[k],2)}, {vr(T[k],2)}, s[48:49], v[36:37]")
            for k in range(4): a(f"v_pk_mul_f32 {vr(T[k],2)}, {vr(T[k],2)}, {vr(U[k],2)}")
            for k in range(4): a(f"v_exp_f32 v{T[k]}, v{T[k]}\nv_exp_f32 v{T[k]+1}, v{T[k]+1}")
            for k in range(4): a(f"v_pk_add_f32 {vr(T[k],2)}, {vr(T[k],2)}, 1.0 op_sel_hi:[1,0]")
            for k in range(4): a(f"v_rcp_f32 v{T[k]}, v{T[k]}\nv_rcp_f32 v{T[k]+1}, v{T[k]+1}")
            for k in range(4): a(f"v_pk_mul_f32 {vr(U[k],2)}, {vr(U[k],2)}, {vr(T[k],2)}")
            for k in range(4): a(f"v_cvt_pk_bf16_f32 v{O+k}, v{U[k]}, v{U[k]+1}")
            a(f"buffer_store_dwordx4 {vr(O,4)}, v7, s[44:47], s17 offen offset:{1024*pi}")
        a("s_add_u32 s17, s17, 147456")
    a("s_endpgm\nL_k2_conv:")
    conv.conv_wg(a, "cv", conv_rounds, lambda a: a(f"s_sub_u32 s30, s2, 216\ns_mul_i32 s30, s30, {4*conv_rounds}\ns_add_u32 s30, s30, s20"))
    a("L_k2_end:\ns_endpgm")


def k3(a, name, same_xcd=False):
    entry(a, name)
    a("s_cmp_ge_u32 s2, 192\ns_cbranch_scc1 L_k3_end")
    a(f"v_lshrrev_b32 v1, 6, v0\nv_readfirstlane_b32 s{gc.S_WAVE}, v1")
    a(f"s_load_dwordx4 s[4:7], s[0:1], {KA['w2']}\ns_load_dwordx2 s[8:9], s[0:1], {KA['ws']}")
    a(f"s_load_dwordx2 s[10:11], s[0:1], {KA['x']}\ns_load_dwordx2 s[50:51], s[0:1], {KA['out']}")
    a("s_and_b32 s12, s2, 7\ns_lshr_b32 s13, s2, 3")
    if same_xcd:
        a("s_and_b32 s19, s13, 1\ns_lshr_b32 s13, s13, 1")
        div6(a, 14, 15, 13)
        a("s_lshl_b32 s18, s12, 1\ns_add_u32 s14, s14, s18")
        pxor = 8
    else:
        div6(a, 14, 15, 13)
        a("s_and_b32 s19, s12, 1\ns_lshr_b32 s18, s12, 1\ns_lshl_b32 s18, s18, 2\ns_add_u32 s14, s14, s18")
        pxor = 1
    a(f"s_mul_i32 s{gc.S_ACT0}, s15, {6*147456}\ns_mul_i32 s18, s19, {72*1024}\ns_add_u32 s{gc.S_ACT0}, s{gc.S_ACT0}, s18")
    a(f"s_lshl_b32 s{gc.S_W0}, s14, 8\ns_mul_i32 s18, s19, {2304*4096}\ns_add_u32 s{gc.S_W0}, s{gc.S_W0}, s18")
    gc.gemm_setup(a, 147456, 4096, "B", s_kh=19)
    a("s_waitcnt lgkmcnt(0)")
    srd_off(a, gc.SRD_ACT, 8, WS_G, G_BYTES)
    srd(a, gc.SRD_W, 4, W_BYTES_TOTAL)
    srd(a, 40, 10, X_BYTES); srd(a, 44, 6, S*2); srd_off(a, 52, 8, WS_AT, AT_BYTES)
    a(f"s_lshl_b32 s16, s14, 7\ns_lshl_b32 s17, s19, 6\ns_add_u32 s16, s16, s17\ns_lshr_b32 s17, s{gc.S_WAVE}, 1\ns_lshl_b32 s17, s17, 5\ns_add_u32 s17, s17, s16")
    a(f"s_mul_i32 s18, s15, 96\ns_and_b32 s26, s{gc.S_WAVE}, 1\ns_mul_i32 s26, s26, 48\ns_add_u32 s18, s18, s26")
    a("v_mul_u32_u24 v58, 1152, v2\nv_lshl_add_u32 v58, v3, 3, v58\nv_lshlrev_b32 v9, 1, v2")
    a("s_mul_i32 s56, s17, 1152\ns_lshl_b32 s26, s18, 1\ns_add_u32 s56, s56, s26\ns_add_u32 s57, s56, 18432\ns_lshl_b32 s26, s17, 1")
    for nu in range(2):
        for dl in range(3):
            a(f"buffer_load_dwordx2 {vr(10+2*(3*nu+dl),2)}, v58, s[40:43], s{56+nu} offen offset:{32*dl}")
        a(f"buffer_load_ushort v{22+nu}, v9, s[44:47], s26 offen offset:{32*nu}")
    a(f"v_lshrrev_b32 v8, 3, v1\nv_lshlrev_b32 v8, 12, v8\nv_and_b32 v9, 7, v1\nv_lshl_add_u32 v8, v9, 4, v8")
    a(f"s_mul_i32 s26, s15, 96\ns_mul_i32 s27, s{gc.S_WAVE}, 24\ns_add_u32 s26, s26, s27\ns_lshl_b32 s26, s26, 12\ns_lshl_b32 s27, s16, 1\ns_add_u32 s26, s26, s27")
    a(f"s_mul_i32 s27, s{gc.S_WAVE}, 3072\ns_add_u32 s27, s27, {AT_LDS}")
    for e in range(3):
        a(f"s_mov_b32 m0, s27\ns_add_u32 s27, s27, 1024\nbuffer_load_dwordx4 v8, s[52:55], s26 offen lds\ns_add_u32 s26, s26, 32768")
    gc.gemm_prologue(a, 4096)
    for i in range(48):
        a(f"v_mov_b32 v{gc.V_ACC+i}, 0")
    a(f"v_bfe_u32 v4, v1, 2, 2\nv_lshl_add_u32 v4, v3, 2, v4\nv_lshlrev_b32 v4, 7, v4\nv_and_b32 v5, 3, v1\nv_lshl_add_u32 v4, v5, 3, v4")
    a(f"s_and_b32 s26, s{gc.S_WAVE}, 1\ns_mul_i32 s26, s26, 6144\ns_lshr_b32 s27, s{gc.S_WAVE}, 1\ns_lshl_b32 s27, s27, 6\ns_add_u32 s26, s26, s27\ns_add_u32 s26, s26, {AT_LDS}\nv_add_u32 v59, s26, v4")
    srd_off(a, 40, 8, WS_XCH, XCH_BYTES); srd_off(a, 44, 8, WS_FLG, FLG_BYTES); srd(a, 52, 50, X_BYTES)
    a(f"s_xor_b32 s58, s2, {pxor}\ns_mul_i32 s26, s{gc.S_WAVE}, 6144\ns_mul_i32 s59, s58, 24576\ns_add_u32 s59, s59, s26\ns_mul_i32 s60, s2, 24576\ns_add_u32 s60, s60, s26")
    gc.gemm_main(a, 36, "B", True, 4096, "g2")
    a("; STAMP 0")
    for k in range(6):
        a(f"buffer_store_dwordx4 {vr(gc.V_ACC+24+4*k,4)}, v7, s[40:43], s59 offen sc1\ns_add_u32 s59, s59, 1024")
    AR, PF = 112, 124
    for nu in range(2):
        for dl in range(3):
            a(f"ds_read_b64_tr_b16 {vr(AR+2*(3*nu+dl),2)}, v59 offset:{2048*dl + 32*nu}")
    a("v_lshlrev_b32 v22, 16, v22\nv_lshlrev_b32 v24, 16, v23\ns_waitcnt lgkmcnt(0)")
    for t in range(6):
        for h in range(2):
            unpk(a, 26, 10+2*t+h); unpk(a, 28, AR+2*t+h)
            a(f"v_pk_add_f32 v[26:27], v[26:27], v[28:29]\nv_cvt_pk_bf16_f32 v30, v26, v27")
            unpk(a, PF+4*t+2*h, 30)
    a("s_waitcnt vmcnt(0)\ns_barrier")
    a(f"s_cmp_lg_u32 s{gc.S_WAVE}, 0\ns_cbranch_scc1 L_k3_wait")
    a("s_lshl_b32 s26, s2, 7\ns_lshl_b32 s27, s58, 7\nv_mov_b32 v4, 1\nv_mov_b32 v5, 0\ns_mov_b64 exec, 1")
    a("buffer_store_dword v4, v5, s[44:47], s26 offen sc1")
    a("s_mov_b32 s61, 0x100000\nL_k3_poll:\nbuffer_load_dword v6, v5, s[44:47], s27 offen sc1\ns_sub_u32 s61, s61, 1\ns_cbranch_scc1 L_k3_go")
    a("s_waitcnt vmcnt(0)\nv_readfirstlane_b32 s26, v6\ns_cmp_lg_u32 s26, 1\ns_cbranch_scc1 L_k3_poll\nL_k3_go:")
    a("s_mov_b64 exec, -1\nL_k3_wait:\ns_barrier\n; STAMP 1")
    RX = 148
    for k in range(6):
        a(f"buffer_load_dwordx4 {vr(RX+4*k,4)}, v7, s[40:43], s60 offen sc1\ns_add_u32 s60, s60, 1024")
    for t in range(6):
        nu, dl = divmod(t, 3)
        b, r, p = gc.V_ACC + 4*t, RX + 4*t, PF + 4*t
        a("s_waitcnt vmcnt(5)")
        for h in range(2): a(f"v_pk_add_f32 {vr(b+2*h,2)}, {vr(b+2*h,2)}, {vr(r+2*h,2)}")
        for h in range(2): a(f"v_cvt_pk_bf16_f32 v{26+h}, v{b+2*h}, v{b+2*h+1}")
        for h in range(2): unpk(a, b+2*h, 26+h)
        for h in range(2): a(f"v_pk_add_f32 {vr(b+2*h,2)}, {vr(b+2*h,2)}, {vr(22+2*nu,2)} op_sel_hi:[1,0]")
        for h in range(2): a(f"v_cvt_pk_bf16_f32 v{26+h}, v{b+2*h}, v{b+2*h+1}")
        for h in range(2): unpk(a, b+2*h, 26+h)
        for h in range(2): a(f"v_pk_add_f32 {vr(b+2*h,2)}, {vr(b+2*h,2)}, {vr(p+2*h,2)}")
        for h in range(2): a(f"v_cvt_pk_bf16_f32 v{10+2*t+h}, v{b+2*h}, v{b+2*h+1}")
        a(f"buffer_store_dwordx2 {vr(10+2*t,2)}, v58, s[52:55], s{56+nu} offen offset:{32*dl}")
    a("L_k3_end:\ns_endpgm")
```

```python
NAME = "parallel_sum__ssm_conv_s4d__mixer_token_mlp__prompt"
S, D, F, NST = 2048, 576, 4608, 128
KA = dict(x=0, lar=8, aim=16, cre=24, cim=32, ldt=40, dsk=48, w1=64, b1=72, w2=80, b2=88, out=96, dbg=104, ws=112)
X_BYTES = S * D * 2
W_BYTES_TOTAL = S * F * 2
WS_HT, HT_BYTES = 0x000000, 0x240000
WS_XNT, XNT_BYTES = 0x240000, 0x240000
WS_G, G_BYTES = 0x480000, 0x510000
WS_AT, AT_BYTES = 0x990000, 0x240000
WS_KC, KC_BYTES = 0xBD0000, 0x480000
WS_XCH, XCH_BYTES = 0xBD0000, 0x600000
WS_FLG, FLG_BYTES = 0x14D0000, 0x40000
import os
_b = int(os.environ.get('WS_BASE', '0'), 0)
WS_HT += _b; WS_XNT += _b; WS_G += _b; WS_AT += _b; WS_KC += _b; WS_XCH += _b; WS_FLG += _b
LOG2E = 0x3FB8AA3B
FLG_CONV = 200 * 128
F_LN, F_G, F_CONV, F_XCH = 0, 16 * 256, 28 * 256, 40 * 256
F_LNW = 0x10000
F_GL = 40 * 256
F_GW = 0x20000
```

```python
import sys
sys.path.insert(0, "dev")
from asmlib import *
from layout import *
import hazard, k1 as K1, k23

HEADER = open(f"cdna_kernels/{NAME}.s.ref").read().split("; Override launch geometry")[0]


def descriptor(name, vgpr, sgpr=96):
    return (f".p2align 6\n.amdhsa_kernel {name}\n  .amdhsa_next_free_vgpr {vgpr}\n  .amdhsa_next_free_sgpr {sgpr}\n"
            f"  .amdhsa_accum_offset {vgpr}\n  .amdhsa_group_segment_fixed_size 0\n  .amdhsa_kernarg_size 120\n"
            "  .amdhsa_user_sgpr_count 2\n  .amdhsa_user_sgpr_kernarg_segment_ptr 1\n  .amdhsa_system_sgpr_workgroup_id_x 1\n"
            ".end_amdhsa_kernel\n")


WS_STAMP = 0x2000000


def add_stamps(lines, names):
    out, k = [], -1
    for ln in lines:
        t = ln.strip()
        if t.endswith(":") and t[:-1] in names:
            k = names.index(t[:-1])
            out += [ln, "  s_memrealtime s[90:91]", "  s_load_dwordx2 s[86:87], s[0:1], 112", "  v_lshrrev_b32 v255, 6, v0".replace("v255", "v127"),
                    "  s_nop 0", "  v_readfirstlane_b32 s85, v127", "  s_lshl_b32 s84, s2, 4", "  s_add_u32 s85, s85, s84", "  s_lshl_b32 s85, s85, 4", "  s_waitcnt lgkmcnt(0)"]
            continue
        if t.startswith("; STAMP"):
            i = int(t.split()[2])
            out += [f"  s_memrealtime s[{70+2*i}:{71+2*i}]"]
            continue
        if t == "s_endpgm":
            out += ["  s_waitcnt vmcnt(0) lgkmcnt(0)", "  s_memrealtime s[92:93]",
                    f"  s_add_u32 s80, s86, {WS_STAMP + k*0x40000:#x}", "  s_addc_u32 s81, s87, 0", "  s_mov_b32 s82, 0x40000", "  s_mov_b32 s83, 0x20000",
                    "  s_waitcnt lgkmcnt(0)", "  s_mov_b64 exec, 1", "  v_mov_b32 v120, s90", "  v_mov_b32 v121, s92", "  v_mov_b32 v122, s70", "  v_mov_b32 v123, s72",
                    "  v_mov_b32 v124, 0", "  buffer_store_dwordx4 v[120:123], v124, s[80:83], s85 offen"]
        out.append(ln)
    return out


def build(prefetch_kb=0, same_xcd=False, extra_launches=(), stamps=False, **opt):
    launches = [("ln_kgen_kernel", 256, 896, K1.K1_LDS, 128),
                ("gemm1_conv_kernel", 252, 256, k23.K2_LDS, 256),
                ("gemm2_kernel", 192, 256, k23.K3_LDS, 256)]
    a = Asm()
    K1.k1(a, launches[0][0], prefetch_kb, opt.get('pf_flags', ''), opt.get('pf_match', False))
    k23.k2(a, launches[1][0])
    k23.k3(a, launches[2][0], same_xcd)
    if opt.get("empties"):
        a(".globl empty_kernel\n.p2align 8\n.type empty_kernel,@function\nempty_kernel:\ns_endpgm")
        launches += [("empty_kernel", 256, 256, 0, 8)] * opt["empties"]
    rep = []
    if stamps:
        a.lines = add_stamps(a.lines, [l[0] for l in launches])
    lines = hazard.fix(a.lines, report=rep)
    bad = hazard.check_loops(lines)
    assert not bad, bad
    head = HEADER
    for n, g, b, lds, _ in launches:
        head += f"; @launch kernel={n} grid=({g},1,1) block=({b},1,1) lds={lds}\n"
    for n, g, b, lds in extra_launches:
        head += f"; @launch kernel={n} grid=({g},1,1) block=({b},1,1) lds={lds}\n"
    text = head + '.amdgcn_target "amdgcn-amd-amdhsa--gfx950"\n.text\n' + "\n".join(lines) + "\n"
    text += '.section .rodata,"a"\n' + "".join(descriptor(n, v) for n, v in dict((l[0], l[4]) for l in launches).items())
    return text, launches, rep


if __name__ == "__main__":
    kw = dict(x.split("=") for x in sys.argv[2:])
    kw = {k: eval(v) for k, v in kw.items()}
    text, launches, rep = build(**kw)
    out = sys.argv[1] if len(sys.argv) > 1 else f"cdna_kernels/{NAME}.s"
    open(out, "w").write(text)
    print(len(text), "bytes;", len(rep), "pads inserted")
```

```python
from asmlib import *
from layout import *

OFF_B = 4160
OFF_UPAD = 8320
OFF_U = 8832
BUF = 12928
CONV_LDS = 8 * BUF

V_T = (64, 128)
V_U = (96, 160)
V_ACC = 192
V_AT, V_AU = 20, 24
V_ID = 28


def reads(s, rho):
    r = 2*rho + 1
    T = lambda q, h: (f"ds_read2_b32 {vr(V_T[s]+4*q+2*h, 2)}, v{V_AT + (q >> 1)} "
                      f"offset0:{128*(1-(q & 1)) + 16*(7-rho) + 2*h} offset1:{128*(1-(q & 1)) + 16*(7-rho) + 2*h + 1}")
    U = lambda p: f"ds_read_b128 {vr(V_U[s]+4*p, 4)}, v{V_AU} offset:{512*(p+1) - 32*r}"
    out = [T(0, 0), T(0, 1)] + [U(p) for p in range(8)]
    for q in range(1, 8):
        out += [T(q, 0), T(q, 1)]
    return out


def dma(a, s_lds):
    a("s_lshl_b32 s31, s30, 13\ns_add_u32 s32, s31, 4096\ns_lshl_b32 s33, s30, 12")
    for off, so, rs in ((0, 31, 12), (OFF_B, 32, 12), (OFF_U, 33, 16)):
        a(f"s_add_u32 m0, s{s_lds}, {off}")
        for e in range(4):
            a(f"buffer_load_dwordx4 v2, s[{rs}:{rs+3}], s{so} offen offset:{1024*e} lds")


def conv_wg(a, tag, nrounds, ch_expr, publish=False):
    a(f"s_load_dwordx2 s[4:5], s[0:1], {KA['ws']}\ns_load_dwordx2 s[6:7], s[0:1], {KA['dsk']}")
    ch_expr(a)
    stflags = " sc1" if publish else ""
    a(f"v_and_b32 v1, 63, v0\nv_lshlrev_b32 v2, 4, v1\ns_mul_i32 s34, s20, {2*BUF}\ns_add_u32 s35, s34, {BUF}\ns_waitcnt lgkmcnt(0)")
    srd_off(a, 12, 4, WS_KC, KC_BYTES); srd_off(a, 16, 4, WS_XNT, XNT_BYTES)
    dma(a, 34)
    srd_off(a, 24, 4, WS_AT, AT_BYTES); srd(a, 8, 6, D*2)
    a("v_mov_b32 v3, 0\ns_lshl_b32 s36, s30, 1")
    for k in range(nrounds):
        a(f"buffer_load_ushort v{40+k}, v3, s[8:11], s36 offen offset:{8*k}")
    a("v_mov_b32 v4, 0\nv_mov_b32 v5, 0\nv_lshlrev_b32 v6, 3, v1\nv_add_u32 v6, s34, v6\nv_and_b32 v7, 7, v1\nv_lshlrev_b32 v7, 3, v7\nv_add_u32 v7, s34, v7")
    for b in range(2):
        a(f"ds_write_b64 v6, v[4:5] offset:{b*BUF + OFF_UPAD}\nds_write_b64 v7, v[4:5] offset:{b*BUF + 4096}\nds_write_b64 v7, v[4:5] offset:{b*BUF + OFF_B + 4096}")
    a("v_and_b32 v8, 15, v1\nv_lshrrev_b32 v9, 4, v1")
    a("v_add_u32 v10, 1, v8\nv_lshrrev_b32 v10, 1, v10\nv_lshlrev_b32 v11, 2, v9\nv_sub_u32 v10, v11, v10\nv_add_u32 v10, 776, v10")
    a(f"v_and_b32 v11, 1, v8\nv_xor_b32 v11, 1, v11\nv_mul_u32_u24 v11, {OFF_B//4 - 1}, v11\nv_add_u32 v10, v10, v11\nv_lshlrev_b32 v10, 2, v10\nv_add_u32 v{V_AT}, s34, v10")
    for k in range(1, 4):
        a(f"v_subrev_u32 v{V_AT+k}, {1024*k}, v{V_AT}")
    a(f"v_lshlrev_b32 v10, 5, v8\nv_lshl_add_u32 v10, v9, 4, v10\ns_add_u32 s36, s34, {OFF_UPAD}\nv_add_u32 v{V_AU}, s36, v10")
    a("v_lshlrev_b32 v10, 5, v8\nv_lshl_add_u32 v25, v9, 3, v10")
    a("v_lshlrev_b32 v10, 3, v9\nv_sub_u32 v10, v8, v10\nv_add_u32 v10, 16, v10\nv_mov_b32 v11, 0xffff\nv_mov_b32 v12, 0xffff0000")
    for m in range(4):
        a(f"v_cmp_eq_u32 vcc, {2*m}, v10\nv_cndmask_b32 v13, 0, v11, vcc\nv_cmp_eq_u32 vcc, {2*m+1}, v10\nv_cndmask_b32 v{V_ID+m}, v13, v12, vcc")
    a(f"s_mov_b32 s37, {BUF}\ns_mov_b32 s38, 0\ns_waitcnt vmcnt(0) lgkmcnt(0)")
    a(f"L_{tag}_round:")
    a("s_lshl_b32 s39, s30, 12\ns_add_u32 s30, s30, 4")
    a.extend(reads(0, 0)[:14])
    a(f"s_cmp_eq_u32 s38, {nrounds-1}\ns_cbranch_scc1 L_{tag}_nodma")
    dma(a, 35)
    a(f"L_{tag}_nodma:")
    a("v_lshl_or_b32 v14, v40, 16, v40")
    for m in range(4):
        a(f"v_and_b32 v{V_ID+4+m}, v14, v{V_ID+m}")
    for k in range(nrounds-1):
        a(f"v_mov_b32 v{40+k}, v{41+k}")
    a("s_waitcnt lgkmcnt(4)")
    a.extend(reads(0, 0)[14:])
    for rho in range(8):
        s = rho & 1
        ms = []
        for q in range(8):
            for p in range(8-q):
                c = "0" if (rho == 0 and q == 0) else vr(V_ACC+4*(q+p), 4)
                ms.append(f"v_mfma_f32_16x16x32_bf16 {vr(V_ACC+4*(q+p),4)}, {vr(V_T[s]+4*q,4)}, {vr(V_U[s]+4*p,4)}, {c}")
            if rho == 0 and q == 0:
                for p in range(8):
                    ms.append(f"v_mfma_f32_16x16x32_bf16 {vr(V_ACC+4*p,4)}, {vr(V_ID+4,4)}, {vr(V_U[s]+4*p,4)}, {vr(V_ACC+4*p,4)}")
        gaps = [[] for _ in ms]
        if rho == 0:
            a("s_waitcnt lgkmcnt(10)")
            gaps[14].append("s_waitcnt lgkmcnt(0)")
            first = 15
        else:
            a("s_waitcnt lgkmcnt(0)")
            first = 0
        if rho < 7:
            for i, x in enumerate(reads(s ^ 1, rho+1)):
                gaps[first + i].append(x)
        a.extend(interleave(ms, gaps))
    for t in range(8):
        b = V_ACC + 4*t
        a(f"v_cvt_pk_bf16_f32 v{48+2*t}, v{b}, v{b+1}\nv_cvt_pk_bf16_f32 v{49+2*t}, v{b+2}, v{b+3}")
        a(f"buffer_store_dwordx2 {vr(48+2*t,2)}, v25, s[24:27], s39 offen offset:{512*t}{stflags}")
    for k in range(4):
        a(f"v_add_u32 v{V_AT+k}, s37, v{V_AT+k}")
    a(f"v_add_u32 v{V_AU}, s37, v{V_AU}\ns_sub_u32 s37, 0, s37")
    a("s_mov_b32 s36, s34\ns_mov_b32 s34, s35\ns_mov_b32 s35, s36")
    a(f"s_add_u32 s38, s38, 1\ns_waitcnt vmcnt(8)\ns_cmp_lt_u32 s38, {nrounds}\ns_cbranch_scc1 L_{tag}_round")
    if publish:
        srd_off(a, 8, 4, WS_FLG, FLG_BYTES)
        a(f"s_waitcnt vmcnt(0)\nv_mov_b32 v4, 1\nv_mov_b32 v5, {FLG_CONV}\ns_mov_b64 exec, 1\nbuffer_atomic_add v4, v5, s[8:11], 0 offen sc1")
```

```python
from asmlib import *

SLOT = 28672
W_BYTES = 16384
NSLOT = 4
LDS_RING = SLOT * NSLOT

V_ACC = 64
V_SET = (112, 140)
V_DW = 40
V_DA = 44
V_RW = 48
V_RA = 56

S_WAVE = 20
S_ACT0 = 21
S_W0 = 22
S_CNT = 25
SRD_ACT = 28
SRD_W = 32
LEAD = 3


def acc(nu, dl):
    return V_ACC + 4 * (nu * 3 + dl)


def wfrag(s, nu):
    return V_SET[s] + 4 * nu


def afrag(s, dl):
    return V_SET[s] + 16 + 4 * dl


def lane_ids(a):
    a("v_and_b32 v1, 63, v0\nv_and_b32 v2, 15, v1\nv_lshrrev_b32 v3, 4, v1\nv_lshlrev_b32 v7, 4, v1")


def loader_setup(a, dt_stride, w_stride, kmap):
    a(f"v_mul_u32_u24 v4, {w_stride}, v3\nv_lshlrev_b32 v5, 1, v3\nv_xor_b32 v5, v5, v2")
    a("v_lshl_add_u32 v6, v5, 4, v4\nv_xor_b32 v5, 8, v5\nv_lshl_add_u32 v8, v5, 4, v4")
    for e in range(4):
        hi = (e >> 1) & 1 if kmap == "A" else e & 1
        a(f"v_add_u32 v{V_DW+e}, {e*(4*w_stride - 1024)}, v{8 if hi else 6}")
    for e in range(4):
        a(f"v_add_u32 v{V_DA+e}, {(e >> 1)*(dt_stride - 2048)}, v7")


def compute_setup(a, kmap, s_kh=None):
    a("v_bfe_u32 v4, v1, 2, 2")
    if kmap == "A":
        a("v_lshl_add_u32 v5, v3, 3, v4\nv_and_b32 v6, 1, v3\nv_lshl_add_u32 v6, v6, 2, v4")
    else:
        a("v_lshl_add_u32 v5, v3, 2, v4\nv_and_b32 v6, 7, v5")
    a("v_lshlrev_b32 v5, 8, v5\nv_and_b32 v8, 3, v1\nv_lshl_add_u32 v5, v8, 3, v5")
    if s_kh is None:
        a(f"s_lshr_b32 s26, s{S_WAVE}, 1\ns_lshl_b32 s26, s26, 2")
    else:
        a(f"s_and_b32 s26, s{S_WAVE}, 2\ns_lshl_b32 s27, s{s_kh}, 2\ns_add_u32 s26, s26, s27")
    for nu in range(4):
        if s_kh is None:
            a(f"s_add_u32 s27, s26, {nu}")
        else:
            a(f"s_add_u32 s27, s26, {nu & 1}\ns_xor_b32 s27, s27, {4*(nu >> 1)}")
        a(f"v_xor_b32 v8, s27, v6\nv_lshl_add_u32 v{V_RW+nu}, v8, 5, v5\nv_add_u32 v{V_RW+4+nu}, {2*SLOT}, v{V_RW+nu}")
    a(f"s_and_b32 s26, s{S_WAVE}, 1\ns_mul_i32 s26, s26, 6144\ns_add_u32 s26, s26, {W_BYTES}")
    a(f"v_add_u32 v{V_RA}, s26, v7\nv_add_u32 v{V_RA+1}, {2*SLOT}, v{V_RA}")


def dma_groups(slot, dt_stride, w_stride, aflags="", wflags=""):
    out = []
    for kind, E in (("a", 0), ("w", 0), ("w", 1), ("a", 1), ("w", 2), ("a", 2), ("w", 3)):
        if kind == "w":
            g = [f"s_mov_b32 m0, {slot*SLOT + 4096*E}"]
            g += [f"buffer_load_dwordx4 v{V_DW+e}, s[{SRD_W}:{SRD_W+3}], s{S_W0} offen offset:{1024*e}{wflags} lds" for e in range(4)]
            g += [f"s_add_u32 s{S_W0}, s{S_W0}, {16*w_stride}"]
        else:
            g = [f"s_mov_b32 m0, {slot*SLOT + W_BYTES + 4096*E}"]
            g += [f"buffer_load_dwordx4 v{V_DA+e}, s[{SRD_ACT}:{SRD_ACT+3}], s{S_ACT0} offen offset:{1024*e}{aflags} lds" for e in range(4)]
            g += [f"s_add_u32 s{S_ACT0}, s{S_ACT0}, {2*dt_stride}" if E < 2 else f"s_sub_u32 s{S_ACT0}, s{S_ACT0}, {4*dt_stride - 2048}"]
        out.append(g)
    return out


def loader_main(a, nstages, dt_stride, w_stride, tag, aflags="", wflags="", before_last=None):
    assert nstages % 4 == 0
    G = lambda j: dma_groups(j % NSLOT, dt_stride, w_stride, aflags, wflags)
    flat = lambda gs: [x for g in gs for x in g]
    vm = 28 + 4*LEAD
    a.extend(flat(G(0)) + flat(G(1)[:LEAD]))
    a(f"s_waitcnt vmcnt({4*LEAD})\ns_barrier")
    a.extend(flat(G(1)[LEAD:]) + flat(G(2)) + flat(G(3)[:LEAD]))
    a(f"s_waitcnt vmcnt({vm})\ns_barrier")
    a.extend(flat(G(3)[LEAD:]))
    a(f"s_mov_b32 s{S_CNT}, {nstages//4 - 1}\nL_{tag}_lloop:")
    for slot in range(4):
        a.extend(flat(G(slot)[:LEAD]))
        a(f"s_waitcnt vmcnt({vm})\ns_barrier")
        a.extend(flat(G(slot)[LEAD:]))
    a(f"s_sub_u32 s{S_CNT}, s{S_CNT}, 1\ns_cmp_lg_u32 s{S_CNT}, 0\ns_cbranch_scc1 L_{tag}_lloop")
    a("s_waitcnt vmcnt(28)\ns_barrier")
    if before_last:
        before_last(a)
    a("s_waitcnt vmcnt(0)\ns_barrier")


def reads(s, slot, ks, kmap):
    win, so = slot >> 1, (slot & 1) * SLOT
    hoff = 4 * 256 if kmap == "A" else 16 * 256
    ra = lambda dl: f"ds_read_b128 {vr(afrag(s, dl), 4)}, v{V_RA+win} offset:{so + (2*dl + ks)*1024}"
    rw = lambda nu, h: f"ds_read_b64_tr_b16 {vr(wfrag(s, nu)+2*h, 2)}, v{V_RW+4*win+nu} offset:{so + ks*8192 + h*hoff}"
    return [ra(0), rw(0, 0), rw(0, 1), ra(1), ra(2), rw(1, 0), rw(1, 1), rw(2, 0), rw(2, 1), rw(3, 0), rw(3, 1)]


def mfmas(s, swap):
    out = []
    for nu in range(4):
        for dl in range(3):
            w, x = vr(wfrag(s, nu), 4), vr(afrag(s, dl), 4)
            p, q = (x, w) if swap else (w, x)
            out.append(f"v_mfma_f32_16x16x32_bf16 {vr(acc(nu, dl), 4)}, {p}, {q}, {vr(acc(nu, dl), 4)}")
    return out


def stage(a, slot, kmap, swap, last):
    m = mfmas(0, swap)
    rd = reads(1, slot, 1, kmap)
    gaps = [[] for _ in range(12)]
    a("s_waitcnt lgkmcnt(6)")
    gaps[0] = [rd[0], rd[1]]
    gaps[1] = [rd[2], rd[3]]
    gaps[2] = ["s_waitcnt lgkmcnt(8)", rd[4]]
    gaps[3] = [rd[5], rd[6]]
    gaps[4] = [rd[7], rd[8]]
    gaps[5] = ["s_waitcnt lgkmcnt(9)", rd[9]]
    gaps[6] = [rd[10]]
    gaps[11] = ["s_waitcnt lgkmcnt(0)"] + ([] if last else ["s_barrier"])
    a.extend(interleave(m, gaps))
    m = mfmas(1, swap)
    gaps = [[] for _ in range(12)]
    if not last:
        rd = reads(0, (slot + 1) % NSLOT, 0, kmap)
        for g in range(5):
            gaps[g] = [rd[2*g], rd[2*g+1]]
        gaps[5] = [rd[10]]
    a.extend(interleave(m, gaps))


def compute_main(a, nstages, kmap, swap, tag, hook=None):
    a("; STAMP 0\ns_barrier\n; STAMP 1\n; CYC 0")
    a.extend(reads(0, 0, 0, kmap))
    a(f"s_mov_b32 s{S_CNT}, {nstages//4 - 1}")
    a(f".p2align 6\nL_{tag}_loop:")
    if hook:
        hook(a)
    for slot in range(4):
        stage(a, slot, kmap, swap, False)
    a(f"s_sub_u32 s{S_CNT}, s{S_CNT}, 1\ns_cmp_lg_u32 s{S_CNT}, 0\ns_cbranch_scc1 L_{tag}_loop")
    for slot in range(4):
        stage(a, slot, kmap, swap, slot == 3)
    a("; CYC 1")
```

```python
from asmlib import *
from layout import *
import prefetch

PITCH = 1216
LN_T = 8 * PITCH
KG_BASE = 2 * LN_T
KP = 528
KG_TAB = 57 * KP
KG_R = 4096 + 32
KG_CH = KG_TAB + KG_R
K1_LDS = KG_BASE + 3 * KG_CH


def wave_sum(a, v, s):
    for c in ("row_ror:1", "row_ror:2", "row_ror:4", "row_ror:8"):
        a(f"v_add_f32_dpp v{v}, v{v}, v{v} {c} row_mask:0xf bank_mask:0xf")
    a(f"v_add_f32_dpp v{v}, v{v}, v{v} row_bcast:15 row_mask:0xa bank_mask:0xf")
    a(f"v_add_f32_dpp v{v}, v{v}, v{v} row_bcast:31 row_mask:0xc bank_mask:0xf")
    a(f"v_readlane_b32 s{s}, v{v}, 63")


def unpack(a, p, x):
    for k in range(4):
        a(f"v_lshlrev_b32 v{x+2*k}, 16, v{p+k}\nv_and_b32 v{x+2*k+1}, 0xffff0000, v{p+k}")
    a(f"v_lshlrev_b32 v{x+8}, 16, v{p+4}")


def rnd(a, v):
    a(f"v_cvt_pk_bf16_f32 v{v}, v{v}, v{v}\nv_lshlrev_b32 v{v}, 16, v{v}")


def layernorm(a, x, p):
    pr = lambda b: vr(b, 2)
    a(f"v_pk_add_f32 v[30:31], {pr(x)}, {pr(x+2)}\nv_pk_add_f32 v[32:33], {pr(x+4)}, {pr(x+6)}")
    a(f"v_pk_add_f32 v[30:31], v[30:31], v[32:33]\nv_add_f32 v30, v30, v31\nv_add_f32 v30, v30, v{x+8}")
    wave_sum(a, 30, 40)
    a("v_mov_b32 v34, 0x3ae38e39\nv_mul_f32 v44, s40, v34")
    for k in range(4):
        a(f"v_pk_add_f32 {pr(36+2*k)}, {pr(x+2*k)}, v[44:45] op_sel_hi:[1,0] neg_lo:[0,1] neg_hi:[0,1]")
    a(f"v_sub_f32 v35, v{x+8}, v44")
    a("v_pk_mul_f32 v[30:31], v[36:37], v[36:37]\nv_pk_mul_f32 v[32:33], v[38:39], v[38:39]")
    a("v_pk_fma_f32 v[30:31], v[40:41], v[40:41], v[30:31]\nv_pk_fma_f32 v[32:33], v[42:43], v[42:43], v[32:33]")
    a("v_pk_add_f32 v[30:31], v[30:31], v[32:33]\nv_add_f32 v30, v30, v31\nv_fmac_f32 v30, v35, v35")
    wave_sum(a, 30, 41)
    rnd(a, 44)
    for k in range(4):
        a(f"v_pk_add_f32 {pr(36+2*k)}, {pr(x+2*k)}, v[44:45] op_sel_hi:[1,0] neg_lo:[0,1] neg_hi:[0,1]")
    a(f"v_sub_f32 v35, v{x+8}, v44")
    a("v_mul_f32 v46, s41, v34")
    rnd(a, 46)
    a("v_add_f32 v46, 0x3727c5ac, v46")
    rnd(a, 46)
    a("v_sqrt_f32 v46, v46")
    for k in range(4):
        a(f"v_cvt_pk_bf16_f32 v{p+k}, v{36+2*k}, v{37+2*k}")
    a(f"v_cvt_pk_bf16_f32 v{p+4}, v35, v35")
    rnd(a, 46)
    a("v_rcp_f32 v46, v46")
    unpack(a, p, x)
    for k in range(4):
        a(f"v_pk_mul_f32 {pr(x+2*k)}, {pr(x+2*k)}, v[46:47] op_sel_hi:[1,0]")
    a(f"v_mul_f32 v{x+8}, v{x+8}, v46")
    for k in range(4):
        a(f"v_cvt_pk_bf16_f32 v{p+k}, v{x+2*k}, v{x+2*k+1}")
    a(f"v_cvt_pk_bf16_f32 v{p+4}, v{x+8}, v{x+8}")


def cmul(a, d, x, y):
    a(f"v_pk_mul_f32 {vr(d,2)}, {vr(x,2)}, {vr(y,2)} op_sel_hi:[0,1]")
    a(f"v_pk_fma_f32 {vr(d,2)}, {vr(x,2)}, {vr(y,2)}, {vr(d,2)} op_sel:[1,1,0] op_sel_hi:[1,0,1] neg_lo:[0,1,0]")


def pf_loads(a, b0, b1):
    for b in range(b0, b1):
        a(f"s_add_u32 s46, s45, {256*b}\ns_mul_i32 s47, s46, 13108\ns_lshr_b32 s47, s47, 16\ns_mul_i32 s48, s47, 5\ns_sub_u32 s46, s46, s48")
        a("s_mul_i32 s47, s47, 36864\ns_lshl_b32 s46, s46, 8\ns_add_u32 s47, s47, s46\ns_add_u32 s47, s47, s44")
        a(f"buffer_load_dwordx4 v[{64+4*b}:{67+4*b}], v60, s[24:27], s47 offen")


def ln_part(a, pf):
    a(f"s_load_dwordx2 s[4:5], s[0:1], {KA['x']}\ns_load_dwordx2 s[6:7], s[0:1], {KA['ws']}\ns_load_dwordx2 s[16:17], s[0:1], {KA['w1']}")
    a("s_and_b32 s21, s2, 7\ns_lshl_b32 s21, s21, 5\ns_lshr_b32 s22, s2, 3\ns_add_u32 s21, s21, s22")
    a("s_lshl_b32 s22, s21, 3\ns_add_u32 s22, s22, s20\ns_mul_i32 s22, s22, 1152")
    a("v_lshlrev_b32 v2, 3, v1\nv_lshlrev_b32 v3, 1, v1\nv_lshlrev_b32 v4, 4, v1")
    a("s_waitcnt lgkmcnt(0)")
    srd(a, 8, 4, X_BYTES)
    a("buffer_load_dwordx2 v[10:11], v2, s[8:11], s22 offen\nbuffer_load_dwordx2 v[12:13], v2, s[8:11], s22 offen offset:512")
    a("buffer_load_ushort v14, v3, s[8:11], s22 offen offset:1024")
    srd(a, 24, 16, W_BYTES_TOTAL)
    a("v_lshrrev_b32 v60, 4, v1\nv_mul_u32_u24 v60, 9216, v60\nv_and_b32 v61, 15, v1\nv_lshl_add_u32 v60, v61, 4, v60")
    a("s_and_b32 s44, s2, 7\ns_mul_i32 s44, s44, 9\ns_lshr_b32 s44, s44, 1\ns_lshl_b32 s44, s44, 8\ns_andn2_b32 s45, s2, 7\ns_add_u32 s45, s45, s20")
    a("s_barrier")
    pf_loads(a, 0, pf[0])
    srd_off(a, 12, 6, WS_HT, HT_BYTES)
    srd_off(a, 28, 6, WS_XNT, XNT_BYTES)
    srd_off(a, 32, 6, WS_FLG, FLG_BYTES)
    a("s_cmp_lg_u32 s20, 0\ns_cbranch_scc1 L_k1_noflag\ns_lshl_b32 s23, s2, 7\nv_mov_b32 v5, 0\nv_lshlrev_b32 v6, 2, v1")
    a("s_mov_b32 exec_hi, 0\nbuffer_store_dword v5, v6, s[32:35], s23 offen\ns_mov_b32 exec_hi, -1\nL_k1_noflag:")
    a(f"s_mul_i32 s23, s20, {PITCH}\nv_add_u32 v2, s23, v2\nv_add_u32 v3, s23, v3")
    a(f"s_cmp_lg_u32 s20, 0\ns_cbranch_scc1 L_k1_w1\ns_waitcnt vmcnt({pf[0]+1})\ns_branch L_k1_w2\nL_k1_w1:\ns_waitcnt vmcnt({pf[0]})\nL_k1_w2:")
    pf_loads(a, pf[0], pf[1])
    a("; STAMP 0")
    unpack(a, 10, 20)
    layernorm(a, 20, 10)
    a("ds_write_b64 v2, v[10:11]\nds_write_b64 v2, v[12:13] offset:512\nds_write_b16 v3, v14 offset:1024")
    pf_loads(a, pf[1], pf[2])
    unpack(a, 10, 20)
    layernorm(a, 20, 50)
    a(f"ds_write_b64 v2, v[50:51] offset:{LN_T}\nds_write_b64 v2, v[52:53] offset:{LN_T+512}\nds_write_b16 v3, v54 offset:{LN_T+1024}")
    a("v_and_b32 v5, 15, v1\nv_lshrrev_b32 v6, 4, v1\nv_bfe_u32 v7, v1, 2, 2\nv_and_b32 v8, 3, v1")
    a(f"v_mul_u32_u24 v7, {PITCH}, v7\nv_lshl_add_u32 v7, v8, 3, v7\nv_lshl_add_u32 v7, v6, 5, v7")
    a("v_lshlrev_b32 v15, 12, v1")
    a("v_lshlrev_b32 v16, 16, v6\nv_lshl_add_u32 v16, v5, 4, v16")
    a("s_waitcnt lgkmcnt(0)\ns_barrier\n; STAMP 1")
    for k in range(3):
        a(f"s_add_u32 s36, s20, {8*k}")
        if k == 2:
            a("s_cmp_ge_u32 s36, 18\ns_cbranch_scc1 L_k1_lnend")
        a("s_cmp_ge_u32 s36, 9\ns_cselect_b32 s37, 9, 0\ns_sub_u32 s38, s36, s37")
        a(f"s_cselect_b32 s37, {LN_T}, 0".replace("s_cselect", "s_cmp_ge_u32 s36, 9\ns_cselect"))
        a("s_lshl_b32 s39, s38, 7\ns_add_u32 s39, s39, s37\nv_add_u32 v9, s39, v7")
        a(f"ds_read_b64_tr_b16 v[56:57], v9\nds_read_b64_tr_b16 v[58:59], v9 offset:{4*PITCH}")
        a(f"s_cmp_ge_u32 s36, 9\ns_cbranch_scc1 L_k1_h{k}")
        a("s_lshl_b32 s39, s38, 18\ns_lshl_b32 s37, s21, 4\ns_add_u32 s39, s39, s37\ns_waitcnt lgkmcnt(0)")
        a(f"buffer_store_dwordx4 v[56:59], v15, s[28:31], s39 offen\ns_branch L_k1_j{k}\nL_k1_h{k}:")
        a("s_lshl_b32 s39, s38, 18\ns_lshl_b32 s37, s21, 8\ns_add_u32 s39, s39, s37\ns_waitcnt lgkmcnt(0)")
        a(f"buffer_store_dwordx4 v[56:59], v16, s[12:15], s39 offen\nL_k1_j{k}:\ns_nop 1")
    a("L_k1_lnend:")
    pf_loads(a, pf[2], pf[3])
    a("s_branch L_k1_end")


def kgen_part(a):
    a("s_cmp_ge_u32 s2, 192\ns_cbranch_scc1 L_k1_end")
    a(f"s_load_dwordx8 s[4:11], s[0:1], {KA['lar']}\ns_load_dwordx2 s[12:13], s[0:1], {KA['ldt']}\ns_load_dwordx2 s[14:15], s[0:1], {KA['ws']}")
    a("s_sub_u32 s21, s20, 8\ns_and_b32 s22, s21, 1\ns_lshr_b32 s21, s21, 1")
    a("s_mul_i32 s23, s2, 3\ns_add_u32 s23, s23, s21")
    a("s_lshl_b32 s16, s23, 8\ns_lshl_b32 s17, s22, 7\ns_add_u32 s16, s16, s17\ns_lshl_b32 s17, s23, 1")
    a("v_lshlrev_b32 v2, 1, v1\nv_mov_b32 v3, 0\ns_waitcnt lgkmcnt(0)")
    for i, d in enumerate((24, 28, 32, 36)):
        srd(a, d, 4 + 2*i, D*NST*2)
    srd(a, 40, 12, D*2)
    for i, d in enumerate((24, 28, 32, 36)):
        a(f"buffer_load_ushort v{10+i}, v2, s[{d}:{d+3}], s16 offen")
    a("buffer_load_ushort v14, v3, s[40:43], s17 offen\ns_barrier")
    srd_off(a, 44, 14, WS_KC, KC_BYTES)
    a(f"s_mul_i32 s18, s21, {KG_CH}\ns_add_u32 s18, s18, {KG_BASE}\ns_lshl_b32 s19, s22, 8\ns_add_u32 s19, s19, s18")
    a("v_lshl_add_u32 v4, v1, 2, s19")
    a(f"s_mov_b32 s48, {LOG2E:#x}\ns_waitcnt vmcnt(0)\n; STAMP 0")
    for i in range(5):
        a(f"v_lshlrev_b32 v{10+i}, 16, v{10+i}")
    a("v_mul_f32 v14, s48, v14\nv_mul_f32 v10, s48, v10\nv_exp_f32 v14, v14\nv_exp_f32 v10, v10")
    rnd(a, 14); rnd(a, 10)
    a("v_mul_f32 v10, v10, v14\nv_mul_f32 v11, v11, v14\nv_mul_f32 v12, v12, v14\nv_mul_f32 v13, v13, v14")
    a("v_mul_f32 v10, s48, v10\nv_mul_f32 v11, 0.15915494, v11\nv_add_f32 v16, v12, v12\nv_add_f32 v17, v13, v13")
    W = lambda c: 20 + 2*(c-1)
    U1, T = 34, 36
    for dst, p in ((W(1), 1.0), (U1, 8.0), (T, 128.0)):
        a(f"v_mul_f32 v5, {-p}, v10\nv_mul_f32 v6, {p}, v11".replace("-1.0", "-1.0"))
        a("v_exp_f32 v5, v5\nv_fract_f32 v6, v6\nv_cos_f32 v7, v6\nv_sin_f32 v8, v6")
        a(f"v_mul_f32 v{dst}, v5, v7\nv_mul_f32 v{dst+1}, v5, v8")
    tmp = [60, 61, 62, 63]
    cnt = [0]
    def put(row, src, conj):
        t = tmp[cnt[0] % 4]; cnt[0] += 1
        a(f"v_cvt_pk_bf16_f32 v{t}, v{src}, {'-' if conj else ''}v{src+1}\nds_write_b32 v4, v{t} offset:{row*KP}")
    cmul(a, W(2), W(1), W(1)); cmul(a, W(3), W(2), W(1)); cmul(a, W(4), W(2), W(2))
    cmul(a, W(5), W(4), W(1)); cmul(a, W(6), W(4), W(2)); cmul(a, W(7), W(4), W(3))
    a(f"v_mov_b32 v59, 0x3f80\nds_write_b32 v4, v59 offset:{41*KP}")
    put(42, U1, False)
    ub = [38, 40]; Y = [16, 18]; Z = [42, 44]
    prev_u = U1
    for i in range(17):
        y = Y[i % 2]
        if i < 16:
            cmul(a, Y[(i+1) % 2], y, T)
        if 0 <= i < 14:
            cmul(a, ub[i % 2], prev_u, U1)
        if i < 2:
            put(8*i, y, True)
            for c in range(1, 8):
                cmul(a, Z[c % 2], y, W(c)); put(8*i + c, Z[c % 2], True)
        elif i < 4:
            put(16 + 4*(i-2), y, True)
            for c in range(1, 4):
                cmul(a, Z[c % 2], y, W(2*c)); put(16 + 4*(i-2) + c, Z[c % 2], True)
        elif i < 8:
            put(24 + 2*(i-4), y, True)
            cmul(a, Z[0], y, W(4)); put(24 + 2*(i-4) + 1, Z[0], True)
        else:
            put(32 + i - 8, y, True)
        if i < 14:
            put(43 + i, ub[i % 2], False); prev_u = ub[i % 2]
    a("s_waitcnt lgkmcnt(0)\ns_barrier\n; STAMP 1")
    a("s_cmp_lg_u32 s22, 0\ns_cbranch_scc1 L_k1_end")
    a(f"v_and_b32 v5, 15, v1\nv_lshrrev_b32 v6, 4, v1\nv_mul_u32_u24 v7, {KP}, v5\nv_lshl_add_u32 v7, v6, 4, v7\nv_add_u32 v7, s18, v7")
    fs = lambda ks, k: 64 + 16*(ks % 2) + 4*k
    def rd(ks):
        a(f"ds_read_b128 {vr(fs(ks,3),4)}, v7 offset:{41*KP + 64*ks}")
        for t in range(3):
            a(f"ds_read_b128 {vr(fs(ks,t),4)}, v7 offset:{16*t*KP + 64*ks}")
    rd(0)
    for ks in range(8):
        if ks < 7:
            rd(ks+1); a("s_waitcnt lgkmcnt(4)")
        else:
            a("s_waitcnt lgkmcnt(0)")
        for t in range(3):
            a(f"v_mfma_f32_16x16x32_bf16 {vr(100+4*t,4)}, {vr(fs(ks,t),4)}, {vr(fs(ks,3),4)}, {'0' if ks == 0 else vr(100+4*t,4)}")
    a(f"s_add_u32 s19, s18, {KG_TAB+16}\nv_lshlrev_b32 v8, 4, v5")
    a("v_lshl_add_u32 v9, v6, 10, v8\nv_sub_u32 v20, 1272, v9\nv_add_u32 v20, s19, v20")
    a("v_lshl_add_u32 v9, v6, 9, v8\nv_sub_u32 v21, 3828, v9\nv_add_u32 v21, s19, v21")
    a("v_lshl_add_u32 v9, v6, 8, v8\nv_sub_u32 v22, 3570, v9\nv_add_u32 v22, s19, v22\nv_add_u32 v23, 2, v22")
    a("v_lshrrev_b32 v9, 1, v6\nv_lshl_add_u32 v9, v9, 8, v8\nv_and_b32 v24, 1, v6\nv_lshl_add_u32 v9, v24, 3, v9\nv_sub_u32 v24, 4088, v9\nv_add_u32 v24, s19, v24")
    a("v_mov_b32 v25, 0\nv_mov_b32 v26, s19\nds_write_b32 v26, v25 offset:4096")
    for r in range(4):
        v = 108 + r; b = 28 + 4*r
        a(f"v_mov_b32_dpp v{44+r}, v{v} quad_perm:[0,0,2,2] row_mask:0xf bank_mask:0xf")
        a(f"v_cvt_pk_bf16_f32 v{b}, v{v}, v{v}\nv_cvt_pk_bf16_f32 v{b+3}, v{v}, v{44+r}\nv_mov_b32 v{b+1}, v{b}\nv_mov_b32 v{b+2}, v{b}")
    for r in range(4):
        b = 28 + 4*r
        a(f"s_mov_b32 exec_hi, {1 if r == 0 else 0}")
        a(f"ds_write2_b64 v20, {vr(b,2)}, {vr(b+2,2)} offset0:{32*(3-r)} offset1:{32*(3-r)+1}")
    a("s_mov_b32 exec_hi, -1")
    for q in range(2):
        v0, v1 = 104 + 2*q, 105 + 2*q
        a(f"v_cvt_pk_bf16_f32 v{48+3*q}, v{v1}, v{v1}\nv_cvt_pk_bf16_f32 v{49+3*q}, v{v1}, v{v0}\nv_cvt_pk_bf16_f32 v{50+3*q}, v{v0}, v{v0}")
    a("v_cvt_pk_bf16_f32 v54, v107, v107\nv_cvt_pk_bf16_f32 v55, v106, v106\nv_cvt_pk_bf16_f32 v56, v106, v105\nv_cvt_pk_bf16_f32 v57, v104, v104")
    a("v_cvt_pk_bf16_f32 v58, v103, v102\nv_cvt_pk_bf16_f32 v59, v101, v100")
    a("s_mov_b32 exec_lo, 0")
    for q in range(2):
        o = 64*(1-q)
        a(f"ds_write2_b32 v21, v{48+3*q}, v{49+3*q} offset0:{o} offset1:{o+1}\nds_write2_b32 v21, v{50+3*q}, v{50+3*q} offset0:{o+2} offset1:{o+3}")
    a("s_mov_b32 exec_lo, -1\ns_mov_b32 exec_hi, 0")
    a("ds_write_b16 v22, v54\nds_write2_b32 v23, v55, v56 offset0:0 offset1:1\nds_write_b32 v23, v57 offset:8\nds_write_b16 v22, v57 offset:14")
    a("s_mov_b32 exec_hi, -1\nds_write_b64 v24, v[58:59]")
    a("v_lshlrev_b32 v27, 4, v1\nv_add_u32 v9, s19, v27\ns_lshl_b32 s17, s23, 13\ns_add_u32 s16, s17, 4096")
    for k in range(4):
        a(f"ds_read_b128 {vr(64+4*k,4)}, v9 offset:{1024*k}\nds_read_b32 v{80+k}, v9 offset:{1024*k+16}")
    for k in range(4):
        a(f"s_waitcnt lgkmcnt({6-2*k})")
        b = 64 + 4*k
        a(f"buffer_store_dwordx4 {vr(b,4)}, v27, s[44:47], s17 offen offset:{1024*k}")
        for m in range(4):
            a(f"v_alignbit_b32 v{84+4*k+m}, v{b+m+1 if m < 3 else 80+k}, v{b+m}, 16")
        a(f"buffer_store_dwordx4 {vr(84+4*k,4)}, v27, s[44:47], s16 offen offset:{1024*k}")


def k1(a, name, pf):
    a(f".globl {name}\n.p2align 8\n.type {name},@function\n{name}:")
    a("s_cmp_ge_u32 s2, 256\ns_cbranch_scc1 L_k1_end")
    a("v_lshrrev_b32 v1, 6, v0\nv_readfirstlane_b32 s20, v1\nv_and_b32 v1, 63, v0")
    a("s_cmp_ge_u32 s20, 8\ns_cbranch_scc1 L_k1_kgen")
    ln_part(a, pf)
    a("L_k1_kgen:")
    kgen_part(a)
    a("L_k1_end:\ns_endpgm")
```

```python
import struct
from asmlib import *
from layout import *
import gemm_core as gc
import conv
from prefetch import *

K2_LDS = max(gc.LDS_RING, conv.CONV_LDS)
AT_LDS = gc.LDS_RING
K3_LDS = gc.LDS_RING + 12288


def f32hex(x):
    return "0x%08x" % struct.unpack("<I", struct.pack("<f", x))[0]


def hook0(a):
    pass


def entry(a, name):
    a(f".globl {name}\n.p2align 8\n.type {name},@function\n{name}:")


def div6(a, d, r, x):
    a(f"s_mul_i32 s{d}, s{x}, 10923\ns_lshr_b32 s{d}, s{d}, 16\ns_mul_i32 s{r}, s{d}, 6\ns_sub_u32 s{r}, s{x}, s{r}")


def unpk(a, x, p):
    a(f"v_lshlrev_b32 v{x}, 16, v{p}\nv_and_b32 v{x+1}, 0xffff0000, v{p}")


def k2(a, name, w1_row0, w2_row1, window=40):
    entry(a, name)
    a("s_cmp_ge_u32 s2, 256\ns_cbranch_scc1 L_k2_end")
    a(f"s_load_dwordx4 s[4:7], s[0:1], {KA['w1']}\ns_load_dwordx2 s[8:9], s[0:1], {KA['ws']}")
    a(f"v_lshrrev_b32 v1, 6, v0\nv_readfirstlane_b32 s{gc.S_WAVE}, v1")
    a("s_cmp_ge_u32 s2, 216\ns_cbranch_scc1 L_k2_conv")
    a("s_and_b32 s12, s2, 7\ns_lshr_b32 s13, s2, 3\ns_mul_i32 s12, s12, 27\ns_add_u32 s12, s12, s13")
    div6(a, 14, 15, 12)
    gc.lane_ids(a)
    a(f"s_cmp_lt_u32 s{gc.S_WAVE}, 4\ns_cbranch_scc1 L_k2_compute")
    a(f"s_mul_i32 s{gc.S_ACT0}, s15, {6*65536}\ns_lshl_b32 s{gc.S_W0}, s14, 8")
    gc.loader_setup(a, 65536, 9216, "A")
    a("s_waitcnt lgkmcnt(0)")
    srd_off(a, gc.SRD_ACT, 8, WS_HT, HT_BYTES)
    srd(a, gc.SRD_W, 4, W_BYTES_TOTAL)
    gc.loader_main(a, 32, 65536, 9216, "g1")
    a("s_endpgm\nL_k2_compute:")
    gc.compute_setup(a, "A")
    a("s_waitcnt lgkmcnt(0)")
    srd(a, 40, 6, F*2)
    a(f"s_lshr_b32 s16, s{gc.S_WAVE}, 1\ns_lshl_b32 s17, s16, 7\ns_lshl_b32 s18, s14, 8\ns_add_u32 s17, s17, s18\nv_lshlrev_b32 v9, 3, v3")
    for nu in range(4):
        a(f"buffer_load_dwordx2 {vr(12+2*nu,2)}, v9, s[40:43], s17 offen offset:{32*nu}")
    for i in range(48):
        a(f"v_mov_b32 v{gc.V_ACC+i}, 0")
    srd_off(a, 44, 8, WS_G, G_BYTES)
    a(f"s_and_b32 s17, s{gc.S_WAVE}, 1\ns_mul_i32 s17, s17, 3\ns_mul_i32 s18, s15, 6\ns_add_u32 s17, s17, s18\ns_mul_i32 s17, s17, 147456")
    a("s_lshl_b32 s18, s14, 2\ns_lshl_b32 s16, s16, 1\ns_add_u32 s18, s18, s16\ns_lshl_b32 s18, s18, 10\ns_add_u32 s17, s17, s18")
    gc.compute_main(a, 32, "A", False, "g1", hook0)
    a("; STAMP 2\ns_waitcnt vmcnt(0)")
    c1 = -2.0 * 0.7978845608028654 * 1.4426950408889634
    a(f"s_mov_b32 s48, {f32hex(c1*0.044715)}\ns_mov_b32 s49, s48\nv_mov_b32 v36, {f32hex(c1)}\nv_mov_b32 v37, v36")
    for nu in range(4):
        unpk(a, 20+4*nu, 12+2*nu); unpk(a, 22+4*nu, 13+2*nu)
    B = 112
    for dl in range(3):
        for pi in range(2):
            src = [(gc.acc(2*pi + (k >> 1), dl) + 2*(k & 1), 20 + 4*(2*pi + (k >> 1)) + 2*(k & 1)) for k in range(4)]
            U = [B + 2*k for k in range(4)]; T = [B + 8 + 2*k for k in range(4)]; P = [B + 16 + k for k in range(4)]
            O = B + 20 + 4*((2*dl + pi) % 2)
            for k in range(4): a(f"v_cvt_pk_bf16_f32 v{P[k]}, v{src[k][0]}, v{src[k][0]+1}")
            for k in range(4): unpk(a, U[k], P[k])
            for k in range(4): a(f"v_pk_add_f32 {vr(U[k],2)}, {vr(U[k],2)}, {vr(src[k][1],2)}")
            for k in range(4): a(f"v_cvt_pk_bf16_f32 v{P[k]}, v{U[k]}, v{U[k]+1}")
            for k in range(4): unpk(a, U[k], P[k])
            for k in range(4): a(f"v_pk_mul_f32 {vr(T[k],2)}, {vr(U[k],2)}, {vr(U[k],2)}")
            for k in range(4): a(f"v_pk_fma_f32 {vr(T[k],2)}, {vr(T[k],2)}, s[48:49], v[36:37]")
            for k in range(4): a(f"v_pk_mul_f32 {vr(T[k],2)}, {vr(T[k],2)}, {vr(U[k],2)}")
            for k in range(4): a(f"v_exp_f32 v{T[k]}, v{T[k]}\nv_exp_f32 v{T[k]+1}, v{T[k]+1}")
            for k in range(4): a(f"v_pk_add_f32 {vr(T[k],2)}, {vr(T[k],2)}, 1.0 op_sel_hi:[1,0]")
            for k in range(4): a(f"v_rcp_f32 v{T[k]}, v{T[k]}\nv_rcp_f32 v{T[k]+1}, v{T[k]+1}")
            for k in range(4): a(f"v_pk_mul_f32 {vr(U[k],2)}, {vr(U[k],2)}, {vr(T[k],2)}")
            for k in range(4): a(f"v_cvt_pk_bf16_f32 v{O+k}, v{U[k]}, v{U[k]+1}")
            a(f"buffer_store_dwordx4 {vr(O,4)}, v7, s[44:47], s17 offen offset:{1024*pi}")
        a("s_add_u32 s17, s17, 147456")
    a("s_endpgm\nL_k2_conv:")
    a(f"s_cmp_lt_u32 s{gc.S_WAVE}, 4\ns_cbranch_scc1 L_k2_conv4")
    a(f"s_load_dwordx2 s[10:11], s[0:1], {KA['w2']}\ns_sub_u32 s30, s2, 216\ns_lshr_b32 s30, s30, 3\ns_waitcnt lgkmcnt(0)")
    srd(a, 12, 4, W_BYTES_TOTAL); srd(a, 16, 10, W_BYTES_TOTAL)
    w1_stream(a, "k2", 12, 30, 5, w1_row0, 2048, window)
    a("; STAMP 0")
    w2_stream(a, "k2", 16, 30, 5, 0, w2_row1, window)
    a("s_endpgm\nL_k2_conv4:\ns_waitcnt lgkmcnt(0)")
    conv.conv_wg(a, "cv", 3, lambda a: a("s_sub_u32 s30, s2, 216\ns_mul_i32 s30, s30, 12\ns_add_u32 s30, s30, s20"))
    a("L_k2_end:\ns_endpgm")


def k3(a, name, w2_row0, same_xcd=False, window=40):
    entry(a, name)
    a("s_cmp_ge_u32 s2, 256\ns_cbranch_scc1 L_k3_end")
    a(f"s_load_dwordx4 s[4:7], s[0:1], {KA['w2']}\ns_load_dwordx2 s[8:9], s[0:1], {KA['ws']}")
    a(f"s_load_dwordx2 s[10:11], s[0:1], {KA['x']}\ns_load_dwordx2 s[50:51], s[0:1], {KA['out']}")
    a(f"v_lshrrev_b32 v1, 6, v0\nv_readfirstlane_b32 s{gc.S_WAVE}, v1")
    a("s_cmp_ge_u32 s2, 192\ns_cbranch_scc1 L_k3_side")
    a("s_and_b32 s12, s2, 7\ns_lshr_b32 s13, s2, 3")
    if same_xcd:
        a("s_and_b32 s19, s13, 1\ns_lshr_b32 s13, s13, 1")
        div6(a, 14, 15, 13)
        a("s_lshl_b32 s18, s12, 1\ns_add_u32 s14, s14, s18")
        pxor = 8
    else:
        div6(a, 14, 15, 13)
        a("s_and_b32 s19, s12, 1\ns_lshr_b32 s18, s12, 1\ns_lshl_b32 s18, s18, 2\ns_add_u32 s14, s14, s18")
        pxor = 1
    a("s_lshl_b32 s16, s14, 7\ns_lshl_b32 s17, s19, 6\ns_add_u32 s16, s16, s17")
    gc.lane_ids(a)
    a(f"s_cmp_lt_u32 s{gc.S_WAVE}, 4\ns_cbranch_scc1 L_k3_compute")
    a(f"s_mul_i32 s{gc.S_ACT0}, s15, {6*147456}\ns_mul_i32 s18, s19, {72*1024}\ns_add_u32 s{gc.S_ACT0}, s{gc.S_ACT0}, s18")
    a(f"s_lshl_b32 s{gc.S_W0}, s14, 8\ns_mul_i32 s18, s19, {HALF2}\ns_add_u32 s{gc.S_W0}, s{gc.S_W0}, s18")
    gc.loader_setup(a, 147456, 4096, "B")
    a("s_waitcnt lgkmcnt(0)")
    srd_off(a, gc.SRD_ACT, 8, WS_G, G_BYTES)
    srd(a, gc.SRD_W, 4, W_BYTES_TOTAL)

    def at_tile(a):
        srd_off(a, 44, 8, WS_FLG, FLG_BYTES); srd_off(a, 52, 8, WS_AT, AT_BYTES)
        a("v_lshrrev_b32 v8, 3, v1\nv_lshlrev_b32 v8, 12, v8\nv_and_b32 v9, 7, v1\nv_lshl_add_u32 v8, v9, 4, v8")
        a(f"s_mul_i32 s26, s15, {96*4096}\ns_lshl_b32 s27, s16, 1\ns_add_u32 s26, s26, s27")
        a(f"s_cmp_lg_u32 s15, 5\ns_cbranch_scc1 L_k3_atgo\nv_mov_b32 v5, {FLG_CONV}\ns_mov_b32 s61, 0x100000")
        a("L_k3_atpoll:\nbuffer_load_dword v6, v5, s[44:47], 0 offen sc1\ns_sub_u32 s61, s61, 1\ns_cbranch_scc1 L_k3_atgo")
        a("s_waitcnt vmcnt(0)\nv_readfirstlane_b32 s27, v6\ns_cmp_lg_u32 s27, 96\ns_cbranch_scc1 L_k3_atpoll\nL_k3_atgo:")
        for e in range(12):
            a(f"s_mov_b32 m0, {AT_LDS + 1024*e}\nbuffer_load_dwordx4 v8, s[52:55], s26 offen sc1 lds\ns_add_u32 s26, s26, 32768")
    gc.loader_main(a, 36, 147456, 4096, "g2", before_last=at_tile)
    a("s_endpgm\nL_k3_compute:")
    gc.compute_setup(a, "B", s_kh=19)
    a("s_waitcnt lgkmcnt(0)")
    srd(a, 40, 10, X_BYTES); srd(a, 44, 6, S*2)
    a(f"s_lshr_b32 s17, s{gc.S_WAVE}, 1\ns_lshl_b32 s17, s17, 5\ns_add_u32 s17, s17, s16")
    a(f"s_mul_i32 s18, s15, 96\ns_and_b32 s26, s{gc.S_WAVE}, 1\ns_mul_i32 s26, s26, 48\ns_add_u32 s18, s18, s26")
    a("v_mul_u32_u24 v58, 1152, v2\nv_lshl_add_u32 v58, v3, 3, v58\nv_lshlrev_b32 v9, 1, v2")
    a("s_mul_i32 s56, s17, 1152\ns_lshl_b32 s26, s18, 1\ns_add_u32 s56, s56, s26\ns_add_u32 s57, s56, 18432\ns_lshl_b32 s26, s17, 1")
    for nu in range(2):
        for dl in range(3):
            a(f"buffer_load_dwordx2 {vr(10+2*(3*nu+dl),2)}, v58, s[40:43], s{56+nu} offen offset:{32*dl}")
        a(f"buffer_load_ushort v{22+nu}, v9, s[44:47], s26 offen offset:{32*nu}")
    for i in range(48):
        a(f"v_mov_b32 v{gc.V_ACC+i}, 0")
    a(f"v_bfe_u32 v4, v1, 2, 2\nv_lshl_add_u32 v4, v3, 2, v4\nv_lshlrev_b32 v4, 7, v4\nv_and_b32 v5, 3, v1\nv_lshl_add_u32 v4, v5, 3, v4")
    a(f"s_and_b32 s26, s{gc.S_WAVE}, 1\ns_mul_i32 s26, s26, 6144\ns_lshr_b32 s27, s{gc.S_WAVE}, 1\ns_lshl_b32 s27, s27, 6\ns_add_u32 s26, s26, s27\ns_add_u32 s26, s26, {AT_LDS}\nv_add_u32 v59, s26, v4")
    srd_off(a, 40, 8, WS_XCH, XCH_BYTES); srd_off(a, 44, 8, WS_FLG, FLG_BYTES); srd(a, 52, 50, X_BYTES)
    a(f"s_xor_b32 s58, s2, {pxor}\ns_mul_i32 s26, s{gc.S_WAVE}, 6144\ns_mul_i32 s59, s58, 24576\ns_add_u32 s59, s59, s26\ns_mul_i32 s60, s2, 24576\ns_add_u32 s60, s60, s26")
    gc.compute_main(a, 36, "B", True, "g2")
    a("; STAMP 2\ns_waitcnt vmcnt(0)")
    for k in range(6):
        a(f"buffer_store_dwordx4 {vr(gc.V_ACC+24+4*k,4)}, v7, s[40:43], s59 offen sc1\ns_add_u32 s59, s59, 1024")
    AR, PF = 112, 124
    for nu in range(2):
        for dl in range(3):
            a(f"ds_read_b64_tr_b16 {vr(AR+2*(3*nu+dl),2)}, v59 offset:{2048*dl + 32*nu}")
    a("v_lshlrev_b32 v22, 16, v22\nv_lshlrev_b32 v24, 16, v23\ns_waitcnt lgkmcnt(0)")
    for t in range(6):
        for h in range(2):
            unpk(a, 26, 10+2*t+h); unpk(a, 28, AR+2*t+h)
            a(f"v_pk_add_f32 v[26:27], v[26:27], v[28:29]\nv_cvt_pk_bf16_f32 v30, v26, v27")
            unpk(a, PF+4*t+2*h, 30)
    a("s_waitcnt vmcnt(0)\ns_barrier\n; STAMP 3")
    a(f"s_cmp_lg_u32 s{gc.S_WAVE}, 0\ns_cbranch_scc1 L_k3_wait")
    a("s_lshl_b32 s26, s2, 7\ns_lshl_b32 s27, s58, 7\nv_mov_b32 v4, 1\nv_mov_b32 v5, 0\ns_mov_b64 exec, 1")
    a("buffer_store_dword v4, v5, s[44:47], s26 offen sc1")
    a("s_mov_b32 s61, 0x100000\nL_k3_poll:\nbuffer_load_dword v6, v5, s[44:47], s27 offen sc1\ns_sub_u32 s61, s61, 1\ns_cbranch_scc1 L_k3_go")
    a("s_waitcnt vmcnt(0)\nv_readfirstlane_b32 s26, v6\ns_cmp_lg_u32 s26, 1\ns_cbranch_scc1 L_k3_poll\nL_k3_go:")
    a("s_mov_b64 exec, -1\nL_k3_wait:\ns_barrier\n; STAMP 4")
    RX = 148
    for k in range(6):
        a(f"buffer_load_dwordx4 {vr(RX+4*k,4)}, v7, s[40:43], s60 offen sc1\ns_add_u32 s60, s60, 1024")
    for t in range(6):
        nu, dl = divmod(t, 3)
        b, r, p = gc.V_ACC + 4*t, RX + 4*t, PF + 4*t
        a("s_waitcnt vmcnt(5)")
        for h in range(2): a(f"v_pk_add_f32 {vr(b+2*h,2)}, {vr(b+2*h,2)}, {vr(r+2*h,2)}")
        for h in range(2): a(f"v_cvt_pk_bf16_f32 v{26+h}, v{b+2*h}, v{b+2*h+1}")
        for h in range(2): unpk(a, b+2*h, 26+h)
        for h in range(2): a(f"v_pk_add_f32 {vr(b+2*h,2)}, {vr(b+2*h,2)}, {vr(22+2*nu,2)} op_sel_hi:[1,0]")
        for h in range(2): a(f"v_cvt_pk_bf16_f32 v{26+h}, v{b+2*h}, v{b+2*h+1}")
        for h in range(2): unpk(a, b+2*h, 26+h)
        for h in range(2): a(f"v_pk_add_f32 {vr(b+2*h,2)}, {vr(b+2*h,2)}, {vr(p+2*h,2)}")
        for h in range(2): a(f"v_cvt_pk_bf16_f32 v{10+2*t+h}, v{b+2*h}, v{b+2*h+1}")
        a(f"buffer_store_dwordx2 {vr(10+2*t,2)}, v58, s[52:55], s{56+nu} offen offset:{32*dl}")
    a("s_endpgm\nL_k3_side:")
    a(f"s_cmp_lt_u32 s{gc.S_WAVE}, 4\ns_cbranch_scc1 L_k3_conv4\ns_sub_u32 s30, s2, 192\ns_lshr_b32 s30, s30, 3\ns_waitcnt lgkmcnt(0)")
    srd(a, 16, 4, W_BYTES_TOTAL)
    w2_stream(a, "k3", 16, 30, 8, w2_row0, 2304, window)
    a("s_endpgm\nL_k3_conv4:\ns_cmp_ge_u32 s2, 216\ns_cbranch_scc1 L_k3_end\ns_waitcnt lgkmcnt(0)")
    conv.conv_wg(a, "cw", 1, lambda a: a("s_sub_u32 s30, s2, 192\ns_lshl_b32 s30, s30, 2\ns_add_u32 s30, s30, s20\ns_add_u32 s30, s30, 480"), publish=True)
    a("L_k3_end:\ns_endpgm")
```

```python
from asmlib import *
from layout import *

HALF2 = 2304 * 4096


def w1_stream(a, tag, rs, hid, nh, row0, row1, window):
    n = -(-(row1 - row0) // (4 * nh))
    if n <= 0:
        return
    a("v_and_b32 v1, 63, v0\nv_lshrrev_b32 v2, 4, v1\nv_mul_u32_u24 v2, 9216, v2\nv_and_b32 v3, 15, v1\nv_lshl_add_u32 v2, v3, 4, v2")
    a("s_and_b32 s40, s2, 7\ns_mul_i32 s40, s40, 9\ns_lshr_b32 s40, s40, 1\ns_lshl_b32 s40, s40, 8")
    a(f"s_mul_i32 s41, s{hid}, 36864\ns_add_u32 s40, s40, s41\ns_add_u32 s40, s40, {row0*9216}")
    a(f"s_mov_b32 s44, {n}\nL_{tag}_pw1:")
    for i in range(5):
        a(f"buffer_load_dwordx4 v[{8+4*i}:{11+4*i}], v2, s[{rs}:{rs+3}], s40 offen offset:{256*i}")
    a(f"s_add_u32 s40, s40, {nh*36864}\ns_waitcnt vmcnt({window})\ns_sub_u32 s44, s44, 1\ns_cmp_lg_u32 s44, 0\ns_cbranch_scc1 L_{tag}_pw1")


def w2_stream(a, tag, rs, hid, nh, row0, row1, window):
    n = -(-(row1 - row0) // (4 * nh))
    if n <= 0:
        return
    a("v_and_b32 v1, 63, v0\nv_lshlrev_b32 v2, 4, v1")
    a(f"s_and_b32 s40, s2, 1\ns_mul_i32 s40, s40, {HALF2}\ns_bfe_u32 s41, s2, 0x20001\ns_lshl_b32 s41, s41, 10\ns_add_u32 s40, s40, s41")
    a(f"s_lshl_b32 s41, s{hid}, 12\ns_add_u32 s40, s40, s41\ns_add_u32 s40, s40, {row0*4096}")
    a(f"s_mov_b32 s44, {n}\nL_{tag}_pw2:")
    for i in range(4):
        a(f"buffer_load_dwordx4 v[{8+4*i}:{11+4*i}], v2, s[{rs}:{rs+3}], s40 offen\ns_add_u32 s40, s40, {nh*4096}")
    a(f"s_waitcnt vmcnt({window})\ns_sub_u32 s44, s44, 1\ns_cmp_lg_u32 s44, 0\ns_cbranch_scc1 L_{tag}_pw2")
```

```python
import sys
sys.path.insert(0, "dev")
from asmlib import *
from layout import *
import hazard, k1 as K1, k23

HEADER = open(f"cdna_kernels/{NAME}.s.ref").read().split("; Override launch geometry")[0]


def descriptor(name, vgpr, sgpr=96):
    return (f".p2align 6\n.amdhsa_kernel {name}\n  .amdhsa_next_free_vgpr {vgpr}\n  .amdhsa_next_free_sgpr {sgpr}\n"
            f"  .amdhsa_accum_offset {vgpr}\n  .amdhsa_group_segment_fixed_size 0\n  .amdhsa_kernarg_size 120\n"
            "  .amdhsa_user_sgpr_count 2\n  .amdhsa_user_sgpr_kernarg_segment_ptr 1\n  .amdhsa_system_sgpr_workgroup_id_x 1\n"
            ".end_amdhsa_kernel\n")


WS_STAMP = 0x2000000


def add_stamps(lines, names):
    out, k = [], -1
    for ln in lines:
        t = ln.strip()
        if t.endswith(":") and t[:-1] in names:
            k = names.index(t[:-1])
            out += [ln, "  s_memrealtime s[90:91]", "  s_load_dwordx2 s[86:87], s[0:1], 112", "  v_lshrrev_b32 v255, 6, v0".replace("v255", "v127"),
                    "  s_nop 0", "  v_readfirstlane_b32 s85, v127", "  s_lshl_b32 s84, s2, 4", "  s_add_u32 s85, s85, s84", "  s_lshl_b32 s85, s85, 5", "  s_waitcnt lgkmcnt(0)"]
            out += [f"  s_mov_b32 s{64+2*i}, s90" for i in range(6)] + ["  s_mov_b32 s76, 0", "  s_mov_b32 s78, 0"]
            continue
        if t.startswith("; STAMP"):
            i = int(t.split()[2])
            out += [f"  s_memrealtime s[{64+2*i}:{65+2*i}]"]
            continue
        if t.startswith("; CYC"):
            i = int(t.split()[2])
            out += [f"  s_memtime s[{76+2*i}:{77+2*i}]"]
            continue
        if t == "s_endpgm":
            out += ["  s_waitcnt lgkmcnt(0)", "  s_sub_u32 s74, s78, s76", "  s_add_u32 s74, s74, s90"]
            out += ["  s_waitcnt vmcnt(0) lgkmcnt(0)", "  s_memrealtime s[92:93]",
                    f"  s_add_u32 s80, s86, {WS_STAMP + k*0x40000:#x}", "  s_addc_u32 s81, s87, 0", "  s_mov_b32 s82, 0x40000", "  s_mov_b32 s83, 0x20000",
                    "  s_waitcnt lgkmcnt(0)", "  s_mov_b64 exec, 1", "  v_mov_b32 v120, s90", "  v_mov_b32 v121, s92", "  v_mov_b32 v122, s64", "  v_mov_b32 v123, s66",
                    "  v_mov_b32 v124, 0", "  buffer_store_dwordx4 v[120:123], v124, s[80:83], s85 offen",
                    "  v_mov_b32 v116, s68", "  v_mov_b32 v117, s70", "  v_mov_b32 v118, s72", "  v_mov_b32 v119, s74",
                    "  buffer_store_dwordx4 v[116:119], v124, s[80:83], s85 offen offset:16"]
        out.append(ln)
    return out


def build(pf=(2, 4, 6, 6), r2=768, r3=0, same_xcd=False, extra_launches=(), stamps=False, **opt):
    launches = [("ln_kgen_kernel", 256, 896, K1.K1_LDS, 128),
                ("gemm1_conv_kernel", 256, 320, k23.K2_LDS, 256),
                ("gemm2_kernel", 256, 320, k23.K3_LDS, 256)]
    a = Asm()
    r1 = opt.get('r1', pf[3]*256//5*4)
    K1.k1(a, launches[0][0], pf)
    k23.k2(a, launches[1][0], r1, r2, opt.get('win2', 40))
    k23.k3(a, launches[2][0], r3, same_xcd, opt.get('win3', 40))
    if opt.get("empties"):
        a(".globl empty_kernel\n.p2align 8\n.type empty_kernel,@function\nempty_kernel:\ns_endpgm")
        launches += [("empty_kernel", 256, 256, 0, 8)] * opt["empties"]
    rep = []
    if stamps:
        a.lines = add_stamps(a.lines, [l[0] for l in launches])
    lines = hazard.fix(a.lines, report=rep)
    bad = hazard.check_loops(lines)
    assert not bad, bad
    head = HEADER
    for n, g, b, lds, _ in launches:
        head += f"; @launch kernel={n} grid=({g},1,1) block=({b},1,1) lds={lds}\n"
    for n, g, b, lds in extra_launches:
        head += f"; @launch kernel={n} grid=({g},1,1) block=({b},1,1) lds={lds}\n"
    text = head + '.amdgcn_target "amdgcn-amd-amdhsa--gfx950"\n.text\n' + "\n".join(lines) + "\n"
    text += '.section .rodata,"a"\n' + "".join(descriptor(n, v) for n, v in dict((l[0], l[4]) for l in launches).items())
    return text, launches, rep


if __name__ == "__main__":
    kw = dict(x.split("=") for x in sys.argv[2:])
    kw = {k: eval(v) for k, v in kw.items()}
    text, launches, rep = build(**kw)
    out = sys.argv[1] if len(sys.argv) > 1 else f"cdna_kernels/{NAME}.s"
    open(out, "w").write(text)
    print(len(text), "bytes;", len(rep), "pads inserted")
```

```python
import sys
sys.path.insert(0, "dev")
from asmlib import *
from layout import *
import hazard, k1 as K1, k23

HEADER = open(f"cdna_kernels/{NAME}.s.ref").read().split("; Override launch geometry")[0]


def descriptor(name, vgpr, sgpr=96):
    return (f".p2align 6\n.amdhsa_kernel {name}\n  .amdhsa_next_free_vgpr {vgpr}\n  .amdhsa_next_free_sgpr {sgpr}\n"
            f"  .amdhsa_accum_offset {vgpr}\n  .amdhsa_group_segment_fixed_size 0\n  .amdhsa_kernarg_size 120\n"
            "  .amdhsa_user_sgpr_count 2\n  .amdhsa_user_sgpr_kernarg_segment_ptr 1\n  .amdhsa_system_sgpr_workgroup_id_x 1\n"
            ".end_amdhsa_kernel\n")


WS_STAMP = 0x2000000


def add_stamps(lines, names):
    out, k = [], -1
    for ln in lines:
        t = ln.strip()
        if t.endswith(":") and t[:-1] in names:
            k = names.index(t[:-1])
            out += [ln, "  s_memrealtime s[90:91]", "  s_load_dwordx2 s[86:87], s[0:1], 112", "  v_lshrrev_b32 v255, 6, v0".replace("v255", "v127"),
                    "  s_nop 0", "  v_readfirstlane_b32 s85, v127", "  s_lshl_b32 s84, s2, 4", "  s_add_u32 s85, s85, s84", "  s_lshl_b32 s85, s85, 5", "  s_waitcnt lgkmcnt(0)"]
            out += [f"  s_mov_b32 s{64+2*i}, s90" for i in range(6)] + ["  s_mov_b32 s76, 0", "  s_mov_b32 s78, 0"]
            continue
        if t.startswith("; STAMP"):
            i = int(t.split()[2])
            out += [f"  s_memrealtime s[{64+2*i}:{65+2*i}]"]
            continue
        if t.startswith("; CYC"):
            i = int(t.split()[2])
            out += [f"  s_memtime s[{76+2*i}:{77+2*i}]"]
            continue
        if t == "s_endpgm":
            out += ["  s_waitcnt lgkmcnt(0)", "  s_sub_u32 s74, s78, s76", "  s_add_u32 s74, s74, s90"]
            out += ["  s_waitcnt vmcnt(0) lgkmcnt(0)", "  s_memrealtime s[92:93]",
                    f"  s_add_u32 s80, s86, {WS_STAMP + k*0x40000:#x}", "  s_addc_u32 s81, s87, 0", "  s_mov_b32 s82, 0x40000", "  s_mov_b32 s83, 0x20000",
                    "  s_waitcnt lgkmcnt(0)", "  s_mov_b64 exec, 1", "  v_mov_b32 v120, s90", "  v_mov_b32 v121, s92", "  v_mov_b32 v122, s64", "  v_mov_b32 v123, s66",
                    "  v_mov_b32 v124, 0", "  buffer_store_dwordx4 v[120:123], v124, s[80:83], s85 offen",
                    "  v_mov_b32 v116, s68", "  v_mov_b32 v117, s70", "  v_mov_b32 v118, s72", "  v_mov_b32 v119, s74",
                    "  buffer_store_dwordx4 v[116:119], v124, s[80:83], s85 offen offset:16"]
        out.append(ln)
    return out


def build(pf=(2, 4, 6, 6), r2=768, r3=0, same_xcd=False, extra_launches=(), stamps=False, **opt):
    launches = [("ln_kgen_kernel", 256, 896, K1.K1_LDS, 128),
                ("gemm1_conv_kernel", 256, 320, k23.K2_LDS, 256),
                ("gemm2_kernel", 256, 320, k23.K3_LDS, 256)]
    a = Asm()
    r1 = opt.get('r1', pf[3]*256//5*4)
    K1.k1(a, launches[0][0], pf)
    k23.k2(a, launches[1][0], r1, r2, opt.get('win2', 40))
    k23.k3(a, launches[2][0], r3, same_xcd, opt.get('win3', 40))
    if opt.get("empties"):
        a(".globl empty_kernel\n.p2align 8\n.type empty_kernel,@function\nempty_kernel:\ns_endpgm")
        launches += [("empty_kernel", 256, 256, 0, 8)] * opt["empties"]
    for i, fl in enumerate(opt.get("pre_reads", ())):
        n = f"pre{i}_kernel"
        a(f".globl {n}\n.p2align 8\n.type {n},@function\n{n}:\ns_cmp_ge_u32 s2, 256\ns_cbranch_scc1 L_pre{i}_end")
        a(f"s_load_dwordx2 s[4:5], s[0:1], {KA['w1']}\ns_load_dwordx2 s[6:7], s[0:1], {KA['w2']}\nv_lshlrev_b32 v1, 4, v0\ns_lshl_b32 s20, s2, 13\ns_waitcnt lgkmcnt(0)")
        srd(a, 8, 4, W_BYTES_TOTAL); srd(a, 12, 6, W_BYTES_TOTAL)
        for j in range(9):
            a(f"buffer_load_dwordx4 v[{8+8*j}:{11+8*j}], v1, s[8:11], s20 offen{fl}\nbuffer_load_dwordx4 v[{12+8*j}:{15+8*j}], v1, s[12:15], s20 offen{fl}\ns_add_u32 s20, s20, {2048*1024}")
        a(f"s_waitcnt vmcnt(0)\nL_pre{i}_end:\ns_endpgm")
        launches.insert(i, (n, 256, 512, 0, 96))
    pk = opt.get("pre_kind")
    if pk:
        n = "prek_kernel"
        a(f".globl {n}\n.p2align 8\n.type {n},@function\n{n}:\ns_cmp_ge_u32 s2, 256\ns_cbranch_scc1 L_prek_end")
        if pk == "ws":
            a(f"s_load_dwordx2 s[4:5], s[0:1], {KA['ws']}\nv_lshlrev_b32 v1, 4, v0\ns_lshl_b32 s20, s2, 13\ns_waitcnt lgkmcnt(0)")
            srd_off(a, 8, 4, 0x4000000, 0x4000000)
            for j in range(18):
                a(f"buffer_load_dwordx4 v[{8+4*j}:{11+4*j}], v1, s[8:11], s20 offen nt\ns_add_u32 s20, s20, {2048*1024}")
        elif pk.startswith("tlb"):
            step = int(pk[3:])
            a(f"s_load_dwordx2 s[4:5], s[0:1], {KA['w1']}\ns_load_dwordx2 s[6:7], s[0:1], {KA['w2']}\ns_load_dwordx2 s[16:17], s[0:1], {KA['ws']}")
            a(f"s_lshr_b32 s20, s2, 3\ns_lshl_b32 s20, s20, 9\nv_add_u32 v1, s20, v0\nv_lshlrev_b32 v1, {step}, v1\ns_waitcnt lgkmcnt(0)")
            srd(a, 8, 4, W_BYTES_TOTAL); srd(a, 12, 6, W_BYTES_TOTAL); srd(a, 24, 16, 0x1600000)
            a("buffer_load_dword v2, v1, s[8:11], 0 offen nt\nbuffer_load_dword v3, v1, s[12:15], 0 offen nt\nbuffer_load_dword v4, v1, s[24:27], 0 offen nt")
        a(f"s_waitcnt vmcnt(0)\nL_prek_end:\ns_endpgm")
        launches.insert(0, (n, 256, 512, 0, 96))
    if opt.get("scramble"):
        out = []
        for ln in a.lines:
            out.append(ln)
            if ln.strip().startswith("s_cbranch_scc1 L_k") and ln.strip().endswith("_end") and out[-2].strip() == "s_cmp_ge_u32 s2, 256":
                out += ["  s_and_b32 s3, s2, 31", "  s_lshl_b32 s3, s3, 3", "  s_lshr_b32 s2, s2, 5", "  s_or_b32 s2, s2, s3"]
        a.lines = out
    rep = []
    if stamps:
        a.lines = add_stamps(a.lines, [l[0] for l in launches])
    lines = hazard.fix(a.lines, report=rep)
    bad = hazard.check_loops(lines)
    assert not bad, bad
    head = HEADER
    for n, g, b, lds, _ in launches:
        head += f"; @launch kernel={n} grid=({g},1,1) block=({b},1,1) lds={lds}\n"
    for n, g, b, lds in extra_launches:
        head += f"; @launch kernel={n} grid=({g},1,1) block=({b},1,1) lds={lds}\n"
    text = head + '.amdgcn_target "amdgcn-amd-amdhsa--gfx950"\n.text\n' + "\n".join(lines) + "\n"
    text += '.section .rodata,"a"\n' + "".join(descriptor(n, v) for n, v in dict((l[0], l[4]) for l in launches).items())
    return text, launches, rep


if __name__ == "__main__":
    kw = dict(x.split("=") for x in sys.argv[2:])
    kw = {k: eval(v) for k, v in kw.items()}
    text, launches, rep = build(**kw)
    out = sys.argv[1] if len(sys.argv) > 1 else f"cdna_kernels/{NAME}.s"
    open(out, "w").write(text)
    print(len(text), "bytes;", len(rep), "pads inserted")
```

```python
from asmlib import *

SLOT = 28672
W_BYTES = 16384
NSLOT = 4
LDS_RING = SLOT * NSLOT

V_ACC = 64
V_SET = (112, 140)
V_DW = 40
V_DA = 44
V_RW = 48
V_RA = 56

S_WAVE = 20
S_ACT0 = 21
S_W0 = 22
S_CNT = 25
SRD_ACT = 28
SRD_W = 32
LEAD = 3


def acc(nu, dl):
    return V_ACC + 4 * (nu * 3 + dl)


def wfrag(s, nu):
    return V_SET[s] + 4 * nu


def afrag(s, dl):
    return V_SET[s] + 16 + 4 * dl


def lane_ids(a):
    a("v_and_b32 v1, 63, v0\nv_and_b32 v2, 15, v1\nv_lshrrev_b32 v3, 4, v1\nv_lshlrev_b32 v7, 4, v1")


def loader_setup(a, dt_stride, w_stride, kmap):
    a(f"v_mul_u32_u24 v4, {w_stride}, v3\nv_lshlrev_b32 v5, 1, v3\nv_xor_b32 v5, v5, v2")
    a("v_lshl_add_u32 v6, v5, 4, v4\nv_xor_b32 v5, 8, v5\nv_lshl_add_u32 v8, v5, 4, v4")
    for e in range(4):
        hi = (e >> 1) & 1 if kmap == "A" else e & 1
        a(f"v_add_u32 v{V_DW+e}, {e*(4*w_stride - 1024)}, v{8 if hi else 6}")
    for e in range(4):
        a(f"v_add_u32 v{V_DA+e}, {(e >> 1)*(dt_stride - 2048)}, v7")


def compute_setup(a, kmap, s_kh=None):
    a("v_bfe_u32 v4, v1, 2, 2")
    if kmap == "A":
        a("v_lshl_add_u32 v5, v3, 3, v4\nv_and_b32 v6, 1, v3\nv_lshl_add_u32 v6, v6, 2, v4")
    else:
        a("v_lshl_add_u32 v5, v3, 2, v4\nv_and_b32 v6, 7, v5")
    a("v_lshlrev_b32 v5, 8, v5\nv_and_b32 v8, 3, v1\nv_lshl_add_u32 v5, v8, 3, v5")
    if s_kh is None:
        a(f"s_lshr_b32 s26, s{S_WAVE}, 1\ns_lshl_b32 s26, s26, 2")
    else:
        a(f"s_and_b32 s26, s{S_WAVE}, 2\ns_lshl_b32 s27, s{s_kh}, 2\ns_add_u32 s26, s26, s27")
    for nu in range(4):
        if s_kh is None:
            a(f"s_add_u32 s27, s26, {nu}")
        else:
            a(f"s_add_u32 s27, s26, {nu & 1}\ns_xor_b32 s27, s27, {4*(nu >> 1)}")
        a(f"v_xor_b32 v8, s27, v6\nv_lshl_add_u32 v{V_RW+nu}, v8, 5, v5\nv_add_u32 v{V_RW+4+nu}, {2*SLOT}, v{V_RW+nu}")
    a(f"s_and_b32 s26, s{S_WAVE}, 1\ns_mul_i32 s26, s26, 6144\ns_add_u32 s26, s26, {W_BYTES}")
    a(f"v_add_u32 v{V_RA}, s26, v7\nv_add_u32 v{V_RA+1}, {2*SLOT}, v{V_RA}")


def dma_groups(slot, dt_stride, w_stride, aflags="", wflags=""):
    out = []
    for kind, E in (("a", 0), ("w", 0), ("w", 1), ("a", 1), ("w", 2), ("a", 2), ("w", 3)):
        if kind == "w":
            g = [f"s_mov_b32 m0, {slot*SLOT + 4096*E}"]
            g += [f"buffer_load_dwordx4 v{V_DW+e}, s[{SRD_W}:{SRD_W+3}], s{S_W0} offen offset:{1024*e}{wflags} lds" for e in range(4)]
            g += [f"s_add_u32 s{S_W0}, s{S_W0}, {16*w_stride}"]
        else:
            g = [f"s_mov_b32 m0, {slot*SLOT + W_BYTES + 4096*E}"]
            g += [f"buffer_load_dwordx4 v{V_DA+e}, s[{SRD_ACT}:{SRD_ACT+3}], s{S_ACT0} offen offset:{1024*e}{aflags} lds" for e in range(4)]
            g += [f"s_add_u32 s{S_ACT0}, s{S_ACT0}, {2*dt_stride}" if E < 2 else f"s_sub_u32 s{S_ACT0}, s{S_ACT0}, {4*dt_stride - 2048}"]
        out.append(g)
    return out


def loader_main(a, nstages, dt_stride, w_stride, tag, aflags="", wflags="", before_last=None):
    assert nstages % 4 == 0
    G = lambda j: dma_groups(j % NSLOT, dt_stride, w_stride, aflags, wflags)
    flat = lambda gs: [x for g in gs for x in g]
    vm = 28 + 4*LEAD
    a.extend(flat(G(0)) + flat(G(1)[:LEAD]))
    a(f"s_waitcnt vmcnt({4*LEAD})\ns_barrier")
    a.extend(flat(G(1)[LEAD:]) + flat(G(2)) + flat(G(3)[:LEAD]))
    a(f"s_waitcnt vmcnt({vm})\ns_barrier")
    a.extend(flat(G(3)[LEAD:]))
    a(f"s_mov_b32 s{S_CNT}, {nstages//4 - 1}\nL_{tag}_lloop:")
    for slot in range(4):
        a.extend(flat(G(slot)[:LEAD]))
        a(f"s_waitcnt vmcnt({vm})\ns_barrier")
        a.extend(flat(G(slot)[LEAD:]))
    a(f"s_sub_u32 s{S_CNT}, s{S_CNT}, 1\ns_cmp_lg_u32 s{S_CNT}, 0\ns_cbranch_scc1 L_{tag}_lloop")
    a("s_waitcnt vmcnt(28)\ns_barrier")
    if before_last:
        before_last(a)
    a("s_waitcnt vmcnt(0)\ns_barrier")


def reads(s, slot, ks, kmap):
    win, so = slot >> 1, (slot & 1) * SLOT
    hoff = 4 * 256 if kmap == "A" else 16 * 256
    ra = lambda dl: f"ds_read_b128 {vr(afrag(s, dl), 4)}, v{V_RA+win} offset:{so + (2*dl + ks)*1024}"
    rw = lambda nu, h: f"ds_read_b64_tr_b16 {vr(wfrag(s, nu)+2*h, 2)}, v{V_RW+4*win+nu} offset:{so + ks*8192 + h*hoff}"
    return [ra(0), rw(0, 0), rw(0, 1), ra(1), ra(2), rw(1, 0), rw(1, 1), rw(2, 0), rw(2, 1), rw(3, 0), rw(3, 1)]


def mfmas(s, swap):
    out = []
    for nu in range(4):
        for dl in range(3):
            w, x = vr(wfrag(s, nu), 4), vr(afrag(s, dl), 4)
            p, q = (x, w) if swap else (w, x)
            out.append(f"v_mfma_f32_16x16x32_bf16 {vr(acc(nu, dl), 4)}, {p}, {q}, {vr(acc(nu, dl), 4)}")
    return out


def stage(a, slot, kmap, swap, last, last_barrier=False):
    m = mfmas(0, swap)
    rd = reads(1, slot, 1, kmap)
    gaps = [[] for _ in range(12)]
    a("s_waitcnt lgkmcnt(6)")
    gaps[0] = [rd[0], rd[1]]
    gaps[1] = [rd[2], rd[3]]
    gaps[2] = ["s_waitcnt lgkmcnt(8)", rd[4]]
    gaps[3] = [rd[5], rd[6]]
    gaps[4] = [rd[7], rd[8]]
    gaps[5] = ["s_waitcnt lgkmcnt(9)", rd[9]]
    gaps[6] = [rd[10]]
    gaps[11] = ["s_waitcnt lgkmcnt(0)"] + ([] if last and not last_barrier else ["s_barrier"])
    a.extend(interleave(m, gaps))
    m = mfmas(1, swap)
    gaps = [[] for _ in range(12)]
    if not last:
        rd = reads(0, (slot + 1) % NSLOT, 0, kmap)
        for g in range(5):
            gaps[g] = [rd[2*g], rd[2*g+1]]
        gaps[5] = [rd[10]]
    a.extend(interleave(m, gaps))


def compute_main(a, nstages, kmap, swap, tag, hook=None, last_barrier=False, st=(0, 1)):
    a(f"; STAMP {st[0]}\ns_waitcnt lgkmcnt(0)\ns_barrier\n; CYC 0\n; SWAIT")
    a.extend(reads(0, 0, 0, kmap))
    a(f"s_mov_b32 s{S_CNT}, {nstages//4 - 1}")
    a(f".p2align 6\nL_{tag}_loop:")
    if hook:
        hook(a)
    for slot in range(4):
        stage(a, slot, kmap, swap, False)
    a(f"s_sub_u32 s{S_CNT}, s{S_CNT}, 1\ns_cmp_lg_u32 s{S_CNT}, 0\ns_cbranch_scc1 L_{tag}_loop")
    for slot in range(4):
        stage(a, slot, kmap, swap, slot == 3, last_barrier)
    a("; CYC 1")


def w_prefill(a, stages, dt_stride, w_stride):
    for j in stages:
        for g in dma_groups(j, dt_stride, w_stride):
            if f"s[{SRD_W}:" in g[1]:
                a.extend(g)


def loader_after_prefill(a, nstages, dt_stride, w_stride, tag, aflags, before_last=None, after_last=None):
    G = lambda j: dma_groups(j % NSLOT, dt_stride, w_stride, aflags)
    A = lambda j: [x for g in G(j) if f"s[{SRD_ACT}:" in g[1] for x in g]
    flat = lambda gs: [x for g in gs for x in g]
    vm = 28 + 4*LEAD
    a.extend(A(0) + A(1))
    a("s_waitcnt vmcnt(12)\ns_barrier")
    a.extend(A(2) + A(3))
    a("s_waitcnt vmcnt(12)\ns_barrier")
    a(f"s_mov_b32 s{S_CNT}, {nstages//4 - 1}\nL_{tag}_lloop:")
    for slot in range(4):
        a.extend(flat(G(slot)[:LEAD]))
        a(f"s_waitcnt vmcnt({vm})\ns_barrier")
        a.extend(flat(G(slot)[LEAD:]))
    a(f"s_sub_u32 s{S_CNT}, s{S_CNT}, 1\ns_cmp_lg_u32 s{S_CNT}, 0\ns_cbranch_scc1 L_{tag}_lloop")
    a("s_waitcnt vmcnt(28)\ns_barrier")
    if before_last:
        before_last(a)
    a("s_waitcnt vmcnt(0)\ns_barrier")
```

```python
import sys
sys.path.insert(0, "dev")
from asmlib import *
from layout import *
import hazard, k1 as K1, k23

HEADER = open(f"cdna_kernels/{NAME}.s.ref").read().split("; Override launch geometry")[0]


def descriptor(name, vgpr, sgpr=96):
    return (f".p2align 6\n.amdhsa_kernel {name}\n  .amdhsa_next_free_vgpr {vgpr}\n  .amdhsa_next_free_sgpr {sgpr}\n"
            f"  .amdhsa_accum_offset {vgpr}\n  .amdhsa_group_segment_fixed_size 0\n  .amdhsa_kernarg_size 120\n"
            "  .amdhsa_user_sgpr_count 2\n  .amdhsa_user_sgpr_kernarg_segment_ptr 1\n  .amdhsa_system_sgpr_workgroup_id_x 1\n"
            ".end_amdhsa_kernel\n")


WS_STAMP = 0x2000000


def add_stamps(lines, names, cyc=True):
    out, k = [], -1
    for ln in lines:
        t = ln.strip()
        if t.endswith(":") and t[:-1] in names:
            k = names.index(t[:-1])
            out += [ln, "  s_memrealtime s[90:91]", "  s_load_dwordx2 s[86:87], s[0:1], 112", "  v_lshrrev_b32 v255, 6, v0".replace("v255", "v127"),
                    "  s_nop 0", "  v_readfirstlane_b32 s85, v127", "  s_lshl_b32 s84, s2, 4", "  s_add_u32 s85, s85, s84", "  s_lshl_b32 s85, s85, 5", "  s_waitcnt lgkmcnt(0)"]
            out += [f"  s_mov_b32 s{64+2*i}, s90" for i in range(6)] + ["  s_mov_b32 s76, 0", "  s_mov_b32 s78, 0"]
            continue
        if t.startswith("; STAMP"):
            i = int(t.split()[2])
            out += [f"  s_memrealtime s[{64+2*i}:{65+2*i}]"]
            continue
        if t == "; SWAIT":
            out.append("  s_waitcnt lgkmcnt(0)")
            continue
        if t.startswith("; CYC"):
            i = int(t.split()[2])
            out += [f"  s_memtime s[{76+2*i}:{77+2*i}]"]
            continue
        if t == "s_endpgm":
            if cyc:
                out += ["  s_waitcnt lgkmcnt(0)", "  s_sub_u32 s74, s78, s76", "  s_add_u32 s74, s74, s90"]
            out += ["  s_waitcnt vmcnt(0) lgkmcnt(0)", "  s_memrealtime s[92:93]",
                    f"  s_add_u32 s80, s86, {WS_STAMP + k*0x40000:#x}", "  s_addc_u32 s81, s87, 0", "  s_mov_b32 s82, 0x40000", "  s_mov_b32 s83, 0x20000",
                    "  s_waitcnt lgkmcnt(0)", "  s_mov_b64 exec, 1", "  v_mov_b32 v120, s90", "  v_mov_b32 v121, s92", "  v_mov_b32 v122, s64", "  v_mov_b32 v123, s66",
                    "  v_mov_b32 v124, 0", "  buffer_store_dwordx4 v[120:123], v124, s[80:83], s85 offen",
                    "  v_mov_b32 v116, s68", "  v_mov_b32 v117, s70", "  v_mov_b32 v118, s72", "  v_mov_b32 v119, s74",
                    "  buffer_store_dwordx4 v[116:119], v124, s[80:83], s85 offen offset:16"]
        out.append(ln)
    return out


def build(pf=(2, 4, 6, 6), r2=768, r3=0, same_xcd=False, extra_launches=(), stamps=False, **opt):
    launches = [("ln_kgen_kernel", 256, 896, K1.K1_LDS, 128),
                ("gemm1_conv_kernel", 256, 320, k23.K2_LDS, 256),
                ("gemm2_kernel", 256, 320, k23.K3_LDS, 256)]
    a = Asm()
    r1 = opt.get('r1', pf[3]*256//5*4)
    K1.k1(a, launches[0][0], pf)
    k23.k2(a, launches[1][0], r1, r2, opt.get('win2', 40))
    k23.k3(a, launches[2][0], r3, same_xcd, opt.get('win3', 40))
    if opt.get("empties"):
        a(".globl empty_kernel\n.p2align 8\n.type empty_kernel,@function\nempty_kernel:\ns_endpgm")
        launches += [("empty_kernel", 256, 256, 0, 8)] * opt["empties"]
    for i, fl in enumerate(opt.get("pre_reads", ())):
        n = f"pre{i}_kernel"
        a(f".globl {n}\n.p2align 8\n.type {n},@function\n{n}:\ns_cmp_ge_u32 s2, 256\ns_cbranch_scc1 L_pre{i}_end")
        a(f"s_load_dwordx2 s[4:5], s[0:1], {KA['w1']}\ns_load_dwordx2 s[6:7], s[0:1], {KA['w2']}\nv_lshlrev_b32 v1, 4, v0\ns_lshl_b32 s20, s2, 13\ns_waitcnt lgkmcnt(0)")
        srd(a, 8, 4, W_BYTES_TOTAL); srd(a, 12, 6, W_BYTES_TOTAL)
        for j in range(9):
            a(f"buffer_load_dwordx4 v[{8+8*j}:{11+8*j}], v1, s[8:11], s20 offen{fl}\nbuffer_load_dwordx4 v[{12+8*j}:{15+8*j}], v1, s[12:15], s20 offen{fl}\ns_add_u32 s20, s20, {2048*1024}")
        a(f"s_waitcnt vmcnt(0)\nL_pre{i}_end:\ns_endpgm")
        launches.insert(i, (n, 256, 512, 0, 96))
    pk = opt.get("pre_kind")
    if pk:
        n = "prek_kernel"
        a(f".globl {n}\n.p2align 8\n.type {n},@function\n{n}:\ns_cmp_ge_u32 s2, 256\ns_cbranch_scc1 L_prek_end")
        if pk == "ws":
            a(f"s_load_dwordx2 s[4:5], s[0:1], {KA['ws']}\nv_lshlrev_b32 v1, 4, v0\ns_lshl_b32 s20, s2, 13\ns_waitcnt lgkmcnt(0)")
            srd_off(a, 8, 4, 0x4000000, 0x4000000)
            for j in range(18):
                a(f"buffer_load_dwordx4 v[{8+4*j}:{11+4*j}], v1, s[8:11], s20 offen nt\ns_add_u32 s20, s20, {2048*1024}")
        elif pk.startswith("tlb"):
            step = int(pk[3:])
            a(f"s_load_dwordx2 s[4:5], s[0:1], {KA['w1']}\ns_load_dwordx2 s[6:7], s[0:1], {KA['w2']}\ns_load_dwordx2 s[16:17], s[0:1], {KA['ws']}")
            a(f"s_lshr_b32 s20, s2, 3\ns_lshl_b32 s20, s20, 9\nv_add_u32 v1, s20, v0\nv_lshlrev_b32 v1, {step}, v1\ns_waitcnt lgkmcnt(0)")
            srd(a, 8, 4, W_BYTES_TOTAL); srd(a, 12, 6, W_BYTES_TOTAL); srd(a, 24, 16, 0x1600000)
            a("buffer_load_dword v2, v1, s[8:11], 0 offen nt\nbuffer_load_dword v3, v1, s[12:15], 0 offen nt\nbuffer_load_dword v4, v1, s[24:27], 0 offen nt")
        a(f"s_waitcnt vmcnt(0)\nL_prek_end:\ns_endpgm")
        launches.insert(0, (n, 256, 512, 0, 96))
    if opt.get("scramble"):
        out = []
        for ln in a.lines:
            out.append(ln)
            if ln.strip().startswith("s_cbranch_scc1 L_k") and ln.strip().endswith("_end") and out[-2].strip() == "s_cmp_ge_u32 s2, 256":
                out += ["  s_and_b32 s3, s2, 31", "  s_lshl_b32 s3, s3, 3", "  s_lshr_b32 s2, s2, 5", "  s_or_b32 s2, s2, s3"]
        a.lines = out
    rep = []
    if stamps:
        a.lines = add_stamps(a.lines, [l[0] for l in launches])
    lines = hazard.fix(a.lines, report=rep)
    bad = hazard.check_loops(lines)
    assert not bad, bad
    head = HEADER
    for n, g, b, lds, _ in launches:
        head += f"; @launch kernel={n} grid=({g},1,1) block=({b},1,1) lds={lds}\n"
    for n, g, b, lds in extra_launches:
        head += f"; @launch kernel={n} grid=({g},1,1) block=({b},1,1) lds={lds}\n"
    text = head + '.amdgcn_target "amdgcn-amd-amdhsa--gfx950"\n.text\n' + "\n".join(lines) + "\n"
    text += '.section .rodata,"a"\n' + "".join(descriptor(n, v) for n, v in dict((l[0], l[4]) for l in launches).items())
    return text, launches, rep


if __name__ == "__main__":
    kw = dict(x.split("=") for x in sys.argv[2:])
    kw = {k: eval(v) for k, v in kw.items()}
    text, launches, rep = build(**kw)
    out = sys.argv[1] if len(sys.argv) > 1 else f"cdna_kernels/{NAME}.s"
    open(out, "w").write(text)
    print(len(text), "bytes;", len(rep), "pads inserted")
```

```python
import struct
from asmlib import *
from layout import *
import gemm_core as gc
import mega_ln as ln
import mega_conv as cv
from prefetch import *

AT_LDS = gc.LDS_RING
LN_LDS = 139264
CNT_LDS = LN_LDS + 2*ln.LN_T
LDS_TOTAL = CNT_LDS + 64
S_WS, S_X, S_DBG, S_W1, S_W2 = 4, 6, 94, 96, 98
SPIN = 0x100000


def f32hex(x):
    return "0x%08x" % struct.unpack("<I", struct.pack("<f", x))[0]


def div6(a, d, r, x):
    a(f"s_mul_i32 s{d}, s{x}, 10923\ns_lshr_b32 s{d}, s{d}, 16\ns_mul_i32 s{r}, s{d}, 6\ns_sub_u32 s{r}, s{x}, s{r}")


def unpk(a, x, p):
    a(f"v_lshlrev_b32 v{x}, 16, v{p}\nv_and_b32 v{x+1}, 0xffff0000, v{p}")


def poll(a, tag, rs, vaddr, soff, target, sleep=1):
    a(f"s_mov_b32 s61, {SPIN:#x}\nL_{tag}_poll:\nbuffer_load_dword v62, v{vaddr}, s[{rs}:{rs+3}], {soff} offen sc1")
    a(f"s_sub_u32 s61, s61, 1\ns_cbranch_scc1 L_{tag}_go\ns_waitcnt vmcnt(0)\nv_cmp_ne_u32 vcc, {target}, v62")
    a(f"s_cmp_eq_u64 vcc, 0\ns_cbranch_scc1 L_{tag}_go")
    if sleep:
        a(f"s_sleep {sleep}")
    a(f"s_branch L_{tag}_poll\nL_{tag}_go:")


def flags_srd(a, d):
    srd_off(a, d, S_WS, WS_FLG, FLG_BYTES)


def last_wave_signals(a, tag, cnt, rs, soff):
    a(f"v_mov_b32 v58, {cnt}\nv_mov_b32 v59, 1\nv_mov_b32 v61, 0\ns_mov_b64 exec, 1\nds_add_rtn_u32 v60, v58, v59\ns_waitcnt lgkmcnt(0)")
    a(f"v_readfirstlane_b32 s23, v60\ns_cmp_lg_u32 s23, 3\ns_cbranch_scc1 L_{tag}_notlast")
    a(f"buffer_atomic_add v59, v61, s[{rs}:{rs+3}], {soff} offen sc1\nL_{tag}_notlast:\ns_mov_b64 exec, -1")


def ln_local_wait(a, tag, cnt=CNT_LDS+4):
    a(f"v_mov_b32 v58, {cnt}\nL_{tag}:\ns_sleep 2\nds_read_b32 v60, v58\ns_waitcnt lgkmcnt(0)\nv_readfirstlane_b32 s23, v60\ns_cmp_lt_u32 s23, 4\ns_cbranch_scc1 L_{tag}")


def wait_ln(a, tag, rs):
    a("v_and_b32 v61, 15, v1\nv_lshlrev_b32 v61, 8, v61")
    poll(a, tag, rs, 61, 0, 16)


def tile1(a):
    a("s_and_b32 s12, s2, 7\ns_lshr_b32 s13, s2, 3\ns_mul_i32 s12, s12, 27\ns_add_u32 s12, s12, s13")
    div6(a, 14, 15, 12)


def tile2(a):
    a("s_and_b32 s12, s2, 7\ns_lshr_b32 s13, s2, 3")
    div6(a, 14, 15, 13)
    a("s_and_b32 s19, s12, 1\ns_lshr_b32 s18, s12, 1\ns_lshl_b32 s18, s18, 2\ns_add_u32 s14, s14, s18")
    a("s_lshl_b32 s16, s14, 7\ns_lshl_b32 s17, s19, 6\ns_add_u32 s16, s16, s17")


def gelu_epilogue(a):
    c1 = -2.0 * 0.7978845608028654 * 1.4426950408889634
    a(f"s_mov_b32 s48, {f32hex(c1*0.044715)}\ns_mov_b32 s49, s48\nv_mov_b32 v36, {f32hex(c1)}\nv_mov_b32 v37, v36")
    for nu in range(4):
        unpk(a, 20+4*nu, 12+2*nu); unpk(a, 22+4*nu, 13+2*nu)
    B = 112
    for dl in range(3):
        for pi in range(2):
            src = [(gc.acc(2*pi + (k >> 1), dl) + 2*(k & 1), 20 + 4*(2*pi + (k >> 1)) + 2*(k & 1)) for k in range(4)]
            U = [B + 2*k for k in range(4)]; T = [B + 8 + 2*k for k in range(4)]; P = [B + 16 + k for k in range(4)]
            O = B + 20 + 4*((2*dl + pi) % 2)
            for k in range(4): a(f"v_cvt_pk_bf16_f32 v{P[k]}, v{src[k][0]}, v{src[k][0]+1}")
            for k in range(4): unpk(a, U[k], P[k])
            for k in range(4): a(f"v_pk_add_f32 {vr(U[k],2)}, {vr(U[k],2)}, {vr(src[k][1],2)}")
            for k in range(4): a(f"v_cvt_pk_bf16_f32 v{P[k]}, v{U[k]}, v{U[k]+1}")
            for k in range(4): unpk(a, U[k], P[k])
            for k in range(4): a(f"v_pk_mul_f32 {vr(T[k],2)}, {vr(U[k],2)}, {vr(U[k],2)}")
            for k in range(4): a(f"v_pk_fma_f32 {vr(T[k],2)}, {vr(T[k],2)}, s[48:49], v[36:37]")
            for k in range(4): a(f"v_pk_mul_f32 {vr(T[k],2)}, {vr(T[k],2)}, {vr(U[k],2)}")
            for k in range(4): a(f"v_exp_f32 v{T[k]}, v{T[k]}\nv_exp_f32 v{T[k]+1}, v{T[k]+1}")
            for k in range(4): a(f"v_pk_add_f32 {vr(T[k],2)}, {vr(T[k],2)}, 1.0 op_sel_hi:[1,0]")
            for k in range(4): a(f"v_rcp_f32 v{T[k]}, v{T[k]}\nv_rcp_f32 v{T[k]+1}, v{T[k]+1}")
            for k in range(4): a(f"v_pk_mul_f32 {vr(U[k],2)}, {vr(U[k],2)}, {vr(T[k],2)}")
            for k in range(4): a(f"v_cvt_pk_bf16_f32 v{O+k}, v{U[k]}, v{U[k]+1}")
            a(f"buffer_store_dwordx4 {vr(O,4)}, v7, s[44:47], s17 offen offset:{1024*pi} sc1")
        a("s_add_u32 s17, s17, 147456")


def compute_waves(a, o):
    a("s_waitcnt lgkmcnt(0)")
    ln.ln_issue(a, S_X)
    a(f"s_cmp_lg_u32 s20, 0\ns_cbranch_scc1 L_m_nz\nv_mov_b32 v58, {CNT_LDS}\nv_mov_b32 v60, 0\nv_mov_b32 v61, 0\nv_mov_b32 v62, 0\nv_mov_b32 v63, 0")
    a("ds_write_b128 v58, v[60:63]\ns_waitcnt lgkmcnt(0)\nL_m_nz:\ns_barrier")
    a(f"s_load_dwordx2 s[52:53], s[0:1], {KA['b1']}")
    ln.ln_body(a, S_WS, LN_LDS, CNT_LDS, "ln")
    srd(a, 8, S_DBG, 256)
    flags_srd(a, 40)
    a("v_mov_b32 v61, 0")
    poll(a, "rdy", 8, 61, 0, 1, sleep=0)
    a("; STAMP 1")
    a(f"s_and_b32 s24, s2, 15\ns_lshl_b32 s24, s24, 8")
    last_wave_signals(a, "lnd", CNT_LDS + 4, 40, "s24")
    a("s_cmp_ge_u32 s2, 216\ns_cbranch_scc1 L_m_conv")
    a("s_lshr_b32 s29, s2, 3\ns_lshl_b32 s29, s29, 2\ns_add_u32 s29, s29, s20")
    tile1(a)
    gc.lane_ids(a)
    gc.compute_setup(a, "A")
    srd(a, 8, 52, F*2)
    a(f"s_lshr_b32 s16, s20, 1\ns_lshl_b32 s17, s16, 7\ns_lshl_b32 s18, s14, 8\ns_add_u32 s17, s17, s18\nv_lshlrev_b32 v9, 3, v3")
    for nu in range(4):
        a(f"buffer_load_dwordx2 {vr(12+2*nu,2)}, v9, s[8:11], s17 offen offset:{32*nu}")
    for i in range(48):
        a(f"v_mov_b32 v{gc.V_ACC+i}, 0")
    srd_off(a, 44, S_WS, WS_G, G_BYTES)
    a("s_and_b32 s17, s20, 1\ns_mul_i32 s17, s17, 3\ns_mul_i32 s18, s15, 6\ns_add_u32 s17, s17, s18\ns_mul_i32 s17, s17, 147456")
    a("s_lshl_b32 s18, s14, 2\ns_lshl_b32 s16, s16, 1\ns_add_u32 s18, s18, s16\ns_lshl_b32 s18, s18, 10\ns_add_u32 s17, s17, s18")
    a(f"s_cmp_ge_u32 s14, 18\ns_cselect_b32 s24, 256, 0\ns_lshl_b32 s18, s15, 9\ns_add_u32 s24, s24, s18\ns_add_u32 s24, s24, {F_G}")
    a(f"s_load_dwordx4 s[52:55], s[0:1], {KA['b2']}")
    srd(a, 32, S_W1, W_BYTES_TOTAL)
    w1_burst(a, 32, 29, 108, o["r1"]//4*5, o["nB"])
    srd(a, 32, S_W2, W_BYTES_TOTAL)
    srd_off(a, 44, S_WS, WS_G, G_BYTES)
    if o["nT"]:
        w2_base(a, 28, 29, 0)
        srd_off(a, 44, S_WS, WS_G, G_BYTES)

    def trickle(a):
        for i in range(o["nT"]):
            a(f"buffer_load_dwordx4 v[168:171], v7, s[32:35], s28 offen\ns_add_u32 s28, s28, {108*4096}")
    gc.compute_main(a, 32, "A", False, "g1", hook=trickle, last_barrier=True, st=(5, 2))
    a("s_waitcnt vmcnt(0)")
    gelu_epilogue(a)
    a("s_waitcnt vmcnt(0)")
    last_wave_signals(a, "gd", CNT_LDS + 8, 40, "s24")
    a("; STAMP 3\ns_cmp_ge_u32 s2, 192\ns_cbranch_scc1 L_m_conv1")
    w2_burst(a, 32, 29, 96, o["r2"], o["nC"], 7)
    tile2(a)
    gc.compute_setup(a, "B", s_kh=19)
    srd(a, 8, S_X, X_BYTES); srd(a, 44, 52, S*2)
    a("s_lshr_b32 s17, s20, 1\ns_lshl_b32 s17, s17, 5\ns_add_u32 s17, s17, s16")
    a("s_mul_i32 s18, s15, 96\ns_and_b32 s26, s20, 1\ns_mul_i32 s26, s26, 48\ns_add_u32 s18, s18, s26")
    a("v_mul_u32_u24 v58, 1152, v2\nv_lshl_add_u32 v58, v3, 3, v58\nv_lshlrev_b32 v9, 1, v2")
    a("s_mul_i32 s56, s17, 1152\ns_lshl_b32 s26, s18, 1\ns_add_u32 s56, s56, s26\ns_add_u32 s57, s56, 18432\ns_lshl_b32 s26, s17, 1")
    for nu in range(2):
        for dl in range(3):
            a(f"buffer_load_dwordx2 {vr(10+2*(3*nu+dl),2)}, v58, s[8:11], s{56+nu} offen offset:{32*dl}{o['xnt']}")
        a(f"buffer_load_ushort v{22+nu}, v9, s[44:47], s26 offen offset:{32*nu}")
    for i in range(48):
        a(f"v_mov_b32 v{gc.V_ACC+i}, 0")
    a("v_bfe_u32 v4, v1, 2, 2\nv_lshl_add_u32 v4, v3, 2, v4\nv_lshlrev_b32 v4, 7, v4\nv_and_b32 v5, 3, v1\nv_lshl_add_u32 v4, v5, 3, v4")
    a(f"s_and_b32 s26, s20, 1\ns_mul_i32 s26, s26, 6144\ns_lshr_b32 s27, s20, 1\ns_lshl_b32 s27, s27, 6\ns_add_u32 s26, s26, s27\ns_add_u32 s26, s26, {AT_LDS}\nv_add_u32 v59, s26, v4")
    srd_off(a, 8, S_WS, WS_XCH, XCH_BYTES); srd(a, 44, 54, X_BYTES)
    a("s_xor_b32 s58, s2, 1\ns_mul_i32 s26, s20, 6144\ns_mul_i32 s59, s58, 24576\ns_add_u32 s59, s59, s26\ns_mul_i32 s60, s2, 24576\ns_add_u32 s60, s60, s26")
    gc.compute_main(a, 36, "B", True, "g2", st=(5, 4))
    a("s_waitcnt vmcnt(0)\n; STAMP 5")
    for k in range(6):
        a(f"buffer_store_dwordx4 {vr(gc.V_ACC+24+4*k,4)}, v7, s[8:11], s59 offen sc1\ns_add_u32 s59, s59, 1024")
    AR, PF = 112, 124
    for nu in range(2):
        for dl in range(3):
            a(f"ds_read_b64_tr_b16 {vr(AR+2*(3*nu+dl),2)}, v59 offset:{2048*dl + 32*nu}")
    a("v_lshlrev_b32 v22, 16, v22\nv_lshlrev_b32 v24, 16, v23\ns_waitcnt lgkmcnt(0)")
    for t in range(6):
        for h in range(2):
            unpk(a, 26, 10+2*t+h); unpk(a, 28, AR+2*t+h)
            a("v_pk_add_f32 v[26:27], v[26:27], v[28:29]\nv_cvt_pk_bf16_f32 v30, v26, v27")
            unpk(a, PF+4*t+2*h, 30)
    a("s_waitcnt vmcnt(0)\ns_barrier")
    a("s_cmp_lg_u32 s20, 0\ns_cbranch_scc1 L_m_xwait")
    a(f"s_lshl_b32 s26, s2, 8\ns_add_u32 s26, s26, {F_XCH}\ns_lshl_b32 s27, s58, 8\ns_add_u32 s27, s27, {F_XCH}\nv_mov_b32 v4, 1\nv_mov_b32 v5, 0\ns_mov_b64 exec, 1")
    a("buffer_store_dword v4, v5, s[40:43], s26 offen sc1")
    poll(a, "xch", 40, 5, "s27", 1, sleep=0)
    a("s_mov_b64 exec, -1\nL_m_xwait:\ns_barrier")
    RX = 148
    for k in range(6):
        a(f"buffer_load_dwordx4 {vr(RX+4*k,4)}, v7, s[8:11], s60 offen sc1\ns_add_u32 s60, s60, 1024")
    for t in range(6):
        nu, dl = divmod(t, 3)
        b, r, p = gc.V_ACC + 4*t, RX + 4*t, PF + 4*t
        a("s_waitcnt vmcnt(5)")
        for h in range(2): a(f"v_pk_add_f32 {vr(b+2*h,2)}, {vr(b+2*h,2)}, {vr(r+2*h,2)}")
        for h in range(2): a(f"v_cvt_pk_bf16_f32 v{26+h}, v{b+2*h}, v{b+2*h+1}")
        for h in range(2): unpk(a, b+2*h, 26+h)
        for h in range(2): a(f"v_pk_add_f32 {vr(b+2*h,2)}, {vr(b+2*h,2)}, {vr(22+2*nu,2)} op_sel_hi:[1,0]")
        for h in range(2): a(f"v_cvt_pk_bf16_f32 v{26+h}, v{b+2*h}, v{b+2*h+1}")
        for h in range(2): unpk(a, b+2*h, 26+h)
        for h in range(2): a(f"v_pk_add_f32 {vr(b+2*h,2)}, {vr(b+2*h,2)}, {vr(p+2*h,2)}")
        for h in range(2): a(f"v_cvt_pk_bf16_f32 v{10+2*t+h}, v{b+2*h}, v{b+2*h+1}")
        a(f"buffer_store_dwordx2 {vr(10+2*t,2)}, v58, s[44:47], s{56+nu} offen offset:{32*dl}{o['ont']}")
    a("s_endpgm")
    a("L_m_conv1:\ns_mov_b32 s30, 1\ns_sub_u32 s31, s2, 72\ns_branch L_m_conv2")
    a("L_m_conv:\ns_mov_b32 s30, 3\ns_sub_u32 s31, s2, 216\ns_mul_i32 s31, s31, 3\nL_m_conv2:")
    a("s_lshl_b32 s31, s31, 2\ns_add_u32 s31, s31, s20\ns_mul_i32 s29, s31, 683\ns_lshr_b32 s29, s29, 16")
    a(f"s_load_dwordx8 s[8:15], s[0:1], {KA['lar']}\ns_load_dwordx4 s[16:19], s[0:1], {KA['ldt']}\ns_waitcnt lgkmcnt(0)")
    cv.param_loads(a, 8, 16, 18)

    def signal(a):
        a("s_lshl_b32 s36, s29, 8")
        a(f"s_add_u32 s36, s36, {F_CONV}\nv_mov_b32 v4, 1\nv_mov_b32 v5, 0\ns_mov_b64 exec, 1\nbuffer_atomic_add v4, v5, s[8:11], s36 offen sc1")
    flags_srd(a, 8)
    cv.conv_role(a, "cv", S_WS, lambda a: wait_ln(a, "cvln", 8), signal)
    a("s_endpgm")


def fifth_wave(a, o):
    a("s_waitcnt lgkmcnt(0)")
    flags_srd(a, 36)
    srd(a, 8, S_DBG, 256)
    a("s_cmp_lg_u32 s2, 0\ns_cbranch_scc1 L_m_noinit\nv_lshlrev_b32 v4, 8, v1\nv_mov_b32 v5, 0")
    for k in range(4):
        a(f"s_mov_b32 s23, {k*16384}\nbuffer_store_dword v5, v4, s[36:39], s23 offen sc1")
    a("s_waitcnt vmcnt(0)\nv_mov_b32 v4, 1\ns_mov_b64 exec, 1\nbuffer_store_dword v4, v5, s[8:11], 0 offen sc1\ns_mov_b64 exec, -1\nL_m_noinit:")
    srd(a, gc.SRD_W, S_W1, W_BYTES_TOTAL)
    a("s_barrier\ns_lshr_b32 s30, s2, 3")
    if o["code_pf"]:
        a("s_cmp_ge_u32 s30, 4\ns_cbranch_scc1 L_m_nocode\ns_getpc_b64 s[12:13]\nL_m_pc:\ns_sub_u32 s12, s12, L_m_pc-L_m_base\ns_subb_u32 s13, s13, 0")
        a("s_mov_b32 s14, L_m_last-L_m_base\ns_mov_b32 s15, 0x20000\nv_lshlrev_b32 v4, 4, v1\ns_lshl_b32 s23, s30, 10")
        for i in range(o["code_pf"]):
            a(f"buffer_load_dwordx4 v[96:99], v4, s[12:15], s23 offen\ns_add_u32 s23, s23, 4096")
        a("L_m_nocode:")
    w1_stream(a, "m0", gc.SRD_W, 30, 32, 0, o["r1"], o["win1"])
    a("; STAMP 0\ns_cmp_ge_u32 s2, 216\ns_cbranch_scc1 L_m_helper")
    tile1(a)
    gc.lane_ids(a)
    a(f"s_mul_i32 s{gc.S_ACT0}, s15, {6*65536}\ns_lshl_b32 s{gc.S_W0}, s14, 8")
    gc.loader_setup(a, 65536, 9216, "A")
    srd_off(a, gc.SRD_ACT, S_WS, WS_HT, HT_BYTES)
    ln_local_wait(a, "lw1")
    a("; STAMP 0")
    gc.w_prefill(a, range(4), 65536, 9216)
    a("v_mov_b32 v61, 0")
    poll(a, "rdy4", 8, 61, 0, 1)
    a("; STAMP 1")
    wait_ln(a, "l1", 36)
    a("; STAMP 2")
    gc.loader_after_prefill(a, 32, 65536, 9216, "g1", o["aflags"])
    srd(a, gc.SRD_W, S_W2, W_BYTES_TOTAL)
    a("s_cmp_lt_u32 s2, 192\ns_cbranch_scc1 L_m_l2\ns_barrier\ns_sub_u32 s30, s2, 152\ns_lshr_b32 s30, s30, 3")
    ln_local_wait(a, "lw3", CNT_LDS+8)
    w2_stream(a, "m3", gc.SRD_W, 30, 8, o["r2"] + 96*o["nC"], 2304, o["win3"])
    a("s_endpgm\nL_m_l2:")
    tile2(a)
    a(f"s_mul_i32 s{gc.S_ACT0}, s15, {6*147456}\ns_mul_i32 s18, s19, {72*1024}\ns_add_u32 s{gc.S_ACT0}, s{gc.S_ACT0}, s18")
    a(f"s_lshl_b32 s{gc.S_W0}, s14, 8\ns_mul_i32 s18, s19, {HALF2}\ns_add_u32 s{gc.S_W0}, s{gc.S_W0}, s18")
    gc.loader_setup(a, 147456, 4096, "B")
    srd_off(a, gc.SRD_ACT, S_WS, WS_G, G_BYTES)
    gc.w_prefill(a, range(o["early2"]), 147456, 4096)
    a("s_barrier\n; STAMP 5")
    if o["early2"] < 3:
        ln_local_wait(a, "lw4", CNT_LDS+8)
    gc.w_prefill(a, range(o["early2"], 4), 147456, 4096)
    a(f"s_lshl_b32 s23, s15, 9\ns_lshl_b32 s24, s19, 8\ns_add_u32 s23, s23, s24\ns_add_u32 s23, s23, {F_G}\nv_mov_b32 v61, 0\n; STAMP 3")
    poll(a, "l2", 36, 61, "s23", 18)
    a("; STAMP 4")

    def at_tile(a):
        srd_off(a, 52, S_WS, WS_AT, AT_BYTES)
        a("v_lshrrev_b32 v8, 3, v1\nv_lshlrev_b32 v8, 12, v8\nv_and_b32 v9, 7, v1\nv_lshl_add_u32 v8, v9, 4, v8")
        a(f"s_mul_i32 s26, s15, {96*4096}\ns_lshl_b32 s27, s16, 1\ns_add_u32 s26, s26, s27")
        a(f"s_lshl_b32 s23, s15, 8\ns_add_u32 s23, s23, {F_CONV}")
        a("s_cmp_eq_u32 s15, 5\ns_cselect_b32 s24, 96, 32")
        poll(a, "at", 36, 61, "s23", "s24")
        for e in range(12):
            a(f"s_mov_b32 m0, {AT_LDS + 1024*e}\nbuffer_load_dwordx4 v8, s[52:55], s26 offen sc1 lds\ns_add_u32 s26, s26, 32768")
    gc.loader_after_prefill(a, 36, 147456, 4096, "g2", o["aflags"], before_last=at_tile)
    a("s_endpgm")
    a("L_m_helper:\ns_sub_u32 s30, s2, 216\ns_lshr_b32 s30, s30, 3")
    ln_local_wait(a, "lw2")
    w1_stream(a, "m1", gc.SRD_W, 30, 5, o["r1"] + 108*o["nB"]//5*4, 2048, o["win2"])
    a("; STAMP 1")
    srd(a, gc.SRD_W, S_W2, W_BYTES_TOTAL)
    w2_stream(a, "m2", gc.SRD_W, 30, 5, 108*7*o["nT"], o["r2"], o["win2"])
    a("; STAMP 2")
    w2_stream(a, "m4", gc.SRD_W, 30, 8, o["r2"] + 96*o["nC"], 2304, o["win3"])


def mega(a, name, **opt):
    o = dict(early2=3, xnt='', ont='', prefill_late=True, r1=384, nB=4, nT=0, r2=256, nC=6, win1=20, win2=40, win3=40, aflags=" sc1", code_pf=0)
    o.update(opt)
    a(f".globl {name}\n.p2align 8\n.type {name},@function\n{name}:\nL_m_base:")
    a("s_cmp_ge_u32 s2, 256\ns_cbranch_scc1 L_m_end")
    a(f"s_load_dwordx2 s[{S_X}:{S_X+1}], s[0:1], {KA['x']}\ns_load_dwordx2 s[{S_WS}:{S_WS+1}], s[0:1], {KA['ws']}")
    a(f"s_load_dwordx2 s[{S_DBG}:{S_DBG+1}], s[0:1], {KA['dbg']}\ns_load_dwordx2 s[{S_W1}:{S_W1+1}], s[0:1], {KA['w1']}\ns_load_dwordx2 s[{S_W2}:{S_W2+1}], s[0:1], {KA['w2']}")
    a("v_lshrrev_b32 v1, 6, v0\nv_readfirstlane_b32 s20, v1\nv_and_b32 v1, 63, v0")
    a("s_cmp_eq_u32 s20, 4\ns_cbranch_scc1 L_m_w4")
    compute_waves(a, o)
    a("L_m_w4:")
    fifth_wave(a, o)
    a("L_m_end:\ns_endpgm\nL_m_last:")
```

```python
from asmlib import *
from layout import *

KP = 528
TAB = 57 * KP
OFF_A = 64
OFF_B = OFF_A + 4160
OFF_UPAD = TAB
OFF_U = TAB + 512
REGION = OFF_U + 4096

V_T = (64, 128)
V_U = (96, 160)
V_ACC = 192
V_AT, V_AU = 20, 24
V_OUT, V_GA, V_TW = 25, 26, 27
V_ID = 28
V_PAR = 224
V_DT, V_DS = 36, 40
V_EX = 44


def rnd(a, v):
    a(f"v_cvt_pk_bf16_f32 v{v}, v{v}, v{v}\nv_lshlrev_b32 v{v}, 16, v{v}")


def cmul(a, d, x, y):
    a(f"v_pk_mul_f32 {vr(d,2)}, {vr(x,2)}, {vr(y,2)} op_sel_hi:[0,1]")
    a(f"v_pk_fma_f32 {vr(d,2)}, {vr(x,2)}, {vr(y,2)}, {vr(d,2)} op_sel:[1,1,0] op_sel_hi:[1,0,1] neg_lo:[0,1,0]")


def tables(a):
    P = V_PAR
    a(f"v_lshlrev_b32 v10, 16, v{P}\nv_lshlrev_b32 v11, 16, v{P+1}\nv_lshlrev_b32 v12, 16, v{P+2}\nv_lshlrev_b32 v13, 16, v{P+3}")
    a("v_mul_f32 v10, s48, v10\nv_exp_f32 v10, v10\nv_mul_f32 v11, v11, v14\nv_mul_f32 v12, v12, v14\nv_mul_f32 v13, v13, v14")
    rnd(a, 10)
    a("v_mul_f32 v10, v10, v14\nv_mul_f32 v11, 0.15915494, v11\nv_mul_f32 v10, s48, v10")
    W = lambda c: 64 + 2*(c-1)
    U1, T = 78, 80
    ub, Y, Z = [82, 84], [86, 88], [90, 92]
    a(f"v_add_f32 v{Y[0]}, v12, v12\nv_add_f32 v{Y[0]+1}, v13, v13")
    for dst, p in ((W(1), 1.0), (U1, 8.0), (T, 128.0)):
        a(f"v_mul_f32 v5, {-p}, v10\nv_mul_f32 v6, {p}, v11")
        a("v_exp_f32 v5, v5\nv_fract_f32 v6, v6\nv_cos_f32 v7, v6\nv_sin_f32 v8, v6")
        a(f"v_mul_f32 v{dst}, v5, v7\nv_mul_f32 v{dst+1}, v5, v8")
    cnt = [0]
    pend = []

    def put(row, src, conj):
        t = 94 + cnt[0] % 4; cnt[0] += 1
        a(f"v_cvt_pk_bf16_f32 v{t}, v{src}, {'-' if conj else ''}v{src+1}\nds_write_b32 v{V_TW}, v{t} offset:{row*KP}")
    cmul(a, W(2), W(1), W(1)); cmul(a, W(3), W(2), W(1)); cmul(a, W(4), W(2), W(2))
    cmul(a, W(5), W(4), W(1)); cmul(a, W(6), W(4), W(2)); cmul(a, W(7), W(4), W(3))
    a(f"v_mov_b32 v98, 0x3f80\nds_write_b32 v{V_TW}, v98 offset:{41*KP}")
    put(42, U1, False)
    prev_u = U1
    for i in range(17):
        y = Y[i % 2]
        if i < 16:
            cmul(a, Y[(i+1) % 2], y, T)
        if i < 14:
            cmul(a, ub[i % 2], prev_u, U1)
        if i < 2:
            put(8*i, y, True)
            for c in range(1, 8):
                cmul(a, Z[c % 2], y, W(c)); put(8*i + c, Z[c % 2], True)
        elif i < 4:
            put(16 + 4*(i-2), y, True)
            for c in range(1, 4):
                cmul(a, Z[c % 2], y, W(2*c)); put(16 + 4*(i-2) + c, Z[c % 2], True)
        elif i < 8:
            put(24 + 2*(i-4), y, True)
            cmul(a, Z[0], y, W(4)); put(24 + 2*(i-4) + 1, Z[0], True)
        else:
            put(32 + i - 8, y, True)
        if i < 14:
            put(43 + i, ub[i % 2], False); prev_u = ub[i % 2]


def kgen(a, tag):
    a(f"v_lshlrev_b32 v14, 16, v{V_DT}\nv_mul_f32 v14, s48, v14\nv_exp_f32 v14, v14")
    rnd(a, 14)
    a(f"s_mov_b32 s41, 0\nv_lshl_add_u32 v{V_TW}, v1, 2, s34\nL_{tag}_half:")
    tables(a)
    for i in range(20):
        a(f"v_mov_b32 v{V_PAR+i}, v{V_PAR+i+4}")
    a(f"v_add_u32 v{V_TW}, 256, v{V_TW}\ns_add_u32 s41, s41, 1\ns_cmp_lt_u32 s41, 2\ns_cbranch_scc1 L_{tag}_half")
    fs = lambda ks, k: 64 + 16*(ks % 2) + 4*k
    def rd(ks):
        a(f"ds_read_b128 {vr(fs(ks,3),4)}, v{V_GA} offset:{41*KP + 64*ks}")
        for t in range(3):
            a(f"ds_read_b128 {vr(fs(ks,t),4)}, v{V_GA} offset:{16*t*KP + 64*ks}")
    rd(0)
    for ks in range(8):
        if ks < 7:
            rd(ks+1); a("s_waitcnt lgkmcnt(4)")
        else:
            a("s_waitcnt lgkmcnt(0)")
        for t in range(3):
            a(f"v_mfma_f32_16x16x32_bf16 {vr(100+4*t,4)}, {vr(fs(ks,t),4)}, {vr(fs(ks,3),4)}, {'0' if ks == 0 else vr(100+4*t,4)}")
    E = V_EX
    a(f"v_mov_b32 v4, 0\nv_mov_b32 v5, 0\nds_write_b64 v{E+5}, v[4:5] offset:{OFF_A+4096}\nds_write_b64 v{E+5}, v[4:5] offset:{OFF_B+4096}")
    for r in range(4):
        v = 108 + r; b = 64 + 4*r
        a(f"v_mov_b32_dpp v{80+r}, v{v} quad_perm:[0,0,2,2] row_mask:0xf bank_mask:0xf")
        a(f"v_cvt_pk_bf16_f32 v{b}, v{v}, v{v}\nv_cvt_pk_bf16_f32 v{b+3}, v{v}, v{80+r}\nv_mov_b32 v{b+1}, v{b}\nv_mov_b32 v{b+2}, v{b}")
    for r in range(4):
        b = 64 + 4*r
        a(f"s_mov_b32 exec_hi, {1 if r == 0 else 0}")
        a(f"ds_write2_b64 v{E}, {vr(b,2)}, {vr(b+2,2)} offset0:{32*(3-r)} offset1:{32*(3-r)+1}")
    a("s_mov_b32 exec_hi, -1")
    for q in range(2):
        v0, v1 = 104 + 2*q, 105 + 2*q
        a(f"v_cvt_pk_bf16_f32 v{84+3*q}, v{v1}, v{v1}\nv_cvt_pk_bf16_f32 v{85+3*q}, v{v1}, v{v0}\nv_cvt_pk_bf16_f32 v{86+3*q}, v{v0}, v{v0}")
    a("v_cvt_pk_bf16_f32 v90, v107, v107\nv_cvt_pk_bf16_f32 v91, v106, v106\nv_cvt_pk_bf16_f32 v92, v106, v105\nv_cvt_pk_bf16_f32 v93, v104, v104")
    a("v_cvt_pk_bf16_f32 v94, v103, v102\nv_cvt_pk_bf16_f32 v95, v101, v100")
    a("s_mov_b32 exec_lo, 0")
    for q in range(2):
        o = 64*(1-q)
        a(f"ds_write2_b32 v{E+1}, v{84+3*q}, v{85+3*q} offset0:{o} offset1:{o+1}\nds_write2_b32 v{E+1}, v{86+3*q}, v{86+3*q} offset0:{o+2} offset1:{o+3}")
    a("s_mov_b32 exec_lo, -1\ns_mov_b32 exec_hi, 0")
    a(f"ds_write_b16 v{E+2}, v90\nds_write2_b32 v{E+3}, v91, v92 offset0:0 offset1:1\nds_write_b32 v{E+3}, v93 offset:8\nds_write_b16 v{E+2}, v93 offset:14")
    a(f"s_mov_b32 exec_hi, -1\nds_write_b64 v{E+4}, v[94:95]")
    a("v_lshl_add_u32 v9, v1, 4, s34")
    for k in range(4):
        a(f"ds_read_b128 {vr(64+4*k,4)}, v9 offset:{OFF_A + 1024*k}\nds_read_b32 v{80+k}, v9 offset:{OFF_A + 1024*k + 16}")
    for k in range(4):
        a(f"s_waitcnt lgkmcnt({6-k})")
        b = 64 + 4*k
        for m in range(4):
            a(f"v_alignbit_b32 v{84+4*k+m}, v{b+m+1 if m < 3 else 80+k}, v{b+m}, 16")
        a(f"ds_write_b128 v9, {vr(84+4*k,4)} offset:{OFF_B + 1024*k}")


def reads(s, rho):
    r = 2*rho + 1
    T = lambda q, h: (f"ds_read2_b32 {vr(V_T[s]+4*q+2*h, 2)}, v{V_AT + (q >> 1)} "
                      f"offset0:{128*(1-(q & 1)) + 16*(7-rho) + 2*h} offset1:{128*(1-(q & 1)) + 16*(7-rho) + 2*h + 1}")
    U = lambda p: f"ds_read_b128 {vr(V_U[s]+4*p, 4)}, v{V_AU} offset:{512*(p+1) - 32*r}"
    out = [T(0, 0), T(0, 1)] + [U(p) for p in range(8)]
    for q in range(1, 8):
        out += [T(q, 0), T(q, 1)]
    return out


def u_dma(a):
    a("s_and_b32 s33, s31, 15\ns_lshl_b32 s33, s33, 4\ns_lshr_b32 s32, s31, 4\ns_lshl_b32 s32, s32, 16\ns_add_u32 s33, s33, s32")
    for e in range(4):
        a(f"s_add_u32 m0, s34, {OFF_U + 1024*e}\nbuffer_load_dwordx4 v2, s[16:19], s33 offen sc1 lds\ns_add_u32 s33, s33, 16384")


def param_loads(a, s_par, s_ldt, s_dsk):
    for i, d in enumerate((24, 44, 48, 52)):
        srd(a, d, s_par + 2*i, D*NST*2)
    srd(a, 56, s_ldt, D*2); srd(a, 60, s_dsk, D*2)
    a("s_lshl_b32 s37, s31, 1\ns_lshl_b32 s36, s31, 8\nv_lshlrev_b32 v2, 1, v1\nv_mov_b32 v3, 0")
    for k in range(3):
        for hf in range(2):
            for i, d in enumerate((24, 44, 48, 52)):
                a(f"buffer_load_ushort v{V_PAR + 8*k + 4*hf + i}, v2, s[{d}:{d+3}], s36 offen offset:{1024*k + 128*hf}")
        a(f"buffer_load_ushort v{V_DT+k}, v3, s[56:59], s37 offen offset:{8*k}\nbuffer_load_ushort v{V_DS+k}, v3, s[60:63], s37 offen offset:{8*k}")


def conv_role(a, tag, s_ws, wait_ln, signal):
    srd_off(a, 16, s_ws, WS_XNT, XNT_BYTES); srd_off(a, 24, s_ws, WS_AT, AT_BYTES)
    a(f"s_mul_i32 s34, s20, {REGION}\ns_mov_b32 s48, {LOG2E:#x}\nv_lshlrev_b32 v2, 8, v1")
    a(f"v_mov_b32 v4, 0\nv_mov_b32 v5, 0\nv_lshl_add_u32 v6, v1, 3, s34\nds_write_b64 v6, v[4:5] offset:{OFF_UPAD}")
    a("v_and_b32 v8, 15, v1\nv_lshrrev_b32 v9, 4, v1")
    a(f"v_add_u32 v10, 1, v8\nv_lshrrev_b32 v10, 1, v10\nv_lshlrev_b32 v11, 2, v9\nv_sub_u32 v10, v11, v10\nv_add_u32 v10, {776 + OFF_A//4}, v10")
    a(f"v_and_b32 v11, 1, v8\nv_xor_b32 v11, 1, v11\nv_mul_u32_u24 v11, {4160//4 - 1}, v11\nv_add_u32 v10, v10, v11\nv_lshl_add_u32 v{V_AT}, v10, 2, s34")
    for k in range(1, 4):
        a(f"v_subrev_u32 v{V_AT+k}, {1024*k}, v{V_AT}")
    a(f"v_lshlrev_b32 v10, 5, v8\nv_lshl_add_u32 v11, v9, 4, v10\ns_add_u32 s36, s34, {OFF_UPAD}\nv_add_u32 v{V_AU}, s36, v11")
    a(f"v_lshl_add_u32 v{V_OUT}, v9, 3, v10")
    a(f"v_mul_u32_u24 v10, {KP}, v8\nv_lshl_add_u32 v10, v9, 4, v10\nv_add_u32 v{V_GA}, s34, v10")
    a("v_lshlrev_b32 v10, 3, v9\nv_sub_u32 v10, v8, v10\nv_add_u32 v10, 16, v10\nv_mov_b32 v11, 0xffff\nv_mov_b32 v12, 0xffff0000")
    for m in range(4):
        a(f"v_cmp_eq_u32 vcc, {2*m}, v10\nv_cndmask_b32 v13, 0, v11, vcc\nv_cmp_eq_u32 vcc, {2*m+1}, v10\nv_cndmask_b32 v{V_ID+m}, v13, v12, vcc")
    E = V_EX
    a(f"s_add_u32 s36, s34, {OFF_A}\nv_lshlrev_b32 v10, 4, v8")
    a(f"v_lshl_add_u32 v11, v9, 10, v10\nv_sub_u32 v11, 1272, v11\nv_add_u32 v{E}, s36, v11")
    a(f"v_lshl_add_u32 v11, v9, 9, v10\nv_sub_u32 v11, 3828, v11\nv_add_u32 v{E+1}, s36, v11")
    a(f"v_lshl_add_u32 v11, v9, 8, v10\nv_sub_u32 v11, 3570, v11\nv_add_u32 v{E+2}, s36, v11\nv_add_u32 v{E+3}, 2, v{E+2}")
    a(f"v_lshrrev_b32 v11, 1, v9\nv_lshl_add_u32 v11, v11, 8, v10\nv_and_b32 v12, 1, v9\nv_lshl_add_u32 v11, v12, 3, v11\nv_sub_u32 v11, 4088, v11\nv_add_u32 v{E+4}, s36, v11")
    a(f"v_and_b32 v11, 7, v1\nv_lshl_add_u32 v{E+5}, v11, 3, s34")
    a(f"s_mov_b32 s38, 0\ns_waitcnt vmcnt(0)\nL_{tag}_round:\n; STAMP 3")
    a(f"s_cmp_eq_u32 s38, 0\ns_cbranch_scc1 L_{tag}_late")
    u_dma(a)
    a(f"L_{tag}_late:")
    kgen(a, tag)
    a(f"s_cmp_lg_u32 s38, 0\ns_cbranch_scc1 L_{tag}_have\n; STAMP 2")
    wait_ln(a)
    u_dma(a)
    a(f"L_{tag}_have:\n; STAMP 4")
    a(f"v_lshl_or_b32 v14, v{V_DS}, 16, v{V_DS}")
    for m in range(4):
        a(f"v_and_b32 v{V_ID+4+m}, v14, v{V_ID+m}")
    for k in range(2):
        a(f"v_mov_b32 v{V_DS+k}, v{V_DS+k+1}\nv_mov_b32 v{V_DT+k}, v{V_DT+k+1}")
    a("s_lshl_b32 s39, s31, 12\ns_add_u32 s31, s31, 4")
    a("s_waitcnt vmcnt(0) lgkmcnt(0)\n; STAMP 5\n; SWAIT")
    a.extend(reads(0, 0)[:14])
    a("s_waitcnt lgkmcnt(4)")
    a.extend(reads(0, 0)[14:])
    for rho in range(8):
        s = rho & 1
        ms = []
        for q in range(8):
            for p in range(8-q):
                c = "0" if (rho == 0 and q == 0) else vr(V_ACC+4*(q+p), 4)
                ms.append(f"v_mfma_f32_16x16x32_bf16 {vr(V_ACC+4*(q+p),4)}, {vr(V_T[s]+4*q,4)}, {vr(V_U[s]+4*p,4)}, {c}")
            if rho == 0 and q == 0:
                for p in range(8):
                    ms.append(f"v_mfma_f32_16x16x32_bf16 {vr(V_ACC+4*p,4)}, {vr(V_ID+4,4)}, {vr(V_U[s]+4*p,4)}, {vr(V_ACC+4*p,4)}")
        gaps = [[] for _ in ms]
        if rho == 0:
            gaps[14].append("s_waitcnt lgkmcnt(0)")
            first = 15
        else:
            a("s_waitcnt lgkmcnt(0)")
            first = 0
        if rho < 7:
            for i, x in enumerate(reads(s ^ 1, rho+1)):
                gaps[first + i].append(x)
        a.extend(interleave(ms, gaps))
    for t in range(8):
        b = V_ACC + 4*t
        a(f"v_cvt_pk_bf16_f32 v{64+2*t}, v{b}, v{b+1}\nv_cvt_pk_bf16_f32 v{65+2*t}, v{b+2}, v{b+3}")
        a(f"buffer_store_dwordx2 {vr(64+2*t,2)}, v{V_OUT}, s[24:27], s39 offen offset:{512*t} sc1")
    a(f"s_add_u32 s38, s38, 1\ns_cmp_lt_u32 s38, s30\ns_cbranch_scc1 L_{tag}_round")
    a("s_waitcnt vmcnt(0)")
    signal(a)
```

```python
from asmlib import *
from layout import *

PITCH = 1216
LN_T = 8 * PITCH
X = 20
T = 40


def half_sum(a, v, t):
    for c in ("row_ror:1", "row_ror:2", "row_ror:4", "row_ror:8"):
        a(f"v_add_f32_dpp v{v}, v{v}, v{v} {c} row_mask:0xf bank_mask:0xf")
    a(f"v_mov_b32 v{t}, v{v}\nv_permlane16_swap_b32 v{t}, v{v}\nv_add_f32 v{v}, v{v}, v{t}")


def unpack(a, p, x, n=9):
    for k in range(n):
        a(f"v_lshlrev_b32 v{x+2*k}, 16, v{p+k}\nv_and_b32 v{x+2*k+1}, 0xffff0000, v{p+k}")


def rnd(a, v):
    a(f"v_cvt_pk_bf16_f32 v{v}, v{v}, v{v}\nv_lshlrev_b32 v{v}, 16, v{v}")


def layernorm(a, p):
    pr = lambda b: vr(b, 2)
    for k in range(4):
        a(f"v_pk_add_f32 {pr(T+2*k)}, {pr(X+4*k)}, {pr(X+4*k+2)}")
    a(f"v_pk_add_f32 {pr(T)}, {pr(T)}, {pr(T+2)}\nv_pk_add_f32 {pr(T+4)}, {pr(T+4)}, {pr(T+6)}")
    a(f"v_pk_add_f32 {pr(T)}, {pr(T)}, {pr(X+16)}\nv_pk_add_f32 {pr(T)}, {pr(T)}, {pr(T+4)}\nv_add_f32 v58, v{T}, v{T+1}")
    half_sum(a, 58, 59)
    a("v_mul_f32 v60, 0x3ae38e39, v58")
    for k in range(9):
        a(f"v_pk_add_f32 {pr(T+2*k)}, {pr(X+2*k)}, v[60:61] op_sel_hi:[1,0] neg_lo:[0,1] neg_hi:[0,1]")
    a(f"v_pk_mul_f32 v[58:59], {pr(T)}, {pr(T)}\nv_pk_mul_f32 v[62:63], {pr(T+2)}, {pr(T+2)}")
    for k in range(2, 9):
        d = "v[58:59]" if k % 2 == 0 else "v[62:63]"
        a(f"v_pk_fma_f32 {d}, {pr(T+2*k)}, {pr(T+2*k)}, {d}")
    a("v_pk_add_f32 v[58:59], v[58:59], v[62:63]\nv_add_f32 v58, v58, v59")
    rnd(a, 60)
    a("v_add_f32_dpp v58, v58, v58 row_ror:1 row_mask:0xf bank_mask:0xf")
    sub = [f"v_pk_add_f32 {pr(T+2*k)}, {pr(X+2*k)}, v[60:61] op_sel_hi:[1,0] neg_lo:[0,1] neg_hi:[0,1]" for k in range(9)]
    for i, c in enumerate(("row_ror:2", "row_ror:4", "row_ror:8")):
        a.extend(sub[2*i:2*i+2])
        a(f"v_add_f32_dpp v58, v58, v58 {c} row_mask:0xf bank_mask:0xf")
    a("v_mov_b32 v59, v58")
    a.extend(sub[6:8])
    a("v_permlane16_swap_b32 v59, v58")
    a(sub[8])
    a("v_add_f32 v58, v58, v59\nv_mul_f32 v62, 0x3ae38e39, v58")
    cvt = [f"v_cvt_pk_bf16_f32 v{p+k}, v{T+2*k}, v{T+2*k+1}" for k in range(9)]
    rnd(a, 62)
    a("v_add_f32 v62, 0x3727c5ac, v62")
    rnd(a, 62)
    a("v_sqrt_f32 v62, v62")
    a.extend(cvt[:4])
    rnd(a, 62)
    a("v_rcp_f32 v62, v62")
    a.extend(cvt[4:])
    unpack(a, p, X)
    for k in range(9):
        a(f"v_pk_mul_f32 {pr(X+2*k)}, {pr(X+2*k)}, v[62:63] op_sel_hi:[1,0]")
    for k in range(9):
        a(f"v_cvt_pk_bf16_f32 v{p+k}, v{X+2*k}, v{X+2*k+1}")


def ln_issue(a, s_x):
    srd(a, 8, s_x, X_BYTES)
    a("s_lshl_b32 s22, s2, 2\ns_add_u32 s22, s22, s20\ns_mul_i32 s22, s22, 2304")
    a("v_lshrrev_b32 v4, 5, v1\nv_and_b32 v5, 31, v1\nv_mul_u32_u24 v6, 1152, v4\nv_lshl_add_u32 v2, v5, 4, v6\nv_lshl_add_u32 v3, v5, 2, v6")
    a("buffer_load_dwordx4 v[10:13], v2, s[8:11], s22 offen nt\nbuffer_load_dwordx4 v[14:17], v2, s[8:11], s22 offen offset:512 nt")
    a("buffer_load_dword v18, v3, s[8:11], s22 offen offset:1024 nt")


def ln_body(a, s_ws, lds_base, lds_cnt, tag):
    srd_off(a, 12, s_ws, WS_HT, HT_BYTES)
    srd_off(a, 16, s_ws, WS_XNT, XNT_BYTES)
    a(f"s_mul_i32 s23, s20, {2*PITCH}\ns_add_u32 s23, s23, {lds_base}\nv_mul_u32_u24 v6, {PITCH}, v4\nv_add_u32 v6, s23, v6")
    a("v_lshl_add_u32 v2, v5, 4, v6\nv_lshl_add_u32 v3, v5, 2, v6")
    a("v_and_b32 v5, 15, v1\nv_lshrrev_b32 v6, 4, v1\nv_bfe_u32 v7, v1, 2, 2\nv_and_b32 v8, 3, v1")
    a(f"v_mul_u32_u24 v7, {PITCH}, v7\nv_lshl_add_u32 v7, v8, 3, v7\nv_lshl_add_u32 v7, v6, 5, v7")
    a(f"s_lshl_b32 s23, s20, 7\ns_add_u32 s23, s23, {lds_base}\nv_add_u32 v7, s23, v7")
    a("v_lshlrev_b32 v9, 16, v6\nv_lshl_add_u32 v9, v5, 4, v9")
    a("s_lshl_b32 s24, s20, 18\ns_lshl_b32 s23, s2, 8\ns_add_u32 s24, s24, s23")
    a("s_waitcnt vmcnt(0)\n; STAMP 0")
    unpack(a, 10, X)
    layernorm(a, 10)
    a("ds_write_b128 v2, v[10:13]\nds_write_b128 v2, v[14:17] offset:512\nds_write_b32 v3, v18 offset:1024")
    unpack(a, 10, X)
    layernorm(a, 64)
    a(f"ds_write_b128 v2, v[64:67] offset:{LN_T}\nds_write_b128 v2, v[68:71] offset:{LN_T+512}\nds_write_b32 v3, v72 offset:{LN_T+1024}")
    a(f"v_mov_b32 v58, {lds_cnt}\nv_mov_b32 v59, 1\ns_waitcnt lgkmcnt(0)\ns_mov_b64 exec, 1\nds_add_u32 v58, v59\ns_mov_b64 exec, -1")
    a(f"L_{tag}_meet:\nds_read_b32 v60, v58\ns_waitcnt lgkmcnt(0)\nv_readfirstlane_b32 s23, v60\ns_cmp_lt_u32 s23, 4\ns_cbranch_scc1 L_{tag}_meet")
    for k in range(2):
        for t in (1, 0):
            b = 24 + 8*k + 4*t
            a(f"ds_read_b64_tr_b16 {vr(b,2)}, v7 offset:{t*LN_T + 512*k}\nds_read_b64_tr_b16 {vr(b+2,2)}, v7 offset:{t*LN_T + 512*k + 4*PITCH}")
    a(f"s_cmp_ge_u32 s20, 2\ns_cbranch_scc1 L_{tag}_no8")
    a(f"s_mul_i32 s23, s20, {LN_T+128}\ns_sub_u32 s23, {LN_T+1024}, s23\nv_add_u32 v8, s23, v7")
    a(f"ds_read_b64_tr_b16 v[40:41], v8\nds_read_b64_tr_b16 v[42:43], v8 offset:{4*PITCH}")
    a(f"s_lshl_b32 s23, s2, 8\ns_add_u32 s23, s23, {8 << 18}\ns_cmp_eq_u32 s20, 0\ns_waitcnt lgkmcnt(0)\ns_cbranch_scc1 L_{tag}_h8")
    a(f"buffer_store_dwordx4 v[40:43], v9, s[16:19], s23 offen sc1\ns_branch L_{tag}_no8\nL_{tag}_h8:")
    a(f"buffer_store_dwordx4 v[40:43], v9, s[12:15], s23 offen sc1\nL_{tag}_no8:\ns_waitcnt lgkmcnt(0)")
    for k in range(2):
        a(f"buffer_store_dwordx4 {vr(28+8*k,4)}, v9, s[12:15], s24 offen sc1\nbuffer_store_dwordx4 {vr(24+8*k,4)}, v9, s[16:19], s24 offen sc1")
        if k == 0:
            a(f"s_add_u32 s24, s24, {4 << 18}")
```

```python
from asmlib import *
from layout import *

HALF2 = 2304 * 4096


def w1_stream(a, tag, rs, hid, nh, row0, row1, window):
    n = -(-(row1 - row0) // (4 * nh))
    if n <= 0:
        return
    a("v_and_b32 v1, 63, v0\nv_lshrrev_b32 v30, 4, v1\nv_mul_u32_u24 v30, 9216, v30\nv_and_b32 v31, 15, v1\nv_lshl_add_u32 v30, v31, 4, v30")
    a("s_and_b32 s42, s2, 1\ns_and_b32 s40, s2, 7\ns_mul_i32 s40, s40, 9\ns_add_u32 s40, s40, 1\ns_lshr_b32 s40, s40, 1\ns_lshl_b32 s40, s40, 8")
    a(f"s_mul_i32 s41, s{hid}, 36864\ns_add_u32 s40, s40, s41\ns_add_u32 s40, s40, {row0*9216}")
    a(f"s_mul_i32 s43, s42, 1280\ns_sub_u32 s43, 1024, s43\ns_add_u32 s42, s42, s{hid}")
    a(f"s_mov_b32 s44, {n}\nL_{tag}_pw1:")
    for i in range(4):
        a(f"buffer_load_dwordx4 v[{64+4*i}:{67+4*i}], v30, s[{rs}:{rs+3}], s40 offen offset:{256*i}")
    a(f"s_bitcmp1_b32 s42, 0\ns_cbranch_scc1 L_{tag}_sk1\ns_add_u32 s41, s40, s43\nbuffer_load_dwordx4 v[80:83], v30, s[{rs}:{rs+3}], s41 offen\nL_{tag}_sk1:")
    a(f"s_add_u32 s42, s42, {nh | 1}\ns_add_u32 s40, s40, {nh*36864}\ns_waitcnt vmcnt({window})\ns_sub_u32 s44, s44, 1\ns_cmp_lg_u32 s44, 0\ns_cbranch_scc1 L_{tag}_pw1")


def w2_stream(a, tag, rs, hid, nh, row0, row1, window):
    n = -(-(row1 - row0) // (4 * nh))
    if n <= 0:
        return
    a("v_and_b32 v1, 63, v0\nv_lshlrev_b32 v30, 4, v1")
    a(f"s_and_b32 s40, s2, 1\ns_mul_i32 s40, s40, {HALF2}\ns_bfe_u32 s41, s2, 0x20001\ns_lshl_b32 s41, s41, 10\ns_add_u32 s40, s40, s41")
    a(f"s_lshl_b32 s41, s{hid}, 12\ns_add_u32 s40, s40, s41\ns_add_u32 s40, s40, {row0*4096}")
    a(f"s_mov_b32 s44, {n}\nL_{tag}_pw2:")
    for i in range(4):
        a(f"buffer_load_dwordx4 v[{64+4*i}:{67+4*i}], v30, s[{rs}:{rs+3}], s40 offen\ns_add_u32 s40, s40, {nh*4096}")
    a(f"s_waitcnt vmcnt({window})\ns_sub_u32 s44, s44, 1\ns_cmp_lg_u32 s44, 0\ns_cbranch_scc1 L_{tag}_pw2")


def w1_burst(a, rs, widx, nw, load0, n, vdst=168):
    if n <= 0:
        return
    a("v_lshrrev_b32 v30, 4, v1\nv_mul_u32_u24 v30, 9216, v30\nv_and_b32 v31, 15, v1\nv_lshl_add_u32 v30, v31, 4, v30")
    a("s_and_b32 s44, s2, 7\ns_mul_i32 s44, s44, 9\ns_lshr_b32 s44, s44, 1\ns_lshl_b32 s44, s44, 8")
    for b in range(n):
        a(f"s_add_u32 s46, s{widx}, {load0 + nw*b}\ns_mul_i32 s47, s46, 13108\ns_lshr_b32 s47, s47, 16\ns_mul_i32 s45, s47, 5\ns_sub_u32 s46, s46, s45")
        a("s_mul_i32 s47, s47, 36864\ns_lshl_b32 s46, s46, 8\ns_add_u32 s47, s47, s46\ns_add_u32 s47, s47, s44")
        a(f"buffer_load_dwordx4 v[{vdst}:{vdst+3}], v30, s[{rs}:{rs+3}], s47 offen")


def w2_base(a, d, widx, row0):
    a(f"s_and_b32 s{d}, s2, 1\ns_mul_i32 s{d}, s{d}, {HALF2}\ns_bfe_u32 s45, s2, 0x20001\ns_lshl_b32 s45, s45, 10\ns_add_u32 s{d}, s{d}, s45")
    a(f"s_lshl_b32 s45, s{widx}, 12\ns_add_u32 s{d}, s{d}, s45\ns_add_u32 s{d}, s{d}, {row0*4096}")


def w2_burst(a, rs, widx, nw, row0, n, vaddr, vdst=168):
    if n <= 0:
        return
    w2_base(a, 46, widx, row0)
    for b in range(n):
        a(f"buffer_load_dwordx4 v[{vdst}:{vdst+3}], v{vaddr}, s[{rs}:{rs+3}], s46 offen\ns_add_u32 s46, s46, {nw*4096}")
```

```python
import sys
sys.path.insert(0, "dev")
from asmlib import *
from layout import *
import hazard, mega
from gen import HEADER, descriptor, add_stamps


def build(stamps=False, **opt):
    name = NAME + "_kernel"
    a = Asm()
    mega.mega(a, name, **opt)
    if stamps:
        a.lines = add_stamps(a.lines, [name], cyc=False)
    rep = []
    lines = hazard.fix(a.lines, report=rep)
    bad = hazard.check_loops(lines)
    assert not bad, bad
    text = HEADER + f"; @launch grid=(256,1,1) block=(320,1,1) lds={mega.LDS_TOTAL}\n"
    text += '.amdgcn_target "amdgcn-amd-amdhsa--gfx950"\n.text\n' + "\n".join(lines) + "\n"
    text += '.section .rodata,"a"\n' + descriptor(name, 256, 102)
    return text, rep


if __name__ == "__main__":
    kw = {k: eval(v) for k, v in (x.split("=", 1) for x in sys.argv[2:])}
    text, rep = build(**kw)
    open(sys.argv[1], "w").write(text)
    print(len(text), "bytes;", len(rep), "pads inserted")
```

```python
import sys
sys.path.insert(0, "dev")
from asmlib import *
from layout import *
import hazard, mega
from gen import HEADER, descriptor, add_stamps


def build(stamps=False, **opt):
    name = NAME + "_kernel"
    a = Asm()
    mega.mega(a, name, **opt)
    if stamps:
        a.lines = add_stamps(a.lines, [name], cyc=False)
    if stamps == "dbg":
        out, n = [], 0
        for ln in a.lines:
            if ln.strip() == "s_endpgm":
                n += 1
                out += ["  s_cmp_lg_u32 s2, 100", f"  s_cbranch_scc1 L_dbg{n}", "  s_and_b32 s84, s20, 3", "  s_cmp_lg_u32 s84, 0", f"  s_cbranch_scc1 L_dbg{n}",
                        "  s_load_dwordx2 s[80:81], s[0:1], 104", "  s_waitcnt lgkmcnt(0)", "  s_mov_b32 s82, 256", "  s_mov_b32 s83, 0x20000",
                        "  s_lshl_b32 s84, s20, 3", "  s_sub_u32 s84, s84, s20", "  s_add_u32 s84, s84, 4"]
                for k, sreg in enumerate((64, 66, 68, 70, 72, 74, 92)):
                    out += [f"  s_sub_u32 s85, s{sreg}, s90", "  v_mov_b32 v120, s85", f"  buffer_store_dword v120, v124, s[80:83], s84 offen offset:{4*k}"]
                out += [f"L_dbg{n}:"]
            out.append(ln)
        a.lines = out
    rep = []
    lines = hazard.fix(a.lines, report=rep)
    bad = hazard.check_loops(lines)
    assert not bad, bad
    text = HEADER + f"; @launch grid=(256,1,1) block=(320,1,1) lds={mega.LDS_TOTAL}\n"
    text += '.amdgcn_target "amdgcn-amd-amdhsa--gfx950"\n.text\n' + "\n".join(lines) + "\n"
    text += '.section .rodata,"a"\n' + descriptor(name, 256, 102)
    return text, rep


if __name__ == "__main__":
    kw = {k: eval(v) for k, v in (x.split("=", 1) for x in sys.argv[2:])}
    text, rep = build(**kw)
    open(sys.argv[1], "w").write(text)
    print(len(text), "bytes;", len(rep), "pads inserted")
```

```python
import sys
sys.path.insert(0, "dev")
from asmlib import *
from layout import *
import hazard, k1 as K1, k23

HEADER = open(f"cdna_kernels/{NAME}.s.ref").read().split("; Override launch geometry")[0]


def descriptor(name, vgpr, sgpr=96):
    return (f".p2align 6\n.amdhsa_kernel {name}\n  .amdhsa_next_free_vgpr {vgpr}\n  .amdhsa_next_free_sgpr {sgpr}\n"
            f"  .amdhsa_accum_offset {vgpr}\n  .amdhsa_group_segment_fixed_size 0\n  .amdhsa_kernarg_size 120\n"
            "  .amdhsa_user_sgpr_count 2\n  .amdhsa_user_sgpr_kernarg_segment_ptr 1\n  .amdhsa_system_sgpr_workgroup_id_x 1\n"
            ".end_amdhsa_kernel\n")


WS_STAMP = 0x2000000


def add_stamps(lines, names, cyc=True):
    out, k = [], -1
    for ln in lines:
        t = ln.strip()
        if t.endswith(":") and t[:-1] in names:
            k = names.index(t[:-1])
            out += [ln, "  s_memrealtime s[90:91]", "  s_load_dwordx2 s[88:89], s[0:1], 112", "  v_lshrrev_b32 v255, 6, v0".replace("v255", "v127"),
                    "  s_nop 0", "  v_readfirstlane_b32 s95, v127", "  s_lshl_b32 s94, s2, 4", "  s_add_u32 s95, s95, s94", "  s_lshl_b32 s95, s95, 5", "  s_waitcnt lgkmcnt(0)"]
            out += [f"  s_mov_b32 s{64+2*i}, s90" for i in range(6)] + ["  s_mov_b32 s76, 0", "  s_mov_b32 s78, 0"]
            continue
        if t.startswith("; STAMP"):
            i = int(t.split()[2])
            out += [f"  s_memrealtime s[{64+2*i}:{65+2*i}]"]
            continue
        if t == "; SWAIT":
            out.append("  s_waitcnt lgkmcnt(0)")
            continue
        if t.startswith("; CYC"):
            i = int(t.split()[2])
            out += [f"  s_memtime s[{76+2*i}:{77+2*i}]"]
            continue
        if t == "s_endpgm":
            if cyc:
                out += ["  s_waitcnt lgkmcnt(0)", "  s_sub_u32 s74, s78, s76", "  s_add_u32 s74, s74, s90"]
            out += ["  s_waitcnt vmcnt(0) lgkmcnt(0)", "  s_memrealtime s[92:93]",
                    f"  s_add_u32 s80, s88, {WS_STAMP + k*0x40000:#x}", "  s_addc_u32 s81, s89, 0", "  s_mov_b32 s82, 0x40000", "  s_mov_b32 s83, 0x20000",
                    "  s_waitcnt lgkmcnt(0)", "  s_mov_b64 exec, 1", "  v_mov_b32 v120, s90", "  v_mov_b32 v121, s92", "  v_mov_b32 v122, s64", "  v_mov_b32 v123, s66",
                    "  v_mov_b32 v124, 0", "  buffer_store_dwordx4 v[120:123], v124, s[80:83], s95 offen",
                    "  v_mov_b32 v116, s68", "  v_mov_b32 v117, s70", "  v_mov_b32 v118, s72", "  v_mov_b32 v119, s74",
                    "  buffer_store_dwordx4 v[116:119], v124, s[80:83], s95 offen offset:16"]
        out.append(ln)
    return out


def build(pf=(2, 4, 6, 6), r2=768, r3=0, same_xcd=False, extra_launches=(), stamps=False, **opt):
    launches = [("ln_kgen_kernel", 256, 896, K1.K1_LDS, 128),
                ("gemm1_conv_kernel", 256, 320, k23.K2_LDS, 256),
                ("gemm2_kernel", 256, 320, k23.K3_LDS, 256)]
    a = Asm()
    r1 = opt.get('r1', pf[3]*256//5*4)
    K1.k1(a, launches[0][0], pf)
    k23.k2(a, launches[1][0], r1, r2, opt.get('win2', 40))
    k23.k3(a, launches[2][0], r3, same_xcd, opt.get('win3', 40))
    if opt.get("empties"):
        a(".globl empty_kernel\n.p2align 8\n.type empty_kernel,@function\nempty_kernel:\ns_endpgm")
        launches += [("empty_kernel", 256, 256, 0, 8)] * opt["empties"]
    for i, fl in enumerate(opt.get("pre_reads", ())):
        n = f"pre{i}_kernel"
        a(f".globl {n}\n.p2align 8\n.type {n},@function\n{n}:\ns_cmp_ge_u32 s2, 256\ns_cbranch_scc1 L_pre{i}_end")
        a(f"s_load_dwordx2 s[4:5], s[0:1], {KA['w1']}\ns_load_dwordx2 s[6:7], s[0:1], {KA['w2']}\nv_lshlrev_b32 v1, 4, v0\ns_lshl_b32 s20, s2, 13\ns_waitcnt lgkmcnt(0)")
        srd(a, 8, 4, W_BYTES_TOTAL); srd(a, 12, 6, W_BYTES_TOTAL)
        for j in range(9):
            a(f"buffer_load_dwordx4 v[{8+8*j}:{11+8*j}], v1, s[8:11], s20 offen{fl}\nbuffer_load_dwordx4 v[{12+8*j}:{15+8*j}], v1, s[12:15], s20 offen{fl}\ns_add_u32 s20, s20, {2048*1024}")
        a(f"s_waitcnt vmcnt(0)\nL_pre{i}_end:\ns_endpgm")
        launches.insert(i, (n, 256, 512, 0, 96))
    pk = opt.get("pre_kind")
    if pk:
        n = "prek_kernel"
        a(f".globl {n}\n.p2align 8\n.type {n},@function\n{n}:\ns_cmp_ge_u32 s2, 256\ns_cbranch_scc1 L_prek_end")
        if pk == "ws":
            a(f"s_load_dwordx2 s[4:5], s[0:1], {KA['ws']}\nv_lshlrev_b32 v1, 4, v0\ns_lshl_b32 s20, s2, 13\ns_waitcnt lgkmcnt(0)")
            srd_off(a, 8, 4, 0x4000000, 0x4000000)
            for j in range(18):
                a(f"buffer_load_dwordx4 v[{8+4*j}:{11+4*j}], v1, s[8:11], s20 offen nt\ns_add_u32 s20, s20, {2048*1024}")
        elif pk.startswith("tlb"):
            step = int(pk[3:])
            a(f"s_load_dwordx2 s[4:5], s[0:1], {KA['w1']}\ns_load_dwordx2 s[6:7], s[0:1], {KA['w2']}\ns_load_dwordx2 s[16:17], s[0:1], {KA['ws']}")
            a(f"s_lshr_b32 s20, s2, 3\ns_lshl_b32 s20, s20, 9\nv_add_u32 v1, s20, v0\nv_lshlrev_b32 v1, {step}, v1\ns_waitcnt lgkmcnt(0)")
            srd(a, 8, 4, W_BYTES_TOTAL); srd(a, 12, 6, W_BYTES_TOTAL); srd(a, 24, 16, 0x1600000)
            a("buffer_load_dword v2, v1, s[8:11], 0 offen nt\nbuffer_load_dword v3, v1, s[12:15], 0 offen nt\nbuffer_load_dword v4, v1, s[24:27], 0 offen nt")
        a(f"s_waitcnt vmcnt(0)\nL_prek_end:\ns_endpgm")
        launches.insert(0, (n, 256, 512, 0, 96))
    if opt.get("scramble"):
        out = []
        for ln in a.lines:
            out.append(ln)
            if ln.strip().startswith("s_cbranch_scc1 L_k") and ln.strip().endswith("_end") and out[-2].strip() == "s_cmp_ge_u32 s2, 256":
                out += ["  s_and_b32 s3, s2, 31", "  s_lshl_b32 s3, s3, 3", "  s_lshr_b32 s2, s2, 5", "  s_or_b32 s2, s2, s3"]
        a.lines = out
    rep = []
    if stamps:
        a.lines = add_stamps(a.lines, [l[0] for l in launches])
    lines = hazard.fix(a.lines, report=rep)
    bad = hazard.check_loops(lines)
    assert not bad, bad
    head = HEADER
    for n, g, b, lds, _ in launches:
        head += f"; @launch kernel={n} grid=({g},1,1) block=({b},1,1) lds={lds}\n"
    for n, g, b, lds in extra_launches:
        head += f"; @launch kernel={n} grid=({g},1,1) block=({b},1,1) lds={lds}\n"
    text = head + '.amdgcn_target "amdgcn-amd-amdhsa--gfx950"\n.text\n' + "\n".join(lines) + "\n"
    text += '.section .rodata,"a"\n' + "".join(descriptor(n, v) for n, v in dict((l[0], l[4]) for l in launches).items())
    return text, launches, rep


if __name__ == "__main__":
    kw = dict(x.split("=") for x in sys.argv[2:])
    kw = {k: eval(v) for k, v in kw.items()}
    text, launches, rep = build(**kw)
    out = sys.argv[1] if len(sys.argv) > 1 else f"cdna_kernels/{NAME}.s"
    open(out, "w").write(text)
    print(len(text), "bytes;", len(rep), "pads inserted")
```

```python
import struct
from asmlib import *
from layout import *
import gemm_core as gc
import mega_ln as ln
import mega_conv as cv
from prefetch import *

AT_LDS = gc.LDS_RING
LN_LDS = 139264
CNT_LDS = LN_LDS + 2*ln.LN_T
LDS_TOTAL = CNT_LDS + 64
S_WS, S_X, S_DBG, S_W1, S_W2 = 4, 6, 94, 96, 98
SPIN = 0x100000
S_TAG = 100
F_SEED = 255 * 256


def f32hex(x):
    return "0x%08x" % struct.unpack("<I", struct.pack("<f", x))[0]


def div6(a, d, r, x):
    a(f"s_mul_i32 s{d}, s{x}, 10923\ns_lshr_b32 s{d}, s{d}, 16\ns_mul_i32 s{r}, s{d}, 6\ns_sub_u32 s{r}, s{x}, s{r}")


def unpk(a, x, p):
    a(f"v_lshlrev_b32 v{x}, 16, v{p}\nv_and_b32 v{x+1}, 0xffff0000, v{p}")


def poll(a, tag, rs, vaddr, soff, target, sleep=1, mask=None):
    a(f"s_mov_b32 s61, {SPIN:#x}\nL_{tag}_poll:\nbuffer_load_dword v62, v{vaddr}, s[{rs}:{rs+3}], {soff} offen sc1")
    a(f"s_sub_u32 s61, s61, 1\ns_cbranch_scc1 L_{tag}_go\ns_waitcnt vmcnt(0)")
    if mask:
        a(f"v_and_b32 v62, {mask:#x}, v62")
    a(f"v_cmp_ne_u32 vcc, {target}, v62")
    a(f"s_cmp_eq_u64 vcc, 0\ns_cbranch_scc1 L_{tag}_go")
    if sleep:
        a(f"s_sleep {sleep}")
    a(f"s_branch L_{tag}_poll\nL_{tag}_go:")


def flags_srd(a, d):
    srd_off(a, d, S_WS, WS_FLG, FLG_BYTES)


def last_wave_signals(a, tag, cnt, rs, soff, word=None):
    a(f"v_mov_b32 v58, {cnt}\nv_mov_b32 v59, 1\nv_mov_b32 v61, 0\ns_mov_b64 exec, 1\nds_add_rtn_u32 v60, v58, v59\ns_waitcnt lgkmcnt(0)")
    a(f"v_readfirstlane_b32 s23, v60\ns_cmp_lg_u32 s23, 3\ns_cbranch_scc1 L_{tag}_notlast")
    if word:
        a(f"v_mov_b32 v59, {word}\nbuffer_store_dword v59, v61, s[{rs}:{rs+3}], {soff} offen sc1")
    else:
        a(f"buffer_atomic_add v59, v61, s[{rs}:{rs+3}], {soff} offen sc1")
    a(f"L_{tag}_notlast:\ns_mov_b64 exec, -1")


def ln_local_wait(a, tag, cnt=CNT_LDS+4):
    a(f"v_mov_b32 v58, {cnt}\nL_{tag}:\ns_sleep 2\nds_read_b32 v60, v58\ns_waitcnt lgkmcnt(0)\nv_readfirstlane_b32 s23, v60\ns_cmp_lt_u32 s23, 4\ns_cbranch_scc1 L_{tag}")


def wait_ln(a, tag, rs, o):
    a(f"v_mul_u32_u24 v61, {o['lnw']}, v1\ns_mov_b32 s62, {F_LNW}\ns_mov_b32 s61, {SPIN:#x}\nL_{tag}_poll:")
    a(f"buffer_load_dwordx4 v[104:107], v61, s[{rs}:{rs+3}], s62 offen sc1\ns_sub_u32 s61, s61, 1\ns_cbranch_scc1 L_{tag}_go\ns_waitcnt vmcnt(0)")
    a(f"v_xor_b32 v104, s{S_TAG+1}, v104\nv_xor_b32 v105, s{S_TAG+1}, v105\nv_xor_b32 v106, s{S_TAG+1}, v106\nv_xor_b32 v107, s{S_TAG+1}, v107")
    a("v_or3_b32 v104, v104, v105, v106\nv_or_b32 v104, v104, v107\nv_cmp_ne_u32 vcc, 0, v104")
    a(f"s_cmp_eq_u64 vcc, 0\ns_cbranch_scc1 L_{tag}_go\ns_sleep {o['slp']}\ns_branch L_{tag}_poll\nL_{tag}_go:")


def tile1(a):
    a("s_and_b32 s12, s2, 7\ns_lshr_b32 s13, s2, 3\ns_mul_i32 s12, s12, 27\ns_add_u32 s12, s12, s13")
    div6(a, 14, 15, 12)


def tile2(a):
    a("s_and_b32 s12, s2, 7\ns_lshr_b32 s13, s2, 3")
    div6(a, 14, 15, 13)
    a("s_and_b32 s19, s12, 1\ns_lshr_b32 s18, s12, 1\ns_lshl_b32 s18, s18, 2\ns_add_u32 s14, s14, s18")
    a("s_lshl_b32 s16, s14, 7\ns_lshl_b32 s17, s19, 6\ns_add_u32 s16, s16, s17")


def gelu_epilogue(a):
    c1 = -2.0 * 0.7978845608028654 * 1.4426950408889634
    a(f"s_mov_b32 s48, {f32hex(c1*0.044715)}\ns_mov_b32 s49, s48\nv_mov_b32 v36, {f32hex(c1)}\nv_mov_b32 v37, v36")
    for nu in range(4):
        unpk(a, 20+4*nu, 12+2*nu); unpk(a, 22+4*nu, 13+2*nu)
    B = 112
    for dl in range(3):
        for pi in range(2):
            src = [(gc.acc(2*pi + (k >> 1), dl) + 2*(k & 1), 20 + 4*(2*pi + (k >> 1)) + 2*(k & 1)) for k in range(4)]
            U = [B + 2*k for k in range(4)]; T = [B + 8 + 2*k for k in range(4)]; P = [B + 16 + k for k in range(4)]
            O = B + 20 + 4*((2*dl + pi) % 2)
            for k in range(4): a(f"v_cvt_pk_bf16_f32 v{P[k]}, v{src[k][0]}, v{src[k][0]+1}")
            for k in range(4): unpk(a, U[k], P[k])
            for k in range(4): a(f"v_pk_add_f32 {vr(U[k],2)}, {vr(U[k],2)}, {vr(src[k][1],2)}")
            for k in range(4): a(f"v_cvt_pk_bf16_f32 v{P[k]}, v{U[k]}, v{U[k]+1}")
            for k in range(4): unpk(a, U[k], P[k])
            for k in range(4): a(f"v_pk_mul_f32 {vr(T[k],2)}, {vr(U[k],2)}, {vr(U[k],2)}")
            for k in range(4): a(f"v_pk_fma_f32 {vr(T[k],2)}, {vr(T[k],2)}, s[48:49], v[36:37]")
            for k in range(4): a(f"v_pk_mul_f32 {vr(T[k],2)}, {vr(T[k],2)}, {vr(U[k],2)}")
            for k in range(4): a(f"v_exp_f32 v{T[k]}, v{T[k]}\nv_exp_f32 v{T[k]+1}, v{T[k]+1}")
            for k in range(4): a(f"v_pk_add_f32 {vr(T[k],2)}, {vr(T[k],2)}, 1.0 op_sel_hi:[1,0]")
            for k in range(4): a(f"v_rcp_f32 v{T[k]}, v{T[k]}\nv_rcp_f32 v{T[k]+1}, v{T[k]+1}")
            for k in range(4): a(f"v_pk_mul_f32 {vr(U[k],2)}, {vr(U[k],2)}, {vr(T[k],2)}")
            for k in range(4): a(f"v_cvt_pk_bf16_f32 v{O+k}, v{U[k]}, v{U[k]+1}")
            a(f"buffer_store_dwordx4 {vr(O,4)}, v7, s[44:47], s17 offen offset:{1024*pi} sc1")
        a("s_add_u32 s17, s17, 147456")


def read_tag(a):
    a(f"s_add_u32 s26, s{S_WS}, {WS_FLG + F_SEED:#x}\ns_addc_u32 s27, s{S_WS+1}, 0\ns_load_dword s{S_TAG+1}, s[26:27], 0")


def make_tag(a):
    a(f"s_mul_i32 s{S_TAG+1}, s{S_TAG+1}, 0x9e3779b1\ns_add_u32 s{S_TAG+1}, s{S_TAG+1}, 0x7f4a7c15\ns_andn2_b32 s{S_TAG}, s{S_TAG+1}, 0xff")


def compute_waves(a, o):
    a("s_waitcnt lgkmcnt(0)")
    ln.ln_issue(a, S_X)
    read_tag(a)
    a(f"s_cmp_lg_u32 s20, 0\ns_cbranch_scc1 L_m_nz\nv_mov_b32 v58, {CNT_LDS}\nv_mov_b32 v60, 0\nv_mov_b32 v61, 0\nv_mov_b32 v62, 0\nv_mov_b32 v63, 0")
    a("ds_write_b128 v58, v[60:63]\ns_waitcnt lgkmcnt(0)\nL_m_nz:\ns_barrier")
    a(f"s_load_dwordx2 s[38:39], s[0:1], {KA['b1']}\ns_load_dwordx8 s[76:83], s[0:1], {KA['lar']}\ns_load_dwordx4 s[32:35], s[0:1], {KA['ldt']}".replace("s[76:83]", "s[80:87]"))
    ln.ln_body(a, S_WS, LN_LDS, CNT_LDS, "ln")
    flags_srd(a, 40)
    make_tag(a)
    a("v_mov_b32 v61, 0\ns_cmp_lg_u32 s20, 3\ns_cbranch_scc1 L_m_nozero\ns_sub_u32 s23, s2, 16\ns_cmp_ge_u32 s23, 216\ns_cbranch_scc1 L_m_nozero")
    a("s_lshl_b32 s23, s2, 8\ns_mov_b64 exec, 1\nbuffer_store_dword v61, v61, s[40:43], s23 offen sc1\ns_mov_b64 exec, -1\nL_m_nozero:")
    a(f"s_and_b32 s24, s2, 63\ns_mul_i32 s24, s24, {o['lnw']}\ns_lshr_b32 s23, s2, 6\ns_lshl_b32 s23, s23, 2\ns_add_u32 s24, s24, s23\ns_add_u32 s24, s24, {F_LNW}")
    a("s_waitcnt vmcnt(0)\n; STAMP 1")
    last_wave_signals(a, "lnd", CNT_LDS + 4, 40, "s24", word=f"s{S_TAG+1}")
    a("s_cmp_lt_u32 s2, 192\ns_cbranch_scc1 L_m_nopar")
    a("s_sub_u32 s31, s2, 72\ns_sub_u32 s30, s2, 216\ns_mul_i32 s30, s30, 3\ns_cmp_ge_u32 s2, 216\ns_cselect_b32 s31, s30, s31")
    a("s_lshl_b32 s31, s31, 2\ns_add_u32 s31, s31, s20")
    cv.param_loads(a, 80, 32, 34)
    a("L_m_nopar:\ns_cmp_ge_u32 s2, 216\ns_cbranch_scc1 L_m_conv")
    a("s_lshr_b32 s29, s2, 3\ns_lshl_b32 s29, s29, 2\ns_add_u32 s29, s29, s20")
    srd(a, 32, S_W1, W_BYTES_TOTAL)
    w1_burst(a, 32, 29, 108, o["r1"]//4*5, o["nB"])
    srd(a, 32, S_W2, W_BYTES_TOTAL)
    tile1(a)
    gc.lane_ids(a)
    gc.compute_setup(a, "A")
    srd(a, 8, 38, F*2)
    a(f"s_lshr_b32 s16, s20, 1\ns_lshl_b32 s17, s16, 7\ns_lshl_b32 s18, s14, 8\ns_add_u32 s17, s17, s18\nv_lshlrev_b32 v9, 3, v3")
    for nu in range(4):
        a(f"buffer_load_dwordx2 {vr(12+2*nu,2)}, v9, s[8:11], s17 offen offset:{32*nu}")
    for i in range(48):
        a(f"v_mov_b32 v{gc.V_ACC+i}, 0")
    srd_off(a, 44, S_WS, WS_G, G_BYTES)
    a("s_and_b32 s17, s20, 1\ns_mul_i32 s17, s17, 3\ns_mul_i32 s18, s15, 6\ns_add_u32 s17, s17, s18\ns_mul_i32 s17, s17, 147456")
    a("s_lshl_b32 s18, s14, 2\ns_lshl_b32 s16, s16, 1\ns_add_u32 s18, s18, s16\ns_lshl_b32 s18, s18, 10\ns_add_u32 s17, s17, s18")
    a(f"s_cmp_ge_u32 s14, 18\ns_cselect_b32 s24, 256, 0\ns_lshl_b32 s18, s15, 9\ns_add_u32 s24, s24, s18\ns_add_u32 s24, s24, {F_G}")
    a(f"s_load_dwordx4 s[52:55], s[0:1], {KA['b2']}")
    gc.compute_main(a, 32, "A", False, "g1", last_barrier=True, st=(5, 2))
    a("s_waitcnt vmcnt(0)")
    gelu_epilogue(a)
    a("s_waitcnt vmcnt(0)")
    last_wave_signals(a, "gd", CNT_LDS + 8, 40, "s24")
    a("; STAMP 3\ns_cmp_ge_u32 s2, 192\ns_cbranch_scc1 L_m_conv1")
    w2_burst(a, 32, 29, 96, 0, o["nC"], 7)
    tile2(a)
    gc.compute_setup(a, "B", s_kh=19)
    srd(a, 8, S_X, X_BYTES); srd(a, 44, 52, S*2)
    a("s_lshr_b32 s17, s20, 1\ns_lshl_b32 s17, s17, 5\ns_add_u32 s17, s17, s16")
    a("s_mul_i32 s18, s15, 96\ns_and_b32 s26, s20, 1\ns_mul_i32 s26, s26, 48\ns_add_u32 s18, s18, s26")
    a("v_mul_u32_u24 v58, 1152, v2\nv_lshl_add_u32 v58, v3, 3, v58\nv_lshlrev_b32 v9, 1, v2")
    a("s_mul_i32 s56, s17, 1152\ns_lshl_b32 s26, s18, 1\ns_add_u32 s56, s56, s26\ns_add_u32 s57, s56, 18432\ns_lshl_b32 s26, s17, 1")
    for nu in range(2):
        for dl in range(3):
            a(f"buffer_load_dwordx2 {vr(10+2*(3*nu+dl),2)}, v58, s[8:11], s{56+nu} offen offset:{32*dl}{o['xnt']}")
        a(f"buffer_load_ushort v{22+nu}, v9, s[44:47], s26 offen offset:{32*nu}")
    for i in range(48):
        a(f"v_mov_b32 v{gc.V_ACC+i}, 0")
    a("v_bfe_u32 v4, v1, 2, 2\nv_lshl_add_u32 v4, v3, 2, v4\nv_lshlrev_b32 v4, 7, v4\nv_and_b32 v5, 3, v1\nv_lshl_add_u32 v4, v5, 3, v4")
    a(f"s_and_b32 s26, s20, 1\ns_mul_i32 s26, s26, 6144\ns_lshr_b32 s27, s20, 1\ns_lshl_b32 s27, s27, 6\ns_add_u32 s26, s26, s27\ns_add_u32 s26, s26, {AT_LDS}\nv_add_u32 v59, s26, v4")
    srd_off(a, 8, S_WS, WS_XCH, XCH_BYTES); srd(a, 44, 54, X_BYTES)
    a("s_xor_b32 s58, s2, 1\ns_mul_i32 s26, s20, 6144\ns_mul_i32 s59, s58, 24576\ns_add_u32 s59, s59, s26\ns_mul_i32 s60, s2, 24576\ns_add_u32 s60, s60, s26")
    gc.compute_main(a, 36, "B", True, "g2", st=(5, 4))
    a("s_waitcnt vmcnt(0)\n; STAMP 5")
    for k in range(6):
        a(f"buffer_store_dwordx4 {vr(gc.V_ACC+24+4*k,4)}, v7, s[8:11], s59 offen sc1\ns_add_u32 s59, s59, 1024")
    a("s_waitcnt vmcnt(0)\ns_barrier")
    a(f"s_lshl_b32 s26, s2, 8\ns_add_u32 s26, s26, {F_XCH}\ns_lshl_b32 s27, s58, 8\ns_add_u32 s27, s27, {F_XCH}\nv_mov_b32 v4, 1\nv_mov_b32 v5, 0")
    a("s_cmp_lg_u32 s20, 0\ns_cbranch_scc1 L_m_nofl\ns_mov_b64 exec, 1\nbuffer_store_dword v4, v5, s[40:43], s26 offen sc1\ns_mov_b64 exec, -1\nL_m_nofl:")
    AR, PF = 112, 124
    for nu in range(2):
        for dl in range(3):
            a(f"ds_read_b64_tr_b16 {vr(AR+2*(3*nu+dl),2)}, v59 offset:{2048*dl + 32*nu}")
    a("v_lshlrev_b32 v22, 16, v22\nv_lshlrev_b32 v24, 16, v23\ns_waitcnt lgkmcnt(0)")
    for t in range(6):
        for h in range(2):
            unpk(a, 26, 10+2*t+h); unpk(a, 28, AR+2*t+h)
            a("v_pk_add_f32 v[26:27], v[26:27], v[28:29]\nv_cvt_pk_bf16_f32 v30, v26, v27")
            unpk(a, PF+4*t+2*h, 30)
    poll(a, "xch", 40, 5, "s27", 1, sleep=0)
    RX = 148
    for k in range(6):
        a(f"buffer_load_dwordx4 {vr(RX+4*k,4)}, v7, s[8:11], s60 offen sc1\ns_add_u32 s60, s60, 1024")
    for t in range(6):
        nu, dl = divmod(t, 3)
        b, r, p = gc.V_ACC + 4*t, RX + 4*t, PF + 4*t
        a("s_waitcnt vmcnt(5)")
        for h in range(2): a(f"v_pk_add_f32 {vr(b+2*h,2)}, {vr(b+2*h,2)}, {vr(r+2*h,2)}")
        for h in range(2): a(f"v_cvt_pk_bf16_f32 v{26+h}, v{b+2*h}, v{b+2*h+1}")
        for h in range(2): unpk(a, b+2*h, 26+h)
        for h in range(2): a(f"v_pk_add_f32 {vr(b+2*h,2)}, {vr(b+2*h,2)}, {vr(22+2*nu,2)} op_sel_hi:[1,0]")
        for h in range(2): a(f"v_cvt_pk_bf16_f32 v{26+h}, v{b+2*h}, v{b+2*h+1}")
        for h in range(2): unpk(a, b+2*h, 26+h)
        for h in range(2): a(f"v_pk_add_f32 {vr(b+2*h,2)}, {vr(b+2*h,2)}, {vr(p+2*h,2)}")
        for h in range(2): a(f"v_cvt_pk_bf16_f32 v{10+2*t+h}, v{b+2*h}, v{b+2*h+1}")
        a(f"buffer_store_dwordx2 {vr(10+2*t,2)}, v58, s[44:47], s{56+nu} offen offset:{32*dl}{o['ont']}")
    a("s_endpgm")
    a("L_m_conv1:\ns_mov_b32 s30, 1\ns_sub_u32 s31, s2, 72\ns_branch L_m_conv2")
    a("L_m_conv:\ns_mov_b32 s30, 3\ns_sub_u32 s31, s2, 216\ns_mul_i32 s31, s31, 3\nL_m_conv2:")
    a("s_lshl_b32 s31, s31, 2\ns_add_u32 s31, s31, s20\ns_mul_i32 s29, s31, 683\ns_lshr_b32 s29, s29, 16")

    def signal(a):
        a("s_lshl_b32 s36, s29, 8")
        a(f"s_add_u32 s36, s36, {F_CONV}\nv_mov_b32 v4, 1\nv_mov_b32 v5, 0\ns_mov_b64 exec, 1\nbuffer_atomic_add v4, v5, s[8:11], s36 offen sc1")
    flags_srd(a, 8)
    cv.conv_role(a, "cv", S_WS, lambda a: wait_ln(a, "cvln", 8, o), signal)
    a("s_endpgm")


def fifth_wave(a, o):
    if o["prio"]:
        a(f"s_setprio {o['prio']}")
    a("s_waitcnt lgkmcnt(0)")
    flags_srd(a, 36)
    read_tag(a)
    if o["tlb"]:
        a(f"s_load_dwordx2 s[48:49], s[0:1], {KA['out']}")
        srd(a, 8, S_WS, WS_FLG + FLG_BYTES); srd(a, 16, S_W2, W_BYTES_TOTAL)
        a("v_lshlrev_b32 v4, 20, v1\nbuffer_load_dword v100, v4, s[8:11], 0 offen\nbuffer_load_dword v101, v4, s[16:19], 0 offen")
    if o["touch"]:
        a(f"s_cmp_ge_u32 s2, 1\ns_cbranch_scc1 L_m_notouch\nv_mul_u32_u24 v5, {o['lnw']}, v1\ns_mov_b32 s23, {F_LNW}\nbuffer_load_dword v103, v5, s[36:39], s23 offen\nL_m_notouch:")
    srd(a, gc.SRD_W, S_W1, W_BYTES_TOTAL)
    a("s_barrier\ns_lshr_b32 s30, s2, 3")
    if o["code_pf"]:
        a("s_cmp_ge_u32 s30, 4\ns_cbranch_scc1 L_m_nocode\ns_getpc_b64 s[12:13]\nL_m_pc:\ns_sub_u32 s12, s12, L_m_pc-L_m_base\ns_subb_u32 s13, s13, 0")
        a("s_mov_b32 s14, L_m_last-L_m_base\ns_mov_b32 s15, 0x20000\nv_lshlrev_b32 v4, 4, v1\ns_lshl_b32 s23, s30, 10")
        for i in range(o["code_pf"]):
            a(f"buffer_load_dwordx4 v[96:99], v4, s[12:15], s23 offen\ns_add_u32 s23, s23, 4096")
        a("L_m_nocode:")
    w1_stream(a, "m0", gc.SRD_W, 30, 32, 0, o["r1"], o["win1"])
    a("s_waitcnt lgkmcnt(0)")
    if o["tlb"]:
        a(f"s_mov_b32 s50, {X_BYTES}\ns_mov_b32 s51, 0x20000\nv_lshlrev_b32 v4, 20, v1\nbuffer_load_dword v102, v4, s[48:51], 0 offen")
    make_tag(a)
    a("; STAMP 0\ns_cmp_ge_u32 s2, 216\ns_cbranch_scc1 L_m_helper")
    tile1(a)
    gc.lane_ids(a)
    a(f"s_mul_i32 s{gc.S_ACT0}, s15, {6*65536}\ns_lshl_b32 s{gc.S_W0}, s14, 8")
    gc.loader_setup(a, 65536, 9216, "A")
    srd_off(a, gc.SRD_ACT, S_WS, WS_HT, HT_BYTES)
    ln_local_wait(a, "lw1")
    a("; STAMP 0")
    gc.w_prefill(a, range(4), 65536, 9216)
    a("; STAMP 1")
    wait_ln(a, "l1", 36, o)
    a(f"; STAMP 2\ns_cmp_lg_u32 s2, 0\ns_cbranch_scc1 L_m_noseed\nv_mov_b32 v4, s{S_TAG+1}\nv_mov_b32 v5, {F_SEED}\ns_mov_b64 exec, 1")
    a("buffer_store_dword v4, v5, s[36:39], 0 offen sc1\ns_mov_b64 exec, -1\nL_m_noseed:")
    gc.loader_after_prefill(a, 32, 65536, 9216, "g1", o["aflags"])
    srd(a, gc.SRD_W, S_W2, W_BYTES_TOTAL)
    a("s_cmp_lt_u32 s2, 192\ns_cbranch_scc1 L_m_l2\ns_barrier\ns_sub_u32 s30, s2, 152\ns_lshr_b32 s30, s30, 3")
    ln_local_wait(a, "lw3", CNT_LDS+8)
    w2_stream(a, "m3", gc.SRD_W, 30, 8, o["r2"], 2304, o["win3"])
    a("s_endpgm\nL_m_l2:")
    tile2(a)
    a(f"s_mul_i32 s{gc.S_ACT0}, s15, {6*147456}\ns_mul_i32 s18, s19, {72*1024}\ns_add_u32 s{gc.S_ACT0}, s{gc.S_ACT0}, s18")
    a(f"s_lshl_b32 s{gc.S_W0}, s14, 8\ns_mul_i32 s18, s19, {HALF2}\ns_add_u32 s{gc.S_W0}, s{gc.S_W0}, s18")
    gc.loader_setup(a, 147456, 4096, "B")
    srd_off(a, gc.SRD_ACT, S_WS, WS_G, G_BYTES)
    gc.w_prefill(a, range(o["early2"]), 147456, 4096)
    a("s_barrier\n; STAMP 5")
    if o["early2"] < 3:
        ln_local_wait(a, "lw4", CNT_LDS+8)
    gc.w_prefill(a, range(o["early2"], 4), 147456, 4096)
    a(f"s_lshl_b32 s23, s15, 9\ns_lshl_b32 s24, s19, 8\ns_add_u32 s23, s23, s24\ns_add_u32 s23, s23, {F_G}\nv_mov_b32 v61, 0\n; STAMP 3")
    poll(a, "l2", 36, 61, "s23", 18)
    a("; STAMP 4")

    def at_dma(a):
        for e in range(12):
            a(f"s_mov_b32 m0, {AT_LDS + 1024*e}\nbuffer_load_dwordx4 v8, s[52:55], s26 offen sc1 lds\ns_add_u32 s26, s26, 32768")

    def at_early(a):
        srd_off(a, 52, S_WS, WS_AT, AT_BYTES)
        a(f"s_lshl_b32 s23, s15, 8\ns_add_u32 s23, s23, {F_CONV}\nbuffer_load_dword v62, v61, s[36:39], s23 offen sc1")
        a("v_lshrrev_b32 v8, 3, v1\nv_lshlrev_b32 v8, 12, v8\nv_and_b32 v9, 7, v1\nv_lshl_add_u32 v8, v9, 4, v8")
        a(f"s_mul_i32 s26, s15, {96*4096}\ns_lshl_b32 s27, s16, 1\ns_add_u32 s26, s26, s27")
        a("s_cmp_eq_u32 s15, 5\ns_cselect_b32 s24, 96, 32\ns_waitcnt vmcnt(0)\nv_readfirstlane_b32 s27, v62")
    gc.loader_after_prefill(a, 36, 147456, 4096, "g2", o["aflags"], before_last=at_early)
    a("s_cmp_eq_u32 s27, s24\ns_cbranch_scc1 L_at_go")
    poll(a, "at", 36, 61, "s23", "s24")
    at_dma(a)
    a("s_waitcnt vmcnt(0)\ns_barrier\ns_endpgm")
    a("L_m_helper:\ns_sub_u32 s30, s2, 216\ns_lshr_b32 s30, s30, 3")
    ln_local_wait(a, "lw2")
    w1_stream(a, "m1", gc.SRD_W, 30, 5, o["r1"] + 108*o["nB"]//5*4, 2048, o["win2"])
    a("; STAMP 1")
    srd(a, gc.SRD_W, S_W2, W_BYTES_TOTAL)
    w2_stream(a, "m2", gc.SRD_W, 30, 5, 96*o["nC"], o["r2"], o["win2"])
    a("; STAMP 2")
    w2_stream(a, "m4", gc.SRD_W, 30, 8, o["r2"], 2304, o["win3"])


def mega(a, name, **opt):
    o = dict(prio=0, lnw=256, slp=1, touch=True, tlb=True, early2=0, xnt='', ont='', prefill_late=True, r1=512, nB=5, r2=500, nC=0, win1=20, win2=40, win3=28, aflags=" sc1", code_pf=9)
    o.update(opt)
    a(f".globl {name}\n.p2align 8\n.type {name},@function\n{name}:\nL_m_base:")
    a("s_cmp_ge_u32 s2, 256\ns_cbranch_scc1 L_m_end")
    a(f"s_load_dwordx2 s[{S_X}:{S_X+1}], s[0:1], {KA['x']}\ns_load_dwordx2 s[{S_WS}:{S_WS+1}], s[0:1], {KA['ws']}")
    a(f"s_load_dwordx2 s[{S_W1}:{S_W1+1}], s[0:1], {KA['w1']}\ns_load_dwordx2 s[{S_W2}:{S_W2+1}], s[0:1], {KA['w2']}")
    a("v_lshrrev_b32 v1, 6, v0\nv_readfirstlane_b32 s20, v1\nv_and_b32 v1, 63, v0")
    a("s_cmp_eq_u32 s20, 4\ns_cbranch_scc1 L_m_w4")
    compute_waves(a, o)
    a("L_m_w4:")
    fifth_wave(a, o)
    a("L_m_end:\ns_endpgm\nL_m_last:")
```

```python
from asmlib import *
from layout import *

KP = 528
TAB = 57 * KP
OFF_A = 64
OFF_B = OFF_A + 4160
OFF_UPAD = TAB
OFF_U = TAB + 512
REGION = OFF_U + 4096

V_T = (64, 128)
V_U = (96, 160)
V_ACC = 192
V_AT, V_AU = 20, 24
V_OUT, V_GA, V_TW = 25, 26, 27
V_ID = 28
V_PAR = 224
V_DT, V_DS = 248, 249
V_EX = 44


def rnd(a, v):
    a(f"v_cvt_pk_bf16_f32 v{v}, v{v}, v{v}\nv_lshlrev_b32 v{v}, 16, v{v}")


def cmul(a, d, x, y):
    a(f"v_pk_mul_f32 {vr(d,2)}, {vr(x,2)}, {vr(y,2)} op_sel_hi:[0,1]")
    a(f"v_pk_fma_f32 {vr(d,2)}, {vr(x,2)}, {vr(y,2)}, {vr(d,2)} op_sel:[1,1,0] op_sel_hi:[1,0,1] neg_lo:[0,1,0]")


def tables(a):
    P = V_PAR
    a(f"v_lshlrev_b32 v10, 16, v{P}\nv_lshlrev_b32 v11, 16, v{P+1}\nv_lshlrev_b32 v12, 16, v{P+2}\nv_lshlrev_b32 v13, 16, v{P+3}")
    a("v_mul_f32 v10, s48, v10\nv_exp_f32 v10, v10\nv_mul_f32 v11, v11, v14\nv_mul_f32 v12, v12, v14\nv_mul_f32 v13, v13, v14")
    rnd(a, 10)
    a("v_mul_f32 v10, v10, v14\nv_mul_f32 v11, 0.15915494, v11\nv_mul_f32 v10, s48, v10")
    W = lambda c: 64 + 2*(c-1)
    U1, T = 78, 80
    ub, Y, Z = [82, 84], [86, 88], [90, 92]
    a(f"v_add_f32 v{Y[0]}, v12, v12\nv_add_f32 v{Y[0]+1}, v13, v13")
    for dst, p in ((W(1), 1.0), (U1, 8.0), (T, 128.0)):
        a(f"v_mul_f32 v5, {-p}, v10\nv_mul_f32 v6, {p}, v11")
        a("v_exp_f32 v5, v5\nv_fract_f32 v6, v6\nv_cos_f32 v7, v6\nv_sin_f32 v8, v6")
        a(f"v_mul_f32 v{dst}, v5, v7\nv_mul_f32 v{dst+1}, v5, v8")
    cnt = [0]
    pend = []

    def put(row, src, conj):
        t = 94 + cnt[0] % 4; cnt[0] += 1
        a(f"v_cvt_pk_bf16_f32 v{t}, v{src}, {'-' if conj else ''}v{src+1}\nds_write_b32 v{V_TW}, v{t} offset:{row*KP}")
    cmul(a, W(2), W(1), W(1)); cmul(a, W(3), W(2), W(1)); cmul(a, W(4), W(2), W(2))
    cmul(a, W(5), W(4), W(1)); cmul(a, W(6), W(4), W(2)); cmul(a, W(7), W(4), W(3))
    a(f"v_mov_b32 v98, 0x3f80\nds_write_b32 v{V_TW}, v98 offset:{41*KP}")
    put(42, U1, False)
    prev_u = U1
    for i in range(17):
        y = Y[i % 2]
        if i < 16:
            cmul(a, Y[(i+1) % 2], y, T)
        if i < 14:
            cmul(a, ub[i % 2], prev_u, U1)
        if i < 2:
            put(8*i, y, True)
            for c in range(1, 8):
                cmul(a, Z[c % 2], y, W(c)); put(8*i + c, Z[c % 2], True)
        elif i < 4:
            put(16 + 4*(i-2), y, True)
            for c in range(1, 4):
                cmul(a, Z[c % 2], y, W(2*c)); put(16 + 4*(i-2) + c, Z[c % 2], True)
        elif i < 8:
            put(24 + 2*(i-4), y, True)
            cmul(a, Z[0], y, W(4)); put(24 + 2*(i-4) + 1, Z[0], True)
        else:
            put(32 + i - 8, y, True)
        if i < 14:
            put(43 + i, ub[i % 2], False); prev_u = ub[i % 2]


def kgen(a, tag, mid):
    a(f"v_readlane_b32 s40, v{V_DT}, s38\ns_lshl_b32 s40, s40, 16\nv_mov_b32 v14, s48\nv_mul_f32 v14, s40, v14\nv_exp_f32 v14, v14")
    rnd(a, 14)
    a(f"s_mov_b32 s41, 0\nv_lshl_add_u32 v{V_TW}, v1, 2, s34\nL_{tag}_half:")
    tables(a)
    for i in range(4):
        a(f"v_lshrrev_b32 v{V_PAR+i}, 16, v{V_PAR+i}")
    a(f"v_add_u32 v{V_TW}, 256, v{V_TW}\ns_add_u32 s41, s41, 1\ns_cmp_lt_u32 s41, 2\ns_cbranch_scc1 L_{tag}_half")
    for i in range(4):
        a(f"v_pk_mov_b32 {vr(V_PAR+2*i,2)}, {vr(V_PAR+2*i+4,2)}, {vr(V_PAR+2*i+4,2)} op_sel:[0,1]")
    mid(a)
    fs = lambda ks, k: 64 + 16*(ks % 2) + 4*k
    def rd(ks):
        a(f"ds_read_b128 {vr(fs(ks,3),4)}, v{V_GA} offset:{41*KP + 64*ks}")
        for t in range(3):
            a(f"ds_read_b128 {vr(fs(ks,t),4)}, v{V_GA} offset:{16*t*KP + 64*ks}")
    rd(0)
    for ks in range(8):
        if ks < 7:
            rd(ks+1); a("s_waitcnt lgkmcnt(4)")
        else:
            a("s_waitcnt lgkmcnt(0)")
        for t in range(3):
            a(f"v_mfma_f32_16x16x32_bf16 {vr(100+4*t,4)}, {vr(fs(ks,t),4)}, {vr(fs(ks,3),4)}, {'0' if ks == 0 else vr(100+4*t,4)}")
    E = V_EX
    a(f"v_mov_b32 v4, 0\nv_mov_b32 v5, 0\nds_write_b64 v{E+5}, v[4:5] offset:{OFF_A+4096}\nds_write_b64 v{E+5}, v[4:5] offset:{OFF_B+4096}")
    for r in range(4):
        v = 108 + r; b = 64 + 4*r
        a(f"v_mov_b32_dpp v{80+r}, v{v} quad_perm:[0,0,2,2] row_mask:0xf bank_mask:0xf")
        a(f"v_cvt_pk_bf16_f32 v{b}, v{v}, v{v}\nv_cvt_pk_bf16_f32 v{b+3}, v{v}, v{80+r}\nv_mov_b32 v{b+1}, v{b}\nv_mov_b32 v{b+2}, v{b}")
    for r in range(4):
        b = 64 + 4*r
        a(f"s_mov_b32 exec_hi, {1 if r == 0 else 0}")
        a(f"ds_write2_b64 v{E}, {vr(b,2)}, {vr(b+2,2)} offset0:{32*(3-r)} offset1:{32*(3-r)+1}")
    a("s_mov_b32 exec_hi, -1")
    for q in range(2):
        v0, v1 = 104 + 2*q, 105 + 2*q
        a(f"v_cvt_pk_bf16_f32 v{84+3*q}, v{v1}, v{v1}\nv_cvt_pk_bf16_f32 v{85+3*q}, v{v1}, v{v0}\nv_cvt_pk_bf16_f32 v{86+3*q}, v{v0}, v{v0}")
    a("v_cvt_pk_bf16_f32 v90, v107, v107\nv_cvt_pk_bf16_f32 v91, v106, v106\nv_cvt_pk_bf16_f32 v92, v106, v105\nv_cvt_pk_bf16_f32 v93, v104, v104")
    a("v_cvt_pk_bf16_f32 v94, v103, v102\nv_cvt_pk_bf16_f32 v95, v101, v100")
    a("s_mov_b32 exec_lo, 0")
    for q in range(2):
        o = 64*(1-q)
        a(f"ds_write2_b32 v{E+1}, v{84+3*q}, v{85+3*q} offset0:{o} offset1:{o+1}\nds_write2_b32 v{E+1}, v{86+3*q}, v{86+3*q} offset0:{o+2} offset1:{o+3}")
    a("s_mov_b32 exec_lo, -1\ns_mov_b32 exec_hi, 0")
    a(f"ds_write_b16 v{E+2}, v90\nds_write2_b32 v{E+3}, v91, v92 offset0:0 offset1:1\nds_write_b32 v{E+3}, v93 offset:8\nds_write_b16 v{E+2}, v93 offset:14")
    a(f"s_mov_b32 exec_hi, -1\nds_write_b64 v{E+4}, v[94:95]")
    a("v_lshl_add_u32 v9, v1, 4, s34")
    for k in range(4):
        a(f"ds_read_b128 {vr(64+4*k,4)}, v9 offset:{OFF_A + 1024*k}\nds_read_b32 v{80+k}, v9 offset:{OFF_A + 1024*k + 16}")
    for k in range(4):
        a(f"s_waitcnt lgkmcnt({6-k})")
        b = 64 + 4*k
        for m in range(4):
            a(f"v_alignbit_b32 v{84+4*k+m}, v{b+m+1 if m < 3 else 80+k}, v{b+m}, 16")
        a(f"ds_write_b128 v9, {vr(84+4*k,4)} offset:{OFF_B + 1024*k}")


def reads(s, rho):
    r = 2*rho + 1
    T = lambda q, h: (f"ds_read2_b32 {vr(V_T[s]+4*q+2*h, 2)}, v{V_AT + (q >> 1)} "
                      f"offset0:{128*(1-(q & 1)) + 16*(7-rho) + 2*h} offset1:{128*(1-(q & 1)) + 16*(7-rho) + 2*h + 1}")
    U = lambda p: f"ds_read_b128 {vr(V_U[s]+4*p, 4)}, v{V_AU} offset:{512*(p+1) - 32*r}"
    out = [T(0, 0), T(0, 1)] + [U(p) for p in range(8)]
    for q in range(1, 8):
        out += [T(q, 0), T(q, 1)]
    return out


def u_dma(a):
    a("s_and_b32 s33, s31, 15\ns_lshl_b32 s33, s33, 4\ns_lshr_b32 s32, s31, 4\ns_lshl_b32 s32, s32, 16\ns_add_u32 s33, s33, s32")
    for e in range(4):
        a(f"s_add_u32 m0, s34, {OFF_U + 1024*e}\nbuffer_load_dwordx4 v2, s[16:19], s33 offen sc1 lds\ns_add_u32 s33, s33, 16384")


def param_loads(a, s_par, s_ldt, s_dsk):
    for i, d in enumerate((24, 44, 48, 52)):
        srd(a, d, s_par + 2*i, D*NST*2)
    srd(a, 56, s_ldt, D*2); srd(a, 60, s_dsk, D*2)
    a("s_lshl_b32 s37, s31, 1\ns_lshl_b32 s36, s31, 8\nv_lshlrev_b32 v254, 2, v1\nv_lshlrev_b32 v255, 3, v1")
    a(f"buffer_load_ushort v{V_DT}, v255, s[56:59], s37 offen\nbuffer_load_ushort v{V_DS}, v255, s[60:63], s37 offen")
    for k in range(3):
        for i, d in enumerate((24, 44, 48, 52)):
            a(f"buffer_load_dword v{V_PAR + 4*k + i}, v254, s[{d}:{d+3}], s36 offen offset:{1024*k}")


def conv_role(a, tag, s_ws, wait_ln, signal):
    srd_off(a, 16, s_ws, WS_XNT, XNT_BYTES); srd_off(a, 24, s_ws, WS_AT, AT_BYTES)
    a(f"s_mul_i32 s34, s20, {REGION}\ns_mov_b32 s48, {LOG2E:#x}\nv_lshlrev_b32 v2, 8, v1")
    a(f"v_mov_b32 v4, 0\nv_mov_b32 v5, 0\nv_lshl_add_u32 v6, v1, 3, s34\nds_write_b64 v6, v[4:5] offset:{OFF_UPAD}")
    a("v_and_b32 v8, 15, v1\nv_lshrrev_b32 v9, 4, v1")
    a(f"v_add_u32 v10, 1, v8\nv_lshrrev_b32 v10, 1, v10\nv_lshlrev_b32 v11, 2, v9\nv_sub_u32 v10, v11, v10\nv_add_u32 v10, {776 + OFF_A//4}, v10")
    a(f"v_and_b32 v11, 1, v8\nv_xor_b32 v11, 1, v11\nv_mul_u32_u24 v11, {4160//4 - 1}, v11\nv_add_u32 v10, v10, v11\nv_lshl_add_u32 v{V_AT}, v10, 2, s34")
    for k in range(1, 4):
        a(f"v_subrev_u32 v{V_AT+k}, {1024*k}, v{V_AT}")
    a(f"v_lshlrev_b32 v10, 5, v8\nv_lshl_add_u32 v11, v9, 4, v10\ns_add_u32 s36, s34, {OFF_UPAD}\nv_add_u32 v{V_AU}, s36, v11")
    a(f"v_lshl_add_u32 v{V_OUT}, v9, 3, v10")
    a(f"v_mul_u32_u24 v10, {KP}, v8\nv_lshl_add_u32 v10, v9, 4, v10\nv_add_u32 v{V_GA}, s34, v10")
    a("v_lshlrev_b32 v10, 3, v9\nv_sub_u32 v10, v8, v10\nv_add_u32 v10, 16, v10\nv_mov_b32 v11, 0xffff\nv_mov_b32 v12, 0xffff0000")
    for m in range(4):
        a(f"v_cmp_eq_u32 vcc, {2*m}, v10\nv_cndmask_b32 v13, 0, v11, vcc\nv_cmp_eq_u32 vcc, {2*m+1}, v10\nv_cndmask_b32 v{V_ID+m}, v13, v12, vcc")
    E = V_EX
    a(f"s_add_u32 s36, s34, {OFF_A}\nv_lshlrev_b32 v10, 4, v8")
    a(f"v_lshl_add_u32 v11, v9, 10, v10\nv_sub_u32 v11, 1272, v11\nv_add_u32 v{E}, s36, v11")
    a(f"v_lshl_add_u32 v11, v9, 9, v10\nv_sub_u32 v11, 3828, v11\nv_add_u32 v{E+1}, s36, v11")
    a(f"v_lshl_add_u32 v11, v9, 8, v10\nv_sub_u32 v11, 3570, v11\nv_add_u32 v{E+2}, s36, v11\nv_add_u32 v{E+3}, 2, v{E+2}")
    a(f"v_lshrrev_b32 v11, 1, v9\nv_lshl_add_u32 v11, v11, 8, v10\nv_and_b32 v12, 1, v9\nv_lshl_add_u32 v11, v12, 3, v11\nv_sub_u32 v11, 4088, v11\nv_add_u32 v{E+4}, s36, v11")
    a(f"v_and_b32 v11, 7, v1\nv_lshl_add_u32 v{E+5}, v11, 3, s34")
    a(f"s_mov_b32 s38, 0\ns_lshr_b32 s35, s30, 1\ns_waitcnt vmcnt(0)\nL_{tag}_round:\n; STAMP 3")
    a(f"s_cmp_eq_u32 s35, 1\ns_cbranch_scc1 L_{tag}_late")
    u_dma(a)
    a(f"L_{tag}_late:")

    def mid(a):
        a(f"s_cmp_lg_u32 s35, 1\ns_cbranch_scc1 L_{tag}_have\n; STAMP 2\ns_mov_b32 s35, 0")
        wait_ln(a)
        u_dma(a)
        a(f"L_{tag}_have:")
    kgen(a, tag, mid)
    a("; STAMP 4")
    a(f"v_readlane_b32 s40, v{V_DS}, s38\ns_lshl_b32 s41, s40, 16\ns_or_b32 s40, s40, s41")
    for m in range(4):
        a(f"v_and_b32 v{V_ID+4+m}, s40, v{V_ID+m}")
    a("s_lshl_b32 s39, s31, 12\ns_add_u32 s31, s31, 4")
    a("s_waitcnt vmcnt(0) lgkmcnt(0)\n; STAMP 5\n; SWAIT")
    a.extend(reads(0, 0)[:14])
    a("s_waitcnt lgkmcnt(4)")
    a.extend(reads(0, 0)[14:])
    for rho in range(8):
        s = rho & 1
        ms = []
        for q in range(8):
            for p in range(8-q):
                c = "0" if (rho == 0 and q == 0) else vr(V_ACC+4*(q+p), 4)
                ms.append(f"v_mfma_f32_16x16x32_bf16 {vr(V_ACC+4*(q+p),4)}, {vr(V_T[s]+4*q,4)}, {vr(V_U[s]+4*p,4)}, {c}")
            if rho == 0 and q == 0:
                for p in range(8):
                    ms.append(f"v_mfma_f32_16x16x32_bf16 {vr(V_ACC+4*p,4)}, {vr(V_ID+4,4)}, {vr(V_U[s]+4*p,4)}, {vr(V_ACC+4*p,4)}")
        gaps = [[] for _ in ms]
        if rho == 0:
            gaps[14].append("s_waitcnt lgkmcnt(0)")
            first = 15
        else:
            a("s_waitcnt lgkmcnt(0)")
            first = 0
        if rho < 7:
            for i, x in enumerate(reads(s ^ 1, rho+1)):
                gaps[first + i].append(x)
        a.extend(interleave(ms, gaps))
    for t in range(8):
        b = V_ACC + 4*t
        a(f"v_cvt_pk_bf16_f32 v{64+2*t}, v{b}, v{b+1}\nv_cvt_pk_bf16_f32 v{65+2*t}, v{b+2}, v{b+3}")
        a(f"buffer_store_dwordx2 {vr(64+2*t,2)}, v{V_OUT}, s[24:27], s39 offen offset:{512*t} sc1")
    a(f"s_add_u32 s38, s38, 1\ns_cmp_lt_u32 s38, s30\ns_cbranch_scc1 L_{tag}_round")
    a("s_waitcnt vmcnt(0)")
    signal(a)
```

```python
from asmlib import *
from layout import *

HALF2 = 2304 * 4096


def w1_stream(a, tag, rs, hid, nh, row0, row1, window):
    n = -(-(row1 - row0) // (4 * nh))
    if n <= 0:
        return
    a("v_and_b32 v1, 63, v0\nv_lshrrev_b32 v30, 4, v1\nv_mul_u32_u24 v30, 9216, v30\nv_and_b32 v31, 15, v1\nv_lshl_add_u32 v30, v31, 4, v30")
    a("s_and_b32 s42, s2, 1\ns_and_b32 s40, s2, 7\ns_mul_i32 s40, s40, 9\ns_add_u32 s40, s40, 1\ns_lshr_b32 s40, s40, 1\ns_lshl_b32 s40, s40, 8")
    a(f"s_mul_i32 s41, s{hid}, 36864\ns_add_u32 s40, s40, s41\ns_add_u32 s40, s40, {row0*9216}")
    a(f"s_mul_i32 s43, s42, 1280\ns_sub_u32 s43, 1024, s43\ns_add_u32 s42, s42, s{hid}")
    a(f"s_mov_b32 s44, {n}\nL_{tag}_pw1:")
    for i in range(4):
        a(f"buffer_load_dwordx4 v[{64+4*i}:{67+4*i}], v30, s[{rs}:{rs+3}], s40 offen offset:{256*i}")
    a(f"s_bitcmp1_b32 s42, 0\ns_cbranch_scc1 L_{tag}_sk1\ns_add_u32 s41, s40, s43\nbuffer_load_dwordx4 v[80:83], v30, s[{rs}:{rs+3}], s41 offen\nL_{tag}_sk1:")
    a(f"s_add_u32 s42, s42, {nh | 1}\ns_add_u32 s40, s40, {nh*36864}\ns_waitcnt vmcnt({window})\ns_sub_u32 s44, s44, 1\ns_cmp_lg_u32 s44, 0\ns_cbranch_scc1 L_{tag}_pw1")


def w2_stream(a, tag, rs, hid, nh, row0, row1, window):
    n = -(-(row1 - row0) // (4 * nh))
    if n <= 0:
        return
    a("v_and_b32 v1, 63, v0\nv_lshlrev_b32 v30, 4, v1")
    a(f"s_and_b32 s40, s2, 1\ns_mul_i32 s40, s40, {HALF2}\ns_bfe_u32 s41, s2, 0x20001\ns_lshl_b32 s41, s41, 10\ns_add_u32 s40, s40, s41")
    a(f"s_lshl_b32 s41, s{hid}, 12\ns_add_u32 s40, s40, s41\ns_add_u32 s40, s40, {row0*4096}")
    a(f"s_mov_b32 s44, {n}\nL_{tag}_pw2:")
    for i in range(4):
        a(f"buffer_load_dwordx4 v[{64+4*i}:{67+4*i}], v30, s[{rs}:{rs+3}], s40 offen\ns_add_u32 s40, s40, {nh*4096}")
    a(f"s_waitcnt vmcnt({window})\ns_sub_u32 s44, s44, 1\ns_cmp_lg_u32 s44, 0\ns_cbranch_scc1 L_{tag}_pw2")


def w1_burst(a, rs, widx, nw, load0, n, vdst=168):
    if n <= 0:
        return
    a("v_lshrrev_b32 v30, 4, v1\nv_mul_u32_u24 v30, 9216, v30\nv_and_b32 v31, 15, v1\nv_lshl_add_u32 v30, v31, 4, v30")
    a("s_and_b32 s44, s2, 7\ns_mul_i32 s44, s44, 9\ns_lshr_b32 s44, s44, 1\ns_lshl_b32 s44, s44, 8")
    for b in range(n):
        a(f"s_add_u32 s46, s{widx}, {load0 + nw*b}\ns_mul_i32 s47, s46, 13108\ns_lshr_b32 s47, s47, 16\ns_mul_i32 s45, s47, 5\ns_sub_u32 s46, s46, s45")
        a("s_mul_i32 s47, s47, 36864\ns_lshl_b32 s46, s46, 8\ns_add_u32 s47, s47, s46\ns_add_u32 s47, s47, s44")
        a(f"buffer_load_dwordx4 v[{vdst}:{vdst+3}], v30, s[{rs}:{rs+3}], s47 offen")


def w2_base(a, d, widx, row0):
    a(f"s_and_b32 s{d}, s2, 1\ns_mul_i32 s{d}, s{d}, {HALF2}\ns_bfe_u32 s45, s2, 0x20001\ns_lshl_b32 s45, s45, 10\ns_add_u32 s{d}, s{d}, s45")
    a(f"s_lshl_b32 s45, s{widx}, 12\ns_add_u32 s{d}, s{d}, s45\ns_add_u32 s{d}, s{d}, {row0*4096}")


def w2_burst(a, rs, widx, nw, row0, n, vaddr, vdst=168):
    if n <= 0:
        return
    w2_base(a, 46, widx, row0)
    for b in range(n):
        a(f"buffer_load_dwordx4 v[{vdst}:{vdst+3}], v{vaddr}, s[{rs}:{rs+3}], s46 offen\ns_add_u32 s46, s46, {nw*4096}")


def w1_lane_addr(a):
    a("v_lshrrev_b32 v30, 4, v1\nv_mul_u32_u24 v30, 9216, v30\nv_and_b32 v31, 15, v1\nv_lshl_add_u32 v30, v31, 4, v30")
    a("s_and_b32 s42, s2, 1\ns_and_b32 s40, s2, 7\ns_mul_i32 s40, s40, 9\ns_add_u32 s40, s40, 1\ns_lshr_b32 s40, s40, 1\ns_lshl_b32 s40, s40, 8")
    a("s_mul_i32 s43, s42, 1280\ns_sub_u32 s43, 1024, s43")


def w1_pairs(a, tag, rs, hid, win0, win1, window):
    w1_lane_addr(a)
    a(f"s_mul_i32 s41, s{hid}, {2*36864}\ns_add_u32 s40, s40, s41\ns_add_u32 s40, s40, {win0*64*9216}")
    a(f"s_mul_i32 s42, s42, 36864\ns_add_u32 s43, s43, s42\ns_mov_b32 s44, {win1 - win0}\nL_{tag}_pp:")
    for i in range(4):
        a(f"buffer_load_dwordx4 v[{64+4*i}:{67+4*i}], v30, s[{rs}:{rs+3}], s40 offen offset:{256*i}")
    a(f"s_add_u32 s41, s40, s43\nbuffer_load_dwordx4 v[80:83], v30, s[{rs}:{rs+3}], s41 offen\ns_add_u32 s41, s40, 36864")
    for i in range(4):
        a(f"buffer_load_dwordx4 v[{84+4*i}:{87+4*i}], v30, s[{rs}:{rs+3}], s41 offen offset:{256*i}")
    a(f"s_add_u32 s40, s40, {64*9216}\ns_waitcnt vmcnt({window})\ns_sub_u32 s44, s44, 1\ns_cmp_lg_u32 s44, 0\ns_cbranch_scc1 L_{tag}_pp")


def w1_unit(a, hid, win0):
    w1_lane_addr(a)
    a(f"s_mul_i32 s45, s{hid}, 7282\ns_lshr_b32 s45, s45, 16\ns_mul_i32 s46, s45, 9\ns_sub_u32 s46, s{hid}, s46")
    a("s_lshr_b32 s47, s46, 2\ns_mul_i32 s47, s47, 36864\ns_and_b32 s41, s46, 3\ns_lshl_b32 s41, s41, 8\ns_add_u32 s47, s47, s41")
    a("s_mul_i32 s42, s42, 36864\ns_add_u32 s43, s43, s42\ns_cmp_eq_u32 s46, 8\ns_cselect_b32 s47, s43, s47")
    a(f"s_mul_i32 s45, s45, {2*36864}\ns_add_u32 s40, s40, s45\ns_add_u32 s40, s40, s47\ns_add_u32 s40, s40, {(win0*16 + 10)*36864}")
```

```python
from asmlib import *

SLOT = 28672
W_BYTES = 16384
NSLOT = 4
LDS_RING = SLOT * NSLOT

V_ACC = 64
V_SET = (112, 140)
V_DW = 40
V_DA = 44
V_RW = 48
V_RA = 56

S_WAVE = 20
S_ACT0 = 21
S_W0 = 22
S_CNT = 25
SRD_ACT = 28
SRD_W = 32
LEAD = 3


def acc(nu, dl):
    return V_ACC + 4 * (nu * 3 + dl)


def wfrag(s, nu):
    return V_SET[s] + 4 * nu


def afrag(s, dl):
    return V_SET[s] + 16 + 4 * dl


def lane_ids(a):
    a("v_and_b32 v1, 63, v0\nv_and_b32 v2, 15, v1\nv_lshrrev_b32 v3, 4, v1\nv_lshlrev_b32 v7, 4, v1")


def loader_setup(a, dt_stride, w_stride, kmap):
    a(f"v_mul_u32_u24 v4, {w_stride}, v3\nv_lshlrev_b32 v5, 1, v3\nv_xor_b32 v5, v5, v2")
    a("v_lshl_add_u32 v6, v5, 4, v4\nv_xor_b32 v5, 8, v5\nv_lshl_add_u32 v8, v5, 4, v4")
    for e in range(4):
        hi = (e >> 1) & 1 if kmap == "A" else e & 1
        a(f"v_add_u32 v{V_DW+e}, {e*(4*w_stride - 1024)}, v{8 if hi else 6}")
    for e in range(4):
        a(f"v_add_u32 v{V_DA+e}, {(e >> 1)*(dt_stride - 2048)}, v7")


def compute_setup(a, kmap, s_kh=None):
    a("v_bfe_u32 v4, v1, 2, 2")
    if kmap == "A":
        a("v_lshl_add_u32 v5, v3, 3, v4\nv_and_b32 v6, 1, v3\nv_lshl_add_u32 v6, v6, 2, v4")
    else:
        a("v_lshl_add_u32 v5, v3, 2, v4\nv_and_b32 v6, 7, v5")
    a("v_lshlrev_b32 v5, 8, v5\nv_and_b32 v8, 3, v1\nv_lshl_add_u32 v5, v8, 3, v5")
    if s_kh is None:
        a(f"s_lshr_b32 s26, s{S_WAVE}, 1\ns_lshl_b32 s26, s26, 2")
    else:
        a(f"s_and_b32 s26, s{S_WAVE}, 2\ns_lshl_b32 s27, s{s_kh}, 2\ns_add_u32 s26, s26, s27")
    for nu in range(4):
        if s_kh is None:
            a(f"s_add_u32 s27, s26, {nu}")
        else:
            a(f"s_add_u32 s27, s26, {nu & 1}\ns_xor_b32 s27, s27, {4*(nu >> 1)}")
        a(f"v_xor_b32 v8, s27, v6\nv_lshl_add_u32 v{V_RW+nu}, v8, 5, v5\nv_add_u32 v{V_RW+4+nu}, {2*SLOT}, v{V_RW+nu}")
    a(f"s_and_b32 s26, s{S_WAVE}, 1\ns_mul_i32 s26, s26, 6144\ns_add_u32 s26, s26, {W_BYTES}")
    a(f"v_add_u32 v{V_RA}, s26, v7\nv_add_u32 v{V_RA+1}, {2*SLOT}, v{V_RA}")


def dma_groups(slot, dt_stride, w_stride, aflags="", wflags=""):
    out = []
    for kind, E in (("a", 0), ("w", 0), ("w", 1), ("a", 1), ("w", 2), ("a", 2), ("w", 3)):
        if kind == "w":
            g = [f"s_mov_b32 m0, {slot*SLOT + 4096*E}"]
            g += [f"buffer_load_dwordx4 v{V_DW+e}, s[{SRD_W}:{SRD_W+3}], s{S_W0} offen offset:{1024*e}{wflags} lds" for e in range(4)]
            g += [f"s_add_u32 s{S_W0}, s{S_W0}, {16*w_stride}"]
        else:
            g = [f"s_mov_b32 m0, {slot*SLOT + W_BYTES + 4096*E}"]
            g += [f"buffer_load_dwordx4 v{V_DA+e}, s[{SRD_ACT}:{SRD_ACT+3}], s{S_ACT0} offen offset:{1024*e}{aflags} lds" for e in range(4)]
            g += [f"s_add_u32 s{S_ACT0}, s{S_ACT0}, {2*dt_stride}" if E < 2 else f"s_sub_u32 s{S_ACT0}, s{S_ACT0}, {4*dt_stride - 2048}"]
        out.append(g)
    return out


def loader_main(a, nstages, dt_stride, w_stride, tag, aflags="", wflags="", before_last=None):
    assert nstages % 4 == 0
    G = lambda j: dma_groups(j % NSLOT, dt_stride, w_stride, aflags, wflags)
    flat = lambda gs: [x for g in gs for x in g]
    vm = 28 + 4*LEAD
    a.extend(flat(G(0)) + flat(G(1)[:LEAD]))
    a(f"s_waitcnt vmcnt({4*LEAD})\ns_barrier")
    a.extend(flat(G(1)[LEAD:]) + flat(G(2)) + flat(G(3)[:LEAD]))
    a(f"s_waitcnt vmcnt({vm})\ns_barrier")
    a.extend(flat(G(3)[LEAD:]))
    a(f"s_mov_b32 s{S_CNT}, {nstages//4 - 1}\nL_{tag}_lloop:")
    for slot in range(4):
        a.extend(flat(G(slot)[:LEAD]))
        a(f"s_waitcnt vmcnt({vm})\ns_barrier")
        a.extend(flat(G(slot)[LEAD:]))
    a(f"s_sub_u32 s{S_CNT}, s{S_CNT}, 1\ns_cmp_lg_u32 s{S_CNT}, 0\ns_cbranch_scc1 L_{tag}_lloop")
    if tail:
        tail(a)
        return
    a("s_waitcnt vmcnt(28)\ns_barrier")
    if before_last:
        before_last(a)
    a("s_waitcnt vmcnt(0)\ns_barrier")


def reads(s, slot, ks, kmap):
    win, so = slot >> 1, (slot & 1) * SLOT
    hoff = 4 * 256 if kmap == "A" else 16 * 256
    ra = lambda dl: f"ds_read_b128 {vr(afrag(s, dl), 4)}, v{V_RA+win} offset:{so + (2*dl + ks)*1024}"
    rw = lambda nu, h: f"ds_read_b64_tr_b16 {vr(wfrag(s, nu)+2*h, 2)}, v{V_RW+4*win+nu} offset:{so + ks*8192 + h*hoff}"
    return [ra(0), rw(0, 0), rw(0, 1), ra(1), ra(2), rw(1, 0), rw(1, 1), rw(2, 0), rw(2, 1), rw(3, 0), rw(3, 1)]


def mfmas(s, swap):
    out = []
    for nu in range(4):
        for dl in (range(3) if nu % 2 == 0 else range(2, -1, -1)):
            w, x = vr(wfrag(s, nu), 4), vr(afrag(s, dl), 4)
            p, q = (x, w) if swap else (w, x)
            out.append(f"v_mfma_f32_16x16x32_bf16 {vr(acc(nu, dl), 4)}, {p}, {q}, {vr(acc(nu, dl), 4)}")
    return out


def stage(a, slot, kmap, swap, last, last_barrier=False):
    m = mfmas(0, swap)
    rd = reads(1, slot, 1, kmap)
    gaps = [[] for _ in range(12)]
    a("s_waitcnt lgkmcnt(6)")
    gaps[0] = [rd[0], rd[1]]
    gaps[1] = [rd[2], rd[3]]
    gaps[2] = ["s_waitcnt lgkmcnt(8)", rd[4]]
    gaps[3] = [rd[5], rd[6]]
    gaps[4] = [rd[7], rd[8]]
    gaps[5] = ["s_waitcnt lgkmcnt(9)", rd[9]]
    gaps[6] = [rd[10]]
    gaps[11] = ["s_waitcnt lgkmcnt(0)"] + ([] if last and not last_barrier else ["s_barrier"])
    a.extend(interleave(m, gaps))
    m = mfmas(1, swap)
    gaps = [[] for _ in range(12)]
    if not last:
        rd = reads(0, (slot + 1) % NSLOT, 0, kmap)
        for g in range(5):
            gaps[g] = [rd[2*g], rd[2*g+1]]
        gaps[5] = [rd[10]]
    a.extend(interleave(m, gaps))


def compute_main(a, nstages, kmap, swap, tag, hook=None, last_barrier=False, st=(0, 1)):
    a(f"; STAMP {st[0]}\ns_waitcnt lgkmcnt(0)\ns_barrier\n; CYC 0\n; SWAIT")
    a.extend(reads(0, 0, 0, kmap))
    a(f"s_mov_b32 s{S_CNT}, {nstages//4 - 1}")
    a(f".p2align 6\nL_{tag}_loop:")
    if hook:
        hook(a)
    for slot in range(4):
        stage(a, slot, kmap, swap, False)
    a(f"s_sub_u32 s{S_CNT}, s{S_CNT}, 1\ns_cmp_lg_u32 s{S_CNT}, 0\ns_cbranch_scc1 L_{tag}_loop")
    for slot in range(4):
        stage(a, slot, kmap, swap, slot == 3, last_barrier)
    a("; CYC 1")


def w_prefill(a, stages, dt_stride, w_stride):
    for j in stages:
        for g in dma_groups(j, dt_stride, w_stride):
            if f"s[{SRD_W}:" in g[1]:
                a.extend(g)


def loader_after_prefill(a, nstages, dt_stride, w_stride, tag, aflags, before_last=None, tail=None):
    G = lambda j: dma_groups(j % NSLOT, dt_stride, w_stride, aflags)
    A = lambda j: [x for g in G(j) if f"s[{SRD_ACT}:" in g[1] for x in g]
    flat = lambda gs: [x for g in gs for x in g]
    vm = 28 + 4*LEAD
    a.extend(A(0) + A(1))
    a("s_waitcnt vmcnt(12)\ns_barrier")
    a.extend(A(2) + A(3))
    a("s_waitcnt vmcnt(12)\ns_barrier")
    a(f"s_mov_b32 s{S_CNT}, {nstages//4 - 1}\nL_{tag}_lloop:")
    for slot in range(4):
        a.extend(flat(G(slot)[:LEAD]))
        a(f"s_waitcnt vmcnt({vm})\ns_barrier")
        a.extend(flat(G(slot)[LEAD:]))
    a(f"s_sub_u32 s{S_CNT}, s{S_CNT}, 1\ns_cmp_lg_u32 s{S_CNT}, 0\ns_cbranch_scc1 L_{tag}_lloop")
    if tail:
        tail(a)
        return
    a("s_waitcnt vmcnt(28)\ns_barrier")
    if before_last:
        before_last(a)
    a("s_waitcnt vmcnt(0)\ns_barrier")
```

```python
import struct
from asmlib import *
from layout import *
import gemm_core as gc
import mega_ln as ln
import mega_conv as cv
from prefetch import *

AT_LDS = gc.LDS_RING
LN_LDS = 139264
CNT_LDS = LN_LDS + 2*ln.LN_T
LDS_TOTAL = CNT_LDS + 64
S_WS, S_X, S_DBG, S_W1, S_W2 = 4, 6, 94, 96, 98
SPIN = 0x100000
S_TAG = 100
F_SEED = 255 * 256


def f32hex(x):
    return "0x%08x" % struct.unpack("<I", struct.pack("<f", x))[0]


def div6(a, d, r, x):
    a(f"s_mul_i32 s{d}, s{x}, 10923\ns_lshr_b32 s{d}, s{d}, 16\ns_mul_i32 s{r}, s{d}, 6\ns_sub_u32 s{r}, s{x}, s{r}")


def unpk(a, x, p):
    a(f"v_lshlrev_b32 v{x}, 16, v{p}\nv_and_b32 v{x+1}, 0xffff0000, v{p}")


def poll(a, tag, rs, vaddr, soff, target, sleep=1, mask=None):
    a(f"s_mov_b32 s61, {SPIN:#x}\nL_{tag}_poll:\nbuffer_load_dword v62, v{vaddr}, s[{rs}:{rs+3}], {soff} offen sc1")
    a(f"s_sub_u32 s61, s61, 1\ns_cbranch_scc1 L_{tag}_go\ns_waitcnt vmcnt(0)")
    if mask:
        a(f"v_and_b32 v62, {mask:#x}, v62")
    a(f"v_cmp_ne_u32 vcc, {target}, v62")
    a(f"s_cmp_eq_u64 vcc, 0\ns_cbranch_scc1 L_{tag}_go")
    if sleep:
        a(f"s_sleep {sleep}")
    a(f"s_branch L_{tag}_poll\nL_{tag}_go:")


def flags_srd(a, d):
    srd_off(a, d, S_WS, WS_FLG, FLG_BYTES)


def last_wave_signals(a, tag, cnt, rs, soff, word=None):
    a(f"v_mov_b32 v58, {cnt}\nv_mov_b32 v59, 1\nv_mov_b32 v61, 0\ns_mov_b64 exec, 1\nds_add_rtn_u32 v60, v58, v59\ns_waitcnt lgkmcnt(0)")
    a(f"v_readfirstlane_b32 s23, v60\ns_cmp_lg_u32 s23, 3\ns_cbranch_scc1 L_{tag}_notlast")
    if word:
        a(f"v_mov_b32 v59, {word}\nbuffer_store_dword v59, v61, s[{rs}:{rs+3}], {soff} offen sc1")
    else:
        a(f"buffer_atomic_add v59, v61, s[{rs}:{rs+3}], {soff} offen sc1")
    a(f"L_{tag}_notlast:\ns_mov_b64 exec, -1")


def ln_local_wait(a, tag, cnt=CNT_LDS+4):
    a(f"v_mov_b32 v58, {cnt}\nL_{tag}:\ns_sleep 2\nds_read_b32 v60, v58\ns_waitcnt lgkmcnt(0)\nv_readfirstlane_b32 s23, v60\ns_cmp_lt_u32 s23, 4\ns_cbranch_scc1 L_{tag}")


def wait_ln(a, tag, rs, o):
    a(f"v_mul_u32_u24 v61, {o['lnw']}, v1\ns_mov_b32 s62, {F_LNW}\ns_mov_b32 s61, {SPIN:#x}\nL_{tag}_poll:")
    a(f"buffer_load_dwordx4 v[104:107], v61, s[{rs}:{rs+3}], s62 offen sc1\ns_sub_u32 s61, s61, 1\ns_cbranch_scc1 L_{tag}_go\ns_waitcnt vmcnt(0)")
    a(f"v_xor_b32 v104, s{S_TAG+1}, v104\nv_xor_b32 v105, s{S_TAG+1}, v105\nv_xor_b32 v106, s{S_TAG+1}, v106\nv_xor_b32 v107, s{S_TAG+1}, v107")
    a("v_or3_b32 v104, v104, v105, v106\nv_or_b32 v104, v104, v107\nv_cmp_ne_u32 vcc, 0, v104")
    a(f"s_cmp_eq_u64 vcc, 0\ns_cbranch_scc1 L_{tag}_go\ns_sleep {o['slp']}\ns_branch L_{tag}_poll\nL_{tag}_go:")


def tile1(a):
    a("s_and_b32 s12, s2, 7\ns_lshr_b32 s13, s2, 3\ns_mul_i32 s12, s12, 27\ns_add_u32 s12, s12, s13")
    div6(a, 14, 15, 12)


def tile2(a):
    a("s_and_b32 s12, s2, 7\ns_lshr_b32 s13, s2, 3")
    div6(a, 14, 15, 13)
    a("s_and_b32 s19, s12, 1\ns_lshr_b32 s18, s12, 1\ns_lshl_b32 s18, s18, 2\ns_add_u32 s14, s14, s18")
    a("s_lshl_b32 s16, s14, 7\ns_lshl_b32 s17, s19, 6\ns_add_u32 s16, s16, s17")


def gelu_epilogue(a, rounds):
    c1 = -2.0 * 0.7978845608028654 * 1.4426950408889634
    a(f"s_mov_b32 s48, {f32hex(c1*0.044715)}\ns_mov_b32 s49, s48\nv_mov_b32 v36, {f32hex(c1)}\nv_mov_b32 v37, v36")
    for nu in range(4):
        unpk(a, 20+4*nu, 12+2*nu); unpk(a, 22+4*nu, 13+2*nu)
    B = 112
    for dl in range(3):
        for pi in range(2):
            src = [(gc.acc(2*pi + (k >> 1), dl) + 2*(k & 1), 20 + 4*(2*pi + (k >> 1)) + 2*(k & 1)) for k in range(4)]
            U = [B + 2*k for k in range(4)]; T = [B + 8 + 2*k for k in range(4)]; P = [B + 16 + k for k in range(4)]
            O = B + 20 + 4*((2*dl + pi) % 2)
            if rounds == 2:
                for k in range(4): a(f"v_cvt_pk_bf16_f32 v{P[k]}, v{src[k][0]}, v{src[k][0]+1}")
                for k in range(4): unpk(a, U[k], P[k])
                for k in range(4): a(f"v_pk_add_f32 {vr(U[k],2)}, {vr(U[k],2)}, {vr(src[k][1],2)}")
            else:
                for k in range(4): a(f"v_pk_add_f32 {vr(U[k],2)}, {vr(src[k][0],2)}, {vr(src[k][1],2)}")
            if rounds >= 1:
                for k in range(4): a(f"v_cvt_pk_bf16_f32 v{P[k]}, v{U[k]}, v{U[k]+1}")
                for k in range(4): unpk(a, U[k], P[k])
            for k in range(4): a(f"v_pk_mul_f32 {vr(T[k],2)}, {vr(U[k],2)}, {vr(U[k],2)}")
            for k in range(4): a(f"v_pk_fma_f32 {vr(T[k],2)}, {vr(T[k],2)}, s[48:49], v[36:37]")
            for k in range(4): a(f"v_pk_mul_f32 {vr(T[k],2)}, {vr(T[k],2)}, {vr(U[k],2)}")
            for k in range(4): a(f"v_exp_f32 v{T[k]}, v{T[k]}\nv_exp_f32 v{T[k]+1}, v{T[k]+1}")
            for k in range(4): a(f"v_pk_add_f32 {vr(T[k],2)}, {vr(T[k],2)}, 1.0 op_sel_hi:[1,0]")
            for k in range(4): a(f"v_rcp_f32 v{T[k]}, v{T[k]}\nv_rcp_f32 v{T[k]+1}, v{T[k]+1}")
            for k in range(4): a(f"v_pk_mul_f32 {vr(U[k],2)}, {vr(U[k],2)}, {vr(T[k],2)}")
            for k in range(4): a(f"v_cvt_pk_bf16_f32 v{O+k}, v{U[k]}, v{U[k]+1}")
            a(f"buffer_store_dwordx4 {vr(O,4)}, v7, s[44:47], s17 offen offset:{1024*pi} sc1")
        a("s_add_u32 s17, s17, 147456")


def read_tag(a):
    a(f"s_add_u32 s26, s{S_WS}, {WS_FLG + F_SEED:#x}\ns_addc_u32 s27, s{S_WS+1}, 0\ns_load_dword s{S_TAG+1}, s[26:27], 0")


def make_tag(a):
    a(f"s_mul_i32 s{S_TAG+1}, s{S_TAG+1}, 0x9e3779b1\ns_add_u32 s{S_TAG+1}, s{S_TAG+1}, 0x7f4a7c15\ns_andn2_b32 s{S_TAG}, s{S_TAG+1}, 0xff")


def compute_waves(a, o):
    a("s_waitcnt lgkmcnt(0)")
    ln.ln_issue(a, S_X)
    read_tag(a)
    a(f"s_cmp_lg_u32 s20, 0\ns_cbranch_scc1 L_m_nz\nv_mov_b32 v58, {CNT_LDS}\nv_mov_b32 v60, 0\nv_mov_b32 v61, 0\nv_mov_b32 v62, 0\nv_mov_b32 v63, 0")
    a("ds_write_b128 v58, v[60:63]\ns_waitcnt lgkmcnt(0)\nL_m_nz:\ns_barrier")
    a(f"s_load_dwordx2 s[38:39], s[0:1], {KA['b1']}\ns_load_dwordx8 s[76:83], s[0:1], {KA['lar']}\ns_load_dwordx4 s[32:35], s[0:1], {KA['ldt']}".replace("s[76:83]", "s[80:87]"))
    ln.ln_body(a, S_WS, LN_LDS, CNT_LDS, "ln")
    flags_srd(a, 40)
    make_tag(a)
    a("v_mov_b32 v61, 0\ns_cmp_lg_u32 s20, 3\ns_cbranch_scc1 L_m_nozero\ns_sub_u32 s23, s2, 16\ns_cmp_ge_u32 s23, 24\ns_cbranch_scc1 L_m_nozero")
    a("s_lshl_b32 s23, s2, 8\ns_mov_b64 exec, 1\nbuffer_store_dword v61, v61, s[40:43], s23 offen sc1\ns_mov_b64 exec, -1\nL_m_nozero:")
    a(f"s_and_b32 s24, s2, 63\ns_mul_i32 s24, s24, {o['lnw']}\ns_lshr_b32 s23, s2, 6\ns_lshl_b32 s23, s23, 2\ns_add_u32 s24, s24, s23\ns_add_u32 s24, s24, {F_LNW}")
    a("s_waitcnt vmcnt(0)\n; STAMP 1")
    last_wave_signals(a, "lnd", CNT_LDS + 4, 40, "s24", word=f"s{S_TAG+1}")
    a("s_cmp_lt_u32 s2, 192\ns_cbranch_scc1 L_m_nopar")
    a("s_sub_u32 s31, s2, 72\ns_sub_u32 s30, s2, 216\ns_mul_i32 s30, s30, 3\ns_cmp_ge_u32 s2, 216\ns_cselect_b32 s31, s30, s31")
    a("s_lshl_b32 s31, s31, 2\ns_add_u32 s31, s31, s20")
    cv.param_loads(a, 80, 32, 34)
    a("L_m_nopar:\ns_cmp_ge_u32 s2, 216\ns_cbranch_scc1 L_m_conv")
    a("s_lshr_b32 s29, s2, 3\ns_lshl_b32 s29, s29, 2\ns_add_u32 s29, s29, s20")
    srd(a, 32, S_W1, W_BYTES_TOTAL)
    w1_burst(a, 32, 29, 108, o["r1"]//4*5, o["nB"])
    srd(a, 32, S_W2, W_BYTES_TOTAL)
    tile1(a)
    gc.lane_ids(a)
    gc.compute_setup(a, "A")
    srd(a, 8, 38, F*2)
    a(f"s_lshr_b32 s16, s20, 1\ns_lshl_b32 s17, s16, 7\ns_lshl_b32 s18, s14, 8\ns_add_u32 s17, s17, s18\nv_lshlrev_b32 v9, 3, v3")
    for nu in range(4):
        a(f"buffer_load_dwordx2 {vr(12+2*nu,2)}, v9, s[8:11], s17 offen offset:{32*nu}")
    for i in range(48):
        a(f"v_mov_b32 v{gc.V_ACC+i}, 0")
    srd_off(a, 44, S_WS, WS_G, G_BYTES)
    a("s_and_b32 s17, s20, 1\ns_mul_i32 s17, s17, 3\ns_mul_i32 s18, s15, 6\ns_add_u32 s17, s17, s18\ns_mul_i32 s17, s17, 147456")
    a("s_lshl_b32 s18, s14, 2\ns_lshl_b32 s16, s16, 1\ns_add_u32 s18, s18, s16\ns_lshl_b32 s18, s18, 10\ns_add_u32 s17, s17, s18")
    a(f"s_cmp_ge_u32 s14, 18\ns_cselect_b32 s24, 256, 0\ns_lshl_b32 s18, s15, 9\ns_add_u32 s24, s24, s18\ns_add_u32 s24, s24, {F_G}")
    a(f"s_load_dwordx4 s[52:55], s[0:1], {KA['b2']}")
    gc.compute_main(a, 32, "A", False, "g1", last_barrier=True, st=(5, 2))
    a("s_waitcnt vmcnt(0)")
    gelu_epilogue(a, o['rnd1'])
    a("s_waitcnt vmcnt(0)")
    last_wave_signals(a, "gd", CNT_LDS + 8, 40, "s24")
    a("; STAMP 3\ns_cmp_ge_u32 s2, 192\ns_cbranch_scc1 L_m_conv1")
    w2_burst(a, 32, 29, 96, 0, o["nC"], 7)
    tile2(a)
    gc.compute_setup(a, "B", s_kh=19)
    srd(a, 8, S_X, X_BYTES); srd(a, 44, 52, S*2)
    a("s_lshr_b32 s17, s20, 1\ns_lshl_b32 s17, s17, 5\ns_add_u32 s17, s17, s16")
    a("s_mul_i32 s18, s15, 96\ns_and_b32 s26, s20, 1\ns_mul_i32 s26, s26, 48\ns_add_u32 s18, s18, s26")
    a("v_mul_u32_u24 v58, 1152, v2\nv_lshl_add_u32 v58, v3, 3, v58\nv_lshlrev_b32 v9, 1, v2")
    a("s_mul_i32 s56, s17, 1152\ns_lshl_b32 s26, s18, 1\ns_add_u32 s56, s56, s26\ns_add_u32 s57, s56, 18432\ns_lshl_b32 s26, s17, 1")
    for nu in range(2):
        for dl in range(3):
            a(f"buffer_load_dwordx2 {vr(10+2*(3*nu+dl),2)}, v58, s[8:11], s{56+nu} offen offset:{32*dl}{o['xnt']}")
        a(f"buffer_load_ushort v{22+nu}, v9, s[44:47], s26 offen offset:{32*nu}")
    for i in range(48):
        a(f"v_mov_b32 v{gc.V_ACC+i}, 0")
    a("v_bfe_u32 v4, v1, 2, 2\nv_lshl_add_u32 v4, v3, 2, v4\nv_lshlrev_b32 v4, 7, v4\nv_and_b32 v5, 3, v1\nv_lshl_add_u32 v4, v5, 3, v4")
    a(f"s_and_b32 s26, s20, 1\ns_mul_i32 s26, s26, 6144\ns_lshr_b32 s27, s20, 1\ns_lshl_b32 s27, s27, 6\ns_add_u32 s26, s26, s27\ns_add_u32 s26, s26, {AT_LDS}\nv_add_u32 v59, s26, v4")
    srd_off(a, 8, S_WS, WS_XCH, XCH_BYTES); srd(a, 44, 54, X_BYTES)
    a("s_xor_b32 s58, s2, 1\ns_lshl_b32 s26, s20, 13\ns_lshl_b32 s59, s58, 15\ns_add_u32 s59, s59, s26\ns_lshl_b32 s60, s2, 15\ns_add_u32 s60, s60, s26")
    gc.compute_main(a, 36, "B", True, "g2", st=(5, 4))
    a("s_waitcnt vmcnt(0)\n; STAMP 5")
    SN = 172
    for k in range(8):
        for m in range(3):
            a(f"v_mov_b32 v{SN+4*k+m}, v{gc.V_ACC+24+3*k+m}")
        a(f"v_mov_b32 v{SN+4*k+3}, s{S_TAG+1}")
        a(f"buffer_store_dwordx4 {vr(SN+4*k,4)}, v7, s[8:11], s59 offen sc1\ns_add_u32 s59, s59, 1024")
    a("s_barrier")
    AR, PF = 112, 124
    for nu in range(2):
        for dl in range(3):
            a(f"ds_read_b64_tr_b16 {vr(AR+2*(3*nu+dl),2)}, v59 offset:{2048*dl + 32*nu}")
    a("v_lshlrev_b32 v22, 16, v22\nv_lshlrev_b32 v24, 16, v23\ns_waitcnt lgkmcnt(0)")
    for t in range(6):
        for h in range(2):
            unpk(a, 26, 10+2*t+h); unpk(a, 28, AR+2*t+h)
            if o["rnd2"]:
                a("v_pk_add_f32 v[26:27], v[26:27], v[28:29]\nv_cvt_pk_bf16_f32 v30, v26, v27")
                unpk(a, PF+4*t+2*h, 30)
            else:
                b = gc.V_ACC + 4*t + 2*h
                a(f"v_pk_add_f32 v[26:27], v[26:27], v[28:29]\nv_pk_add_f32 {vr(b,2)}, {vr(b,2)}, {vr(22+2*(t//3),2)} op_sel_hi:[1,0]")
                a(f"v_pk_add_f32 {vr(b,2)}, {vr(b,2)}, v[26:27]")
    RX = 204
    a(f"s_mov_b32 s61, {SPIN:#x}\ns_add_u32 s62, s60, 4096\nL_xch_poll:")
    for k in range(8):
        a(f"buffer_load_dwordx4 {vr(RX+4*k,4)}, v7, s[8:11], s{60 + 2*(k >> 2)} offen offset:{1024*(k & 3)} sc1")
    a(f"s_sub_u32 s61, s61, 1\ns_cbranch_scc1 L_xch_go\ns_waitcnt vmcnt(0)\nv_xor_b32 v4, s{S_TAG+1}, v{RX+3}")
    for k in range(1, 8):
        a(f"v_xor_b32 v5, s{S_TAG+1}, v{RX+4*k+3}\nv_or_b32 v4, v4, v5")
    a("v_cmp_ne_u32 vcc, 0, v4\ns_cmp_eq_u64 vcc, 0\ns_cbranch_scc0 L_xch_poll\nL_xch_go:")
    for t in range(6):
        nu, dl = divmod(t, 3)
        b, p = gc.V_ACC + 4*t, PF + 4*t
        for e in range(4):
            k, m = divmod(4*t + e, 3)
            a(f"v_add_f32 v{b+e}, v{b+e}, v{RX+4*k+m}")
        if o['rnd2']:
            for h in range(2): a(f"v_cvt_pk_bf16_f32 v{26+h}, v{b+2*h}, v{b+2*h+1}")
            for h in range(2): unpk(a, b+2*h, 26+h)
            for h in range(2): a(f"v_pk_add_f32 {vr(b+2*h,2)}, {vr(b+2*h,2)}, {vr(22+2*nu,2)} op_sel_hi:[1,0]")
            for h in range(2): a(f"v_cvt_pk_bf16_f32 v{26+h}, v{b+2*h}, v{b+2*h+1}")
            for h in range(2): unpk(a, b+2*h, 26+h)
            for h in range(2): a(f"v_pk_add_f32 {vr(b+2*h,2)}, {vr(b+2*h,2)}, {vr(p+2*h,2)}")
        for h in range(2): a(f"v_cvt_pk_bf16_f32 v{10+2*t+h}, v{b+2*h}, v{b+2*h+1}")
        a(f"buffer_store_dwordx2 {vr(10+2*t,2)}, v58, s[44:47], s{56+nu} offen offset:{32*dl}{o['ont']}")
    a("s_endpgm")
    a("L_m_conv1:\ns_mov_b32 s30, 1\ns_sub_u32 s31, s2, 72\ns_branch L_m_conv2")
    a("L_m_conv:\ns_mov_b32 s30, 3\ns_sub_u32 s31, s2, 216\ns_mul_i32 s31, s31, 3\nL_m_conv2:")
    a("s_lshl_b32 s31, s31, 2\ns_add_u32 s31, s31, s20\ns_mul_i32 s29, s31, 683\ns_lshr_b32 s29, s29, 16")

    def signal(a):
        a("s_lshl_b32 s36, s29, 8")
        a(f"s_add_u32 s36, s36, {F_CONV}\nv_mov_b32 v4, 1\nv_mov_b32 v5, 0\ns_mov_b64 exec, 1\nbuffer_atomic_add v4, v5, s[8:11], s36 offen sc1")
    flags_srd(a, 8)
    cv.conv_role(a, "cv", S_WS, lambda a: wait_ln(a, "cvln", 8, o), signal)
    a("s_endpgm")


def fifth_wave(a, o):
    if o["prio"]:
        a(f"s_setprio {o['prio']}")
    a("s_waitcnt lgkmcnt(0)")
    flags_srd(a, 36)
    read_tag(a)
    if o["tlb"]:
        a(f"s_load_dwordx2 s[48:49], s[0:1], {KA['out']}")
        srd(a, 8, S_WS, WS_FLG + FLG_BYTES); srd(a, 16, S_W2, W_BYTES_TOTAL)
        a("v_lshlrev_b32 v4, 20, v1\nbuffer_load_dword v100, v4, s[8:11], 0 offen\nbuffer_load_dword v101, v4, s[16:19], 0 offen")
    if o["touch"]:
        a(f"s_cmp_ge_u32 s2, 1\ns_cbranch_scc1 L_m_notouch\nv_mul_u32_u24 v5, {o['lnw']}, v1\ns_mov_b32 s23, {F_LNW}\nbuffer_load_dword v103, v5, s[36:39], s23 offen\nL_m_notouch:")
    srd(a, gc.SRD_W, S_W1, W_BYTES_TOTAL)
    a("s_barrier\ns_lshr_b32 s30, s2, 3")
    if o["code_pf"]:
        a("s_cmp_ge_u32 s30, 4\ns_cbranch_scc1 L_m_nocode\ns_getpc_b64 s[12:13]\nL_m_pc:\ns_sub_u32 s12, s12, L_m_pc-L_m_base\ns_subb_u32 s13, s13, 0")
        a("s_mov_b32 s14, L_m_last-L_m_base\ns_mov_b32 s15, 0x20000\nv_lshlrev_b32 v4, 4, v1\ns_lshl_b32 s23, s30, 10")
        for i in range(o["code_pf"]):
            a(f"buffer_load_dwordx4 v[96:99], v4, s[12:15], s23 offen\ns_add_u32 s23, s23, 4096")
        a("L_m_nocode:")
    w1_stream(a, "m0", gc.SRD_W, 30, 32, 0, o["r1"], o["win1"])
    a("s_waitcnt lgkmcnt(0)")
    if o["tlb"]:
        a(f"s_mov_b32 s50, {X_BYTES}\ns_mov_b32 s51, 0x20000\nv_lshlrev_b32 v4, 20, v1\nbuffer_load_dword v102, v4, s[48:51], 0 offen")
    make_tag(a)
    a("; STAMP 0\ns_cmp_ge_u32 s2, 216\ns_cbranch_scc1 L_m_helper")
    tile1(a)
    gc.lane_ids(a)
    a(f"s_mul_i32 s{gc.S_ACT0}, s15, {6*65536}\ns_lshl_b32 s{gc.S_W0}, s14, 8")
    gc.loader_setup(a, 65536, 9216, "A")
    srd_off(a, gc.SRD_ACT, S_WS, WS_HT, HT_BYTES)
    ln_local_wait(a, "lw1")
    a("; STAMP 0")
    gc.w_prefill(a, range(4), 65536, 9216)
    a("; STAMP 1")
    wait_ln(a, "l1", 36, o)
    a(f"; STAMP 2\ns_cmp_lg_u32 s2, 0\ns_cbranch_scc1 L_m_noseed\nv_mov_b32 v4, s{S_TAG+1}\nv_mov_b32 v5, {F_SEED}\ns_mov_b64 exec, 1")
    a("buffer_store_dword v4, v5, s[36:39], 0 offen sc1\ns_mov_b64 exec, -1\nL_m_noseed:")
    gc.loader_after_prefill(a, 32, 65536, 9216, "g1", o["aflags"], tail=lambda a: None)
    srd(a, gc.SRD_W, S_W2, W_BYTES_TOTAL)
    a("s_cmp_lt_u32 s2, 192\ns_cbranch_scc1 L_m_l2")
    a("s_waitcnt vmcnt(28)\ns_barrier\ns_waitcnt vmcnt(0)\ns_barrier\ns_barrier\ns_sub_u32 s30, s2, 152\ns_lshr_b32 s30, s30, 3")
    ln_local_wait(a, "lw3", CNT_LDS+8)
    w2_stream(a, "m3", gc.SRD_W, 30, 8, o["r2"], 2304, o["win3"])
    a("s_endpgm\nL_m_l2:")
    tile2(a)
    a(f"s_mul_i32 s{gc.S_ACT0}, s15, {6*147456}\ns_mul_i32 s18, s19, {72*1024}\ns_add_u32 s{gc.S_ACT0}, s{gc.S_ACT0}, s18")
    a(f"s_lshl_b32 s{gc.S_W0}, s14, 8\ns_mul_i32 s18, s19, {HALF2}\ns_add_u32 s{gc.S_W0}, s{gc.S_W0}, s18")
    gc.loader_setup(a, 147456, 4096, "B")
    srd_off(a, gc.SRD_ACT, S_WS, WS_G, G_BYTES)
    e2 = o["early2"]
    for j, vm in enumerate((28, 0, None)):
        if j < e2:
            gc.w_prefill(a, [j], 147456, 4096)
        if vm is not None:
            a(f"s_waitcnt vmcnt({vm + 16*min(j+1, e2)})")
        a("s_barrier")
    a("; STAMP 5")
    if e2 == 4:
        gc.w_prefill(a, [3], 147456, 4096)
    ln_local_wait(a, "lw4", CNT_LDS+8)
    gc.w_prefill(a, range(e2, 4), 147456, 4096)
    a(f"s_lshl_b32 s23, s15, 9\ns_lshl_b32 s24, s19, 8\ns_add_u32 s23, s23, s24\ns_add_u32 s23, s23, {F_G}\nv_mov_b32 v61, 0\n; STAMP 3")
    poll(a, "l2", 36, 61, "s23", 18)
    a("; STAMP 4")

    def at_dma(a):
        for e in range(12):
            a(f"s_mov_b32 m0, {AT_LDS + 1024*e}\nbuffer_load_dwordx4 v8, s[52:55], s26 offen sc1 lds\ns_add_u32 s26, s26, 32768")

    def at_early(a):
        srd_off(a, 52, S_WS, WS_AT, AT_BYTES)
        a(f"s_lshl_b32 s23, s15, 8\ns_add_u32 s23, s23, {F_CONV}\nbuffer_load_dword v62, v61, s[36:39], s23 offen sc1")
        a("v_lshrrev_b32 v8, 3, v1\nv_lshlrev_b32 v8, 12, v8\nv_and_b32 v9, 7, v1\nv_lshl_add_u32 v8, v9, 4, v8")
        a(f"s_mul_i32 s26, s15, {96*4096}\ns_lshl_b32 s27, s16, 1\ns_add_u32 s26, s26, s27")
        a("s_cmp_eq_u32 s15, 5\ns_cselect_b32 s24, 96, 32\ns_waitcnt vmcnt(0)\nv_readfirstlane_b32 s27, v62")
    gc.loader_after_prefill(a, 36, 147456, 4096, "g2", o["aflags"], before_last=at_early)
    a("s_cmp_eq_u32 s27, s24\ns_cbranch_scc1 L_at_go")
    poll(a, "at", 36, 61, "s23", "s24")
    at_dma(a)
    a("s_waitcnt vmcnt(0)\ns_barrier\ns_endpgm")
    a("L_m_helper:\ns_sub_u32 s30, s2, 216\ns_lshr_b32 s30, s30, 3")
    ln_local_wait(a, "lw2")
    w1_stream(a, "m1", gc.SRD_W, 30, 5, o["r1"] + 108*o["nB"]//5*4, 2048, o["win2"])
    a("; STAMP 1")
    srd(a, gc.SRD_W, S_W2, W_BYTES_TOTAL)
    w2_stream(a, "m2", gc.SRD_W, 30, 5, 96*o["nC"], o["r2"], o["win2"])
    a("; STAMP 2")
    w2_stream(a, "m4", gc.SRD_W, 30, 8, o["r2"], 2304, o["win3"])


def mega(a, name, **opt):
    o = dict(rnd1=2, rnd2=1, prio=0, lnw=256, slp=1, touch=True, tlb=True, early2=4, xnt='', ont='', prefill_late=True, r1=512, nB=5, r2=500, nC=0, win1=20, win2=40, win3=28, aflags=" sc1", code_pf=9)
    o.update(opt)
    a(f".globl {name}\n.p2align 8\n.type {name},@function\n{name}:\nL_m_base:")
    a("s_cmp_ge_u32 s2, 256\ns_cbranch_scc1 L_m_end")
    a(f"s_load_dwordx2 s[{S_X}:{S_X+1}], s[0:1], {KA['x']}\ns_load_dwordx2 s[{S_WS}:{S_WS+1}], s[0:1], {KA['ws']}")
    a(f"s_load_dwordx2 s[{S_W1}:{S_W1+1}], s[0:1], {KA['w1']}\ns_load_dwordx2 s[{S_W2}:{S_W2+1}], s[0:1], {KA['w2']}")
    a("v_lshrrev_b32 v1, 6, v0\nv_readfirstlane_b32 s20, v1\nv_and_b32 v1, 63, v0")
    a("s_cmp_eq_u32 s20, 4\ns_cbranch_scc1 L_m_w4")
    compute_waves(a, o)
    a("L_m_w4:")
    fifth_wave(a, o)
    a("L_m_end:\ns_endpgm\nL_m_last:")
```

```python
from asmlib import *

SLOT = 28672
W_BYTES = 16384
NSLOT = 4
LDS_RING = SLOT * NSLOT

V_ACC = 64
V_SET = (112, 140)
V_DW = 40
V_DA = 44
V_RW = 48
V_RA = 56

S_WAVE = 20
S_ACT0 = 21
S_W0 = 22
S_CNT = 25
SRD_ACT = 28
SRD_W = 32
LEAD = 3


def acc(nu, dl):
    return V_ACC + 4 * (nu * 3 + dl)


def wfrag(s, nu):
    return V_SET[s] + 4 * nu


def afrag(s, dl):
    return V_SET[s] + 16 + 4 * dl


def lane_ids(a):
    a("v_and_b32 v1, 63, v0\nv_and_b32 v2, 15, v1\nv_lshrrev_b32 v3, 4, v1\nv_lshlrev_b32 v7, 4, v1")


def loader_setup(a, dt_stride, w_stride, kmap):
    a(f"v_mul_u32_u24 v4, {w_stride}, v3\nv_lshlrev_b32 v5, 1, v3\nv_xor_b32 v5, v5, v2")
    a("v_lshl_add_u32 v6, v5, 4, v4\nv_xor_b32 v5, 8, v5\nv_lshl_add_u32 v8, v5, 4, v4")
    for e in range(4):
        hi = (e >> 1) & 1 if kmap == "A" else e & 1
        a(f"v_add_u32 v{V_DW+e}, {e*(4*w_stride - 1024)}, v{8 if hi else 6}")
    if dt_stride:
        for e in range(4):
            a(f"v_add_u32 v{V_DA+e}, {(e >> 1)*(dt_stride - 2048)}, v7")


def compute_setup(a, kmap, s_kh=None):
    a("v_bfe_u32 v4, v1, 2, 2")
    if kmap == "A":
        a("v_lshl_add_u32 v5, v3, 3, v4\nv_and_b32 v6, 1, v3\nv_lshl_add_u32 v6, v6, 2, v4")
    else:
        a("v_lshl_add_u32 v5, v3, 2, v4\nv_and_b32 v6, 7, v5")
    a("v_lshlrev_b32 v5, 8, v5\nv_and_b32 v8, 3, v1\nv_lshl_add_u32 v5, v8, 3, v5")
    if s_kh is None:
        a(f"s_lshr_b32 s26, s{S_WAVE}, 1\ns_lshl_b32 s26, s26, 2")
    else:
        a(f"s_and_b32 s26, s{S_WAVE}, 2\ns_lshl_b32 s27, s{s_kh}, 2\ns_add_u32 s26, s26, s27")
    for nu in range(4):
        if s_kh is None:
            a(f"s_add_u32 s27, s26, {nu}")
        else:
            a(f"s_add_u32 s27, s26, {nu & 1}\ns_xor_b32 s27, s27, {4*(nu >> 1)}")
        a(f"v_xor_b32 v8, s27, v6\nv_lshl_add_u32 v{V_RW+nu}, v8, 5, v5\nv_add_u32 v{V_RW+4+nu}, {2*SLOT}, v{V_RW+nu}")
    a(f"s_and_b32 s26, s{S_WAVE}, 1\ns_mul_i32 s26, s26, 6144\ns_add_u32 s26, s26, {W_BYTES}")
    a(f"v_add_u32 v{V_RA}, s26, v7\nv_add_u32 v{V_RA+1}, {2*SLOT}, v{V_RA}")


def dma_groups(slot, dt_stride, w_stride, aflags="", wflags="", jump=None):
    out = []
    for kind, E in (("a", 0), ("w", 0), ("w", 1), ("a", 1), ("w", 2), ("a", 2), ("w", 3)):
        if kind == "w":
            g = [f"s_mov_b32 m0, {slot*SLOT + 4096*E}"]
            g += [f"buffer_load_dwordx4 v{V_DW+e}, s[{SRD_W}:{SRD_W+3}], s{S_W0} offen offset:{1024*e}{wflags} lds" for e in range(4)]
            g += [f"s_add_u32 s{S_W0}, s{S_W0}, {16*w_stride}"]
        elif not dt_stride:
            g = [f"s_mov_b32 m0, {slot*SLOT + W_BYTES + 4096*E}"]
            g += [f"buffer_load_dwordx4 v7, s[{SRD_ACT}:{SRD_ACT+3}], s{S_ACT0} offen offset:{1024*e}{aflags} lds" for e in range(4)]
            g += [f"s_add_u32 s{S_ACT0}, s{S_ACT0}, {4096 if E < 2 else 36*2048 - 8192}"]
        else:
            g = [f"s_mov_b32 m0, {slot*SLOT + W_BYTES + 4096*E}"]
            g += [f"buffer_load_dwordx4 v{V_DA+e}, s[{SRD_ACT}:{SRD_ACT+3}], s{S_ACT0} offen offset:{1024*e}{aflags} lds" for e in range(4)]
            g += [f"s_add_u32 s{S_ACT0}, s{S_ACT0}, {2*dt_stride}" if E < 2 else f"s_sub_u32 s{S_ACT0}, s{S_ACT0}, {4*dt_stride - 2048}"]
        if jump and slot % 2 == 1 and E == (3 if kind == "w" else 2):
            g = g[:-1] + jump(kind)
        out.append(g)
    return out


def loader_main(a, nstages, dt_stride, w_stride, tag, aflags="", wflags="", before_last=None):
    assert nstages % 4 == 0
    G = lambda j: dma_groups(j % NSLOT, dt_stride, w_stride, aflags, wflags)
    flat = lambda gs: [x for g in gs for x in g]
    vm = 28 + 4*LEAD
    a.extend(flat(G(0)) + flat(G(1)[:LEAD]))
    a(f"s_waitcnt vmcnt({4*LEAD})\ns_barrier")
    a.extend(flat(G(1)[LEAD:]) + flat(G(2)) + flat(G(3)[:LEAD]))
    a(f"s_waitcnt vmcnt({vm})\ns_barrier")
    a.extend(flat(G(3)[LEAD:]))
    a(f"s_mov_b32 s{S_CNT}, {nstages//4 - 1}\nL_{tag}_lloop:")
    for slot in range(4):
        a.extend(flat(G(slot)[:LEAD]))
        a(f"s_waitcnt vmcnt({vm})\ns_barrier")
        a.extend(flat(G(slot)[LEAD:]))
    a(f"s_sub_u32 s{S_CNT}, s{S_CNT}, 1\ns_cmp_lg_u32 s{S_CNT}, 0\ns_cbranch_scc1 L_{tag}_lloop")
    if tail:
        tail(a)
        return
    a("s_waitcnt vmcnt(28)\ns_barrier")
    if before_last:
        before_last(a)
    a("s_waitcnt vmcnt(0)\ns_barrier")


def reads(s, slot, ks, kmap):
    win, so = slot >> 1, (slot & 1) * SLOT
    hoff = 4 * 256 if kmap == "A" else 16 * 256
    ra = lambda dl: f"ds_read_b128 {vr(afrag(s, dl), 4)}, v{V_RA+win} offset:{so + (2*dl + ks)*1024}"
    rw = lambda nu, h: f"ds_read_b64_tr_b16 {vr(wfrag(s, nu)+2*h, 2)}, v{V_RW+4*win+nu} offset:{so + ks*8192 + h*hoff}"
    return [ra(0), rw(0, 0), rw(0, 1), ra(1), ra(2), rw(1, 0), rw(1, 1), rw(2, 0), rw(2, 1), rw(3, 0), rw(3, 1)]


def mfmas(s, swap):
    out = []
    for nu in range(4):
        for dl in (range(3) if nu % 2 == 0 else range(2, -1, -1)):
            w, x = vr(wfrag(s, nu), 4), vr(afrag(s, dl), 4)
            p, q = (x, w) if swap else (w, x)
            out.append(f"v_mfma_f32_16x16x32_bf16 {vr(acc(nu, dl), 4)}, {p}, {q}, {vr(acc(nu, dl), 4)}")
    return out


def stage(a, slot, kmap, swap, last, last_barrier=False, pre_barrier=None):
    m = mfmas(0, swap)
    rd = reads(1, slot, 1, kmap)
    gaps = [[] for _ in range(12)]
    a("s_waitcnt lgkmcnt(6)")
    gaps[0] = [rd[0], rd[1]]
    gaps[1] = [rd[2], rd[3]]
    gaps[2] = ["s_waitcnt lgkmcnt(8)", rd[4]]
    gaps[3] = [rd[5], rd[6]]
    gaps[4] = [rd[7], rd[8]]
    gaps[5] = ["s_waitcnt lgkmcnt(9)", rd[9]]
    gaps[6] = [rd[10]]
    gaps[11] = ["s_waitcnt lgkmcnt(0)"]
    a.extend(interleave(m, gaps))
    if pre_barrier:
        pre_barrier(a)
    if not last or last_barrier:
        a("s_barrier")
    m = mfmas(1, swap)
    gaps = [[] for _ in range(12)]
    if not last:
        rd = reads(0, (slot + 1) % NSLOT, 0, kmap)
        for g in range(5):
            gaps[g] = [rd[2*g], rd[2*g+1]]
        gaps[5] = [rd[10]]
    a.extend(interleave(m, gaps))


def compute_main(a, nstages, kmap, swap, tag, hook=None, last_barrier=False, st=(0, 1), first_stage1=None):
    a(f"; STAMP {st[0]}\ns_waitcnt lgkmcnt(0)\ns_barrier\n; CYC 0\n; SWAIT")
    a.extend(reads(0, 0, 0, kmap))
    a(f"s_mov_b32 s{S_CNT}, {nstages//4 - 1}")
    a(f".p2align 6\nL_{tag}_loop:")
    if hook:
        hook(a)
    a("; ITER")

    def once(a):
        a(f"s_cmp_lg_u32 s{S_CNT}, {nstages//4 - 1}\ns_cbranch_scc1 L_{tag}_once")
        first_stage1(a)
        a(f"L_{tag}_once:")
    for slot in range(4):
        stage(a, slot, kmap, swap, False, pre_barrier=once if (first_stage1 and slot == 1) else None)
    a(f"s_sub_u32 s{S_CNT}, s{S_CNT}, 1\ns_cmp_lg_u32 s{S_CNT}, 0\ns_cbranch_scc1 L_{tag}_loop")
    for slot in range(4):
        stage(a, slot, kmap, swap, slot == 3, last_barrier)
    a("; CYC 1")


def w_prefill(a, stages, dt_stride, w_stride, jump=None):
    for j in stages:
        for g in dma_groups(j, dt_stride, w_stride, jump=jump):
            if f"s[{SRD_W}:" in g[1]:
                a.extend(g)


def loader_after_prefill(a, nstages, dt_stride, w_stride, tag, aflags, before_last=None, tail=None, jump=None, wait2=None, wait8=None, wrap=None):
    G = lambda j: dma_groups(j % NSLOT, dt_stride, w_stride, aflags, jump=jump)
    A = lambda j: [x for g in G(j) if f"s[{SRD_ACT}:" in g[1] for x in g]
    flat = lambda gs: [x for g in gs for x in g]
    vm = 28 + 4*LEAD
    if not wait2:
        a.extend(A(0) + A(1))
        a("s_waitcnt vmcnt(12)\ns_barrier")
    if wait2:
        a.extend(jump("a"))
        a("s_waitcnt vmcnt(32)\ns_barrier\ns_barrier")
        wait2(a)
        a.extend(A(2) + A(3))
        a("s_waitcnt vmcnt(12)")
    else:
        a.extend(A(2) + A(3))
        a("s_waitcnt vmcnt(12)\ns_barrier")
    a(f"s_mov_b32 s{S_CNT}, {nstages//4 - 1}\nL_{tag}_lloop:")
    if wrap:
        a(f"s_cmp_lg_u32 s{S_CNT}, {nstages//8}\ns_cbranch_scc1 L_{tag}_nowrap\ns_sub_u32 s{S_W0}, s{S_W0}, {wrap[0]}\ns_sub_u32 s{S_ACT0}, s{S_ACT0}, {wrap[1]}\nL_{tag}_nowrap:")
    if wait8:
        a(f"s_cmp_lg_u32 s{S_CNT}, {nstages//4 - 2}\ns_cbranch_scc1 L_{tag}_no8")
        wait8(a)
        a(f"L_{tag}_no8:")
    for slot in range(4):
        a.extend(flat(G(slot)[:LEAD]))
        a(f"s_waitcnt vmcnt({vm})\ns_barrier")
        a.extend(flat(G(slot)[LEAD:]))
    a(f"s_sub_u32 s{S_CNT}, s{S_CNT}, 1\ns_cmp_lg_u32 s{S_CNT}, 0\ns_cbranch_scc1 L_{tag}_lloop")
    if tail:
        tail(a)
        return
    a("s_waitcnt vmcnt(28)\ns_barrier")
    if before_last:
        before_last(a)
    a("s_waitcnt vmcnt(0)\ns_barrier")
```

```python
import struct
from asmlib import *
from layout import *
import gemm_core as gc
import mega_ln as ln
import mega_conv as cv
from prefetch import *
import prefetch

AT_LDS = gc.LDS_RING
LN_LDS = 139264
CNT_LDS = LN_LDS + 2*ln.LN_T
LDS_TOTAL = CNT_LDS + 64
S_WS, S_X, S_DBG, S_W1, S_W2 = 4, 6, 94, 96, 98
SPIN = 0x100000
S_TAG = 100
F_SEED = 255 * 256


def f32hex(x):
    return "0x%08x" % struct.unpack("<I", struct.pack("<f", x))[0]


def div6(a, d, r, x):
    a(f"s_mul_i32 s{d}, s{x}, 10923\ns_lshr_b32 s{d}, s{d}, 16\ns_mul_i32 s{r}, s{d}, 6\ns_sub_u32 s{r}, s{x}, s{r}")


def unpk(a, x, p):
    a(f"v_lshlrev_b32 v{x}, 16, v{p}\nv_and_b32 v{x+1}, 0xffff0000, v{p}")


def poll(a, tag, rs, vaddr, soff, target, sleep=1, mask=None):
    a(f"s_mov_b32 s61, {SPIN:#x}\nL_{tag}_poll:\nbuffer_load_dword v62, v{vaddr}, s[{rs}:{rs+3}], {soff} offen sc1")
    a(f"s_sub_u32 s61, s61, 1\ns_cbranch_scc1 L_{tag}_go\ns_waitcnt vmcnt(0)")
    if mask:
        a(f"v_and_b32 v62, {mask:#x}, v62")
    a(f"v_cmp_ne_u32 vcc, {target}, v62")
    a(f"s_cmp_eq_u64 vcc, 0\ns_cbranch_scc1 L_{tag}_go")
    if sleep:
        a(f"s_sleep {sleep}")
    a(f"s_branch L_{tag}_poll\nL_{tag}_go:")


def flags_srd(a, d):
    srd_off(a, d, S_WS, WS_FLG, FLG_BYTES)


def last_wave_signals(a, tag, cnt, rs, soff, word=None, second=None):
    a(f"v_mov_b32 v58, {cnt}\nv_mov_b32 v59, 1\nv_mov_b32 v61, 0\ns_mov_b64 exec, 1\nds_add_rtn_u32 v60, v58, v59\ns_waitcnt lgkmcnt(0)")
    a(f"v_readfirstlane_b32 s23, v60\ns_cmp_lg_u32 s23, 3\ns_cbranch_scc1 L_{tag}_notlast")
    if word:
        a(f"v_mov_b32 v59, {word}\nbuffer_store_dword v59, v61, s[{rs}:{rs+3}], {soff} offen sc1")
    else:
        if second:
            a(f"buffer_atomic_add v59, v61, s[{rs}:{rs+3}], {second} offen sc1")
        a(f"buffer_atomic_add v59, v61, s[{rs}:{rs+3}], {soff} offen sc1")
    a(f"L_{tag}_notlast:\ns_mov_b64 exec, -1")


def ln_local_wait(a, tag, cnt=CNT_LDS+4):
    a(f"v_mov_b32 v58, {cnt}\nL_{tag}:\ns_sleep 2\nds_read_b32 v60, v58\ns_waitcnt lgkmcnt(0)\nv_readfirstlane_b32 s23, v60\ns_cmp_lt_u32 s23, 4\ns_cbranch_scc1 L_{tag}")


def g_pause(a, tag, o):
    if not o["pause"]:
        return
    a(f"s_lshr_b32 s23, s2, 3\ns_mul_i32 s24, s23, 43\ns_lshr_b32 s24, s24, 9\ns_mul_i32 s24, s24, 12\ns_sub_u32 s23, s23, s24\ns_lshl_b32 s23, s23, 8\ns_add_u32 s23, s23, {F_G}")
    a(f"v_mov_b32 v61, 0\ns_mov_b32 s61, {SPIN:#x}\nL_{tag}_poll:\nbuffer_load_dword v62, v61, s[36:39], s23 offen sc1\ns_sub_u32 s61, s61, 1\ns_cbranch_scc1 L_{tag}_go")
    a(f"s_waitcnt vmcnt(0)\nv_readfirstlane_b32 s24, v62\ns_cmp_ge_u32 s24, {o['pause']}\ns_cbranch_scc1 L_{tag}_go\ns_sleep 8\ns_branch L_{tag}_poll\nL_{tag}_go:")


def wait_ln(a, tag, rs, o):
    a(f"v_mul_u32_u24 v61, {o['lnw']}, v1\ns_mov_b32 s61, {SPIN:#x}\nL_{tag}_poll:")
    if o["ln_lines"]:
        for k in range(4):
            a(f"s_mov_b32 s62, {F_LNW + k*64*o['lnw']}\nbuffer_load_dword v{180+k}, v61, s[{rs}:{rs+3}], s62 offen sc1")
    else:
        a(f"s_mov_b32 s62, {F_LNW}\nbuffer_load_dwordx4 v[180:183], v61, s[{rs}:{rs+3}], s62 offen sc1")
    a(f"s_sub_u32 s61, s61, 1\ns_cbranch_scc1 L_{tag}_go\ns_waitcnt vmcnt(0)")
    a(f"v_xor_b32 v180, s{S_TAG+1}, v180\nv_xor_b32 v181, s{S_TAG+1}, v181\nv_xor_b32 v182, s{S_TAG+1}, v182\nv_xor_b32 v183, s{S_TAG+1}, v183")
    a("v_or3_b32 v180, v180, v181, v182\nv_or_b32 v180, v180, v183\nv_cmp_ne_u32 vcc, 0, v180")
    a(f"s_cmp_eq_u64 vcc, 0\ns_cbranch_scc1 L_{tag}_go\ns_sleep {o['slp']}\ns_branch L_{tag}_poll\nL_{tag}_go:")


def tile1(a):
    a("s_and_b32 s12, s2, 7\ns_lshr_b32 s13, s2, 3\ns_and_b32 s14, s12, 1\ns_mul_i32 s14, s14, 3\ns_add_u32 s13, s13, s14")
    a("s_cmp_ge_u32 s13, 27\ns_cselect_b32 s14, 27, 0\ns_sub_u32 s13, s13, s14\ns_mul_i32 s12, s12, 27\ns_add_u32 s12, s12, s13")
    div6(a, 14, 15, 12)


def tile2(a):
    a("s_lshr_b32 s13, s2, 3")
    div6(a, 12, 15, 13)
    a("s_bfe_u32 s19, s2, 0x10002\ns_and_b32 s13, s2, 3\ns_lshl_b32 s14, s13, 2\ns_add_u32 s14, s14, s12")
    a("s_mul_i32 s13, s13, 9\ns_add_u32 s13, s13, 1\ns_lshr_b32 s13, s13, 1")
    a("s_lshl_b32 s16, s14, 7\ns_lshl_b32 s17, s19, 6\ns_add_u32 s16, s16, s17")


def block_jump(kind):
    cnt, base, dst, step = (54, 56, gc.S_W0, 128*4096) if kind == "w" else (55, 57, gc.S_ACT0, 2*73728)
    return [f"s_add_u32 s{cnt}, s{cnt}, 1", f"s_add_u32 s18, s{cnt}, s12", "s_and_b32 s18, s18, 3", f"s_cmp_lt_u32 s{cnt}, 4",
            f"s_cselect_b32 s18, s18, s{cnt}", "s_add_u32 s18, s18, s13", "s_cmp_ge_u32 s18, 18", "s_cselect_b32 s17, 18, 0",
            "s_sub_u32 s18, s18, s17", f"s_mul_i32 s18, s18, {step}", f"s_add_u32 s{dst}, s18, s{base}"]


def gelu_epilogue(a, rounds, rot):
    c1 = -2.0 * 0.7978845608028654 * 1.4426950408889634
    a(f"s_mov_b32 s48, {f32hex(c1*0.044715)}\ns_mov_b32 s49, s48\nv_mov_b32 v36, {f32hex(c1)}\nv_mov_b32 v37, v36")
    for nu in range(4):
        unpk(a, 20+4*nu, 12+2*nu); unpk(a, 22+4*nu, 13+2*nu)
    a(f"s_lshr_b32 s26, s20, 1\ns_mul_i32 s26, s26, {gc.SLOT}\ns_and_b32 s27, s20, 1\ns_mul_i32 s27, s27, 6144\ns_add_u32 s26, s26, s27\ns_add_u32 s26, s26, {gc.W_BYTES}\nv_add_u32 v38, s26, v7")
    B = 112
    for dl in range(3):
        for pi in range(2):
            src = [(gc.acc(2*pi + (k >> 1), dl) + 2*(k & 1), 20 + 4*(2*pi + (k >> 1)) + 2*(k & 1)) for k in range(4)]
            U = [B + 2*k for k in range(4)]; T = [B + 8 + 2*k for k in range(4)]; P = [B + 16 + k for k in range(4)]
            O = B + 20 + 4*((2*dl + pi) % 2)
            if rounds == 2:
                for k in range(4): a(f"v_cvt_pk_bf16_f32 v{P[k]}, v{src[k][0]}, v{src[k][0]+1}")
                for k in range(4): unpk(a, U[k], P[k])
                for k in range(4): a(f"v_pk_add_f32 {vr(U[k],2)}, {vr(U[k],2)}, {vr(src[k][1],2)}")
            else:
                for k in range(4): a(f"v_pk_add_f32 {vr(U[k],2)}, {vr(src[k][0],2)}, {vr(src[k][1],2)}")
            if rounds >= 1:
                for k in range(4): a(f"v_cvt_pk_bf16_f32 v{P[k]}, v{U[k]}, v{U[k]+1}")
                for k in range(4): unpk(a, U[k], P[k])
            for k in range(4): a(f"v_pk_mul_f32 {vr(T[k],2)}, {vr(U[k],2)}, {vr(U[k],2)}")
            for k in range(4): a(f"v_pk_fma_f32 {vr(T[k],2)}, {vr(T[k],2)}, s[48:49], v[36:37]")
            for k in range(4): a(f"v_pk_mul_f32 {vr(T[k],2)}, {vr(T[k],2)}, {vr(U[k],2)}")
            for k in range(4): a(f"v_exp_f32 v{T[k]}, v{T[k]}\nv_exp_f32 v{T[k]+1}, v{T[k]+1}")
            for k in range(4): a(f"v_pk_add_f32 {vr(T[k],2)}, {vr(T[k],2)}, 1.0 op_sel_hi:[1,0]")
            for k in range(4): a(f"v_rcp_f32 v{T[k]}, v{T[k]}\nv_rcp_f32 v{T[k]+1}, v{T[k]+1}")
            for k in range(4): a(f"v_pk_mul_f32 {vr(U[k],2)}, {vr(U[k],2)}, {vr(T[k],2)}")
            for k in range(4): a(f"v_cvt_pk_bf16_f32 v{O+k}, v{U[k]}, v{U[k]+1}")
            a(f"buffer_store_dwordx4 {vr(O,4)}, v7, s[44:47], s17 offen offset:{1024*pi} sc1")
            if rot:
                a(f"ds_write_b128 v38, {vr(O,4)} offset:{(2*dl + pi)*1024}")
        a("s_add_u32 s17, s17, 2048")


def read_tag(a):
    a(f"s_add_u32 s26, s{S_WS}, {WS_FLG + F_SEED:#x}\ns_addc_u32 s27, s{S_WS+1}, 0\ns_load_dword s{S_TAG+1}, s[26:27], 0")


def make_tag(a):
    a(f"s_mul_i32 s{S_TAG+1}, s{S_TAG+1}, 0x9e3779b1\ns_add_u32 s{S_TAG+1}, s{S_TAG+1}, 0x7f4a7c15\ns_andn2_b32 s{S_TAG}, s{S_TAG+1}, 0xff")


def compute_waves(a, o):
    a("s_waitcnt lgkmcnt(0)")
    ln.ln_issue(a, S_X)
    read_tag(a)
    a(f"s_cmp_lg_u32 s20, 0\ns_cbranch_scc1 L_m_nz\nv_mov_b32 v58, {CNT_LDS}\nv_mov_b32 v60, 0\nv_mov_b32 v61, 0\nv_mov_b32 v62, 0\nv_mov_b32 v63, 0")
    a("ds_write_b128 v58, v[60:63]\ns_waitcnt lgkmcnt(0)\nL_m_nz:\ns_barrier")
    a(f"s_load_dwordx2 s[38:39], s[0:1], {KA['b1']}\ns_load_dwordx8 s[76:83], s[0:1], {KA['lar']}".replace("s[76:83]", "s[80:87]"))
    ln.ln_body(a, S_WS, LN_LDS, CNT_LDS, "ln")
    flags_srd(a, 40)
    make_tag(a)
    a("v_mov_b32 v61, 0\ns_cmp_lg_u32 s20, 3\ns_cbranch_scc1 L_m_nozero\ns_sub_u32 s23, s2, 28\ns_cmp_ge_u32 s23, 6\ns_cbranch_scc1 L_m_nozero")
    a("s_lshl_b32 s23, s2, 8\ns_mov_b64 exec, 1\nbuffer_store_dword v61, v61, s[40:43], s23 offen sc1\ns_mov_b64 exec, -1\nL_m_nozero:")
    if o["ln_lines"]:
        a(f"s_mul_i32 s24, s2, {o['lnw']}\ns_add_u32 s24, s24, {F_LNW}")
    else:
        a(f"s_and_b32 s24, s2, 63\ns_mul_i32 s24, s24, {o['lnw']}\ns_lshr_b32 s23, s2, 6\ns_lshl_b32 s23, s23, 2\ns_add_u32 s24, s24, s23\ns_add_u32 s24, s24, {F_LNW}")
    a("s_waitcnt vmcnt(0)\n; STAMP 1")
    last_wave_signals(a, "lnd", CNT_LDS + 4, 40, "s24", word=f"s{S_TAG+1}")
    a("s_cmp_ge_u32 s2, 216\ns_cbranch_scc1 L_m_conv")
    a("s_lshr_b32 s29, s2, 3\ns_lshl_b32 s29, s29, 2\ns_add_u32 s29, s29, s20")
    srd(a, 32, S_W1, W_BYTES_TOTAL)
    w1_burst(a, 32, 29, 108, o["r1"]//4*5, o["nB"])
    srd(a, 32, S_W2, W_BYTES_TOTAL)
    tile1(a)
    gc.lane_ids(a)
    gc.compute_setup(a, "A")
    srd(a, 8, 38, F*2)
    a(f"s_lshr_b32 s16, s20, 1\ns_lshl_b32 s17, s16, 7\ns_lshl_b32 s18, s14, 8\ns_add_u32 s17, s17, s18\nv_lshlrev_b32 v9, 3, v3")
    for nu in range(4):
        a(f"buffer_load_dwordx2 {vr(12+2*nu,2)}, v9, s[8:11], s17 offen offset:{32*nu}")
    for i in range(48):
        a(f"v_mov_b32 v{gc.V_ACC+i}, 0")
    srd_off(a, 44, S_WS, WS_G, G_BYTES)
    a("s_and_b32 s17, s20, 1\ns_mul_i32 s17, s17, 3\ns_mul_i32 s18, s15, 6\ns_add_u32 s17, s17, s18\ns_lshl_b32 s17, s17, 11")
    a("s_lshl_b32 s18, s14, 1\ns_add_u32 s18, s18, s16\ns_mul_i32 s18, s18, 73728\ns_add_u32 s17, s17, s18")
    a(f"s_mul_i32 s24, s15, 36\ns_add_u32 s24, s24, s14\ns_lshl_b32 s24, s24, 8\ns_add_u32 s24, s24, {F_GW}")
    a(f"s_load_dwordx4 s[52:55], s[0:1], {KA['b2']}")
    gc.compute_main(a, 32, "A", False, "g1", last_barrier=True, st=(5, 2))
    a("s_waitcnt vmcnt(0)")
    gelu_epilogue(a, o['rnd1'], o['rot'])
    a("s_cmp_lt_u32 s2, 192\ns_cbranch_scc1 L_m_g2\ns_waitcnt vmcnt(0)")
    last_wave_signals(a, "gd", CNT_LDS + 8, 40, "s24", word=f"s{S_TAG+1}")
    a("; STAMP 3\ns_branch L_m_conv1\nL_m_g2:")
    tile2(a)
    gc.compute_setup(a, "B", s_kh=19)
    srd(a, 32, S_X, X_BYTES); srd(a, 28, 52, S*2)
    a("s_lshr_b32 s17, s20, 1\ns_lshl_b32 s17, s17, 5\ns_add_u32 s17, s17, s16")
    a("s_mul_i32 s18, s15, 96\ns_and_b32 s26, s20, 1\ns_mul_i32 s26, s26, 48\ns_add_u32 s18, s18, s26")
    a("v_mul_u32_u24 v58, 1152, v2\nv_lshl_add_u32 v58, v3, 3, v58\nv_lshlrev_b32 v9, 1, v2")
    a("s_mul_i32 s56, s17, 1152\ns_lshl_b32 s26, s18, 1\ns_add_u32 s56, s56, s26\ns_add_u32 s57, s56, 18432\ns_lshl_b32 s26, s17, 1")
    a("s_mov_b32 s22, s26\nv_mov_b32 v39, v58")
    for i in range(48):
        a(f"v_mov_b32 v{gc.V_ACC+i}, 0")
    a("v_bfe_u32 v4, v1, 2, 2\nv_lshl_add_u32 v4, v3, 2, v4\nv_lshlrev_b32 v4, 7, v4\nv_and_b32 v5, 3, v1\nv_lshl_add_u32 v4, v5, 3, v4")
    a(f"s_and_b32 s26, s20, 1\ns_mul_i32 s26, s26, 6144\ns_lshr_b32 s27, s20, 1\ns_lshl_b32 s27, s27, 6\ns_add_u32 s26, s26, s27\ns_add_u32 s26, s26, {AT_LDS}\nv_add_u32 v59, s26, v4")
    a("v_mov_b32 v31, v59")
    a("s_xor_b32 s58, s2, 4\ns_lshl_b32 s26, s20, 13\ns_lshl_b32 s59, s58, 15\ns_add_u32 s59, s59, s26\ns_lshl_b32 s60, s2, 15\ns_add_u32 s60, s60, s26")

    def x_loads(a):
        for nu in range(2):
            for dl in range(3):
                a(f"buffer_load_dwordx2 {vr(10+2*(3*nu+dl),2)}, v39, s[32:35], s{56+nu} offen offset:{32*dl}{o['xnt']}")
            a(f"buffer_load_ushort v{22+nu}, v9, s[28:31], s22 offen offset:{32*nu}")

    def publish_g(a):
        a("s_waitcnt vmcnt(0)")
        last_wave_signals(a, "gd2", CNT_LDS + 8, 40, "s24", word=f"s{S_TAG+1}")
        a("; STAMP 3\n; SWAIT")
        if not o["x_late"]:
            x_loads(a)

    if o["late_sig"]:
        gc.compute_main(a, 36, "B", True, "g2", st=(5, 4), first_stage1=publish_g)
    else:
        publish_g(a)
        gc.compute_main(a, 36, "B", True, "g2", st=(5, 4))
    srd_off(a, 8, S_WS, WS_XCH, XCH_BYTES); srd(a, 44, 54, X_BYTES)
    a("v_mov_b32 v58, v39\nv_mov_b32 v59, v31")
    a("s_waitcnt vmcnt(0)\n; STAMP 5")
    SN = 172
    NG = 4 if o["xbf"] else 8
    for k in range(NG):
        for m in range(3):
            if o["xbf"]:
                a(f"v_cvt_pk_bf16_f32 v{SN+4*k+m}, v{gc.V_ACC+24+6*k+2*m}, v{gc.V_ACC+25+6*k+2*m}")
            else:
                a(f"v_mov_b32 v{SN+4*k+m}, v{gc.V_ACC+24+3*k+m}")
        a(f"v_mov_b32 v{SN+4*k+3}, s{S_TAG+1}")
        a(f"buffer_store_dwordx4 {vr(SN+4*k,4)}, v7, s[8:11], s59 offen sc1\ns_add_u32 s59, s59, 1024")
    if o["x_late"]:
        x_loads(a)
    a("s_barrier")
    AR, PF = 112, 124
    for nu in range(2):
        for dl in range(3):
            a(f"ds_read_b64_tr_b16 {vr(AR+2*(3*nu+dl),2)}, v59 offset:{2048*dl + 32*nu}")
    a("s_waitcnt vmcnt(0)\nv_lshlrev_b32 v22, 16, v22\nv_lshlrev_b32 v24, 16, v23\ns_waitcnt lgkmcnt(0)")
    for t in range(6):
        for h in range(2):
            unpk(a, 26, 10+2*t+h); unpk(a, 28, AR+2*t+h)
            if o["rnd2"]:
                a("v_pk_add_f32 v[26:27], v[26:27], v[28:29]\nv_cvt_pk_bf16_f32 v30, v26, v27")
                unpk(a, PF+4*t+2*h, 30)
            else:
                b = gc.V_ACC + 4*t + 2*h
                a(f"v_pk_add_f32 v[26:27], v[26:27], v[28:29]\nv_pk_add_f32 {vr(b,2)}, {vr(b,2)}, {vr(22+2*(t//3),2)} op_sel_hi:[1,0]")
                a(f"v_pk_add_f32 {vr(b,2)}, {vr(b,2)}, v[26:27]")
    RX = 204
    a(f"s_mov_b32 s61, {SPIN:#x}\ns_add_u32 s62, s60, 4096\nL_xch_poll:")
    for k in range(NG):
        a(f"buffer_load_dwordx4 {vr(RX+4*k,4)}, v7, s[8:11], s{60 + 2*(k >> 2)} offen offset:{1024*(k & 3)} sc1")
    a(f"s_sub_u32 s61, s61, 1\ns_cbranch_scc1 L_xch_go\ns_waitcnt vmcnt(0)\nv_xor_b32 v4, s{S_TAG+1}, v{RX+3}")
    for k in range(1, NG):
        a(f"v_xor_b32 v5, s{S_TAG+1}, v{RX+4*k+3}\nv_or_b32 v4, v4, v5")
    a("v_cmp_ne_u32 vcc, 0, v4\ns_cmp_eq_u64 vcc, 0\ns_cbranch_scc0 L_xch_poll\nL_xch_go:")
    for t in range(6):
        nu, dl = divmod(t, 3)
        b, p = gc.V_ACC + 4*t, PF + 4*t
        if o["xbf"]:
            for h in range(2):
                k, m = divmod(2*t + h, 3)
                unpk(a, 26+2*h, RX+4*k+m)
            for h in range(2): a(f"v_pk_add_f32 {vr(b+2*h,2)}, {vr(b+2*h,2)}, {vr(26+2*h,2)}")
        else:
            for e in range(4):
                k, m = divmod(4*t + e, 3)
                a(f"v_add_f32 v{b+e}, v{b+e}, v{RX+4*k+m}")
        if o['rnd2']:
            for h in range(2): a(f"v_cvt_pk_bf16_f32 v{26+h}, v{b+2*h}, v{b+2*h+1}")
            for h in range(2): unpk(a, b+2*h, 26+h)
            for h in range(2): a(f"v_pk_add_f32 {vr(b+2*h,2)}, {vr(b+2*h,2)}, {vr(22+2*nu,2)} op_sel_hi:[1,0]")
            for h in range(2): a(f"v_cvt_pk_bf16_f32 v{26+h}, v{b+2*h}, v{b+2*h+1}")
            for h in range(2): unpk(a, b+2*h, 26+h)
            for h in range(2): a(f"v_pk_add_f32 {vr(b+2*h,2)}, {vr(b+2*h,2)}, {vr(p+2*h,2)}")
        for h in range(2): a(f"v_cvt_pk_bf16_f32 v{10+2*t+h}, v{b+2*h}, v{b+2*h+1}")
        a(f"buffer_store_dwordx2 {vr(10+2*t,2)}, v58, s[44:47], s{56+nu} offen offset:{32*dl}{o['ont']}")
    a("s_endpgm")
    a("L_m_conv1:\ns_mov_b32 s30, 1\ns_sub_u32 s31, s2, 72\ns_lshl_b32 s31, s31, 2\ns_add_u32 s31, s31, s20\ns_branch L_m_conv2")
    a("L_m_conv:\ns_mov_b32 s30, 3\ns_sub_u32 s31, s2, 216\ns_lshl_b32 s31, s31, 2\ns_add_u32 s31, s31, s20\ns_mul_i32 s31, s31, 3\nL_m_conv2:")
    a("s_mul_i32 s29, s31, 683\ns_lshr_b32 s29, s29, 16")
    a(f"s_load_dwordx4 s[32:35], s[0:1], {KA['ldt']}\ns_waitcnt lgkmcnt(0)")
    cv.param_loads(a, 80, 32, 34)

    def signal(a):
        a("s_lshl_b32 s36, s29, 8")
        a(f"s_add_u32 s36, s36, {F_CONV}\nv_mov_b32 v4, 1\nv_mov_b32 v5, 0\ns_mov_b64 exec, 1\nbuffer_atomic_add v4, v5, s[8:11], s36 offen sc1")
    flags_srd(a, 8)
    cv.conv_role(a, "cv", S_WS, lambda a: wait_ln(a, "cvln", 8, o), signal)
    a("s_endpgm")


def fifth_wave(a, o):
    if o["prio"]:
        a(f"s_setprio {o['prio']}")
    a("s_waitcnt lgkmcnt(0)")
    flags_srd(a, 36)
    read_tag(a)
    if o["tlb"]:
        a(f"s_load_dwordx2 s[48:49], s[0:1], {KA['out']}")
        srd(a, 8, S_WS, WS_FLG + FLG_BYTES); srd(a, 16, S_W2, W_BYTES_TOTAL)
        a("v_lshlrev_b32 v4, 20, v1\nbuffer_load_dword v100, v4, s[8:11], 0 offen sc1\nbuffer_load_dword v101, v4, s[16:19], 0 offen")
    if o["touch"]:
        a(f"s_cmp_ge_u32 s2, 1\ns_cbranch_scc1 L_m_notouch\nv_mul_u32_u24 v5, {o['lnw']}, v1\ns_mov_b32 s23, {F_LNW}\nbuffer_load_dword v103, v5, s[36:39], s23 offen\nL_m_notouch:")
    srd(a, gc.SRD_W, S_W1, W_BYTES_TOTAL)
    a("s_barrier\ns_lshr_b32 s30, s2, 3")
    if o["code_pf"]:
        a("s_getpc_b64 s[12:13]\nL_m_pc:\ns_sub_u32 s12, s12, L_m_pc-L_m_base\ns_subb_u32 s13, s13, 0")
        a("s_mov_b32 s14, L_m_last-L_m_base\ns_mov_b32 s15, 0x20000\nv_lshlrev_b32 v4, 4, v1\ns_lshl_b32 s23, s30, 10")
        a("buffer_load_dwordx4 v[96:99], v4, s[12:15], s23 offen\ns_add_u32 s23, s23, 32768\nbuffer_load_dwordx4 v[96:99], v4, s[12:15], s23 offen")
    w1_stream(a, "m0", gc.SRD_W, 30, 32, 0, o["r1"], o["win1"])
    a("s_waitcnt lgkmcnt(0)")
    if o["tlb"]:
        a(f"s_mov_b32 s50, {X_BYTES}\ns_mov_b32 s51, 0x20000\nv_lshlrev_b32 v4, 20, v1\nbuffer_load_dword v102, v4, s[48:51], 0 offen")
    make_tag(a)
    a("; STAMP 0\ns_cmp_ge_u32 s2, 216\ns_cbranch_scc1 L_m_helper")
    tile1(a)
    gc.lane_ids(a)
    a(f"s_mul_i32 s{gc.S_ACT0}, s15, 12288\ns_lshl_b32 s{gc.S_W0}, s14, 8")
    gc.loader_setup(a, 0, 9216, "A")
    srd_off(a, gc.SRD_ACT, S_WS, WS_HT, HT_BYTES)
    ln_local_wait(a, "lw1")
    a("; STAMP 0")
    gc.w_prefill(a, range(4), 0, 9216)
    a("; STAMP 1")
    wait_ln(a, "l1", 36, o)
    a(f"; STAMP 2\ns_cmp_lg_u32 s2, 0\ns_cbranch_scc1 L_m_noseed\nv_mov_b32 v4, s{S_TAG+1}\nv_mov_b32 v5, {F_SEED}\ns_mov_b64 exec, 1")
    a("buffer_store_dword v4, v5, s[36:39], 0 offen sc1\ns_mov_b64 exec, -1\nL_m_noseed:")
    gc.loader_after_prefill(a, 32, 0, 9216, "g1", o["aflags"], tail=lambda a: None)
    srd(a, gc.SRD_W, S_W2, W_BYTES_TOTAL)
    a("s_cmp_lt_u32 s2, 192\ns_cbranch_scc1 L_m_l2")
    a("s_waitcnt vmcnt(28)\ns_barrier\ns_waitcnt vmcnt(0)\ns_barrier\ns_barrier\ns_sub_u32 s30, s2, 152\ns_lshr_b32 s30, s30, 3")
    ln_local_wait(a, "lw3", CNT_LDS+8)
    if o["x_pf"] == "early":
        srd(a, 8, S_X, X_BYTES); a("s_sub_u32 s31, s30, 5\ns_mul_i32 s31, s31, 3")
        for k in range(3):
            if k == 2:
                a("s_cmp_eq_u32 s31, 8\ns_cbranch_scc1 L_m_nox")
            x_stream(a, f"xe{k}", 8, 31)
            a("s_add_u32 s31, s31, 1")
        a("L_m_nox:")
    g_pause(a, "gp3", o)
    w2_stream(a, "m3", gc.SRD_W, 30, 8, o["r2"] + 96*o["nC"], 2304, o["win3"])
    if o["x_pf"] is True:
        srd(a, 8, S_X, X_BYTES); x_stream(a, "x3", 8, 30)
    a("s_endpgm\nL_m_l2:")
    tile2(a)
    a(f"s_mul_i32 s57, s15, 12288\ns_mul_i32 s18, s19, {36*73728}\ns_add_u32 s57, s57, s18")
    a(f"s_lshl_b32 s56, s14, 8\ns_mul_i32 s18, s19, {HALF2}\ns_add_u32 s56, s56, s18\ns_mov_b32 s54, -1\ns_mov_b32 s55, -1")
    jump = block_jump if o["rot"] else None
    if o["rot"]:
        a.extend(block_jump("w") + block_jump("a"))
    else:
        a(f"s_mov_b32 s{gc.S_W0}, s56\ns_mov_b32 s{gc.S_ACT0}, s57")
    gc.loader_setup(a, 0, 4096, "B")
    srd_off(a, gc.SRD_ACT, S_WS, WS_G, G_BYTES)
    e2 = o["early2"]
    for j, vm in enumerate((28, 0, None)):
        if j < e2:
            gc.w_prefill(a, [j], 0, 4096, jump)
        if vm is not None:
            a(f"s_waitcnt vmcnt({vm + 16*min(j+1, e2)})")
        a("s_barrier")
    a("; STAMP 5")
    gc.w_prefill(a, range(min(e2, 3), 4), 0, 4096, jump)
    a("v_mov_b32 v61, 0\n; STAMP 3")

    def wait_slot(a):
        a(f"s_mul_i32 s23, s15, 36\ns_mul_i32 s24, s19, 18\ns_add_u32 s23, s23, s24\ns_lshl_b32 s23, s23, 8\ns_add_u32 s23, s23, {F_GW}")
        a("v_and_b32 v60, 3, v1\nv_add_u32 v60, s13, v60\nv_lshlrev_b32 v60, 8, v60")
        poll(a, "l2a", 36, 60, "s23", f"s{S_TAG+1}")
        a("; STAMP 4\nv_min_u32 v60, 17, v1\nv_lshlrev_b32 v60, 8, v60\ns_mov_b32 s53, s23")

    def wait_half(a):
        poll(a, "l2b", 36, 60, "s53", f"s{S_TAG+1}")

    def at_dma(a):
        for e in range(12):
            a(f"s_mov_b32 m0, {AT_LDS + 1024*e}\nbuffer_load_dwordx4 v8, s[48:51], s26 offen sc1 lds\ns_add_u32 s26, s26, 32768")

    def at_early(a):
        srd_off(a, 48, S_WS, WS_AT, AT_BYTES)
        a(f"s_lshl_b32 s23, s15, 8\ns_add_u32 s23, s23, {F_CONV}\nbuffer_load_dword v62, v61, s[36:39], s23 offen sc1")
        a("v_lshrrev_b32 v8, 3, v1\nv_lshlrev_b32 v8, 12, v8\nv_and_b32 v9, 7, v1\nv_lshl_add_u32 v8, v9, 4, v8")
        a(f"s_mul_i32 s26, s15, {96*4096}\ns_lshl_b32 s27, s16, 1\ns_add_u32 s26, s26, s27")
        a("s_cmp_eq_u32 s15, 5\ns_cselect_b32 s24, 96, 32\ns_waitcnt vmcnt(0)\nv_readfirstlane_b32 s27, v62")
    if o["rot"]:
        gc.loader_after_prefill(a, 36, 0, 4096, "g2", o["aflags"], before_last=at_early, jump=block_jump, wait2=wait_slot, wait8=wait_half)
    else:
        ln_local_wait(a, "lw4", CNT_LDS+8)
        a(f"s_mul_i32 s53, s15, 36\ns_mul_i32 s24, s19, 18\ns_add_u32 s53, s53, s24\ns_lshl_b32 s53, s53, 8\ns_add_u32 s53, s53, {F_GW}")
        a("v_min_u32 v60, 17, v1\nv_lshlrev_b32 v60, 8, v60")
        wait_half(a)
        a("; STAMP 4")
        gc.loader_after_prefill(a, 36, 0, 4096, "g2", o["aflags"], before_last=at_early)
    a("s_cmp_eq_u32 s27, s24\ns_cbranch_scc1 L_at_go")
    poll(a, "at", 36, 61, "s23", "s24")
    at_dma(a)
    a("s_waitcnt vmcnt(0)\ns_barrier\ns_endpgm")
    a("L_m_helper:\ns_sub_u32 s30, s2, 216\ns_lshr_b32 s30, s30, 3")
    ln_local_wait(a, "lw2")
    w1_stream(a, "m1", gc.SRD_W, 30, 5, o["r1"] + 108*o["nB"]//5*4, 2048, o["win2"])
    a("; STAMP 1")
    srd(a, gc.SRD_W, S_W2, W_BYTES_TOTAL)
    if o["rot"]:
        w2_head(a, "mh", gc.SRD_W, 30, 5, o["win2"])
    w2_stream(a, "m2", gc.SRD_W, 30, 5, 512 if o["rot"] else 0, o["r2"], o["win2"])
    a("; STAMP 2")
    g_pause(a, "gp4", o)
    w2_stream(a, "m4", gc.SRD_W, 30, 8, o["r2"] + 96*o["nC"], 2304, o["win3"])
    if o["x_pf"] is True:
        srd(a, 8, S_X, X_BYTES); x_stream(a, "x4", 8, 30)


def mega(a, name, **opt):
    o = dict(uflags='', rot=False, x_pf=True, ln_lines=False, x_late=True, late_sig=False, pause=0, xbf=True, rnd1=0, rnd2=0, prio=0, lnw=256, slp=1, touch=True, tlb=True, early2=3, xnt='', ont='', prefill_late=True, r1=512, nB=6, r2=400, nC=0, win1=20, win2=40, win3=40, aflags=" sc1", code_pf=9)
    o.update(opt)
    prefetch.ROT = o["rot"]
    cv.UFLAGS = o["uflags"]
    a(f".globl {name}\n.p2align 8\n.type {name},@function\n{name}:\nL_m_base:")
    a("s_cmp_ge_u32 s2, 256\ns_cbranch_scc1 L_m_end")
    a(f"s_load_dwordx2 s[{S_X}:{S_X+1}], s[0:1], {KA['x']}\ns_load_dwordx2 s[{S_WS}:{S_WS+1}], s[0:1], {KA['ws']}")
    a(f"s_load_dwordx2 s[{S_W1}:{S_W1+1}], s[0:1], {KA['w1']}\ns_load_dwordx2 s[{S_W2}:{S_W2+1}], s[0:1], {KA['w2']}")
    a("v_lshrrev_b32 v1, 6, v0\nv_readfirstlane_b32 s20, v1\nv_and_b32 v1, 63, v0")
    a("s_cmp_eq_u32 s20, 4\ns_cbranch_scc1 L_m_w4")
    compute_waves(a, o)
    a("L_m_w4:")
    fifth_wave(a, o)
    a("L_m_end:\ns_endpgm\nL_m_last:")
```

```python
from asmlib import *
from layout import *

KP = 272
TAB = 57 * KP
OFF_A = 64
OFF_B = OFF_A + 4160
UBLK = 768
OFF_UPAD = TAB
OFF_U = TAB + 2 * UBLK
REGION = OFF_U + 16 * UBLK

V_T = (64, 128)
V_U = (96, 160)
V_ACC = 192
V_AT, V_AU = 20, 50
V_OUT, V_GA, V_TW = 25, 26, 27
V_ID = 28
V_PAR = 224
V_DT, V_DS = 248, 249
V_EX = 44


def rnd(a, v):
    a(f"v_cvt_pk_bf16_f32 v{v}, v{v}, v{v}\nv_lshlrev_b32 v{v}, 16, v{v}")


def cmul(a, d, x, y):
    a(f"v_pk_mul_f32 {vr(d,2)}, {vr(x,2)}, {vr(y,2)} op_sel_hi:[0,1]")
    a(f"v_pk_fma_f32 {vr(d,2)}, {vr(x,2)}, {vr(y,2)}, {vr(d,2)} op_sel:[1,1,0] op_sel_hi:[1,0,1] neg_lo:[0,1,0]")


def tables(a):
    P = V_PAR
    a(f"v_lshlrev_b32 v10, 16, v{P}\nv_lshlrev_b32 v11, 16, v{P+1}\nv_lshlrev_b32 v12, 16, v{P+2}\nv_lshlrev_b32 v13, 16, v{P+3}")
    a("v_mul_f32 v10, s48, v10\nv_exp_f32 v10, v10\nv_mul_f32 v11, v11, v14\nv_mul_f32 v12, v12, v14\nv_mul_f32 v13, v13, v14")
    rnd(a, 10)
    a("v_mul_f32 v10, v10, v14\nv_mul_f32 v11, 0.15915494, v11\nv_mul_f32 v10, s48, v10")
    W = lambda c: 64 + 2*(c-1)
    U1, T = 78, 80
    ub, Y, Z = [82, 84], [86, 88], [90, 92]
    a(f"v_add_f32 v{Y[0]}, v12, v12\nv_add_f32 v{Y[0]+1}, v13, v13")
    for dst, p in ((W(1), 1.0), (U1, 8.0), (T, 128.0)):
        a(f"v_mul_f32 v5, {-p}, v10\nv_mul_f32 v6, {p}, v11")
        a("v_exp_f32 v5, v5\nv_fract_f32 v6, v6\nv_cos_f32 v7, v6\nv_sin_f32 v8, v6")
        a(f"v_mul_f32 v{dst}, v5, v7\nv_mul_f32 v{dst+1}, v5, v8")
    cnt = [0]
    pend = []

    def put(row, src, conj):
        t = 94 + cnt[0] % 4; cnt[0] += 1
        a(f"v_cvt_pk_bf16_f32 v{t}, v{src}, {'-' if conj else ''}v{src+1}\nds_write_b32 v{V_TW}, v{t} offset:{row*KP}")
    cmul(a, W(2), W(1), W(1)); cmul(a, W(3), W(2), W(1)); cmul(a, W(4), W(2), W(2))
    cmul(a, W(5), W(4), W(1)); cmul(a, W(6), W(4), W(2)); cmul(a, W(7), W(4), W(3))
    a(f"v_mov_b32 v98, 0x3f80\nds_write_b32 v{V_TW}, v98 offset:{41*KP}")
    put(42, U1, False)
    prev_u = U1
    for i in range(17):
        y = Y[i % 2]
        if i < 16:
            cmul(a, Y[(i+1) % 2], y, T)
        if i < 14:
            cmul(a, ub[i % 2], prev_u, U1)
        if i < 2:
            put(8*i, y, True)
            for c in range(1, 8):
                cmul(a, Z[c % 2], y, W(c)); put(8*i + c, Z[c % 2], True)
        elif i < 4:
            put(16 + 4*(i-2), y, True)
            for c in range(1, 4):
                cmul(a, Z[c % 2], y, W(2*c)); put(16 + 4*(i-2) + c, Z[c % 2], True)
        elif i < 8:
            put(24 + 2*(i-4), y, True)
            cmul(a, Z[0], y, W(4)); put(24 + 2*(i-4) + 1, Z[0], True)
        else:
            put(32 + i - 8, y, True)
        if i < 14:
            put(43 + i, ub[i % 2], False); prev_u = ub[i % 2]


def kgen(a, tag, mid):
    a(f"v_readlane_b32 s40, v{V_DT}, s38\ns_lshl_b32 s40, s40, 16\nv_mov_b32 v14, s48\nv_mul_f32 v14, s40, v14\nv_exp_f32 v14, v14")
    for i in range(12):
        a(f"v_mov_b32 v{100+i}, 0")
    rnd(a, 14)
    a(f"s_mov_b32 s41, 0\nL_{tag}_half:")
    tables(a)
    for i in range(4):
        a(f"v_lshrrev_b32 v{V_PAR+i}, 16, v{V_PAR+i}")
    fs = lambda ks, k: 112 + 16*ks + 4*k
    for ks in range(4):
        a(f"ds_read_b128 {vr(fs(ks,3),4)}, v{V_GA} offset:{41*KP + 64*ks}")
        for t in range(3):
            a(f"ds_read_b128 {vr(fs(ks,t),4)}, v{V_GA} offset:{16*t*KP + 64*ks}")
        if ks == 2:
            a("s_waitcnt lgkmcnt(8)")
    for ks in range(4):
        a(f"s_waitcnt lgkmcnt({12 - 4*ks})")
        for t in range(3):
            a(f"v_mfma_f32_16x16x32_bf16 {vr(100+4*t,4)}, {vr(fs(ks,t),4)}, {vr(fs(ks,3),4)}, {vr(100+4*t,4)}")
    mid(a)
    a(f"s_add_u32 s41, s41, 1\ns_cmp_lt_u32 s41, 2\ns_cbranch_scc1 L_{tag}_half")
    for i in range(4):
        a(f"v_pk_mov_b32 {vr(V_PAR+2*i,2)}, {vr(V_PAR+2*i+4,2)}, {vr(V_PAR+2*i+4,2)} op_sel:[0,1]")
    E = V_EX
    a(f"v_mov_b32 v4, 0\nv_mov_b32 v5, 0\nds_write_b64 v{E+5}, v[4:5] offset:{OFF_A+4096}\nds_write_b64 v{E+5}, v[4:5] offset:{OFF_B+4096}")
    for r in range(4):
        v = 108 + r; b = 64 + 4*r
        a(f"v_mov_b32_dpp v{80+r}, v{v} quad_perm:[0,0,2,2] row_mask:0xf bank_mask:0xf")
        a(f"v_cvt_pk_bf16_f32 v{b}, v{v}, v{v}\nv_cvt_pk_bf16_f32 v{b+3}, v{v}, v{80+r}\nv_mov_b32 v{b+1}, v{b}\nv_mov_b32 v{b+2}, v{b}")
    for r in range(4):
        b = 64 + 4*r
        a(f"s_mov_b32 exec_hi, {1 if r == 0 else 0}")
        a(f"ds_write2_b64 v{E}, {vr(b,2)}, {vr(b+2,2)} offset0:{32*(3-r)} offset1:{32*(3-r)+1}")
    a("s_mov_b32 exec_hi, -1")
    for q in range(2):
        v0, v1 = 104 + 2*q, 105 + 2*q
        a(f"v_cvt_pk_bf16_f32 v{84+3*q}, v{v1}, v{v1}\nv_cvt_pk_bf16_f32 v{85+3*q}, v{v1}, v{v0}\nv_cvt_pk_bf16_f32 v{86+3*q}, v{v0}, v{v0}")
    a("v_cvt_pk_bf16_f32 v90, v107, v107\nv_cvt_pk_bf16_f32 v91, v106, v106\nv_cvt_pk_bf16_f32 v92, v106, v105\nv_cvt_pk_bf16_f32 v93, v104, v104")
    a("v_cvt_pk_bf16_f32 v94, v103, v102\nv_cvt_pk_bf16_f32 v95, v101, v100")
    a("s_mov_b32 exec_lo, 0")
    for q in range(2):
        o = 64*(1-q)
        a(f"ds_write2_b32 v{E+1}, v{84+3*q}, v{85+3*q} offset0:{o} offset1:{o+1}\nds_write2_b32 v{E+1}, v{86+3*q}, v{86+3*q} offset0:{o+2} offset1:{o+3}")
    a("s_mov_b32 exec_lo, -1\ns_mov_b32 exec_hi, 0")
    a(f"ds_write_b16 v{E+2}, v90\nds_write2_b32 v{E+3}, v91, v92 offset0:0 offset1:1\nds_write_b32 v{E+3}, v93 offset:8\nds_write_b16 v{E+2}, v93 offset:14")
    a(f"s_mov_b32 exec_hi, -1\nds_write_b64 v{E+4}, v[94:95]")
    a("v_lshl_add_u32 v9, v1, 4, s34")
    for k in range(4):
        a(f"ds_read_b128 {vr(64+4*k,4)}, v9 offset:{OFF_A + 1024*k}\nds_read_b32 v{80+k}, v9 offset:{OFF_A + 1024*k + 16}")
    for k in range(4):
        a(f"s_waitcnt lgkmcnt({6-k})")
        b = 64 + 4*k
        for m in range(4):
            a(f"v_alignbit_b32 v{84+4*k+m}, v{b+m+1 if m < 3 else 80+k}, v{b+m}, 16")
        a(f"ds_write_b128 v9, {vr(84+4*k,4)} offset:{OFF_B + 1024*k}")


def reads(s, rho):
    r = 2*rho + 1
    T = lambda q, h: (f"ds_read2_b32 {vr(V_T[s]+4*q+2*h, 2)}, v{V_AT + (q >> 1)} "
                      f"offset0:{128*(1-(q & 1)) + 16*(7-rho) + 2*h} offset1:{128*(1-(q & 1)) + 16*(7-rho) + 2*h + 1}")
    U = lambda p: f"ds_read_b128 {vr(V_U[s]+4*p, 4)}, v{V_AU+rho} offset:{2*UBLK*p}"
    out = [T(0, 0), T(0, 1)] + [U(p) for p in range(8)]
    for q in range(1, 8):
        out += [T(q, 0), T(q, 1)]
    return out


UFLAGS = " sc1"


def u_dma(a):
    a("v_lshrrev_b32 v4, 4, v1\nv_add_u32 v4, s31, v4\nv_lshrrev_b32 v5, 4, v4\nv_and_b32 v4, 15, v4\nv_lshlrev_b32 v4, 4, v4\nv_lshl_add_u32 v4, v5, 16, v4")
    a("v_and_b32 v5, 15, v1\nv_lshl_add_u32 v2, v5, 8, v4\ns_lshl_b32 s32, s30, 4\ns_lshl_b64 s[32:33], 1, s32\ns_sub_u32 s32, s32, 1\ns_subb_u32 s33, s33, 0")
    a("s_mov_b64 exec, s[32:33]")
    for e in range(16):
        a(f"s_add_u32 m0, s34, {OFF_U + UBLK*e}\ns_mov_b32 s33, {4096*e}\nbuffer_load_dwordx4 v2, s[16:19], s33 offen{UFLAGS} lds")
    a("s_mov_b64 exec, -1")


def param_loads(a, s_par, s_ldt, s_dsk):
    for i, d in enumerate((24, 44, 48, 52)):
        srd(a, d, s_par + 2*i, D*NST*2)
    srd(a, 56, s_ldt, D*2); srd(a, 60, s_dsk, D*2)
    a("s_lshl_b32 s37, s31, 1\ns_lshl_b32 s36, s31, 8\nv_lshlrev_b32 v254, 2, v1\nv_lshlrev_b32 v255, 1, v1")
    a(f"buffer_load_ushort v{V_DT}, v255, s[56:59], s37 offen\nbuffer_load_ushort v{V_DS}, v255, s[60:63], s37 offen")
    for k in range(3):
        for i, d in enumerate((24, 44, 48, 52)):
            a(f"buffer_load_dword v{V_PAR + 4*k + i}, v254, s[{d}:{d+3}], s36 offen offset:{256*k}")


def conv_role(a, tag, s_ws, wait_ln, signal):
    srd_off(a, 16, s_ws, WS_XNT, XNT_BYTES); srd_off(a, 24, s_ws, WS_AT, AT_BYTES)
    a(f"s_mul_i32 s34, s20, {REGION}\ns_mov_b32 s48, {LOG2E:#x}\nv_lshl_add_u32 v{V_TW}, v1, 2, s34")
    a("v_mov_b32 v4, 0\nv_mov_b32 v5, 0\nv_lshl_add_u32 v6, v1, 3, s34")
    for k in range(3):
        a(f"ds_write_b64 v6, v[4:5] offset:{OFF_UPAD + 512*k}")
    a("v_and_b32 v8, 15, v1\nv_lshrrev_b32 v9, 4, v1")
    a(f"v_add_u32 v10, 1, v8\nv_lshrrev_b32 v10, 1, v10\nv_lshlrev_b32 v11, 2, v9\nv_sub_u32 v10, v11, v10\nv_add_u32 v10, {776 + OFF_A//4}, v10")
    a(f"v_and_b32 v11, 1, v8\nv_xor_b32 v11, 1, v11\nv_mul_u32_u24 v11, {4160//4 - 1}, v11\nv_add_u32 v10, v10, v11\nv_lshl_add_u32 v{V_AT}, v10, 2, s34")
    for k in range(1, 4):
        a(f"v_subrev_u32 v{V_AT+k}, {1024*k}, v{V_AT}")
    a(f"v_lshl_add_u32 v11, v8, 1, v9\ns_add_u32 s36, s34, {OFF_UPAD}")
    for rho in range(8):
        a(f"v_add_u32 v12, {32 - 2*(2*rho+1)}, v11\nv_lshrrev_b32 v13, 4, v12\nv_mul_u32_u24 v13, {UBLK}, v13\nv_and_b32 v12, 15, v12")
        a(f"v_lshl_add_u32 v12, v12, 4, v13\nv_add_u32 v{V_AU+rho}, s36, v12")
    a("v_lshlrev_b32 v10, 5, v8")
    a(f"v_lshl_add_u32 v{V_OUT}, v9, 3, v10")
    a(f"v_mul_u32_u24 v10, {KP}, v8\nv_lshl_add_u32 v10, v9, 4, v10\nv_add_u32 v{V_GA}, s34, v10")
    a("v_lshlrev_b32 v10, 3, v9\nv_sub_u32 v10, v8, v10\nv_add_u32 v10, 16, v10\nv_mov_b32 v11, 0xffff\nv_mov_b32 v12, 0xffff0000")
    for m in range(4):
        a(f"v_cmp_eq_u32 vcc, {2*m}, v10\nv_cndmask_b32 v13, 0, v11, vcc\nv_cmp_eq_u32 vcc, {2*m+1}, v10\nv_cndmask_b32 v{V_ID+m}, v13, v12, vcc")
    E = V_EX
    a(f"s_add_u32 s36, s34, {OFF_A}\nv_lshlrev_b32 v10, 4, v8")
    a(f"v_lshl_add_u32 v11, v9, 10, v10\nv_sub_u32 v11, 1272, v11\nv_add_u32 v{E}, s36, v11")
    a(f"v_lshl_add_u32 v11, v9, 9, v10\nv_sub_u32 v11, 3828, v11\nv_add_u32 v{E+1}, s36, v11")
    a(f"v_lshl_add_u32 v11, v9, 8, v10\nv_sub_u32 v11, 3570, v11\nv_add_u32 v{E+2}, s36, v11\nv_add_u32 v{E+3}, 2, v{E+2}")
    a(f"v_lshrrev_b32 v11, 1, v9\nv_lshl_add_u32 v11, v11, 8, v10\nv_and_b32 v12, 1, v9\nv_lshl_add_u32 v11, v12, 3, v11\nv_sub_u32 v11, 4088, v11\nv_add_u32 v{E+4}, s36, v11")
    a(f"v_and_b32 v11, 7, v1\nv_lshl_add_u32 v{E+5}, v11, 3, s34")
    a(f"s_mov_b32 s38, 0\ns_lshr_b32 s35, s30, 1\ns_cmp_eq_u32 s35, 1\ns_cbranch_scc1 L_{tag}_late")
    wait_ln(a, "1")
    u_dma(a)
    a(f"s_branch L_{tag}_round\nL_{tag}_late:\ns_waitcnt vmcnt(0)\nL_{tag}_round:\n; STAMP 3")

    def mid(a):
        a(f"s_cmp_lg_u32 s35, 1\ns_cbranch_scc1 L_{tag}_have\n; STAMP 2\ns_mov_b32 s35, 0")
        wait_ln(a, "3")
        u_dma(a)
        a(f"L_{tag}_have:")
    kgen(a, tag, mid)
    a("; STAMP 4")
    a(f"v_readlane_b32 s40, v{V_DS}, s38\ns_lshl_b32 s41, s40, 16\ns_or_b32 s40, s40, s41")
    for m in range(4):
        a(f"v_and_b32 v{V_ID+4+m}, s40, v{V_ID+m}")
    a("s_lshl_b32 s39, s31, 12\ns_add_u32 s31, s31, 1")
    a("s_waitcnt vmcnt(0) lgkmcnt(0)\n; STAMP 5\n; SWAIT")
    a.extend(reads(0, 0)[:14])
    a("s_waitcnt lgkmcnt(4)")
    a.extend(reads(0, 0)[14:])
    for rho in range(8):
        s = rho & 1
        ms = []
        for q in range(8):
            for p in range(8-q):
                c = "0" if (rho == 0 and q == 0) else vr(V_ACC+4*(q+p), 4)
                ms.append(f"v_mfma_f32_16x16x32_bf16 {vr(V_ACC+4*(q+p),4)}, {vr(V_T[s]+4*q,4)}, {vr(V_U[s]+4*p,4)}, {c}")
            if rho == 0 and q == 0:
                for p in range(8):
                    ms.append(f"v_mfma_f32_16x16x32_bf16 {vr(V_ACC+4*p,4)}, {vr(V_ID+4,4)}, {vr(V_U[s]+4*p,4)}, {vr(V_ACC+4*p,4)}")
        gaps = [[] for _ in ms]
        if rho == 0:
            gaps[14].append("s_waitcnt lgkmcnt(0)")
            first = 15
        else:
            a("s_waitcnt lgkmcnt(0)")
            first = 0
        if rho < 7:
            for i, x in enumerate(reads(s ^ 1, rho+1)):
                gaps[first + i].append(x)
        a.extend(interleave(ms, gaps))
    for t in range(8):
        b = V_ACC + 4*t
        a(f"v_cvt_pk_bf16_f32 v{64+2*t}, v{b}, v{b+1}\nv_cvt_pk_bf16_f32 v{65+2*t}, v{b+2}, v{b+3}")
        a(f"buffer_store_dwordx2 {vr(64+2*t,2)}, v{V_OUT}, s[24:27], s39 offen offset:{512*t} sc1")
    for rho in range(8):
        a(f"v_add_u32 v{V_AU+rho}, 256, v{V_AU+rho}")
    a(f"s_add_u32 s38, s38, 1\ns_cmp_lt_u32 s38, s30\ns_cbranch_scc1 L_{tag}_round")
    a("s_waitcnt vmcnt(0)")
    signal(a)
```

```python
from asmlib import *
from layout import *

PITCH = 1216
LN_T = 8 * PITCH
X = 20
T = 40


def half_sum(a, v, t):
    for c in ("row_ror:1", "row_ror:2", "row_ror:4", "row_ror:8"):
        a(f"v_add_f32_dpp v{v}, v{v}, v{v} {c} row_mask:0xf bank_mask:0xf")
    a(f"v_mov_b32 v{t}, v{v}\nv_permlane16_swap_b32 v{t}, v{v}\nv_add_f32 v{v}, v{v}, v{t}")


def unpack(a, p, x, n=9):
    for k in range(n):
        a(f"v_lshlrev_b32 v{x+2*k}, 16, v{p+k}\nv_and_b32 v{x+2*k+1}, 0xffff0000, v{p+k}")


def rnd(a, v):
    a(f"v_cvt_pk_bf16_f32 v{v}, v{v}, v{v}\nv_lshlrev_b32 v{v}, 16, v{v}")


def layernorm(a, p):
    pr = lambda b: vr(b, 2)
    for k in range(4):
        a(f"v_pk_add_f32 {pr(T+2*k)}, {pr(X+4*k)}, {pr(X+4*k+2)}")
    a(f"v_pk_add_f32 {pr(T)}, {pr(T)}, {pr(T+2)}\nv_pk_add_f32 {pr(T+4)}, {pr(T+4)}, {pr(T+6)}")
    a(f"v_pk_add_f32 {pr(T)}, {pr(T)}, {pr(X+16)}\nv_pk_add_f32 {pr(T)}, {pr(T)}, {pr(T+4)}\nv_add_f32 v58, v{T}, v{T+1}")
    half_sum(a, 58, 59)
    a("v_mul_f32 v60, 0x3ae38e39, v58")
    for k in range(9):
        a(f"v_pk_add_f32 {pr(T+2*k)}, {pr(X+2*k)}, v[60:61] op_sel_hi:[1,0] neg_lo:[0,1] neg_hi:[0,1]")
    a(f"v_pk_mul_f32 v[58:59], {pr(T)}, {pr(T)}\nv_pk_mul_f32 v[62:63], {pr(T+2)}, {pr(T+2)}")
    for k in range(2, 9):
        d = "v[58:59]" if k % 2 == 0 else "v[62:63]"
        a(f"v_pk_fma_f32 {d}, {pr(T+2*k)}, {pr(T+2*k)}, {d}")
    a("v_pk_add_f32 v[58:59], v[58:59], v[62:63]\nv_add_f32 v58, v58, v59")
    rnd(a, 60)
    a("v_add_f32_dpp v58, v58, v58 row_ror:1 row_mask:0xf bank_mask:0xf")
    sub = [f"v_pk_add_f32 {pr(T+2*k)}, {pr(X+2*k)}, v[60:61] op_sel_hi:[1,0] neg_lo:[0,1] neg_hi:[0,1]" for k in range(9)]
    for i, c in enumerate(("row_ror:2", "row_ror:4", "row_ror:8")):
        a.extend(sub[2*i:2*i+2])
        a(f"v_add_f32_dpp v58, v58, v58 {c} row_mask:0xf bank_mask:0xf")
    a("v_mov_b32 v59, v58")
    a.extend(sub[6:8])
    a("v_permlane16_swap_b32 v59, v58")
    a(sub[8])
    a("v_add_f32 v58, v58, v59\nv_mul_f32 v62, 0x3ae38e39, v58")
    cvt = [f"v_cvt_pk_bf16_f32 v{p+k}, v{T+2*k}, v{T+2*k+1}" for k in range(9)]
    rnd(a, 62)
    a("v_add_f32 v62, 0x3727c5ac, v62")
    rnd(a, 62)
    a("v_sqrt_f32 v62, v62")
    a.extend(cvt[:4])
    rnd(a, 62)
    a("v_rcp_f32 v62, v62")
    a.extend(cvt[4:])
    unpack(a, p, X)
    for k in range(9):
        a(f"v_pk_mul_f32 {pr(X+2*k)}, {pr(X+2*k)}, v[62:63] op_sel_hi:[1,0]")
    for k in range(9):
        a(f"v_cvt_pk_bf16_f32 v{p+k}, v{X+2*k}, v{X+2*k+1}")


def ln_issue(a, s_x):
    srd(a, 8, s_x, X_BYTES)
    a("s_lshl_b32 s22, s2, 2\ns_add_u32 s22, s22, s20\ns_mul_i32 s22, s22, 2304")
    a("v_lshrrev_b32 v4, 5, v1\nv_and_b32 v5, 31, v1\nv_mul_u32_u24 v6, 1152, v4\nv_lshl_add_u32 v2, v5, 4, v6\nv_lshl_add_u32 v3, v5, 2, v6")
    a("buffer_load_dwordx4 v[10:13], v2, s[8:11], s22 offen nt\nbuffer_load_dwordx4 v[14:17], v2, s[8:11], s22 offen offset:512 nt")
    a("buffer_load_dword v18, v3, s[8:11], s22 offen offset:1024 nt")


def ln_body(a, s_ws, lds_base, lds_cnt, tag):
    srd_off(a, 12, s_ws, WS_HT, HT_BYTES)
    srd_off(a, 16, s_ws, WS_XNT, XNT_BYTES)
    a(f"s_mul_i32 s23, s20, {2*PITCH}\ns_add_u32 s23, s23, {lds_base}\nv_mul_u32_u24 v6, {PITCH}, v4\nv_add_u32 v6, s23, v6")
    a("v_lshl_add_u32 v2, v5, 4, v6\nv_lshl_add_u32 v3, v5, 2, v6")
    a("v_and_b32 v5, 15, v1\nv_lshrrev_b32 v6, 4, v1\nv_bfe_u32 v7, v1, 2, 2\nv_and_b32 v8, 3, v1")
    a(f"v_mul_u32_u24 v7, {PITCH}, v7\nv_lshl_add_u32 v7, v8, 3, v7\nv_lshl_add_u32 v7, v6, 5, v7")
    a(f"s_lshl_b32 s23, s20, 7\ns_add_u32 s23, s23, {lds_base}\nv_add_u32 v7, s23, v7")
    a("v_lshlrev_b32 v9, 16, v6\nv_lshl_add_u32 v9, v5, 4, v9")
    a("s_lshl_b32 s24, s20, 18\ns_lshl_b32 s23, s2, 8\ns_add_u32 s24, s24, s23")
    a("v_lshlrev_b32 v19, 11, v6\nv_lshl_add_u32 v19, v5, 4, v19")
    a("s_lshr_b32 s25, s2, 3\ns_mul_i32 s25, s25, 73728\ns_and_b32 s23, s2, 7\ns_lshl_b32 s23, s23, 8\ns_add_u32 s21, s25, s23\ns_lshl_b32 s23, s20, 13\ns_add_u32 s25, s21, s23")
    a("s_waitcnt vmcnt(0)\n; STAMP 0")
    unpack(a, 10, X)
    layernorm(a, 10)
    a("ds_write_b128 v2, v[10:13]\nds_write_b128 v2, v[14:17] offset:512\nds_write_b32 v3, v18 offset:1024")
    unpack(a, 10, X)
    layernorm(a, 64)
    a(f"ds_write_b128 v2, v[64:67] offset:{LN_T}\nds_write_b128 v2, v[68:71] offset:{LN_T+512}\nds_write_b32 v3, v72 offset:{LN_T+1024}")
    a(f"v_mov_b32 v58, {lds_cnt}\nv_mov_b32 v59, 1\ns_waitcnt lgkmcnt(0)\ns_mov_b64 exec, 1\nds_add_u32 v58, v59\ns_mov_b64 exec, -1")
    a(f"L_{tag}_meet:\nds_read_b32 v60, v58\ns_waitcnt lgkmcnt(0)\nv_readfirstlane_b32 s23, v60\ns_cmp_lt_u32 s23, 4\ns_cbranch_scc1 L_{tag}_meet")
    for k in range(2):
        for t in (1, 0):
            b = 24 + 8*k + 4*t
            a(f"ds_read_b64_tr_b16 {vr(b,2)}, v7 offset:{t*LN_T + 512*k}\nds_read_b64_tr_b16 {vr(b+2,2)}, v7 offset:{t*LN_T + 512*k + 4*PITCH}")
    a(f"s_cmp_ge_u32 s20, 2\ns_cbranch_scc1 L_{tag}_no8")
    a(f"s_mul_i32 s23, s20, {LN_T+128}\ns_sub_u32 s23, {LN_T+1024}, s23\nv_add_u32 v8, s23, v7")
    a(f"ds_read_b64_tr_b16 v[40:41], v8\nds_read_b64_tr_b16 v[42:43], v8 offset:{4*PITCH}")
    a(f"s_lshl_b32 s23, s2, 8\ns_add_u32 s23, s23, {8 << 18}\ns_cmp_eq_u32 s20, 0\ns_waitcnt lgkmcnt(0)\ns_cbranch_scc1 L_{tag}_h8")
    a(f"buffer_store_dwordx4 v[40:43], v9, s[16:19], s23 offen sc1\ns_branch L_{tag}_no8\nL_{tag}_h8:")
    a(f"s_add_u32 s23, s21, {8 << 13}\nbuffer_store_dwordx4 v[40:43], v19, s[12:15], s23 offen sc1\nL_{tag}_no8:\ns_waitcnt lgkmcnt(0)")
    for k in range(2):
        a(f"buffer_store_dwordx4 {vr(28+8*k,4)}, v19, s[12:15], s25 offen sc1\nbuffer_store_dwordx4 {vr(24+8*k,4)}, v9, s[16:19], s24 offen sc1")
        if k == 0:
            a(f"s_add_u32 s24, s24, {4 << 18}\ns_add_u32 s25, s25, {4 << 13}")
```

```python
from asmlib import *
from layout import *

HALF2 = 2304 * 4096


def w1_stream(a, tag, rs, hid, nh, row0, row1, window, both=True):
    n = -(-(row1 - row0) // (4 * nh))
    if n <= 0:
        return
    a("v_and_b32 v1, 63, v0\nv_lshrrev_b32 v30, 4, v1\nv_mul_u32_u24 v30, 9216, v30\nv_and_b32 v31, 15, v1\nv_lshl_add_u32 v30, v31, 4, v30")
    a("s_and_b32 s42, s2, 1\ns_and_b32 s40, s2, 7\ns_mul_i32 s40, s40, 9\ns_add_u32 s40, s40, 1\ns_lshr_b32 s40, s40, 1\ns_lshl_b32 s40, s40, 8")
    a(f"s_mul_i32 s41, s{hid}, 36864\ns_add_u32 s40, s40, s41\ns_add_u32 s40, s40, {row0*9216}")
    a(f"s_mul_i32 s43, s42, 1280\ns_sub_u32 s43, 1024, s43\ns_add_u32 s42, s42, s{hid}")
    a(f"s_mov_b32 s44, {n}\nL_{tag}_pw1:")
    for i in range(4):
        a(f"buffer_load_dwordx4 v[{64+4*i}:{67+4*i}], v30, s[{rs}:{rs+3}], s40 offen offset:{256*i}")
    if not both:
        a(f"s_bitcmp1_b32 s42, 0\ns_cbranch_scc1 L_{tag}_sk1")
    a(f"s_add_u32 s41, s40, s43\nbuffer_load_dwordx4 v[80:83], v30, s[{rs}:{rs+3}], s41 offen\nL_{tag}_sk1:")
    a(f"s_add_u32 s42, s42, {nh | 1}\ns_add_u32 s40, s40, {nh*36864}\ns_waitcnt vmcnt({window})\ns_sub_u32 s44, s44, 1\ns_cmp_lg_u32 s44, 0\ns_cbranch_scc1 L_{tag}_pw1")


ROT = True


def w2_start(a, d, hid, row0):
    a(f"s_and_b32 s41, s2, 3\ns_lshl_b32 s42, s41, 10\ns_mul_i32 s41, s41, 9\ns_add_u32 s41, s41, 1\ns_lshr_b32 s41, s41, 1\ns_lshl_b32 s41, s41, 7")
    if not ROT:
        a("s_mov_b32 s41, 0")
    a(f"s_add_u32 s41, s41, s{hid}\ns_add_u32 s41, s41, {row0}\ns_cmp_ge_u32 s41, 2304\ns_cselect_b32 s43, 2304, 0\ns_sub_u32 s41, s41, s43\ns_lshl_b32 s41, s41, 12")
    a(f"s_bfe_u32 s43, s2, 0x10002\ns_mul_i32 s43, s43, {HALF2}\ns_add_u32 s42, s42, s43\ns_add_u32 s{d}, s41, s42\ns_add_u32 s42, s42, {HALF2}")


def w2_stream(a, tag, rs, hid, nh, row0, row1, window):
    n = -(-(row1 - row0) // (4 * nh))
    if n <= 0:
        return
    a("v_and_b32 v1, 63, v0\nv_lshlrev_b32 v30, 4, v1")
    w2_start(a, 40, hid, row0)
    a(f"s_mov_b32 s44, {n}\nL_{tag}_pw2:")
    for i in range(4):
        a(f"buffer_load_dwordx4 v[{64+4*i}:{67+4*i}], v30, s[{rs}:{rs+3}], s40 offen\ns_add_u32 s40, s40, {nh*4096}")
        a(f"s_cmp_ge_u32 s40, s42\ns_cselect_b32 s43, {HALF2}, 0\ns_sub_u32 s40, s40, s43")
    a(f"s_waitcnt vmcnt({window})\ns_sub_u32 s44, s44, 1\ns_cmp_lg_u32 s44, 0\ns_cbranch_scc1 L_{tag}_pw2")


def w1_burst(a, rs, widx, nw, load0, n, vdst=168):
    if n <= 0:
        return
    a("v_lshrrev_b32 v30, 4, v1\nv_mul_u32_u24 v30, 9216, v30\nv_and_b32 v31, 15, v1\nv_lshl_add_u32 v30, v31, 4, v30")
    a("s_and_b32 s44, s2, 7\ns_mul_i32 s44, s44, 9\ns_lshr_b32 s44, s44, 1\ns_lshl_b32 s44, s44, 8")
    for b in range(n):
        a(f"s_add_u32 s46, s{widx}, {load0 + nw*b}\ns_mul_i32 s47, s46, 13108\ns_lshr_b32 s47, s47, 16\ns_mul_i32 s45, s47, 5\ns_sub_u32 s46, s46, s45")
        a("s_mul_i32 s47, s47, 36864\ns_lshl_b32 s46, s46, 8\ns_add_u32 s47, s47, s46\ns_add_u32 s47, s47, s44")
        a(f"buffer_load_dwordx4 v[{vdst}:{vdst+3}], v30, s[{rs}:{rs+3}], s47 offen")


def w1_lane_addr(a):
    a("v_lshrrev_b32 v30, 4, v1\nv_mul_u32_u24 v30, 9216, v30\nv_and_b32 v31, 15, v1\nv_lshl_add_u32 v30, v31, 4, v30")
    a("s_and_b32 s42, s2, 1\ns_and_b32 s40, s2, 7\ns_mul_i32 s40, s40, 9\ns_add_u32 s40, s40, 1\ns_lshr_b32 s40, s40, 1\ns_lshl_b32 s40, s40, 8")
    a("s_mul_i32 s43, s42, 1280\ns_sub_u32 s43, 1024, s43")


def w1_pairs(a, tag, rs, hid, win0, win1, window):
    w1_lane_addr(a)
    a(f"s_mul_i32 s41, s{hid}, {2*36864}\ns_add_u32 s40, s40, s41\ns_add_u32 s40, s40, {win0*64*9216}")
    a(f"s_mul_i32 s42, s42, 36864\ns_add_u32 s43, s43, s42\ns_mov_b32 s44, {win1 - win0}\nL_{tag}_pp:")
    for i in range(4):
        a(f"buffer_load_dwordx4 v[{64+4*i}:{67+4*i}], v30, s[{rs}:{rs+3}], s40 offen offset:{256*i}")
    a(f"s_add_u32 s41, s40, s43\nbuffer_load_dwordx4 v[80:83], v30, s[{rs}:{rs+3}], s41 offen\ns_add_u32 s41, s40, 36864")
    for i in range(4):
        a(f"buffer_load_dwordx4 v[{84+4*i}:{87+4*i}], v30, s[{rs}:{rs+3}], s41 offen offset:{256*i}")
    a(f"s_add_u32 s40, s40, {64*9216}\ns_waitcnt vmcnt({window})\ns_sub_u32 s44, s44, 1\ns_cmp_lg_u32 s44, 0\ns_cbranch_scc1 L_{tag}_pp")


def w1_unit(a, hid, win0):
    w1_lane_addr(a)
    a(f"s_mul_i32 s45, s{hid}, 7282\ns_lshr_b32 s45, s45, 16\ns_mul_i32 s46, s45, 9\ns_sub_u32 s46, s{hid}, s46")
    a("s_lshr_b32 s47, s46, 2\ns_mul_i32 s47, s47, 36864\ns_and_b32 s41, s46, 3\ns_lshl_b32 s41, s41, 8\ns_add_u32 s47, s47, s41")
    a("s_mul_i32 s42, s42, 36864\ns_add_u32 s43, s43, s42\ns_cmp_eq_u32 s46, 8\ns_cselect_b32 s47, s43, s47")
    a(f"s_mul_i32 s45, s45, {2*36864}\ns_add_u32 s40, s40, s45\ns_add_u32 s40, s40, s47\ns_add_u32 s40, s40, {(win0*16 + 10)*36864}")


def w2_head(a, tag, rs, hid, nh, window):
    n = -(-512 // (4 * nh))
    a("v_and_b32 v1, 63, v0\nv_lshrrev_b32 v31, 4, v1\nv_lshlrev_b32 v31, 7, v31\nv_lshlrev_b32 v29, 4, v1")
    a(f"v_add_u32 v31, s{hid}, v31\ns_mov_b32 s45, 0")
    w2_start(a, 40, 45, 0)
    a(f"s_mov_b32 s44, {n}\nL_{tag}_ph:")
    for i in range(4):
        a(f"v_lshl_add_u32 v30, v31, 12, v29\nv_add_u32 v31, {nh}, v31\nbuffer_load_dwordx4 v[{64+4*i}:{67+4*i}], v30, s[{rs}:{rs+3}], s40 offen\nv_and_b32 v31, 511, v31")
    a(f"s_waitcnt vmcnt({window})\ns_sub_u32 s44, s44, 1\ns_cmp_lg_u32 s44, 0\ns_cbranch_scc1 L_{tag}_ph")


def x_stream(a, tag, rs, hid):
    a("v_and_b32 v1, 63, v0\nv_lshlrev_b32 v30, 4, v1")
    a(f"s_and_b32 s40, s2, 3\ns_lshl_b32 s40, s40, 2\ns_lshr_b32 s41, s{hid}, 1\ns_add_u32 s40, s40, s41\ns_lshl_b32 s40, s40, 7")
    a(f"s_bfe_u32 s41, s2, 0x10002\ns_lshl_b32 s41, s41, 6\ns_add_u32 s40, s40, s41\ns_and_b32 s41, s{hid}, 1\ns_lshl_b32 s41, s41, 5\ns_add_u32 s40, s40, s41")
    a(f"s_mul_i32 s40, s40, 1152\ns_mov_b32 s44, 9\nL_{tag}_px:")
    for i in range(4):
        a(f"buffer_load_dwordx4 v[{64+4*i}:{67+4*i}], v30, s[{rs}:{rs+3}], s40 offen offset:{1024*i}")
    a(f"s_add_u32 s40, s40, 4096\ns_sub_u32 s44, s44, 1\ns_cmp_lg_u32 s44, 0\ns_cbranch_scc1 L_{tag}_px")
```

```python
import sys
sys.path.insert(0, "dev")
from asmlib import *
from layout import *
import hazard, mega
from gen import HEADER, descriptor, add_stamps


def build(stamps=False, **opt):
    name = NAME + "_kernel"
    a = Asm()
    mega.mega(a, name, **opt)
    if stamps:
        a.lines = add_stamps(a.lines, [name], cyc=False)
    if stamps == "iter":
        out = []
        for ln in a.lines:
            t = ln.strip()
            if t.startswith("s_memtime s[7"):
                continue
            if t == "; ITER":
                out += ["  s_memrealtime s[76:77]", "  s_waitcnt lgkmcnt(0)", "  s_mov_b32 m0, s78", "  s_nop 0", "  v_writelane_b32 v250, s76, m0", "  s_add_u32 s78, s78, 1"]
                continue
            if t == "s_endpgm":
                out += ["  s_mov_b64 exec, -1", "  v_and_b32 v251, 63, v0", "  v_lshlrev_b32 v251, 2, v251", "  s_lshl_b32 s84, s2, 10", "  s_lshl_b32 s85, s20, 7",
                        "  s_add_u32 s84, s84, s85", "  s_add_u32 s80, s80, 0x80000", "  s_addc_u32 s81, s81, 0", "  s_mov_b32 exec_hi, 0", "  buffer_store_dword v250, v251, s[80:83], s84 offen"]
            out.append(ln)
        a.lines = out
    if stamps == "dbg":
        out, n = [], 0
        for ln in a.lines:
            if ln.strip() == "s_endpgm":
                n += 1
                out += ["  s_cmp_lg_u32 s2, 100", f"  s_cbranch_scc1 L_dbg{n}", "  s_and_b32 s84, s20, 3", "  s_cmp_lg_u32 s84, 0", f"  s_cbranch_scc1 L_dbg{n}",
                        "  s_load_dwordx2 s[80:81], s[0:1], 104", "  s_waitcnt lgkmcnt(0)", "  s_mov_b32 s82, 256", "  s_mov_b32 s83, 0x20000",
                        "  s_lshl_b32 s84, s20, 3", "  s_sub_u32 s84, s84, s20", "  s_add_u32 s84, s84, 4"]
                for k, sreg in enumerate((64, 66, 68, 70, 72, 74, 92)):
                    out += [f"  s_sub_u32 s85, s{sreg}, s90", "  v_mov_b32 v120, s85", f"  buffer_store_dword v120, v124, s[80:83], s84 offen offset:{4*k}"]
                out += [f"L_dbg{n}:"]
            out.append(ln)
        a.lines = out
    rep = []
    lines = hazard.fix(a.lines, report=rep)
    bad = hazard.check_loops(lines)
    assert not bad, bad
    text = HEADER + f"; @launch grid=(256,1,1) block=(320,1,1) lds={mega.LDS_TOTAL}\n"
    text += '.amdgcn_target "amdgcn-amd-amdhsa--gfx950"\n.text\n' + "\n".join(lines) + "\n"
    text += '.section .rodata,"a"\n' + descriptor(name, 256, 102)
    return text, rep


if __name__ == "__main__":
    kw = {k: eval(v) for k, v in (x.split("=", 1) for x in sys.argv[2:])}
    text, rep = build(**kw)
    open(sys.argv[1], "w").write(text)
    print(len(text), "bytes;", len(rep), "pads inserted")
```

```python
import struct
from asmlib import *
from layout import *
import gemm_core as gc
import mega_ln as ln
import mega_conv as cv
from prefetch import *
import prefetch

AT_LDS = gc.LDS_RING
LN_LDS = 139264
CNT_LDS = LN_LDS + 2*ln.LN_T
LDS_TOTAL = CNT_LDS + 64
S_WS, S_X, S_DBG, S_W1, S_W2 = 4, 6, 94, 96, 98
SPIN = 0x100000
S_TAG = 100
F_SEED = 255 * 256


def f32hex(x):
    return "0x%08x" % struct.unpack("<I", struct.pack("<f", x))[0]


def div6(a, d, r, x):
    a(f"s_mul_i32 s{d}, s{x}, 10923\ns_lshr_b32 s{d}, s{d}, 16\ns_mul_i32 s{r}, s{d}, 6\ns_sub_u32 s{r}, s{x}, s{r}")


def unpk(a, x, p):
    a(f"v_lshlrev_b32 v{x}, 16, v{p}\nv_and_b32 v{x+1}, 0xffff0000, v{p}")


def poll(a, tag, rs, vaddr, soff, target, sleep=1, mask=None):
    a(f"s_mov_b32 s61, {SPIN:#x}\nL_{tag}_poll:\nbuffer_load_dword v62, v{vaddr}, s[{rs}:{rs+3}], {soff} offen sc1")
    a(f"s_sub_u32 s61, s61, 1\ns_cbranch_scc1 L_{tag}_go\ns_waitcnt vmcnt(0)")
    if mask:
        a(f"v_and_b32 v62, {mask:#x}, v62")
    a(f"v_cmp_ne_u32 vcc, {target}, v62")
    a(f"s_cmp_eq_u64 vcc, 0\ns_cbranch_scc1 L_{tag}_go")
    if sleep:
        a(f"s_sleep {sleep}")
    a(f"s_branch L_{tag}_poll\nL_{tag}_go:")


def flags_srd(a, d):
    srd_off(a, d, S_WS, WS_FLG, FLG_BYTES)


def last_wave_signals(a, tag, cnt, rs, soff, word=None, second=None):
    a(f"v_mov_b32 v58, {cnt}\nv_mov_b32 v59, 1\nv_mov_b32 v61, 0\ns_mov_b64 exec, 1\nds_add_rtn_u32 v60, v58, v59\ns_waitcnt lgkmcnt(0)")
    a(f"v_readfirstlane_b32 s23, v60\ns_cmp_lg_u32 s23, 3\ns_cbranch_scc1 L_{tag}_notlast")
    if word:
        a(f"v_mov_b32 v59, {word}\nbuffer_store_dword v59, v61, s[{rs}:{rs+3}], {soff} offen sc1")
    else:
        if second:
            a(f"buffer_atomic_add v59, v61, s[{rs}:{rs+3}], {second} offen sc1")
        a(f"buffer_atomic_add v59, v61, s[{rs}:{rs+3}], {soff} offen sc1")
    a(f"L_{tag}_notlast:\ns_mov_b64 exec, -1")


def ln_local_wait(a, tag, cnt=CNT_LDS+4):
    a(f"v_mov_b32 v58, {cnt}\nL_{tag}:\ns_sleep 2\nds_read_b32 v60, v58\ns_waitcnt lgkmcnt(0)\nv_readfirstlane_b32 s23, v60\ns_cmp_lt_u32 s23, 4\ns_cbranch_scc1 L_{tag}")


def g_pause(a, tag, o):
    if not o["pause"]:
        return
    a(f"s_lshr_b32 s23, s2, 3\ns_mul_i32 s24, s23, 43\ns_lshr_b32 s24, s24, 9\ns_mul_i32 s24, s24, 12\ns_sub_u32 s23, s23, s24\ns_lshl_b32 s23, s23, 8\ns_add_u32 s23, s23, {F_G}")
    a(f"v_mov_b32 v61, 0\ns_mov_b32 s61, {SPIN:#x}\nL_{tag}_poll:\nbuffer_load_dword v62, v61, s[36:39], s23 offen sc1\ns_sub_u32 s61, s61, 1\ns_cbranch_scc1 L_{tag}_go")
    a(f"s_waitcnt vmcnt(0)\nv_readfirstlane_b32 s24, v62\ns_cmp_ge_u32 s24, {o['pause']}\ns_cbranch_scc1 L_{tag}_go\ns_sleep 8\ns_branch L_{tag}_poll\nL_{tag}_go:")


def wait_ln(a, tag, rs, o):
    a(f"v_mul_u32_u24 v61, {o['lnw']}, v1\ns_mov_b32 s61, {SPIN:#x}\nL_{tag}_poll:")
    if o["ln_lines"]:
        for k in range(4):
            a(f"s_mov_b32 s62, {F_LNW + k*64*o['lnw']}\nbuffer_load_dword v{180+k}, v61, s[{rs}:{rs+3}], s62 offen sc1")
    else:
        a(f"s_mov_b32 s62, {F_LNW}\nbuffer_load_dwordx4 v[180:183], v61, s[{rs}:{rs+3}], s62 offen sc1")
    a(f"s_sub_u32 s61, s61, 1\ns_cbranch_scc1 L_{tag}_go\ns_waitcnt vmcnt(0)")
    a(f"v_xor_b32 v180, s{S_TAG+1}, v180\nv_xor_b32 v181, s{S_TAG+1}, v181\nv_xor_b32 v182, s{S_TAG+1}, v182\nv_xor_b32 v183, s{S_TAG+1}, v183")
    a("v_or3_b32 v180, v180, v181, v182\nv_or_b32 v180, v180, v183\nv_cmp_ne_u32 vcc, 0, v180")
    a(f"s_cmp_eq_u64 vcc, 0\ns_cbranch_scc1 L_{tag}_go\ns_sleep {o['slp']}\ns_branch L_{tag}_poll\nL_{tag}_go:")


def tile1(a):
    a("s_and_b32 s12, s2, 7\ns_lshr_b32 s13, s2, 3\ns_and_b32 s14, s12, 1\ns_mul_i32 s14, s14, 3\ns_add_u32 s13, s13, s14")
    a("s_cmp_ge_u32 s13, 27\ns_cselect_b32 s14, 27, 0\ns_sub_u32 s13, s13, s14\ns_mul_i32 s12, s12, 27\ns_add_u32 s12, s12, s13")
    div6(a, 14, 15, 12)


def tile2(a):
    a("s_lshr_b32 s13, s2, 3")
    div6(a, 12, 15, 13)
    a("s_bfe_u32 s19, s2, 0x10002\ns_and_b32 s13, s2, 3\ns_lshl_b32 s14, s13, 2\ns_add_u32 s14, s14, s12")
    a("s_mul_i32 s13, s13, 9\ns_add_u32 s13, s13, 1\ns_lshr_b32 s13, s13, 1")
    a("s_lshl_b32 s16, s14, 7\ns_lshl_b32 s17, s19, 6\ns_add_u32 s16, s16, s17")


def block_jump(kind):
    cnt, base, dst, step = (54, 56, gc.S_W0, 128*4096) if kind == "w" else (55, 57, gc.S_ACT0, 2*73728)
    return [f"s_add_u32 s{cnt}, s{cnt}, 1", f"s_add_u32 s18, s{cnt}, s12", "s_and_b32 s18, s18, 3", f"s_cmp_lt_u32 s{cnt}, 4",
            f"s_cselect_b32 s18, s18, s{cnt}", "s_add_u32 s18, s18, s13", "s_cmp_ge_u32 s18, 18", "s_cselect_b32 s17, 18, 0",
            "s_sub_u32 s18, s18, s17", f"s_mul_i32 s18, s18, {step}", f"s_add_u32 s{dst}, s18, s{base}"]


def gelu_epilogue(a, rounds, rot):
    c1 = -2.0 * 0.7978845608028654 * 1.4426950408889634
    a(f"s_mov_b32 s48, {f32hex(c1*0.044715)}\ns_mov_b32 s49, s48\nv_mov_b32 v36, {f32hex(c1)}\nv_mov_b32 v37, v36")
    for nu in range(4):
        unpk(a, 20+4*nu, 12+2*nu); unpk(a, 22+4*nu, 13+2*nu)
    a(f"s_lshr_b32 s26, s20, 1\ns_mul_i32 s26, s26, {gc.SLOT}\ns_and_b32 s27, s20, 1\ns_mul_i32 s27, s27, 6144\ns_add_u32 s26, s26, s27\ns_add_u32 s26, s26, {gc.W_BYTES}\nv_add_u32 v38, s26, v7")
    B = 112
    for dl in range(3):
        for pi in range(2):
            src = [(gc.acc(2*pi + (k >> 1), dl) + 2*(k & 1), 20 + 4*(2*pi + (k >> 1)) + 2*(k & 1)) for k in range(4)]
            U = [B + 2*k for k in range(4)]; T = [B + 8 + 2*k for k in range(4)]; P = [B + 16 + k for k in range(4)]
            O = B + 20 + 4*((2*dl + pi) % 2)
            if rounds == 2:
                for k in range(4): a(f"v_cvt_pk_bf16_f32 v{P[k]}, v{src[k][0]}, v{src[k][0]+1}")
                for k in range(4): unpk(a, U[k], P[k])
                for k in range(4): a(f"v_pk_add_f32 {vr(U[k],2)}, {vr(U[k],2)}, {vr(src[k][1],2)}")
            else:
                for k in range(4): a(f"v_pk_add_f32 {vr(U[k],2)}, {vr(src[k][0],2)}, {vr(src[k][1],2)}")
            if rounds >= 1:
                for k in range(4): a(f"v_cvt_pk_bf16_f32 v{P[k]}, v{U[k]}, v{U[k]+1}")
                for k in range(4): unpk(a, U[k], P[k])
            for k in range(4): a(f"v_pk_mul_f32 {vr(T[k],2)}, {vr(U[k],2)}, {vr(U[k],2)}")
            for k in range(4): a(f"v_pk_fma_f32 {vr(T[k],2)}, {vr(T[k],2)}, s[48:49], v[36:37]")
            for k in range(4): a(f"v_pk_mul_f32 {vr(T[k],2)}, {vr(T[k],2)}, {vr(U[k],2)}")
            for k in range(4): a(f"v_exp_f32 v{T[k]}, v{T[k]}\nv_exp_f32 v{T[k]+1}, v{T[k]+1}")
            for k in range(4): a(f"v_pk_add_f32 {vr(T[k],2)}, {vr(T[k],2)}, 1.0 op_sel_hi:[1,0]")
            for k in range(4): a(f"v_rcp_f32 v{T[k]}, v{T[k]}\nv_rcp_f32 v{T[k]+1}, v{T[k]+1}")
            for k in range(4): a(f"v_pk_mul_f32 {vr(U[k],2)}, {vr(U[k],2)}, {vr(T[k],2)}")
            for k in range(4): a(f"v_cvt_pk_bf16_f32 v{O+k}, v{U[k]}, v{U[k]+1}")
            a(f"buffer_store_dwordx4 {vr(O,4)}, v7, s[44:47], s17 offen offset:{1024*pi} sc1")
            if rot:
                a(f"ds_write_b128 v38, {vr(O,4)} offset:{(2*dl + pi)*1024}")
        a("s_add_u32 s17, s17, 2048")


def read_tag(a):
    a(f"s_add_u32 s26, s{S_WS}, {WS_FLG + F_SEED:#x}\ns_addc_u32 s27, s{S_WS+1}, 0\ns_load_dword s{S_TAG+1}, s[26:27], 0")


def make_tag(a):
    a(f"s_mul_i32 s{S_TAG+1}, s{S_TAG+1}, 0x9e3779b1\ns_add_u32 s{S_TAG+1}, s{S_TAG+1}, 0x7f4a7c15\ns_andn2_b32 s{S_TAG}, s{S_TAG+1}, 0xff")


def compute_waves(a, o):
    a("s_waitcnt lgkmcnt(0)")
    ln.ln_issue(a, S_X)
    read_tag(a)
    a(f"s_cmp_lg_u32 s20, 0\ns_cbranch_scc1 L_m_nz\nv_mov_b32 v58, {CNT_LDS}\nv_mov_b32 v60, 0\nv_mov_b32 v61, 0\nv_mov_b32 v62, 0\nv_mov_b32 v63, 0")
    a("ds_write_b128 v58, v[60:63]\ns_waitcnt lgkmcnt(0)\nL_m_nz:\ns_barrier")
    a(f"s_load_dwordx2 s[38:39], s[0:1], {KA['b1']}\ns_load_dwordx8 s[76:83], s[0:1], {KA['lar']}".replace("s[76:83]", "s[80:87]"))
    ln.ln_body(a, S_WS, LN_LDS, CNT_LDS, "ln")
    flags_srd(a, 40)
    make_tag(a)
    a("v_mov_b32 v61, 0\ns_cmp_lg_u32 s20, 3\ns_cbranch_scc1 L_m_nozero\ns_sub_u32 s23, s2, 28\ns_cmp_ge_u32 s23, 6\ns_cbranch_scc1 L_m_nozero")
    a("s_lshl_b32 s23, s2, 8\ns_mov_b64 exec, 1\nbuffer_store_dword v61, v61, s[40:43], s23 offen sc1\ns_mov_b64 exec, -1\nL_m_nozero:")
    if o["ln_lines"]:
        a(f"s_mul_i32 s24, s2, {o['lnw']}\ns_add_u32 s24, s24, {F_LNW}")
    else:
        a(f"s_and_b32 s24, s2, 63\ns_mul_i32 s24, s24, {o['lnw']}\ns_lshr_b32 s23, s2, 6\ns_lshl_b32 s23, s23, 2\ns_add_u32 s24, s24, s23\ns_add_u32 s24, s24, {F_LNW}")
    a("s_waitcnt vmcnt(0)\n; STAMP 1")
    last_wave_signals(a, "lnd", CNT_LDS + 4, 40, "s24", word=f"s{S_TAG+1}")
    a("s_cmp_ge_u32 s2, 216\ns_cbranch_scc1 L_m_conv")
    a("s_lshr_b32 s29, s2, 3\ns_lshl_b32 s29, s29, 2\ns_add_u32 s29, s29, s20")
    srd(a, 32, S_W1, W_BYTES_TOTAL)
    w1_burst(a, 32, 29, 108, o["r1"]//4*5, o["nB"])
    srd(a, 32, S_W2, W_BYTES_TOTAL)
    tile1(a)
    gc.lane_ids(a)
    gc.compute_setup(a, "A")
    srd(a, 8, 38, F*2)
    a(f"s_lshr_b32 s16, s20, 1\ns_lshl_b32 s17, s16, 7\ns_lshl_b32 s18, s14, 8\ns_add_u32 s17, s17, s18\nv_lshlrev_b32 v9, 3, v3")
    for nu in range(4):
        a(f"buffer_load_dwordx2 {vr(12+2*nu,2)}, v9, s[8:11], s17 offen offset:{32*nu}")
    for i in range(48):
        a(f"v_mov_b32 v{gc.V_ACC+i}, 0")
    srd_off(a, 44, S_WS, WS_G, G_BYTES)
    a("s_and_b32 s17, s20, 1\ns_mul_i32 s17, s17, 3\ns_mul_i32 s18, s15, 6\ns_add_u32 s17, s17, s18\ns_lshl_b32 s17, s17, 11")
    a("s_lshl_b32 s18, s14, 1\ns_add_u32 s18, s18, s16\ns_mul_i32 s18, s18, 73728\ns_add_u32 s17, s17, s18")
    a(f"s_mul_i32 s24, s15, 36\ns_add_u32 s24, s24, s14\ns_lshl_b32 s24, s24, 8\ns_add_u32 s24, s24, {F_GW}")
    a(f"s_load_dwordx4 s[52:55], s[0:1], {KA['b2']}")
    gc.compute_main(a, 32*o["rep1"], "A", False, "g1", last_barrier=True, st=(5, 2))
    if o["rep1"] == 2:
        for i in range(48):
            a(f"v_mul_f32 v{gc.V_ACC+i}, 0.5, v{gc.V_ACC+i}")
    a("s_waitcnt vmcnt(0)")
    gelu_epilogue(a, o['rnd1'], o['rot'])
    a("s_cmp_lt_u32 s2, 192\ns_cbranch_scc1 L_m_g2\ns_waitcnt vmcnt(0)")
    last_wave_signals(a, "gd", CNT_LDS + 8, 40, "s24", word=f"s{S_TAG+1}")
    a("; STAMP 3\ns_branch L_m_conv1\nL_m_g2:")
    tile2(a)
    gc.compute_setup(a, "B", s_kh=19)
    srd(a, 32, S_X, X_BYTES); srd(a, 28, 52, S*2)
    a("s_lshr_b32 s17, s20, 1\ns_lshl_b32 s17, s17, 5\ns_add_u32 s17, s17, s16")
    a("s_mul_i32 s18, s15, 96\ns_and_b32 s26, s20, 1\ns_mul_i32 s26, s26, 48\ns_add_u32 s18, s18, s26")
    a("v_mul_u32_u24 v58, 1152, v2\nv_lshl_add_u32 v58, v3, 3, v58\nv_lshlrev_b32 v9, 1, v2")
    a("s_mul_i32 s56, s17, 1152\ns_lshl_b32 s26, s18, 1\ns_add_u32 s56, s56, s26\ns_add_u32 s57, s56, 18432\ns_lshl_b32 s26, s17, 1")
    a("s_mov_b32 s22, s26\nv_mov_b32 v39, v58")
    for i in range(48):
        a(f"v_mov_b32 v{gc.V_ACC+i}, 0")
    a("v_bfe_u32 v4, v1, 2, 2\nv_lshl_add_u32 v4, v3, 2, v4\nv_lshlrev_b32 v4, 7, v4\nv_and_b32 v5, 3, v1\nv_lshl_add_u32 v4, v5, 3, v4")
    a(f"s_and_b32 s26, s20, 1\ns_mul_i32 s26, s26, 6144\ns_lshr_b32 s27, s20, 1\ns_lshl_b32 s27, s27, 6\ns_add_u32 s26, s26, s27\ns_add_u32 s26, s26, {AT_LDS}\nv_add_u32 v59, s26, v4")
    a("v_mov_b32 v31, v59")
    a("s_xor_b32 s58, s2, 4\ns_lshl_b32 s26, s20, 13\ns_lshl_b32 s59, s58, 15\ns_add_u32 s59, s59, s26\ns_lshl_b32 s60, s2, 15\ns_add_u32 s60, s60, s26")

    def x_loads(a):
        for nu in range(2):
            for dl in range(3):
                a(f"buffer_load_dwordx2 {vr(10+2*(3*nu+dl),2)}, v39, s[32:35], s{56+nu} offen offset:{32*dl}{o['xnt']}")
            a(f"buffer_load_ushort v{22+nu}, v9, s[28:31], s22 offen offset:{32*nu}")

    def publish_g(a):
        a("s_waitcnt vmcnt(0)")
        last_wave_signals(a, "gd2", CNT_LDS + 8, 40, "s24", word=f"s{S_TAG+1}")
        a("; STAMP 3\n; SWAIT")
        if not o["x_late"]:
            x_loads(a)

    if o["late_sig"]:
        gc.compute_main(a, 36, "B", True, "g2", st=(5, 4), first_stage1=publish_g)
    else:
        publish_g(a)
        gc.compute_main(a, 36*o["rep2"], "B", True, "g2", st=(5, 4))
        if o["rep2"] == 2:
            for i in range(48):
                a(f"v_mul_f32 v{gc.V_ACC+i}, 0.5, v{gc.V_ACC+i}")
    srd_off(a, 8, S_WS, WS_XCH, XCH_BYTES); srd(a, 44, 54, X_BYTES)
    a("v_mov_b32 v58, v39\nv_mov_b32 v59, v31")
    a("s_waitcnt vmcnt(0)\n; STAMP 5")
    SN = 172
    NG = 4 if o["xbf"] else 8
    for k in range(NG):
        for m in range(3):
            if o["xbf"]:
                a(f"v_cvt_pk_bf16_f32 v{SN+4*k+m}, v{gc.V_ACC+24+6*k+2*m}, v{gc.V_ACC+25+6*k+2*m}")
            else:
                a(f"v_mov_b32 v{SN+4*k+m}, v{gc.V_ACC+24+3*k+m}")
        a(f"v_mov_b32 v{SN+4*k+3}, s{S_TAG+1}")
        a(f"buffer_store_dwordx4 {vr(SN+4*k,4)}, v7, s[8:11], s59 offen sc1\ns_add_u32 s59, s59, 1024")
    if o["x_late"]:
        x_loads(a)
    a("s_barrier")
    AR, PF = 112, 124
    for nu in range(2):
        for dl in range(3):
            a(f"ds_read_b64_tr_b16 {vr(AR+2*(3*nu+dl),2)}, v59 offset:{2048*dl + 32*nu}")
    a("s_waitcnt vmcnt(0)\nv_lshlrev_b32 v22, 16, v22\nv_lshlrev_b32 v24, 16, v23\ns_waitcnt lgkmcnt(0)")
    for t in range(6):
        for h in range(2):
            unpk(a, 26, 10+2*t+h); unpk(a, 28, AR+2*t+h)
            if o["rnd2"]:
                a("v_pk_add_f32 v[26:27], v[26:27], v[28:29]\nv_cvt_pk_bf16_f32 v30, v26, v27")
                unpk(a, PF+4*t+2*h, 30)
            else:
                b = gc.V_ACC + 4*t + 2*h
                a(f"v_pk_add_f32 v[26:27], v[26:27], v[28:29]\nv_pk_add_f32 {vr(b,2)}, {vr(b,2)}, {vr(22+2*(t//3),2)} op_sel_hi:[1,0]")
                a(f"v_pk_add_f32 {vr(b,2)}, {vr(b,2)}, v[26:27]")
    RX = 204
    a(f"s_mov_b32 s61, {SPIN:#x}\ns_add_u32 s62, s60, 4096\nL_xch_poll:")
    for k in range(NG):
        a(f"buffer_load_dwordx4 {vr(RX+4*k,4)}, v7, s[8:11], s{60 + 2*(k >> 2)} offen offset:{1024*(k & 3)} sc1")
    a(f"s_sub_u32 s61, s61, 1\ns_cbranch_scc1 L_xch_go\ns_waitcnt vmcnt(0)\nv_xor_b32 v4, s{S_TAG+1}, v{RX+3}")
    for k in range(1, NG):
        a(f"v_xor_b32 v5, s{S_TAG+1}, v{RX+4*k+3}\nv_or_b32 v4, v4, v5")
    a("v_cmp_ne_u32 vcc, 0, v4\ns_cmp_eq_u64 vcc, 0\ns_cbranch_scc0 L_xch_poll\nL_xch_go:")
    for t in range(6):
        nu, dl = divmod(t, 3)
        b, p = gc.V_ACC + 4*t, PF + 4*t
        if o["xbf"]:
            for h in range(2):
                k, m = divmod(2*t + h, 3)
                unpk(a, 26+2*h, RX+4*k+m)
            for h in range(2): a(f"v_pk_add_f32 {vr(b+2*h,2)}, {vr(b+2*h,2)}, {vr(26+2*h,2)}")
        else:
            for e in range(4):
                k, m = divmod(4*t + e, 3)
                a(f"v_add_f32 v{b+e}, v{b+e}, v{RX+4*k+m}")
        if o['rnd2']:
            for h in range(2): a(f"v_cvt_pk_bf16_f32 v{26+h}, v{b+2*h}, v{b+2*h+1}")
            for h in range(2): unpk(a, b+2*h, 26+h)
            for h in range(2): a(f"v_pk_add_f32 {vr(b+2*h,2)}, {vr(b+2*h,2)}, {vr(22+2*nu,2)} op_sel_hi:[1,0]")
            for h in range(2): a(f"v_cvt_pk_bf16_f32 v{26+h}, v{b+2*h}, v{b+2*h+1}")
            for h in range(2): unpk(a, b+2*h, 26+h)
            for h in range(2): a(f"v_pk_add_f32 {vr(b+2*h,2)}, {vr(b+2*h,2)}, {vr(p+2*h,2)}")
        for h in range(2): a(f"v_cvt_pk_bf16_f32 v{10+2*t+h}, v{b+2*h}, v{b+2*h+1}")
        a(f"buffer_store_dwordx2 {vr(10+2*t,2)}, v58, s[44:47], s{56+nu} offen offset:{32*dl}{o['ont']}")
    a("s_endpgm")
    a("L_m_conv1:\ns_mov_b32 s30, 1\ns_sub_u32 s31, s2, 72\ns_lshl_b32 s31, s31, 2\ns_add_u32 s31, s31, s20\ns_branch L_m_conv2")
    a("L_m_conv:\ns_mov_b32 s30, 3\ns_sub_u32 s31, s2, 216\ns_lshl_b32 s31, s31, 2\ns_add_u32 s31, s31, s20\ns_mul_i32 s31, s31, 3\nL_m_conv2:")
    a("s_mul_i32 s29, s31, 683\ns_lshr_b32 s29, s29, 16")
    a(f"s_load_dwordx4 s[32:35], s[0:1], {KA['ldt']}\ns_waitcnt lgkmcnt(0)")
    cv.param_loads(a, 80, 32, 34)

    def signal(a):
        a("s_lshl_b32 s36, s29, 8")
        a(f"s_add_u32 s36, s36, {F_CONV}\nv_mov_b32 v4, 1\nv_mov_b32 v5, 0\ns_mov_b64 exec, 1\nbuffer_atomic_add v4, v5, s[8:11], s36 offen sc1")
    flags_srd(a, 8)
    cv.conv_role(a, "cv", S_WS, lambda a: wait_ln(a, "cvln", 8, o), signal)
    a("s_endpgm")


def fifth_wave(a, o):
    if o["prio"]:
        a(f"s_setprio {o['prio']}")
    a("s_waitcnt lgkmcnt(0)")
    flags_srd(a, 36)
    read_tag(a)
    if o["tlb"]:
        a(f"s_load_dwordx2 s[48:49], s[0:1], {KA['out']}")
        srd(a, 8, S_WS, WS_FLG + FLG_BYTES); srd(a, 16, S_W2, W_BYTES_TOTAL)
        a("v_lshlrev_b32 v4, 20, v1\nbuffer_load_dword v100, v4, s[8:11], 0 offen sc1\nbuffer_load_dword v101, v4, s[16:19], 0 offen")
    if o["touch"]:
        a(f"s_cmp_ge_u32 s2, 1\ns_cbranch_scc1 L_m_notouch\nv_mul_u32_u24 v5, {o['lnw']}, v1\ns_mov_b32 s23, {F_LNW}\nbuffer_load_dword v103, v5, s[36:39], s23 offen\nL_m_notouch:")
    srd(a, gc.SRD_W, S_W1, W_BYTES_TOTAL)
    a("s_barrier\ns_lshr_b32 s30, s2, 3")
    if o["code_pf"]:
        a("s_getpc_b64 s[12:13]\nL_m_pc:\ns_sub_u32 s12, s12, L_m_pc-L_m_base\ns_subb_u32 s13, s13, 0")
        a("s_mov_b32 s14, L_m_last-L_m_base\ns_mov_b32 s15, 0x20000\nv_lshlrev_b32 v4, 4, v1\ns_lshl_b32 s23, s30, 10")
        a("buffer_load_dwordx4 v[96:99], v4, s[12:15], s23 offen\ns_add_u32 s23, s23, 32768\nbuffer_load_dwordx4 v[96:99], v4, s[12:15], s23 offen")
    w1_stream(a, "m0", gc.SRD_W, 30, 32, 0, o["r1"], o["win1"])
    a("s_waitcnt lgkmcnt(0)")
    if o["tlb"]:
        a(f"s_mov_b32 s50, {X_BYTES}\ns_mov_b32 s51, 0x20000\nv_lshlrev_b32 v4, 20, v1\nbuffer_load_dword v102, v4, s[48:51], 0 offen")
    make_tag(a)
    a("; STAMP 0\ns_cmp_ge_u32 s2, 216\ns_cbranch_scc1 L_m_helper")
    tile1(a)
    gc.lane_ids(a)
    a(f"s_mul_i32 s{gc.S_ACT0}, s15, 12288\ns_lshl_b32 s{gc.S_W0}, s14, 8")
    gc.loader_setup(a, 0, 9216, "A")
    srd_off(a, gc.SRD_ACT, S_WS, WS_HT, HT_BYTES)
    ln_local_wait(a, "lw1")
    a("; STAMP 0")
    gc.w_prefill(a, range(4), 0, 9216)
    a("; STAMP 1")
    wait_ln(a, "l1", 36, o)
    a(f"; STAMP 2\ns_cmp_lg_u32 s2, 0\ns_cbranch_scc1 L_m_noseed\nv_mov_b32 v4, s{S_TAG+1}\nv_mov_b32 v5, {F_SEED}\ns_mov_b64 exec, 1")
    a("buffer_store_dword v4, v5, s[36:39], 0 offen sc1\ns_mov_b64 exec, -1\nL_m_noseed:")
    gc.loader_after_prefill(a, 32*o["rep1"], 0, 9216, "g1", o["aflags"], tail=lambda a: None, wrap=(2048*9216, 32*73728) if o["rep1"] == 2 else None)
    srd(a, gc.SRD_W, S_W2, W_BYTES_TOTAL)
    a("s_cmp_lt_u32 s2, 192\ns_cbranch_scc1 L_m_l2")
    a("s_waitcnt vmcnt(28)\ns_barrier\ns_waitcnt vmcnt(0)\ns_barrier\ns_barrier\ns_sub_u32 s30, s2, 152\ns_lshr_b32 s30, s30, 3")
    ln_local_wait(a, "lw3", CNT_LDS+8)
    if o["x_pf"] == "early":
        srd(a, 8, S_X, X_BYTES); a("s_sub_u32 s31, s30, 5\ns_mul_i32 s31, s31, 3")
        for k in range(3):
            if k == 2:
                a("s_cmp_eq_u32 s31, 8\ns_cbranch_scc1 L_m_nox")
            x_stream(a, f"xe{k}", 8, 31)
            a("s_add_u32 s31, s31, 1")
        a("L_m_nox:")
    g_pause(a, "gp3", o)
    w2_stream(a, "m3", gc.SRD_W, 30, 8, o["r2"] + 96*o["nC"], 2304, o["win3"])
    if o["x_pf"] is True:
        srd(a, 8, S_X, X_BYTES); x_stream(a, "x3", 8, 30)
    a("s_endpgm\nL_m_l2:")
    tile2(a)
    a(f"s_mul_i32 s57, s15, 12288\ns_mul_i32 s18, s19, {36*73728}\ns_add_u32 s57, s57, s18")
    a(f"s_lshl_b32 s56, s14, 8\ns_mul_i32 s18, s19, {HALF2}\ns_add_u32 s56, s56, s18\ns_mov_b32 s54, -1\ns_mov_b32 s55, -1")
    jump = block_jump if o["rot"] else None
    if o["rot"]:
        a.extend(block_jump("w") + block_jump("a"))
    else:
        a(f"s_mov_b32 s{gc.S_W0}, s56\ns_mov_b32 s{gc.S_ACT0}, s57")
    gc.loader_setup(a, 0, 4096, "B")
    srd_off(a, gc.SRD_ACT, S_WS, WS_G, G_BYTES)
    e2 = o["early2"]
    for j, vm in enumerate((28, 0, None)):
        if j < e2:
            gc.w_prefill(a, [j], 0, 4096, jump)
        if vm is not None:
            a(f"s_waitcnt vmcnt({vm + 16*min(j+1, e2)})")
        a("s_barrier")
    a("; STAMP 5")
    gc.w_prefill(a, range(min(e2, 3), 4), 0, 4096, jump)
    a("v_mov_b32 v61, 0\n; STAMP 3")

    def wait_slot(a):
        a(f"s_mul_i32 s23, s15, 36\ns_mul_i32 s24, s19, 18\ns_add_u32 s23, s23, s24\ns_lshl_b32 s23, s23, 8\ns_add_u32 s23, s23, {F_GW}")
        a("v_and_b32 v60, 3, v1\nv_add_u32 v60, s13, v60\nv_lshlrev_b32 v60, 8, v60")
        poll(a, "l2a", 36, 60, "s23", f"s{S_TAG+1}")
        a("; STAMP 4\nv_min_u32 v60, 17, v1\nv_lshlrev_b32 v60, 8, v60\ns_mov_b32 s53, s23")

    def wait_half(a):
        poll(a, "l2b", 36, 60, "s53", f"s{S_TAG+1}")

    def at_dma(a):
        for e in range(12):
            a(f"s_mov_b32 m0, {AT_LDS + 1024*e}\nbuffer_load_dwordx4 v8, s[48:51], s26 offen sc1 lds\ns_add_u32 s26, s26, 32768")

    def at_early(a):
        srd_off(a, 48, S_WS, WS_AT, AT_BYTES)
        a(f"s_lshl_b32 s23, s15, 8\ns_add_u32 s23, s23, {F_CONV}\nbuffer_load_dword v62, v61, s[36:39], s23 offen sc1")
        a("v_lshrrev_b32 v8, 3, v1\nv_lshlrev_b32 v8, 12, v8\nv_and_b32 v9, 7, v1\nv_lshl_add_u32 v8, v9, 4, v8")
        a(f"s_mul_i32 s26, s15, {96*4096}\ns_lshl_b32 s27, s16, 1\ns_add_u32 s26, s26, s27")
        a("s_cmp_eq_u32 s15, 5\ns_cselect_b32 s24, 96, 32\ns_waitcnt vmcnt(0)\nv_readfirstlane_b32 s27, v62")
    if o["rot"]:
        gc.loader_after_prefill(a, 36, 0, 4096, "g2", o["aflags"], before_last=at_early, jump=block_jump, wait2=wait_slot, wait8=wait_half)
    else:
        ln_local_wait(a, "lw4", CNT_LDS+8)
        a(f"s_mul_i32 s53, s15, 36\ns_mul_i32 s24, s19, 18\ns_add_u32 s53, s53, s24\ns_lshl_b32 s53, s53, 8\ns_add_u32 s53, s53, {F_GW}")
        a("v_min_u32 v60, 17, v1\nv_lshlrev_b32 v60, 8, v60")
        wait_half(a)
        a("; STAMP 4")
        gc.loader_after_prefill(a, 36*o["rep2"], 0, 4096, "g2", o["aflags"], before_last=at_early, wrap=(HALF2, 36*73728) if o["rep2"] == 2 else None)
    a("s_cmp_eq_u32 s27, s24\ns_cbranch_scc1 L_at_go")
    poll(a, "at", 36, 61, "s23", "s24")
    at_dma(a)
    a("s_waitcnt vmcnt(0)\ns_barrier\ns_endpgm")
    a("L_m_helper:\ns_sub_u32 s30, s2, 216\ns_lshr_b32 s30, s30, 3")
    ln_local_wait(a, "lw2")
    w1_stream(a, "m1", gc.SRD_W, 30, 5, o["r1"] + 108*o["nB"]//5*4, 2048, o["win2"])
    a("; STAMP 1")
    srd(a, gc.SRD_W, S_W2, W_BYTES_TOTAL)
    if o["rot"]:
        w2_head(a, "mh", gc.SRD_W, 30, 5, o["win2"])
    w2_stream(a, "m2", gc.SRD_W, 30, 5, 512 if o["rot"] else 0, o["r2"], o["win2"])
    a("; STAMP 2")
    g_pause(a, "gp4", o)
    w2_stream(a, "m4", gc.SRD_W, 30, 8, o["r2"] + 96*o["nC"], 2304, o["win3"])
    if o["x_pf"] is True:
        srd(a, 8, S_X, X_BYTES); x_stream(a, "x4", 8, 30)


def mega(a, name, **opt):
    o = dict(rep1=1, rep2=1, uflags='', rot=False, x_pf=True, ln_lines=False, x_late=True, late_sig=False, pause=0, xbf=True, rnd1=0, rnd2=0, prio=0, lnw=256, slp=1, touch=True, tlb=True, early2=3, xnt='', ont='', prefill_late=True, r1=512, nB=6, r2=400, nC=0, win1=20, win2=40, win3=40, aflags=" sc1", code_pf=9)
    o.update(opt)
    prefetch.ROT = o["rot"]
    cv.UFLAGS = o["uflags"]
    a(f".globl {name}\n.p2align 8\n.type {name},@function\n{name}:\nL_m_base:")
    a("s_cmp_ge_u32 s2, 256\ns_cbranch_scc1 L_m_end")
    a(f"s_load_dwordx2 s[{S_X}:{S_X+1}], s[0:1], {KA['x']}\ns_load_dwordx2 s[{S_WS}:{S_WS+1}], s[0:1], {KA['ws']}")
    a(f"s_load_dwordx2 s[{S_W1}:{S_W1+1}], s[0:1], {KA['w1']}\ns_load_dwordx2 s[{S_W2}:{S_W2+1}], s[0:1], {KA['w2']}")
    a("v_lshrrev_b32 v1, 6, v0\nv_readfirstlane_b32 s20, v1\nv_and_b32 v1, 63, v0")
    a("s_cmp_eq_u32 s20, 4\ns_cbranch_scc1 L_m_w4")
    compute_waves(a, o)
    a("L_m_w4:")
    fifth_wave(a, o)
    a("L_m_end:\ns_endpgm\nL_m_last:")
```

```python
import struct
from asmlib import *
from layout import *
import gemm_core as gc
import mega_ln as ln
import mega_conv as cv
from prefetch import *
import prefetch

AT_LDS = gc.LDS_RING
LN_LDS = 139264
CNT_LDS = LN_LDS + 2*ln.LN_T
LDS_TOTAL = CNT_LDS + 64
S_WS, S_X, S_DBG, S_W1, S_W2 = 4, 6, 94, 96, 98
SPIN = 0x100000
S_TAG = 100
F_SEED = 255 * 256


def f32hex(x):
    return "0x%08x" % struct.unpack("<I", struct.pack("<f", x))[0]


def div6(a, d, r, x):
    a(f"s_mul_i32 s{d}, s{x}, 10923\ns_lshr_b32 s{d}, s{d}, 16\ns_mul_i32 s{r}, s{d}, 6\ns_sub_u32 s{r}, s{x}, s{r}")


def unpk(a, x, p):
    a(f"v_lshlrev_b32 v{x}, 16, v{p}\nv_and_b32 v{x+1}, 0xffff0000, v{p}")


def poll(a, tag, rs, vaddr, soff, target, sleep=1, mask=None):
    a(f"s_mov_b32 s61, {SPIN:#x}\nL_{tag}_poll:\nbuffer_load_dword v62, v{vaddr}, s[{rs}:{rs+3}], {soff} offen sc1")
    a(f"s_sub_u32 s61, s61, 1\ns_cbranch_scc1 L_{tag}_go\ns_waitcnt vmcnt(0)")
    if mask:
        a(f"v_and_b32 v62, {mask:#x}, v62")
    a(f"v_cmp_ne_u32 vcc, {target}, v62")
    a(f"s_cmp_eq_u64 vcc, 0\ns_cbranch_scc1 L_{tag}_go")
    if sleep:
        a(f"s_sleep {sleep}")
    a(f"s_branch L_{tag}_poll\nL_{tag}_go:")


def flags_srd(a, d):
    srd_off(a, d, S_WS, WS_FLG, FLG_BYTES)


def last_wave_signals(a, tag, cnt, rs, soff, word=None, second=None):
    a(f"v_mov_b32 v58, {cnt}\nv_mov_b32 v59, 1\nv_mov_b32 v61, 0\ns_mov_b64 exec, 1\nds_add_rtn_u32 v60, v58, v59\ns_waitcnt lgkmcnt(0)")
    a(f"v_readfirstlane_b32 s23, v60\ns_cmp_lg_u32 s23, 3\ns_cbranch_scc1 L_{tag}_notlast")
    if word:
        a(f"v_mov_b32 v59, {word}\nbuffer_store_dword v59, v61, s[{rs}:{rs+3}], {soff} offen sc1")
    else:
        if second:
            a(f"buffer_atomic_add v59, v61, s[{rs}:{rs+3}], {second} offen sc1")
        a(f"buffer_atomic_add v59, v61, s[{rs}:{rs+3}], {soff} offen sc1")
    a(f"L_{tag}_notlast:\ns_mov_b64 exec, -1")


def ln_local_wait(a, tag, cnt=CNT_LDS+4):
    a(f"v_mov_b32 v58, {cnt}\nL_{tag}:\ns_sleep 2\nds_read_b32 v60, v58\ns_waitcnt lgkmcnt(0)\nv_readfirstlane_b32 s23, v60\ns_cmp_lt_u32 s23, 4\ns_cbranch_scc1 L_{tag}")


def g_pause(a, tag, o):
    if not o["pause"]:
        return
    a(f"s_lshr_b32 s23, s2, 3\ns_mul_i32 s24, s23, 43\ns_lshr_b32 s24, s24, 9\ns_mul_i32 s24, s24, 12\ns_sub_u32 s23, s23, s24\ns_lshl_b32 s23, s23, 8\ns_add_u32 s23, s23, {F_G}")
    a(f"v_mov_b32 v61, 0\ns_mov_b32 s61, {SPIN:#x}\nL_{tag}_poll:\nbuffer_load_dword v62, v61, s[36:39], s23 offen sc1\ns_sub_u32 s61, s61, 1\ns_cbranch_scc1 L_{tag}_go")
    a(f"s_waitcnt vmcnt(0)\nv_readfirstlane_b32 s24, v62\ns_cmp_ge_u32 s24, {o['pause']}\ns_cbranch_scc1 L_{tag}_go\ns_sleep 8\ns_branch L_{tag}_poll\nL_{tag}_go:")


def wait_ln(a, tag, rs, o):
    a(f"v_mul_u32_u24 v61, {o['lnw']}, v1\ns_mov_b32 s61, {SPIN:#x}\nL_{tag}_poll:")
    if o["ln_lines"]:
        for k in range(4):
            a(f"s_mov_b32 s62, {F_LNW + k*64*o['lnw']}\nbuffer_load_dword v{180+k}, v61, s[{rs}:{rs+3}], s62 offen sc1")
    else:
        a(f"s_mov_b32 s62, {F_LNW}\nbuffer_load_dwordx4 v[180:183], v61, s[{rs}:{rs+3}], s62 offen sc1")
    a(f"s_sub_u32 s61, s61, 1\ns_cbranch_scc1 L_{tag}_go\ns_waitcnt vmcnt(0)")
    a(f"v_xor_b32 v180, s{S_TAG+1}, v180\nv_xor_b32 v181, s{S_TAG+1}, v181\nv_xor_b32 v182, s{S_TAG+1}, v182\nv_xor_b32 v183, s{S_TAG+1}, v183")
    a("v_or3_b32 v180, v180, v181, v182\nv_or_b32 v180, v180, v183\nv_cmp_ne_u32 vcc, 0, v180")
    a(f"s_cmp_eq_u64 vcc, 0\ns_cbranch_scc1 L_{tag}_go\ns_sleep {o['slp']}\ns_branch L_{tag}_poll\nL_{tag}_go:")


def tile1(a):
    a("s_and_b32 s12, s2, 7\ns_lshr_b32 s13, s2, 3\ns_and_b32 s14, s12, 1\ns_mul_i32 s14, s14, 3\ns_add_u32 s13, s13, s14")
    a("s_cmp_ge_u32 s13, 27\ns_cselect_b32 s14, 27, 0\ns_sub_u32 s13, s13, s14\ns_mul_i32 s12, s12, 27\ns_add_u32 s12, s12, s13")
    div6(a, 14, 15, 12)


def tile2(a):
    a("s_lshr_b32 s13, s2, 3")
    div6(a, 12, 15, 13)
    a("s_bfe_u32 s19, s2, 0x10002\ns_and_b32 s13, s2, 3\ns_lshl_b32 s14, s13, 2\ns_add_u32 s14, s14, s12")
    a("s_mul_i32 s13, s13, 9\ns_add_u32 s13, s13, 1\ns_lshr_b32 s13, s13, 1")
    a("s_lshl_b32 s16, s14, 7\ns_lshl_b32 s17, s19, 6\ns_add_u32 s16, s16, s17")


def block_jump(kind):
    cnt, base, dst, step = (54, 56, gc.S_W0, 128*4096) if kind == "w" else (55, 57, gc.S_ACT0, 2*73728)
    return [f"s_add_u32 s{cnt}, s{cnt}, 1", f"s_add_u32 s18, s{cnt}, s12", "s_and_b32 s18, s18, 3", f"s_cmp_lt_u32 s{cnt}, 4",
            f"s_cselect_b32 s18, s18, s{cnt}", "s_add_u32 s18, s18, s13", "s_cmp_ge_u32 s18, 18", "s_cselect_b32 s17, 18, 0",
            "s_sub_u32 s18, s18, s17", f"s_mul_i32 s18, s18, {step}", f"s_add_u32 s{dst}, s18, s{base}"]


def gelu_epilogue(a, rounds, rot):
    c1 = -2.0 * 0.7978845608028654 * 1.4426950408889634
    a(f"s_mov_b32 s48, {f32hex(c1*0.044715)}\ns_mov_b32 s49, s48\nv_mov_b32 v36, {f32hex(c1)}\nv_mov_b32 v37, v36")
    for nu in range(4):
        unpk(a, 20+4*nu, 12+2*nu); unpk(a, 22+4*nu, 13+2*nu)
    a(f"s_lshr_b32 s26, s20, 1\ns_mul_i32 s26, s26, {gc.SLOT}\ns_and_b32 s27, s20, 1\ns_mul_i32 s27, s27, 6144\ns_add_u32 s26, s26, s27\ns_add_u32 s26, s26, {gc.W_BYTES}\nv_add_u32 v38, s26, v7")
    B = 112
    for dl in range(3):
        for pi in range(2):
            src = [(gc.acc(2*pi + (k >> 1), dl) + 2*(k & 1), 20 + 4*(2*pi + (k >> 1)) + 2*(k & 1)) for k in range(4)]
            U = [B + 2*k for k in range(4)]; T = [B + 8 + 2*k for k in range(4)]; P = [B + 16 + k for k in range(4)]
            O = B + 20 + 4*((2*dl + pi) % 2)
            if rounds == 2:
                for k in range(4): a(f"v_cvt_pk_bf16_f32 v{P[k]}, v{src[k][0]}, v{src[k][0]+1}")
                for k in range(4): unpk(a, U[k], P[k])
                for k in range(4): a(f"v_pk_add_f32 {vr(U[k],2)}, {vr(U[k],2)}, {vr(src[k][1],2)}")
            else:
                for k in range(4): a(f"v_pk_add_f32 {vr(U[k],2)}, {vr(src[k][0],2)}, {vr(src[k][1],2)}")
            if rounds >= 1:
                for k in range(4): a(f"v_cvt_pk_bf16_f32 v{P[k]}, v{U[k]}, v{U[k]+1}")
                for k in range(4): unpk(a, U[k], P[k])
            for k in range(4): a(f"v_pk_mul_f32 {vr(T[k],2)}, {vr(U[k],2)}, {vr(U[k],2)}")
            for k in range(4): a(f"v_pk_fma_f32 {vr(T[k],2)}, {vr(T[k],2)}, s[48:49], v[36:37]")
            for k in range(4): a(f"v_pk_mul_f32 {vr(T[k],2)}, {vr(T[k],2)}, {vr(U[k],2)}")
            for k in range(4): a(f"v_exp_f32 v{T[k]}, v{T[k]}\nv_exp_f32 v{T[k]+1}, v{T[k]+1}")
            for k in range(4): a(f"v_pk_add_f32 {vr(T[k],2)}, {vr(T[k],2)}, 1.0 op_sel_hi:[1,0]")
            for k in range(4): a(f"v_rcp_f32 v{T[k]}, v{T[k]}\nv_rcp_f32 v{T[k]+1}, v{T[k]+1}")
            for k in range(4): a(f"v_pk_mul_f32 {vr(U[k],2)}, {vr(U[k],2)}, {vr(T[k],2)}")
            for k in range(4): a(f"v_cvt_pk_bf16_f32 v{O+k}, v{U[k]}, v{U[k]+1}")
            a(f"buffer_store_dwordx4 {vr(O,4)}, v7, s[44:47], s17 offen offset:{1024*pi} sc1")
            if rot:
                a(f"ds_write_b128 v38, {vr(O,4)} offset:{(2*dl + pi)*1024}")
        a("s_add_u32 s17, s17, 2048")


def read_tag(a):
    a(f"s_add_u32 s26, s{S_WS}, {WS_FLG + F_SEED:#x}\ns_addc_u32 s27, s{S_WS+1}, 0\ns_load_dword s{S_TAG+1}, s[26:27], 0")


def make_tag(a):
    a(f"s_mul_i32 s{S_TAG+1}, s{S_TAG+1}, 0x9e3779b1\ns_add_u32 s{S_TAG+1}, s{S_TAG+1}, 0x7f4a7c15\ns_andn2_b32 s{S_TAG}, s{S_TAG+1}, 0xff")


def compute_waves(a, o):
    a("s_waitcnt lgkmcnt(0)")
    ln.ln_issue(a, S_X)
    read_tag(a)
    a(f"s_cmp_lg_u32 s20, 0\ns_cbranch_scc1 L_m_nz\nv_mov_b32 v58, {CNT_LDS}\nv_mov_b32 v60, 0\nv_mov_b32 v61, 0\nv_mov_b32 v62, 0\nv_mov_b32 v63, 0")
    a("ds_write_b128 v58, v[60:63]\ns_waitcnt lgkmcnt(0)\nL_m_nz:\ns_barrier")
    a(f"s_load_dwordx2 s[38:39], s[0:1], {KA['b1']}\ns_load_dwordx8 s[76:83], s[0:1], {KA['lar']}".replace("s[76:83]", "s[80:87]"))
    ln.ln_body(a, S_WS, LN_LDS, CNT_LDS, "ln")
    flags_srd(a, 40)
    make_tag(a)
    a("v_mov_b32 v61, 0\ns_cmp_lg_u32 s20, 3\ns_cbranch_scc1 L_m_nozero\ns_sub_u32 s23, s2, 28\ns_cmp_ge_u32 s23, 6\ns_cbranch_scc1 L_m_nozero")
    a("s_lshl_b32 s23, s2, 8\ns_mov_b64 exec, 1\nbuffer_store_dword v61, v61, s[40:43], s23 offen sc1\ns_mov_b64 exec, -1\nL_m_nozero:")
    if o["ln_lines"]:
        a(f"s_mul_i32 s24, s2, {o['lnw']}\ns_add_u32 s24, s24, {F_LNW}")
    else:
        a(f"s_and_b32 s24, s2, 63\ns_mul_i32 s24, s24, {o['lnw']}\ns_lshr_b32 s23, s2, 6\ns_lshl_b32 s23, s23, 2\ns_add_u32 s24, s24, s23\ns_add_u32 s24, s24, {F_LNW}")
    a("s_waitcnt vmcnt(0)\n; STAMP 1")
    last_wave_signals(a, "lnd", CNT_LDS + 4, 40, "s24", word=f"s{S_TAG+1}")
    a("s_cmp_ge_u32 s2, 216\ns_cbranch_scc1 L_m_conv")
    a("s_lshr_b32 s29, s2, 3\ns_lshl_b32 s29, s29, 2\ns_add_u32 s29, s29, s20")
    srd(a, 32, S_W1, W_BYTES_TOTAL)
    w1_burst(a, 32, 29, 108, o["r1"]//4*5, o["nB"])
    srd(a, 32, S_W2, W_BYTES_TOTAL)
    tile1(a)
    gc.lane_ids(a)
    gc.compute_setup(a, "A")
    srd(a, 8, 38, F*2)
    a(f"s_lshr_b32 s16, s20, 1\ns_lshl_b32 s17, s16, 7\ns_lshl_b32 s18, s14, 8\ns_add_u32 s17, s17, s18\nv_lshlrev_b32 v9, 3, v3")
    for nu in range(4):
        a(f"buffer_load_dwordx2 {vr(12+2*nu,2)}, v9, s[8:11], s17 offen offset:{32*nu}")
    for i in range(48):
        a(f"v_mov_b32 v{gc.V_ACC+i}, 0")
    srd_off(a, 44, S_WS, WS_G, G_BYTES)
    a("s_and_b32 s17, s20, 1\ns_mul_i32 s17, s17, 3\ns_mul_i32 s18, s15, 6\ns_add_u32 s17, s17, s18\ns_lshl_b32 s17, s17, 11")
    a("s_lshl_b32 s18, s14, 1\ns_add_u32 s18, s18, s16\ns_mul_i32 s18, s18, 73728\ns_add_u32 s17, s17, s18")
    a(f"s_mul_i32 s24, s15, 36\ns_add_u32 s24, s24, s14\ns_lshl_b32 s24, s24, 8\ns_add_u32 s24, s24, {F_GW}")
    a(f"s_load_dwordx4 s[52:55], s[0:1], {KA['b2']}")
    gc.compute_main(a, 32*o["rep1"], "A", False, "g1", last_barrier=True, st=(5, 2))
    if o["rep1"] == 2:
        for i in range(48):
            a(f"v_mul_f32 v{gc.V_ACC+i}, 0.5, v{gc.V_ACC+i}")
    a("s_waitcnt vmcnt(0)")
    gelu_epilogue(a, o['rnd1'], o['rot'])
    a("s_cmp_lt_u32 s2, 192\ns_cbranch_scc1 L_m_g2\ns_waitcnt vmcnt(0)")
    last_wave_signals(a, "gd", CNT_LDS + 8, 40, "s24", word=f"s{S_TAG+1}")
    a("; STAMP 3\ns_branch L_m_conv1\nL_m_g2:")
    tile2(a)
    gc.compute_setup(a, "B", s_kh=19)
    srd(a, 32, S_X, X_BYTES); srd(a, 28, 52, S*2)
    a("s_lshr_b32 s17, s20, 1\ns_lshl_b32 s17, s17, 5\ns_add_u32 s17, s17, s16")
    a("s_mul_i32 s18, s15, 96\ns_and_b32 s26, s20, 1\ns_mul_i32 s26, s26, 48\ns_add_u32 s18, s18, s26")
    a("v_mul_u32_u24 v58, 1152, v2\nv_lshl_add_u32 v58, v3, 3, v58\nv_lshlrev_b32 v9, 1, v2")
    a("s_mul_i32 s56, s17, 1152\ns_lshl_b32 s26, s18, 1\ns_add_u32 s56, s56, s26\ns_add_u32 s57, s56, 18432\ns_lshl_b32 s26, s17, 1")
    a("s_mov_b32 s22, s26\nv_mov_b32 v39, v58")
    for i in range(48):
        a(f"v_mov_b32 v{gc.V_ACC+i}, 0")
    a("v_bfe_u32 v4, v1, 2, 2\nv_lshl_add_u32 v4, v3, 2, v4\nv_lshlrev_b32 v4, 7, v4\nv_and_b32 v5, 3, v1\nv_lshl_add_u32 v4, v5, 3, v4")
    a(f"s_and_b32 s26, s20, 1\ns_mul_i32 s26, s26, 6144\ns_lshr_b32 s27, s20, 1\ns_lshl_b32 s27, s27, 6\ns_add_u32 s26, s26, s27\ns_add_u32 s26, s26, {AT_LDS}\nv_add_u32 v59, s26, v4")
    a("v_mov_b32 v31, v59")
    a("s_xor_b32 s58, s2, 4\ns_lshl_b32 s26, s20, 13\ns_lshl_b32 s59, s58, 15\ns_add_u32 s59, s59, s26\ns_lshl_b32 s60, s2, 15\ns_add_u32 s60, s60, s26")

    def x_loads(a):
        for nu in range(2):
            for dl in range(3):
                a(f"buffer_load_dwordx2 {vr(10+2*(3*nu+dl),2)}, v39, s[32:35], s{56+nu} offen offset:{32*dl}{o['xnt']}")
            a(f"buffer_load_ushort v{22+nu}, v9, s[28:31], s22 offen offset:{32*nu}")

    def publish_g(a):
        a("s_waitcnt vmcnt(0)")
        last_wave_signals(a, "gd2", CNT_LDS + 8, 40, "s24", word=f"s{S_TAG+1}")
        a("; STAMP 3\n; SWAIT")
        if not o["x_late"]:
            x_loads(a)

    if o["late_sig"]:
        gc.compute_main(a, 36, "B", True, "g2", st=(5, 4), first_stage1=publish_g)
    else:
        publish_g(a)
        gc.compute_main(a, 36*o["rep2"], "B", True, "g2", st=(5, 4))
        if o["rep2"] == 2:
            for i in range(48):
                a(f"v_mul_f32 v{gc.V_ACC+i}, 0.5, v{gc.V_ACC+i}")
    srd_off(a, 8, S_WS, WS_XCH, XCH_BYTES); srd(a, 44, 54, X_BYTES)
    a("v_mov_b32 v58, v39\nv_mov_b32 v59, v31")
    a("s_waitcnt vmcnt(0)\n; STAMP 5")
    SN = 172
    NG = 4 if o["xbf"] else 8
    for k in range(NG):
        for m in range(3):
            if o["xbf"]:
                a(f"v_cvt_pk_bf16_f32 v{SN+4*k+m}, v{gc.V_ACC+24+6*k+2*m}, v{gc.V_ACC+25+6*k+2*m}")
            else:
                a(f"v_mov_b32 v{SN+4*k+m}, v{gc.V_ACC+24+3*k+m}")
        a(f"v_mov_b32 v{SN+4*k+3}, s{S_TAG+1}")
        a(f"buffer_store_dwordx4 {vr(SN+4*k,4)}, v7, s[8:11], s59 offen sc1\ns_add_u32 s59, s59, 1024")
    if o["x_late"]:
        x_loads(a)
    a("s_barrier")
    AR, PF = 112, 124
    for nu in range(2):
        for dl in range(3):
            a(f"ds_read_b64_tr_b16 {vr(AR+2*(3*nu+dl),2)}, v59 offset:{2048*dl + 32*nu}")
    a("s_waitcnt vmcnt(0)\nv_lshlrev_b32 v22, 16, v22\nv_lshlrev_b32 v24, 16, v23\ns_waitcnt lgkmcnt(0)")
    for t in range(6):
        for h in range(2):
            unpk(a, 26, 10+2*t+h); unpk(a, 28, AR+2*t+h)
            if o["rnd2"]:
                a("v_pk_add_f32 v[26:27], v[26:27], v[28:29]\nv_cvt_pk_bf16_f32 v30, v26, v27")
                unpk(a, PF+4*t+2*h, 30)
            else:
                b = gc.V_ACC + 4*t + 2*h
                a(f"v_pk_add_f32 v[26:27], v[26:27], v[28:29]\nv_pk_add_f32 {vr(b,2)}, {vr(b,2)}, {vr(22+2*(t//3),2)} op_sel_hi:[1,0]")
                a(f"v_pk_add_f32 {vr(b,2)}, {vr(b,2)}, v[26:27]")
    RX = 204
    a(f"s_mov_b32 s61, {SPIN:#x}\ns_add_u32 s62, s60, 4096\nL_xch_poll:")
    for k in range(NG):
        a(f"buffer_load_dwordx4 {vr(RX+4*k,4)}, v7, s[8:11], s{60 + 2*(k >> 2)} offen offset:{1024*(k & 3)} sc1")
    a(f"s_sub_u32 s61, s61, 1\ns_cbranch_scc1 L_xch_go\ns_waitcnt vmcnt(0)\nv_xor_b32 v4, s{S_TAG+1}, v{RX+3}")
    for k in range(1, NG):
        a(f"v_xor_b32 v5, s{S_TAG+1}, v{RX+4*k+3}\nv_or_b32 v4, v4, v5")
    a("v_cmp_ne_u32 vcc, 0, v4\ns_cmp_eq_u64 vcc, 0\ns_cbranch_scc0 L_xch_poll\nL_xch_go:")
    for t in range(6):
        nu, dl = divmod(t, 3)
        b, p = gc.V_ACC + 4*t, PF + 4*t
        if o["xbf"]:
            for h in range(2):
                k, m = divmod(2*t + h, 3)
                unpk(a, 26+2*h, RX+4*k+m)
            for h in range(2): a(f"v_pk_add_f32 {vr(b+2*h,2)}, {vr(b+2*h,2)}, {vr(26+2*h,2)}")
        else:
            for e in range(4):
                k, m = divmod(4*t + e, 3)
                a(f"v_add_f32 v{b+e}, v{b+e}, v{RX+4*k+m}")
        if o['rnd2']:
            for h in range(2): a(f"v_cvt_pk_bf16_f32 v{26+h}, v{b+2*h}, v{b+2*h+1}")
            for h in range(2): unpk(a, b+2*h, 26+h)
            for h in range(2): a(f"v_pk_add_f32 {vr(b+2*h,2)}, {vr(b+2*h,2)}, {vr(22+2*nu,2)} op_sel_hi:[1,0]")
            for h in range(2): a(f"v_cvt_pk_bf16_f32 v{26+h}, v{b+2*h}, v{b+2*h+1}")
            for h in range(2): unpk(a, b+2*h, 26+h)
            for h in range(2): a(f"v_pk_add_f32 {vr(b+2*h,2)}, {vr(b+2*h,2)}, {vr(p+2*h,2)}")
        for h in range(2): a(f"v_cvt_pk_bf16_f32 v{10+2*t+h}, v{b+2*h}, v{b+2*h+1}")
        a(f"buffer_store_dwordx2 {vr(10+2*t,2)}, v58, s[44:47], s{56+nu} offen offset:{32*dl}{o['ont']}")
    a("s_endpgm")
    a("L_m_conv1:\ns_mov_b32 s30, 1\ns_sub_u32 s31, s2, 72\ns_lshl_b32 s31, s31, 2\ns_add_u32 s31, s31, s20\ns_branch L_m_conv2")
    a("L_m_conv:\ns_mov_b32 s30, 3\ns_sub_u32 s31, s2, 216\ns_lshl_b32 s31, s31, 2\ns_add_u32 s31, s31, s20\ns_mul_i32 s31, s31, 3\nL_m_conv2:")
    a("s_mul_i32 s29, s31, 683\ns_lshr_b32 s29, s29, 16")
    a(f"s_load_dwordx4 s[32:35], s[0:1], {KA['ldt']}\ns_waitcnt lgkmcnt(0)")
    cv.param_loads(a, 80, 32, 34)

    def signal(a):
        a("s_lshl_b32 s36, s29, 8")
        a(f"s_add_u32 s36, s36, {F_CONV}\nv_mov_b32 v4, 1\nv_mov_b32 v5, 0\ns_mov_b64 exec, 1\nbuffer_atomic_add v4, v5, s[8:11], s36 offen sc1")
    flags_srd(a, 8)
    cv.conv_role(a, "cv", S_WS, lambda a: wait_ln(a, "cvln", 8, o), signal)
    a("s_endpgm")


def fifth_wave(a, o):
    if o["prio"]:
        a(f"s_setprio {o['prio']}")
    a("s_waitcnt lgkmcnt(0)")
    flags_srd(a, 36)
    read_tag(a)
    if o["tlb"]:
        a(f"s_load_dwordx2 s[48:49], s[0:1], {KA['out']}")
        srd(a, 8, S_WS, WS_FLG + FLG_BYTES); srd(a, 16, S_W2, W_BYTES_TOTAL)
        a("v_lshlrev_b32 v4, 20, v1\nbuffer_load_dword v100, v4, s[8:11], 0 offen sc1\nbuffer_load_dword v101, v4, s[16:19], 0 offen")
    if o["touch"]:
        a(f"s_cmp_ge_u32 s2, 1\ns_cbranch_scc1 L_m_notouch\nv_mul_u32_u24 v5, {o['lnw']}, v1\ns_mov_b32 s23, {F_LNW}\nbuffer_load_dword v103, v5, s[36:39], s23 offen\nL_m_notouch:")
    srd(a, gc.SRD_W, S_W1, W_BYTES_TOTAL)
    a("s_barrier\ns_lshr_b32 s30, s2, 3")
    if o["code_pf"]:
        a("s_getpc_b64 s[12:13]\nL_m_pc:\ns_sub_u32 s12, s12, L_m_pc-L_m_base\ns_subb_u32 s13, s13, 0")
        a("s_mov_b32 s14, L_m_last-L_m_base\ns_mov_b32 s15, 0x20000\nv_lshlrev_b32 v4, 4, v1\ns_lshl_b32 s23, s30, 10")
        a("buffer_load_dwordx4 v[96:99], v4, s[12:15], s23 offen\ns_add_u32 s23, s23, 32768\nbuffer_load_dwordx4 v[96:99], v4, s[12:15], s23 offen")
    w1_stream(a, "m0", gc.SRD_W, 30, 32, o["r0"], o["r1"], o["win1"])
    a("s_waitcnt lgkmcnt(0)")
    if o["tlb"]:
        a(f"s_mov_b32 s50, {X_BYTES}\ns_mov_b32 s51, 0x20000\nv_lshlrev_b32 v4, 20, v1\nbuffer_load_dword v102, v4, s[48:51], 0 offen")
    make_tag(a)
    a("; STAMP 0\ns_cmp_ge_u32 s2, 216\ns_cbranch_scc1 L_m_helper")
    tile1(a)
    gc.lane_ids(a)
    a(f"s_mul_i32 s{gc.S_ACT0}, s15, 12288\ns_lshl_b32 s{gc.S_W0}, s14, 8")
    gc.loader_setup(a, 0, 9216, "A")
    srd_off(a, gc.SRD_ACT, S_WS, WS_HT, HT_BYTES)
    ln_local_wait(a, "lw1")
    a("; STAMP 0")
    gc.w_prefill(a, range(4), 0, 9216)
    a("; STAMP 1")
    wait_ln(a, "l1", 36, o)
    a(f"; STAMP 2\ns_cmp_lg_u32 s2, 0\ns_cbranch_scc1 L_m_noseed\nv_mov_b32 v4, s{S_TAG+1}\nv_mov_b32 v5, {F_SEED}\ns_mov_b64 exec, 1")
    a("buffer_store_dword v4, v5, s[36:39], 0 offen sc1\ns_mov_b64 exec, -1\nL_m_noseed:")
    gc.loader_after_prefill(a, 32*o["rep1"], 0, 9216, "g1", o["aflags"], tail=lambda a: None, wrap=(2048*9216, 32*73728) if o["rep1"] == 2 else None)
    srd(a, gc.SRD_W, S_W2, W_BYTES_TOTAL)
    a("s_cmp_lt_u32 s2, 192\ns_cbranch_scc1 L_m_l2")
    a("s_waitcnt vmcnt(28)\ns_barrier\ns_waitcnt vmcnt(0)\ns_barrier\ns_barrier\ns_sub_u32 s30, s2, 152\ns_lshr_b32 s30, s30, 3")
    ln_local_wait(a, "lw3", CNT_LDS+8)
    if o["x_pf"] == "early":
        srd(a, 8, S_X, X_BYTES); a("s_sub_u32 s31, s30, 5\ns_mul_i32 s31, s31, 3")
        for k in range(3):
            if k == 2:
                a("s_cmp_eq_u32 s31, 8\ns_cbranch_scc1 L_m_nox")
            x_stream(a, f"xe{k}", 8, 31)
            a("s_add_u32 s31, s31, 1")
        a("L_m_nox:")
    g_pause(a, "gp3", o)
    w2_stream(a, "m3", gc.SRD_W, 30, 8, o["r2"] + 96*o["nC"], 2304, o["win3"])
    if o["x_pf"] is True:
        srd(a, 8, S_X, X_BYTES); x_stream(a, "x3", 8, 30)
    a("s_endpgm\nL_m_l2:")
    tile2(a)
    a(f"s_mul_i32 s57, s15, 12288\ns_mul_i32 s18, s19, {36*73728}\ns_add_u32 s57, s57, s18")
    a(f"s_lshl_b32 s56, s14, 8\ns_mul_i32 s18, s19, {HALF2}\ns_add_u32 s56, s56, s18\ns_mov_b32 s54, -1\ns_mov_b32 s55, -1")
    jump = block_jump if o["rot"] else None
    if o["rot"]:
        a.extend(block_jump("w") + block_jump("a"))
    else:
        a(f"s_mov_b32 s{gc.S_W0}, s56\ns_mov_b32 s{gc.S_ACT0}, s57")
    gc.loader_setup(a, 0, 4096, "B")
    srd_off(a, gc.SRD_ACT, S_WS, WS_G, G_BYTES)
    e2 = o["early2"]
    for j, vm in enumerate((28, 0, None)):
        if j < e2:
            gc.w_prefill(a, [j], 0, 4096, jump)
        if vm is not None:
            a(f"s_waitcnt vmcnt({vm + 16*min(j+1, e2)})")
        a("s_barrier")
    a("; STAMP 5")
    gc.w_prefill(a, range(min(e2, 3), 4), 0, 4096, jump)
    a("v_mov_b32 v61, 0\n; STAMP 3")

    def wait_slot(a):
        a(f"s_mul_i32 s23, s15, 36\ns_mul_i32 s24, s19, 18\ns_add_u32 s23, s23, s24\ns_lshl_b32 s23, s23, 8\ns_add_u32 s23, s23, {F_GW}")
        a("v_and_b32 v60, 3, v1\nv_add_u32 v60, s13, v60\nv_lshlrev_b32 v60, 8, v60")
        poll(a, "l2a", 36, 60, "s23", f"s{S_TAG+1}")
        a("; STAMP 4\nv_min_u32 v60, 17, v1\nv_lshlrev_b32 v60, 8, v60\ns_mov_b32 s53, s23")

    def wait_half(a):
        poll(a, "l2b", 36, 60, "s53", f"s{S_TAG+1}")

    def at_dma(a):
        for e in range(12):
            a(f"s_mov_b32 m0, {AT_LDS + 1024*e}\nbuffer_load_dwordx4 v8, s[48:51], s26 offen sc1 lds\ns_add_u32 s26, s26, 32768")

    def at_early(a):
        srd_off(a, 48, S_WS, WS_AT, AT_BYTES)
        a(f"s_lshl_b32 s23, s15, 8\ns_add_u32 s23, s23, {F_CONV}\nbuffer_load_dword v62, v61, s[36:39], s23 offen sc1")
        a("v_lshrrev_b32 v8, 3, v1\nv_lshlrev_b32 v8, 12, v8\nv_and_b32 v9, 7, v1\nv_lshl_add_u32 v8, v9, 4, v8")
        a(f"s_mul_i32 s26, s15, {96*4096}\ns_lshl_b32 s27, s16, 1\ns_add_u32 s26, s26, s27")
        a("s_cmp_eq_u32 s15, 5\ns_cselect_b32 s24, 96, 32\ns_waitcnt vmcnt(0)\nv_readfirstlane_b32 s27, v62")
    if o["rot"]:
        gc.loader_after_prefill(a, 36, 0, 4096, "g2", o["aflags"], before_last=at_early, jump=block_jump, wait2=wait_slot, wait8=wait_half)
    else:
        ln_local_wait(a, "lw4", CNT_LDS+8)
        a(f"s_mul_i32 s53, s15, 36\ns_mul_i32 s24, s19, 18\ns_add_u32 s53, s53, s24\ns_lshl_b32 s53, s53, 8\ns_add_u32 s53, s53, {F_GW}")
        a("v_min_u32 v60, 17, v1\nv_lshlrev_b32 v60, 8, v60")
        wait_half(a)
        a("; STAMP 4")
        gc.loader_after_prefill(a, 36*o["rep2"], 0, 4096, "g2", o["aflags"], before_last=at_early, wrap=(HALF2, 36*73728) if o["rep2"] == 2 else None)
    a("s_cmp_eq_u32 s27, s24\ns_cbranch_scc1 L_at_go")
    poll(a, "at", 36, 61, "s23", "s24")
    at_dma(a)
    a("s_waitcnt vmcnt(0)\ns_barrier\ns_endpgm")
    a("L_m_helper:\ns_sub_u32 s30, s2, 216\ns_lshr_b32 s30, s30, 3")
    ln_local_wait(a, "lw2")
    w1_stream(a, "m1", gc.SRD_W, 30, 5, o["r1"] + 108*o["nB"]//5*4, 2048, o["win2"])
    a("; STAMP 1")
    srd(a, gc.SRD_W, S_W2, W_BYTES_TOTAL)
    if o["rot"]:
        w2_head(a, "mh", gc.SRD_W, 30, 5, o["win2"])
    w2_stream(a, "m2", gc.SRD_W, 30, 5, 512 if o["rot"] else o["r20"], o["r2"], o["win2"])
    a("; STAMP 2")
    g_pause(a, "gp4", o)
    w2_stream(a, "m4", gc.SRD_W, 30, 8, o["r2"] + 96*o["nC"], 2304, o["win3"])
    if o["x_pf"] is True:
        srd(a, 8, S_X, X_BYTES); x_stream(a, "x4", 8, 30)


def mega(a, name, **opt):
    o = dict(r0=0, r20=0, rep1=1, rep2=1, uflags='', rot=False, x_pf=True, ln_lines=False, x_late=True, late_sig=False, pause=0, xbf=True, rnd1=0, rnd2=0, prio=0, lnw=256, slp=1, touch=True, tlb=True, early2=3, xnt='', ont='', prefill_late=True, r1=384, nB=2, r2=400, nC=0, win1=20, win2=40, win3=40, aflags=" sc1", code_pf=9)
    o.update(opt)
    prefetch.ROT = o["rot"]
    cv.UFLAGS = o["uflags"]
    a(f".globl {name}\n.p2align 8\n.type {name},@function\n{name}:\nL_m_base:")
    a("s_cmp_ge_u32 s2, 256\ns_cbranch_scc1 L_m_end")
    a(f"s_load_dwordx2 s[{S_X}:{S_X+1}], s[0:1], {KA['x']}\ns_load_dwordx2 s[{S_WS}:{S_WS+1}], s[0:1], {KA['ws']}")
    a(f"s_load_dwordx2 s[{S_W1}:{S_W1+1}], s[0:1], {KA['w1']}\ns_load_dwordx2 s[{S_W2}:{S_W2+1}], s[0:1], {KA['w2']}")
    a("v_lshrrev_b32 v1, 6, v0\nv_readfirstlane_b32 s20, v1\nv_and_b32 v1, 63, v0")
    a("s_cmp_eq_u32 s20, 4\ns_cbranch_scc1 L_m_w4")
    compute_waves(a, o)
    a("L_m_w4:")
    fifth_wave(a, o)
    a("L_m_end:\ns_endpgm\nL_m_last:")


def warm_kernel(a, name, rows, w2rows, main, window=63):
    a(f".globl {name}\n.p2align 8\n.type {name},@function\n{name}:")
    a("s_cmp_ge_u32 s2, 256\ns_cbranch_scc1 L_pre_end")
    if rows >= 0:
        a(f"s_load_dwordx2 s[4:5], s[0:1], {KA['ws']}\ns_load_dwordx2 s[6:7], s[0:1], {KA['x']}\ns_load_dwordx2 s[20:21], s[0:1], {KA['w1']}")
        a(f"s_load_dwordx2 s[22:23], s[0:1], {KA['w2']}\ns_load_dwordx2 s[24:25], s[0:1], {KA['out']}")
        a("v_and_b32 v1, 63, v0\ns_lshr_b32 s30, s2, 3\nv_lshlrev_b32 v4, 20, v1\ns_waitcnt lgkmcnt(0)")
        srd(a, 8, 4, WS_FLG + FLG_BYTES); srd(a, 12, 6, X_BYTES); srd(a, 16, 22, W_BYTES_TOTAL); srd(a, 32, 20, W_BYTES_TOTAL); srd(a, 48, 24, X_BYTES)
        for k, rs in enumerate((8, 12, 16, 48)):
            a(f"buffer_load_dword v{100+k}, v4, s[{rs}:{rs+3}], 0 offen sc1")
        a(f"s_getpc_b64 s[12:13]\nL_pre_pc:\ns_sub_u32 s12, s12, L_pre_pc-L_m_base\ns_subb_u32 s13, s13, 0")
        a("s_mov_b32 s14, L_m_last-L_m_base\ns_mov_b32 s15, 0x20000\nv_lshlrev_b32 v4, 4, v1\ns_lshl_b32 s23, s30, 10")
        a("buffer_load_dwordx4 v[96:99], v4, s[12:15], s23 offen\ns_add_u32 s23, s23, 32768\nbuffer_load_dwordx4 v[96:99], v4, s[12:15], s23 offen")
        w1_stream(a, "pre", 32, 30, 32, 0, rows, window)
        w2_stream(a, "pre", 16, 30, 32, 0, w2rows, window)
    a("L_pre_end:\ns_endpgm")
```

```python
import sys
sys.path.insert(0, "dev")
from asmlib import *
from layout import *
import hazard, mega
from gen import HEADER, descriptor, add_stamps


def build(stamps=False, pre=None, **opt):
    name = NAME + "_kernel"
    a = Asm()
    mega.mega(a, name, **opt)
    if pre is not None:
        mega.warm_kernel(a, "warm_kernel", pre[0], pre[1], name)
    if stamps:
        a.lines = add_stamps(a.lines, [name], cyc=False)
    if stamps == "iter":
        out = []
        for ln in a.lines:
            t = ln.strip()
            if t.startswith("s_memtime s[7"):
                continue
            if t == "; ITER":
                out += ["  s_memrealtime s[76:77]", "  s_waitcnt lgkmcnt(0)", "  s_mov_b32 m0, s78", "  s_nop 0", "  v_writelane_b32 v250, s76, m0", "  s_add_u32 s78, s78, 1"]
                continue
            if t == "s_endpgm":
                out += ["  s_mov_b64 exec, -1", "  v_and_b32 v251, 63, v0", "  v_lshlrev_b32 v251, 2, v251", "  s_lshl_b32 s84, s2, 10", "  s_lshl_b32 s85, s20, 7",
                        "  s_add_u32 s84, s84, s85", "  s_add_u32 s80, s80, 0x80000", "  s_addc_u32 s81, s81, 0", "  s_mov_b32 exec_hi, 0", "  buffer_store_dword v250, v251, s[80:83], s84 offen"]
            out.append(ln)
        a.lines = out
    if stamps == "dbg":
        out, n = [], 0
        for ln in a.lines:
            if ln.strip() == "s_endpgm":
                n += 1
                out += ["  s_cmp_lg_u32 s2, 100", f"  s_cbranch_scc1 L_dbg{n}", "  s_and_b32 s84, s20, 3", "  s_cmp_lg_u32 s84, 0", f"  s_cbranch_scc1 L_dbg{n}",
                        "  s_load_dwordx2 s[80:81], s[0:1], 104", "  s_waitcnt lgkmcnt(0)", "  s_mov_b32 s82, 256", "  s_mov_b32 s83, 0x20000",
                        "  s_lshl_b32 s84, s20, 3", "  s_sub_u32 s84, s84, s20", "  s_add_u32 s84, s84, 4"]
                for k, sreg in enumerate((64, 66, 68, 70, 72, 74, 92)):
                    out += [f"  s_sub_u32 s85, s{sreg}, s90", "  v_mov_b32 v120, s85", f"  buffer_store_dword v120, v124, s[80:83], s84 offen offset:{4*k}"]
                out += [f"L_dbg{n}:"]
            out.append(ln)
        a.lines = out
    rep = []
    lines = hazard.fix(a.lines, report=rep)
    bad = hazard.check_loops(lines)
    assert not bad, bad
    text = HEADER + f"; @launch grid=(256,1,1) block=(320,1,1) lds={mega.LDS_TOTAL}\n"
    if pre is not None:
        text = HEADER + "; @launch kernel=warm_kernel grid=(256,1,1) block=(64,1,1) lds=0\n"
        text += f"; @launch kernel={name} grid=(256,1,1) block=(320,1,1) lds={mega.LDS_TOTAL}\n"
    text += '.amdgcn_target "amdgcn-amd-amdhsa--gfx950"\n.text\n' + "\n".join(lines) + "\n"
    text += '.section .rodata,"a"\n' + descriptor(name, 256, 102) + (descriptor("warm_kernel", 128, 96) if pre is not None else "")
    return text, rep


if __name__ == "__main__":
    kw = {k: eval(v) for k, v in (x.split("=", 1) for x in sys.argv[2:])}
    text, rep = build(**kw)
    open(sys.argv[1], "w").write(text)
    print(len(text), "bytes;", len(rep), "pads inserted")
```

```python
from asmlib import *

SLOT = 28672
W_BYTES = 16384
NSLOT = 4
LDS_RING = SLOT * NSLOT

V_ACC = 64
V_SET = (112, 140)
V_DW = 40
V_DA = 44
V_RW = 48
V_RA = 56

S_WAVE = 20
S_ACT0 = 21
S_W0 = 22
S_CNT = 25
SRD_ACT = 28
SRD_W = 32
SCHED = 0
LEAD = 3


def acc(nu, dl):
    return V_ACC + 4 * (nu * 3 + dl)


def wfrag(s, nu):
    return V_SET[s] + 4 * nu


def afrag(s, dl):
    return V_SET[s] + 16 + 4 * dl


def lane_ids(a):
    a("v_and_b32 v1, 63, v0\nv_and_b32 v2, 15, v1\nv_lshrrev_b32 v3, 4, v1\nv_lshlrev_b32 v7, 4, v1")


def loader_setup(a, dt_stride, w_stride, kmap):
    a(f"v_mul_u32_u24 v4, {w_stride}, v3\nv_lshlrev_b32 v5, 1, v3\nv_xor_b32 v5, v5, v2")
    a("v_lshl_add_u32 v6, v5, 4, v4\nv_xor_b32 v5, 8, v5\nv_lshl_add_u32 v8, v5, 4, v4")
    for e in range(4):
        hi = (e >> 1) & 1 if kmap == "A" else e & 1
        a(f"v_add_u32 v{V_DW+e}, {e*(4*w_stride - 1024)}, v{8 if hi else 6}")
    if dt_stride:
        for e in range(4):
            a(f"v_add_u32 v{V_DA+e}, {(e >> 1)*(dt_stride - 2048)}, v7")


def compute_setup(a, kmap, s_kh=None):
    a("v_bfe_u32 v4, v1, 2, 2")
    if kmap == "A":
        a("v_lshl_add_u32 v5, v3, 3, v4\nv_and_b32 v6, 1, v3\nv_lshl_add_u32 v6, v6, 2, v4")
    else:
        a("v_lshl_add_u32 v5, v3, 2, v4\nv_and_b32 v6, 7, v5")
    a("v_lshlrev_b32 v5, 8, v5\nv_and_b32 v8, 3, v1\nv_lshl_add_u32 v5, v8, 3, v5")
    if s_kh is None:
        a(f"s_lshr_b32 s26, s{S_WAVE}, 1\ns_lshl_b32 s26, s26, 2")
    else:
        a(f"s_and_b32 s26, s{S_WAVE}, 2\ns_lshl_b32 s27, s{s_kh}, 2\ns_add_u32 s26, s26, s27")
    for nu in range(4):
        if s_kh is None:
            a(f"s_add_u32 s27, s26, {nu}")
        else:
            a(f"s_add_u32 s27, s26, {nu & 1}\ns_xor_b32 s27, s27, {4*(nu >> 1)}")
        a(f"v_xor_b32 v8, s27, v6\nv_lshl_add_u32 v{V_RW+nu}, v8, 5, v5\nv_add_u32 v{V_RW+4+nu}, {2*SLOT}, v{V_RW+nu}")
    a(f"s_and_b32 s26, s{S_WAVE}, 1\ns_mul_i32 s26, s26, 6144\ns_add_u32 s26, s26, {W_BYTES}")
    a(f"v_add_u32 v{V_RA}, s26, v7\nv_add_u32 v{V_RA+1}, {2*SLOT}, v{V_RA}")


def dma_groups(slot, dt_stride, w_stride, aflags="", wflags="", jump=None):
    out = []
    for kind, E in (("a", 0), ("w", 0), ("w", 1), ("a", 1), ("w", 2), ("a", 2), ("w", 3)):
        if kind == "w":
            g = [f"s_mov_b32 m0, {slot*SLOT + 4096*E}"]
            g += [f"buffer_load_dwordx4 v{V_DW+e}, s[{SRD_W}:{SRD_W+3}], s{S_W0} offen offset:{1024*e}{wflags} lds" for e in range(4)]
            g += [f"s_add_u32 s{S_W0}, s{S_W0}, {16*w_stride}"]
        elif not dt_stride:
            g = [f"s_mov_b32 m0, {slot*SLOT + W_BYTES + 4096*E}"]
            g += [f"buffer_load_dwordx4 v7, s[{SRD_ACT}:{SRD_ACT+3}], s{S_ACT0} offen offset:{1024*e}{aflags} lds" for e in range(4)]
            g += [f"s_add_u32 s{S_ACT0}, s{S_ACT0}, {4096 if E < 2 else 36*2048 - 8192}"]
        else:
            g = [f"s_mov_b32 m0, {slot*SLOT + W_BYTES + 4096*E}"]
            g += [f"buffer_load_dwordx4 v{V_DA+e}, s[{SRD_ACT}:{SRD_ACT+3}], s{S_ACT0} offen offset:{1024*e}{aflags} lds" for e in range(4)]
            g += [f"s_add_u32 s{S_ACT0}, s{S_ACT0}, {2*dt_stride}" if E < 2 else f"s_sub_u32 s{S_ACT0}, s{S_ACT0}, {4*dt_stride - 2048}"]
        if jump and slot % 2 == 1 and E == (3 if kind == "w" else 2):
            g = g[:-1] + jump(kind)
        out.append(g)
    return out


def loader_main(a, nstages, dt_stride, w_stride, tag, aflags="", wflags="", before_last=None, tail=None):
    assert nstages % 4 == 0
    G = lambda j: dma_groups(j % NSLOT, dt_stride, w_stride, aflags, wflags)
    flat = lambda gs: [x for g in gs for x in g]
    vm = 28 + 4*LEAD
    a.extend(flat(G(0)) + flat(G(1)[:LEAD]))
    a(f"s_waitcnt vmcnt({4*LEAD})\ns_barrier")
    a.extend(flat(G(1)[LEAD:]) + flat(G(2)) + flat(G(3)[:LEAD]))
    a(f"s_waitcnt vmcnt({vm})\ns_barrier")
    a.extend(flat(G(3)[LEAD:]))
    a(f"s_mov_b32 s{S_CNT}, {nstages//4 - 1}\nL_{tag}_lloop:")
    for slot in range(4):
        a.extend(flat(G(slot)[:LEAD]))
        a(f"s_waitcnt vmcnt({vm})\ns_barrier")
        a.extend(flat(G(slot)[LEAD:]))
    a(f"s_sub_u32 s{S_CNT}, s{S_CNT}, 1\ns_cmp_lg_u32 s{S_CNT}, 0\ns_cbranch_scc1 L_{tag}_lloop")
    if tail:
        tail(a)
        return
    a("s_waitcnt vmcnt(28)\ns_barrier")
    if before_last:
        before_last(a)
    else:
        a("s_waitcnt vmcnt(0)")
    a("s_barrier")


def reads(s, slot, ks, kmap):
    win, so = slot >> 1, (slot & 1) * SLOT
    hoff = 4 * 256 if kmap == "A" else 16 * 256
    ra = lambda dl: f"ds_read_b128 {vr(afrag(s, dl), 4)}, v{V_RA+win} offset:{so + (2*dl + ks)*1024}"
    rw = lambda nu, h: f"ds_read_b64_tr_b16 {vr(wfrag(s, nu)+2*h, 2)}, v{V_RW+4*win+nu} offset:{so + ks*8192 + h*hoff}"
    return [ra(0), rw(0, 0), rw(0, 1), ra(1), ra(2), rw(1, 0), rw(1, 1), rw(2, 0), rw(2, 1), rw(3, 0), rw(3, 1)]


def mfmas(s, swap):
    out = []
    for nu in range(4):
        for dl in (range(3) if nu % 2 == 0 else range(2, -1, -1)):
            w, x = vr(wfrag(s, nu), 4), vr(afrag(s, dl), 4)
            p, q = (x, w) if swap else (w, x)
            out.append(f"v_mfma_f32_16x16x32_bf16 {vr(acc(nu, dl), 4)}, {p}, {q}, {vr(acc(nu, dl), 4)}")
    return out


def stage(a, slot, kmap, swap, last, last_barrier=False, pre_barrier=None):
    m = mfmas(0, swap)
    rd = reads(1, slot, 1, kmap)
    gaps = [[] for _ in range(12)]
    a("s_waitcnt lgkmcnt(6)")
    if SCHED == 0:
        gaps[0] = [rd[0], rd[1]]
        gaps[1] = [rd[2], rd[3]]
        gaps[2] = ["s_waitcnt lgkmcnt(8)", rd[4]]
        gaps[3] = [rd[5], rd[6]]
        gaps[4] = [rd[7], rd[8]]
        gaps[5] = ["s_waitcnt lgkmcnt(9)", rd[9]]
        gaps[6] = [rd[10]]
    elif SCHED == 1:
        a.lines[-1] = "  s_waitcnt lgkmcnt(0)"
        for g, items in enumerate(([0, 1], [2], [3], [4], [5, 6], [7], [8], [9], [10])):
            gaps[g] = [rd[i] for i in items]
    elif SCHED == 2:
        a.lines[-1] = "  s_waitcnt lgkmcnt(0)"
        for g in range(5):
            gaps[g] = [rd[2*g], rd[2*g+1]]
        gaps[5] = [rd[10]]
    elif SCHED == 3:
        gaps[0] = [rd[0]]
        gaps[1] = [rd[1], rd[2]]
        gaps[2] = ["s_waitcnt lgkmcnt(3)", rd[3]]
        for g, items in enumerate(([4], [5, 6], [7], [8], [9], [10])):
            gaps[3+g] = [rd[i] for i in items]
    gaps[11] = ["s_waitcnt lgkmcnt(0)"]
    a.extend(interleave(m, gaps))
    if pre_barrier:
        pre_barrier(a)
    if not last or last_barrier:
        a("s_barrier")
    m = mfmas(1, swap)
    gaps = [[] for _ in range(12)]
    if not last:
        rd = reads(0, (slot + 1) % NSLOT, 0, kmap)
        if SCHED in (0, 2):
            for g in range(5):
                gaps[g] = [rd[2*g], rd[2*g+1]]
            gaps[5] = [rd[10]]
        else:
            for g, items in enumerate(([0, 1], [2], [3], [4], [5, 6], [7], [8], [9], [10])):
                gaps[g] = [rd[i] for i in items]
    a.extend(interleave(m, gaps))


def compute_main(a, nstages, kmap, swap, tag, hook=None, last_barrier=False, st=(0, 1), first_stage1=None, tail_hook=None):
    a(f"; STAMP {st[0]}\ns_waitcnt lgkmcnt(0)\ns_barrier\n; CYC 0\n; SWAIT")
    a.extend(reads(0, 0, 0, kmap))
    a(f"s_mov_b32 s{S_CNT}, {nstages//4 - 1}")
    a(f".p2align 6\nL_{tag}_loop:")
    if hook:
        hook(a)
    a("; ITER")

    def once(a):
        a(f"s_cmp_lg_u32 s{S_CNT}, {nstages//4 - 1}\ns_cbranch_scc1 L_{tag}_once")
        first_stage1(a)
        a(f"L_{tag}_once:")
    for slot in range(4):
        stage(a, slot, kmap, swap, False, pre_barrier=once if (first_stage1 and slot == 1) else None)
    a(f"s_sub_u32 s{S_CNT}, s{S_CNT}, 1\ns_cmp_lg_u32 s{S_CNT}, 0\ns_cbranch_scc1 L_{tag}_loop")
    for slot in range(4):
        stage(a, slot, kmap, swap, slot == 3, last_barrier, pre_barrier=tail_hook if slot == 2 else None)
    a("; CYC 1")


def w_prefill(a, stages, dt_stride, w_stride, jump=None):
    for j in stages:
        for g in dma_groups(j, dt_stride, w_stride, jump=jump):
            if f"s[{SRD_W}:" in g[1]:
                a.extend(g)


def loader_after_prefill(a, nstages, dt_stride, w_stride, tag, aflags, before_last=None, tail=None, jump=None, wait2=None, wait8=None, wrap=None):
    G = lambda j: dma_groups(j % NSLOT, dt_stride, w_stride, aflags, jump=jump)
    A = lambda j: [x for g in G(j) if f"s[{SRD_ACT}:" in g[1] for x in g]
    flat = lambda gs: [x for g in gs for x in g]
    vm = 28 + 4*LEAD
    if not wait2:
        a.extend(A(0) + A(1))
        a("s_waitcnt vmcnt(12)\ns_barrier")
    if wait2:
        a.extend(jump("a"))
        a("s_waitcnt vmcnt(32)\ns_barrier\ns_barrier")
        wait2(a)
        a.extend(A(2) + A(3))
        a("s_waitcnt vmcnt(12)")
    else:
        a.extend(A(2) + A(3))
        a("s_waitcnt vmcnt(12)\ns_barrier")
    a(f"s_mov_b32 s{S_CNT}, {nstages//4 - 1}\nL_{tag}_lloop:")
    if wrap:
        a(f"s_cmp_lg_u32 s{S_CNT}, {nstages//8}\ns_cbranch_scc1 L_{tag}_nowrap\ns_sub_u32 s{S_W0}, s{S_W0}, {wrap[0]}\ns_sub_u32 s{S_ACT0}, s{S_ACT0}, {wrap[1]}\nL_{tag}_nowrap:")
    if wait8:
        a(f"s_cmp_lg_u32 s{S_CNT}, {nstages//4 - 2}\ns_cbranch_scc1 L_{tag}_no8")
        wait8(a)
        a(f"L_{tag}_no8:")
    for slot in range(4):
        a.extend(flat(G(slot)[:LEAD]))
        a(f"s_waitcnt vmcnt({vm})\ns_barrier")
        a.extend(flat(G(slot)[LEAD:]))
    a(f"s_sub_u32 s{S_CNT}, s{S_CNT}, 1\ns_cmp_lg_u32 s{S_CNT}, 0\ns_cbranch_scc1 L_{tag}_lloop")
    if tail:
        tail(a)
        return
    a("s_waitcnt vmcnt(28)\ns_barrier")
    if before_last:
        before_last(a)
    else:
        a("s_waitcnt vmcnt(0)")
    a("s_barrier")
```

```python
import struct
from asmlib import *
from layout import *
import gemm_core as gc
import mega_ln as ln
import mega_conv as cv
from prefetch import *
import prefetch

AT_LDS = gc.LDS_RING
LN_LDS = 139264
CNT_LDS = LN_LDS + 2*ln.LN_T
LDS_TOTAL = CNT_LDS + 64
S_WS, S_X, S_DBG, S_W1, S_W2 = 4, 6, 94, 96, 98
SPIN = 0x100000
S_TAG = 100
F_SEED = 255 * 256


def f32hex(x):
    return "0x%08x" % struct.unpack("<I", struct.pack("<f", x))[0]


def div6(a, d, r, x):
    a(f"s_mul_i32 s{d}, s{x}, 10923\ns_lshr_b32 s{d}, s{d}, 16\ns_mul_i32 s{r}, s{d}, 6\ns_sub_u32 s{r}, s{x}, s{r}")


def unpk(a, x, p):
    a(f"v_lshlrev_b32 v{x}, 16, v{p}\nv_and_b32 v{x+1}, 0xffff0000, v{p}")


def poll(a, tag, rs, vaddr, soff, target, sleep=1, mask=None):
    a(f"s_mov_b32 s61, {SPIN:#x}\nL_{tag}_poll:\nbuffer_load_dword v62, v{vaddr}, s[{rs}:{rs+3}], {soff} offen sc1")
    a(f"s_sub_u32 s61, s61, 1\ns_cbranch_scc1 L_{tag}_go\ns_waitcnt vmcnt(0)")
    if mask:
        a(f"v_and_b32 v62, {mask:#x}, v62")
    a(f"v_cmp_ne_u32 vcc, {target}, v62")
    a(f"s_cmp_eq_u64 vcc, 0\ns_cbranch_scc1 L_{tag}_go")
    if sleep:
        a(f"s_sleep {sleep}")
    a(f"s_branch L_{tag}_poll\nL_{tag}_go:")


def flags_srd(a, d):
    srd_off(a, d, S_WS, WS_FLG, FLG_BYTES)


def last_wave_signals(a, tag, cnt, rs, soff, word=None, second=None):
    a(f"v_mov_b32 v58, {cnt}\nv_mov_b32 v59, 1\nv_mov_b32 v61, 0\ns_mov_b64 exec, 1\nds_add_rtn_u32 v60, v58, v59\ns_waitcnt lgkmcnt(0)")
    a(f"v_readfirstlane_b32 s23, v60\ns_cmp_lg_u32 s23, 3\ns_cbranch_scc1 L_{tag}_notlast")
    if word:
        a(f"v_mov_b32 v59, {word}\nbuffer_store_dword v59, v61, s[{rs}:{rs+3}], {soff} offen sc1")
    else:
        if second:
            a(f"buffer_atomic_add v59, v61, s[{rs}:{rs+3}], {second} offen sc1")
        a(f"buffer_atomic_add v59, v61, s[{rs}:{rs+3}], {soff} offen sc1")
    a(f"L_{tag}_notlast:\ns_mov_b64 exec, -1")


def ln_local_wait(a, tag, cnt=CNT_LDS+4):
    a(f"v_mov_b32 v58, {cnt}\nL_{tag}:\ns_sleep 2\nds_read_b32 v60, v58\ns_waitcnt lgkmcnt(0)\nv_readfirstlane_b32 s23, v60\ns_cmp_lt_u32 s23, 4\ns_cbranch_scc1 L_{tag}")


def g_pause(a, tag, o):
    if not o["pause"]:
        return
    a(f"s_lshr_b32 s23, s2, 3\ns_mul_i32 s24, s23, 43\ns_lshr_b32 s24, s24, 9\ns_mul_i32 s24, s24, 12\ns_sub_u32 s23, s23, s24\ns_lshl_b32 s23, s23, 8\ns_add_u32 s23, s23, {F_G}")
    a(f"v_mov_b32 v61, 0\ns_mov_b32 s61, {SPIN:#x}\nL_{tag}_poll:\nbuffer_load_dword v62, v61, s[36:39], s23 offen sc1\ns_sub_u32 s61, s61, 1\ns_cbranch_scc1 L_{tag}_go")
    a(f"s_waitcnt vmcnt(0)\nv_readfirstlane_b32 s24, v62\ns_cmp_ge_u32 s24, {o['pause']}\ns_cbranch_scc1 L_{tag}_go\ns_sleep 8\ns_branch L_{tag}_poll\nL_{tag}_go:")


def wait_ln(a, tag, rs, o):
    a(f"v_mul_u32_u24 v61, {o['lnw']}, v1\ns_mov_b32 s61, {SPIN:#x}\nL_{tag}_poll:")
    if o["ln_lines"]:
        for k in range(4):
            a(f"s_mov_b32 s62, {F_LNW + k*64*o['lnw']}\nbuffer_load_dword v{180+k}, v61, s[{rs}:{rs+3}], s62 offen sc1")
    else:
        a(f"s_mov_b32 s62, {F_LNW}\nbuffer_load_dwordx4 v[180:183], v61, s[{rs}:{rs+3}], s62 offen sc1")
    a(f"s_sub_u32 s61, s61, 1\ns_cbranch_scc1 L_{tag}_go\ns_waitcnt vmcnt(0)")
    a(f"v_xor_b32 v180, s{S_TAG+1}, v180\nv_xor_b32 v181, s{S_TAG+1}, v181\nv_xor_b32 v182, s{S_TAG+1}, v182\nv_xor_b32 v183, s{S_TAG+1}, v183")
    a("v_or3_b32 v180, v180, v181, v182\nv_or_b32 v180, v180, v183\nv_cmp_ne_u32 vcc, 0, v180")
    a(f"s_cmp_eq_u64 vcc, 0\ns_cbranch_scc1 L_{tag}_go\ns_sleep {o['slp']}\ns_branch L_{tag}_poll\nL_{tag}_go:")


def tile1(a):
    a("s_and_b32 s12, s2, 7\ns_lshr_b32 s13, s2, 3\ns_and_b32 s14, s12, 1\ns_mul_i32 s14, s14, 3\ns_add_u32 s13, s13, s14")
    a("s_cmp_ge_u32 s13, 27\ns_cselect_b32 s14, 27, 0\ns_sub_u32 s13, s13, s14\ns_mul_i32 s12, s12, 27\ns_add_u32 s12, s12, s13")
    div6(a, 14, 15, 12)


def tile2(a):
    a("s_lshr_b32 s13, s2, 3")
    div6(a, 12, 15, 13)
    a("s_bfe_u32 s19, s2, 0x10002\ns_and_b32 s13, s2, 3\ns_lshl_b32 s14, s13, 2\ns_add_u32 s14, s14, s12")
    a("s_mul_i32 s13, s13, 9\ns_add_u32 s13, s13, 1\ns_lshr_b32 s13, s13, 1")
    a("s_lshl_b32 s16, s14, 7\ns_lshl_b32 s17, s19, 6\ns_add_u32 s16, s16, s17")


def block_jump(kind):
    cnt, base, dst, step = (54, 56, gc.S_W0, 128*4096) if kind == "w" else (55, 57, gc.S_ACT0, 2*73728)
    return [f"s_add_u32 s{cnt}, s{cnt}, 1", f"s_add_u32 s18, s{cnt}, s12", "s_and_b32 s18, s18, 3", f"s_cmp_lt_u32 s{cnt}, 4",
            f"s_cselect_b32 s18, s18, s{cnt}", "s_add_u32 s18, s18, s13", "s_cmp_ge_u32 s18, 18", "s_cselect_b32 s17, 18, 0",
            "s_sub_u32 s18, s18, s17", f"s_mul_i32 s18, s18, {step}", f"s_add_u32 s{dst}, s18, s{base}"]


def gelu_epilogue(a, rounds, rot):
    c1 = -2.0 * 0.7978845608028654 * 1.4426950408889634
    a(f"s_mov_b32 s48, {f32hex(c1*0.044715)}\ns_mov_b32 s49, s48\nv_mov_b32 v36, {f32hex(c1)}\nv_mov_b32 v37, v36")
    for nu in range(4):
        unpk(a, 20+4*nu, 12+2*nu); unpk(a, 22+4*nu, 13+2*nu)
    a(f"s_lshr_b32 s26, s20, 1\ns_mul_i32 s26, s26, {gc.SLOT}\ns_and_b32 s27, s20, 1\ns_mul_i32 s27, s27, 6144\ns_add_u32 s26, s26, s27\ns_add_u32 s26, s26, {gc.W_BYTES}\nv_add_u32 v38, s26, v7")
    B = 112
    for dl in range(3):
        for pi in range(2):
            src = [(gc.acc(2*pi + (k >> 1), dl) + 2*(k & 1), 20 + 4*(2*pi + (k >> 1)) + 2*(k & 1)) for k in range(4)]
            U = [B + 2*k for k in range(4)]; T = [B + 8 + 2*k for k in range(4)]; P = [B + 16 + k for k in range(4)]
            O = B + 20 + 4*((2*dl + pi) % 2)
            if rounds == 2:
                for k in range(4): a(f"v_cvt_pk_bf16_f32 v{P[k]}, v{src[k][0]}, v{src[k][0]+1}")
                for k in range(4): unpk(a, U[k], P[k])
                for k in range(4): a(f"v_pk_add_f32 {vr(U[k],2)}, {vr(U[k],2)}, {vr(src[k][1],2)}")
            else:
                for k in range(4): a(f"v_pk_add_f32 {vr(U[k],2)}, {vr(src[k][0],2)}, {vr(src[k][1],2)}")
            if rounds >= 1:
                for k in range(4): a(f"v_cvt_pk_bf16_f32 v{P[k]}, v{U[k]}, v{U[k]+1}")
                for k in range(4): unpk(a, U[k], P[k])
            for k in range(4): a(f"v_pk_mul_f32 {vr(T[k],2)}, {vr(U[k],2)}, {vr(U[k],2)}")
            for k in range(4): a(f"v_pk_fma_f32 {vr(T[k],2)}, {vr(T[k],2)}, s[48:49], v[36:37]")
            for k in range(4): a(f"v_pk_mul_f32 {vr(T[k],2)}, {vr(T[k],2)}, {vr(U[k],2)}")
            for k in range(4): a(f"v_exp_f32 v{T[k]}, v{T[k]}\nv_exp_f32 v{T[k]+1}, v{T[k]+1}")
            for k in range(4): a(f"v_pk_add_f32 {vr(T[k],2)}, {vr(T[k],2)}, 1.0 op_sel_hi:[1,0]")
            for k in range(4): a(f"v_rcp_f32 v{T[k]}, v{T[k]}\nv_rcp_f32 v{T[k]+1}, v{T[k]+1}")
            for k in range(4): a(f"v_pk_mul_f32 {vr(U[k],2)}, {vr(U[k],2)}, {vr(T[k],2)}")
            for k in range(4): a(f"v_cvt_pk_bf16_f32 v{O+k}, v{U[k]}, v{U[k]+1}")
            a(f"buffer_store_dwordx4 {vr(O,4)}, v7, s[44:47], s17 offen offset:{1024*pi} sc1")
            if rot:
                a(f"ds_write_b128 v38, {vr(O,4)} offset:{(2*dl + pi)*1024}")
        a("s_add_u32 s17, s17, 2048")


def read_tag(a):
    a(f"s_add_u32 s26, s{S_WS}, {WS_FLG + F_SEED:#x}\ns_addc_u32 s27, s{S_WS+1}, 0\ns_load_dword s{S_TAG+1}, s[26:27], 0")


def make_tag(a):
    a(f"s_mul_i32 s{S_TAG+1}, s{S_TAG+1}, 0x9e3779b1\ns_add_u32 s{S_TAG+1}, s{S_TAG+1}, 0x7f4a7c15\ns_andn2_b32 s{S_TAG}, s{S_TAG+1}, 0xff")


def compute_waves(a, o):
    a("s_waitcnt lgkmcnt(0)")
    ln.ln_issue(a, S_X)
    read_tag(a)
    a(f"s_cmp_lg_u32 s20, 0\ns_cbranch_scc1 L_m_nz\nv_mov_b32 v58, {CNT_LDS}\nv_mov_b32 v60, 0\nv_mov_b32 v61, 0\nv_mov_b32 v62, 0\nv_mov_b32 v63, 0")
    a("ds_write_b128 v58, v[60:63]\nL_m_nz:")
    if o["early_bar"]:
        a("s_waitcnt lgkmcnt(0)\ns_barrier")
    a(f"s_load_dwordx2 s[38:39], s[0:1], {KA['b1']}\ns_load_dwordx8 s[76:83], s[0:1], {KA['lar']}".replace("s[76:83]", "s[80:87]"))
    ln.ln_body(a, S_WS, LN_LDS, CNT_LDS, "ln", not o["early_bar"])
    flags_srd(a, 40)
    make_tag(a)
    a("v_mov_b32 v61, 0\ns_cmp_lg_u32 s20, 3\ns_cbranch_scc1 L_m_nozero\ns_sub_u32 s23, s2, 28\ns_cmp_ge_u32 s23, 6\ns_cbranch_scc1 L_m_nozero")
    a("s_lshl_b32 s23, s2, 8\ns_mov_b64 exec, 1\nbuffer_store_dword v61, v61, s[40:43], s23 offen sc1\ns_mov_b64 exec, -1\nL_m_nozero:")
    if o["ln_lines"]:
        a(f"s_mul_i32 s24, s2, {o['lnw']}\ns_add_u32 s24, s24, {F_LNW}")
    else:
        a(f"s_and_b32 s24, s2, 63\ns_mul_i32 s24, s24, {o['lnw']}\ns_lshr_b32 s23, s2, 6\ns_lshl_b32 s23, s23, 2\ns_add_u32 s24, s24, s23\ns_add_u32 s24, s24, {F_LNW}")
    a("s_waitcnt vmcnt(0)\n; STAMP 1")
    last_wave_signals(a, "lnd", CNT_LDS + 4, 40, "s24", word=f"s{S_TAG+1}")
    a("s_cmp_ge_u32 s2, 216\ns_cbranch_scc1 L_m_conv")
    a("s_lshr_b32 s29, s2, 3\ns_lshl_b32 s29, s29, 2\ns_add_u32 s29, s29, s20")
    srd(a, 32, S_W1, W_BYTES_TOTAL)
    w1_burst(a, 32, 29, 108, o["r1"]//4*5, o["nB"])
    srd(a, 32, S_W2, W_BYTES_TOTAL)
    tile1(a)
    gc.lane_ids(a)
    gc.compute_setup(a, "A")
    srd(a, 8, 38, F*2)
    a(f"s_lshr_b32 s16, s20, 1\ns_lshl_b32 s17, s16, 7\ns_lshl_b32 s18, s14, 8\ns_add_u32 s17, s17, s18\nv_lshlrev_b32 v9, 3, v3")
    for nu in range(4):
        a(f"buffer_load_dwordx2 {vr(12+2*nu,2)}, v9, s[8:11], s17 offen offset:{32*nu}")
    for i in range(48):
        a(f"v_mov_b32 v{gc.V_ACC+i}, 0")
    srd_off(a, 44, S_WS, WS_G, G_BYTES)
    a("s_and_b32 s17, s20, 1\ns_mul_i32 s17, s17, 3\ns_mul_i32 s18, s15, 6\ns_add_u32 s17, s17, s18\ns_lshl_b32 s17, s17, 11")
    a("s_lshl_b32 s18, s14, 1\ns_add_u32 s18, s18, s16\ns_mul_i32 s18, s18, 73728\ns_add_u32 s17, s17, s18")
    a(f"s_mul_i32 s24, s15, 36\ns_add_u32 s24, s24, s14\ns_lshl_b32 s24, s24, 8\ns_add_u32 s24, s24, {F_GW}")
    a(f"s_load_dwordx4 s[52:55], s[0:1], {KA['b2']}")
    gc.compute_main(a, 32*o["rep1"], "A", False, "g1", last_barrier=True, st=(5, 2))
    if o["rep1"] == 2:
        for i in range(48):
            a(f"v_mul_f32 v{gc.V_ACC+i}, 0.5, v{gc.V_ACC+i}")
    a("s_waitcnt vmcnt(0)")
    gelu_epilogue(a, o['rnd1'], o['rot'])
    a("s_cmp_lt_u32 s2, 192\ns_cbranch_scc1 L_m_g2\ns_waitcnt vmcnt(0)")
    last_wave_signals(a, "gd", CNT_LDS + 8, 40, "s24", word=f"s{S_TAG+1}")
    a("; STAMP 3\ns_branch L_m_conv1\nL_m_g2:")
    tile2(a)
    gc.compute_setup(a, "B", s_kh=19)
    srd(a, 32, S_X, X_BYTES); srd(a, 28, 52, S*2)
    a("s_lshr_b32 s17, s20, 1\ns_lshl_b32 s17, s17, 5\ns_add_u32 s17, s17, s16")
    a("s_mul_i32 s18, s15, 96\ns_and_b32 s26, s20, 1\ns_mul_i32 s26, s26, 48\ns_add_u32 s18, s18, s26")
    a("v_mul_u32_u24 v58, 1152, v2\nv_lshl_add_u32 v58, v3, 3, v58\nv_lshlrev_b32 v9, 1, v2")
    a("s_mul_i32 s56, s17, 1152\ns_lshl_b32 s26, s18, 1\ns_add_u32 s56, s56, s26\ns_add_u32 s57, s56, 18432\ns_lshl_b32 s26, s17, 1")
    a("s_mov_b32 s22, s26\nv_mov_b32 v39, v58")
    for i in range(48):
        a(f"v_mov_b32 v{gc.V_ACC+i}, 0")
    a("v_bfe_u32 v4, v1, 2, 2\nv_lshl_add_u32 v4, v3, 2, v4\nv_lshlrev_b32 v4, 7, v4\nv_and_b32 v5, 3, v1\nv_lshl_add_u32 v4, v5, 3, v4")
    a(f"s_and_b32 s26, s20, 1\ns_mul_i32 s26, s26, 6144\ns_lshr_b32 s27, s20, 1\ns_lshl_b32 s27, s27, 6\ns_add_u32 s26, s26, s27\ns_add_u32 s26, s26, {AT_LDS}\nv_add_u32 v59, s26, v4")
    a("v_mov_b32 v31, v59")
    a("s_xor_b32 s58, s2, 4\ns_lshl_b32 s26, s20, 13\ns_lshl_b32 s59, s58, 15\ns_add_u32 s59, s59, s26\ns_lshl_b32 s60, s2, 15\ns_add_u32 s60, s60, s26")

    def x_loads(a):
        for nu in range(2):
            for dl in range(3):
                a(f"buffer_load_dwordx2 {vr(10+2*(3*nu+dl),2)}, v39, s[32:35], s{56+nu} offen offset:{32*dl}{o['xnt']}")
            a(f"buffer_load_ushort v{22+nu}, v9, s[28:31], s22 offen offset:{32*nu}")

    def publish_g(a):
        a("s_waitcnt vmcnt(0)")
        last_wave_signals(a, "gd2", CNT_LDS + 8, 40, "s24", word=f"s{S_TAG+1}")
        a("; STAMP 3\n; SWAIT")
        if not o["x_late"]:
            x_loads(a)

    if o["late_sig"]:
        gc.compute_main(a, 36, "B", True, "g2", st=(5, 4), first_stage1=publish_g)
    else:
        publish_g(a)
        gc.compute_main(a, 36*o["rep2"], "B", True, "g2", st=(5, 4), tail_hook=x_loads if o["x_late"] == "tail" else None)
        if o["rep2"] == 2:
            for i in range(48):
                a(f"v_mul_f32 v{gc.V_ACC+i}, 0.5, v{gc.V_ACC+i}")
    srd_off(a, 8, S_WS, WS_XCH, XCH_BYTES); srd(a, 44, 54, X_BYTES)
    a("v_mov_b32 v58, v39\nv_mov_b32 v59, v31")
    a("; STAMP 5")
    SN = 172
    NG = 4 if o["xbf"] else 8
    for k in range(NG):
        for m in range(3):
            if o["xbf"]:
                a(f"v_cvt_pk_bf16_f32 v{SN+4*k+m}, v{gc.V_ACC+24+6*k+2*m}, v{gc.V_ACC+25+6*k+2*m}")
            else:
                a(f"v_mov_b32 v{SN+4*k+m}, v{gc.V_ACC+24+3*k+m}")
        a(f"v_mov_b32 v{SN+4*k+3}, s{S_TAG+1}")
        a(f"buffer_store_dwordx4 {vr(SN+4*k,4)}, v7, s[8:11], s59 offen sc1\ns_add_u32 s59, s59, 1024")
    if o["x_late"] is True:
        x_loads(a)
    a("s_barrier")
    AR, PF = 112, 124
    for nu in range(2):
        for dl in range(3):
            a(f"ds_read_b64_tr_b16 {vr(AR+2*(3*nu+dl),2)}, v59 offset:{2048*dl + 32*nu}")
    a(f"s_waitcnt vmcnt({0 if o['x_late'] is True else NG})\nv_lshlrev_b32 v22, 16, v22\nv_lshlrev_b32 v24, 16, v23\ns_waitcnt lgkmcnt(0)")
    for t in range(6):
        for h in range(2):
            unpk(a, 26, 10+2*t+h); unpk(a, 28, AR+2*t+h)
            if o["rnd2"]:
                a("v_pk_add_f32 v[26:27], v[26:27], v[28:29]\nv_cvt_pk_bf16_f32 v30, v26, v27")
                unpk(a, PF+4*t+2*h, 30)
            else:
                b = gc.V_ACC + 4*t + 2*h
                a(f"v_pk_add_f32 v[26:27], v[26:27], v[28:29]\nv_pk_add_f32 {vr(b,2)}, {vr(b,2)}, {vr(22+2*(t//3),2)} op_sel_hi:[1,0]")
                a(f"v_pk_add_f32 {vr(b,2)}, {vr(b,2)}, v[26:27]")
    RX = 204
    a(f"s_mov_b32 s61, {SPIN:#x}\ns_add_u32 s62, s60, 4096\nL_xch_poll:")
    for k in range(NG):
        a(f"buffer_load_dwordx4 {vr(RX+4*k,4)}, v7, s[8:11], s{60 + 2*(k >> 2)} offen offset:{1024*(k & 3)} sc1")
    a(f"s_sub_u32 s61, s61, 1\ns_cbranch_scc1 L_xch_go\ns_waitcnt vmcnt(0)\nv_xor_b32 v4, s{S_TAG+1}, v{RX+3}")
    for k in range(1, NG):
        a(f"v_xor_b32 v5, s{S_TAG+1}, v{RX+4*k+3}\nv_or_b32 v4, v4, v5")
    a("v_cmp_ne_u32 vcc, 0, v4\ns_cmp_eq_u64 vcc, 0\ns_cbranch_scc0 L_xch_poll\nL_xch_go:")
    for t in range(6):
        nu, dl = divmod(t, 3)
        b, p = gc.V_ACC + 4*t, PF + 4*t
        if o["xbf"]:
            for h in range(2):
                k, m = divmod(2*t + h, 3)
                unpk(a, 26+2*h, RX+4*k+m)
            for h in range(2): a(f"v_pk_add_f32 {vr(b+2*h,2)}, {vr(b+2*h,2)}, {vr(26+2*h,2)}")
        else:
            for e in range(4):
                k, m = divmod(4*t + e, 3)
                a(f"v_add_f32 v{b+e}, v{b+e}, v{RX+4*k+m}")
        if o['rnd2']:
            for h in range(2): a(f"v_cvt_pk_bf16_f32 v{26+h}, v{b+2*h}, v{b+2*h+1}")
            for h in range(2): unpk(a, b+2*h, 26+h)
            for h in range(2): a(f"v_pk_add_f32 {vr(b+2*h,2)}, {vr(b+2*h,2)}, {vr(22+2*nu,2)} op_sel_hi:[1,0]")
            for h in range(2): a(f"v_cvt_pk_bf16_f32 v{26+h}, v{b+2*h}, v{b+2*h+1}")
            for h in range(2): unpk(a, b+2*h, 26+h)
            for h in range(2): a(f"v_pk_add_f32 {vr(b+2*h,2)}, {vr(b+2*h,2)}, {vr(p+2*h,2)}")
        for h in range(2): a(f"v_cvt_pk_bf16_f32 v{10+2*t+h}, v{b+2*h}, v{b+2*h+1}")
        a(f"buffer_store_dwordx2 {vr(10+2*t,2)}, v58, s[44:47], s{56+nu} offen offset:{32*dl}{o['ont']}")
    a("s_endpgm")
    a("L_m_conv1:\ns_mov_b32 s30, 1\ns_sub_u32 s31, s2, 72\ns_lshl_b32 s31, s31, 2\ns_add_u32 s31, s31, s20\ns_branch L_m_conv2")
    a("L_m_conv:\ns_mov_b32 s30, 3\ns_sub_u32 s31, s2, 216\ns_lshl_b32 s31, s31, 2\ns_add_u32 s31, s31, s20\ns_mul_i32 s31, s31, 3\nL_m_conv2:")
    a("s_mul_i32 s29, s31, 683\ns_lshr_b32 s29, s29, 16")
    a(f"s_load_dwordx4 s[32:35], s[0:1], {KA['ldt']}\ns_waitcnt lgkmcnt(0)")
    cv.param_loads(a, 80, 32, 34)

    def signal(a):
        a("s_lshl_b32 s36, s29, 8")
        a(f"s_add_u32 s36, s36, {F_CONV}\nv_mov_b32 v4, 1\nv_mov_b32 v5, 0\ns_mov_b64 exec, 1\nbuffer_atomic_add v4, v5, s[8:11], s36 offen sc1")
    flags_srd(a, 8)
    cv.conv_role(a, "cv", S_WS, lambda a: wait_ln(a, "cvln", 8, o), signal)
    a("s_endpgm")


def fifth_wave(a, o):
    if o["prio"]:
        a(f"s_setprio {o['prio']}")
    a("s_waitcnt lgkmcnt(0)")
    flags_srd(a, 36)
    read_tag(a)
    if o["tlb"]:
        a(f"s_load_dwordx2 s[48:49], s[0:1], {KA['out']}")
        srd(a, 8, S_WS, WS_FLG + FLG_BYTES); srd(a, 16, S_W2, W_BYTES_TOTAL)
        a("v_lshlrev_b32 v4, 20, v1\nbuffer_load_dword v100, v4, s[8:11], 0 offen sc1\nbuffer_load_dword v101, v4, s[16:19], 0 offen")
    if o["touch"]:
        a(f"s_cmp_ge_u32 s2, 1\ns_cbranch_scc1 L_m_notouch\nv_mul_u32_u24 v5, {o['lnw']}, v1\ns_mov_b32 s23, {F_LNW}\nbuffer_load_dword v103, v5, s[36:39], s23 offen\nL_m_notouch:")
    srd(a, gc.SRD_W, S_W1, W_BYTES_TOTAL)
    if o["early_bar"]:
        a("s_barrier")
    a("s_lshr_b32 s30, s2, 3")
    if o["code_pf"]:
        a("s_getpc_b64 s[12:13]\nL_m_pc:\ns_sub_u32 s12, s12, L_m_pc-L_m_base\ns_subb_u32 s13, s13, 0")
        a("s_mov_b32 s14, L_m_last-L_m_base\ns_mov_b32 s15, 0x20000\nv_lshlrev_b32 v4, 4, v1\ns_lshl_b32 s23, s30, 10")
        a("buffer_load_dwordx4 v[96:99], v4, s[12:15], s23 offen\ns_add_u32 s23, s23, 32768\nbuffer_load_dwordx4 v[96:99], v4, s[12:15], s23 offen")
    w1_stream(a, "m0", gc.SRD_W, 30, 32, o["r0"], o["r1"], o["win1"])
    if o["extra23"]:
        a("s_and_b32 s23, s2, 6\ns_cmp_lg_u32 s23, 2\ns_cbranch_scc1 L_m_nox23")
        w1_stream(a, "m23", gc.SRD_W, 30, 32, 2048 - o["extra23"], 2048, o["win1"])
        a("L_m_nox23:")
    a("s_waitcnt lgkmcnt(0)")
    if o["tlb"]:
        a(f"s_mov_b32 s50, {X_BYTES}\ns_mov_b32 s51, 0x20000\nv_lshlrev_b32 v4, 20, v1\nbuffer_load_dword v102, v4, s[48:51], 0 offen")
    make_tag(a)
    if not o["early_bar"]:
        a("s_barrier")
    a("; STAMP 0\ns_cmp_ge_u32 s2, 216\ns_cbranch_scc1 L_m_helper")
    tile1(a)
    gc.lane_ids(a)
    a(f"s_mul_i32 s{gc.S_ACT0}, s15, 12288\ns_lshl_b32 s{gc.S_W0}, s14, 8")
    gc.loader_setup(a, 0, 9216, "A")
    srd_off(a, gc.SRD_ACT, S_WS, WS_HT, HT_BYTES)
    ln_local_wait(a, "lw1")
    a("; STAMP 0")
    gc.w_prefill(a, range(4), 0, 9216)
    a("; STAMP 1")
    wait_ln(a, "l1", 36, o)
    a(f"; STAMP 2\ns_cmp_lg_u32 s2, 0\ns_cbranch_scc1 L_m_noseed\nv_mov_b32 v4, s{S_TAG+1}\nv_mov_b32 v5, {F_SEED}\ns_mov_b64 exec, 1")
    a("buffer_store_dword v4, v5, s[36:39], 0 offen sc1\ns_mov_b64 exec, -1\nL_m_noseed:")
    gc.loader_after_prefill(a, 32*o["rep1"], 0, 9216, "g1", o["aflags"], tail=lambda a: None, wrap=(2048*9216, 32*73728) if o["rep1"] == 2 else None)
    srd(a, gc.SRD_W, S_W2, W_BYTES_TOTAL)
    a("s_cmp_lt_u32 s2, 192\ns_cbranch_scc1 L_m_l2")
    a("s_waitcnt vmcnt(28)\ns_barrier\ns_waitcnt vmcnt(0)\ns_barrier\ns_barrier\ns_sub_u32 s30, s2, 152\ns_lshr_b32 s30, s30, 3")
    ln_local_wait(a, "lw3", CNT_LDS+8)
    if o["x_pf"] == "early":
        srd(a, 8, S_X, X_BYTES); a("s_sub_u32 s31, s30, 5\ns_mul_i32 s31, s31, 3")
        for k in range(3):
            if k == 2:
                a("s_cmp_eq_u32 s31, 8\ns_cbranch_scc1 L_m_nox")
            x_stream(a, f"xe{k}", 8, 31)
            a("s_add_u32 s31, s31, 1")
        a("L_m_nox:")
    g_pause(a, "gp3", o)
    w2_stream(a, "m3", gc.SRD_W, 30, 8, o["r2"] + 96*o["nC"], 2304, o["win3"])
    if o["x_pf"] is True:
        srd(a, 8, S_X, X_BYTES); x_stream(a, "x3", 8, 30)
    a("s_endpgm\nL_m_l2:")
    tile2(a)
    a(f"s_mul_i32 s57, s15, 12288\ns_mul_i32 s18, s19, {36*73728}\ns_add_u32 s57, s57, s18")
    a(f"s_lshl_b32 s56, s14, 8\ns_mul_i32 s18, s19, {HALF2}\ns_add_u32 s56, s56, s18\ns_mov_b32 s54, -1\ns_mov_b32 s55, -1")
    jump = block_jump if o["rot"] else None
    if o["rot"]:
        a.extend(block_jump("w") + block_jump("a"))
    else:
        a(f"s_mov_b32 s{gc.S_W0}, s56\ns_mov_b32 s{gc.S_ACT0}, s57")
    gc.loader_setup(a, 0, 4096, "B")
    srd_off(a, gc.SRD_ACT, S_WS, WS_G, G_BYTES)
    e2 = o["early2"]
    for j, vm in enumerate((28, 0, None)):
        if j < e2:
            gc.w_prefill(a, [j], 0, 4096, jump)
        if vm is not None:
            a(f"s_waitcnt vmcnt({vm + 16*min(j+1, e2)})")
        a("s_barrier")
    a("; STAMP 5")
    gc.w_prefill(a, range(min(e2, 3), 4), 0, 4096, jump)
    a("v_mov_b32 v61, 0\n; STAMP 3")

    def wait_slot(a):
        a(f"s_mul_i32 s23, s15, 36\ns_mul_i32 s24, s19, 18\ns_add_u32 s23, s23, s24\ns_lshl_b32 s23, s23, 8\ns_add_u32 s23, s23, {F_GW}")
        a("v_and_b32 v60, 3, v1\nv_add_u32 v60, s13, v60\nv_lshlrev_b32 v60, 8, v60")
        poll(a, "l2a", 36, 60, "s23", f"s{S_TAG+1}")
        a("; STAMP 4\nv_min_u32 v60, 17, v1\nv_lshlrev_b32 v60, 8, v60\ns_mov_b32 s53, s23")

    def wait_half(a):
        poll(a, "l2b", 36, 60, "s53", f"s{S_TAG+1}")

    def at_dma(a):
        for e in range(12):
            a(f"s_mov_b32 m0, {AT_LDS + 1024*e}\nbuffer_load_dwordx4 v8, s[48:51], s26 offen sc1 lds\ns_add_u32 s26, s26, 32768")

    def at_early(a):
        srd_off(a, 48, S_WS, WS_AT, AT_BYTES)
        a(f"s_lshl_b32 s23, s15, 8\ns_add_u32 s23, s23, {F_CONV}\nbuffer_load_dword v62, v61, s[36:39], s23 offen sc1")
        a("v_lshrrev_b32 v8, 3, v1\nv_lshlrev_b32 v8, 12, v8\nv_and_b32 v9, 7, v1\nv_lshl_add_u32 v8, v9, 4, v8")
        a(f"s_mul_i32 s26, s15, {96*4096}\ns_lshl_b32 s27, s16, 1\ns_add_u32 s26, s26, s27")
        a("s_cmp_eq_u32 s15, 5\ns_cselect_b32 s24, 96, 32\ns_waitcnt vmcnt(0)\nv_readfirstlane_b32 s27, v62")
        a("s_cmp_lg_u32 s27, s24\ns_cbranch_scc1 L_at_skip")
        at_dma(a)
        a("L_at_skip:")
    if o["rot"]:
        gc.loader_after_prefill(a, 36, 0, 4096, "g2", o["aflags"], before_last=at_early, jump=block_jump, wait2=wait_slot, wait8=wait_half)
    else:
        ln_local_wait(a, "lw4", CNT_LDS+8)
        a(f"s_mul_i32 s53, s15, 36\ns_mul_i32 s24, s19, 18\ns_add_u32 s53, s53, s24\ns_lshl_b32 s53, s53, 8\ns_add_u32 s53, s53, {F_GW}")
        a("v_min_u32 v60, 17, v1\nv_lshlrev_b32 v60, 8, v60")
        wait_half(a)
        a("; STAMP 4")
        gc.loader_after_prefill(a, 36*o["rep2"], 0, 4096, "g2", o["aflags"], before_last=at_early, wrap=(HALF2, 36*73728) if o["rep2"] == 2 else None)
    a("s_cmp_eq_u32 s27, s24\ns_cbranch_scc1 L_at_done")
    poll(a, "at", 36, 61, "s23", "s24")
    at_dma(a)
    a("L_at_done:\ns_waitcnt vmcnt(0)\ns_barrier\ns_endpgm")
    a("L_m_helper:\ns_sub_u32 s30, s2, 216\ns_lshr_b32 s30, s30, 3")
    ln_local_wait(a, "lw2")
    w1_stream(a, "m1", gc.SRD_W, 30, 5, o["r1"] + 108*o["nB"]//5*4, 2048, o["win2"], short23=o["extra23"])
    a("; STAMP 1")
    srd(a, gc.SRD_W, S_W2, W_BYTES_TOTAL)
    if o["rot"]:
        w2_head(a, "mh", gc.SRD_W, 30, 5, o["win2"])
    w2_stream(a, "m2", gc.SRD_W, 30, 5, 512 if o["rot"] else o["r20"], o["r2"], o["win2"])
    a("; STAMP 2")
    g_pause(a, "gp4", o)
    w2_stream(a, "m4", gc.SRD_W, 30, 8, o["r2"] + 96*o["nC"], 2304, o["win3"])
    if o["x_pf"] is True:
        srd(a, 8, S_X, X_BYTES); x_stream(a, "x4", 8, 30)


def mega(a, name, **opt):
    o = dict(early_bar=False, extra23=0, r0=0, r20=0, rep1=1, rep2=1, uflags='', rot=False, x_pf=True, ln_lines=False, x_late='tail', late_sig=False, pause=0, xbf=True, rnd1=0, rnd2=0, prio=0, lnw=256, slp=1, touch=True, tlb=True, early2=3, xnt='', ont='', prefill_late=True, r1=384, nB=2, r2=400, nC=0, win1=20, win2=40, win3=40, aflags=" sc1", code_pf=9)
    o.update(opt)
    prefetch.ROT = o["rot"]
    cv.UFLAGS = o["uflags"]
    a(f".globl {name}\n.p2align 8\n.type {name},@function\n{name}:\nL_m_base:")
    a("s_cmp_ge_u32 s2, 256\ns_cbranch_scc1 L_m_end")
    a(f"s_load_dwordx2 s[{S_X}:{S_X+1}], s[0:1], {KA['x']}\ns_load_dwordx2 s[{S_WS}:{S_WS+1}], s[0:1], {KA['ws']}")
    a(f"s_load_dwordx2 s[{S_W1}:{S_W1+1}], s[0:1], {KA['w1']}\ns_load_dwordx2 s[{S_W2}:{S_W2+1}], s[0:1], {KA['w2']}")
    a("v_lshrrev_b32 v1, 6, v0\nv_readfirstlane_b32 s20, v1\nv_and_b32 v1, 63, v0")
    a("s_cmp_eq_u32 s20, 4\ns_cbranch_scc1 L_m_w4")
    compute_waves(a, o)
    a("L_m_w4:")
    fifth_wave(a, o)
    a("L_m_end:\ns_endpgm\nL_m_last:")


def warm_kernel(a, name, rows, w2rows, main, window=63):
    a(f".globl {name}\n.p2align 8\n.type {name},@function\n{name}:")
    a("s_cmp_ge_u32 s2, 256\ns_cbranch_scc1 L_pre_end")
    if rows >= 0:
        a(f"s_load_dwordx2 s[4:5], s[0:1], {KA['ws']}\ns_load_dwordx2 s[6:7], s[0:1], {KA['x']}\ns_load_dwordx2 s[20:21], s[0:1], {KA['w1']}")
        a(f"s_load_dwordx2 s[22:23], s[0:1], {KA['w2']}\ns_load_dwordx2 s[24:25], s[0:1], {KA['out']}")
        a("v_and_b32 v1, 63, v0\ns_lshr_b32 s30, s2, 3\nv_lshlrev_b32 v4, 20, v1\ns_waitcnt lgkmcnt(0)")
        srd(a, 8, 4, WS_FLG + FLG_BYTES); srd(a, 12, 6, X_BYTES); srd(a, 16, 22, W_BYTES_TOTAL); srd(a, 32, 20, W_BYTES_TOTAL); srd(a, 48, 24, X_BYTES)
        for k, rs in enumerate((8, 12, 16, 48)):
            a(f"buffer_load_dword v{100+k}, v4, s[{rs}:{rs+3}], 0 offen sc1")
        a(f"s_getpc_b64 s[12:13]\nL_pre_pc:\ns_sub_u32 s12, s12, L_pre_pc-L_m_base\ns_subb_u32 s13, s13, 0")
        a("s_mov_b32 s14, L_m_last-L_m_base\ns_mov_b32 s15, 0x20000\nv_lshlrev_b32 v4, 4, v1\ns_lshl_b32 s23, s30, 10")
        a("buffer_load_dwordx4 v[96:99], v4, s[12:15], s23 offen\ns_add_u32 s23, s23, 32768\nbuffer_load_dwordx4 v[96:99], v4, s[12:15], s23 offen")
        w1_stream(a, "pre", 32, 30, 32, 0, rows, window)
        w2_stream(a, "pre", 16, 30, 32, 0, w2rows, window)
    a("L_pre_end:\ns_endpgm")
```

```python
from asmlib import *
from layout import *

PITCH = 1216
LN_T = 8 * PITCH
X = 20
T = 40


def half_sum(a, v, t):
    for c in ("row_ror:1", "row_ror:2", "row_ror:4", "row_ror:8"):
        a(f"v_add_f32_dpp v{v}, v{v}, v{v} {c} row_mask:0xf bank_mask:0xf")
    a(f"v_mov_b32 v{t}, v{v}\nv_permlane16_swap_b32 v{t}, v{v}\nv_add_f32 v{v}, v{v}, v{t}")


def unpack(a, p, x, n=9):
    for k in range(n):
        a(f"v_lshlrev_b32 v{x+2*k}, 16, v{p+k}\nv_and_b32 v{x+2*k+1}, 0xffff0000, v{p+k}")


def rnd(a, v):
    a(f"v_cvt_pk_bf16_f32 v{v}, v{v}, v{v}\nv_lshlrev_b32 v{v}, 16, v{v}")


def layernorm(a, p, one_pass=False):
    pr = lambda b: vr(b, 2)
    for k in range(4):
        a(f"v_pk_add_f32 {pr(T+2*k)}, {pr(X+4*k)}, {pr(X+4*k+2)}")
    a(f"v_pk_add_f32 {pr(T)}, {pr(T)}, {pr(T+2)}\nv_pk_add_f32 {pr(T+4)}, {pr(T+4)}, {pr(T+6)}")
    a(f"v_pk_add_f32 {pr(T)}, {pr(T)}, {pr(X+16)}\nv_pk_add_f32 {pr(T)}, {pr(T)}, {pr(T+4)}\nv_add_f32 v58, v{T}, v{T+1}")
    sub = [f"v_pk_add_f32 {pr(T+2*k)}, {pr(X+2*k)}, v[60:61] op_sel_hi:[1,0] neg_lo:[0,1] neg_hi:[0,1]" for k in range(9)]
    dpp = lambda v, c: a(f"v_add_f32_dpp v{v}, v{v}, v{v} {c} row_mask:0xf bank_mask:0xf")
    if one_pass:
        sq = [f"v_pk_mul_f32 v[74:75], {pr(X)}, {pr(X)}", f"v_pk_mul_f32 v[62:63], {pr(X+2)}, {pr(X+2)}"]
        for k in range(2, 9):
            d = "v[74:75]" if k % 2 == 0 else "v[62:63]"
            sq.append(f"v_pk_fma_f32 {d}, {pr(X+2*k)}, {pr(X+2*k)}, {d}")
        sq += ["v_pk_add_f32 v[74:75], v[74:75], v[62:63]", "v_add_f32 v74, v74, v75"]
        a.extend(sq[:2])
        for i, c in enumerate(("row_ror:1", "row_ror:2", "row_ror:4", "row_ror:8")):
            dpp(58, c); a.extend(sq[2+2*i:4+2*i])
        a("v_mov_b32 v59, v58")
        a.extend(sq[10:])
        a("s_nop 0\nv_permlane16_swap_b32 v59, v58")
        dpp(74, "row_ror:1")
        a("v_add_f32 v58, v58, v59\nv_mul_f32 v76, 0x3ae38e39, v58")
        dpp(74, "row_ror:2")
        a("v_cvt_pk_bf16_f32 v60, v76, v76\nv_lshlrev_b32 v60, 16, v60")
        dpp(74, "row_ror:4")
        a.extend(sub[:2])
        dpp(74, "row_ror:8")
        a("v_mov_b32 v75, v74")
        a.extend(sub[2:4])
        a("v_permlane16_swap_b32 v75, v74")
        a.extend(sub[4:])
        a("v_add_f32 v74, v74, v75\nv_mul_f32 v76, v76, v76\nv_mov_b32 v62, 0x3ae38e39\nv_fma_f32 v62, v74, v62, -v76\nv_max_f32 v62, 0, v62")
    else:
        half_sum(a, 58, 59)
        a("v_mul_f32 v60, 0x3ae38e39, v58")
        for k in range(9):
            a(f"v_pk_add_f32 {pr(T+2*k)}, {pr(X+2*k)}, v[60:61] op_sel_hi:[1,0] neg_lo:[0,1] neg_hi:[0,1]")
        a(f"v_pk_mul_f32 v[58:59], {pr(T)}, {pr(T)}\nv_pk_mul_f32 v[62:63], {pr(T+2)}, {pr(T+2)}")
        for k in range(2, 9):
            d = "v[58:59]" if k % 2 == 0 else "v[62:63]"
            a(f"v_pk_fma_f32 {d}, {pr(T+2*k)}, {pr(T+2*k)}, {d}")
        a("v_pk_add_f32 v[58:59], v[58:59], v[62:63]\nv_add_f32 v58, v58, v59")
        rnd(a, 60)
        a("v_add_f32_dpp v58, v58, v58 row_ror:1 row_mask:0xf bank_mask:0xf")
        for i, c in enumerate(("row_ror:2", "row_ror:4", "row_ror:8")):
            a.extend(sub[2*i:2*i+2])
            a(f"v_add_f32_dpp v58, v58, v58 {c} row_mask:0xf bank_mask:0xf")
        a("v_mov_b32 v59, v58")
        a.extend(sub[6:8])
        a("v_permlane16_swap_b32 v59, v58")
        a(sub[8])
        a("v_add_f32 v58, v58, v59\nv_mul_f32 v62, 0x3ae38e39, v58")
    cvt = [f"v_cvt_pk_bf16_f32 v{p+k}, v{T+2*k}, v{T+2*k+1}" for k in range(9)]
    rnd(a, 62)
    a("v_add_f32 v62, 0x3727c5ac, v62")
    rnd(a, 62)
    a("v_sqrt_f32 v62, v62")
    a.extend(cvt[:4])
    rnd(a, 62)
    a("v_rcp_f32 v62, v62")
    a.extend(cvt[4:])
    unpack(a, p, X)
    for k in range(9):
        a(f"v_pk_mul_f32 {pr(X+2*k)}, {pr(X+2*k)}, v[62:63] op_sel_hi:[1,0]")
    for k in range(9):
        a(f"v_cvt_pk_bf16_f32 v{p+k}, v{X+2*k}, v{X+2*k+1}")


def ln_issue(a, s_x, fl):
    srd(a, 8, s_x, X_BYTES)
    a("s_lshl_b32 s22, s2, 2\ns_add_u32 s22, s22, s20\ns_mul_i32 s22, s22, 2304")
    a("v_lshrrev_b32 v4, 5, v1\nv_and_b32 v5, 31, v1\nv_mul_u32_u24 v6, 1152, v4\nv_lshl_add_u32 v2, v5, 4, v6\nv_lshl_add_u32 v3, v5, 2, v6")
    a(f"buffer_load_dwordx4 v[10:13], v2, s[8:11], s22 offen{fl}\nbuffer_load_dwordx4 v[14:17], v2, s[8:11], s22 offen offset:512{fl}")
    a(f"buffer_load_dword v18, v3, s[8:11], s22 offen offset:1024{fl}")


def ln_body(a, s_ws, lds_base, lds_cnt, tag, barrier_meet=False):
    srd_off(a, 12, s_ws, WS_HT, HT_BYTES)
    srd_off(a, 16, s_ws, WS_XNT, XNT_BYTES)
    a(f"s_mul_i32 s23, s20, {2*PITCH}\ns_add_u32 s23, s23, {lds_base}\nv_mul_u32_u24 v6, {PITCH}, v4\nv_add_u32 v6, s23, v6")
    a("v_lshl_add_u32 v2, v5, 4, v6\nv_lshl_add_u32 v3, v5, 2, v6")
    a("v_and_b32 v5, 15, v1\nv_lshrrev_b32 v6, 4, v1\nv_bfe_u32 v7, v1, 2, 2\nv_and_b32 v8, 3, v1")
    a(f"v_mul_u32_u24 v7, {PITCH}, v7\nv_lshl_add_u32 v7, v8, 3, v7\nv_lshl_add_u32 v7, v6, 5, v7")
    a(f"s_lshl_b32 s23, s20, 7\ns_add_u32 s23, s23, {lds_base}\nv_add_u32 v7, s23, v7")
    a("v_lshlrev_b32 v9, 16, v6\nv_lshl_add_u32 v9, v5, 4, v9")
    a("s_lshl_b32 s24, s20, 18\ns_lshl_b32 s23, s2, 8\ns_add_u32 s24, s24, s23")
    a("v_lshlrev_b32 v19, 11, v6\nv_lshl_add_u32 v19, v5, 4, v19")
    a("s_lshr_b32 s25, s2, 3\ns_mul_i32 s25, s25, 73728\ns_and_b32 s23, s2, 7\ns_lshl_b32 s23, s23, 8\ns_add_u32 s21, s25, s23\ns_lshl_b32 s23, s20, 13\ns_add_u32 s25, s21, s23")
    a("s_waitcnt vmcnt(0)\n; STAMP 0")
    unpack(a, 10, X)
    layernorm(a, 10)
    a("ds_write_b128 v2, v[10:13]\nds_write_b128 v2, v[14:17] offset:512\nds_write_b32 v3, v18 offset:1024")
    unpack(a, 10, X)
    layernorm(a, 64, one_pass=True)
    a(f"ds_write_b128 v2, v[64:67] offset:{LN_T}\nds_write_b128 v2, v[68:71] offset:{LN_T+512}\nds_write_b32 v3, v72 offset:{LN_T+1024}")
    if barrier_meet:
        a("s_waitcnt lgkmcnt(0)\ns_barrier")
    else:
        a(f"v_mov_b32 v58, {lds_cnt}\nv_mov_b32 v59, 1\ns_waitcnt lgkmcnt(0)\ns_mov_b64 exec, 1\nds_add_u32 v58, v59\ns_mov_b64 exec, -1")
        a(f"L_{tag}_meet:\nds_read_b32 v60, v58\ns_waitcnt lgkmcnt(0)\nv_readfirstlane_b32 s23, v60\ns_cmp_lt_u32 s23, 4\ns_cbranch_scc1 L_{tag}_meet")
    for k in range(2):
        for t in (1, 0):
            b = 24 + 8*k + 4*t
            a(f"ds_read_b64_tr_b16 {vr(b,2)}, v7 offset:{t*LN_T + 512*k}\nds_read_b64_tr_b16 {vr(b+2,2)}, v7 offset:{t*LN_T + 512*k + 4*PITCH}")
    a(f"s_cmp_ge_u32 s20, 2\ns_cbranch_scc1 L_{tag}_no8")
    a(f"s_mul_i32 s23, s20, {LN_T+128}\ns_sub_u32 s23, {LN_T+1024}, s23\nv_add_u32 v8, s23, v7")
    a(f"ds_read_b64_tr_b16 v[40:41], v8\nds_read_b64_tr_b16 v[42:43], v8 offset:{4*PITCH}")
    a(f"s_lshl_b32 s23, s2, 8\ns_add_u32 s23, s23, {8 << 18}\ns_cmp_eq_u32 s20, 0\ns_waitcnt lgkmcnt(0)\ns_cbranch_scc1 L_{tag}_h8")
    a(f"buffer_store_dwordx4 v[40:43], v9, s[16:19], s23 offen sc1\ns_branch L_{tag}_no8\nL_{tag}_h8:")
    a(f"s_add_u32 s23, s21, {8 << 13}\nbuffer_store_dwordx4 v[40:43], v19, s[12:15], s23 offen sc1\nL_{tag}_no8:\ns_waitcnt lgkmcnt(0)")
    for k in range(2):
        a(f"buffer_store_dwordx4 {vr(28+8*k,4)}, v19, s[12:15], s25 offen sc1\nbuffer_store_dwordx4 {vr(24+8*k,4)}, v9, s[16:19], s24 offen sc1")
        if k == 0:
            a(f"s_add_u32 s24, s24, {4 << 18}\ns_add_u32 s25, s25, {4 << 13}")
```

```python
from asmlib import *
from layout import *

HALF2 = 2304 * 4096


def w1_stream(a, tag, rs, hid, nh, row0, row1, window, both=True, short23=0):
    n = -(-(row1 - row0) // (4 * nh))
    if n <= 0:
        return
    a("v_and_b32 v1, 63, v0\nv_lshrrev_b32 v30, 4, v1\nv_mul_u32_u24 v30, 9216, v30\nv_and_b32 v31, 15, v1\nv_lshl_add_u32 v30, v31, 4, v30")
    a("s_and_b32 s42, s2, 1\ns_and_b32 s40, s2, 7\ns_mul_i32 s40, s40, 9\ns_add_u32 s40, s40, 1\ns_lshr_b32 s40, s40, 1\ns_lshl_b32 s40, s40, 8")
    a(f"s_mul_i32 s41, s{hid}, 36864\ns_add_u32 s40, s40, s41\ns_add_u32 s40, s40, {row0*9216}")
    a(f"s_mul_i32 s43, s42, 1280\ns_sub_u32 s43, 1024, s43\ns_add_u32 s42, s42, s{hid}")
    a(f"s_mov_b32 s44, {n}")
    if short23:
        a(f"s_and_b32 s41, s2, 6\ns_cmp_eq_u32 s41, 2\ns_cselect_b32 s44, {-(-(row1 - short23 - row0) // (4 * nh))}, s44")
    a(f"L_{tag}_pw1:")
    for i in range(4):
        a(f"buffer_load_dwordx4 v[{64+4*i}:{67+4*i}], v30, s[{rs}:{rs+3}], s40 offen offset:{256*i}")
    if not both:
        a(f"s_bitcmp1_b32 s42, 0\ns_cbranch_scc1 L_{tag}_sk1")
    a(f"s_add_u32 s41, s40, s43\nbuffer_load_dwordx4 v[80:83], v30, s[{rs}:{rs+3}], s41 offen\nL_{tag}_sk1:")
    a(f"s_add_u32 s42, s42, {nh | 1}\ns_add_u32 s40, s40, {nh*36864}\ns_waitcnt vmcnt({window})\ns_sub_u32 s44, s44, 1\ns_cmp_lg_u32 s44, 0\ns_cbranch_scc1 L_{tag}_pw1")


ROT = True


def w2_start(a, d, hid, row0):
    a(f"s_and_b32 s41, s2, 3\ns_lshl_b32 s42, s41, 10\ns_mul_i32 s41, s41, 9\ns_add_u32 s41, s41, 1\ns_lshr_b32 s41, s41, 1\ns_lshl_b32 s41, s41, 7")
    if not ROT:
        a("s_mov_b32 s41, 0")
    a(f"s_add_u32 s41, s41, s{hid}\ns_add_u32 s41, s41, {row0}\ns_cmp_ge_u32 s41, 2304\ns_cselect_b32 s43, 2304, 0\ns_sub_u32 s41, s41, s43\ns_lshl_b32 s41, s41, 12")
    a(f"s_bfe_u32 s43, s2, 0x10002\ns_mul_i32 s43, s43, {HALF2}\ns_add_u32 s42, s42, s43\ns_add_u32 s{d}, s41, s42\ns_add_u32 s42, s42, {HALF2}")


def w2_stream(a, tag, rs, hid, nh, row0, row1, window):
    n = -(-(row1 - row0) // (4 * nh))
    if n <= 0:
        return
    a("v_and_b32 v1, 63, v0\nv_lshlrev_b32 v30, 4, v1")
    w2_start(a, 40, hid, row0)
    a(f"s_mov_b32 s44, {n}\nL_{tag}_pw2:")
    for i in range(4):
        a(f"buffer_load_dwordx4 v[{64+4*i}:{67+4*i}], v30, s[{rs}:{rs+3}], s40 offen\ns_add_u32 s40, s40, {nh*4096}")
        a(f"s_cmp_ge_u32 s40, s42\ns_cselect_b32 s43, {HALF2}, 0\ns_sub_u32 s40, s40, s43")
    a(f"s_waitcnt vmcnt({window})\ns_sub_u32 s44, s44, 1\ns_cmp_lg_u32 s44, 0\ns_cbranch_scc1 L_{tag}_pw2")


def w1_burst(a, rs, widx, nw, load0, n, vdst=168):
    if n <= 0:
        return
    a("v_lshrrev_b32 v30, 4, v1\nv_mul_u32_u24 v30, 9216, v30\nv_and_b32 v31, 15, v1\nv_lshl_add_u32 v30, v31, 4, v30")
    a("s_and_b32 s44, s2, 7\ns_mul_i32 s44, s44, 9\ns_lshr_b32 s44, s44, 1\ns_lshl_b32 s44, s44, 8")
    for b in range(n):
        a(f"s_add_u32 s46, s{widx}, {load0 + nw*b}\ns_mul_i32 s47, s46, 13108\ns_lshr_b32 s47, s47, 16\ns_mul_i32 s45, s47, 5\ns_sub_u32 s46, s46, s45")
        a("s_mul_i32 s47, s47, 36864\ns_lshl_b32 s46, s46, 8\ns_add_u32 s47, s47, s46\ns_add_u32 s47, s47, s44")
        a(f"buffer_load_dwordx4 v[{vdst}:{vdst+3}], v30, s[{rs}:{rs+3}], s47 offen")


def w1_lane_addr(a):
    a("v_lshrrev_b32 v30, 4, v1\nv_mul_u32_u24 v30, 9216, v30\nv_and_b32 v31, 15, v1\nv_lshl_add_u32 v30, v31, 4, v30")
    a("s_and_b32 s42, s2, 1\ns_and_b32 s40, s2, 7\ns_mul_i32 s40, s40, 9\ns_add_u32 s40, s40, 1\ns_lshr_b32 s40, s40, 1\ns_lshl_b32 s40, s40, 8")
    a("s_mul_i32 s43, s42, 1280\ns_sub_u32 s43, 1024, s43")


def w1_pairs(a, tag, rs, hid, win0, win1, window):
    w1_lane_addr(a)
    a(f"s_mul_i32 s41, s{hid}, {2*36864}\ns_add_u32 s40, s40, s41\ns_add_u32 s40, s40, {win0*64*9216}")
    a(f"s_mul_i32 s42, s42, 36864\ns_add_u32 s43, s43, s42\ns_mov_b32 s44, {win1 - win0}\nL_{tag}_pp:")
    for i in range(4):
        a(f"buffer_load_dwordx4 v[{64+4*i}:{67+4*i}], v30, s[{rs}:{rs+3}], s40 offen offset:{256*i}")
    a(f"s_add_u32 s41, s40, s43\nbuffer_load_dwordx4 v[80:83], v30, s[{rs}:{rs+3}], s41 offen\ns_add_u32 s41, s40, 36864")
    for i in range(4):
        a(f"buffer_load_dwordx4 v[{84+4*i}:{87+4*i}], v30, s[{rs}:{rs+3}], s41 offen offset:{256*i}")
    a(f"s_add_u32 s40, s40, {64*9216}\ns_waitcnt vmcnt({window})\ns_sub_u32 s44, s44, 1\ns_cmp_lg_u32 s44, 0\ns_cbranch_scc1 L_{tag}_pp")


def w1_unit(a, hid, win0):
    w1_lane_addr(a)
    a(f"s_mul_i32 s45, s{hid}, 7282\ns_lshr_b32 s45, s45, 16\ns_mul_i32 s46, s45, 9\ns_sub_u32 s46, s{hid}, s46")
    a("s_lshr_b32 s47, s46, 2\ns_mul_i32 s47, s47, 36864\ns_and_b32 s41, s46, 3\ns_lshl_b32 s41, s41, 8\ns_add_u32 s47, s47, s41")
    a("s_mul_i32 s42, s42, 36864\ns_add_u32 s43, s43, s42\ns_cmp_eq_u32 s46, 8\ns_cselect_b32 s47, s43, s47")
    a(f"s_mul_i32 s45, s45, {2*36864}\ns_add_u32 s40, s40, s45\ns_add_u32 s40, s40, s47\ns_add_u32 s40, s40, {(win0*16 + 10)*36864}")


def w2_head(a, tag, rs, hid, nh, window):
    n = -(-512 // (4 * nh))
    a("v_and_b32 v1, 63, v0\nv_lshrrev_b32 v31, 4, v1\nv_lshlrev_b32 v31, 7, v31\nv_lshlrev_b32 v29, 4, v1")
    a(f"v_add_u32 v31, s{hid}, v31\ns_mov_b32 s45, 0")
    w2_start(a, 40, 45, 0)
    a(f"s_mov_b32 s44, {n}\nL_{tag}_ph:")
    for i in range(4):
        a(f"v_lshl_add_u32 v30, v31, 12, v29\nv_add_u32 v31, {nh}, v31\nbuffer_load_dwordx4 v[{64+4*i}:{67+4*i}], v30, s[{rs}:{rs+3}], s40 offen\nv_and_b32 v31, 511, v31")
    a(f"s_waitcnt vmcnt({window})\ns_sub_u32 s44, s44, 1\ns_cmp_lg_u32 s44, 0\ns_cbranch_scc1 L_{tag}_ph")


def x_stream(a, tag, rs, hid):
    a("v_and_b32 v1, 63, v0\nv_lshlrev_b32 v30, 4, v1")
    a(f"s_and_b32 s40, s2, 3\ns_lshl_b32 s40, s40, 2\ns_lshr_b32 s41, s{hid}, 1\ns_add_u32 s40, s40, s41\ns_lshl_b32 s40, s40, 7")
    a(f"s_bfe_u32 s41, s2, 0x10002\ns_lshl_b32 s41, s41, 6\ns_add_u32 s40, s40, s41\ns_and_b32 s41, s{hid}, 1\ns_lshl_b32 s41, s41, 5\ns_add_u32 s40, s40, s41")
    a(f"s_mul_i32 s40, s40, 1152\ns_mov_b32 s44, 9\nL_{tag}_px:")
    for i in range(4):
        a(f"buffer_load_dwordx4 v[{64+4*i}:{67+4*i}], v30, s[{rs}:{rs+3}], s40 offen offset:{1024*i}")
    a(f"s_add_u32 s40, s40, 4096\ns_sub_u32 s44, s44, 1\ns_cmp_lg_u32 s44, 0\ns_cbranch_scc1 L_{tag}_px")
```

```python
import struct
from asmlib import *
from layout import *
import gemm_core as gc
import mega_ln as ln
import mega_conv as cv
from prefetch import *
import prefetch

AT_LDS = gc.LDS_RING
LN_LDS = 139264
CNT_LDS = LN_LDS + 2*ln.LN_T
LDS_TOTAL = CNT_LDS + 64
S_WS, S_X, S_DBG, S_W1, S_W2 = 4, 6, 94, 96, 98
SPIN = 0x100000
S_TAG = 100
F_SEED = 255 * 256


def f32hex(x):
    return "0x%08x" % struct.unpack("<I", struct.pack("<f", x))[0]


def div6(a, d, r, x):
    a(f"s_mul_i32 s{d}, s{x}, 10923\ns_lshr_b32 s{d}, s{d}, 16\ns_mul_i32 s{r}, s{d}, 6\ns_sub_u32 s{r}, s{x}, s{r}")


def unpk(a, x, p):
    a(f"v_lshlrev_b32 v{x}, 16, v{p}\nv_and_b32 v{x+1}, 0xffff0000, v{p}")


def poll(a, tag, rs, vaddr, soff, target, sleep=1, mask=None):
    a(f"s_mov_b32 s61, {SPIN:#x}\nL_{tag}_poll:\nbuffer_load_dword v62, v{vaddr}, s[{rs}:{rs+3}], {soff} offen sc1")
    a(f"s_sub_u32 s61, s61, 1\ns_cbranch_scc1 L_{tag}_go\ns_waitcnt vmcnt(0)")
    if mask:
        a(f"v_and_b32 v62, {mask:#x}, v62")
    a(f"v_cmp_ne_u32 vcc, {target}, v62")
    a(f"s_cmp_eq_u64 vcc, 0\ns_cbranch_scc1 L_{tag}_go")
    if sleep:
        a(f"s_sleep {sleep}")
    a(f"s_branch L_{tag}_poll\nL_{tag}_go:")


def flags_srd(a, d):
    srd_off(a, d, S_WS, WS_FLG, FLG_BYTES)


def last_wave_signals(a, tag, cnt, rs, soff, word=None, second=None):
    a(f"v_mov_b32 v58, {cnt}\nv_mov_b32 v59, 1\nv_mov_b32 v61, 0\ns_mov_b64 exec, 1\nds_add_rtn_u32 v60, v58, v59\ns_waitcnt lgkmcnt(0)")
    a(f"v_readfirstlane_b32 s23, v60\ns_cmp_lg_u32 s23, 3\ns_cbranch_scc1 L_{tag}_notlast")
    if word:
        a(f"v_mov_b32 v59, {word}\nbuffer_store_dword v59, v61, s[{rs}:{rs+3}], {soff} offen sc1")
    else:
        if second:
            a(f"buffer_atomic_add v59, v61, s[{rs}:{rs+3}], {second} offen sc1")
        a(f"buffer_atomic_add v59, v61, s[{rs}:{rs+3}], {soff} offen sc1")
    a(f"L_{tag}_notlast:\ns_mov_b64 exec, -1")


def ln_local_wait(a, tag, cnt=CNT_LDS+4):
    a(f"v_mov_b32 v58, {cnt}\nL_{tag}:\ns_sleep 2\nds_read_b32 v60, v58\ns_waitcnt lgkmcnt(0)\nv_readfirstlane_b32 s23, v60\ns_cmp_lt_u32 s23, 4\ns_cbranch_scc1 L_{tag}")


def g_pause(a, tag, o):
    if not o["pause"]:
        return
    a(f"s_lshr_b32 s23, s2, 3\ns_mul_i32 s24, s23, 43\ns_lshr_b32 s24, s24, 9\ns_mul_i32 s24, s24, 12\ns_sub_u32 s23, s23, s24\ns_lshl_b32 s23, s23, 8\ns_add_u32 s23, s23, {F_G}")
    a(f"v_mov_b32 v61, 0\ns_mov_b32 s61, {SPIN:#x}\nL_{tag}_poll:\nbuffer_load_dword v62, v61, s[36:39], s23 offen sc1\ns_sub_u32 s61, s61, 1\ns_cbranch_scc1 L_{tag}_go")
    a(f"s_waitcnt vmcnt(0)\nv_readfirstlane_b32 s24, v62\ns_cmp_ge_u32 s24, {o['pause']}\ns_cbranch_scc1 L_{tag}_go\ns_sleep 8\ns_branch L_{tag}_poll\nL_{tag}_go:")


def wait_ln(a, tag, rs, o):
    a(f"v_mul_u32_u24 v61, {o['lnw']}, v1\ns_mov_b32 s61, {SPIN:#x}\nL_{tag}_poll:")
    if o["ln_lines"]:
        for k in range(4):
            a(f"s_mov_b32 s62, {F_LNW + k*64*o['lnw']}\nbuffer_load_dword v{180+k}, v61, s[{rs}:{rs+3}], s62 offen sc1")
    else:
        a(f"s_mov_b32 s62, {F_LNW}\nbuffer_load_dwordx4 v[180:183], v61, s[{rs}:{rs+3}], s62 offen sc1")
    a(f"s_sub_u32 s61, s61, 1\ns_cbranch_scc1 L_{tag}_go\ns_waitcnt vmcnt(0)")
    a(f"v_xor_b32 v180, s{S_TAG+1}, v180\nv_xor_b32 v181, s{S_TAG+1}, v181\nv_xor_b32 v182, s{S_TAG+1}, v182\nv_xor_b32 v183, s{S_TAG+1}, v183")
    a("v_or3_b32 v180, v180, v181, v182\nv_or_b32 v180, v180, v183\nv_cmp_ne_u32 vcc, 0, v180")
    a(f"s_cmp_eq_u64 vcc, 0\ns_cbranch_scc1 L_{tag}_go\ns_sleep {o['slp']}\ns_branch L_{tag}_poll\nL_{tag}_go:")


def tile1(a):
    a("s_and_b32 s12, s2, 7\ns_lshr_b32 s13, s2, 3\ns_and_b32 s14, s12, 1\ns_mul_i32 s14, s14, 3\ns_add_u32 s13, s13, s14")
    a("s_cmp_ge_u32 s13, 27\ns_cselect_b32 s14, 27, 0\ns_sub_u32 s13, s13, s14\ns_mul_i32 s12, s12, 27\ns_add_u32 s12, s12, s13")
    div6(a, 14, 15, 12)


def tile2(a):
    a("s_lshr_b32 s13, s2, 3")
    div6(a, 12, 15, 13)
    a("s_bfe_u32 s19, s2, 0x10002\ns_and_b32 s13, s2, 3\ns_lshl_b32 s14, s13, 2\ns_add_u32 s14, s14, s12")
    a("s_mul_i32 s13, s13, 9\ns_add_u32 s13, s13, 1\ns_lshr_b32 s13, s13, 1")
    a("s_lshl_b32 s16, s14, 7\ns_lshl_b32 s17, s19, 6\ns_add_u32 s16, s16, s17")


def block_jump(kind):
    cnt, base, dst, step = (54, 56, gc.S_W0, 128*4096) if kind == "w" else (55, 57, gc.S_ACT0, 2*73728)
    return [f"s_add_u32 s{cnt}, s{cnt}, 1", f"s_add_u32 s18, s{cnt}, s12", "s_and_b32 s18, s18, 3", f"s_cmp_lt_u32 s{cnt}, 4",
            f"s_cselect_b32 s18, s18, s{cnt}", "s_add_u32 s18, s18, s13", "s_cmp_ge_u32 s18, 18", "s_cselect_b32 s17, 18, 0",
            "s_sub_u32 s18, s18, s17", f"s_mul_i32 s18, s18, {step}", f"s_add_u32 s{dst}, s18, s{base}"]


def gelu_epilogue(a, rounds, rot):
    c1 = -2.0 * 0.7978845608028654 * 1.4426950408889634
    a(f"s_mov_b32 s48, {f32hex(c1*0.044715)}\ns_mov_b32 s49, s48\nv_mov_b32 v36, {f32hex(c1)}\nv_mov_b32 v37, v36")
    for nu in range(4):
        unpk(a, 20+4*nu, 12+2*nu); unpk(a, 22+4*nu, 13+2*nu)
    a(f"s_lshr_b32 s26, s20, 1\ns_mul_i32 s26, s26, {gc.SLOT}\ns_and_b32 s27, s20, 1\ns_mul_i32 s27, s27, 6144\ns_add_u32 s26, s26, s27\ns_add_u32 s26, s26, {gc.W_BYTES}\nv_add_u32 v38, s26, v7")
    B = 112
    for dl in range(3):
        for pi in range(2):
            src = [(gc.acc(2*pi + (k >> 1), dl) + 2*(k & 1), 20 + 4*(2*pi + (k >> 1)) + 2*(k & 1)) for k in range(4)]
            U = [B + 2*k for k in range(4)]; T = [B + 8 + 2*k for k in range(4)]; P = [B + 16 + k for k in range(4)]
            O = B + 20 + 4*((2*dl + pi) % 2)
            if rounds == 2:
                for k in range(4): a(f"v_cvt_pk_bf16_f32 v{P[k]}, v{src[k][0]}, v{src[k][0]+1}")
                for k in range(4): unpk(a, U[k], P[k])
                for k in range(4): a(f"v_pk_add_f32 {vr(U[k],2)}, {vr(U[k],2)}, {vr(src[k][1],2)}")
            else:
                for k in range(4): a(f"v_pk_add_f32 {vr(U[k],2)}, {vr(src[k][0],2)}, {vr(src[k][1],2)}")
            if rounds >= 1:
                for k in range(4): a(f"v_cvt_pk_bf16_f32 v{P[k]}, v{U[k]}, v{U[k]+1}")
                for k in range(4): unpk(a, U[k], P[k])
            for k in range(4): a(f"v_pk_mul_f32 {vr(T[k],2)}, {vr(U[k],2)}, {vr(U[k],2)}")
            for k in range(4): a(f"v_pk_fma_f32 {vr(T[k],2)}, {vr(T[k],2)}, s[48:49], v[36:37]")
            for k in range(4): a(f"v_pk_mul_f32 {vr(T[k],2)}, {vr(T[k],2)}, {vr(U[k],2)}")
            for k in range(4): a(f"v_exp_f32 v{T[k]}, v{T[k]}\nv_exp_f32 v{T[k]+1}, v{T[k]+1}")
            for k in range(4): a(f"v_pk_add_f32 {vr(T[k],2)}, {vr(T[k],2)}, 1.0 op_sel_hi:[1,0]")
            for k in range(4): a(f"v_rcp_f32 v{T[k]}, v{T[k]}\nv_rcp_f32 v{T[k]+1}, v{T[k]+1}")
            for k in range(4): a(f"v_pk_mul_f32 {vr(U[k],2)}, {vr(U[k],2)}, {vr(T[k],2)}")
            for k in range(4): a(f"v_cvt_pk_bf16_f32 v{O+k}, v{U[k]}, v{U[k]+1}")
            a(f"buffer_store_dwordx4 {vr(O,4)}, v7, s[44:47], s17 offen offset:{1024*pi} sc1")
            if rot:
                a(f"ds_write_b128 v38, {vr(O,4)} offset:{(2*dl + pi)*1024}")
        a("s_add_u32 s17, s17, 2048")


def read_tag(a):
    a(f"s_add_u32 s26, s{S_WS}, {WS_FLG + F_SEED:#x}\ns_addc_u32 s27, s{S_WS+1}, 0\ns_load_dword s{S_TAG+1}, s[26:27], 0")


def make_tag(a):
    a(f"s_mul_i32 s{S_TAG+1}, s{S_TAG+1}, 0x9e3779b1\ns_add_u32 s{S_TAG+1}, s{S_TAG+1}, 0x7f4a7c15\ns_andn2_b32 s{S_TAG}, s{S_TAG+1}, 0xff")


def compute_waves(a, o):
    a("s_waitcnt lgkmcnt(0)")
    ln.ln_issue(a, S_X)
    read_tag(a)
    a(f"s_cmp_lg_u32 s20, 0\ns_cbranch_scc1 L_m_nz\nv_mov_b32 v58, {CNT_LDS}\nv_mov_b32 v60, 0\nv_mov_b32 v61, 0\nv_mov_b32 v62, 0\nv_mov_b32 v63, 0")
    a("ds_write_b128 v58, v[60:63]\nL_m_nz:")
    if o["early_bar"]:
        a("s_waitcnt lgkmcnt(0)\ns_barrier")
    a(f"s_load_dwordx2 s[38:39], s[0:1], {KA['b1']}\ns_load_dwordx8 s[76:83], s[0:1], {KA['lar']}".replace("s[76:83]", "s[80:87]"))
    ln.ln_body(a, S_WS, LN_LDS, CNT_LDS, "ln", not o["early_bar"])
    flags_srd(a, 40)
    make_tag(a)
    a("v_mov_b32 v61, 0\ns_cmp_lg_u32 s20, 3\ns_cbranch_scc1 L_m_nozero\ns_sub_u32 s23, s2, 28\ns_cmp_ge_u32 s23, 6\ns_cbranch_scc1 L_m_nozero")
    a("s_lshl_b32 s23, s2, 8\ns_mov_b64 exec, 1\nbuffer_store_dword v61, v61, s[40:43], s23 offen sc1\ns_mov_b64 exec, -1\nL_m_nozero:")
    if o["ln_lines"]:
        a(f"s_mul_i32 s24, s2, {o['lnw']}\ns_add_u32 s24, s24, {F_LNW}")
    else:
        a(f"s_and_b32 s24, s2, 63\ns_mul_i32 s24, s24, {o['lnw']}\ns_lshr_b32 s23, s2, 6\ns_lshl_b32 s23, s23, 2\ns_add_u32 s24, s24, s23\ns_add_u32 s24, s24, {F_LNW}")
    a("s_waitcnt vmcnt(0)\n; STAMP 1")
    last_wave_signals(a, "lnd", CNT_LDS + 4, 40, "s24", word=f"s{S_TAG+1}")
    a("s_cmp_ge_u32 s2, 216\ns_cbranch_scc1 L_m_conv")
    a("s_lshr_b32 s29, s2, 3\ns_lshl_b32 s29, s29, 2\ns_add_u32 s29, s29, s20")
    srd(a, 32, S_W1, W_BYTES_TOTAL)
    w1_burst(a, 32, 29, 108, o["r1"]//4*5, o["nB"])
    srd(a, 32, S_W2, W_BYTES_TOTAL)
    tile1(a)
    gc.lane_ids(a)
    gc.compute_setup(a, "A")
    srd(a, 8, 38, F*2)
    a(f"s_lshr_b32 s16, s20, 1\ns_lshl_b32 s17, s16, 7\ns_lshl_b32 s18, s14, 8\ns_add_u32 s17, s17, s18\nv_lshlrev_b32 v9, 3, v3")
    for nu in range(4):
        a(f"buffer_load_dwordx2 {vr(12+2*nu,2)}, v9, s[8:11], s17 offen offset:{32*nu}")
    for i in range(48):
        a(f"v_mov_b32 v{gc.V_ACC+i}, 0")
    srd_off(a, 44, S_WS, WS_G, G_BYTES)
    a("s_and_b32 s17, s20, 1\ns_mul_i32 s17, s17, 3\ns_mul_i32 s18, s15, 6\ns_add_u32 s17, s17, s18\ns_lshl_b32 s17, s17, 11")
    a("s_lshl_b32 s18, s14, 1\ns_add_u32 s18, s18, s16\ns_mul_i32 s18, s18, 73728\ns_add_u32 s17, s17, s18")
    a(f"s_mul_i32 s24, s15, 36\ns_add_u32 s24, s24, s14\ns_lshl_b32 s24, s24, 8\ns_add_u32 s24, s24, {F_GW}")
    a(f"s_load_dwordx4 s[52:55], s[0:1], {KA['b2']}")
    gc.compute_main(a, 32*o["rep1"], "A", False, "g1", last_barrier=True, st=(5, 2))
    if o["rep1"] == 2:
        for i in range(48):
            a(f"v_mul_f32 v{gc.V_ACC+i}, 0.5, v{gc.V_ACC+i}")
    a("s_waitcnt vmcnt(0)")
    gelu_epilogue(a, o['rnd1'], o['rot'])
    a("s_cmp_lt_u32 s2, 192\ns_cbranch_scc1 L_m_g2\ns_waitcnt vmcnt(0)")
    last_wave_signals(a, "gd", CNT_LDS + 8, 40, "s24", word=f"s{S_TAG+1}")
    a("; STAMP 3\ns_branch L_m_conv1\nL_m_g2:")
    tile2(a)
    gc.compute_setup(a, "B", s_kh=19)
    srd(a, 32, S_X, X_BYTES); srd(a, 28, 52, S*2)
    a("s_lshr_b32 s17, s20, 1\ns_lshl_b32 s17, s17, 5\ns_add_u32 s17, s17, s16")
    a("s_mul_i32 s18, s15, 96\ns_and_b32 s26, s20, 1\ns_mul_i32 s26, s26, 48\ns_add_u32 s18, s18, s26")
    a("v_mul_u32_u24 v58, 1152, v2\nv_lshl_add_u32 v58, v3, 3, v58\nv_lshlrev_b32 v9, 1, v2")
    a("s_mul_i32 s56, s17, 1152\ns_lshl_b32 s26, s18, 1\ns_add_u32 s56, s56, s26\ns_add_u32 s57, s56, 18432\ns_lshl_b32 s26, s17, 1")
    a("s_mov_b32 s22, s26\nv_mov_b32 v39, v58")
    for i in range(48):
        a(f"v_mov_b32 v{gc.V_ACC+i}, 0")
    a("v_bfe_u32 v4, v1, 2, 2\nv_lshl_add_u32 v4, v3, 2, v4\nv_lshlrev_b32 v4, 7, v4\nv_and_b32 v5, 3, v1\nv_lshl_add_u32 v4, v5, 3, v4")
    a(f"s_and_b32 s26, s20, 1\ns_mul_i32 s26, s26, 6144\ns_lshr_b32 s27, s20, 1\ns_lshl_b32 s27, s27, 6\ns_add_u32 s26, s26, s27\ns_add_u32 s26, s26, {AT_LDS}\nv_add_u32 v59, s26, v4")
    a("v_mov_b32 v31, v59")
    a("s_xor_b32 s58, s2, 4\ns_lshl_b32 s26, s20, 13\ns_lshl_b32 s59, s58, 15\ns_add_u32 s59, s59, s26\ns_lshl_b32 s60, s2, 15\ns_add_u32 s60, s60, s26")

    def x_loads(a):
        for nu in range(2):
            for dl in range(3):
                a(f"buffer_load_dwordx2 {vr(10+2*(3*nu+dl),2)}, v39, s[32:35], s{56+nu} offen offset:{32*dl}{o['xnt']}")
            a(f"buffer_load_ushort v{22+nu}, v9, s[28:31], s22 offen offset:{32*nu}")

    def publish_g(a):
        a("s_waitcnt vmcnt(0)")
        last_wave_signals(a, "gd2", CNT_LDS + 8, 40, "s24", word=f"s{S_TAG+1}")
        a("; STAMP 3\n; SWAIT")
        if not o["x_late"]:
            x_loads(a)

    if o["late_sig"]:
        gc.compute_main(a, 36, "B", True, "g2", st=(5, 4), first_stage1=publish_g)
    else:
        publish_g(a)
        gc.compute_main(a, 36*o["rep2"], "B", True, "g2", st=(5, 4), tail_hook=x_loads if o["x_late"] == "tail" else None)
        if o["rep2"] == 2:
            for i in range(48):
                a(f"v_mul_f32 v{gc.V_ACC+i}, 0.5, v{gc.V_ACC+i}")
    srd_off(a, 8, S_WS, WS_XCH, XCH_BYTES); srd(a, 44, 54, X_BYTES)
    a("v_mov_b32 v58, v39\nv_mov_b32 v59, v31")
    a("; STAMP 5")
    SN = 172
    NG = 4 if o["xbf"] else 8
    for k in range(NG):
        for m in range(3):
            if o["xbf"]:
                a(f"v_cvt_pk_bf16_f32 v{SN+4*k+m}, v{gc.V_ACC+24+6*k+2*m}, v{gc.V_ACC+25+6*k+2*m}")
            else:
                a(f"v_mov_b32 v{SN+4*k+m}, v{gc.V_ACC+24+3*k+m}")
        a(f"v_mov_b32 v{SN+4*k+3}, s{S_TAG+1}")
        a(f"buffer_store_dwordx4 {vr(SN+4*k,4)}, v7, s[8:11], s59 offen sc1\ns_add_u32 s59, s59, 1024")
    if o["x_late"] is True:
        x_loads(a)
    a("s_barrier")
    AR, PF = 112, 124
    for nu in range(2):
        for dl in range(3):
            a(f"ds_read_b64_tr_b16 {vr(AR+2*(3*nu+dl),2)}, v59 offset:{2048*dl + 32*nu}")
    a(f"s_waitcnt vmcnt({0 if o['x_late'] is True else NG})\nv_lshlrev_b32 v22, 16, v22\nv_lshlrev_b32 v24, 16, v23\ns_waitcnt lgkmcnt(0)")
    for t in range(6):
        for h in range(2):
            unpk(a, 26, 10+2*t+h); unpk(a, 28, AR+2*t+h)
            if o["rnd2"]:
                a("v_pk_add_f32 v[26:27], v[26:27], v[28:29]\nv_cvt_pk_bf16_f32 v30, v26, v27")
                unpk(a, PF+4*t+2*h, 30)
            else:
                b = gc.V_ACC + 4*t + 2*h
                a(f"v_pk_add_f32 v[26:27], v[26:27], v[28:29]\nv_pk_add_f32 {vr(b,2)}, {vr(b,2)}, {vr(22+2*(t//3),2)} op_sel_hi:[1,0]")
                a(f"v_pk_add_f32 {vr(b,2)}, {vr(b,2)}, v[26:27]")
    RX = 204
    a(f"s_mov_b32 s61, {SPIN:#x}\ns_add_u32 s62, s60, 4096\nL_xch_poll:")
    for k in range(NG):
        a(f"buffer_load_dwordx4 {vr(RX+4*k,4)}, v7, s[8:11], s{60 + 2*(k >> 2)} offen offset:{1024*(k & 3)} sc1")
    a(f"s_sub_u32 s61, s61, 1\ns_cbranch_scc1 L_xch_go\ns_waitcnt vmcnt(0)\nv_xor_b32 v4, s{S_TAG+1}, v{RX+3}")
    for k in range(1, NG):
        a(f"v_xor_b32 v5, s{S_TAG+1}, v{RX+4*k+3}\nv_or_b32 v4, v4, v5")
    a("v_cmp_ne_u32 vcc, 0, v4\ns_cmp_eq_u64 vcc, 0\ns_cbranch_scc0 L_xch_poll\nL_xch_go:")
    for t in range(6):
        nu, dl = divmod(t, 3)
        b, p = gc.V_ACC + 4*t, PF + 4*t
        if o["xbf"]:
            for h in range(2):
                k, m = divmod(2*t + h, 3)
                unpk(a, 26+2*h, RX+4*k+m)
            for h in range(2): a(f"v_pk_add_f32 {vr(b+2*h,2)}, {vr(b+2*h,2)}, {vr(26+2*h,2)}")
        else:
            for e in range(4):
                k, m = divmod(4*t + e, 3)
                a(f"v_add_f32 v{b+e}, v{b+e}, v{RX+4*k+m}")
        if o['rnd2']:
            for h in range(2): a(f"v_cvt_pk_bf16_f32 v{26+h}, v{b+2*h}, v{b+2*h+1}")
            for h in range(2): unpk(a, b+2*h, 26+h)
            for h in range(2): a(f"v_pk_add_f32 {vr(b+2*h,2)}, {vr(b+2*h,2)}, {vr(22+2*nu,2)} op_sel_hi:[1,0]")
            for h in range(2): a(f"v_cvt_pk_bf16_f32 v{26+h}, v{b+2*h}, v{b+2*h+1}")
            for h in range(2): unpk(a, b+2*h, 26+h)
            for h in range(2): a(f"v_pk_add_f32 {vr(b+2*h,2)}, {vr(b+2*h,2)}, {vr(p+2*h,2)}")
        for h in range(2): a(f"v_cvt_pk_bf16_f32 v{10+2*t+h}, v{b+2*h}, v{b+2*h+1}")
        a(f"buffer_store_dwordx2 {vr(10+2*t,2)}, v58, s[44:47], s{56+nu} offen offset:{32*dl}{o['ont']}")
    a("s_endpgm")
    a("L_m_conv1:\ns_mov_b32 s30, 1\ns_sub_u32 s31, s2, 72\ns_lshl_b32 s31, s31, 2\ns_add_u32 s31, s31, s20\ns_branch L_m_conv2")
    a("L_m_conv:\ns_mov_b32 s30, 3\ns_sub_u32 s31, s2, 216\ns_lshl_b32 s31, s31, 2\ns_add_u32 s31, s31, s20\ns_mul_i32 s31, s31, 3\nL_m_conv2:")
    a("s_mul_i32 s29, s31, 683\ns_lshr_b32 s29, s29, 16")
    a(f"s_load_dwordx4 s[32:35], s[0:1], {KA['ldt']}\ns_waitcnt lgkmcnt(0)")
    cv.param_loads(a, 80, 32, 34)

    def signal(a):
        a("s_lshl_b32 s36, s29, 8")
        a(f"s_add_u32 s36, s36, {F_CONV}\nv_mov_b32 v4, 1\nv_mov_b32 v5, 0\ns_mov_b64 exec, 1\nbuffer_atomic_add v4, v5, s[8:11], s36 offen sc1")
    flags_srd(a, 8)
    cv.conv_role(a, "cv", S_WS, lambda a: wait_ln(a, "cvln", 8, o), signal)
    a("s_endpgm")


def fifth_wave(a, o):
    if o["prio"]:
        a(f"s_setprio {o['prio']}")
    a(f"s_load_dwordx2 s[48:49], s[0:1], {KA['out']}\ns_load_dwordx8 s[80:87], s[0:1], {KA['lar']}\ns_load_dwordx4 s[52:55], s[0:1], {KA['ldt']}")
    a(f"s_load_dwordx2 s[56:57], s[0:1], {KA['b1']}\ns_load_dwordx2 s[58:59], s[0:1], {KA['b2']}")
    a("s_waitcnt lgkmcnt(0)")
    flags_srd(a, 36)
    read_tag(a)
    if o["tlb"]:
        srd(a, 8, S_WS, WS_FLG + FLG_BYTES); srd(a, 16, S_W2, W_BYTES_TOTAL)
        a("v_lshlrev_b32 v4, 20, v1\nbuffer_load_dword v100, v4, s[8:11], 0 offen sc1\nbuffer_load_dword v101, v4, s[16:19], 0 offen")
        srd(a, 8, 48, X_BYTES); srd(a, 16, S_W1, W_BYTES_TOTAL)
        a("buffer_load_dword v102, v4, s[8:11], 0 offen")
        if o["tlb"] >= 2:
            a("buffer_load_dword v104, v4, s[16:19], 0 offen")
            small = [80, 82, 84, 86, 52, 54, 56, 58]
            for k, p in enumerate(small):
                if o["tlb"] == 3:
                    a(f"s_bfe_u32 s23, s2, 0x30003\ns_cmp_lg_u32 s23, {k}\ns_cbranch_scc1 L_m_tl{k}")
                srd(a, 8, p, 4)
                a(f"buffer_load_dword v{105+k}, v4, s[8:11], 0 offen\nL_m_tl{k}:")
    if o["touch"]:
        a(f"s_cmp_ge_u32 s2, 1\ns_cbranch_scc1 L_m_notouch\nv_mul_u32_u24 v5, {o['lnw']}, v1\ns_mov_b32 s23, {F_LNW}\nbuffer_load_dword v103, v5, s[36:39], s23 offen\nL_m_notouch:")
    srd(a, gc.SRD_W, S_W1, W_BYTES_TOTAL)
    if o["early_bar"]:
        a("s_barrier")
    a("s_lshr_b32 s30, s2, 3")
    if o["code_pf"]:
        a("s_getpc_b64 s[12:13]\nL_m_pc:\ns_sub_u32 s12, s12, L_m_pc-L_m_base\ns_subb_u32 s13, s13, 0")
        a("s_mov_b32 s14, L_m_last-L_m_base\ns_mov_b32 s15, 0x20000\nv_lshlrev_b32 v4, 4, v1\ns_lshl_b32 s23, s30, 10")
        a("buffer_load_dwordx4 v[96:99], v4, s[12:15], s23 offen\ns_add_u32 s23, s23, 32768\nbuffer_load_dwordx4 v[96:99], v4, s[12:15], s23 offen")
    w1_stream(a, "m0", gc.SRD_W, 30, 32, o["r0"], o["r1"], o["win1"])
    if o["extra23"]:
        a("s_and_b32 s23, s2, 6\ns_cmp_lg_u32 s23, 2\ns_cbranch_scc1 L_m_nox23")
        w1_stream(a, "m23", gc.SRD_W, 30, 32, 2048 - o["extra23"], 2048, o["win1"])
        a("L_m_nox23:")
    a("s_waitcnt lgkmcnt(0)")
    make_tag(a)
    if not o["early_bar"]:
        a("s_barrier")
    a("; STAMP 0\ns_cmp_ge_u32 s2, 216\ns_cbranch_scc1 L_m_helper")
    tile1(a)
    gc.lane_ids(a)
    a(f"s_mul_i32 s{gc.S_ACT0}, s15, 12288\ns_lshl_b32 s{gc.S_W0}, s14, 8")
    gc.loader_setup(a, 0, 9216, "A")
    srd_off(a, gc.SRD_ACT, S_WS, WS_HT, HT_BYTES)
    ln_local_wait(a, "lw1")
    a("; STAMP 0")
    gc.w_prefill(a, range(4), 0, 9216)
    a("; STAMP 1")
    wait_ln(a, "l1", 36, o)
    a(f"; STAMP 2\ns_cmp_lg_u32 s2, 0\ns_cbranch_scc1 L_m_noseed\nv_mov_b32 v4, s{S_TAG+1}\nv_mov_b32 v5, {F_SEED}\ns_mov_b64 exec, 1")
    a("buffer_store_dword v4, v5, s[36:39], 0 offen sc1\ns_mov_b64 exec, -1\nL_m_noseed:")
    gc.loader_after_prefill(a, 32*o["rep1"], 0, 9216, "g1", o["aflags"], tail=lambda a: None, wrap=(2048*9216, 32*73728) if o["rep1"] == 2 else None)
    srd(a, gc.SRD_W, S_W2, W_BYTES_TOTAL)
    a("s_cmp_lt_u32 s2, 192\ns_cbranch_scc1 L_m_l2")
    a("s_waitcnt vmcnt(28)\ns_barrier\ns_waitcnt vmcnt(0)\ns_barrier\ns_barrier\ns_sub_u32 s30, s2, 152\ns_lshr_b32 s30, s30, 3")
    ln_local_wait(a, "lw3", CNT_LDS+8)
    if o["x_pf"] == "early":
        srd(a, 8, S_X, X_BYTES); a("s_sub_u32 s31, s30, 5\ns_mul_i32 s31, s31, 3")
        for k in range(3):
            if k == 2:
                a("s_cmp_eq_u32 s31, 8\ns_cbranch_scc1 L_m_nox")
            x_stream(a, f"xe{k}", 8, 31)
            a("s_add_u32 s31, s31, 1")
        a("L_m_nox:")
    g_pause(a, "gp3", o)
    w2_stream(a, "m3", gc.SRD_W, 30, 8, o["r2"] + 96*o["nC"], 2304, o["win3"])
    if o["x_pf"] is True:
        srd(a, 8, S_X, X_BYTES); x_stream(a, "x3", 8, 30)
    a("s_endpgm\nL_m_l2:")
    tile2(a)
    a(f"s_mul_i32 s57, s15, 12288\ns_mul_i32 s18, s19, {36*73728}\ns_add_u32 s57, s57, s18")
    a(f"s_lshl_b32 s56, s14, 8\ns_mul_i32 s18, s19, {HALF2}\ns_add_u32 s56, s56, s18\ns_mov_b32 s54, -1\ns_mov_b32 s55, -1")
    jump = block_jump if o["rot"] else None
    if o["rot"]:
        a.extend(block_jump("w") + block_jump("a"))
    else:
        a(f"s_mov_b32 s{gc.S_W0}, s56\ns_mov_b32 s{gc.S_ACT0}, s57")
    gc.loader_setup(a, 0, 4096, "B")
    srd_off(a, gc.SRD_ACT, S_WS, WS_G, G_BYTES)
    e2 = o["early2"]
    for j, vm in enumerate((28, 0, None)):
        if j < e2:
            gc.w_prefill(a, [j], 0, 4096, jump)
        if vm is not None:
            a(f"s_waitcnt vmcnt({vm + 16*min(j+1, e2)})")
        a("s_barrier")
    a("; STAMP 5")
    gc.w_prefill(a, range(min(e2, 3), 4), 0, 4096, jump)
    a("v_mov_b32 v61, 0\n; STAMP 3")

    def wait_slot(a):
        a(f"s_mul_i32 s23, s15, 36\ns_mul_i32 s24, s19, 18\ns_add_u32 s23, s23, s24\ns_lshl_b32 s23, s23, 8\ns_add_u32 s23, s23, {F_GW}")
        a("v_and_b32 v60, 3, v1\nv_add_u32 v60, s13, v60\nv_lshlrev_b32 v60, 8, v60")
        poll(a, "l2a", 36, 60, "s23", f"s{S_TAG+1}")
        a("; STAMP 4\nv_min_u32 v60, 17, v1\nv_lshlrev_b32 v60, 8, v60\ns_mov_b32 s53, s23")

    def wait_half(a):
        poll(a, "l2b", 36, 60, "s53", f"s{S_TAG+1}")

    def at_dma(a):
        for e in range(12):
            a(f"s_mov_b32 m0, {AT_LDS + 1024*e}\nbuffer_load_dwordx4 v8, s[48:51], s26 offen sc1 lds\ns_add_u32 s26, s26, 32768")

    def at_early(a):
        srd_off(a, 48, S_WS, WS_AT, AT_BYTES)
        a(f"s_lshl_b32 s23, s15, 8\ns_add_u32 s23, s23, {F_CONV}\nbuffer_load_dword v62, v61, s[36:39], s23 offen sc1")
        a("v_lshrrev_b32 v8, 3, v1\nv_lshlrev_b32 v8, 12, v8\nv_and_b32 v9, 7, v1\nv_lshl_add_u32 v8, v9, 4, v8")
        a(f"s_mul_i32 s26, s15, {96*4096}\ns_lshl_b32 s27, s16, 1\ns_add_u32 s26, s26, s27")
        a("s_cmp_eq_u32 s15, 5\ns_cselect_b32 s24, 96, 32\ns_waitcnt vmcnt(0)\nv_readfirstlane_b32 s27, v62")
        a("s_cmp_lg_u32 s27, s24\ns_cbranch_scc1 L_at_skip")
        at_dma(a)
        a("L_at_skip:")
    if o["rot"]:
        gc.loader_after_prefill(a, 36, 0, 4096, "g2", o["aflags"], before_last=at_early, jump=block_jump, wait2=wait_slot, wait8=wait_half)
    else:
        ln_local_wait(a, "lw4", CNT_LDS+8)
        a(f"s_mul_i32 s53, s15, 36\ns_mul_i32 s24, s19, 18\ns_add_u32 s53, s53, s24\ns_lshl_b32 s53, s53, 8\ns_add_u32 s53, s53, {F_GW}")
        a("v_min_u32 v60, 17, v1\nv_lshlrev_b32 v60, 8, v60")
        wait_half(a)
        a("; STAMP 4")
        gc.loader_after_prefill(a, 36*o["rep2"], 0, 4096, "g2", o["aflags"], before_last=at_early, wrap=(HALF2, 36*73728) if o["rep2"] == 2 else None)
    a("s_cmp_eq_u32 s27, s24\ns_cbranch_scc1 L_at_done")
    poll(a, "at", 36, 61, "s23", "s24")
    at_dma(a)
    a("L_at_done:\ns_waitcnt vmcnt(0)\ns_barrier\ns_endpgm")
    a("L_m_helper:\ns_sub_u32 s30, s2, 216\ns_lshr_b32 s30, s30, 3")
    ln_local_wait(a, "lw2")
    w1_stream(a, "m1", gc.SRD_W, 30, 5, o["r1"] + 108*o["nB"]//5*4, 2048, o["win2"], short23=o["extra23"])
    a("; STAMP 1")
    srd(a, gc.SRD_W, S_W2, W_BYTES_TOTAL)
    if o["rot"]:
        w2_head(a, "mh", gc.SRD_W, 30, 5, o["win2"])
    w2_stream(a, "m2", gc.SRD_W, 30, 5, 512 if o["rot"] else o["r20"], o["r2"], o["win2"])
    a("; STAMP 2")
    g_pause(a, "gp4", o)
    w2_stream(a, "m4", gc.SRD_W, 30, 8, o["r2"] + 96*o["nC"], 2304, o["win3"])
    if o["x_pf"] is True:
        srd(a, 8, S_X, X_BYTES); x_stream(a, "x4", 8, 30)


def mega(a, name, **opt):
    o = dict(early_bar=False, extra23=0, r0=0, r20=0, rep1=1, rep2=1, uflags='', rot=False, x_pf=True, ln_lines=False, x_late='tail', late_sig=False, pause=0, xbf=True, rnd1=0, rnd2=0, prio=0, lnw=256, slp=1, touch=True, tlb=3, early2=3, xnt='', ont='', prefill_late=True, r1=384, nB=2, r2=400, nC=0, win1=20, win2=40, win3=40, aflags=" sc1", code_pf=9)
    o.update(opt)
    prefetch.ROT = o["rot"]
    cv.UFLAGS = o["uflags"]
    a(f".globl {name}\n.p2align 8\n.type {name},@function\n{name}:\nL_m_base:")
    a("s_cmp_ge_u32 s2, 256\ns_cbranch_scc1 L_m_end")
    a(f"s_load_dwordx2 s[{S_X}:{S_X+1}], s[0:1], {KA['x']}\ns_load_dwordx2 s[{S_WS}:{S_WS+1}], s[0:1], {KA['ws']}")
    a(f"s_load_dwordx2 s[{S_W1}:{S_W1+1}], s[0:1], {KA['w1']}\ns_load_dwordx2 s[{S_W2}:{S_W2+1}], s[0:1], {KA['w2']}")
    a("v_lshrrev_b32 v1, 6, v0\nv_readfirstlane_b32 s20, v1\nv_and_b32 v1, 63, v0")
    a("s_cmp_eq_u32 s20, 4\ns_cbranch_scc1 L_m_w4")
    compute_waves(a, o)
    a("L_m_w4:")
    fifth_wave(a, o)
    a("L_m_end:\ns_endpgm\nL_m_last:")


def warm_kernel(a, name, rows, w2rows, main, window=63):
    a(f".globl {name}\n.p2align 8\n.type {name},@function\n{name}:")
    a("s_cmp_ge_u32 s2, 256\ns_cbranch_scc1 L_pre_end")
    if rows >= 0:
        a(f"s_load_dwordx2 s[4:5], s[0:1], {KA['ws']}\ns_load_dwordx2 s[6:7], s[0:1], {KA['x']}\ns_load_dwordx2 s[20:21], s[0:1], {KA['w1']}")
        a(f"s_load_dwordx2 s[22:23], s[0:1], {KA['w2']}\ns_load_dwordx2 s[24:25], s[0:1], {KA['out']}")
        a("v_and_b32 v1, 63, v0\ns_lshr_b32 s30, s2, 3\nv_lshlrev_b32 v4, 20, v1\ns_waitcnt lgkmcnt(0)")
        srd(a, 8, 4, WS_FLG + FLG_BYTES); srd(a, 12, 6, X_BYTES); srd(a, 16, 22, W_BYTES_TOTAL); srd(a, 32, 20, W_BYTES_TOTAL); srd(a, 48, 24, X_BYTES)
        for k, rs in enumerate((8, 12, 16, 48)):
            a(f"buffer_load_dword v{100+k}, v4, s[{rs}:{rs+3}], 0 offen sc1")
        a(f"s_getpc_b64 s[12:13]\nL_pre_pc:\ns_sub_u32 s12, s12, L_pre_pc-L_m_base\ns_subb_u32 s13, s13, 0")
        a("s_mov_b32 s14, L_m_last-L_m_base\ns_mov_b32 s15, 0x20000\nv_lshlrev_b32 v4, 4, v1\ns_lshl_b32 s23, s30, 10")
        a("buffer_load_dwordx4 v[96:99], v4, s[12:15], s23 offen\ns_add_u32 s23, s23, 32768\nbuffer_load_dwordx4 v[96:99], v4, s[12:15], s23 offen")
        w1_stream(a, "pre", 32, 30, 32, 0, rows, window)
        w2_stream(a, "pre", 16, 30, 32, 0, w2rows, window)
    a("L_pre_end:\ns_endpgm")
```

```python
import struct
from asmlib import *
from layout import *
import gemm_core as gc
import mega_ln as ln
import mega_conv as cv
from prefetch import *
import prefetch

AT_LDS = gc.LDS_RING
LN_LDS = 139264
CNT_LDS = LN_LDS + 2*ln.LN_T
LDS_TOTAL = CNT_LDS + 64
S_WS, S_X, S_DBG, S_W1, S_W2 = 4, 6, 94, 96, 98
SPIN = 0x100000
S_TAG = 100
F_SEED = 255 * 256


def f32hex(x):
    return "0x%08x" % struct.unpack("<I", struct.pack("<f", x))[0]


def div6(a, d, r, x):
    a(f"s_mul_i32 s{d}, s{x}, 10923\ns_lshr_b32 s{d}, s{d}, 16\ns_mul_i32 s{r}, s{d}, 6\ns_sub_u32 s{r}, s{x}, s{r}")


def unpk(a, x, p):
    a(f"v_lshlrev_b32 v{x}, 16, v{p}\nv_and_b32 v{x+1}, 0xffff0000, v{p}")


def poll(a, tag, rs, vaddr, soff, target, sleep=1, mask=None):
    a(f"s_mov_b32 s61, {SPIN:#x}\nL_{tag}_poll:\nbuffer_load_dword v62, v{vaddr}, s[{rs}:{rs+3}], {soff} offen sc1")
    a(f"s_sub_u32 s61, s61, 1\ns_cbranch_scc1 L_{tag}_go\ns_waitcnt vmcnt(0)")
    if mask:
        a(f"v_and_b32 v62, {mask:#x}, v62")
    a(f"v_cmp_ne_u32 vcc, {target}, v62")
    a(f"s_cmp_eq_u64 vcc, 0\ns_cbranch_scc1 L_{tag}_go")
    if sleep:
        a(f"s_sleep {sleep}")
    a(f"s_branch L_{tag}_poll\nL_{tag}_go:")


def flags_srd(a, d):
    srd_off(a, d, S_WS, WS_FLG, FLG_BYTES)


def last_wave_signals(a, tag, cnt, rs, soff, word=None, second=None):
    a(f"v_mov_b32 v58, {cnt}\nv_mov_b32 v59, 1\nv_mov_b32 v61, 0\ns_mov_b64 exec, 1\nds_add_rtn_u32 v60, v58, v59\ns_waitcnt lgkmcnt(0)")
    a(f"v_readfirstlane_b32 s23, v60\ns_cmp_lg_u32 s23, 3\ns_cbranch_scc1 L_{tag}_notlast")
    if word:
        a(f"v_mov_b32 v59, {word}\nbuffer_store_dword v59, v61, s[{rs}:{rs+3}], {soff} offen sc1")
    else:
        if second:
            a(f"buffer_atomic_add v59, v61, s[{rs}:{rs+3}], {second} offen sc1")
        a(f"buffer_atomic_add v59, v61, s[{rs}:{rs+3}], {soff} offen sc1")
    a(f"L_{tag}_notlast:\ns_mov_b64 exec, -1")


def ln_local_wait(a, tag, cnt=CNT_LDS+4):
    a(f"v_mov_b32 v58, {cnt}\nL_{tag}:\ns_sleep 2\nds_read_b32 v60, v58\ns_waitcnt lgkmcnt(0)\nv_readfirstlane_b32 s23, v60\ns_cmp_lt_u32 s23, 4\ns_cbranch_scc1 L_{tag}")


def g_pause(a, tag, o):
    if not o["pause"]:
        return
    a(f"s_lshr_b32 s23, s2, 3\ns_mul_i32 s24, s23, 43\ns_lshr_b32 s24, s24, 9\ns_mul_i32 s24, s24, 12\ns_sub_u32 s23, s23, s24\ns_lshl_b32 s23, s23, 8\ns_add_u32 s23, s23, {F_G}")
    a(f"v_mov_b32 v61, 0\ns_mov_b32 s61, {SPIN:#x}\nL_{tag}_poll:\nbuffer_load_dword v62, v61, s[36:39], s23 offen sc1\ns_sub_u32 s61, s61, 1\ns_cbranch_scc1 L_{tag}_go")
    a(f"s_waitcnt vmcnt(0)\nv_readfirstlane_b32 s24, v62\ns_cmp_ge_u32 s24, {o['pause']}\ns_cbranch_scc1 L_{tag}_go\ns_sleep 8\ns_branch L_{tag}_poll\nL_{tag}_go:")


def wait_ln(a, tag, rs, o):
    a(f"v_mul_u32_u24 v61, {o['lnw']}, v1\ns_mov_b32 s61, {SPIN:#x}\nL_{tag}_poll:")
    if o["ln_lines"]:
        for k in range(4):
            a(f"s_mov_b32 s62, {F_LNW + k*64*o['lnw']}\nbuffer_load_dword v{180+k}, v61, s[{rs}:{rs+3}], s62 offen sc1")
    else:
        a(f"s_mov_b32 s62, {F_LNW}\nbuffer_load_dwordx4 v[180:183], v61, s[{rs}:{rs+3}], s62 offen sc1")
    a(f"s_sub_u32 s61, s61, 1\ns_cbranch_scc1 L_{tag}_go\ns_waitcnt vmcnt(0)")
    a(f"v_xor_b32 v180, s{S_TAG+1}, v180\nv_xor_b32 v181, s{S_TAG+1}, v181\nv_xor_b32 v182, s{S_TAG+1}, v182\nv_xor_b32 v183, s{S_TAG+1}, v183")
    a("v_or3_b32 v180, v180, v181, v182\nv_or_b32 v180, v180, v183\nv_cmp_ne_u32 vcc, 0, v180")
    a(f"s_cmp_eq_u64 vcc, 0\ns_cbranch_scc1 L_{tag}_go\ns_sleep {o['slp']}\ns_branch L_{tag}_poll\nL_{tag}_go:")


def tile1(a):
    a("s_and_b32 s12, s2, 7\ns_lshr_b32 s13, s2, 3\ns_and_b32 s14, s12, 1\ns_mul_i32 s14, s14, 3\ns_add_u32 s13, s13, s14")
    a("s_cmp_ge_u32 s13, 27\ns_cselect_b32 s14, 27, 0\ns_sub_u32 s13, s13, s14\ns_mul_i32 s12, s12, 27\ns_add_u32 s12, s12, s13")
    div6(a, 14, 15, 12)


def tile2(a):
    a("s_lshr_b32 s13, s2, 3")
    div6(a, 12, 15, 13)
    a("s_bfe_u32 s19, s2, 0x10002\ns_and_b32 s13, s2, 3\ns_lshl_b32 s14, s13, 2\ns_add_u32 s14, s14, s12")
    a("s_mul_i32 s13, s13, 9\ns_add_u32 s13, s13, 1\ns_lshr_b32 s13, s13, 1")
    a("s_lshl_b32 s16, s14, 7\ns_lshl_b32 s17, s19, 6\ns_add_u32 s16, s16, s17")


def block_jump(kind):
    cnt, base, dst, step = (54, 56, gc.S_W0, 128*4096) if kind == "w" else (55, 57, gc.S_ACT0, 2*73728)
    return [f"s_add_u32 s{cnt}, s{cnt}, 1", f"s_add_u32 s18, s{cnt}, s12", "s_and_b32 s18, s18, 3", f"s_cmp_lt_u32 s{cnt}, 4",
            f"s_cselect_b32 s18, s18, s{cnt}", "s_add_u32 s18, s18, s13", "s_cmp_ge_u32 s18, 18", "s_cselect_b32 s17, 18, 0",
            "s_sub_u32 s18, s18, s17", f"s_mul_i32 s18, s18, {step}", f"s_add_u32 s{dst}, s18, s{base}"]


def gelu_epilogue(a, rounds, rot):
    c1 = -2.0 * 0.7978845608028654 * 1.4426950408889634
    a(f"s_mov_b32 s48, {f32hex(c1*0.044715)}\ns_mov_b32 s49, s48\nv_mov_b32 v36, {f32hex(c1)}\nv_mov_b32 v37, v36")
    for nu in range(4):
        unpk(a, 20+4*nu, 12+2*nu); unpk(a, 22+4*nu, 13+2*nu)
    a(f"s_lshr_b32 s26, s20, 1\ns_mul_i32 s26, s26, {gc.SLOT}\ns_and_b32 s27, s20, 1\ns_mul_i32 s27, s27, 6144\ns_add_u32 s26, s26, s27\ns_add_u32 s26, s26, {gc.W_BYTES}\nv_add_u32 v38, s26, v7")
    B = 112
    for dl in range(3):
        for pi in range(2):
            src = [(gc.acc(2*pi + (k >> 1), dl) + 2*(k & 1), 20 + 4*(2*pi + (k >> 1)) + 2*(k & 1)) for k in range(4)]
            U = [B + 2*k for k in range(4)]; T = [B + 8 + 2*k for k in range(4)]; P = [B + 16 + k for k in range(4)]
            O = B + 20 + 4*((2*dl + pi) % 2)
            if rounds == 2:
                for k in range(4): a(f"v_cvt_pk_bf16_f32 v{P[k]}, v{src[k][0]}, v{src[k][0]+1}")
                for k in range(4): unpk(a, U[k], P[k])
                for k in range(4): a(f"v_pk_add_f32 {vr(U[k],2)}, {vr(U[k],2)}, {vr(src[k][1],2)}")
            else:
                for k in range(4): a(f"v_pk_add_f32 {vr(U[k],2)}, {vr(src[k][0],2)}, {vr(src[k][1],2)}")
            if rounds >= 1:
                for k in range(4): a(f"v_cvt_pk_bf16_f32 v{P[k]}, v{U[k]}, v{U[k]+1}")
                for k in range(4): unpk(a, U[k], P[k])
            for k in range(4): a(f"v_pk_mul_f32 {vr(T[k],2)}, {vr(U[k],2)}, {vr(U[k],2)}")
            for k in range(4): a(f"v_pk_fma_f32 {vr(T[k],2)}, {vr(T[k],2)}, s[48:49], v[36:37]")
            for k in range(4): a(f"v_pk_mul_f32 {vr(T[k],2)}, {vr(T[k],2)}, {vr(U[k],2)}")
            for k in range(4): a(f"v_exp_f32 v{T[k]}, v{T[k]}\nv_exp_f32 v{T[k]+1}, v{T[k]+1}")
            for k in range(4): a(f"v_pk_add_f32 {vr(T[k],2)}, {vr(T[k],2)}, 1.0 op_sel_hi:[1,0]")
            for k in range(4): a(f"v_rcp_f32 v{T[k]}, v{T[k]}\nv_rcp_f32 v{T[k]+1}, v{T[k]+1}")
            for k in range(4): a(f"v_pk_mul_f32 {vr(U[k],2)}, {vr(U[k],2)}, {vr(T[k],2)}")
            for k in range(4): a(f"v_cvt_pk_bf16_f32 v{O+k}, v{U[k]}, v{U[k]+1}")
            a(f"buffer_store_dwordx4 {vr(O,4)}, v7, s[44:47], s17 offen offset:{1024*pi} sc1")
            if rot:
                a(f"ds_write_b128 v38, {vr(O,4)} offset:{(2*dl + pi)*1024}")
        a("s_add_u32 s17, s17, 2048")


def read_tag(a):
    a(f"s_add_u32 s26, s{S_WS}, {WS_FLG + F_SEED:#x}\ns_addc_u32 s27, s{S_WS+1}, 0\ns_load_dword s{S_TAG+1}, s[26:27], 0")


def make_tag(a):
    a(f"s_mul_i32 s{S_TAG+1}, s{S_TAG+1}, 0x9e3779b1\ns_add_u32 s{S_TAG+1}, s{S_TAG+1}, 0x7f4a7c15\ns_andn2_b32 s{S_TAG}, s{S_TAG+1}, 0xff")


def compute_waves(a, o):
    a("s_waitcnt lgkmcnt(0)")
    ln.ln_issue(a, S_X)
    read_tag(a)
    a(f"s_cmp_lg_u32 s20, 0\ns_cbranch_scc1 L_m_nz\nv_mov_b32 v58, {CNT_LDS}\nv_mov_b32 v60, 0\nv_mov_b32 v61, 0\nv_mov_b32 v62, 0\nv_mov_b32 v63, 0")
    a("ds_write_b128 v58, v[60:63]\nL_m_nz:")
    if o["early_bar"]:
        a("s_waitcnt lgkmcnt(0)\ns_barrier")
    a(f"s_load_dwordx2 s[38:39], s[0:1], {KA['b1']}\ns_load_dwordx8 s[76:83], s[0:1], {KA['lar']}".replace("s[76:83]", "s[80:87]"))
    ln.ln_body(a, S_WS, LN_LDS, CNT_LDS, "ln", not o["early_bar"])
    flags_srd(a, 40)
    make_tag(a)
    a("v_mov_b32 v61, 0\ns_cmp_lg_u32 s20, 3\ns_cbranch_scc1 L_m_nozero\ns_sub_u32 s23, s2, 28\ns_cmp_ge_u32 s23, 6\ns_cbranch_scc1 L_m_nozero")
    a("s_lshl_b32 s23, s2, 8\ns_mov_b64 exec, 1\nbuffer_store_dword v61, v61, s[40:43], s23 offen sc1\ns_mov_b64 exec, -1\nL_m_nozero:")
    if o["ln_lines"]:
        a(f"s_mul_i32 s24, s2, {o['lnw']}\ns_add_u32 s24, s24, {F_LNW}")
    else:
        a(f"s_and_b32 s24, s2, 63\ns_mul_i32 s24, s24, {o['lnw']}\ns_lshr_b32 s23, s2, 6\ns_lshl_b32 s23, s23, 2\ns_add_u32 s24, s24, s23\ns_add_u32 s24, s24, {F_LNW}")
    a("s_waitcnt vmcnt(0)\n; STAMP 1")
    last_wave_signals(a, "lnd", CNT_LDS + 4, 40, "s24", word=f"s{S_TAG+1}")
    a("s_cmp_ge_u32 s2, 216\ns_cbranch_scc1 L_m_conv")
    a("s_lshr_b32 s29, s2, 3\ns_lshl_b32 s29, s29, 2\ns_add_u32 s29, s29, s20")
    srd(a, 32, S_W1, W_BYTES_TOTAL)
    w1_burst(a, 32, 29, 108, o["r1"]//4*5, o["nB"])
    srd(a, 32, S_W2, W_BYTES_TOTAL)
    tile1(a)
    gc.lane_ids(a)
    gc.compute_setup(a, "A")
    srd(a, 8, 38, F*2)
    a(f"s_lshr_b32 s16, s20, 1\ns_lshl_b32 s17, s16, 7\ns_lshl_b32 s18, s14, 8\ns_add_u32 s17, s17, s18\nv_lshlrev_b32 v9, 3, v3")
    for nu in range(4):
        a(f"buffer_load_dwordx2 {vr(12+2*nu,2)}, v9, s[8:11], s17 offen offset:{32*nu}")
    for i in range(48):
        a(f"v_mov_b32 v{gc.V_ACC+i}, 0")
    srd_off(a, 44, S_WS, WS_G, G_BYTES)
    a("s_and_b32 s17, s20, 1\ns_mul_i32 s17, s17, 3\ns_mul_i32 s18, s15, 6\ns_add_u32 s17, s17, s18\ns_lshl_b32 s17, s17, 11")
    a("s_lshl_b32 s18, s14, 1\ns_add_u32 s18, s18, s16\ns_mul_i32 s18, s18, 73728\ns_add_u32 s17, s17, s18")
    a(f"s_mul_i32 s24, s15, 36\ns_add_u32 s24, s24, s14\ns_lshl_b32 s24, s24, 8\ns_add_u32 s24, s24, {F_GW}")
    a(f"s_load_dwordx4 s[52:55], s[0:1], {KA['b2']}")
    gc.compute_main(a, 32*o["rep1"], "A", False, "g1", last_barrier=True, st=(5, 2))
    if o["rep1"] == 2:
        for i in range(48):
            a(f"v_mul_f32 v{gc.V_ACC+i}, 0.5, v{gc.V_ACC+i}")
    a("s_waitcnt vmcnt(0)")
    gelu_epilogue(a, o['rnd1'], o['rot'])
    a("s_cmp_lt_u32 s2, 192\ns_cbranch_scc1 L_m_g2\ns_waitcnt vmcnt(0)")
    last_wave_signals(a, "gd", CNT_LDS + 8, 40, "s24", word=f"s{S_TAG+1}")
    a("; STAMP 3\ns_branch L_m_conv1\nL_m_g2:")
    tile2(a)
    gc.compute_setup(a, "B", s_kh=19)
    srd(a, 32, S_X, X_BYTES); srd(a, 28, 52, S*2)
    a("s_lshr_b32 s17, s20, 1\ns_lshl_b32 s17, s17, 5\ns_add_u32 s17, s17, s16")
    a("s_mul_i32 s18, s15, 96\ns_and_b32 s26, s20, 1\ns_mul_i32 s26, s26, 48\ns_add_u32 s18, s18, s26")
    a("v_mul_u32_u24 v58, 1152, v2\nv_lshl_add_u32 v58, v3, 3, v58\nv_lshlrev_b32 v9, 1, v2")
    a("s_mul_i32 s56, s17, 1152\ns_lshl_b32 s26, s18, 1\ns_add_u32 s56, s56, s26\ns_add_u32 s57, s56, 18432\ns_lshl_b32 s26, s17, 1")
    a("s_mov_b32 s22, s26\nv_mov_b32 v39, v58")
    for i in range(48):
        a(f"v_mov_b32 v{gc.V_ACC+i}, 0")
    a("v_bfe_u32 v4, v1, 2, 2\nv_lshl_add_u32 v4, v3, 2, v4\nv_lshlrev_b32 v4, 7, v4\nv_and_b32 v5, 3, v1\nv_lshl_add_u32 v4, v5, 3, v4")
    a(f"s_and_b32 s26, s20, 1\ns_mul_i32 s26, s26, 6144\ns_lshr_b32 s27, s20, 1\ns_lshl_b32 s27, s27, 6\ns_add_u32 s26, s26, s27\ns_add_u32 s26, s26, {AT_LDS}\nv_add_u32 v59, s26, v4")
    a("v_mov_b32 v31, v59")
    a("s_xor_b32 s58, s2, 4\ns_lshl_b32 s26, s20, 13\ns_lshl_b32 s59, s58, 15\ns_add_u32 s59, s59, s26\ns_lshl_b32 s60, s2, 15\ns_add_u32 s60, s60, s26")

    def x_loads(a):
        for nu in range(2):
            for dl in range(3):
                a(f"buffer_load_dwordx2 {vr(10+2*(3*nu+dl),2)}, v39, s[32:35], s{56+nu} offen offset:{32*dl}{o['xnt']}")
            a(f"buffer_load_ushort v{22+nu}, v9, s[28:31], s22 offen offset:{32*nu}")

    def publish_g(a):
        a("s_waitcnt vmcnt(0)")
        last_wave_signals(a, "gd2", CNT_LDS + 8, 40, "s24", word=f"s{S_TAG+1}")
        a("; STAMP 3\n; SWAIT")
        if not o["x_late"]:
            x_loads(a)

    if o["late_sig"]:
        gc.compute_main(a, 36, "B", True, "g2", st=(5, 4), first_stage1=publish_g)
    else:
        publish_g(a)
        gc.compute_main(a, 36*o["rep2"], "B", True, "g2", st=(5, 4), tail_hook=x_loads if o["x_late"] == "tail" else None)
        if o["rep2"] == 2:
            for i in range(48):
                a(f"v_mul_f32 v{gc.V_ACC+i}, 0.5, v{gc.V_ACC+i}")
    srd_off(a, 8, S_WS, WS_XCH, XCH_BYTES); srd(a, 44, 54, X_BYTES)
    a("v_mov_b32 v58, v39\nv_mov_b32 v59, v31")
    a("; STAMP 5")
    SN = 172
    NG = 4 if o["xbf"] else 8
    for k in range(NG):
        for m in range(3):
            if o["xbf"]:
                a(f"v_cvt_pk_bf16_f32 v{SN+4*k+m}, v{gc.V_ACC+24+6*k+2*m}, v{gc.V_ACC+25+6*k+2*m}")
            else:
                a(f"v_mov_b32 v{SN+4*k+m}, v{gc.V_ACC+24+3*k+m}")
        a(f"v_mov_b32 v{SN+4*k+3}, s{S_TAG+1}")
        a(f"buffer_store_dwordx4 {vr(SN+4*k,4)}, v7, s[8:11], s59 offen sc1\ns_add_u32 s59, s59, 1024")
    if o["x_late"] is True:
        x_loads(a)
    a("s_barrier")
    AR, PF = 112, 124
    for nu in range(2):
        for dl in range(3):
            a(f"ds_read_b64_tr_b16 {vr(AR+2*(3*nu+dl),2)}, v59 offset:{2048*dl + 32*nu}")
    a(f"s_waitcnt vmcnt({0 if o['x_late'] is True else NG})\nv_lshlrev_b32 v22, 16, v22\nv_lshlrev_b32 v24, 16, v23\ns_waitcnt lgkmcnt(0)")
    for t in range(6):
        for h in range(2):
            unpk(a, 26, 10+2*t+h); unpk(a, 28, AR+2*t+h)
            if o["rnd2"]:
                a("v_pk_add_f32 v[26:27], v[26:27], v[28:29]\nv_cvt_pk_bf16_f32 v30, v26, v27")
                unpk(a, PF+4*t+2*h, 30)
            else:
                b = gc.V_ACC + 4*t + 2*h
                a(f"v_pk_add_f32 v[26:27], v[26:27], v[28:29]\nv_pk_add_f32 {vr(b,2)}, {vr(b,2)}, {vr(22+2*(t//3),2)} op_sel_hi:[1,0]")
                a(f"v_pk_add_f32 {vr(b,2)}, {vr(b,2)}, v[26:27]")
    RX = 204
    if o["xwait"]:
        a("s_waitcnt vmcnt(0)")
    a(f"s_mov_b32 s61, {SPIN:#x}\ns_add_u32 s62, s60, 4096\nL_xch_poll:")
    for k in range(NG):
        a(f"buffer_load_dwordx4 {vr(RX+4*k,4)}, v7, s[8:11], s{60 + 2*(k >> 2)} offen offset:{1024*(k & 3)} sc1")
    a(f"s_sub_u32 s61, s61, 1\ns_cbranch_scc1 L_xch_go\ns_waitcnt vmcnt(0)\nv_xor_b32 v4, s{S_TAG+1}, v{RX+3}")
    for k in range(1, NG):
        a(f"v_xor_b32 v5, s{S_TAG+1}, v{RX+4*k+3}\nv_or_b32 v4, v4, v5")
    a("v_cmp_ne_u32 vcc, 0, v4\ns_cmp_eq_u64 vcc, 0\ns_cbranch_scc0 L_xch_poll\nL_xch_go:")
    for t in range(6):
        nu, dl = divmod(t, 3)
        b, p = gc.V_ACC + 4*t, PF + 4*t
        if o["xbf"]:
            for h in range(2):
                k, m = divmod(2*t + h, 3)
                unpk(a, 26+2*h, RX+4*k+m)
            for h in range(2): a(f"v_pk_add_f32 {vr(b+2*h,2)}, {vr(b+2*h,2)}, {vr(26+2*h,2)}")
        else:
            for e in range(4):
                k, m = divmod(4*t + e, 3)
                a(f"v_add_f32 v{b+e}, v{b+e}, v{RX+4*k+m}")
        if o['rnd2']:
            for h in range(2): a(f"v_cvt_pk_bf16_f32 v{26+h}, v{b+2*h}, v{b+2*h+1}")
            for h in range(2): unpk(a, b+2*h, 26+h)
            for h in range(2): a(f"v_pk_add_f32 {vr(b+2*h,2)}, {vr(b+2*h,2)}, {vr(22+2*nu,2)} op_sel_hi:[1,0]")
            for h in range(2): a(f"v_cvt_pk_bf16_f32 v{26+h}, v{b+2*h}, v{b+2*h+1}")
            for h in range(2): unpk(a, b+2*h, 26+h)
            for h in range(2): a(f"v_pk_add_f32 {vr(b+2*h,2)}, {vr(b+2*h,2)}, {vr(p+2*h,2)}")
        for h in range(2): a(f"v_cvt_pk_bf16_f32 v{10+2*t+h}, v{b+2*h}, v{b+2*h+1}")
        a(f"buffer_store_dwordx2 {vr(10+2*t,2)}, v58, s[44:47], s{56+nu} offen offset:{32*dl}{o['ont']}")
    a("s_endpgm")
    a("L_m_conv1:\ns_mov_b32 s30, 1\ns_sub_u32 s31, s2, 72\ns_lshl_b32 s31, s31, 2\ns_add_u32 s31, s31, s20\ns_branch L_m_conv2")
    a("L_m_conv:\ns_mov_b32 s30, 3\ns_sub_u32 s31, s2, 216\ns_lshl_b32 s31, s31, 2\ns_add_u32 s31, s31, s20\ns_mul_i32 s31, s31, 3\nL_m_conv2:")
    a("s_mul_i32 s29, s31, 683\ns_lshr_b32 s29, s29, 16")
    a(f"s_load_dwordx4 s[32:35], s[0:1], {KA['ldt']}\ns_waitcnt lgkmcnt(0)")
    cv.param_loads(a, 80, 32, 34)

    def signal(a):
        a("s_lshl_b32 s36, s29, 8")
        a(f"s_add_u32 s36, s36, {F_CONV}\nv_mov_b32 v4, 1\nv_mov_b32 v5, 0\ns_mov_b64 exec, 1\nbuffer_atomic_add v4, v5, s[8:11], s36 offen sc1")
    flags_srd(a, 8)
    cv.conv_role(a, "cv", S_WS, lambda a: wait_ln(a, "cvln", 8, o), signal)
    a("s_endpgm")


def fifth_wave(a, o):
    if o["prio"]:
        a(f"s_setprio {o['prio']}")
    a(f"s_load_dwordx2 s[48:49], s[0:1], {KA['out']}\ns_load_dwordx8 s[80:87], s[0:1], {KA['lar']}\ns_load_dwordx4 s[52:55], s[0:1], {KA['ldt']}")
    a(f"s_load_dwordx2 s[56:57], s[0:1], {KA['b1']}\ns_load_dwordx2 s[58:59], s[0:1], {KA['b2']}")
    a("s_waitcnt lgkmcnt(0)")
    flags_srd(a, 36)
    read_tag(a)
    if o["tlb"]:
        srd(a, 8, S_WS, WS_FLG + FLG_BYTES); srd(a, 16, S_W2, W_BYTES_TOTAL)
        a("v_lshlrev_b32 v4, 20, v1\nbuffer_load_dword v100, v4, s[8:11], 0 offen sc1\nbuffer_load_dword v101, v4, s[16:19], 0 offen")
        srd(a, 8, 48, X_BYTES); srd(a, 16, S_W1, W_BYTES_TOTAL)
        a("buffer_load_dword v102, v4, s[8:11], 0 offen")
        if o["tlb"] >= 2:
            a("buffer_load_dword v104, v4, s[16:19], 0 offen")
            small = [80, 82, 84, 86, 52, 54, 56, 58]
            for k, p in enumerate(small):
                if o["tlb"] == 3:
                    a(f"s_bfe_u32 s23, s2, 0x30003\ns_cmp_lg_u32 s23, {k}\ns_cbranch_scc1 L_m_tl{k}")
                if k < 6 or not o["bias_pf"]:
                    srd(a, 8, p, 4)
                    a(f"buffer_load_dword v{105+k}, v4, s[8:11], 0 offen")
                else:
                    srd(a, 8, p, F*2 if k == 6 else S*2)
                    a(f"v_lshlrev_b32 v5, 7, v1\nbuffer_load_dword v{105+k}, v5, s[8:11], 0 offen")
                    if k == 6:
                        a("s_mov_b32 s23, 8192\nbuffer_load_dword v113, v5, s[8:11], s23 offen")
                a(f"L_m_tl{k}:")
    if o["touch"]:
        a(f"s_cmp_ge_u32 s2, 1\ns_cbranch_scc1 L_m_notouch\nv_mul_u32_u24 v5, {o['lnw']}, v1\ns_mov_b32 s23, {F_LNW}\nbuffer_load_dword v103, v5, s[36:39], s23 offen\nL_m_notouch:")
    if o["touch_g"]:
        a(f"s_sub_u32 s23, s2, 1\ns_cmp_ge_u32 s23, 4\ns_cbranch_scc1 L_m_notouch2\nv_lshlrev_b32 v5, 8, v1\ns_lshl_b32 s23, s23, 14\ns_add_u32 s23, s23, {F_GW}")
        a("buffer_load_dword v103, v5, s[36:39], s23 offen\nL_m_notouch2:")
    srd(a, gc.SRD_W, S_W1, W_BYTES_TOTAL)
    if o["early_bar"]:
        a("s_barrier")
    a("s_lshr_b32 s30, s2, 3")
    if o["code_pf"]:
        a("s_getpc_b64 s[12:13]\nL_m_pc:\ns_sub_u32 s12, s12, L_m_pc-L_m_base\ns_subb_u32 s13, s13, 0")
        a("s_mov_b32 s14, L_m_last-L_m_base\ns_mov_b32 s15, 0x20000\nv_lshlrev_b32 v4, 4, v1\ns_lshl_b32 s23, s30, 10")
        a("buffer_load_dwordx4 v[96:99], v4, s[12:15], s23 offen\ns_add_u32 s23, s23, 32768\nbuffer_load_dwordx4 v[96:99], v4, s[12:15], s23 offen")
    w1_stream(a, "m0", gc.SRD_W, 30, 32, o["r0"], o["r1"], o["win1"])
    if o["extra23"]:
        a("s_and_b32 s23, s2, 6\ns_cmp_lg_u32 s23, 2\ns_cbranch_scc1 L_m_nox23")
        w1_stream(a, "m23", gc.SRD_W, 30, 32, 2048 - o["extra23"], 2048, o["win1"])
        a("L_m_nox23:")
    a("s_waitcnt lgkmcnt(0)")
    make_tag(a)
    if not o["early_bar"]:
        a("s_barrier")
    a("; STAMP 0\ns_cmp_ge_u32 s2, 216\ns_cbranch_scc1 L_m_helper")
    tile1(a)
    gc.lane_ids(a)
    a(f"s_mul_i32 s{gc.S_ACT0}, s15, 12288\ns_lshl_b32 s{gc.S_W0}, s14, 8")
    gc.loader_setup(a, 0, 9216, "A")
    srd_off(a, gc.SRD_ACT, S_WS, WS_HT, HT_BYTES)
    ln_local_wait(a, "lw1")
    a("; STAMP 0")
    gc.w_prefill(a, range(4), 0, 9216)
    a("; STAMP 1")
    wait_ln(a, "l1", 36, o)
    a(f"; STAMP 2\ns_cmp_lg_u32 s2, 0\ns_cbranch_scc1 L_m_noseed\nv_mov_b32 v4, s{S_TAG+1}\nv_mov_b32 v5, {F_SEED}\ns_mov_b64 exec, 1")
    a("buffer_store_dword v4, v5, s[36:39], 0 offen sc1\ns_mov_b64 exec, -1\nL_m_noseed:")
    gc.loader_after_prefill(a, 32*o["rep1"], 0, 9216, "g1", o["aflags"], tail=lambda a: None, wrap=(2048*9216, 32*73728) if o["rep1"] == 2 else None)
    srd(a, gc.SRD_W, S_W2, W_BYTES_TOTAL)
    a("s_cmp_lt_u32 s2, 192\ns_cbranch_scc1 L_m_l2")
    a("s_waitcnt vmcnt(28)\ns_barrier\ns_waitcnt vmcnt(0)\ns_barrier\ns_barrier\ns_sub_u32 s30, s2, 152\ns_lshr_b32 s30, s30, 3")
    ln_local_wait(a, "lw3", CNT_LDS+8)
    if o["x_pf"] == "early":
        srd(a, 8, S_X, X_BYTES); a("s_sub_u32 s31, s30, 5\ns_mul_i32 s31, s31, 3")
        for k in range(3):
            if k == 2:
                a("s_cmp_eq_u32 s31, 8\ns_cbranch_scc1 L_m_nox")
            x_stream(a, f"xe{k}", 8, 31)
            a("s_add_u32 s31, s31, 1")
        a("L_m_nox:")
    g_pause(a, "gp3", o)
    w2_stream(a, "m3", gc.SRD_W, 30, 8, o["r2"] + 96*o["nC"], 2304, o["win3"])
    if o["x_pf"] is True:
        srd(a, 8, S_X, X_BYTES); x_stream(a, "x3", 8, 30)
    a("s_endpgm\nL_m_l2:")
    tile2(a)
    a(f"s_mul_i32 s57, s15, 12288\ns_mul_i32 s18, s19, {36*73728}\ns_add_u32 s57, s57, s18")
    a(f"s_lshl_b32 s56, s14, 8\ns_mul_i32 s18, s19, {HALF2}\ns_add_u32 s56, s56, s18\ns_mov_b32 s54, -1\ns_mov_b32 s55, -1")
    jump = block_jump if o["rot"] else None
    if o["rot"]:
        a.extend(block_jump("w") + block_jump("a"))
    else:
        a(f"s_mov_b32 s{gc.S_W0}, s56\ns_mov_b32 s{gc.S_ACT0}, s57")
    gc.loader_setup(a, 0, 4096, "B")
    srd_off(a, gc.SRD_ACT, S_WS, WS_G, G_BYTES)
    e2 = o["early2"]
    for j, vm in enumerate((28, 0, None)):
        if j < e2:
            gc.w_prefill(a, [j], 0, 4096, jump)
        if vm is not None:
            a(f"s_waitcnt vmcnt({vm + 16*min(j+1, e2)})")
        a("s_barrier")
    a("; STAMP 5")
    gc.w_prefill(a, range(min(e2, 3), 4), 0, 4096, jump)
    a("v_mov_b32 v61, 0\n; STAMP 3")

    def wait_slot(a):
        a(f"s_mul_i32 s23, s15, 36\ns_mul_i32 s24, s19, 18\ns_add_u32 s23, s23, s24\ns_lshl_b32 s23, s23, 8\ns_add_u32 s23, s23, {F_GW}")
        a("v_and_b32 v60, 3, v1\nv_add_u32 v60, s13, v60\nv_lshlrev_b32 v60, 8, v60")
        poll(a, "l2a", 36, 60, "s23", f"s{S_TAG+1}")
        a("; STAMP 4\nv_min_u32 v60, 17, v1\nv_lshlrev_b32 v60, 8, v60\ns_mov_b32 s53, s23")

    def wait_half(a):
        poll(a, "l2b", 36, 60, "s53", f"s{S_TAG+1}")

    def at_dma(a):
        for e in range(12):
            a(f"s_mov_b32 m0, {AT_LDS + 1024*e}\nbuffer_load_dwordx4 v8, s[48:51], s26 offen sc1 lds\ns_add_u32 s26, s26, 32768")

    def at_early(a):
        srd_off(a, 48, S_WS, WS_AT, AT_BYTES)
        a(f"s_lshl_b32 s23, s15, 8\ns_add_u32 s23, s23, {F_CONV}\nbuffer_load_dword v62, v61, s[36:39], s23 offen sc1")
        a("v_lshrrev_b32 v8, 3, v1\nv_lshlrev_b32 v8, 12, v8\nv_and_b32 v9, 7, v1\nv_lshl_add_u32 v8, v9, 4, v8")
        a(f"s_mul_i32 s26, s15, {96*4096}\ns_lshl_b32 s27, s16, 1\ns_add_u32 s26, s26, s27")
        a("s_cmp_eq_u32 s15, 5\ns_cselect_b32 s24, 96, 32\ns_waitcnt vmcnt(0)\nv_readfirstlane_b32 s27, v62")
        a("s_cmp_lg_u32 s27, s24\ns_cbranch_scc1 L_at_skip")
        at_dma(a)
        a("L_at_skip:")
    if o["rot"]:
        gc.loader_after_prefill(a, 36, 0, 4096, "g2", o["aflags"], before_last=at_early, jump=block_jump, wait2=wait_slot, wait8=wait_half)
    else:
        ln_local_wait(a, "lw4", CNT_LDS+8)
        a(f"s_mul_i32 s53, s15, 36\ns_mul_i32 s24, s19, 18\ns_add_u32 s53, s53, s24\ns_lshl_b32 s53, s53, 8\ns_add_u32 s53, s53, {F_GW}")
        a("v_min_u32 v60, 17, v1\nv_lshlrev_b32 v60, 8, v60")
        wait_half(a)
        a("; STAMP 4")
        gc.loader_after_prefill(a, 36*o["rep2"], 0, 4096, "g2", o["aflags"], before_last=at_early, wrap=(HALF2, 36*73728) if o["rep2"] == 2 else None)
    a("s_cmp_eq_u32 s27, s24\ns_cbranch_scc1 L_at_done")
    poll(a, "at", 36, 61, "s23", "s24")
    at_dma(a)
    a("L_at_done:\ns_waitcnt vmcnt(0)\ns_barrier\ns_endpgm")
    a("L_m_helper:\ns_sub_u32 s30, s2, 216\ns_lshr_b32 s30, s30, 3")
    ln_local_wait(a, "lw2")
    w1_stream(a, "m1", gc.SRD_W, 30, 5, o["r1"] + 108*o["nB"]//5*4, 2048, o["win2"], short23=o["extra23"])
    a("; STAMP 1")
    srd(a, gc.SRD_W, S_W2, W_BYTES_TOTAL)
    if o["rot"]:
        w2_head(a, "mh", gc.SRD_W, 30, 5, o["win2"])
    w2_stream(a, "m2", gc.SRD_W, 30, 5, 512 if o["rot"] else o["r20"], o["r2"], o["win2"])
    a("; STAMP 2")
    g_pause(a, "gp4", o)
    w2_stream(a, "m4", gc.SRD_W, 30, 8, o["r2"] + 96*o["nC"], 2304, o["win3"])
    if o["x_pf"] is True:
        srd(a, 8, S_X, X_BYTES); x_stream(a, "x4", 8, 30)


def mega(a, name, **opt):
    o = dict(bias_pf=True, touch_g=True, xwait=True, early_bar=False, extra23=0, r0=0, r20=0, rep1=1, rep2=1, uflags='', rot=False, x_pf=True, ln_lines=False, x_late='tail', late_sig=False, pause=0, xbf=True, rnd1=0, rnd2=0, prio=0, lnw=256, slp=1, touch=True, tlb=3, early2=3, xnt='', ont='', prefill_late=True, r1=384, nB=2, r2=400, nC=0, win1=20, win2=40, win3=40, aflags=" sc1", code_pf=9)
    o.update(opt)
    prefetch.ROT = o["rot"]
    cv.UFLAGS = o["uflags"]
    a(f".globl {name}\n.p2align 8\n.type {name},@function\n{name}:\nL_m_base:")
    a("s_cmp_ge_u32 s2, 256\ns_cbranch_scc1 L_m_end")
    a(f"s_load_dwordx2 s[{S_X}:{S_X+1}], s[0:1], {KA['x']}\ns_load_dwordx2 s[{S_WS}:{S_WS+1}], s[0:1], {KA['ws']}")
    a(f"s_load_dwordx2 s[{S_W1}:{S_W1+1}], s[0:1], {KA['w1']}\ns_load_dwordx2 s[{S_W2}:{S_W2+1}], s[0:1], {KA['w2']}")
    a("v_lshrrev_b32 v1, 6, v0\nv_readfirstlane_b32 s20, v1\nv_and_b32 v1, 63, v0")
    a("s_cmp_eq_u32 s20, 4\ns_cbranch_scc1 L_m_w4")
    compute_waves(a, o)
    a("L_m_w4:")
    fifth_wave(a, o)
    a("L_m_end:\ns_endpgm\nL_m_last:")


def warm_kernel(a, name, rows, w2rows, main, window=63):
    a(f".globl {name}\n.p2align 8\n.type {name},@function\n{name}:")
    a("s_cmp_ge_u32 s2, 256\ns_cbranch_scc1 L_pre_end")
    if rows >= 0:
        a(f"s_load_dwordx2 s[4:5], s[0:1], {KA['ws']}\ns_load_dwordx2 s[6:7], s[0:1], {KA['x']}\ns_load_dwordx2 s[20:21], s[0:1], {KA['w1']}")
        a(f"s_load_dwordx2 s[22:23], s[0:1], {KA['w2']}\ns_load_dwordx2 s[24:25], s[0:1], {KA['out']}")
        a("v_and_b32 v1, 63, v0\ns_lshr_b32 s30, s2, 3\nv_lshlrev_b32 v4, 20, v1\ns_waitcnt lgkmcnt(0)")
        srd(a, 8, 4, WS_FLG + FLG_BYTES); srd(a, 12, 6, X_BYTES); srd(a, 16, 22, W_BYTES_TOTAL); srd(a, 32, 20, W_BYTES_TOTAL); srd(a, 48, 24, X_BYTES)
        for k, rs in enumerate((8, 12, 16, 48)):
            a(f"buffer_load_dword v{100+k}, v4, s[{rs}:{rs+3}], 0 offen sc1")
        a(f"s_getpc_b64 s[12:13]\nL_pre_pc:\ns_sub_u32 s12, s12, L_pre_pc-L_m_base\ns_subb_u32 s13, s13, 0")
        a("s_mov_b32 s14, L_m_last-L_m_base\ns_mov_b32 s15, 0x20000\nv_lshlrev_b32 v4, 4, v1\ns_lshl_b32 s23, s30, 10")
        a("buffer_load_dwordx4 v[96:99], v4, s[12:15], s23 offen\ns_add_u32 s23, s23, 32768\nbuffer_load_dwordx4 v[96:99], v4, s[12:15], s23 offen")
        w1_stream(a, "pre", 32, 30, 32, 0, rows, window)
        w2_stream(a, "pre", 16, 30, 32, 0, w2rows, window)
    a("L_pre_end:\ns_endpgm")
```

```python
NAME = "parallel_sum__ssm_conv_s4d__mixer_token_mlp__prompt"
S, D, F, NST = 2048, 576, 4608, 128
KA = dict(x=0, lar=8, aim=16, cre=24, cim=32, ldt=40, dsk=48, w1=64, b1=72, w2=80, b2=88, out=96, dbg=104, ws=112)
X_BYTES = S * D * 2
W_BYTES_TOTAL = S * F * 2
WS_HT, HT_BYTES = 0x000000, 0x240000
WS_XNT, XNT_BYTES = 0x240000, 0x240000
WS_G, G_BYTES = 0x480000, 0x510000
WS_AT, AT_BYTES = 0x990000, 0x240000
WS_KC, KC_BYTES = 0xBD0000, 0x480000
WS_XCH, XCH_BYTES = 0xBD0000, 0x600000
WS_FLG, FLG_BYTES = 0x14D0000, 0x40000
import os
if os.environ.get('WS_PACK', '1') == '1':
    WS_FLG = 0x000000
    WS_HT = 0x040000
    WS_XNT = 0x280000
    WS_G = 0x4C0000
    WS_AT = 0x9D0000
    WS_XCH, XCH_BYTES = 0xC10000, 0x300000
WS_END = max(WS_XCH + XCH_BYTES, WS_FLG + FLG_BYTES)
_b = int(os.environ.get('WS_BASE', '0'), 0)
WS_HT += _b; WS_XNT += _b; WS_G += _b; WS_AT += _b; WS_KC += _b; WS_XCH += _b; WS_FLG += _b
LOG2E = 0x3FB8AA3B
FLG_CONV = 200 * 128
F_LN, F_G, F_CONV, F_XCH = 0, 16 * 256, 28 * 256, 40 * 256
F_LNW = 0x10000
F_GL = 40 * 256
F_GW = 0x20000
F_XNW = 0x30000
F_REL = 100 * 256
```

```python
import struct
from asmlib import *
from layout import *
import gemm_core as gc
import mega_ln as ln
import mega_conv as cv
from prefetch import *
import prefetch

AT_LDS = gc.LDS_RING
LN_LDS = 139264
CNT_LDS = LN_LDS + 2*ln.LN_T
LDS_TOTAL = CNT_LDS + 64
S_WS, S_X, S_DBG, S_W1, S_W2 = 4, 6, 94, 96, 98
SPIN = 0x100000
S_TAG = 100
F_SEED = 255 * 256


def f32hex(x):
    return "0x%08x" % struct.unpack("<I", struct.pack("<f", x))[0]


def div6(a, d, r, x):
    a(f"s_mul_i32 s{d}, s{x}, 10923\ns_lshr_b32 s{d}, s{d}, 16\ns_mul_i32 s{r}, s{d}, 6\ns_sub_u32 s{r}, s{x}, s{r}")


def unpk(a, x, p):
    a(f"v_lshlrev_b32 v{x}, 16, v{p}\nv_and_b32 v{x+1}, 0xffff0000, v{p}")


def poll(a, tag, rs, vaddr, soff, target, sleep=1, mask=None):
    a(f"s_mov_b32 s61, {SPIN:#x}\nL_{tag}_poll:\nbuffer_load_dword v62, v{vaddr}, s[{rs}:{rs+3}], {soff} offen sc1")
    a(f"s_sub_u32 s61, s61, 1\ns_cbranch_scc1 L_{tag}_go\ns_waitcnt vmcnt(0)")
    if mask:
        a(f"v_and_b32 v62, {mask:#x}, v62")
    a(f"v_cmp_ne_u32 vcc, {target}, v62")
    a(f"s_cmp_eq_u64 vcc, 0\ns_cbranch_scc1 L_{tag}_go")
    if sleep:
        a(f"s_sleep {sleep}")
    a(f"s_branch L_{tag}_poll\nL_{tag}_go:")


def flags_srd(a, d):
    srd_off(a, d, S_WS, WS_FLG, FLG_BYTES)


def last_wave_signals(a, tag, cnt, rs, soff, word=None, second=None):
    a(f"v_mov_b32 v58, {cnt}\nv_mov_b32 v59, 1\nv_mov_b32 v61, 0\ns_mov_b64 exec, 1\nds_add_rtn_u32 v60, v58, v59\ns_waitcnt lgkmcnt(0)")
    a(f"v_readfirstlane_b32 s23, v60\ns_cmp_lg_u32 s23, 3\ns_cbranch_scc1 L_{tag}_notlast")
    if word:
        a(f"v_mov_b32 v59, {word}\nbuffer_store_dword v59, v61, s[{rs}:{rs+3}], {soff} offen sc1")
    else:
        if second:
            a(f"buffer_atomic_add v59, v61, s[{rs}:{rs+3}], {second} offen sc1")
        a(f"buffer_atomic_add v59, v61, s[{rs}:{rs+3}], {soff} offen sc1")
    a(f"L_{tag}_notlast:\ns_mov_b64 exec, -1")


def ln_local_wait(a, tag, cnt=CNT_LDS+4):
    a(f"v_mov_b32 v58, {cnt}\nL_{tag}:\ns_sleep 2\nds_read_b32 v60, v58\ns_waitcnt lgkmcnt(0)\nv_readfirstlane_b32 s23, v60\ns_cmp_lt_u32 s23, 4\ns_cbranch_scc1 L_{tag}")


def g_pause(a, tag, o):
    if not o["pause"]:
        return
    a(f"s_lshr_b32 s23, s2, 3\ns_mul_i32 s24, s23, 43\ns_lshr_b32 s24, s24, 9\ns_mul_i32 s24, s24, 12\ns_sub_u32 s23, s23, s24\ns_lshl_b32 s23, s23, 8\ns_add_u32 s23, s23, {F_G}")
    a(f"v_mov_b32 v61, 0\ns_mov_b32 s61, {SPIN:#x}\nL_{tag}_poll:\nbuffer_load_dword v62, v61, s[36:39], s23 offen sc1\ns_sub_u32 s61, s61, 1\ns_cbranch_scc1 L_{tag}_go")
    a(f"s_waitcnt vmcnt(0)\nv_readfirstlane_b32 s24, v62\ns_cmp_ge_u32 s24, {o['pause']}\ns_cbranch_scc1 L_{tag}_go\ns_sleep 8\ns_branch L_{tag}_poll\nL_{tag}_go:")


def wait_ln(a, tag, rs, o):
    a(f"v_mul_u32_u24 v61, {o['lnw']}, v1\ns_mov_b32 s61, {SPIN:#x}\nL_{tag}_poll:")
    if o["ln_lines"]:
        for k in range(4):
            a(f"s_mov_b32 s62, {F_LNW + k*64*o['lnw']}\nbuffer_load_dword v{180+k}, v61, s[{rs}:{rs+3}], s62 offen sc1")
    else:
        a(f"s_mov_b32 s62, {F_LNW}\nbuffer_load_dwordx4 v[180:183], v61, s[{rs}:{rs+3}], s62 offen sc1")
    a(f"s_sub_u32 s61, s61, 1\ns_cbranch_scc1 L_{tag}_go\ns_waitcnt vmcnt(0)")
    a(f"v_xor_b32 v180, s{S_TAG+1}, v180\nv_xor_b32 v181, s{S_TAG+1}, v181\nv_xor_b32 v182, s{S_TAG+1}, v182\nv_xor_b32 v183, s{S_TAG+1}, v183")
    a("v_or3_b32 v180, v180, v181, v182\nv_or_b32 v180, v180, v183\nv_cmp_ne_u32 vcc, 0, v180")
    a(f"s_cmp_eq_u64 vcc, 0\ns_cbranch_scc1 L_{tag}_go\ns_sleep {o['slp']}\ns_branch L_{tag}_poll\nL_{tag}_go:")


def tile1(a):
    a("s_and_b32 s12, s2, 7\ns_lshr_b32 s13, s2, 3\ns_and_b32 s14, s12, 1\ns_mul_i32 s14, s14, 3\ns_add_u32 s13, s13, s14")
    a("s_cmp_ge_u32 s13, 27\ns_cselect_b32 s14, 27, 0\ns_sub_u32 s13, s13, s14\ns_mul_i32 s12, s12, 27\ns_add_u32 s12, s12, s13")
    div6(a, 14, 15, 12)


def tile2(a):
    a("s_lshr_b32 s13, s2, 3")
    div6(a, 12, 15, 13)
    a("s_bfe_u32 s19, s2, 0x10002\ns_and_b32 s13, s2, 3\ns_lshl_b32 s14, s13, 2\ns_add_u32 s14, s14, s12")
    a("s_mul_i32 s13, s13, 9\ns_add_u32 s13, s13, 1\ns_lshr_b32 s13, s13, 1")
    a("s_lshl_b32 s16, s14, 7\ns_lshl_b32 s17, s19, 6\ns_add_u32 s16, s16, s17")


def block_jump(kind):
    cnt, base, dst, step = (54, 56, gc.S_W0, 128*4096) if kind == "w" else (55, 57, gc.S_ACT0, 2*73728)
    return [f"s_add_u32 s{cnt}, s{cnt}, 1", f"s_add_u32 s18, s{cnt}, s12", "s_and_b32 s18, s18, 3", f"s_cmp_lt_u32 s{cnt}, 4",
            f"s_cselect_b32 s18, s18, s{cnt}", "s_add_u32 s18, s18, s13", "s_cmp_ge_u32 s18, 18", "s_cselect_b32 s17, 18, 0",
            "s_sub_u32 s18, s18, s17", f"s_mul_i32 s18, s18, {step}", f"s_add_u32 s{dst}, s18, s{base}"]


def gelu_epilogue(a, rounds, rot):
    c1 = -2.0 * 0.7978845608028654 * 1.4426950408889634
    a(f"s_mov_b32 s48, {f32hex(c1*0.044715)}\ns_mov_b32 s49, s48\nv_mov_b32 v36, {f32hex(c1)}\nv_mov_b32 v37, v36")
    for nu in range(4):
        unpk(a, 20+4*nu, 12+2*nu); unpk(a, 22+4*nu, 13+2*nu)
    a(f"s_lshr_b32 s26, s20, 1\ns_mul_i32 s26, s26, {gc.SLOT}\ns_and_b32 s27, s20, 1\ns_mul_i32 s27, s27, 6144\ns_add_u32 s26, s26, s27\ns_add_u32 s26, s26, {gc.W_BYTES}\nv_add_u32 v38, s26, v7")
    B = 112
    for dl in range(3):
        for pi in range(2):
            src = [(gc.acc(2*pi + (k >> 1), dl) + 2*(k & 1), 20 + 4*(2*pi + (k >> 1)) + 2*(k & 1)) for k in range(4)]
            U = [B + 2*k for k in range(4)]; T = [B + 8 + 2*k for k in range(4)]; P = [B + 16 + k for k in range(4)]
            O = B + 20 + 4*((2*dl + pi) % 2)
            if rounds == 2:
                for k in range(4): a(f"v_cvt_pk_bf16_f32 v{P[k]}, v{src[k][0]}, v{src[k][0]+1}")
                for k in range(4): unpk(a, U[k], P[k])
                for k in range(4): a(f"v_pk_add_f32 {vr(U[k],2)}, {vr(U[k],2)}, {vr(src[k][1],2)}")
            else:
                for k in range(4): a(f"v_pk_add_f32 {vr(U[k],2)}, {vr(src[k][0],2)}, {vr(src[k][1],2)}")
            if rounds >= 1:
                for k in range(4): a(f"v_cvt_pk_bf16_f32 v{P[k]}, v{U[k]}, v{U[k]+1}")
                for k in range(4): unpk(a, U[k], P[k])
            for k in range(4): a(f"v_pk_mul_f32 {vr(T[k],2)}, {vr(U[k],2)}, {vr(U[k],2)}")
            for k in range(4): a(f"v_pk_fma_f32 {vr(T[k],2)}, {vr(T[k],2)}, s[48:49], v[36:37]")
            for k in range(4): a(f"v_pk_mul_f32 {vr(T[k],2)}, {vr(T[k],2)}, {vr(U[k],2)}")
            for k in range(4): a(f"v_exp_f32 v{T[k]}, v{T[k]}\nv_exp_f32 v{T[k]+1}, v{T[k]+1}")
            for k in range(4): a(f"v_pk_add_f32 {vr(T[k],2)}, {vr(T[k],2)}, 1.0 op_sel_hi:[1,0]")
            for k in range(4): a(f"v_rcp_f32 v{T[k]}, v{T[k]}\nv_rcp_f32 v{T[k]+1}, v{T[k]+1}")
            for k in range(4): a(f"v_pk_mul_f32 {vr(U[k],2)}, {vr(U[k],2)}, {vr(T[k],2)}")
            for k in range(4): a(f"v_cvt_pk_bf16_f32 v{O+k}, v{U[k]}, v{U[k]+1}")
            a(f"buffer_store_dwordx4 {vr(O,4)}, v7, s[44:47], s17 offen offset:{1024*pi} sc1")
            if rot:
                a(f"ds_write_b128 v38, {vr(O,4)} offset:{(2*dl + pi)*1024}")
        a("s_add_u32 s17, s17, 2048")


def read_tag(a):
    a(f"s_add_u32 s26, s{S_WS}, {WS_FLG + F_SEED:#x}\ns_addc_u32 s27, s{S_WS+1}, 0\ns_load_dword s{S_TAG+1}, s[26:27], 0")


def make_tag(a):
    a(f"s_mul_i32 s{S_TAG+1}, s{S_TAG+1}, 0x9e3779b1\ns_add_u32 s{S_TAG+1}, s{S_TAG+1}, 0x7f4a7c15\ns_andn2_b32 s{S_TAG}, s{S_TAG+1}, 0xff")


def compute_waves(a, o):
    a("s_waitcnt lgkmcnt(0)")
    ln.ln_issue(a, S_X, o['lnx'], 80 if o['dry'] else 10)
    read_tag(a)
    a(f"s_cmp_lg_u32 s20, 0\ns_cbranch_scc1 L_m_nz\nv_mov_b32 v58, {CNT_LDS}\nv_mov_b32 v60, 0\nv_mov_b32 v61, 0\nv_mov_b32 v62, 0\nv_mov_b32 v63, 0")
    a("ds_write_b128 v58, v[60:63]\nL_m_nz:")
    if o["early_bar"]:
        a("s_waitcnt lgkmcnt(0)\ns_barrier")
    a(f"s_load_dwordx2 s[38:39], s[0:1], {KA['b1']}\ns_load_dwordx8 s[76:83], s[0:1], {KA['lar']}".replace("s[76:83]", "s[80:87]"))
    ln.ln_body(a, S_WS, LN_LDS, CNT_LDS, "ln", not o["early_bar"], o["dry"])
    flags_srd(a, 40)
    make_tag(a)
    a("v_mov_b32 v61, 0\ns_cmp_lg_u32 s20, 3\ns_cbranch_scc1 L_m_nozero\ns_sub_u32 s23, s2, 28\ns_cmp_ge_u32 s23, 6\ns_cbranch_scc1 L_m_nozero")
    a("s_lshl_b32 s23, s2, 8\ns_mov_b64 exec, 1\nbuffer_store_dword v61, v61, s[40:43], s23 offen sc1\ns_mov_b64 exec, -1\nL_m_nozero:")
    if o["ln_lines"]:
        a(f"s_mul_i32 s24, s2, {o['lnw']}\ns_add_u32 s24, s24, {F_LNW}")
    else:
        a(f"s_and_b32 s24, s2, 63\ns_mul_i32 s24, s24, {o['lnw']}\ns_lshr_b32 s23, s2, 6\ns_lshl_b32 s23, s23, 2\ns_add_u32 s24, s24, s23\ns_add_u32 s24, s24, {F_LNW}")
    a("s_waitcnt vmcnt(0)\n; STAMP 1")
    last_wave_signals(a, "lnd", CNT_LDS + 4, 40, "s24", word=f"s{S_TAG+1}")
    a("s_cmp_ge_u32 s2, 216\ns_cbranch_scc1 L_m_conv")
    a("s_lshr_b32 s29, s2, 3\ns_lshl_b32 s29, s29, 2\ns_add_u32 s29, s29, s20")
    srd(a, 32, S_W1, W_BYTES_TOTAL)
    w1_burst(a, 32, 29, 108, o["r1"]//4*5, o["nB"])
    srd(a, 32, S_W2, W_BYTES_TOTAL)
    tile1(a)
    gc.lane_ids(a)
    gc.compute_setup(a, "A")
    srd(a, 8, 38, F*2)
    a(f"s_lshr_b32 s16, s20, 1\ns_lshl_b32 s17, s16, 7\ns_lshl_b32 s18, s14, 8\ns_add_u32 s17, s17, s18\nv_lshlrev_b32 v9, 3, v3")
    a("s_mov_b32 s22, s17")

    def b1_loads(a):
        for nu in range(4):
            a(f"buffer_load_dwordx2 {vr(12+2*nu,2)}, v9, s[8:11], s22 offen offset:{32*nu}")
    if not o["b1_late"]:
        b1_loads(a)
    for i in range(48):
        a(f"v_mov_b32 v{gc.V_ACC+i}, 0")
    srd_off(a, 44, S_WS, WS_G, G_BYTES)
    a("s_and_b32 s17, s20, 1\ns_mul_i32 s17, s17, 3\ns_mul_i32 s18, s15, 6\ns_add_u32 s17, s17, s18\ns_lshl_b32 s17, s17, 11")
    a("s_lshl_b32 s18, s14, 1\ns_add_u32 s18, s18, s16\ns_mul_i32 s18, s18, 73728\ns_add_u32 s17, s17, s18")
    a(f"s_mul_i32 s24, s15, 36\ns_add_u32 s24, s24, s14\ns_lshl_b32 s24, s24, 8\ns_add_u32 s24, s24, {F_GW}")
    a(f"s_load_dwordx4 s[52:55], s[0:1], {KA['b2']}")
    gc.compute_main(a, 32*o["rep1"], "A", False, "g1", last_barrier=True, st=(5, 2), tail_hook=b1_loads if o["b1_late"] else None)
    if o["rep1"] == 2:
        for i in range(48):
            a(f"v_mul_f32 v{gc.V_ACC+i}, 0.5, v{gc.V_ACC+i}")
    a("s_waitcnt vmcnt(0)")
    gelu_epilogue(a, o['rnd1'], o['rot'])
    a("s_cmp_lt_u32 s2, 192\ns_cbranch_scc1 L_m_g2\ns_waitcnt vmcnt(0)")
    last_wave_signals(a, "gd", CNT_LDS + 8, 40, "s24", word=f"s{S_TAG+1}")
    a("; STAMP 3\ns_branch L_m_conv1\nL_m_g2:")
    tile2(a)
    gc.compute_setup(a, "B", s_kh=19)
    srd(a, 32, S_X, X_BYTES); srd(a, 28, 52, S*2)
    a("s_lshr_b32 s17, s20, 1\ns_lshl_b32 s17, s17, 5\ns_add_u32 s17, s17, s16")
    a("s_mul_i32 s18, s15, 96\ns_and_b32 s26, s20, 1\ns_mul_i32 s26, s26, 48\ns_add_u32 s18, s18, s26")
    a("v_mul_u32_u24 v58, 1152, v2\nv_lshl_add_u32 v58, v3, 3, v58\nv_lshlrev_b32 v9, 1, v2")
    a("s_mul_i32 s56, s17, 1152\ns_lshl_b32 s26, s18, 1\ns_add_u32 s56, s56, s26\ns_add_u32 s57, s56, 18432\ns_lshl_b32 s26, s17, 1")
    a("s_mov_b32 s22, s26\nv_mov_b32 v39, v58")
    for i in range(48):
        a(f"v_mov_b32 v{gc.V_ACC+i}, 0")
    a("v_bfe_u32 v4, v1, 2, 2\nv_lshl_add_u32 v4, v3, 2, v4\nv_lshlrev_b32 v4, 7, v4\nv_and_b32 v5, 3, v1\nv_lshl_add_u32 v4, v5, 3, v4")
    a(f"s_and_b32 s26, s20, 1\ns_mul_i32 s26, s26, 6144\ns_lshr_b32 s27, s20, 1\ns_lshl_b32 s27, s27, 6\ns_add_u32 s26, s26, s27\ns_add_u32 s26, s26, {AT_LDS}\nv_add_u32 v59, s26, v4")
    a("v_mov_b32 v31, v59")
    a("s_xor_b32 s58, s2, 4\ns_lshl_b32 s26, s20, 12\ns_lshl_b32 s59, s58, 14\ns_add_u32 s59, s59, s26\ns_lshl_b32 s60, s2, 14\ns_add_u32 s60, s60, s26")
    assert o["xbf"]

    def x_loads(a):
        for nu in range(2):
            for dl in range(3):
                a(f"buffer_load_dwordx2 {vr(10+2*(3*nu+dl),2)}, v39, s[32:35], s{56+nu} offen offset:{32*dl}{o['xnt']}")
            a(f"buffer_load_ushort v{22+nu}, v9, s[28:31], s22 offen offset:{32*nu}")

    def publish_g(a):
        a("s_waitcnt vmcnt(0)")
        last_wave_signals(a, "gd2", CNT_LDS + 8, 40, "s24", word=f"s{S_TAG+1}")
        a("; STAMP 3\n; SWAIT")
        if not o["x_late"]:
            x_loads(a)

    if o["late_sig"]:
        gc.compute_main(a, 36, "B", True, "g2", st=(5, 4), first_stage1=publish_g)
    else:
        publish_g(a)
        gc.compute_main(a, 36*o["rep2"], "B", True, "g2", st=(5, 4), tail_hook=x_loads if o["x_late"] == "tail" else None)
        if o["rep2"] == 2:
            for i in range(48):
                a(f"v_mul_f32 v{gc.V_ACC+i}, 0.5, v{gc.V_ACC+i}")
    srd_off(a, 8, S_WS, WS_XCH, XCH_BYTES); srd(a, 44, 54, X_BYTES)
    a("v_mov_b32 v58, v39\nv_mov_b32 v59, v31")
    a("; STAMP 5")
    SN = 172
    NG = 4 if o["xbf"] else 8
    for k in range(NG):
        for m in range(3):
            if o["xbf"]:
                a(f"v_cvt_pk_bf16_f32 v{SN+4*k+m}, v{gc.V_ACC+24+6*k+2*m}, v{gc.V_ACC+25+6*k+2*m}")
            else:
                a(f"v_mov_b32 v{SN+4*k+m}, v{gc.V_ACC+24+3*k+m}")
        a(f"v_mov_b32 v{SN+4*k+3}, s{S_TAG+1}")
        a(f"buffer_store_dwordx4 {vr(SN+4*k,4)}, v7, s[8:11], s59 offen sc1\ns_add_u32 s59, s59, 1024")
    if o["x_late"] is True:
        x_loads(a)
    a("s_barrier")
    AR, PF = 112, 124
    for nu in range(2):
        for dl in range(3):
            a(f"ds_read_b64_tr_b16 {vr(AR+2*(3*nu+dl),2)}, v59 offset:{2048*dl + 32*nu}")
    a(f"s_waitcnt vmcnt({0 if o['x_late'] is True else NG})\nv_lshlrev_b32 v22, 16, v22\nv_lshlrev_b32 v24, 16, v23\ns_waitcnt lgkmcnt(0)")
    for t in range(6):
        for h in range(2):
            unpk(a, 26, 10+2*t+h); unpk(a, 28, AR+2*t+h)
            if o["rnd2"]:
                a("v_pk_add_f32 v[26:27], v[26:27], v[28:29]\nv_cvt_pk_bf16_f32 v30, v26, v27")
                unpk(a, PF+4*t+2*h, 30)
            else:
                b = gc.V_ACC + 4*t + 2*h
                a(f"v_pk_add_f32 v[26:27], v[26:27], v[28:29]\nv_pk_add_f32 {vr(b,2)}, {vr(b,2)}, {vr(22+2*(t//3),2)} op_sel_hi:[1,0]")
                a(f"v_pk_add_f32 {vr(b,2)}, {vr(b,2)}, v[26:27]")
    RX = 204
    if o["xwait"]:
        a("s_waitcnt vmcnt(0)")
    a(f"s_mov_b32 s61, {SPIN:#x}\ns_add_u32 s62, s60, 4096\nL_xch_poll:")
    for k in range(NG):
        a(f"buffer_load_dwordx4 {vr(RX+4*k,4)}, v7, s[8:11], s{60 + 2*(k >> 2)} offen offset:{1024*(k & 3)} sc1")
    a(f"s_sub_u32 s61, s61, 1\ns_cbranch_scc1 L_xch_go\ns_waitcnt vmcnt(0)\nv_xor_b32 v4, s{S_TAG+1}, v{RX+3}")
    for k in range(1, NG):
        a(f"v_xor_b32 v5, s{S_TAG+1}, v{RX+4*k+3}\nv_or_b32 v4, v4, v5")
    a("v_cmp_ne_u32 vcc, 0, v4\ns_cmp_eq_u64 vcc, 0\ns_cbranch_scc0 L_xch_poll\nL_xch_go:")
    for t in range(6):
        nu, dl = divmod(t, 3)
        b, p = gc.V_ACC + 4*t, PF + 4*t
        if o["xbf"]:
            for h in range(2):
                k, m = divmod(2*t + h, 3)
                unpk(a, 26+2*h, RX+4*k+m)
            for h in range(2): a(f"v_pk_add_f32 {vr(b+2*h,2)}, {vr(b+2*h,2)}, {vr(26+2*h,2)}")
        else:
            for e in range(4):
                k, m = divmod(4*t + e, 3)
                a(f"v_add_f32 v{b+e}, v{b+e}, v{RX+4*k+m}")
        if o['rnd2']:
            for h in range(2): a(f"v_cvt_pk_bf16_f32 v{26+h}, v{b+2*h}, v{b+2*h+1}")
            for h in range(2): unpk(a, b+2*h, 26+h)
            for h in range(2): a(f"v_pk_add_f32 {vr(b+2*h,2)}, {vr(b+2*h,2)}, {vr(22+2*nu,2)} op_sel_hi:[1,0]")
            for h in range(2): a(f"v_cvt_pk_bf16_f32 v{26+h}, v{b+2*h}, v{b+2*h+1}")
            for h in range(2): unpk(a, b+2*h, 26+h)
            for h in range(2): a(f"v_pk_add_f32 {vr(b+2*h,2)}, {vr(b+2*h,2)}, {vr(p+2*h,2)}")
        for h in range(2): a(f"v_cvt_pk_bf16_f32 v{10+2*t+h}, v{b+2*h}, v{b+2*h+1}")
        a(f"buffer_store_dwordx2 {vr(10+2*t,2)}, v58, s[44:47], s{56+nu} offen offset:{32*dl}{o['ont']}")
    a("s_endpgm")
    a("L_m_conv1:\ns_mov_b32 s30, 1\ns_sub_u32 s31, s2, 72\ns_lshl_b32 s31, s31, 2\ns_add_u32 s31, s31, s20\ns_branch L_m_conv2")
    a("L_m_conv:\ns_mov_b32 s30, 3\ns_sub_u32 s31, s2, 216\ns_lshl_b32 s31, s31, 2\ns_add_u32 s31, s31, s20\ns_mul_i32 s31, s31, 3\nL_m_conv2:")
    a("s_mul_i32 s29, s31, 683\ns_lshr_b32 s29, s29, 16")
    a(f"s_load_dwordx4 s[32:35], s[0:1], {KA['ldt']}\ns_waitcnt lgkmcnt(0)")
    cv.param_loads(a, 80, 32, 34)

    def signal(a):
        a("s_lshl_b32 s36, s29, 8")
        a(f"s_add_u32 s36, s36, {F_CONV}\nv_mov_b32 v4, 1\nv_mov_b32 v5, 0\ns_mov_b64 exec, 1\nbuffer_atomic_add v4, v5, s[8:11], s36 offen sc1")
    flags_srd(a, 8)
    cv.conv_role(a, "cv", S_WS, lambda a: wait_ln(a, "cvln", 8, o), signal)
    a("s_endpgm")


def fifth_wave(a, o):
    if o["prio"]:
        a(f"s_setprio {o['prio']}")
    a(f"s_load_dwordx2 s[48:49], s[0:1], {KA['out']}\ns_load_dwordx8 s[80:87], s[0:1], {KA['lar']}\ns_load_dwordx4 s[52:55], s[0:1], {KA['ldt']}")
    a(f"s_load_dwordx2 s[56:57], s[0:1], {KA['b1']}\ns_load_dwordx2 s[58:59], s[0:1], {KA['b2']}")
    a("s_waitcnt lgkmcnt(0)")
    flags_srd(a, 36)
    read_tag(a)
    if o["tlb"]:
        srd(a, 8, S_WS, WS_END); srd(a, 16, S_W2, W_BYTES_TOTAL)
        a("v_lshlrev_b32 v4, 20, v1\nbuffer_load_dword v100, v4, s[8:11], 0 offen sc1\nbuffer_load_dword v101, v4, s[16:19], 0 offen")
        srd(a, 8, 48, X_BYTES); srd(a, 16, S_W1, W_BYTES_TOTAL)
        a("buffer_load_dword v102, v4, s[8:11], 0 offen")
        if o["tlb"] >= 2:
            a("buffer_load_dword v104, v4, s[16:19], 0 offen")
            small = [80, 82, 84, 86, 52, 54, 56, 58]
            for k, p in enumerate(small):
                if o["tlb"] == 3:
                    a(f"s_bfe_u32 s23, s2, 0x30003\ns_cmp_lg_u32 s23, {k}\ns_cbranch_scc1 L_m_tl{k}")
                if k < 6 or not o["bias_pf"]:
                    srd(a, 8, p, 4)
                    a(f"buffer_load_dword v{105+k}, v4, s[8:11], 0 offen")
                else:
                    srd(a, 8, p, F*2 if k == 6 else S*2)
                    a(f"v_lshlrev_b32 v5, 7, v1\nbuffer_load_dword v{105+k}, v5, s[8:11], 0 offen")
                    if k == 6:
                        a("s_mov_b32 s23, 8192\nbuffer_load_dword v113, v5, s[8:11], s23 offen")
                a(f"L_m_tl{k}:")
    if o["touch"]:
        a(f"s_cmp_ge_u32 s2, 1\ns_cbranch_scc1 L_m_notouch\nv_mul_u32_u24 v5, {o['lnw']}, v1\ns_mov_b32 s23, {F_LNW}\nbuffer_load_dword v103, v5, s[36:39], s23 offen\nL_m_notouch:")
    if o["touch_g"]:
        a(f"s_sub_u32 s23, s2, 1\ns_cmp_ge_u32 s23, 4\ns_cbranch_scc1 L_m_notouch2\nv_lshlrev_b32 v5, 8, v1\ns_lshl_b32 s23, s23, 14\ns_add_u32 s23, s23, {F_GW}")
        a("buffer_load_dword v103, v5, s[36:39], s23 offen\nL_m_notouch2:")
    srd(a, gc.SRD_W, S_W1, W_BYTES_TOTAL)
    if o["early_bar"]:
        a("s_barrier")
    a("s_lshr_b32 s30, s2, 3")
    if o["code_pf"]:
        a("s_getpc_b64 s[12:13]\nL_m_pc:\ns_sub_u32 s12, s12, L_m_pc-L_m_base\ns_subb_u32 s13, s13, 0")
        a("s_mov_b32 s14, L_m_last-L_m_base\ns_mov_b32 s15, 0x20000\nv_lshlrev_b32 v4, 4, v1\ns_lshl_b32 s23, s30, 10")
        a("buffer_load_dwordx4 v[96:99], v4, s[12:15], s23 offen\ns_add_u32 s23, s23, 32768\nbuffer_load_dwordx4 v[96:99], v4, s[12:15], s23 offen")
    w1_stream(a, "m0", gc.SRD_W, 30, 32, o["r0"], o["r1"], o["win1"])
    if o["extra23"]:
        a("s_and_b32 s23, s2, 6\ns_cmp_lg_u32 s23, 2\ns_cbranch_scc1 L_m_nox23")
        w1_stream(a, "m23", gc.SRD_W, 30, 32, 2048 - o["extra23"], 2048, o["win1"])
        a("L_m_nox23:")
    a("s_waitcnt lgkmcnt(0)")
    make_tag(a)
    if not o["early_bar"]:
        a("s_barrier")
    a("; STAMP 0\ns_cmp_ge_u32 s2, 216\ns_cbranch_scc1 L_m_helper")
    tile1(a)
    gc.lane_ids(a)
    a(f"s_mul_i32 s{gc.S_ACT0}, s15, 12288\ns_lshl_b32 s{gc.S_W0}, s14, 8")
    gc.loader_setup(a, 0, 9216, "A")
    srd_off(a, gc.SRD_ACT, S_WS, WS_HT, HT_BYTES)
    ln_local_wait(a, "lw1")
    a("; STAMP 0")
    gc.w_prefill(a, range(4), 0, 9216)
    a("; STAMP 1")
    wait_ln(a, "l1", 36, o)
    a(f"; STAMP 2\ns_cmp_lg_u32 s2, 0\ns_cbranch_scc1 L_m_noseed\nv_mov_b32 v4, s{S_TAG+1}\nv_mov_b32 v5, {F_SEED}\ns_mov_b64 exec, 1")
    a("buffer_store_dword v4, v5, s[36:39], 0 offen sc1\ns_mov_b64 exec, -1\nL_m_noseed:")
    gc.loader_after_prefill(a, 32*o["rep1"], 0, 9216, "g1", o["aflags"], tail=lambda a: None, wrap=(2048*9216, 32*73728) if o["rep1"] == 2 else None)
    srd(a, gc.SRD_W, S_W2, W_BYTES_TOTAL)
    a("s_cmp_lt_u32 s2, 192\ns_cbranch_scc1 L_m_l2")
    a("s_waitcnt vmcnt(28)\ns_barrier\ns_waitcnt vmcnt(0)\ns_barrier\ns_barrier\ns_sub_u32 s30, s2, 152\ns_lshr_b32 s30, s30, 3")
    ln_local_wait(a, "lw3", CNT_LDS+8)
    if o["x_pf"] == "early":
        srd(a, 8, S_X, X_BYTES); a("s_sub_u32 s31, s30, 5\ns_mul_i32 s31, s31, 3")
        for k in range(3):
            if k == 2:
                a("s_cmp_eq_u32 s31, 8\ns_cbranch_scc1 L_m_nox")
            x_stream(a, f"xe{k}", 8, 31)
            a("s_add_u32 s31, s31, 1")
        a("L_m_nox:")
    g_pause(a, "gp3", o)
    w2_stream(a, "m3", gc.SRD_W, 30, 8, o["r2"] + 96*o["nC"], 2304, o["win3"])
    if o["x_pf"] is True:
        srd(a, 8, S_X, X_BYTES); x_stream(a, "x3", 8, 30)
    a("s_endpgm\nL_m_l2:")
    tile2(a)
    a(f"s_mul_i32 s57, s15, 12288\ns_mul_i32 s18, s19, {36*73728}\ns_add_u32 s57, s57, s18")
    a(f"s_lshl_b32 s56, s14, 8\ns_mul_i32 s18, s19, {HALF2}\ns_add_u32 s56, s56, s18\ns_mov_b32 s54, -1\ns_mov_b32 s55, -1")
    jump = block_jump if o["rot"] else None
    if o["rot"]:
        a.extend(block_jump("w") + block_jump("a"))
    else:
        a(f"s_mov_b32 s{gc.S_W0}, s56\ns_mov_b32 s{gc.S_ACT0}, s57")
    gc.loader_setup(a, 0, 4096, "B")
    srd_off(a, gc.SRD_ACT, S_WS, WS_G, G_BYTES)
    e2 = o["early2"]
    for j, vm in enumerate((28, 0, None)):
        if j < e2:
            gc.w_prefill(a, [j], 0, 4096, jump)
        if vm is not None:
            a(f"s_waitcnt vmcnt({vm + 16*min(j+1, e2)})")
        a("s_barrier")
    a("; STAMP 5")
    gc.w_prefill(a, range(min(e2, 3), 4), 0, 4096, jump)
    a("v_mov_b32 v61, 0\n; STAMP 3")

    def wait_slot(a):
        a(f"s_mul_i32 s23, s15, 36\ns_mul_i32 s24, s19, 18\ns_add_u32 s23, s23, s24\ns_lshl_b32 s23, s23, 8\ns_add_u32 s23, s23, {F_GW}")
        a("v_and_b32 v60, 3, v1\nv_add_u32 v60, s13, v60\nv_lshlrev_b32 v60, 8, v60")
        poll(a, "l2a", 36, 60, "s23", f"s{S_TAG+1}")
        a("; STAMP 4\nv_min_u32 v60, 17, v1\nv_lshlrev_b32 v60, 8, v60\ns_mov_b32 s53, s23")

    def wait_half(a):
        poll(a, "l2b", 36, 60, "s53", f"s{S_TAG+1}")

    def at_dma(a):
        for e in range(12):
            a(f"s_mov_b32 m0, {AT_LDS + 1024*e}\nbuffer_load_dwordx4 v8, s[48:51], s26 offen sc1 lds\ns_add_u32 s26, s26, 32768")

    def at_early(a):
        srd_off(a, 48, S_WS, WS_AT, AT_BYTES)
        a(f"s_lshl_b32 s23, s15, 8\ns_add_u32 s23, s23, {F_CONV}\nbuffer_load_dword v62, v61, s[36:39], s23 offen sc1")
        a("v_lshrrev_b32 v8, 3, v1\nv_lshlrev_b32 v8, 12, v8\nv_and_b32 v9, 7, v1\nv_lshl_add_u32 v8, v9, 4, v8")
        a(f"s_mul_i32 s26, s15, {96*4096}\ns_lshl_b32 s27, s16, 1\ns_add_u32 s26, s26, s27")
        a("s_cmp_eq_u32 s15, 5\ns_cselect_b32 s24, 96, 32\ns_waitcnt vmcnt(0)\nv_readfirstlane_b32 s27, v62")
        a("s_cmp_lg_u32 s27, s24\ns_cbranch_scc1 L_at_skip")
        at_dma(a)
        a("L_at_skip:")
    if o["rot"]:
        gc.loader_after_prefill(a, 36, 0, 4096, "g2", o["aflags"], before_last=at_early, jump=block_jump, wait2=wait_slot, wait8=wait_half)
    else:
        ln_local_wait(a, "lw4", CNT_LDS+8)
        a(f"s_mul_i32 s53, s15, 36\ns_mul_i32 s24, s19, 18\ns_add_u32 s53, s53, s24\ns_lshl_b32 s53, s53, 8\ns_add_u32 s53, s53, {F_GW}")
        a("v_min_u32 v60, 17, v1\nv_lshlrev_b32 v60, 8, v60")
        wait_half(a)
        a("; STAMP 4")
        gc.loader_after_prefill(a, 36*o["rep2"], 0, 4096, "g2", o["aflags"], before_last=at_early, wrap=(HALF2, 36*73728) if o["rep2"] == 2 else None)
    a("s_cmp_eq_u32 s27, s24\ns_cbranch_scc1 L_at_done")
    poll(a, "at", 36, 61, "s23", "s24")
    at_dma(a)
    a("L_at_done:\ns_waitcnt vmcnt(0)\ns_barrier\ns_endpgm")
    a("L_m_helper:\ns_sub_u32 s30, s2, 216\ns_lshr_b32 s30, s30, 3")
    ln_local_wait(a, "lw2")
    if o["b1_late"]:
        srd(a, 8, 56, F*2); srd(a, 12, 58, S*2)
        a("v_lshlrev_b32 v5, 7, v1\ns_mov_b32 s23, 8192\nbuffer_load_dword v105, v5, s[8:11], 0 offen\nbuffer_load_dword v106, v5, s[8:11], s23 offen\nbuffer_load_dword v107, v5, s[12:15], 0 offen")
    w1_stream(a, "m1", gc.SRD_W, 30, 5, o["r1"] + 108*o["nB"]//5*4, 2048, o["win2"], short23=o["extra23"])
    a("; STAMP 1")
    srd(a, gc.SRD_W, S_W2, W_BYTES_TOTAL)
    if o["rot"]:
        w2_head(a, "mh", gc.SRD_W, 30, 5, o["win2"])
    w2_stream(a, "m2", gc.SRD_W, 30, 5, 512 if o["rot"] else o["r20"], o["r2"], o["win2"])
    a("; STAMP 2")
    g_pause(a, "gp4", o)
    w2_stream(a, "m4", gc.SRD_W, 30, 8, o["r2"] + 96*o["nC"], 2304, o["win3"])
    if o["x_pf"] is True:
        srd(a, 8, S_X, X_BYTES); x_stream(a, "x4", 8, 30)


def mega(a, name, **opt):
    o = dict(dry=False, b1_late=False, lnx=' nt', bias_pf=False, touch_g=True, xwait=True, early_bar=False, extra23=0, r0=0, r20=0, rep1=1, rep2=1, uflags='', rot=False, x_pf=True, ln_lines=False, x_late='tail', late_sig=False, pause=0, xbf=True, rnd1=0, rnd2=0, prio=0, lnw=256, slp=1, touch=True, tlb=3, early2=3, xnt='', ont='', prefill_late=True, r1=384, nB=2, r2=400, nC=0, win1=20, win2=40, win3=40, aflags=" sc1", code_pf=9)
    o.update(opt)
    prefetch.ROT = o["rot"]
    cv.UFLAGS = o["uflags"]
    a(f".globl {name}\n.p2align 8\n.type {name},@function\n{name}:\nL_m_base:")
    a("s_cmp_ge_u32 s2, 256\ns_cbranch_scc1 L_m_end")
    a(f"s_load_dwordx2 s[{S_X}:{S_X+1}], s[0:1], {KA['x']}\ns_load_dwordx2 s[{S_WS}:{S_WS+1}], s[0:1], {KA['ws']}")
    a(f"s_load_dwordx2 s[{S_W1}:{S_W1+1}], s[0:1], {KA['w1']}\ns_load_dwordx2 s[{S_W2}:{S_W2+1}], s[0:1], {KA['w2']}")
    a("v_lshrrev_b32 v1, 6, v0\nv_readfirstlane_b32 s20, v1\nv_and_b32 v1, 63, v0")
    a("s_cmp_eq_u32 s20, 4\ns_cbranch_scc1 L_m_w4")
    compute_waves(a, o)
    a("L_m_w4:")
    fifth_wave(a, o)
    a("L_m_end:\ns_endpgm\nL_m_last:")


def warm_kernel(a, name, rows, w2rows, main, window=63):
    a(f".globl {name}\n.p2align 8\n.type {name},@function\n{name}:")
    a("s_cmp_ge_u32 s2, 256\ns_cbranch_scc1 L_pre_end")
    if rows >= 0:
        a(f"s_load_dwordx2 s[4:5], s[0:1], {KA['ws']}\ns_load_dwordx2 s[6:7], s[0:1], {KA['x']}\ns_load_dwordx2 s[20:21], s[0:1], {KA['w1']}")
        a(f"s_load_dwordx2 s[22:23], s[0:1], {KA['w2']}\ns_load_dwordx2 s[24:25], s[0:1], {KA['out']}")
        a("v_and_b32 v1, 63, v0\ns_lshr_b32 s30, s2, 3\nv_lshlrev_b32 v4, 20, v1\ns_waitcnt lgkmcnt(0)")
        srd(a, 8, 4, WS_FLG + FLG_BYTES); srd(a, 12, 6, X_BYTES); srd(a, 16, 22, W_BYTES_TOTAL); srd(a, 32, 20, W_BYTES_TOTAL); srd(a, 48, 24, X_BYTES)
        for k, rs in enumerate((8, 12, 16, 48)):
            a(f"buffer_load_dword v{100+k}, v4, s[{rs}:{rs+3}], 0 offen sc1")
        a(f"s_getpc_b64 s[12:13]\nL_pre_pc:\ns_sub_u32 s12, s12, L_pre_pc-L_m_base\ns_subb_u32 s13, s13, 0")
        a("s_mov_b32 s14, L_m_last-L_m_base\ns_mov_b32 s15, 0x20000\nv_lshlrev_b32 v4, 4, v1\ns_lshl_b32 s23, s30, 10")
        a("buffer_load_dwordx4 v[96:99], v4, s[12:15], s23 offen\ns_add_u32 s23, s23, 32768\nbuffer_load_dwordx4 v[96:99], v4, s[12:15], s23 offen")
        w1_stream(a, "pre", 32, 30, 32, 0, rows, window)
        w2_stream(a, "pre", 16, 30, 32, 0, w2rows, window)
    a("L_pre_end:\ns_endpgm")
```

```python
from asmlib import *
from layout import *

PITCH = 1216
LN_T = 8 * PITCH
X = 20
T = 40


def half_sum(a, v, t):
    for c in ("row_ror:1", "row_ror:2", "row_ror:4", "row_ror:8"):
        a(f"v_add_f32_dpp v{v}, v{v}, v{v} {c} row_mask:0xf bank_mask:0xf")
    a(f"v_mov_b32 v{t}, v{v}\nv_permlane16_swap_b32 v{t}, v{v}\nv_add_f32 v{v}, v{v}, v{t}")


def unpack(a, p, x, n=9):
    for k in range(n):
        a(f"v_lshlrev_b32 v{x+2*k}, 16, v{p+k}\nv_and_b32 v{x+2*k+1}, 0xffff0000, v{p+k}")


def rnd(a, v):
    a(f"v_cvt_pk_bf16_f32 v{v}, v{v}, v{v}\nv_lshlrev_b32 v{v}, 16, v{v}")


def layernorm(a, p, one_pass=False):
    pr = lambda b: vr(b, 2)
    for k in range(4):
        a(f"v_pk_add_f32 {pr(T+2*k)}, {pr(X+4*k)}, {pr(X+4*k+2)}")
    a(f"v_pk_add_f32 {pr(T)}, {pr(T)}, {pr(T+2)}\nv_pk_add_f32 {pr(T+4)}, {pr(T+4)}, {pr(T+6)}")
    a(f"v_pk_add_f32 {pr(T)}, {pr(T)}, {pr(X+16)}\nv_pk_add_f32 {pr(T)}, {pr(T)}, {pr(T+4)}\nv_add_f32 v58, v{T}, v{T+1}")
    sub = [f"v_pk_add_f32 {pr(T+2*k)}, {pr(X+2*k)}, v[60:61] op_sel_hi:[1,0] neg_lo:[0,1] neg_hi:[0,1]" for k in range(9)]
    dpp = lambda v, c: a(f"v_add_f32_dpp v{v}, v{v}, v{v} {c} row_mask:0xf bank_mask:0xf")
    if one_pass:
        sq = [f"v_pk_mul_f32 v[74:75], {pr(X)}, {pr(X)}", f"v_pk_mul_f32 v[62:63], {pr(X+2)}, {pr(X+2)}"]
        for k in range(2, 9):
            d = "v[74:75]" if k % 2 == 0 else "v[62:63]"
            sq.append(f"v_pk_fma_f32 {d}, {pr(X+2*k)}, {pr(X+2*k)}, {d}")
        sq += ["v_pk_add_f32 v[74:75], v[74:75], v[62:63]", "v_add_f32 v74, v74, v75"]
        a.extend(sq[:2])
        for i, c in enumerate(("row_ror:1", "row_ror:2", "row_ror:4", "row_ror:8")):
            dpp(58, c); a.extend(sq[2+2*i:4+2*i])
        a("v_mov_b32 v59, v58")
        a.extend(sq[10:])
        a("s_nop 0\nv_permlane16_swap_b32 v59, v58")
        dpp(74, "row_ror:1")
        a("v_add_f32 v58, v58, v59\nv_mul_f32 v76, 0x3ae38e39, v58")
        dpp(74, "row_ror:2")
        a("v_cvt_pk_bf16_f32 v60, v76, v76\nv_lshlrev_b32 v60, 16, v60")
        dpp(74, "row_ror:4")
        a.extend(sub[:2])
        dpp(74, "row_ror:8")
        a("v_mov_b32 v75, v74")
        a.extend(sub[2:4])
        a("v_permlane16_swap_b32 v75, v74")
        a.extend(sub[4:])
        a("v_add_f32 v74, v74, v75\nv_mul_f32 v76, v76, v76\nv_mov_b32 v62, 0x3ae38e39\nv_fma_f32 v62, v74, v62, -v76\nv_max_f32 v62, 0, v62")
    else:
        half_sum(a, 58, 59)
        a("v_mul_f32 v60, 0x3ae38e39, v58")
        for k in range(9):
            a(f"v_pk_add_f32 {pr(T+2*k)}, {pr(X+2*k)}, v[60:61] op_sel_hi:[1,0] neg_lo:[0,1] neg_hi:[0,1]")
        a(f"v_pk_mul_f32 v[58:59], {pr(T)}, {pr(T)}\nv_pk_mul_f32 v[62:63], {pr(T+2)}, {pr(T+2)}")
        for k in range(2, 9):
            d = "v[58:59]" if k % 2 == 0 else "v[62:63]"
            a(f"v_pk_fma_f32 {d}, {pr(T+2*k)}, {pr(T+2*k)}, {d}")
        a("v_pk_add_f32 v[58:59], v[58:59], v[62:63]\nv_add_f32 v58, v58, v59")
        rnd(a, 60)
        a("v_add_f32_dpp v58, v58, v58 row_ror:1 row_mask:0xf bank_mask:0xf")
        for i, c in enumerate(("row_ror:2", "row_ror:4", "row_ror:8")):
            a.extend(sub[2*i:2*i+2])
            a(f"v_add_f32_dpp v58, v58, v58 {c} row_mask:0xf bank_mask:0xf")
        a("v_mov_b32 v59, v58")
        a.extend(sub[6:8])
        a("v_permlane16_swap_b32 v59, v58")
        a(sub[8])
        a("v_add_f32 v58, v58, v59\nv_mul_f32 v62, 0x3ae38e39, v58")
    cvt = [f"v_cvt_pk_bf16_f32 v{p+k}, v{T+2*k}, v{T+2*k+1}" for k in range(9)]
    rnd(a, 62)
    a("v_add_f32 v62, 0x3727c5ac, v62")
    rnd(a, 62)
    a("v_sqrt_f32 v62, v62")
    a.extend(cvt[:4])
    rnd(a, 62)
    a("v_rcp_f32 v62, v62")
    a.extend(cvt[4:])
    unpack(a, p, X)
    for k in range(9):
        a(f"v_pk_mul_f32 {pr(X+2*k)}, {pr(X+2*k)}, v[62:63] op_sel_hi:[1,0]")
    for k in range(9):
        a(f"v_cvt_pk_bf16_f32 v{p+k}, v{X+2*k}, v{X+2*k+1}")


def ln_issue(a, s_x, fl, dst=10):
    srd(a, 8, s_x, X_BYTES)
    a("s_lshl_b32 s22, s2, 2\ns_add_u32 s22, s22, s20\ns_mul_i32 s22, s22, 2304")
    a("v_lshrrev_b32 v4, 5, v1\nv_and_b32 v5, 31, v1\nv_mul_u32_u24 v6, 1152, v4\nv_lshl_add_u32 v2, v5, 4, v6\nv_lshl_add_u32 v3, v5, 2, v6")
    a(f"buffer_load_dwordx4 v[{dst}:{dst+3}], v2, s[8:11], s22 offen{fl}\nbuffer_load_dwordx4 v[{dst+4}:{dst+7}], v2, s[8:11], s22 offen offset:512{fl}")
    a(f"buffer_load_dword v{dst+8}, v3, s[8:11], s22 offen offset:1024{fl}")


def ln_body(a, s_ws, lds_base, lds_cnt, tag, barrier_meet=False, dry=False):
    srd_off(a, 12, s_ws, WS_HT, HT_BYTES)
    srd_off(a, 16, s_ws, WS_XNT, XNT_BYTES)
    a(f"s_mul_i32 s23, s20, {2*PITCH}\ns_add_u32 s23, s23, {lds_base}\nv_mul_u32_u24 v6, {PITCH}, v4\nv_add_u32 v6, s23, v6")
    a("v_lshl_add_u32 v2, v5, 4, v6\nv_lshl_add_u32 v3, v5, 2, v6")
    a("v_and_b32 v5, 15, v1\nv_lshrrev_b32 v6, 4, v1\nv_bfe_u32 v7, v1, 2, 2\nv_and_b32 v8, 3, v1")
    a(f"v_mul_u32_u24 v7, {PITCH}, v7\nv_lshl_add_u32 v7, v8, 3, v7\nv_lshl_add_u32 v7, v6, 5, v7")
    a(f"s_lshl_b32 s23, s20, 7\ns_add_u32 s23, s23, {lds_base}\nv_add_u32 v7, s23, v7")
    a("v_lshlrev_b32 v9, 16, v6\nv_lshl_add_u32 v9, v5, 4, v9")
    a("s_lshl_b32 s24, s20, 18\ns_lshl_b32 s23, s2, 8\ns_add_u32 s24, s24, s23")
    a("v_lshlrev_b32 v19, 11, v6\nv_lshl_add_u32 v19, v5, 4, v19")
    a("s_lshr_b32 s25, s2, 3\ns_mul_i32 s25, s25, 73728\ns_and_b32 s23, s2, 7\ns_lshl_b32 s23, s23, 8\ns_add_u32 s21, s25, s23\ns_lshl_b32 s23, s20, 13\ns_add_u32 s25, s21, s23")
    if dry:
        a(f"s_mov_b32 s23, 0\ns_branch L_{tag}_pass\nL_{tag}_real:\ns_waitcnt vmcnt(0)\n; STAMP 0")
        for k in range(9):
            a(f"v_mov_b32 v{10+k}, v{80+k}")
        a(f"L_{tag}_pass:")
    else:
        a("s_waitcnt vmcnt(0)\n; STAMP 0")
    unpack(a, 10, X)
    layernorm(a, 10)
    a("ds_write_b128 v2, v[10:13]\nds_write_b128 v2, v[14:17] offset:512\nds_write_b32 v3, v18 offset:1024")
    unpack(a, 10, X)
    layernorm(a, 64, one_pass=True)
    a(f"ds_write_b128 v2, v[64:67] offset:{LN_T}\nds_write_b128 v2, v[68:71] offset:{LN_T+512}\nds_write_b32 v3, v72 offset:{LN_T+1024}")
    if dry:
        a(f"s_add_u32 s23, s23, 1\ns_cmp_eq_u32 s23, 1\ns_cbranch_scc1 L_{tag}_real")
    a("; STAMP 2")
    if barrier_meet:
        a("s_waitcnt lgkmcnt(0)\ns_barrier")
    else:
        a(f"v_mov_b32 v58, {lds_cnt}\nv_mov_b32 v59, 1\ns_waitcnt lgkmcnt(0)\ns_mov_b64 exec, 1\nds_add_u32 v58, v59\ns_mov_b64 exec, -1")
        a(f"L_{tag}_meet:\nds_read_b32 v60, v58\ns_waitcnt lgkmcnt(0)\nv_readfirstlane_b32 s23, v60\ns_cmp_lt_u32 s23, 4\ns_cbranch_scc1 L_{tag}_meet")
    for k in range(2):
        for t in (1, 0):
            b = 24 + 8*k + 4*t
            a(f"ds_read_b64_tr_b16 {vr(b,2)}, v7 offset:{t*LN_T + 512*k}\nds_read_b64_tr_b16 {vr(b+2,2)}, v7 offset:{t*LN_T + 512*k + 4*PITCH}")
    a(f"s_cmp_ge_u32 s20, 2\ns_cbranch_scc1 L_{tag}_no8")
    a(f"s_mul_i32 s23, s20, {LN_T+128}\ns_sub_u32 s23, {LN_T+1024}, s23\nv_add_u32 v8, s23, v7")
    a(f"ds_read_b64_tr_b16 v[40:41], v8\nds_read_b64_tr_b16 v[42:43], v8 offset:{4*PITCH}")
    a(f"s_lshl_b32 s23, s2, 8\ns_add_u32 s23, s23, {8 << 18}\ns_cmp_eq_u32 s20, 0\ns_waitcnt lgkmcnt(0)\ns_cbranch_scc1 L_{tag}_h8")
    a(f"buffer_store_dwordx4 v[40:43], v9, s[16:19], s23 offen sc1\ns_branch L_{tag}_no8\nL_{tag}_h8:")
    a(f"s_add_u32 s23, s21, {8 << 13}\nbuffer_store_dwordx4 v[40:43], v19, s[12:15], s23 offen sc1\nL_{tag}_no8:\ns_waitcnt lgkmcnt(0)")
    for k in range(2):
        a(f"buffer_store_dwordx4 {vr(28+8*k,4)}, v19, s[12:15], s25 offen sc1\nbuffer_store_dwordx4 {vr(24+8*k,4)}, v9, s[16:19], s24 offen sc1")
        if k == 0:
            a(f"s_add_u32 s24, s24, {4 << 18}\ns_add_u32 s25, s25, {4 << 13}")
```

```python
import struct
from asmlib import *
from layout import *
import gemm_core as gc
import mega_ln as ln
import mega_conv as cv
from prefetch import *
import prefetch

AT_LDS = gc.LDS_RING
LN_LDS = 139264
CNT_LDS = LN_LDS + 2*ln.LN_T
LDS_TOTAL = CNT_LDS + 64
S_WS, S_X, S_DBG, S_W1, S_W2 = 4, 6, 94, 96, 98
SPIN = 0x100000
S_TAG = 100
F_SEED = 255 * 256


def f32hex(x):
    return "0x%08x" % struct.unpack("<I", struct.pack("<f", x))[0]


def div6(a, d, r, x):
    a(f"s_mul_i32 s{d}, s{x}, 10923\ns_lshr_b32 s{d}, s{d}, 16\ns_mul_i32 s{r}, s{d}, 6\ns_sub_u32 s{r}, s{x}, s{r}")


def unpk(a, x, p):
    a(f"v_lshlrev_b32 v{x}, 16, v{p}\nv_and_b32 v{x+1}, 0xffff0000, v{p}")


def poll(a, tag, rs, vaddr, soff, target, sleep=1, mask=None):
    a(f"s_mov_b32 s61, {SPIN:#x}\nL_{tag}_poll:\nbuffer_load_dword v62, v{vaddr}, s[{rs}:{rs+3}], {soff} offen sc1")
    a(f"s_sub_u32 s61, s61, 1\ns_cbranch_scc1 L_{tag}_go\ns_waitcnt vmcnt(0)")
    if mask:
        a(f"v_and_b32 v62, {mask:#x}, v62")
    a(f"v_cmp_ne_u32 vcc, {target}, v62")
    a(f"s_cmp_eq_u64 vcc, 0\ns_cbranch_scc1 L_{tag}_go")
    if sleep:
        a(f"s_sleep {sleep}")
    a(f"s_branch L_{tag}_poll\nL_{tag}_go:")


def flags_srd(a, d):
    srd_off(a, d, S_WS, WS_FLG, FLG_BYTES)


def last_wave_signals(a, tag, cnt, rs, soff, word=None, second=None):
    a(f"v_mov_b32 v58, {cnt}\nv_mov_b32 v59, 1\nv_mov_b32 v61, 0\ns_mov_b64 exec, 1\nds_add_rtn_u32 v60, v58, v59\ns_waitcnt lgkmcnt(0)")
    a(f"v_readfirstlane_b32 s23, v60\ns_cmp_lg_u32 s23, 3\ns_cbranch_scc1 L_{tag}_notlast")
    if word:
        a(f"v_mov_b32 v59, {word}\nbuffer_store_dword v59, v61, s[{rs}:{rs+3}], {soff} offen sc1")
    else:
        if second:
            a(f"buffer_atomic_add v59, v61, s[{rs}:{rs+3}], {second} offen sc1")
        a(f"buffer_atomic_add v59, v61, s[{rs}:{rs+3}], {soff} offen sc1")
    a(f"L_{tag}_notlast:\ns_mov_b64 exec, -1")


def ln_local_wait(a, tag, cnt=CNT_LDS+4):
    a(f"v_mov_b32 v58, {cnt}\nL_{tag}:\ns_sleep 2\nds_read_b32 v60, v58\ns_waitcnt lgkmcnt(0)\nv_readfirstlane_b32 s23, v60\ns_cmp_lt_u32 s23, 4\ns_cbranch_scc1 L_{tag}")


def g_pause(a, tag, o):
    if not o["pause"]:
        return
    a(f"s_lshr_b32 s23, s2, 3\ns_mul_i32 s24, s23, 43\ns_lshr_b32 s24, s24, 9\ns_mul_i32 s24, s24, 12\ns_sub_u32 s23, s23, s24\ns_lshl_b32 s23, s23, 8\ns_add_u32 s23, s23, {F_G}")
    a(f"v_mov_b32 v61, 0\ns_mov_b32 s61, {SPIN:#x}\nL_{tag}_poll:\nbuffer_load_dword v62, v61, s[36:39], s23 offen sc1\ns_sub_u32 s61, s61, 1\ns_cbranch_scc1 L_{tag}_go")
    a(f"s_waitcnt vmcnt(0)\nv_readfirstlane_b32 s24, v62\ns_cmp_ge_u32 s24, {o['pause']}\ns_cbranch_scc1 L_{tag}_go\ns_sleep 8\ns_branch L_{tag}_poll\nL_{tag}_go:")


def wait_ln(a, tag, rs, o):
    a(f"v_mul_u32_u24 v61, {o['lnw']}, v1\ns_mov_b32 s61, {SPIN:#x}\nL_{tag}_poll:")
    if o["ln_lines"]:
        for k in range(4):
            a(f"s_mov_b32 s62, {F_LNW + k*64*o['lnw']}\nbuffer_load_dword v{180+k}, v61, s[{rs}:{rs+3}], s62 offen sc1")
    else:
        a(f"s_mov_b32 s62, {F_LNW}\nbuffer_load_dwordx4 v[180:183], v61, s[{rs}:{rs+3}], s62 offen sc1")
    a(f"s_sub_u32 s61, s61, 1\ns_cbranch_scc1 L_{tag}_go\ns_waitcnt vmcnt(0)")
    a(f"v_xor_b32 v180, s{S_TAG+1}, v180\nv_xor_b32 v181, s{S_TAG+1}, v181\nv_xor_b32 v182, s{S_TAG+1}, v182\nv_xor_b32 v183, s{S_TAG+1}, v183")
    a("v_or3_b32 v180, v180, v181, v182\nv_or_b32 v180, v180, v183\nv_cmp_ne_u32 vcc, 0, v180")
    a(f"s_cmp_eq_u64 vcc, 0\ns_cbranch_scc1 L_{tag}_go\ns_sleep {o['slp']}\ns_branch L_{tag}_poll\nL_{tag}_go:")


def tile1(a):
    a("s_and_b32 s12, s2, 7\ns_lshr_b32 s13, s2, 3\ns_and_b32 s14, s12, 1\ns_mul_i32 s14, s14, 3\ns_add_u32 s13, s13, s14")
    a("s_cmp_ge_u32 s13, 27\ns_cselect_b32 s14, 27, 0\ns_sub_u32 s13, s13, s14\ns_mul_i32 s12, s12, 27\ns_add_u32 s12, s12, s13")
    div6(a, 14, 15, 12)


def tile2(a):
    a("s_lshr_b32 s13, s2, 3")
    div6(a, 12, 15, 13)
    a("s_bfe_u32 s19, s2, 0x10002\ns_and_b32 s13, s2, 3\ns_lshl_b32 s14, s13, 2\ns_add_u32 s14, s14, s12")
    a("s_mul_i32 s13, s13, 9\ns_add_u32 s13, s13, 1\ns_lshr_b32 s13, s13, 1")
    a("s_lshl_b32 s16, s14, 7\ns_lshl_b32 s17, s19, 6\ns_add_u32 s16, s16, s17")


def block_jump(kind):
    cnt, base, dst, step = (54, 56, gc.S_W0, 128*4096) if kind == "w" else (55, 57, gc.S_ACT0, 2*73728)
    return [f"s_add_u32 s{cnt}, s{cnt}, 1", f"s_add_u32 s18, s{cnt}, s12", "s_and_b32 s18, s18, 3", f"s_cmp_lt_u32 s{cnt}, 4",
            f"s_cselect_b32 s18, s18, s{cnt}", "s_add_u32 s18, s18, s13", "s_cmp_ge_u32 s18, 18", "s_cselect_b32 s17, 18, 0",
            "s_sub_u32 s18, s18, s17", f"s_mul_i32 s18, s18, {step}", f"s_add_u32 s{dst}, s18, s{base}"]


def gelu_epilogue(a, rounds, rot):
    c1 = -2.0 * 0.7978845608028654 * 1.4426950408889634
    a(f"s_mov_b32 s48, {f32hex(c1*0.044715)}\ns_mov_b32 s49, s48\nv_mov_b32 v36, {f32hex(c1)}\nv_mov_b32 v37, v36")
    for nu in range(4):
        unpk(a, 20+4*nu, 12+2*nu); unpk(a, 22+4*nu, 13+2*nu)
    a(f"s_lshr_b32 s26, s20, 1\ns_mul_i32 s26, s26, {gc.SLOT}\ns_and_b32 s27, s20, 1\ns_mul_i32 s27, s27, 6144\ns_add_u32 s26, s26, s27\ns_add_u32 s26, s26, {gc.W_BYTES}\nv_add_u32 v38, s26, v7")
    B = 112
    for dl in range(3):
        for pi in range(2):
            src = [(gc.acc(2*pi + (k >> 1), dl) + 2*(k & 1), 20 + 4*(2*pi + (k >> 1)) + 2*(k & 1)) for k in range(4)]
            U = [B + 2*k for k in range(4)]; T = [B + 8 + 2*k for k in range(4)]; P = [B + 16 + k for k in range(4)]
            O = B + 20 + 4*((2*dl + pi) % 2)
            if rounds == 2:
                for k in range(4): a(f"v_cvt_pk_bf16_f32 v{P[k]}, v{src[k][0]}, v{src[k][0]+1}")
                for k in range(4): unpk(a, U[k], P[k])
                for k in range(4): a(f"v_pk_add_f32 {vr(U[k],2)}, {vr(U[k],2)}, {vr(src[k][1],2)}")
            else:
                for k in range(4): a(f"v_pk_add_f32 {vr(U[k],2)}, {vr(src[k][0],2)}, {vr(src[k][1],2)}")
            if rounds >= 1:
                for k in range(4): a(f"v_cvt_pk_bf16_f32 v{P[k]}, v{U[k]}, v{U[k]+1}")
                for k in range(4): unpk(a, U[k], P[k])
            for k in range(4): a(f"v_pk_mul_f32 {vr(T[k],2)}, {vr(U[k],2)}, {vr(U[k],2)}")
            for k in range(4): a(f"v_pk_fma_f32 {vr(T[k],2)}, {vr(T[k],2)}, s[48:49], v[36:37]")
            for k in range(4): a(f"v_pk_mul_f32 {vr(T[k],2)}, {vr(T[k],2)}, {vr(U[k],2)}")
            for k in range(4): a(f"v_exp_f32 v{T[k]}, v{T[k]}\nv_exp_f32 v{T[k]+1}, v{T[k]+1}")
            for k in range(4): a(f"v_pk_add_f32 {vr(T[k],2)}, {vr(T[k],2)}, 1.0 op_sel_hi:[1,0]")
            for k in range(4): a(f"v_rcp_f32 v{T[k]}, v{T[k]}\nv_rcp_f32 v{T[k]+1}, v{T[k]+1}")
            for k in range(4): a(f"v_pk_mul_f32 {vr(U[k],2)}, {vr(U[k],2)}, {vr(T[k],2)}")
            for k in range(4): a(f"v_cvt_pk_bf16_f32 v{O+k}, v{U[k]}, v{U[k]+1}")
            a(f"buffer_store_dwordx4 {vr(O,4)}, v7, s[44:47], s17 offen offset:{1024*pi} sc1")
            if rot:
                a(f"ds_write_b128 v38, {vr(O,4)} offset:{(2*dl + pi)*1024}")
        a("s_add_u32 s17, s17, 2048")


def read_tag(a):
    a(f"s_add_u32 s26, s{S_WS}, {WS_FLG + F_SEED:#x}\ns_addc_u32 s27, s{S_WS+1}, 0\ns_load_dword s{S_TAG+1}, s[26:27], 0")


def make_tag(a):
    a(f"s_mul_i32 s{S_TAG+1}, s{S_TAG+1}, 0x9e3779b1\ns_add_u32 s{S_TAG+1}, s{S_TAG+1}, 0x7f4a7c15\ns_andn2_b32 s{S_TAG}, s{S_TAG+1}, 0xff")


def compute_waves(a, o):
    a("s_waitcnt lgkmcnt(0)")
    ln.ln_issue(a, S_X, o['lnx'], 80 if o['dry'] else 10)
    read_tag(a)
    a(f"s_cmp_lg_u32 s20, 0\ns_cbranch_scc1 L_m_nz\nv_mov_b32 v58, {CNT_LDS}\nv_mov_b32 v60, 0\nv_mov_b32 v61, 0\nv_mov_b32 v62, 0\nv_mov_b32 v63, 0")
    a("ds_write_b128 v58, v[60:63]\nL_m_nz:")
    if o["early_bar"]:
        a("s_waitcnt lgkmcnt(0)\ns_barrier")
    a(f"s_load_dwordx2 s[38:39], s[0:1], {KA['b1']}\ns_load_dwordx8 s[76:83], s[0:1], {KA['lar']}".replace("s[76:83]", "s[80:87]"))
    ln.ln_body(a, S_WS, LN_LDS, CNT_LDS, "ln", not o["early_bar"], o["dry"])
    flags_srd(a, 40)
    make_tag(a)
    a("v_mov_b32 v61, 0\ns_cmp_lg_u32 s20, 3\ns_cbranch_scc1 L_m_nozero\ns_sub_u32 s23, s2, 28\ns_cmp_ge_u32 s23, 6\ns_cbranch_scc1 L_m_nozero")
    a("s_lshl_b32 s23, s2, 8\ns_mov_b64 exec, 1\nbuffer_store_dword v61, v61, s[40:43], s23 offen sc1\ns_mov_b64 exec, -1\nL_m_nozero:")
    if o["ln_lines"]:
        a(f"s_mul_i32 s24, s2, {o['lnw']}\ns_add_u32 s24, s24, {F_LNW}")
    else:
        a(f"s_and_b32 s24, s2, 63\ns_mul_i32 s24, s24, {o['lnw']}\ns_lshr_b32 s23, s2, 6\ns_lshl_b32 s23, s23, 2\ns_add_u32 s24, s24, s23\ns_add_u32 s24, s24, {F_LNW}")
    a("s_waitcnt vmcnt(0)\n; STAMP 1")
    last_wave_signals(a, "lnd", CNT_LDS + 4, 40, "s24", word=f"s{S_TAG+1}")
    a("s_cmp_ge_u32 s2, 216\ns_cbranch_scc1 L_m_conv")
    a("s_lshr_b32 s29, s2, 3\ns_lshl_b32 s29, s29, 2\ns_add_u32 s29, s29, s20")
    srd(a, 32, S_W1, W_BYTES_TOTAL)
    w1_burst(a, 32, 29, 108, o["r1"]//4*5, o["nB"])
    srd(a, 32, S_W2, W_BYTES_TOTAL)
    tile1(a)
    gc.lane_ids(a)
    gc.compute_setup(a, "A")
    srd(a, 8, 38, F*2)
    a(f"s_lshr_b32 s16, s20, 1\ns_lshl_b32 s17, s16, 7\ns_lshl_b32 s18, s14, 8\ns_add_u32 s17, s17, s18\nv_lshlrev_b32 v9, 3, v3")
    a("s_mov_b32 s22, s17")

    def b1_loads(a):
        for nu in range(4):
            a(f"buffer_load_dwordx2 {vr(12+2*nu,2)}, v9, s[8:11], s22 offen offset:{32*nu}")
    if not o["b1_late"]:
        b1_loads(a)
    for i in range(48):
        a(f"v_mov_b32 v{gc.V_ACC+i}, 0")
    srd_off(a, 44, S_WS, WS_G, G_BYTES)
    a("s_and_b32 s17, s20, 1\ns_mul_i32 s17, s17, 3\ns_mul_i32 s18, s15, 6\ns_add_u32 s17, s17, s18\ns_lshl_b32 s17, s17, 11")
    a("s_lshl_b32 s18, s14, 1\ns_add_u32 s18, s18, s16\ns_mul_i32 s18, s18, 73728\ns_add_u32 s17, s17, s18")
    a(f"s_mul_i32 s24, s15, 36\ns_add_u32 s24, s24, s14\ns_lshl_b32 s24, s24, 8\ns_add_u32 s24, s24, {F_GW}")
    a(f"s_load_dwordx4 s[52:55], s[0:1], {KA['b2']}")
    gc.compute_main(a, 32*o["rep1"], "A", False, "g1", last_barrier=True, st=(5, 2), tail_hook=b1_loads if o["b1_late"] else None)
    if o["rep1"] == 2:
        for i in range(48):
            a(f"v_mul_f32 v{gc.V_ACC+i}, 0.5, v{gc.V_ACC+i}")
    a("s_waitcnt vmcnt(0)")
    gelu_epilogue(a, o['rnd1'], o['rot'])
    a("s_cmp_lt_u32 s2, 192\ns_cbranch_scc1 L_m_g2\ns_waitcnt vmcnt(0)")
    last_wave_signals(a, "gd", CNT_LDS + 8, 40, "s24", word=f"s{S_TAG+1}")
    a("; STAMP 3\ns_branch L_m_conv1\nL_m_g2:")
    tile2(a)
    gc.compute_setup(a, "B", s_kh=19)
    srd(a, 32, S_X, X_BYTES); srd(a, 28, 52, S*2)
    a("s_lshr_b32 s17, s20, 1\ns_lshl_b32 s17, s17, 5\ns_add_u32 s17, s17, s16")
    a("s_mul_i32 s18, s15, 96\ns_and_b32 s26, s20, 1\ns_mul_i32 s26, s26, 48\ns_add_u32 s18, s18, s26")
    a("v_mul_u32_u24 v58, 1152, v2\nv_lshl_add_u32 v58, v3, 3, v58\nv_lshlrev_b32 v9, 1, v2")
    a("s_mul_i32 s56, s17, 1152\ns_lshl_b32 s26, s18, 1\ns_add_u32 s56, s56, s26\ns_add_u32 s57, s56, 18432\ns_lshl_b32 s26, s17, 1")
    a("s_mov_b32 s22, s26\nv_mov_b32 v39, v58")
    for i in range(48):
        a(f"v_mov_b32 v{gc.V_ACC+i}, 0")
    a("v_bfe_u32 v4, v1, 2, 2\nv_lshl_add_u32 v4, v3, 2, v4\nv_lshlrev_b32 v4, 7, v4\nv_and_b32 v5, 3, v1\nv_lshl_add_u32 v4, v5, 3, v4")
    a(f"s_and_b32 s26, s20, 1\ns_mul_i32 s26, s26, 6144\ns_lshr_b32 s27, s20, 1\ns_lshl_b32 s27, s27, 6\ns_add_u32 s26, s26, s27\ns_add_u32 s26, s26, {AT_LDS}\nv_add_u32 v59, s26, v4")
    a("v_mov_b32 v31, v59")
    a("s_xor_b32 s58, s2, 4\ns_lshl_b32 s26, s20, 12\ns_lshl_b32 s59, s58, 14\ns_add_u32 s59, s59, s26\ns_lshl_b32 s60, s2, 14\ns_add_u32 s60, s60, s26")
    assert o["xbf"]

    def x_loads(a):
        for nu in range(2):
            for dl in range(3):
                a(f"buffer_load_dwordx2 {vr(10+2*(3*nu+dl),2)}, v39, s[32:35], s{56+nu} offen offset:{32*dl}{o['xnt']}")
            a(f"buffer_load_ushort v{22+nu}, v9, s[28:31], s22 offen offset:{32*nu}")

    def publish_g(a):
        a("s_waitcnt vmcnt(0)")
        last_wave_signals(a, "gd2", CNT_LDS + 8, 40, "s24", word=f"s{S_TAG+1}")
        a("; STAMP 3\n; SWAIT")
        if not o["x_late"]:
            x_loads(a)

    if o["late_sig"]:
        gc.compute_main(a, 36, "B", True, "g2", st=(5, 4), first_stage1=publish_g)
    else:
        publish_g(a)
        gc.compute_main(a, 36*o["rep2"], "B", True, "g2", st=(5, 4), tail_hook=x_loads if o["x_late"] == "tail" else None)
        if o["rep2"] == 2:
            for i in range(48):
                a(f"v_mul_f32 v{gc.V_ACC+i}, 0.5, v{gc.V_ACC+i}")
    srd_off(a, 8, S_WS, WS_XCH, XCH_BYTES); srd(a, 44, 54, X_BYTES)
    a("v_mov_b32 v58, v39\nv_mov_b32 v59, v31")
    a("; STAMP 5")
    SN = 172
    NG = 4 if o["xbf"] else 8
    for k in range(NG):
        for m in range(3):
            if o["xbf"]:
                a(f"v_cvt_pk_bf16_f32 v{SN+4*k+m}, v{gc.V_ACC+24+6*k+2*m}, v{gc.V_ACC+25+6*k+2*m}")
            else:
                a(f"v_mov_b32 v{SN+4*k+m}, v{gc.V_ACC+24+3*k+m}")
        a(f"v_mov_b32 v{SN+4*k+3}, s{S_TAG+1}")
        a(f"buffer_store_dwordx4 {vr(SN+4*k,4)}, v7, s[8:11], s59 offen sc1\ns_add_u32 s59, s59, 1024")
    if o["x_late"] is True:
        x_loads(a)
    a("s_barrier")
    AR, PF = 112, 124
    for nu in range(2):
        for dl in range(3):
            a(f"ds_read_b64_tr_b16 {vr(AR+2*(3*nu+dl),2)}, v59 offset:{2048*dl + 32*nu}")
    a(f"s_waitcnt vmcnt({0 if o['x_late'] is True else NG})\nv_lshlrev_b32 v22, 16, v22\nv_lshlrev_b32 v24, 16, v23\ns_waitcnt lgkmcnt(0)")
    for t in range(6):
        for h in range(2):
            unpk(a, 26, 10+2*t+h); unpk(a, 28, AR+2*t+h)
            if o["rnd2"]:
                a("v_pk_add_f32 v[26:27], v[26:27], v[28:29]\nv_cvt_pk_bf16_f32 v30, v26, v27")
                unpk(a, PF+4*t+2*h, 30)
            else:
                b = gc.V_ACC + 4*t + 2*h
                a(f"v_pk_add_f32 v[26:27], v[26:27], v[28:29]\nv_pk_add_f32 {vr(b,2)}, {vr(b,2)}, {vr(22+2*(t//3),2)} op_sel_hi:[1,0]")
                a(f"v_pk_add_f32 {vr(b,2)}, {vr(b,2)}, v[26:27]")
    RX = 204
    if o["xwait"]:
        a("s_waitcnt vmcnt(0)")
    a(f"s_mov_b32 s61, {SPIN:#x}\ns_add_u32 s62, s60, 4096\nL_xch_poll:")
    for k in range(NG):
        a(f"buffer_load_dwordx4 {vr(RX+4*k,4)}, v7, s[8:11], s{60 + 2*(k >> 2)} offen offset:{1024*(k & 3)} sc1")
    a(f"s_sub_u32 s61, s61, 1\ns_cbranch_scc1 L_xch_go\ns_waitcnt vmcnt(0)\nv_xor_b32 v4, s{S_TAG+1}, v{RX+3}")
    for k in range(1, NG):
        a(f"v_xor_b32 v5, s{S_TAG+1}, v{RX+4*k+3}\nv_or_b32 v4, v4, v5")
    a("v_cmp_ne_u32 vcc, 0, v4\ns_cmp_eq_u64 vcc, 0\ns_cbranch_scc0 L_xch_poll\nL_xch_go:")
    for t in range(6):
        nu, dl = divmod(t, 3)
        b, p = gc.V_ACC + 4*t, PF + 4*t
        if o["xbf"]:
            for h in range(2):
                k, m = divmod(2*t + h, 3)
                unpk(a, 26+2*h, RX+4*k+m)
            for h in range(2): a(f"v_pk_add_f32 {vr(b+2*h,2)}, {vr(b+2*h,2)}, {vr(26+2*h,2)}")
        else:
            for e in range(4):
                k, m = divmod(4*t + e, 3)
                a(f"v_add_f32 v{b+e}, v{b+e}, v{RX+4*k+m}")
        if o['rnd2']:
            for h in range(2): a(f"v_cvt_pk_bf16_f32 v{26+h}, v{b+2*h}, v{b+2*h+1}")
            for h in range(2): unpk(a, b+2*h, 26+h)
            for h in range(2): a(f"v_pk_add_f32 {vr(b+2*h,2)}, {vr(b+2*h,2)}, {vr(22+2*nu,2)} op_sel_hi:[1,0]")
            for h in range(2): a(f"v_cvt_pk_bf16_f32 v{26+h}, v{b+2*h}, v{b+2*h+1}")
            for h in range(2): unpk(a, b+2*h, 26+h)
            for h in range(2): a(f"v_pk_add_f32 {vr(b+2*h,2)}, {vr(b+2*h,2)}, {vr(p+2*h,2)}")
        for h in range(2): a(f"v_cvt_pk_bf16_f32 v{10+2*t+h}, v{b+2*h}, v{b+2*h+1}")
        a(f"buffer_store_dwordx2 {vr(10+2*t,2)}, v58, s[44:47], s{56+nu} offen offset:{32*dl}{o['ont']}")
    a("s_endpgm")
    a("L_m_conv1:\ns_mov_b32 s30, 1\ns_sub_u32 s31, s2, 72\ns_lshl_b32 s31, s31, 2\ns_add_u32 s31, s31, s20\ns_branch L_m_conv2")
    a("L_m_conv:\ns_mov_b32 s30, 3\ns_sub_u32 s31, s2, 216\ns_lshl_b32 s31, s31, 2\ns_add_u32 s31, s31, s20\ns_mul_i32 s31, s31, 3\nL_m_conv2:")
    a("s_mul_i32 s29, s31, 683\ns_lshr_b32 s29, s29, 16")
    a(f"s_load_dwordx4 s[32:35], s[0:1], {KA['ldt']}\ns_waitcnt lgkmcnt(0)")
    cv.param_loads(a, 80, 32, 34)

    def signal(a):
        a("s_lshl_b32 s36, s29, 8")
        a(f"s_add_u32 s36, s36, {F_CONV}\nv_mov_b32 v4, 1\nv_mov_b32 v5, 0\ns_mov_b64 exec, 1\nbuffer_atomic_add v4, v5, s[8:11], s36 offen sc1")
    flags_srd(a, 8)
    cv.conv_role(a, "cv", S_WS, lambda a: wait_ln(a, "cvln", 8, o), signal)
    a("s_endpgm")


def fifth_wave(a, o):
    if o["prio"]:
        a(f"s_setprio {o['prio']}")
    a(f"s_load_dwordx2 s[48:49], s[0:1], {KA['out']}\ns_load_dwordx8 s[80:87], s[0:1], {KA['lar']}\ns_load_dwordx4 s[52:55], s[0:1], {KA['ldt']}")
    a(f"s_load_dwordx2 s[56:57], s[0:1], {KA['b1']}\ns_load_dwordx2 s[58:59], s[0:1], {KA['b2']}")
    a("s_waitcnt lgkmcnt(0)")
    flags_srd(a, 36)
    read_tag(a)
    if o["tlb"] >= 4:
        srd(a, 8, S_WS, WS_G); srd(a, 16, S_W1, 5 << 20)
        a("v_lshlrev_b32 v4, 21, v1\nbuffer_load_dword v100, v4, s[8:11], 0 offen sc1\nbuffer_load_dword v104, v4, s[16:19], 0 offen")
        srd(a, 8, 56, 4)
        a("buffer_load_dword v105, v4, s[8:11], 0 offen")
    elif o["tlb"]:
        srd(a, 8, S_WS, WS_END); srd(a, 16, S_W2, W_BYTES_TOTAL)
        a("v_lshlrev_b32 v4, 20, v1\nbuffer_load_dword v100, v4, s[8:11], 0 offen sc1\nbuffer_load_dword v101, v4, s[16:19], 0 offen")
        srd(a, 8, 48, X_BYTES); srd(a, 16, S_W1, W_BYTES_TOTAL)
        a("buffer_load_dword v102, v4, s[8:11], 0 offen")
        if o["tlb"] >= 2:
            a("buffer_load_dword v104, v4, s[16:19], 0 offen")
            small = [80, 82, 84, 86, 52, 54, 56, 58]
            for k, p in enumerate(small):
                if o["tlb"] == 3:
                    a(f"s_bfe_u32 s23, s2, 0x30003\ns_cmp_lg_u32 s23, {k}\ns_cbranch_scc1 L_m_tl{k}")
                if k < 6 or not o["bias_pf"]:
                    srd(a, 8, p, 4)
                    a(f"buffer_load_dword v{105+k}, v4, s[8:11], 0 offen")
                else:
                    srd(a, 8, p, F*2 if k == 6 else S*2)
                    a(f"v_lshlrev_b32 v5, 7, v1\nbuffer_load_dword v{105+k}, v5, s[8:11], 0 offen")
                    if k == 6:
                        a("s_mov_b32 s23, 8192\nbuffer_load_dword v113, v5, s[8:11], s23 offen")
                a(f"L_m_tl{k}:")
    if o["touch"]:
        a(f"s_cmp_ge_u32 s2, 1\ns_cbranch_scc1 L_m_notouch\nv_mul_u32_u24 v5, {o['lnw']}, v1\ns_mov_b32 s23, {F_LNW}\nbuffer_load_dword v103, v5, s[36:39], s23 offen\nL_m_notouch:")
    if o["touch_g"]:
        a(f"s_sub_u32 s23, s2, 1\ns_cmp_ge_u32 s23, 4\ns_cbranch_scc1 L_m_notouch2\nv_lshlrev_b32 v5, 8, v1\ns_lshl_b32 s23, s23, 14\ns_add_u32 s23, s23, {F_GW}")
        a("buffer_load_dword v103, v5, s[36:39], s23 offen\nL_m_notouch2:")
    srd(a, gc.SRD_W, S_W1, W_BYTES_TOTAL)
    if o["early_bar"]:
        a("s_barrier")
    a("s_lshr_b32 s30, s2, 3")
    if o["code_pf"]:
        a("s_getpc_b64 s[12:13]\nL_m_pc:\ns_sub_u32 s12, s12, L_m_pc-L_m_base\ns_subb_u32 s13, s13, 0")
        a("s_mov_b32 s14, L_m_last-L_m_base\ns_mov_b32 s15, 0x20000\nv_lshlrev_b32 v4, 4, v1\ns_lshl_b32 s23, s30, 10")
        a("buffer_load_dwordx4 v[96:99], v4, s[12:15], s23 offen\ns_add_u32 s23, s23, 32768\nbuffer_load_dwordx4 v[96:99], v4, s[12:15], s23 offen")
    w1_stream(a, "m0", gc.SRD_W, 30, 32, o["r0"], o["r1"], o["win1"])
    if o["extra23"]:
        a("s_and_b32 s23, s2, 6\ns_cmp_lg_u32 s23, 2\ns_cbranch_scc1 L_m_nox23")
        w1_stream(a, "m23", gc.SRD_W, 30, 32, 2048 - o["extra23"], 2048, o["win1"])
        a("L_m_nox23:")
    a("s_waitcnt lgkmcnt(0)")
    make_tag(a)
    if not o["early_bar"]:
        a("s_barrier")
    a("; STAMP 0\ns_cmp_ge_u32 s2, 216\ns_cbranch_scc1 L_m_helper")
    tile1(a)
    gc.lane_ids(a)
    a(f"s_mul_i32 s{gc.S_ACT0}, s15, 12288\ns_lshl_b32 s{gc.S_W0}, s14, 8")
    gc.loader_setup(a, 0, 9216, "A")
    srd_off(a, gc.SRD_ACT, S_WS, WS_HT, HT_BYTES)
    ln_local_wait(a, "lw1")
    a("; STAMP 0")
    gc.w_prefill(a, range(4), 0, 9216)
    a("; STAMP 1")
    wait_ln(a, "l1", 36, o)
    a(f"; STAMP 2\ns_cmp_lg_u32 s2, 0\ns_cbranch_scc1 L_m_noseed\nv_mov_b32 v4, s{S_TAG+1}\nv_mov_b32 v5, {F_SEED}\ns_mov_b64 exec, 1")
    a("buffer_store_dword v4, v5, s[36:39], 0 offen sc1\ns_mov_b64 exec, -1\nL_m_noseed:")
    gc.loader_after_prefill(a, 32*o["rep1"], 0, 9216, "g1", o["aflags"], tail=lambda a: None, wrap=(2048*9216, 32*73728) if o["rep1"] == 2 else None)
    srd(a, gc.SRD_W, S_W2, W_BYTES_TOTAL)
    a("s_cmp_lt_u32 s2, 192\ns_cbranch_scc1 L_m_l2")
    a("s_waitcnt vmcnt(28)\ns_barrier\ns_waitcnt vmcnt(0)\ns_barrier\ns_barrier\ns_sub_u32 s30, s2, 152\ns_lshr_b32 s30, s30, 3")
    ln_local_wait(a, "lw3", CNT_LDS+8)
    if o["x_pf"] == "early":
        srd(a, 8, S_X, X_BYTES); a("s_sub_u32 s31, s30, 5\ns_mul_i32 s31, s31, 3")
        for k in range(3):
            if k == 2:
                a("s_cmp_eq_u32 s31, 8\ns_cbranch_scc1 L_m_nox")
            x_stream(a, f"xe{k}", 8, 31)
            a("s_add_u32 s31, s31, 1")
        a("L_m_nox:")
    g_pause(a, "gp3", o)
    w2_stream(a, "m3", gc.SRD_W, 30, 8, o["r2"] + 96*o["nC"], 2304, o["win3"])
    if o["x_pf"] is True:
        srd(a, 8, S_X, X_BYTES); x_stream(a, "x3", 8, 30)
    a("s_endpgm\nL_m_l2:")
    tile2(a)
    a(f"s_mul_i32 s57, s15, 12288\ns_mul_i32 s18, s19, {36*73728}\ns_add_u32 s57, s57, s18")
    a(f"s_lshl_b32 s56, s14, 8\ns_mul_i32 s18, s19, {HALF2}\ns_add_u32 s56, s56, s18\ns_mov_b32 s54, -1\ns_mov_b32 s55, -1")
    jump = block_jump if o["rot"] else None
    if o["rot"]:
        a.extend(block_jump("w") + block_jump("a"))
    else:
        a(f"s_mov_b32 s{gc.S_W0}, s56\ns_mov_b32 s{gc.S_ACT0}, s57")
    gc.loader_setup(a, 0, 4096, "B")
    srd_off(a, gc.SRD_ACT, S_WS, WS_G, G_BYTES)
    e2 = o["early2"]
    for j, vm in enumerate((28, 0, None)):
        if j < e2:
            gc.w_prefill(a, [j], 0, 4096, jump)
        if vm is not None:
            a(f"s_waitcnt vmcnt({vm + 16*min(j+1, e2)})")
        a("s_barrier")
    a("; STAMP 5")
    gc.w_prefill(a, range(min(e2, 3), 4), 0, 4096, jump)
    a("v_mov_b32 v61, 0\n; STAMP 3")

    def wait_slot(a):
        a(f"s_mul_i32 s23, s15, 36\ns_mul_i32 s24, s19, 18\ns_add_u32 s23, s23, s24\ns_lshl_b32 s23, s23, 8\ns_add_u32 s23, s23, {F_GW}")
        a("v_and_b32 v60, 3, v1\nv_add_u32 v60, s13, v60\nv_lshlrev_b32 v60, 8, v60")
        poll(a, "l2a", 36, 60, "s23", f"s{S_TAG+1}")
        a("; STAMP 4\nv_min_u32 v60, 17, v1\nv_lshlrev_b32 v60, 8, v60\ns_mov_b32 s53, s23")

    def wait_half(a):
        poll(a, "l2b", 36, 60, "s53", f"s{S_TAG+1}")

    def at_dma(a):
        for e in range(12):
            a(f"s_mov_b32 m0, {AT_LDS + 1024*e}\nbuffer_load_dwordx4 v8, s[48:51], s26 offen sc1 lds\ns_add_u32 s26, s26, 32768")

    def at_early(a):
        srd_off(a, 48, S_WS, WS_AT, AT_BYTES)
        a(f"s_lshl_b32 s23, s15, 8\ns_add_u32 s23, s23, {F_CONV}\nbuffer_load_dword v62, v61, s[36:39], s23 offen sc1")
        a("v_lshrrev_b32 v8, 3, v1\nv_lshlrev_b32 v8, 12, v8\nv_and_b32 v9, 7, v1\nv_lshl_add_u32 v8, v9, 4, v8")
        a(f"s_mul_i32 s26, s15, {96*4096}\ns_lshl_b32 s27, s16, 1\ns_add_u32 s26, s26, s27")
        a("s_cmp_eq_u32 s15, 5\ns_cselect_b32 s24, 96, 32\ns_waitcnt vmcnt(0)\nv_readfirstlane_b32 s27, v62")
        a("s_cmp_lg_u32 s27, s24\ns_cbranch_scc1 L_at_skip")
        at_dma(a)
        a("L_at_skip:")
    if o["rot"]:
        gc.loader_after_prefill(a, 36, 0, 4096, "g2", o["aflags"], before_last=at_early, jump=block_jump, wait2=wait_slot, wait8=wait_half)
    else:
        ln_local_wait(a, "lw4", CNT_LDS+8)
        a(f"s_mul_i32 s53, s15, 36\ns_mul_i32 s24, s19, 18\ns_add_u32 s53, s53, s24\ns_lshl_b32 s53, s53, 8\ns_add_u32 s53, s53, {F_GW}")
        a("v_min_u32 v60, 17, v1\nv_lshlrev_b32 v60, 8, v60")
        wait_half(a)
        a("; STAMP 4")
        gc.loader_after_prefill(a, 36*o["rep2"], 0, 4096, "g2", o["aflags"], before_last=at_early, wrap=(HALF2, 36*73728) if o["rep2"] == 2 else None)
    a("s_cmp_eq_u32 s27, s24\ns_cbranch_scc1 L_at_done")
    poll(a, "at", 36, 61, "s23", "s24")
    at_dma(a)
    a("L_at_done:\ns_waitcnt vmcnt(0)\ns_barrier\ns_endpgm")
    a("L_m_helper:\ns_sub_u32 s30, s2, 216\ns_lshr_b32 s30, s30, 3")
    ln_local_wait(a, "lw2")
    if o["tlb"] >= 4:
        M2 = 2 << 20
        items = [(S_W1, k*M2) for k in range(3, 9)] + [(S_W1, W_BYTES_TOTAL - 4)] + [(p, 0) for p in (80, 82, 84, 86, 52, 54)]
        items += [(S_WS, k*M2) for k in range(WS_G//M2 + 1, (WS_END - 1)//M2 + 1)] + [(S_W2, k*M2) for k in range(9)] + [(S_W2, W_BYTES_TOTAL - 4)]
        items += [(48, 0), (48, X_BYTES - 4), (58, 0)]
        for h in range(5):
            a(f"s_cmp_lg_u32 s30, {h}\ns_cbranch_scc1 L_m_st{h}")
            for k, (p, off) in enumerate(items[h::5]):
                a(f"s_add_u32 s8, s{p}, {off:#x}\ns_addc_u32 s9, s{p+1}, 0\ns_load_dword s{12+k}, s[8:9], 0")
            a(f"L_m_st{h}:")
    if o["b1_late"]:
        srd(a, 8, 56, F*2); srd(a, 12, 58, S*2)
        a("v_lshlrev_b32 v5, 7, v1\ns_mov_b32 s23, 8192\nbuffer_load_dword v105, v5, s[8:11], 0 offen\nbuffer_load_dword v106, v5, s[8:11], s23 offen\nbuffer_load_dword v107, v5, s[12:15], 0 offen")
    w1_stream(a, "m1", gc.SRD_W, 30, 5, o["r1"] + 108*o["nB"]//5*4, 2048, o["win2"], short23=o["extra23"])
    a("; STAMP 1")
    srd(a, gc.SRD_W, S_W2, W_BYTES_TOTAL)
    if o["rot"]:
        w2_head(a, "mh", gc.SRD_W, 30, 5, o["win2"])
    w2_stream(a, "m2", gc.SRD_W, 30, 5, 512 if o["rot"] else o["r20"], o["r2"], o["win2"])
    a("; STAMP 2")
    g_pause(a, "gp4", o)
    w2_stream(a, "m4", gc.SRD_W, 30, 8, o["r2"] + 96*o["nC"], 2304, o["win3"])
    if o["x_pf"] is True:
        srd(a, 8, S_X, X_BYTES); x_stream(a, "x4", 8, 30)


def mega(a, name, **opt):
    o = dict(lead=3, dry=False, b1_late=False, lnx=' nt', bias_pf=False, touch_g=True, xwait=True, early_bar=False, extra23=0, r0=0, r20=0, rep1=1, rep2=1, uflags='', rot=False, x_pf=True, ln_lines=False, x_late='tail', late_sig=False, pause=0, xbf=True, rnd1=0, rnd2=0, prio=0, lnw=256, slp=1, touch=True, tlb=4, early2=3, xnt='', ont='', prefill_late=True, r1=384, nB=2, r2=400, nC=0, win1=20, win2=40, win3=40, aflags=" sc1", code_pf=9)
    o.update(opt)
    prefetch.ROT = o["rot"]
    cv.UFLAGS = o["uflags"]
    gc.LEAD = o["lead"]
    a(f".globl {name}\n.p2align 8\n.type {name},@function\n{name}:\nL_m_base:")
    a("s_cmp_ge_u32 s2, 256\ns_cbranch_scc1 L_m_end")
    a(f"s_load_dwordx2 s[{S_X}:{S_X+1}], s[0:1], {KA['x']}\ns_load_dwordx2 s[{S_WS}:{S_WS+1}], s[0:1], {KA['ws']}")
    a(f"s_load_dwordx2 s[{S_W1}:{S_W1+1}], s[0:1], {KA['w1']}\ns_load_dwordx2 s[{S_W2}:{S_W2+1}], s[0:1], {KA['w2']}")
    a("v_lshrrev_b32 v1, 6, v0\nv_readfirstlane_b32 s20, v1\nv_and_b32 v1, 63, v0")
    a("s_cmp_eq_u32 s20, 4\ns_cbranch_scc1 L_m_w4")
    compute_waves(a, o)
    a("L_m_w4:")
    fifth_wave(a, o)
    a("L_m_end:\ns_endpgm\nL_m_last:")


def warm_kernel(a, name, rows, w2rows, main, window=63):
    a(f".globl {name}\n.p2align 8\n.type {name},@function\n{name}:")
    a("s_cmp_ge_u32 s2, 256\ns_cbranch_scc1 L_pre_end")
    if rows >= 0:
        a(f"s_load_dwordx2 s[4:5], s[0:1], {KA['ws']}\ns_load_dwordx2 s[6:7], s[0:1], {KA['x']}\ns_load_dwordx2 s[20:21], s[0:1], {KA['w1']}")
        a(f"s_load_dwordx2 s[22:23], s[0:1], {KA['w2']}\ns_load_dwordx2 s[24:25], s[0:1], {KA['out']}")
        a("v_and_b32 v1, 63, v0\ns_lshr_b32 s30, s2, 3\nv_lshlrev_b32 v4, 20, v1\ns_waitcnt lgkmcnt(0)")
        srd(a, 8, 4, WS_FLG + FLG_BYTES); srd(a, 12, 6, X_BYTES); srd(a, 16, 22, W_BYTES_TOTAL); srd(a, 32, 20, W_BYTES_TOTAL); srd(a, 48, 24, X_BYTES)
        for k, rs in enumerate((8, 12, 16, 48)):
            a(f"buffer_load_dword v{100+k}, v4, s[{rs}:{rs+3}], 0 offen sc1")
        a(f"s_getpc_b64 s[12:13]\nL_pre_pc:\ns_sub_u32 s12, s12, L_pre_pc-L_m_base\ns_subb_u32 s13, s13, 0")
        a("s_mov_b32 s14, L_m_last-L_m_base\ns_mov_b32 s15, 0x20000\nv_lshlrev_b32 v4, 4, v1\ns_lshl_b32 s23, s30, 10")
        a("buffer_load_dwordx4 v[96:99], v4, s[12:15], s23 offen\ns_add_u32 s23, s23, 32768\nbuffer_load_dwordx4 v[96:99], v4, s[12:15], s23 offen")
        w1_stream(a, "pre", 32, 30, 32, 0, rows, window)
        w2_stream(a, "pre", 16, 30, 32, 0, w2rows, window)
    a("L_pre_end:\ns_endpgm")
```

```python
import struct
from asmlib import *
from layout import *
import gemm_core as gc
import mega_ln as ln
import mega_conv as cv
from prefetch import *
import prefetch

AT_LDS = gc.LDS_RING
LN_LDS = 139264
CNT_LDS = LN_LDS + 2*ln.LN_T
LDS_TOTAL = CNT_LDS + 64
S_WS, S_X, S_DBG, S_W1, S_W2 = 4, 6, 94, 96, 98
SPIN = 0x100000
S_TAG = 100
F_SEED = 255 * 256


def f32hex(x):
    return "0x%08x" % struct.unpack("<I", struct.pack("<f", x))[0]


def div6(a, d, r, x):
    a(f"s_mul_i32 s{d}, s{x}, 10923\ns_lshr_b32 s{d}, s{d}, 16\ns_mul_i32 s{r}, s{d}, 6\ns_sub_u32 s{r}, s{x}, s{r}")


def unpk(a, x, p):
    a(f"v_lshlrev_b32 v{x}, 16, v{p}\nv_and_b32 v{x+1}, 0xffff0000, v{p}")


def poll(a, tag, rs, vaddr, soff, target, sleep=1, mask=None):
    a(f"s_mov_b32 s61, {SPIN:#x}\nL_{tag}_poll:\nbuffer_load_dword v62, v{vaddr}, s[{rs}:{rs+3}], {soff} offen sc1")
    a(f"s_sub_u32 s61, s61, 1\ns_cbranch_scc1 L_{tag}_go\ns_waitcnt vmcnt(0)")
    if mask:
        a(f"v_and_b32 v62, {mask:#x}, v62")
    a(f"v_cmp_ne_u32 vcc, {target}, v62")
    a(f"s_cmp_eq_u64 vcc, 0\ns_cbranch_scc1 L_{tag}_go")
    if sleep:
        a(f"s_sleep {sleep}")
    a(f"s_branch L_{tag}_poll\nL_{tag}_go:")


def flags_srd(a, d):
    srd_off(a, d, S_WS, WS_FLG, FLG_BYTES)


def last_wave_signals(a, tag, cnt, rs, soff, word=None, second=None):
    a(f"v_mov_b32 v58, {cnt}\nv_mov_b32 v59, 1\nv_mov_b32 v61, 0\ns_mov_b64 exec, 1\nds_add_rtn_u32 v60, v58, v59\ns_waitcnt lgkmcnt(0)")
    a(f"v_readfirstlane_b32 s23, v60\ns_cmp_lg_u32 s23, 3\ns_cbranch_scc1 L_{tag}_notlast")
    if word:
        a(f"v_mov_b32 v59, {word}\nbuffer_store_dword v59, v61, s[{rs}:{rs+3}], {soff} offen sc1")
    else:
        if second:
            a(f"buffer_atomic_add v59, v61, s[{rs}:{rs+3}], {second} offen sc1")
        a(f"buffer_atomic_add v59, v61, s[{rs}:{rs+3}], {soff} offen sc1")
    a(f"L_{tag}_notlast:\ns_mov_b64 exec, -1")


def ln_local_wait(a, tag, cnt=CNT_LDS+4):
    a(f"v_mov_b32 v58, {cnt}\nL_{tag}:\ns_sleep 2\nds_read_b32 v60, v58\ns_waitcnt lgkmcnt(0)\nv_readfirstlane_b32 s23, v60\ns_cmp_lt_u32 s23, 4\ns_cbranch_scc1 L_{tag}")


def g_pause(a, tag, o):
    if not o["pause"]:
        return
    a(f"s_lshr_b32 s23, s2, 3\ns_mul_i32 s24, s23, 43\ns_lshr_b32 s24, s24, 9\ns_mul_i32 s24, s24, 12\ns_sub_u32 s23, s23, s24\ns_lshl_b32 s23, s23, 8\ns_add_u32 s23, s23, {F_G}")
    a(f"v_mov_b32 v61, 0\ns_mov_b32 s61, {SPIN:#x}\nL_{tag}_poll:\nbuffer_load_dword v62, v61, s[36:39], s23 offen sc1\ns_sub_u32 s61, s61, 1\ns_cbranch_scc1 L_{tag}_go")
    a(f"s_waitcnt vmcnt(0)\nv_readfirstlane_b32 s24, v62\ns_cmp_ge_u32 s24, {o['pause']}\ns_cbranch_scc1 L_{tag}_go\ns_sleep 8\ns_branch L_{tag}_poll\nL_{tag}_go:")


def wait_ln(a, tag, rs, o):
    a(f"v_mul_u32_u24 v61, {o['lnw']}, v1\ns_mov_b32 s61, {SPIN:#x}\nL_{tag}_poll:")
    if o["ln_lines"]:
        for k in range(4):
            a(f"s_mov_b32 s62, {F_LNW + k*64*o['lnw']}\nbuffer_load_dword v{180+k}, v61, s[{rs}:{rs+3}], s62 offen sc1")
    else:
        a(f"s_mov_b32 s62, {F_LNW}\nbuffer_load_dwordx4 v[180:183], v61, s[{rs}:{rs+3}], s62 offen sc1")
    a(f"s_sub_u32 s61, s61, 1\ns_cbranch_scc1 L_{tag}_go\ns_waitcnt vmcnt(0)")
    a(f"v_xor_b32 v180, s{S_TAG+1}, v180\nv_xor_b32 v181, s{S_TAG+1}, v181\nv_xor_b32 v182, s{S_TAG+1}, v182\nv_xor_b32 v183, s{S_TAG+1}, v183")
    a("v_or3_b32 v180, v180, v181, v182\nv_or_b32 v180, v180, v183\nv_cmp_ne_u32 vcc, 0, v180")
    a(f"s_cmp_eq_u64 vcc, 0\ns_cbranch_scc1 L_{tag}_go\ns_sleep {o['slp']}\ns_branch L_{tag}_poll\nL_{tag}_go:")


def tile1(a):
    a("s_and_b32 s12, s2, 7\ns_lshr_b32 s13, s2, 3\ns_and_b32 s14, s12, 1\ns_mul_i32 s14, s14, 3\ns_add_u32 s13, s13, s14")
    a("s_cmp_ge_u32 s13, 27\ns_cselect_b32 s14, 27, 0\ns_sub_u32 s13, s13, s14\ns_mul_i32 s12, s12, 27\ns_add_u32 s12, s12, s13")
    div6(a, 14, 15, 12)


def tile2(a):
    a("s_lshr_b32 s13, s2, 3")
    div6(a, 12, 15, 13)
    a("s_bfe_u32 s19, s2, 0x10002\ns_and_b32 s13, s2, 3\ns_lshl_b32 s14, s13, 2\ns_add_u32 s14, s14, s12")
    a("s_mul_i32 s13, s13, 9\ns_add_u32 s13, s13, 1\ns_lshr_b32 s13, s13, 1")
    a("s_lshl_b32 s16, s14, 7\ns_lshl_b32 s17, s19, 6\ns_add_u32 s16, s16, s17")


def block_jump(kind):
    cnt, base, dst, step = (54, 56, gc.S_W0, 128*4096) if kind == "w" else (55, 57, gc.S_ACT0, 2*73728)
    return [f"s_add_u32 s{cnt}, s{cnt}, 1", f"s_add_u32 s18, s{cnt}, s12", "s_and_b32 s18, s18, 3", f"s_cmp_lt_u32 s{cnt}, 4",
            f"s_cselect_b32 s18, s18, s{cnt}", "s_add_u32 s18, s18, s13", "s_cmp_ge_u32 s18, 18", "s_cselect_b32 s17, 18, 0",
            "s_sub_u32 s18, s18, s17", f"s_mul_i32 s18, s18, {step}", f"s_add_u32 s{dst}, s18, s{base}"]


def gelu_epilogue(a, rounds, rot):
    c1 = -2.0 * 0.7978845608028654 * 1.4426950408889634
    a(f"s_mov_b32 s48, {f32hex(c1*0.044715)}\ns_mov_b32 s49, s48\nv_mov_b32 v36, {f32hex(c1)}\nv_mov_b32 v37, v36")
    for nu in range(4):
        unpk(a, 20+4*nu, 12+2*nu); unpk(a, 22+4*nu, 13+2*nu)
    a(f"s_lshr_b32 s26, s20, 1\ns_mul_i32 s26, s26, {gc.SLOT}\ns_and_b32 s27, s20, 1\ns_mul_i32 s27, s27, 6144\ns_add_u32 s26, s26, s27\ns_add_u32 s26, s26, {gc.W_BYTES}\nv_add_u32 v38, s26, v7")
    B = 112
    for dl in range(3):
        for pi in range(2):
            src = [(gc.acc(2*pi + (k >> 1), dl) + 2*(k & 1), 20 + 4*(2*pi + (k >> 1)) + 2*(k & 1)) for k in range(4)]
            U = [B + 2*k for k in range(4)]; T = [B + 8 + 2*k for k in range(4)]; P = [B + 16 + k for k in range(4)]
            O = B + 20 + 4*((2*dl + pi) % 2)
            if rounds == 2:
                for k in range(4): a(f"v_cvt_pk_bf16_f32 v{P[k]}, v{src[k][0]}, v{src[k][0]+1}")
                for k in range(4): unpk(a, U[k], P[k])
                for k in range(4): a(f"v_pk_add_f32 {vr(U[k],2)}, {vr(U[k],2)}, {vr(src[k][1],2)}")
            else:
                for k in range(4): a(f"v_pk_add_f32 {vr(U[k],2)}, {vr(src[k][0],2)}, {vr(src[k][1],2)}")
            if rounds >= 1:
                for k in range(4): a(f"v_cvt_pk_bf16_f32 v{P[k]}, v{U[k]}, v{U[k]+1}")
                for k in range(4): unpk(a, U[k], P[k])
            for k in range(4): a(f"v_pk_mul_f32 {vr(T[k],2)}, {vr(U[k],2)}, {vr(U[k],2)}")
            for k in range(4): a(f"v_pk_fma_f32 {vr(T[k],2)}, {vr(T[k],2)}, s[48:49], v[36:37]")
            for k in range(4): a(f"v_pk_mul_f32 {vr(T[k],2)}, {vr(T[k],2)}, {vr(U[k],2)}")
            for k in range(4): a(f"v_exp_f32 v{T[k]}, v{T[k]}\nv_exp_f32 v{T[k]+1}, v{T[k]+1}")
            for k in range(4): a(f"v_pk_add_f32 {vr(T[k],2)}, {vr(T[k],2)}, 1.0 op_sel_hi:[1,0]")
            for k in range(4): a(f"v_rcp_f32 v{T[k]}, v{T[k]}\nv_rcp_f32 v{T[k]+1}, v{T[k]+1}")
            for k in range(4): a(f"v_pk_mul_f32 {vr(U[k],2)}, {vr(U[k],2)}, {vr(T[k],2)}")
            for k in range(4): a(f"v_cvt_pk_bf16_f32 v{O+k}, v{U[k]}, v{U[k]+1}")
            a(f"buffer_store_dwordx4 {vr(O,4)}, v7, s[44:47], s17 offen offset:{1024*pi} sc1")
            if rot:
                a(f"ds_write_b128 v38, {vr(O,4)} offset:{(2*dl + pi)*1024}")
        a("s_add_u32 s17, s17, 2048")


def read_tag(a):
    a(f"s_add_u32 s26, s{S_WS}, {WS_FLG + F_SEED:#x}\ns_addc_u32 s27, s{S_WS+1}, 0\ns_load_dword s{S_TAG+1}, s[26:27], 0")


def make_tag(a):
    a(f"s_mul_i32 s{S_TAG+1}, s{S_TAG+1}, 0x9e3779b1\ns_add_u32 s{S_TAG+1}, s{S_TAG+1}, 0x7f4a7c15\ns_andn2_b32 s{S_TAG}, s{S_TAG+1}, 0xff")


def compute_waves(a, o):
    a("s_waitcnt lgkmcnt(0)")
    ln.ln_issue(a, S_X, o['lnx'], 80 if o['dry'] else 10)
    read_tag(a)
    a(f"s_cmp_lg_u32 s20, 0\ns_cbranch_scc1 L_m_nz\nv_mov_b32 v58, {CNT_LDS}\nv_mov_b32 v60, 0\nv_mov_b32 v61, 0\nv_mov_b32 v62, 0\nv_mov_b32 v63, 0")
    a("ds_write_b128 v58, v[60:63]\nL_m_nz:")
    if o["early_bar"]:
        a("s_waitcnt lgkmcnt(0)\ns_barrier")
    a(f"s_load_dwordx2 s[38:39], s[0:1], {KA['b1']}\ns_load_dwordx8 s[76:83], s[0:1], {KA['lar']}".replace("s[76:83]", "s[80:87]"))
    ln.ln_body(a, S_WS, LN_LDS, CNT_LDS, "ln", not o["early_bar"], o["dry"])
    flags_srd(a, 40)
    make_tag(a)
    a("v_mov_b32 v61, 0\ns_cmp_lg_u32 s20, 3\ns_cbranch_scc1 L_m_nozero\ns_sub_u32 s23, s2, 28\ns_cmp_ge_u32 s23, 6\ns_cbranch_scc1 L_m_nozero")
    a("s_lshl_b32 s23, s2, 8\ns_mov_b64 exec, 1\nbuffer_store_dword v61, v61, s[40:43], s23 offen sc1\ns_mov_b64 exec, -1\nL_m_nozero:")
    if o["ln_lines"]:
        a(f"s_mul_i32 s24, s2, {o['lnw']}\ns_add_u32 s24, s24, {F_LNW}")
    else:
        a(f"s_and_b32 s24, s2, 63\ns_mul_i32 s24, s24, {o['lnw']}\ns_lshr_b32 s23, s2, 6\ns_lshl_b32 s23, s23, 2\ns_add_u32 s24, s24, s23\ns_add_u32 s24, s24, {F_LNW}")
    a("s_waitcnt vmcnt(0)\n; STAMP 1")
    last_wave_signals(a, "lnd", CNT_LDS + 4, 40, "s24", word=f"s{S_TAG+1}")
    a("s_cmp_ge_u32 s2, 216\ns_cbranch_scc1 L_m_conv")
    a("s_lshr_b32 s29, s2, 3\ns_lshl_b32 s29, s29, 2\ns_add_u32 s29, s29, s20")
    srd(a, 32, S_W1, W_BYTES_TOTAL)
    w1_burst(a, 32, 29, 108, o["r1"]//4*5, o["nB"])
    srd(a, 32, S_W2, W_BYTES_TOTAL)
    tile1(a)
    gc.lane_ids(a)
    gc.compute_setup(a, "A")
    srd(a, 8, 38, F*2)
    a(f"s_lshr_b32 s16, s20, 1\ns_lshl_b32 s17, s16, 7\ns_lshl_b32 s18, s14, 8\ns_add_u32 s17, s17, s18\nv_lshlrev_b32 v9, 3, v3")
    a("s_mov_b32 s22, s17")

    def b1_loads(a):
        for nu in range(4):
            a(f"buffer_load_dwordx2 {vr(12+2*nu,2)}, v9, s[8:11], s22 offen offset:{32*nu}")
    if not o["b1_late"]:
        b1_loads(a)
    for i in range(48):
        a(f"v_mov_b32 v{gc.V_ACC+i}, 0")
    srd_off(a, 44, S_WS, WS_G, G_BYTES)
    a("s_and_b32 s17, s20, 1\ns_mul_i32 s17, s17, 3\ns_mul_i32 s18, s15, 6\ns_add_u32 s17, s17, s18\ns_lshl_b32 s17, s17, 11")
    a("s_lshl_b32 s18, s14, 1\ns_add_u32 s18, s18, s16\ns_mul_i32 s18, s18, 73728\ns_add_u32 s17, s17, s18")
    a(f"s_mul_i32 s24, s15, 36\ns_add_u32 s24, s24, s14\ns_lshl_b32 s24, s24, 8\ns_add_u32 s24, s24, {F_GW}")
    a(f"s_load_dwordx4 s[52:55], s[0:1], {KA['b2']}")
    gc.compute_main(a, 32*o["rep1"], "A", False, "g1", last_barrier=True, st=(5, 2), tail_hook=b1_loads if o["b1_late"] else None)
    if o["rep1"] == 2:
        for i in range(48):
            a(f"v_mul_f32 v{gc.V_ACC+i}, 0.5, v{gc.V_ACC+i}")
    a("s_waitcnt vmcnt(0)")
    gelu_epilogue(a, o['rnd1'], o['rot'])
    a("s_cmp_lt_u32 s2, 192\ns_cbranch_scc1 L_m_g2\ns_waitcnt vmcnt(0)")
    last_wave_signals(a, "gd", CNT_LDS + 8, 40, "s24", word=f"s{S_TAG+1}")
    a("; STAMP 3\ns_branch L_m_conv1\nL_m_g2:")
    tile2(a)
    gc.compute_setup(a, "B", s_kh=19)
    srd(a, 32, S_X, X_BYTES); srd(a, 28, 52, S*2)
    a("s_lshr_b32 s17, s20, 1\ns_lshl_b32 s17, s17, 5\ns_add_u32 s17, s17, s16")
    a("s_mul_i32 s18, s15, 96\ns_and_b32 s26, s20, 1\ns_mul_i32 s26, s26, 48\ns_add_u32 s18, s18, s26")
    a("v_mul_u32_u24 v58, 1152, v2\nv_lshl_add_u32 v58, v3, 3, v58\nv_lshlrev_b32 v9, 1, v2")
    a("s_mul_i32 s56, s17, 1152\ns_lshl_b32 s26, s18, 1\ns_add_u32 s56, s56, s26\ns_add_u32 s57, s56, 18432\ns_lshl_b32 s26, s17, 1")
    a("s_mov_b32 s22, s26\nv_mov_b32 v39, v58")
    for i in range(48):
        a(f"v_mov_b32 v{gc.V_ACC+i}, 0")
    a("v_bfe_u32 v4, v1, 2, 2\nv_lshl_add_u32 v4, v3, 2, v4\nv_lshlrev_b32 v4, 7, v4\nv_and_b32 v5, 3, v1\nv_lshl_add_u32 v4, v5, 3, v4")
    a(f"s_and_b32 s26, s20, 1\ns_mul_i32 s26, s26, 6144\ns_lshr_b32 s27, s20, 1\ns_lshl_b32 s27, s27, 6\ns_add_u32 s26, s26, s27\ns_add_u32 s26, s26, {AT_LDS}\nv_add_u32 v59, s26, v4")
    a("v_mov_b32 v31, v59")
    a("s_xor_b32 s58, s2, 4\ns_lshl_b32 s26, s20, 12\ns_lshl_b32 s59, s58, 14\ns_add_u32 s59, s59, s26\ns_lshl_b32 s60, s2, 14\ns_add_u32 s60, s60, s26")
    assert o["xbf"]

    def x_loads(a):
        for nu in range(2):
            for dl in range(3):
                a(f"buffer_load_dwordx2 {vr(10+2*(3*nu+dl),2)}, v39, s[32:35], s{56+nu} offen offset:{32*dl}{o['xnt']}")
            a(f"buffer_load_ushort v{22+nu}, v9, s[28:31], s22 offen offset:{32*nu}")

    def publish_g(a):
        a("s_waitcnt vmcnt(0)")
        last_wave_signals(a, "gd2", CNT_LDS + 8, 40, "s24", word=f"s{S_TAG+1}")
        a("; STAMP 3\n; SWAIT")
        if not o["x_late"]:
            x_loads(a)

    if o["late_sig"]:
        gc.compute_main(a, 36, "B", True, "g2", st=(5, 4), first_stage1=publish_g)
    else:
        publish_g(a)
        gc.compute_main(a, 36*o["rep2"], "B", True, "g2", st=(5, 4), tail_hook=x_loads if o["x_late"] == "tail" else None)
        if o["rep2"] == 2:
            for i in range(48):
                a(f"v_mul_f32 v{gc.V_ACC+i}, 0.5, v{gc.V_ACC+i}")
    srd_off(a, 8, S_WS, WS_XCH, XCH_BYTES); srd(a, 44, 54, X_BYTES)
    a("v_mov_b32 v58, v39\nv_mov_b32 v59, v31")
    a("; STAMP 5")
    SN = 172
    NG = 4 if o["xbf"] else 8
    for k in range(NG):
        for m in range(3):
            if o["xbf"]:
                a(f"v_cvt_pk_bf16_f32 v{SN+4*k+m}, v{gc.V_ACC+24+6*k+2*m}, v{gc.V_ACC+25+6*k+2*m}")
            else:
                a(f"v_mov_b32 v{SN+4*k+m}, v{gc.V_ACC+24+3*k+m}")
        a(f"v_mov_b32 v{SN+4*k+3}, s{S_TAG+1}")
        a(f"buffer_store_dwordx4 {vr(SN+4*k,4)}, v7, s[8:11], s59 offen sc1\ns_add_u32 s59, s59, 1024")
    if o["x_late"] is True:
        x_loads(a)
    a("s_barrier")
    AR, PF = 112, 124
    for nu in range(2):
        for dl in range(3):
            a(f"ds_read_b64_tr_b16 {vr(AR+2*(3*nu+dl),2)}, v59 offset:{2048*dl + 32*nu}")
    a(f"s_waitcnt vmcnt({0 if o['x_late'] is True else NG})\nv_lshlrev_b32 v22, 16, v22\nv_lshlrev_b32 v24, 16, v23\ns_waitcnt lgkmcnt(0)")
    for t in range(6):
        for h in range(2):
            unpk(a, 26, 10+2*t+h); unpk(a, 28, AR+2*t+h)
            if o["rnd2"]:
                a("v_pk_add_f32 v[26:27], v[26:27], v[28:29]\nv_cvt_pk_bf16_f32 v30, v26, v27")
                unpk(a, PF+4*t+2*h, 30)
            else:
                b = gc.V_ACC + 4*t + 2*h
                a(f"v_pk_add_f32 v[26:27], v[26:27], v[28:29]\nv_pk_add_f32 {vr(b,2)}, {vr(b,2)}, {vr(22+2*(t//3),2)} op_sel_hi:[1,0]")
                a(f"v_pk_add_f32 {vr(b,2)}, {vr(b,2)}, v[26:27]")
    RX = 204
    if o["xwait"]:
        a("s_waitcnt vmcnt(0)")
    a(f"s_mov_b32 s61, {SPIN:#x}\ns_add_u32 s62, s60, 4096\nL_xch_poll:")
    for k in range(NG):
        a(f"buffer_load_dwordx4 {vr(RX+4*k,4)}, v7, s[8:11], s{60 + 2*(k >> 2)} offen offset:{1024*(k & 3)} sc1")
    a(f"s_sub_u32 s61, s61, 1\ns_cbranch_scc1 L_xch_go\ns_waitcnt vmcnt(0)\nv_xor_b32 v4, s{S_TAG+1}, v{RX+3}")
    for k in range(1, NG):
        a(f"v_xor_b32 v5, s{S_TAG+1}, v{RX+4*k+3}\nv_or_b32 v4, v4, v5")
    a("v_cmp_ne_u32 vcc, 0, v4\ns_cmp_eq_u64 vcc, 0\ns_cbranch_scc1 L_xch_go")
    if o["slpx"]:
        a(f"s_sleep {o['slpx']}")
    a("s_branch L_xch_poll\nL_xch_go:")
    for t in range(6):
        nu, dl = divmod(t, 3)
        b, p = gc.V_ACC + 4*t, PF + 4*t
        if o["xbf"]:
            for h in range(2):
                k, m = divmod(2*t + h, 3)
                unpk(a, 26+2*h, RX+4*k+m)
            for h in range(2): a(f"v_pk_add_f32 {vr(b+2*h,2)}, {vr(b+2*h,2)}, {vr(26+2*h,2)}")
        else:
            for e in range(4):
                k, m = divmod(4*t + e, 3)
                a(f"v_add_f32 v{b+e}, v{b+e}, v{RX+4*k+m}")
        if o['rnd2']:
            for h in range(2): a(f"v_cvt_pk_bf16_f32 v{26+h}, v{b+2*h}, v{b+2*h+1}")
            for h in range(2): unpk(a, b+2*h, 26+h)
            for h in range(2): a(f"v_pk_add_f32 {vr(b+2*h,2)}, {vr(b+2*h,2)}, {vr(22+2*nu,2)} op_sel_hi:[1,0]")
            for h in range(2): a(f"v_cvt_pk_bf16_f32 v{26+h}, v{b+2*h}, v{b+2*h+1}")
            for h in range(2): unpk(a, b+2*h, 26+h)
            for h in range(2): a(f"v_pk_add_f32 {vr(b+2*h,2)}, {vr(b+2*h,2)}, {vr(p+2*h,2)}")
        for h in range(2): a(f"v_cvt_pk_bf16_f32 v{10+2*t+h}, v{b+2*h}, v{b+2*h+1}")
        a(f"buffer_store_dwordx2 {vr(10+2*t,2)}, v58, s[44:47], s{56+nu} offen offset:{32*dl}{o['ont']}")
    a("s_endpgm")
    a("L_m_conv1:\ns_mov_b32 s30, 1\ns_sub_u32 s31, s2, 72\ns_lshl_b32 s31, s31, 2\ns_add_u32 s31, s31, s20\ns_branch L_m_conv2")
    a("L_m_conv:\ns_mov_b32 s30, 3\ns_sub_u32 s31, s2, 216\ns_lshl_b32 s31, s31, 2\ns_add_u32 s31, s31, s20\ns_mul_i32 s31, s31, 3\nL_m_conv2:")
    a("s_mul_i32 s29, s31, 683\ns_lshr_b32 s29, s29, 16")
    a(f"s_load_dwordx4 s[32:35], s[0:1], {KA['ldt']}\ns_waitcnt lgkmcnt(0)")
    cv.param_loads(a, 80, 32, 34)

    def signal(a):
        a("s_lshl_b32 s36, s29, 8")
        a(f"s_add_u32 s36, s36, {F_CONV}\nv_mov_b32 v4, 1\nv_mov_b32 v5, 0\ns_mov_b64 exec, 1\nbuffer_atomic_add v4, v5, s[8:11], s36 offen sc1")
    flags_srd(a, 8)
    cv.conv_role(a, "cv", S_WS, lambda a: wait_ln(a, "cvln", 8, o), signal)
    a("s_endpgm")


def fifth_wave(a, o):
    if o["prio"]:
        a(f"s_setprio {o['prio']}")
    a(f"s_load_dwordx2 s[48:49], s[0:1], {KA['out']}\ns_load_dwordx8 s[80:87], s[0:1], {KA['lar']}\ns_load_dwordx4 s[52:55], s[0:1], {KA['ldt']}")
    a(f"s_load_dwordx2 s[56:57], s[0:1], {KA['b1']}\ns_load_dwordx2 s[58:59], s[0:1], {KA['b2']}")
    a("s_waitcnt lgkmcnt(0)")
    flags_srd(a, 36)
    read_tag(a)
    if o["tlb"] >= 4:
        srd(a, 8, S_WS, WS_G); srd(a, 16, S_W1, 5 << 20)
        a("v_lshlrev_b32 v4, 21, v1\nbuffer_load_dword v100, v4, s[8:11], 0 offen sc1\nbuffer_load_dword v104, v4, s[16:19], 0 offen")
        srd(a, 8, 56, 4)
        a("buffer_load_dword v105, v4, s[8:11], 0 offen")
    elif o["tlb"]:
        srd(a, 8, S_WS, WS_END); srd(a, 16, S_W2, W_BYTES_TOTAL)
        a("v_lshlrev_b32 v4, 20, v1\nbuffer_load_dword v100, v4, s[8:11], 0 offen sc1\nbuffer_load_dword v101, v4, s[16:19], 0 offen")
        srd(a, 8, 48, X_BYTES); srd(a, 16, S_W1, W_BYTES_TOTAL)
        a("buffer_load_dword v102, v4, s[8:11], 0 offen")
        if o["tlb"] >= 2:
            a("buffer_load_dword v104, v4, s[16:19], 0 offen")
            small = [80, 82, 84, 86, 52, 54, 56, 58]
            for k, p in enumerate(small):
                if o["tlb"] == 3:
                    a(f"s_bfe_u32 s23, s2, 0x30003\ns_cmp_lg_u32 s23, {k}\ns_cbranch_scc1 L_m_tl{k}")
                if k < 6 or not o["bias_pf"]:
                    srd(a, 8, p, 4)
                    a(f"buffer_load_dword v{105+k}, v4, s[8:11], 0 offen")
                else:
                    srd(a, 8, p, F*2 if k == 6 else S*2)
                    a(f"v_lshlrev_b32 v5, 7, v1\nbuffer_load_dword v{105+k}, v5, s[8:11], 0 offen")
                    if k == 6:
                        a("s_mov_b32 s23, 8192\nbuffer_load_dword v113, v5, s[8:11], s23 offen")
                a(f"L_m_tl{k}:")
    if o["touch"]:
        a(f"s_cmp_ge_u32 s2, 1\ns_cbranch_scc1 L_m_notouch\nv_mul_u32_u24 v5, {o['lnw']}, v1\ns_mov_b32 s23, {F_LNW}\nbuffer_load_dword v103, v5, s[36:39], s23 offen\nL_m_notouch:")
    if o["touch_g"]:
        a(f"s_sub_u32 s23, s2, 1\ns_cmp_ge_u32 s23, 4\ns_cbranch_scc1 L_m_notouch2\nv_lshlrev_b32 v5, 8, v1\ns_lshl_b32 s23, s23, 14\ns_add_u32 s23, s23, {F_GW}")
        a("buffer_load_dword v103, v5, s[36:39], s23 offen\nL_m_notouch2:")
    srd(a, gc.SRD_W, S_W1, W_BYTES_TOTAL)
    if o["early_bar"]:
        a("s_barrier")
    a("s_lshr_b32 s30, s2, 3")
    if o["code_pf"]:
        a("s_getpc_b64 s[12:13]\nL_m_pc:\ns_sub_u32 s12, s12, L_m_pc-L_m_base\ns_subb_u32 s13, s13, 0")
        a("s_mov_b32 s14, L_m_last-L_m_base\ns_mov_b32 s15, 0x20000\nv_lshlrev_b32 v4, 4, v1\ns_lshl_b32 s23, s30, 10")
        a("buffer_load_dwordx4 v[96:99], v4, s[12:15], s23 offen\ns_add_u32 s23, s23, 32768\nbuffer_load_dwordx4 v[96:99], v4, s[12:15], s23 offen")
    w1_stream(a, "m0", gc.SRD_W, 30, 32, o["r0"], o["r1"], o["win1"])
    if o["extra23"]:
        a("s_and_b32 s23, s2, 6\ns_cmp_lg_u32 s23, 2\ns_cbranch_scc1 L_m_nox23")
        w1_stream(a, "m23", gc.SRD_W, 30, 32, 2048 - o["extra23"], 2048, o["win1"])
        a("L_m_nox23:")
    a("s_waitcnt lgkmcnt(0)")
    make_tag(a)
    if not o["early_bar"]:
        a("s_barrier")
    a("; STAMP 0\ns_cmp_ge_u32 s2, 216\ns_cbranch_scc1 L_m_helper")
    tile1(a)
    gc.lane_ids(a)
    a(f"s_mul_i32 s{gc.S_ACT0}, s15, 12288\ns_lshl_b32 s{gc.S_W0}, s14, 8")
    gc.loader_setup(a, 0, 9216, "A")
    srd_off(a, gc.SRD_ACT, S_WS, WS_HT, HT_BYTES)
    ln_local_wait(a, "lw1")
    a("; STAMP 0")
    gc.w_prefill(a, range(4), 0, 9216)
    a("; STAMP 1")
    wait_ln(a, "l1", 36, o)
    a(f"; STAMP 2\ns_cmp_lg_u32 s2, 0\ns_cbranch_scc1 L_m_noseed\nv_mov_b32 v4, s{S_TAG+1}\nv_mov_b32 v5, {F_SEED}\ns_mov_b64 exec, 1")
    a("buffer_store_dword v4, v5, s[36:39], 0 offen sc1\ns_mov_b64 exec, -1\nL_m_noseed:")
    gc.loader_after_prefill(a, 32*o["rep1"], 0, 9216, "g1", o["aflags"], tail=lambda a: None, wrap=(2048*9216, 32*73728) if o["rep1"] == 2 else None)
    srd(a, gc.SRD_W, S_W2, W_BYTES_TOTAL)
    a("s_cmp_lt_u32 s2, 192\ns_cbranch_scc1 L_m_l2")
    a("s_waitcnt vmcnt(28)\ns_barrier\ns_waitcnt vmcnt(0)\ns_barrier\ns_barrier\ns_sub_u32 s30, s2, 152\ns_lshr_b32 s30, s30, 3")
    ln_local_wait(a, "lw3", CNT_LDS+8)
    if o["x_pf"] == "early":
        srd(a, 8, S_X, X_BYTES); a("s_sub_u32 s31, s30, 5\ns_mul_i32 s31, s31, 3")
        for k in range(3):
            if k == 2:
                a("s_cmp_eq_u32 s31, 8\ns_cbranch_scc1 L_m_nox")
            x_stream(a, f"xe{k}", 8, 31)
            a("s_add_u32 s31, s31, 1")
        a("L_m_nox:")
    g_pause(a, "gp3", o)
    w2_stream(a, "m3", gc.SRD_W, 30, 8, o["r2"] + 96*o["nC"], 2304, o["win3"])
    if o["x_pf"] is True:
        srd(a, 8, S_X, X_BYTES); x_stream(a, "x3", 8, 30)
    a("s_endpgm\nL_m_l2:")
    tile2(a)
    a(f"s_mul_i32 s57, s15, 12288\ns_mul_i32 s18, s19, {36*73728}\ns_add_u32 s57, s57, s18")
    a(f"s_lshl_b32 s56, s14, 8\ns_mul_i32 s18, s19, {HALF2}\ns_add_u32 s56, s56, s18\ns_mov_b32 s54, -1\ns_mov_b32 s55, -1")
    jump = block_jump if o["rot"] else None
    if o["rot"]:
        a.extend(block_jump("w") + block_jump("a"))
    else:
        a(f"s_mov_b32 s{gc.S_W0}, s56\ns_mov_b32 s{gc.S_ACT0}, s57")
    gc.loader_setup(a, 0, 4096, "B")
    srd_off(a, gc.SRD_ACT, S_WS, WS_G, G_BYTES)
    e2 = o["early2"]
    for j, vm in enumerate((28, 0, None)):
        if j < e2:
            gc.w_prefill(a, [j], 0, 4096, jump)
        if vm is not None:
            a(f"s_waitcnt vmcnt({vm + 16*min(j+1, e2)})")
        a("s_barrier")
    a("; STAMP 5")
    gc.w_prefill(a, range(min(e2, 3), 4), 0, 4096, jump)
    a("v_mov_b32 v61, 0\n; STAMP 3")

    def wait_slot(a):
        a(f"s_mul_i32 s23, s15, 36\ns_mul_i32 s24, s19, 18\ns_add_u32 s23, s23, s24\ns_lshl_b32 s23, s23, 8\ns_add_u32 s23, s23, {F_GW}")
        a("v_and_b32 v60, 3, v1\nv_add_u32 v60, s13, v60\nv_lshlrev_b32 v60, 8, v60")
        poll(a, "l2a", 36, 60, "s23", f"s{S_TAG+1}")
        a("; STAMP 4\nv_min_u32 v60, 17, v1\nv_lshlrev_b32 v60, 8, v60\ns_mov_b32 s53, s23")

    def wait_half(a):
        poll(a, "l2b", 36, 60, "s53", f"s{S_TAG+1}", sleep=o["slpg"])

    def at_dma(a):
        for e in range(12):
            a(f"s_mov_b32 m0, {AT_LDS + 1024*e}\nbuffer_load_dwordx4 v8, s[48:51], s26 offen sc1 lds\ns_add_u32 s26, s26, 32768")

    def at_early(a):
        srd_off(a, 48, S_WS, WS_AT, AT_BYTES)
        a(f"s_lshl_b32 s23, s15, 8\ns_add_u32 s23, s23, {F_CONV}\nbuffer_load_dword v62, v61, s[36:39], s23 offen sc1")
        a("v_lshrrev_b32 v8, 3, v1\nv_lshlrev_b32 v8, 12, v8\nv_and_b32 v9, 7, v1\nv_lshl_add_u32 v8, v9, 4, v8")
        a(f"s_mul_i32 s26, s15, {96*4096}\ns_lshl_b32 s27, s16, 1\ns_add_u32 s26, s26, s27")
        a("s_cmp_eq_u32 s15, 5\ns_cselect_b32 s24, 96, 32\ns_waitcnt vmcnt(0)\nv_readfirstlane_b32 s27, v62")
        a("s_cmp_lg_u32 s27, s24\ns_cbranch_scc1 L_at_skip")
        at_dma(a)
        a("L_at_skip:")
    if o["rot"]:
        gc.loader_after_prefill(a, 36, 0, 4096, "g2", o["aflags"], before_last=at_early, jump=block_jump, wait2=wait_slot, wait8=wait_half)
    else:
        ln_local_wait(a, "lw4", CNT_LDS+8)
        a(f"s_mul_i32 s53, s15, 36\ns_mul_i32 s24, s19, 18\ns_add_u32 s53, s53, s24\ns_lshl_b32 s53, s53, 8\ns_add_u32 s53, s53, {F_GW}")
        a("v_min_u32 v60, 17, v1\nv_lshlrev_b32 v60, 8, v60")
        wait_half(a)
        a("; STAMP 4")
        gc.loader_after_prefill(a, 36*o["rep2"], 0, 4096, "g2", o["aflags"], before_last=at_early, wrap=(HALF2, 36*73728) if o["rep2"] == 2 else None)
    a("s_cmp_eq_u32 s27, s24\ns_cbranch_scc1 L_at_done")
    poll(a, "at", 36, 61, "s23", "s24")
    at_dma(a)
    a("L_at_done:\ns_waitcnt vmcnt(0)\ns_barrier\ns_endpgm")
    a("L_m_helper:\ns_sub_u32 s30, s2, 216\ns_lshr_b32 s30, s30, 3")
    ln_local_wait(a, "lw2")
    if o["tlb"] >= 4:
        M2 = 2 << 20
        items = [(S_W1, k*M2) for k in range(3, 9)] + [(S_W1, W_BYTES_TOTAL - 4)] + [(p, 0) for p in (80, 82, 84, 86, 52, 54)]
        items += [(S_WS, k*M2) for k in range(WS_G//M2 + 1, (WS_END - 1)//M2 + 1)] + [(S_W2, k*M2) for k in range(9)] + [(S_W2, W_BYTES_TOTAL - 4)]
        items += [(48, 0), (48, X_BYTES - 4), (58, 0)]
        for h in range(5):
            a(f"s_cmp_lg_u32 s30, {h}\ns_cbranch_scc1 L_m_st{h}")
            for k, (p, off) in enumerate(items[h::5]):
                a(f"s_add_u32 s8, s{p}, {off:#x}\ns_addc_u32 s9, s{p+1}, 0\ns_load_dword s{12+k}, s[8:9], 0")
            a(f"L_m_st{h}:")
    if o["b1_late"]:
        srd(a, 8, 56, F*2); srd(a, 12, 58, S*2)
        a("v_lshlrev_b32 v5, 7, v1\ns_mov_b32 s23, 8192\nbuffer_load_dword v105, v5, s[8:11], 0 offen\nbuffer_load_dword v106, v5, s[8:11], s23 offen\nbuffer_load_dword v107, v5, s[12:15], 0 offen")
    w1_stream(a, "m1", gc.SRD_W, 30, 5, o["r1"] + 108*o["nB"]//5*4, 2048, o["win2"], short23=o["extra23"])
    a("; STAMP 1")
    srd(a, gc.SRD_W, S_W2, W_BYTES_TOTAL)
    if o["rot"]:
        w2_head(a, "mh", gc.SRD_W, 30, 5, o["win2"])
    w2_stream(a, "m2", gc.SRD_W, 30, 5, 512 if o["rot"] else o["r20"], o["r2"], o["win2"])
    a("; STAMP 2")
    g_pause(a, "gp4", o)
    w2_stream(a, "m4", gc.SRD_W, 30, 8, o["r2"] + 96*o["nC"], 2304, o["win3"])
    if o["x_pf"] is True:
        srd(a, 8, S_X, X_BYTES); x_stream(a, "x4", 8, 30)


def mega(a, name, **opt):
    o = dict(slpg=1, slpx=0, lead=7, dry=False, b1_late=False, lnx=' nt', bias_pf=False, touch_g=True, xwait=True, early_bar=False, extra23=0, r0=0, r20=0, rep1=1, rep2=1, uflags='', rot=False, x_pf=True, ln_lines=False, x_late='tail', late_sig=False, pause=0, xbf=True, rnd1=0, rnd2=0, prio=0, lnw=256, slp=4, touch=True, tlb=4, early2=3, xnt='', ont='', prefill_late=True, r1=384, nB=2, r2=400, nC=0, win1=20, win2=40, win3=40, aflags=" sc1", code_pf=9)
    o.update(opt)
    prefetch.ROT = o["rot"]
    cv.UFLAGS = o["uflags"]
    gc.LEAD = o["lead"]
    a(f".globl {name}\n.p2align 8\n.type {name},@function\n{name}:\nL_m_base:")
    a("s_cmp_ge_u32 s2, 256\ns_cbranch_scc1 L_m_end")
    a(f"s_load_dwordx2 s[{S_X}:{S_X+1}], s[0:1], {KA['x']}\ns_load_dwordx2 s[{S_WS}:{S_WS+1}], s[0:1], {KA['ws']}")
    a(f"s_load_dwordx2 s[{S_W1}:{S_W1+1}], s[0:1], {KA['w1']}\ns_load_dwordx2 s[{S_W2}:{S_W2+1}], s[0:1], {KA['w2']}")
    a("v_lshrrev_b32 v1, 6, v0\nv_readfirstlane_b32 s20, v1\nv_and_b32 v1, 63, v0")
    a("s_cmp_eq_u32 s20, 4\ns_cbranch_scc1 L_m_w4")
    compute_waves(a, o)
    a("L_m_w4:")
    fifth_wave(a, o)
    a("L_m_end:\ns_endpgm\nL_m_last:")


def warm_kernel(a, name, rows, w2rows, main, window=63):
    a(f".globl {name}\n.p2align 8\n.type {name},@function\n{name}:")
    a("s_cmp_ge_u32 s2, 256\ns_cbranch_scc1 L_pre_end")
    if rows >= 0:
        a(f"s_load_dwordx2 s[4:5], s[0:1], {KA['ws']}\ns_load_dwordx2 s[6:7], s[0:1], {KA['x']}\ns_load_dwordx2 s[20:21], s[0:1], {KA['w1']}")
        a(f"s_load_dwordx2 s[22:23], s[0:1], {KA['w2']}\ns_load_dwordx2 s[24:25], s[0:1], {KA['out']}")
        a("v_and_b32 v1, 63, v0\ns_lshr_b32 s30, s2, 3\nv_lshlrev_b32 v4, 20, v1\ns_waitcnt lgkmcnt(0)")
        srd(a, 8, 4, WS_FLG + FLG_BYTES); srd(a, 12, 6, X_BYTES); srd(a, 16, 22, W_BYTES_TOTAL); srd(a, 32, 20, W_BYTES_TOTAL); srd(a, 48, 24, X_BYTES)
        for k, rs in enumerate((8, 12, 16, 48)):
            a(f"buffer_load_dword v{100+k}, v4, s[{rs}:{rs+3}], 0 offen sc1")
        a(f"s_getpc_b64 s[12:13]\nL_pre_pc:\ns_sub_u32 s12, s12, L_pre_pc-L_m_base\ns_subb_u32 s13, s13, 0")
        a("s_mov_b32 s14, L_m_last-L_m_base\ns_mov_b32 s15, 0x20000\nv_lshlrev_b32 v4, 4, v1\ns_lshl_b32 s23, s30, 10")
        a("buffer_load_dwordx4 v[96:99], v4, s[12:15], s23 offen\ns_add_u32 s23, s23, 32768\nbuffer_load_dwordx4 v[96:99], v4, s[12:15], s23 offen")
        w1_stream(a, "pre", 32, 30, 32, 0, rows, window)
        w2_stream(a, "pre", 16, 30, 32, 0, w2rows, window)
    a("L_pre_end:\ns_endpgm")
```

```python
import struct
from asmlib import *
from layout import *
import gemm_core as gc
import mega_ln as ln
import mega_conv as cv
from prefetch import *
import prefetch

AT_LDS = gc.LDS_RING
LN_LDS = 139264
CNT_LDS = LN_LDS + 2*ln.LN_T
LDS_TOTAL = CNT_LDS + 64
S_WS, S_X, S_DBG, S_W1, S_W2 = 4, 6, 94, 96, 98
SPIN = 0x100000
S_TAG = 100
F_SEED = 255 * 256


def f32hex(x):
    return "0x%08x" % struct.unpack("<I", struct.pack("<f", x))[0]


def div6(a, d, r, x):
    a(f"s_mul_i32 s{d}, s{x}, 10923\ns_lshr_b32 s{d}, s{d}, 16\ns_mul_i32 s{r}, s{d}, 6\ns_sub_u32 s{r}, s{x}, s{r}")


def unpk(a, x, p):
    a(f"v_lshlrev_b32 v{x}, 16, v{p}\nv_and_b32 v{x+1}, 0xffff0000, v{p}")


def poll(a, tag, rs, vaddr, soff, target, sleep=1, mask=None):
    a(f"s_mov_b32 s61, {SPIN:#x}\nL_{tag}_poll:\nbuffer_load_dword v62, v{vaddr}, s[{rs}:{rs+3}], {soff} offen sc1")
    a(f"s_sub_u32 s61, s61, 1\ns_cbranch_scc1 L_{tag}_go\ns_waitcnt vmcnt(0)")
    if mask:
        a(f"v_and_b32 v62, {mask:#x}, v62")
    a(f"v_cmp_ne_u32 vcc, {target}, v62")
    a(f"s_cmp_eq_u64 vcc, 0\ns_cbranch_scc1 L_{tag}_go")
    if sleep:
        a(f"s_sleep {sleep}")
    a(f"s_branch L_{tag}_poll\nL_{tag}_go:")


def flags_srd(a, d):
    srd_off(a, d, S_WS, WS_FLG, FLG_BYTES)


def last_wave_signals(a, tag, cnt, rs, soff, word=None, second=None):
    a(f"v_mov_b32 v58, {cnt}\nv_mov_b32 v59, 1\nv_mov_b32 v61, 0\ns_mov_b64 exec, 1\nds_add_rtn_u32 v60, v58, v59\ns_waitcnt lgkmcnt(0)")
    a(f"v_readfirstlane_b32 s23, v60\ns_cmp_lg_u32 s23, 3\ns_cbranch_scc1 L_{tag}_notlast")
    if word:
        a(f"v_mov_b32 v59, {word}\nbuffer_store_dword v59, v61, s[{rs}:{rs+3}], {soff} offen sc1")
    else:
        if second:
            a(f"buffer_atomic_add v59, v61, s[{rs}:{rs+3}], {second} offen sc1")
        a(f"buffer_atomic_add v59, v61, s[{rs}:{rs+3}], {soff} offen sc1")
    a(f"L_{tag}_notlast:\ns_mov_b64 exec, -1")


def ln_local_wait(a, tag, cnt=CNT_LDS+4):
    a(f"v_mov_b32 v58, {cnt}\nL_{tag}:\ns_sleep 2\nds_read_b32 v60, v58\ns_waitcnt lgkmcnt(0)\nv_readfirstlane_b32 s23, v60\ns_cmp_lt_u32 s23, 4\ns_cbranch_scc1 L_{tag}")


def g_pause(a, tag, o):
    if not o["pause"]:
        return
    a(f"s_lshr_b32 s23, s2, 3\ns_mul_i32 s24, s23, 43\ns_lshr_b32 s24, s24, 9\ns_mul_i32 s24, s24, 12\ns_sub_u32 s23, s23, s24\ns_lshl_b32 s23, s23, 8\ns_add_u32 s23, s23, {F_G}")
    a(f"v_mov_b32 v61, 0\ns_mov_b32 s61, {SPIN:#x}\nL_{tag}_poll:\nbuffer_load_dword v62, v61, s[36:39], s23 offen sc1\ns_sub_u32 s61, s61, 1\ns_cbranch_scc1 L_{tag}_go")
    a(f"s_waitcnt vmcnt(0)\nv_readfirstlane_b32 s24, v62\ns_cmp_ge_u32 s24, {o['pause']}\ns_cbranch_scc1 L_{tag}_go\ns_sleep 8\ns_branch L_{tag}_poll\nL_{tag}_go:")


def wait_ln(a, tag, rs, o, base=F_LNW):
    a(f"v_mul_u32_u24 v61, {o['lnw']}, v1\ns_mov_b32 s61, {SPIN:#x}\nL_{tag}_poll:")
    if o["ln_lines"]:
        for k in range(4):
            a(f"s_mov_b32 s62, {F_LNW + k*64*o['lnw']}\nbuffer_load_dword v{180+k}, v61, s[{rs}:{rs+3}], s62 offen sc1")
    else:
        a(f"s_mov_b32 s62, {base}\nbuffer_load_dwordx4 v[180:183], v61, s[{rs}:{rs+3}], s62 offen sc1")
    a(f"s_sub_u32 s61, s61, 1\ns_cbranch_scc1 L_{tag}_go\ns_waitcnt vmcnt(0)")
    a(f"v_xor_b32 v180, s{S_TAG+1}, v180\nv_xor_b32 v181, s{S_TAG+1}, v181\nv_xor_b32 v182, s{S_TAG+1}, v182\nv_xor_b32 v183, s{S_TAG+1}, v183")
    a("v_or3_b32 v180, v180, v181, v182\nv_or_b32 v180, v180, v183\nv_cmp_ne_u32 vcc, 0, v180")
    a(f"s_cmp_eq_u64 vcc, 0\ns_cbranch_scc1 L_{tag}_go\ns_sleep {o['slp']}\ns_branch L_{tag}_poll\nL_{tag}_go:")


def tile1(a):
    a("s_and_b32 s12, s2, 7\ns_lshr_b32 s13, s2, 3\ns_and_b32 s14, s12, 1\ns_mul_i32 s14, s14, 3\ns_add_u32 s13, s13, s14")
    a("s_cmp_ge_u32 s13, 27\ns_cselect_b32 s14, 27, 0\ns_sub_u32 s13, s13, s14\ns_mul_i32 s12, s12, 27\ns_add_u32 s12, s12, s13")
    div6(a, 14, 15, 12)


def tile2(a):
    a("s_lshr_b32 s13, s2, 3")
    div6(a, 12, 15, 13)
    a("s_bfe_u32 s19, s2, 0x10002\ns_and_b32 s13, s2, 3\ns_lshl_b32 s14, s13, 2\ns_add_u32 s14, s14, s12")
    a("s_mul_i32 s13, s13, 9\ns_add_u32 s13, s13, 1\ns_lshr_b32 s13, s13, 1")
    a("s_lshl_b32 s16, s14, 7\ns_lshl_b32 s17, s19, 6\ns_add_u32 s16, s16, s17")


def block_jump(kind):
    cnt, base, dst, step = (54, 56, gc.S_W0, 128*4096) if kind == "w" else (55, 57, gc.S_ACT0, 2*73728)
    return [f"s_add_u32 s{cnt}, s{cnt}, 1", f"s_add_u32 s18, s{cnt}, s12", "s_and_b32 s18, s18, 3", f"s_cmp_lt_u32 s{cnt}, 4",
            f"s_cselect_b32 s18, s18, s{cnt}", "s_add_u32 s18, s18, s13", "s_cmp_ge_u32 s18, 18", "s_cselect_b32 s17, 18, 0",
            "s_sub_u32 s18, s18, s17", f"s_mul_i32 s18, s18, {step}", f"s_add_u32 s{dst}, s18, s{base}"]


def gelu_epilogue(a, rounds, rot):
    c1 = -2.0 * 0.7978845608028654 * 1.4426950408889634
    a(f"s_mov_b32 s48, {f32hex(c1*0.044715)}\ns_mov_b32 s49, s48\nv_mov_b32 v36, {f32hex(c1)}\nv_mov_b32 v37, v36")
    for nu in range(4):
        unpk(a, 20+4*nu, 12+2*nu); unpk(a, 22+4*nu, 13+2*nu)
    a(f"s_lshr_b32 s26, s20, 1\ns_mul_i32 s26, s26, {gc.SLOT}\ns_and_b32 s27, s20, 1\ns_mul_i32 s27, s27, 6144\ns_add_u32 s26, s26, s27\ns_add_u32 s26, s26, {gc.W_BYTES}\nv_add_u32 v38, s26, v7")
    B = 112
    for dl in range(3):
        for pi in range(2):
            src = [(gc.acc(2*pi + (k >> 1), dl) + 2*(k & 1), 20 + 4*(2*pi + (k >> 1)) + 2*(k & 1)) for k in range(4)]
            U = [B + 2*k for k in range(4)]; T = [B + 8 + 2*k for k in range(4)]; P = [B + 16 + k for k in range(4)]
            O = B + 20 + 4*((2*dl + pi) % 2)
            if rounds == 2:
                for k in range(4): a(f"v_cvt_pk_bf16_f32 v{P[k]}, v{src[k][0]}, v{src[k][0]+1}")
                for k in range(4): unpk(a, U[k], P[k])
                for k in range(4): a(f"v_pk_add_f32 {vr(U[k],2)}, {vr(U[k],2)}, {vr(src[k][1],2)}")
            else:
                for k in range(4): a(f"v_pk_add_f32 {vr(U[k],2)}, {vr(src[k][0],2)}, {vr(src[k][1],2)}")
            if rounds >= 1:
                for k in range(4): a(f"v_cvt_pk_bf16_f32 v{P[k]}, v{U[k]}, v{U[k]+1}")
                for k in range(4): unpk(a, U[k], P[k])
            for k in range(4): a(f"v_pk_mul_f32 {vr(T[k],2)}, {vr(U[k],2)}, {vr(U[k],2)}")
            for k in range(4): a(f"v_pk_fma_f32 {vr(T[k],2)}, {vr(T[k],2)}, s[48:49], v[36:37]")
            for k in range(4): a(f"v_pk_mul_f32 {vr(T[k],2)}, {vr(T[k],2)}, {vr(U[k],2)}")
            for k in range(4): a(f"v_exp_f32 v{T[k]}, v{T[k]}\nv_exp_f32 v{T[k]+1}, v{T[k]+1}")
            for k in range(4): a(f"v_pk_add_f32 {vr(T[k],2)}, {vr(T[k],2)}, 1.0 op_sel_hi:[1,0]")
            for k in range(4): a(f"v_rcp_f32 v{T[k]}, v{T[k]}\nv_rcp_f32 v{T[k]+1}, v{T[k]+1}")
            for k in range(4): a(f"v_pk_mul_f32 {vr(U[k],2)}, {vr(U[k],2)}, {vr(T[k],2)}")
            for k in range(4): a(f"v_cvt_pk_bf16_f32 v{O+k}, v{U[k]}, v{U[k]+1}")
            a(f"buffer_store_dwordx4 {vr(O,4)}, v7, s[44:47], s17 offen offset:{1024*pi} sc1")
            if rot:
                a(f"ds_write_b128 v38, {vr(O,4)} offset:{(2*dl + pi)*1024}")
        a("s_add_u32 s17, s17, 2048")


def read_tag(a):
    a(f"s_add_u32 s26, s{S_WS}, {WS_FLG + F_SEED:#x}\ns_addc_u32 s27, s{S_WS+1}, 0\ns_load_dword s{S_TAG+1}, s[26:27], 0")


def make_tag(a):
    a(f"s_mul_i32 s{S_TAG+1}, s{S_TAG+1}, 0x9e3779b1\ns_add_u32 s{S_TAG+1}, s{S_TAG+1}, 0x7f4a7c15\ns_andn2_b32 s{S_TAG}, s{S_TAG+1}, 0xff")


def compute_waves(a, o):
    a("s_waitcnt lgkmcnt(0)")
    ln.ln_issue(a, S_X, o['lnx'], 80 if o['dry'] else 10)
    read_tag(a)
    a(f"s_cmp_lg_u32 s20, 0\ns_cbranch_scc1 L_m_nz\nv_mov_b32 v58, {CNT_LDS}\nv_mov_b32 v60, 0\nv_mov_b32 v61, 0\nv_mov_b32 v62, 0\nv_mov_b32 v63, 0")
    a("ds_write_b128 v58, v[60:63]\nL_m_nz:")
    if o["early_bar"]:
        a("s_waitcnt lgkmcnt(0)\ns_barrier")
    a(f"s_load_dwordx2 s[38:39], s[0:1], {KA['b1']}\ns_load_dwordx8 s[76:83], s[0:1], {KA['lar']}".replace("s[76:83]", "s[80:87]"))
    ln.ln_body(a, S_WS, LN_LDS, CNT_LDS, "ln", not o["early_bar"], o["dry"])
    if not o["split_xn"]:
        ln.xn_stores(a, "ln")
    flags_srd(a, 40)
    make_tag(a)
    a("v_mov_b32 v61, 0\ns_cmp_lg_u32 s20, 3\ns_cbranch_scc1 L_m_nozero\ns_sub_u32 s23, s2, 28\ns_cmp_ge_u32 s23, 6\ns_cbranch_scc1 L_m_nozero")
    a("s_lshl_b32 s23, s2, 8\ns_mov_b64 exec, 1\nbuffer_store_dword v61, v61, s[40:43], s23 offen sc1\ns_mov_b64 exec, -1\nL_m_nozero:")
    if o["ln_lines"]:
        a(f"s_mul_i32 s24, s2, {o['lnw']}\ns_add_u32 s24, s24, {F_LNW}")
    else:
        a(f"s_and_b32 s24, s2, 63\ns_mul_i32 s24, s24, {o['lnw']}\ns_lshr_b32 s23, s2, 6\ns_lshl_b32 s23, s23, 2\ns_add_u32 s24, s24, s23\ns_add_u32 s24, s24, {F_LNW}")
    a("s_waitcnt vmcnt(0)\n; STAMP 1")
    last_wave_signals(a, "lnd", CNT_LDS + 4, 40, "s24", word=f"s{S_TAG+1}")
    if o["split_xn"]:
        ln.xn_stores(a, "ln")
        a(f"s_add_u32 s24, s24, {F_XNW - F_LNW}\ns_waitcnt vmcnt(0)")
        last_wave_signals(a, "xnd", CNT_LDS + 12, 40, "s24", word=f"s{S_TAG+1}")
    a("s_cmp_ge_u32 s2, 216\ns_cbranch_scc1 L_m_conv")
    a("s_lshr_b32 s29, s2, 3\ns_lshl_b32 s29, s29, 2\ns_add_u32 s29, s29, s20")
    srd(a, 32, S_W1, W_BYTES_TOTAL)
    w1_burst(a, 32, 29, 108, o["r1"]//4*5, o["nB"])
    srd(a, 32, S_W2, W_BYTES_TOTAL)
    tile1(a)
    gc.lane_ids(a)
    gc.compute_setup(a, "A")
    srd(a, 8, 38, F*2)
    a(f"s_lshr_b32 s16, s20, 1\ns_lshl_b32 s17, s16, 7\ns_lshl_b32 s18, s14, 8\ns_add_u32 s17, s17, s18\nv_lshlrev_b32 v9, 3, v3")
    a("s_mov_b32 s22, s17")

    def b1_loads(a):
        for nu in range(4):
            a(f"buffer_load_dwordx2 {vr(12+2*nu,2)}, v9, s[8:11], s22 offen offset:{32*nu}")
    if not o["b1_late"]:
        b1_loads(a)
    for i in range(48):
        a(f"v_mov_b32 v{gc.V_ACC+i}, 0")
    srd_off(a, 44, S_WS, WS_G, G_BYTES)
    a("s_and_b32 s17, s20, 1\ns_mul_i32 s17, s17, 3\ns_mul_i32 s18, s15, 6\ns_add_u32 s17, s17, s18\ns_lshl_b32 s17, s17, 11")
    a("s_lshl_b32 s18, s14, 1\ns_add_u32 s18, s18, s16\ns_mul_i32 s18, s18, 73728\ns_add_u32 s17, s17, s18")
    a(f"s_mul_i32 s24, s15, 36\ns_add_u32 s24, s24, s14\ns_lshl_b32 s24, s24, 8\ns_add_u32 s24, s24, {F_GW}")
    a(f"s_load_dwordx4 s[52:55], s[0:1], {KA['b2']}")
    gc.compute_main(a, 32*o["rep1"], "A", False, "g1", last_barrier=True, st=(5, 2), tail_hook=b1_loads if o["b1_late"] else None)
    if o["rep1"] == 2:
        for i in range(48):
            a(f"v_mul_f32 v{gc.V_ACC+i}, 0.5, v{gc.V_ACC+i}")
    a("s_waitcnt vmcnt(0)")
    gelu_epilogue(a, o['rnd1'], o['rot'])
    a("s_cmp_lt_u32 s2, 192\ns_cbranch_scc1 L_m_g2\ns_waitcnt vmcnt(0)")
    last_wave_signals(a, "gd", CNT_LDS + 8, 40, "s24", word=f"s{S_TAG+1}")
    a("; STAMP 3\ns_branch L_m_conv1\nL_m_g2:")
    tile2(a)
    gc.compute_setup(a, "B", s_kh=19)
    srd(a, 32, S_X, X_BYTES); srd(a, 28, 52, S*2)
    a("s_lshr_b32 s17, s20, 1\ns_lshl_b32 s17, s17, 5\ns_add_u32 s17, s17, s16")
    a("s_mul_i32 s18, s15, 96\ns_and_b32 s26, s20, 1\ns_mul_i32 s26, s26, 48\ns_add_u32 s18, s18, s26")
    a("v_mul_u32_u24 v58, 1152, v2\nv_lshl_add_u32 v58, v3, 3, v58\nv_lshlrev_b32 v9, 1, v2")
    a("s_mul_i32 s56, s17, 1152\ns_lshl_b32 s26, s18, 1\ns_add_u32 s56, s56, s26\ns_add_u32 s57, s56, 18432\ns_lshl_b32 s26, s17, 1")
    a("s_mov_b32 s22, s26\nv_mov_b32 v39, v58")
    for i in range(48):
        a(f"v_mov_b32 v{gc.V_ACC+i}, 0")
    a("v_bfe_u32 v4, v1, 2, 2\nv_lshl_add_u32 v4, v3, 2, v4\nv_lshlrev_b32 v4, 7, v4\nv_and_b32 v5, 3, v1\nv_lshl_add_u32 v4, v5, 3, v4")
    a(f"s_and_b32 s26, s20, 1\ns_mul_i32 s26, s26, 6144\ns_lshr_b32 s27, s20, 1\ns_lshl_b32 s27, s27, 6\ns_add_u32 s26, s26, s27\ns_add_u32 s26, s26, {AT_LDS}\nv_add_u32 v59, s26, v4")
    a("v_mov_b32 v31, v59")
    a("s_xor_b32 s58, s2, 4\ns_lshl_b32 s26, s20, 12\ns_lshl_b32 s59, s58, 14\ns_add_u32 s59, s59, s26\ns_lshl_b32 s60, s2, 14\ns_add_u32 s60, s60, s26")
    assert o["xbf"]

    def x_loads(a):
        for nu in range(2):
            for dl in range(3):
                a(f"buffer_load_dwordx2 {vr(10+2*(3*nu+dl),2)}, v39, s[32:35], s{56+nu} offen offset:{32*dl}{o['xnt']}")
            a(f"buffer_load_ushort v{22+nu}, v9, s[28:31], s22 offen offset:{32*nu}")

    def publish_g(a):
        a("s_waitcnt vmcnt(0)")
        last_wave_signals(a, "gd2", CNT_LDS + 8, 40, "s24", word=f"s{S_TAG+1}")
        a("; STAMP 3\n; SWAIT")
        if not o["x_late"]:
            x_loads(a)

    if o["late_sig"]:
        gc.compute_main(a, 36, "B", True, "g2", st=(5, 4), first_stage1=publish_g)
    else:
        publish_g(a)
        gc.compute_main(a, 36*o["rep2"], "B", True, "g2", st=(5, 4), tail_hook=x_loads if o["x_late"] == "tail" else None)
        if o["rep2"] == 2:
            for i in range(48):
                a(f"v_mul_f32 v{gc.V_ACC+i}, 0.5, v{gc.V_ACC+i}")
    srd_off(a, 8, S_WS, WS_XCH, XCH_BYTES); srd(a, 44, 54, X_BYTES)
    a("v_mov_b32 v58, v39\nv_mov_b32 v59, v31")
    a("; STAMP 5")
    SN = 172
    NG = 4 if o["xbf"] else 8
    for k in range(NG):
        for m in range(3):
            if o["xbf"]:
                a(f"v_cvt_pk_bf16_f32 v{SN+4*k+m}, v{gc.V_ACC+24+6*k+2*m}, v{gc.V_ACC+25+6*k+2*m}")
            else:
                a(f"v_mov_b32 v{SN+4*k+m}, v{gc.V_ACC+24+3*k+m}")
        a(f"v_mov_b32 v{SN+4*k+3}, s{S_TAG+1}")
        a(f"buffer_store_dwordx4 {vr(SN+4*k,4)}, v7, s[8:11], s59 offen sc1\ns_add_u32 s59, s59, 1024")
    if o["x_late"] is True:
        x_loads(a)
    a("s_barrier")
    AR, PF = 112, 124
    for nu in range(2):
        for dl in range(3):
            a(f"ds_read_b64_tr_b16 {vr(AR+2*(3*nu+dl),2)}, v59 offset:{2048*dl + 32*nu}")
    a(f"s_waitcnt vmcnt({0 if o['x_late'] is True else NG})\nv_lshlrev_b32 v22, 16, v22\nv_lshlrev_b32 v24, 16, v23\ns_waitcnt lgkmcnt(0)")
    for t in range(6):
        for h in range(2):
            unpk(a, 26, 10+2*t+h); unpk(a, 28, AR+2*t+h)
            if o["rnd2"]:
                a("v_pk_add_f32 v[26:27], v[26:27], v[28:29]\nv_cvt_pk_bf16_f32 v30, v26, v27")
                unpk(a, PF+4*t+2*h, 30)
            else:
                b = gc.V_ACC + 4*t + 2*h
                a(f"v_pk_add_f32 v[26:27], v[26:27], v[28:29]\nv_pk_add_f32 {vr(b,2)}, {vr(b,2)}, {vr(22+2*(t//3),2)} op_sel_hi:[1,0]")
                a(f"v_pk_add_f32 {vr(b,2)}, {vr(b,2)}, v[26:27]")
    RX = 204
    if o["xwait"]:
        a("s_waitcnt vmcnt(0)")
    a(f"s_mov_b32 s61, {SPIN:#x}\ns_add_u32 s62, s60, 4096\nL_xch_poll:")
    for k in range(NG):
        a(f"buffer_load_dwordx4 {vr(RX+4*k,4)}, v7, s[8:11], s{60 + 2*(k >> 2)} offen offset:{1024*(k & 3)} sc1")
    a(f"s_sub_u32 s61, s61, 1\ns_cbranch_scc1 L_xch_go\ns_waitcnt vmcnt(0)\nv_xor_b32 v4, s{S_TAG+1}, v{RX+3}")
    for k in range(1, NG):
        a(f"v_xor_b32 v5, s{S_TAG+1}, v{RX+4*k+3}\nv_or_b32 v4, v4, v5")
    a("v_cmp_ne_u32 vcc, 0, v4\ns_cmp_eq_u64 vcc, 0\ns_cbranch_scc1 L_xch_go")
    if o["slpx"]:
        a(f"s_sleep {o['slpx']}")
    a("s_branch L_xch_poll\nL_xch_go:")
    for t in range(6):
        nu, dl = divmod(t, 3)
        b, p = gc.V_ACC + 4*t, PF + 4*t
        if o["xbf"]:
            for h in range(2):
                k, m = divmod(2*t + h, 3)
                unpk(a, 26+2*h, RX+4*k+m)
            for h in range(2): a(f"v_pk_add_f32 {vr(b+2*h,2)}, {vr(b+2*h,2)}, {vr(26+2*h,2)}")
        else:
            for e in range(4):
                k, m = divmod(4*t + e, 3)
                a(f"v_add_f32 v{b+e}, v{b+e}, v{RX+4*k+m}")
        if o['rnd2']:
            for h in range(2): a(f"v_cvt_pk_bf16_f32 v{26+h}, v{b+2*h}, v{b+2*h+1}")
            for h in range(2): unpk(a, b+2*h, 26+h)
            for h in range(2): a(f"v_pk_add_f32 {vr(b+2*h,2)}, {vr(b+2*h,2)}, {vr(22+2*nu,2)} op_sel_hi:[1,0]")
            for h in range(2): a(f"v_cvt_pk_bf16_f32 v{26+h}, v{b+2*h}, v{b+2*h+1}")
            for h in range(2): unpk(a, b+2*h, 26+h)
            for h in range(2): a(f"v_pk_add_f32 {vr(b+2*h,2)}, {vr(b+2*h,2)}, {vr(p+2*h,2)}")
        for h in range(2): a(f"v_cvt_pk_bf16_f32 v{10+2*t+h}, v{b+2*h}, v{b+2*h+1}")
        a(f"buffer_store_dwordx2 {vr(10+2*t,2)}, v58, s[44:47], s{56+nu} offen offset:{32*dl}{o['ont']}")
    a("s_endpgm")
    a("L_m_conv1:\ns_mov_b32 s30, 1\ns_sub_u32 s31, s2, 72\ns_lshl_b32 s31, s31, 2\ns_add_u32 s31, s31, s20\ns_branch L_m_conv2")
    a("L_m_conv:\ns_mov_b32 s30, 3\ns_sub_u32 s31, s2, 216\ns_lshl_b32 s31, s31, 2\ns_add_u32 s31, s31, s20\ns_mul_i32 s31, s31, 3\nL_m_conv2:")
    a("s_mul_i32 s29, s31, 683\ns_lshr_b32 s29, s29, 16")
    a(f"s_load_dwordx4 s[32:35], s[0:1], {KA['ldt']}\ns_waitcnt lgkmcnt(0)")
    cv.param_loads(a, 80, 32, 34)

    def signal(a):
        a("s_lshl_b32 s36, s29, 8")
        a(f"s_add_u32 s36, s36, {F_CONV}\nv_mov_b32 v4, 1\nv_mov_b32 v5, 0\ns_mov_b64 exec, 1\nbuffer_atomic_add v4, v5, s[8:11], s36 offen sc1")
    flags_srd(a, 8)
    cv.conv_role(a, "cv", S_WS, lambda a, t: wait_ln(a, "cvln" + t, 8, o, F_XNW if o["split_xn"] else F_LNW), signal)
    a("s_endpgm")


def fifth_wave(a, o):
    if o["prio"]:
        a(f"s_setprio {o['prio']}")
    a(f"s_load_dwordx2 s[48:49], s[0:1], {KA['out']}\ns_load_dwordx8 s[80:87], s[0:1], {KA['lar']}\ns_load_dwordx4 s[52:55], s[0:1], {KA['ldt']}")
    a(f"s_load_dwordx2 s[56:57], s[0:1], {KA['b1']}\ns_load_dwordx2 s[58:59], s[0:1], {KA['b2']}")
    a("s_waitcnt lgkmcnt(0)")
    flags_srd(a, 36)
    read_tag(a)
    if o["tlb"] >= 4:
        srd(a, 8, S_WS, WS_G); srd(a, 16, S_W1, 5 << 20)
        a("v_lshlrev_b32 v4, 21, v1\nbuffer_load_dword v100, v4, s[8:11], 0 offen sc1\nbuffer_load_dword v104, v4, s[16:19], 0 offen")
        srd(a, 8, 56, 4)
        a("buffer_load_dword v105, v4, s[8:11], 0 offen")
    elif o["tlb"]:
        srd(a, 8, S_WS, WS_END); srd(a, 16, S_W2, W_BYTES_TOTAL)
        a("v_lshlrev_b32 v4, 20, v1\nbuffer_load_dword v100, v4, s[8:11], 0 offen sc1\nbuffer_load_dword v101, v4, s[16:19], 0 offen")
        srd(a, 8, 48, X_BYTES); srd(a, 16, S_W1, W_BYTES_TOTAL)
        a("buffer_load_dword v102, v4, s[8:11], 0 offen")
        if o["tlb"] >= 2:
            a("buffer_load_dword v104, v4, s[16:19], 0 offen")
            small = [80, 82, 84, 86, 52, 54, 56, 58]
            for k, p in enumerate(small):
                if o["tlb"] == 3:
                    a(f"s_bfe_u32 s23, s2, 0x30003\ns_cmp_lg_u32 s23, {k}\ns_cbranch_scc1 L_m_tl{k}")
                if k < 6 or not o["bias_pf"]:
                    srd(a, 8, p, 4)
                    a(f"buffer_load_dword v{105+k}, v4, s[8:11], 0 offen")
                else:
                    srd(a, 8, p, F*2 if k == 6 else S*2)
                    a(f"v_lshlrev_b32 v5, 7, v1\nbuffer_load_dword v{105+k}, v5, s[8:11], 0 offen")
                    if k == 6:
                        a("s_mov_b32 s23, 8192\nbuffer_load_dword v113, v5, s[8:11], s23 offen")
                a(f"L_m_tl{k}:")
    if o["touch"]:
        a(f"s_cmp_eq_u32 s2, 5\ns_cselect_b32 s23, {F_XNW}, {F_LNW}".replace(f"{F_XNW}, {F_LNW}", f"{F_XNW - F_LNW}, 0") + f"\ns_add_u32 s23, s23, {F_LNW}")
        a(f"s_mul_i32 s24, s2, 13108\ns_lshr_b32 s24, s24, 16\ns_mul_i32 s24, s24, 5\ns_cmp_lg_u32 s24, s2\ns_cbranch_scc1 L_m_notouch")
        a(f"s_cmp_gt_u32 s2, 5\ns_cbranch_scc1 L_m_notouch\nv_mul_u32_u24 v5, {o['lnw']}, v1\nbuffer_load_dword v103, v5, s[36:39], s23 offen\nL_m_notouch:")
    if o["touch_g"]:
        a(f"s_sub_u32 s23, s2, 1\ns_cmp_ge_u32 s23, 4\ns_cbranch_scc1 L_m_notouch2\nv_lshlrev_b32 v5, 8, v1\ns_lshl_b32 s23, s23, 14\ns_add_u32 s23, s23, {F_GW}")
        a("buffer_load_dword v103, v5, s[36:39], s23 offen\nL_m_notouch2:")
    srd(a, gc.SRD_W, S_W1, W_BYTES_TOTAL)
    if o["early_bar"]:
        a("s_barrier")
    a("s_lshr_b32 s30, s2, 3")
    if o["code_pf"]:
        a("s_getpc_b64 s[12:13]\nL_m_pc:\ns_sub_u32 s12, s12, L_m_pc-L_m_base\ns_subb_u32 s13, s13, 0")
        a("s_mov_b32 s14, L_m_last-L_m_base\ns_mov_b32 s15, 0x20000\nv_lshlrev_b32 v4, 4, v1\ns_lshl_b32 s23, s30, 10")
        a("buffer_load_dwordx4 v[96:99], v4, s[12:15], s23 offen\ns_add_u32 s23, s23, 32768\nbuffer_load_dwordx4 v[96:99], v4, s[12:15], s23 offen")
    w1_stream(a, "m0", gc.SRD_W, 30, 32, o["r0"], o["r1"], o["win1"])
    if o["extra23"]:
        a("s_and_b32 s23, s2, 6\ns_cmp_lg_u32 s23, 2\ns_cbranch_scc1 L_m_nox23")
        w1_stream(a, "m23", gc.SRD_W, 30, 32, 2048 - o["extra23"], 2048, o["win1"])
        a("L_m_nox23:")
    a("s_waitcnt lgkmcnt(0)")
    make_tag(a)
    if not o["early_bar"]:
        a("s_barrier")
    a("; STAMP 0\ns_cmp_ge_u32 s2, 216\ns_cbranch_scc1 L_m_helper")
    tile1(a)
    gc.lane_ids(a)
    a(f"s_mul_i32 s{gc.S_ACT0}, s15, 12288\ns_lshl_b32 s{gc.S_W0}, s14, 8")
    gc.loader_setup(a, 0, 9216, "A")
    srd_off(a, gc.SRD_ACT, S_WS, WS_HT, HT_BYTES)
    ln_local_wait(a, "lw1")
    a("; STAMP 0")
    gc.w_prefill(a, range(4), 0, 9216)
    a("; STAMP 1")
    wait_ln(a, "l1", 36, o)
    a(f"; STAMP 2\ns_cmp_lg_u32 s2, 0\ns_cbranch_scc1 L_m_noseed\nv_mov_b32 v4, s{S_TAG+1}\nv_mov_b32 v5, {F_SEED}\ns_mov_b64 exec, 1")
    a("buffer_store_dword v4, v5, s[36:39], 0 offen sc1\ns_mov_b64 exec, -1\nL_m_noseed:")
    gc.loader_after_prefill(a, 32*o["rep1"], 0, 9216, "g1", o["aflags"], tail=lambda a: None, wrap=(2048*9216, 32*73728) if o["rep1"] == 2 else None)
    srd(a, gc.SRD_W, S_W2, W_BYTES_TOTAL)
    a("s_cmp_lt_u32 s2, 192\ns_cbranch_scc1 L_m_l2")
    a("s_waitcnt vmcnt(28)\ns_barrier\ns_waitcnt vmcnt(0)\ns_barrier\ns_barrier\ns_sub_u32 s30, s2, 152\ns_lshr_b32 s30, s30, 3")
    ln_local_wait(a, "lw3", CNT_LDS+8)
    if o["x_pf"] == "early":
        srd(a, 8, S_X, X_BYTES); a("s_sub_u32 s31, s30, 5\ns_mul_i32 s31, s31, 3")
        for k in range(3):
            if k == 2:
                a("s_cmp_eq_u32 s31, 8\ns_cbranch_scc1 L_m_nox")
            x_stream(a, f"xe{k}", 8, 31)
            a("s_add_u32 s31, s31, 1")
        a("L_m_nox:")
    g_pause(a, "gp3", o)
    w2_stream(a, "m3", gc.SRD_W, 30, 8, o["r2"] + 96*o["nC"], 2304, o["win3"])
    if o["x_pf"] is True:
        srd(a, 8, S_X, X_BYTES); x_stream(a, "x3", 8, 30)
    a("s_endpgm\nL_m_l2:")
    tile2(a)
    a(f"s_mul_i32 s57, s15, 12288\ns_mul_i32 s18, s19, {36*73728}\ns_add_u32 s57, s57, s18")
    a(f"s_lshl_b32 s56, s14, 8\ns_mul_i32 s18, s19, {HALF2}\ns_add_u32 s56, s56, s18\ns_mov_b32 s54, -1\ns_mov_b32 s55, -1")
    jump = block_jump if o["rot"] else None
    if o["rot"]:
        a.extend(block_jump("w") + block_jump("a"))
    else:
        a(f"s_mov_b32 s{gc.S_W0}, s56\ns_mov_b32 s{gc.S_ACT0}, s57")
    gc.loader_setup(a, 0, 4096, "B")
    srd_off(a, gc.SRD_ACT, S_WS, WS_G, G_BYTES)
    e2 = o["early2"]
    for j, vm in enumerate((28, 0, None)):
        if j < e2:
            gc.w_prefill(a, [j], 0, 4096, jump)
        if vm is not None:
            a(f"s_waitcnt vmcnt({vm + 16*min(j+1, e2)})")
        a("s_barrier")
    a("; STAMP 5")
    gc.w_prefill(a, range(min(e2, 3), 4), 0, 4096, jump)
    a("v_mov_b32 v61, 0\n; STAMP 3")

    def wait_slot(a):
        a(f"s_mul_i32 s23, s15, 36\ns_mul_i32 s24, s19, 18\ns_add_u32 s23, s23, s24\ns_lshl_b32 s23, s23, 8\ns_add_u32 s23, s23, {F_GW}")
        a("v_and_b32 v60, 3, v1\nv_add_u32 v60, s13, v60\nv_lshlrev_b32 v60, 8, v60")
        poll(a, "l2a", 36, 60, "s23", f"s{S_TAG+1}")
        a("; STAMP 4\nv_min_u32 v60, 17, v1\nv_lshlrev_b32 v60, 8, v60\ns_mov_b32 s53, s23")

    def wait_half(a):
        poll(a, "l2b", 36, 60, "s53", f"s{S_TAG+1}", sleep=o["slpg"])

    def at_dma(a):
        for e in range(12):
            a(f"s_mov_b32 m0, {AT_LDS + 1024*e}\nbuffer_load_dwordx4 v8, s[48:51], s26 offen sc1 lds\ns_add_u32 s26, s26, 32768")

    def at_early(a):
        srd_off(a, 48, S_WS, WS_AT, AT_BYTES)
        a(f"s_lshl_b32 s23, s15, 8\ns_add_u32 s23, s23, {F_CONV}\nbuffer_load_dword v62, v61, s[36:39], s23 offen sc1")
        a("v_lshrrev_b32 v8, 3, v1\nv_lshlrev_b32 v8, 12, v8\nv_and_b32 v9, 7, v1\nv_lshl_add_u32 v8, v9, 4, v8")
        a(f"s_mul_i32 s26, s15, {96*4096}\ns_lshl_b32 s27, s16, 1\ns_add_u32 s26, s26, s27")
        a("s_cmp_eq_u32 s15, 5\ns_cselect_b32 s24, 96, 32\ns_waitcnt vmcnt(0)\nv_readfirstlane_b32 s27, v62")
        a("s_cmp_lg_u32 s27, s24\ns_cbranch_scc1 L_at_skip")
        at_dma(a)
        a("L_at_skip:")
    if o["rot"]:
        gc.loader_after_prefill(a, 36, 0, 4096, "g2", o["aflags"], before_last=at_early, jump=block_jump, wait2=wait_slot, wait8=wait_half)
    else:
        ln_local_wait(a, "lw4", CNT_LDS+8)
        a(f"s_mul_i32 s53, s15, 36\ns_mul_i32 s24, s19, 18\ns_add_u32 s53, s53, s24\ns_lshl_b32 s53, s53, 8\ns_add_u32 s53, s53, {F_GW}")
        a("v_min_u32 v60, 17, v1\nv_lshlrev_b32 v60, 8, v60")
        wait_half(a)
        a("; STAMP 4")
        gc.loader_after_prefill(a, 36*o["rep2"], 0, 4096, "g2", o["aflags"], before_last=at_early, wrap=(HALF2, 36*73728) if o["rep2"] == 2 else None)
    a("s_cmp_eq_u32 s27, s24\ns_cbranch_scc1 L_at_done")
    poll(a, "at", 36, 61, "s23", "s24")
    at_dma(a)
    a("L_at_done:\ns_waitcnt vmcnt(0)\ns_barrier\ns_endpgm")
    a("L_m_helper:\ns_sub_u32 s30, s2, 216\ns_lshr_b32 s30, s30, 3")
    ln_local_wait(a, "lw2", CNT_LDS + (12 if o["split_xn"] else 4))
    if o["tlb"] >= 4:
        M2 = 2 << 20
        items = [(S_W1, k*M2) for k in range(3, 9)] + [(S_W1, W_BYTES_TOTAL - 4)] + [(p, 0) for p in (80, 82, 84, 86, 52, 54)]
        items += [(S_WS, k*M2) for k in range(WS_G//M2 + 1, (WS_END - 1)//M2 + 1)] + [(S_W2, k*M2) for k in range(9)] + [(S_W2, W_BYTES_TOTAL - 4)]
        items += [(48, 0), (48, X_BYTES - 4), (58, 0)]
        for h in range(5):
            a(f"s_cmp_lg_u32 s30, {h}\ns_cbranch_scc1 L_m_st{h}")
            for k, (p, off) in enumerate(items[h::5]):
                a(f"s_add_u32 s8, s{p}, {off:#x}\ns_addc_u32 s9, s{p+1}, 0\ns_load_dword s{12+k}, s[8:9], 0")
            a(f"L_m_st{h}:")
    if o["b1_late"]:
        srd(a, 8, 56, F*2); srd(a, 12, 58, S*2)
        a("v_lshlrev_b32 v5, 7, v1\ns_mov_b32 s23, 8192\nbuffer_load_dword v105, v5, s[8:11], 0 offen\nbuffer_load_dword v106, v5, s[8:11], s23 offen\nbuffer_load_dword v107, v5, s[12:15], 0 offen")
    w1_stream(a, "m1", gc.SRD_W, 30, 5, o["r1"] + 108*o["nB"]//5*4, 2048, o["win2"], short23=o["extra23"])
    a("; STAMP 1")
    srd(a, gc.SRD_W, S_W2, W_BYTES_TOTAL)
    if o["rot"]:
        w2_head(a, "mh", gc.SRD_W, 30, 5, o["win2"])
    w2_stream(a, "m2", gc.SRD_W, 30, 5, 512 if o["rot"] else o["r20"], o["r2"], o["win2"])
    a("; STAMP 2")
    g_pause(a, "gp4", o)
    w2_stream(a, "m4", gc.SRD_W, 30, 8, o["r2"] + 96*o["nC"], 2304, o["win3"])
    if o["x_pf"] is True:
        srd(a, 8, S_X, X_BYTES); x_stream(a, "x4", 8, 30)


def mega(a, name, **opt):
    o = dict(split_xn=True, slpg=1, slpx=0, lead=7, dry=False, b1_late=False, lnx=' nt', bias_pf=False, touch_g=True, xwait=True, early_bar=False, extra23=0, r0=0, r20=0, rep1=1, rep2=1, uflags='', rot=False, x_pf=True, ln_lines=False, x_late='tail', late_sig=False, pause=0, xbf=True, rnd1=0, rnd2=0, prio=0, lnw=256, slp=4, touch=True, tlb=4, early2=3, xnt='', ont='', prefill_late=True, r1=384, nB=2, r2=400, nC=0, win1=20, win2=40, win3=40, aflags=" sc1", code_pf=9)
    o.update(opt)
    prefetch.ROT = o["rot"]
    cv.UFLAGS = o["uflags"]
    gc.LEAD = o["lead"]
    a(f".globl {name}\n.p2align 8\n.type {name},@function\n{name}:\nL_m_base:")
    a("s_cmp_ge_u32 s2, 256\ns_cbranch_scc1 L_m_end")
    a(f"s_load_dwordx2 s[{S_X}:{S_X+1}], s[0:1], {KA['x']}\ns_load_dwordx2 s[{S_WS}:{S_WS+1}], s[0:1], {KA['ws']}")
    a(f"s_load_dwordx2 s[{S_W1}:{S_W1+1}], s[0:1], {KA['w1']}\ns_load_dwordx2 s[{S_W2}:{S_W2+1}], s[0:1], {KA['w2']}")
    a("v_lshrrev_b32 v1, 6, v0\nv_readfirstlane_b32 s20, v1\nv_and_b32 v1, 63, v0")
    a("s_cmp_eq_u32 s20, 4\ns_cbranch_scc1 L_m_w4")
    compute_waves(a, o)
    a("L_m_w4:")
    fifth_wave(a, o)
    a("L_m_end:\ns_endpgm\nL_m_last:")


def warm_kernel(a, name, rows, w2rows, main, window=63):
    a(f".globl {name}\n.p2align 8\n.type {name},@function\n{name}:")
    a("s_cmp_ge_u32 s2, 256\ns_cbranch_scc1 L_pre_end")
    if rows >= 0:
        a(f"s_load_dwordx2 s[4:5], s[0:1], {KA['ws']}\ns_load_dwordx2 s[6:7], s[0:1], {KA['x']}\ns_load_dwordx2 s[20:21], s[0:1], {KA['w1']}")
        a(f"s_load_dwordx2 s[22:23], s[0:1], {KA['w2']}\ns_load_dwordx2 s[24:25], s[0:1], {KA['out']}")
        a("v_and_b32 v1, 63, v0\ns_lshr_b32 s30, s2, 3\nv_lshlrev_b32 v4, 20, v1\ns_waitcnt lgkmcnt(0)")
        srd(a, 8, 4, WS_FLG + FLG_BYTES); srd(a, 12, 6, X_BYTES); srd(a, 16, 22, W_BYTES_TOTAL); srd(a, 32, 20, W_BYTES_TOTAL); srd(a, 48, 24, X_BYTES)
        for k, rs in enumerate((8, 12, 16, 48)):
            a(f"buffer_load_dword v{100+k}, v4, s[{rs}:{rs+3}], 0 offen sc1")
        a(f"s_getpc_b64 s[12:13]\nL_pre_pc:\ns_sub_u32 s12, s12, L_pre_pc-L_m_base\ns_subb_u32 s13, s13, 0")
        a("s_mov_b32 s14, L_m_last-L_m_base\ns_mov_b32 s15, 0x20000\nv_lshlrev_b32 v4, 4, v1\ns_lshl_b32 s23, s30, 10")
        a("buffer_load_dwordx4 v[96:99], v4, s[12:15], s23 offen\ns_add_u32 s23, s23, 32768\nbuffer_load_dwordx4 v[96:99], v4, s[12:15], s23 offen")
        w1_stream(a, "pre", 32, 30, 32, 0, rows, window)
        w2_stream(a, "pre", 16, 30, 32, 0, w2rows, window)
    a("L_pre_end:\ns_endpgm")
```

```python
from asmlib import *
from layout import *

PITCH = 1216
LN_T = 8 * PITCH
X = 20
T = 40


def half_sum(a, v, t):
    for c in ("row_ror:1", "row_ror:2", "row_ror:4", "row_ror:8"):
        a(f"v_add_f32_dpp v{v}, v{v}, v{v} {c} row_mask:0xf bank_mask:0xf")
    a(f"v_mov_b32 v{t}, v{v}\nv_permlane16_swap_b32 v{t}, v{v}\nv_add_f32 v{v}, v{v}, v{t}")


def unpack(a, p, x, n=9):
    for k in range(n):
        a(f"v_lshlrev_b32 v{x+2*k}, 16, v{p+k}\nv_and_b32 v{x+2*k+1}, 0xffff0000, v{p+k}")


def rnd(a, v):
    a(f"v_cvt_pk_bf16_f32 v{v}, v{v}, v{v}\nv_lshlrev_b32 v{v}, 16, v{v}")


def layernorm(a, p, one_pass=False):
    pr = lambda b: vr(b, 2)
    for k in range(4):
        a(f"v_pk_add_f32 {pr(T+2*k)}, {pr(X+4*k)}, {pr(X+4*k+2)}")
    a(f"v_pk_add_f32 {pr(T)}, {pr(T)}, {pr(T+2)}\nv_pk_add_f32 {pr(T+4)}, {pr(T+4)}, {pr(T+6)}")
    a(f"v_pk_add_f32 {pr(T)}, {pr(T)}, {pr(X+16)}\nv_pk_add_f32 {pr(T)}, {pr(T)}, {pr(T+4)}\nv_add_f32 v58, v{T}, v{T+1}")
    sub = [f"v_pk_add_f32 {pr(T+2*k)}, {pr(X+2*k)}, v[60:61] op_sel_hi:[1,0] neg_lo:[0,1] neg_hi:[0,1]" for k in range(9)]
    dpp = lambda v, c: a(f"v_add_f32_dpp v{v}, v{v}, v{v} {c} row_mask:0xf bank_mask:0xf")
    if one_pass:
        sq = [f"v_pk_mul_f32 v[74:75], {pr(X)}, {pr(X)}", f"v_pk_mul_f32 v[62:63], {pr(X+2)}, {pr(X+2)}"]
        for k in range(2, 9):
            d = "v[74:75]" if k % 2 == 0 else "v[62:63]"
            sq.append(f"v_pk_fma_f32 {d}, {pr(X+2*k)}, {pr(X+2*k)}, {d}")
        sq += ["v_pk_add_f32 v[74:75], v[74:75], v[62:63]", "v_add_f32 v74, v74, v75"]
        a.extend(sq[:2])
        for i, c in enumerate(("row_ror:1", "row_ror:2", "row_ror:4", "row_ror:8")):
            dpp(58, c); a.extend(sq[2+2*i:4+2*i])
        a("v_mov_b32 v59, v58")
        a.extend(sq[10:])
        a("s_nop 0\nv_permlane16_swap_b32 v59, v58")
        dpp(74, "row_ror:1")
        a("v_add_f32 v58, v58, v59\nv_mul_f32 v76, 0x3ae38e39, v58")
        dpp(74, "row_ror:2")
        a("v_cvt_pk_bf16_f32 v60, v76, v76\nv_lshlrev_b32 v60, 16, v60")
        dpp(74, "row_ror:4")
        a.extend(sub[:2])
        dpp(74, "row_ror:8")
        a("v_mov_b32 v75, v74")
        a.extend(sub[2:4])
        a("v_permlane16_swap_b32 v75, v74")
        a.extend(sub[4:])
        a("v_add_f32 v74, v74, v75\nv_mul_f32 v76, v76, v76\nv_mov_b32 v62, 0x3ae38e39\nv_fma_f32 v62, v74, v62, -v76\nv_max_f32 v62, 0, v62")
    else:
        half_sum(a, 58, 59)
        a("v_mul_f32 v60, 0x3ae38e39, v58")
        for k in range(9):
            a(f"v_pk_add_f32 {pr(T+2*k)}, {pr(X+2*k)}, v[60:61] op_sel_hi:[1,0] neg_lo:[0,1] neg_hi:[0,1]")
        a(f"v_pk_mul_f32 v[58:59], {pr(T)}, {pr(T)}\nv_pk_mul_f32 v[62:63], {pr(T+2)}, {pr(T+2)}")
        for k in range(2, 9):
            d = "v[58:59]" if k % 2 == 0 else "v[62:63]"
            a(f"v_pk_fma_f32 {d}, {pr(T+2*k)}, {pr(T+2*k)}, {d}")
        a("v_pk_add_f32 v[58:59], v[58:59], v[62:63]\nv_add_f32 v58, v58, v59")
        rnd(a, 60)
        a("v_add_f32_dpp v58, v58, v58 row_ror:1 row_mask:0xf bank_mask:0xf")
        for i, c in enumerate(("row_ror:2", "row_ror:4", "row_ror:8")):
            a.extend(sub[2*i:2*i+2])
            a(f"v_add_f32_dpp v58, v58, v58 {c} row_mask:0xf bank_mask:0xf")
        a("v_mov_b32 v59, v58")
        a.extend(sub[6:8])
        a("v_permlane16_swap_b32 v59, v58")
        a(sub[8])
        a("v_add_f32 v58, v58, v59\nv_mul_f32 v62, 0x3ae38e39, v58")
    cvt = [f"v_cvt_pk_bf16_f32 v{p+k}, v{T+2*k}, v{T+2*k+1}" for k in range(9)]
    rnd(a, 62)
    a("v_add_f32 v62, 0x3727c5ac, v62")
    rnd(a, 62)
    a("v_sqrt_f32 v62, v62")
    a.extend(cvt[:4])
    rnd(a, 62)
    a("v_rcp_f32 v62, v62")
    a.extend(cvt[4:])
    unpack(a, p, X)
    for k in range(9):
        a(f"v_pk_mul_f32 {pr(X+2*k)}, {pr(X+2*k)}, v[62:63] op_sel_hi:[1,0]")
    for k in range(9):
        a(f"v_cvt_pk_bf16_f32 v{p+k}, v{X+2*k}, v{X+2*k+1}")


def ln_issue(a, s_x, fl, dst=10):
    srd(a, 8, s_x, X_BYTES)
    a("s_lshl_b32 s22, s2, 2\ns_add_u32 s22, s22, s20\ns_mul_i32 s22, s22, 2304")
    a("v_lshrrev_b32 v4, 5, v1\nv_and_b32 v5, 31, v1\nv_mul_u32_u24 v6, 1152, v4\nv_lshl_add_u32 v2, v5, 4, v6\nv_lshl_add_u32 v3, v5, 2, v6")
    a(f"buffer_load_dwordx4 v[{dst}:{dst+3}], v2, s[8:11], s22 offen{fl}\nbuffer_load_dwordx4 v[{dst+4}:{dst+7}], v2, s[8:11], s22 offen offset:512{fl}")
    a(f"buffer_load_dword v{dst+8}, v3, s[8:11], s22 offen offset:1024{fl}")


def ln_body(a, s_ws, lds_base, lds_cnt, tag, barrier_meet=False, dry=False):
    srd_off(a, 12, s_ws, WS_HT, HT_BYTES)
    srd_off(a, 16, s_ws, WS_XNT, XNT_BYTES)
    a(f"s_mul_i32 s23, s20, {2*PITCH}\ns_add_u32 s23, s23, {lds_base}\nv_mul_u32_u24 v6, {PITCH}, v4\nv_add_u32 v6, s23, v6")
    a("v_lshl_add_u32 v2, v5, 4, v6\nv_lshl_add_u32 v3, v5, 2, v6")
    a("v_and_b32 v5, 15, v1\nv_lshrrev_b32 v6, 4, v1\nv_bfe_u32 v7, v1, 2, 2\nv_and_b32 v8, 3, v1")
    a(f"v_mul_u32_u24 v7, {PITCH}, v7\nv_lshl_add_u32 v7, v8, 3, v7\nv_lshl_add_u32 v7, v6, 5, v7")
    a(f"s_lshl_b32 s23, s20, 7\ns_add_u32 s23, s23, {lds_base}\nv_add_u32 v7, s23, v7")
    a("v_lshlrev_b32 v9, 16, v6\nv_lshl_add_u32 v9, v5, 4, v9")
    a("s_lshl_b32 s22, s20, 18\ns_lshl_b32 s23, s2, 8\ns_add_u32 s22, s22, s23")
    a("v_lshlrev_b32 v19, 11, v6\nv_lshl_add_u32 v19, v5, 4, v19")
    a("s_lshr_b32 s25, s2, 3\ns_mul_i32 s25, s25, 73728\ns_and_b32 s23, s2, 7\ns_lshl_b32 s23, s23, 8\ns_add_u32 s21, s25, s23\ns_lshl_b32 s23, s20, 13\ns_add_u32 s25, s21, s23")
    if dry:
        a(f"s_mov_b32 s23, 0\ns_branch L_{tag}_pass\nL_{tag}_real:\ns_waitcnt vmcnt(0)\n; STAMP 0")
        for k in range(9):
            a(f"v_mov_b32 v{10+k}, v{80+k}")
        a(f"L_{tag}_pass:")
    else:
        a("s_waitcnt vmcnt(0)\n; STAMP 0")
    unpack(a, 10, X)
    layernorm(a, 10)
    a("ds_write_b128 v2, v[10:13]\nds_write_b128 v2, v[14:17] offset:512\nds_write_b32 v3, v18 offset:1024")
    unpack(a, 10, X)
    layernorm(a, 64, one_pass=True)
    a(f"ds_write_b128 v2, v[64:67] offset:{LN_T}\nds_write_b128 v2, v[68:71] offset:{LN_T+512}\nds_write_b32 v3, v72 offset:{LN_T+1024}")
    if dry:
        a(f"s_add_u32 s23, s23, 1\ns_cmp_eq_u32 s23, 1\ns_cbranch_scc1 L_{tag}_real")
    a("; STAMP 2")
    if barrier_meet:
        a("s_waitcnt lgkmcnt(0)\ns_barrier")
    else:
        a(f"v_mov_b32 v58, {lds_cnt}\nv_mov_b32 v59, 1\ns_waitcnt lgkmcnt(0)\ns_mov_b64 exec, 1\nds_add_u32 v58, v59\ns_mov_b64 exec, -1")
        a(f"L_{tag}_meet:\nds_read_b32 v60, v58\ns_waitcnt lgkmcnt(0)\nv_readfirstlane_b32 s23, v60\ns_cmp_lt_u32 s23, 4\ns_cbranch_scc1 L_{tag}_meet")
    for k in range(2):
        for t in (1, 0):
            b = 24 + 8*k + 4*t
            a(f"ds_read_b64_tr_b16 {vr(b,2)}, v7 offset:{t*LN_T + 512*k}\nds_read_b64_tr_b16 {vr(b+2,2)}, v7 offset:{t*LN_T + 512*k + 4*PITCH}")
    a(f"s_cmp_ge_u32 s20, 2\ns_cbranch_scc1 L_{tag}_no8")
    a(f"s_mul_i32 s23, s20, {LN_T+128}\ns_sub_u32 s23, {LN_T+1024}, s23\nv_add_u32 v8, s23, v7")
    a(f"ds_read_b64_tr_b16 v[40:41], v8\nds_read_b64_tr_b16 v[42:43], v8 offset:{4*PITCH}")
    a(f"s_waitcnt lgkmcnt(0)\ns_cmp_lg_u32 s20, 0\ns_cbranch_scc1 L_{tag}_no8")
    a(f"s_add_u32 s23, s21, {8 << 13}\nbuffer_store_dwordx4 v[40:43], v19, s[12:15], s23 offen sc1\nL_{tag}_no8:\ns_waitcnt lgkmcnt(0)")
    for k in range(2):
        a(f"buffer_store_dwordx4 {vr(28+8*k,4)}, v19, s[12:15], s25 offen sc1")
        if k == 0:
            a(f"s_add_u32 s25, s25, {4 << 13}")


def xn_stores(a, tag):
    a(f"s_cmp_lg_u32 s20, 1\ns_cbranch_scc1 L_{tag}_nox8\ns_lshl_b32 s23, s2, 8\ns_add_u32 s23, s23, {8 << 18}")
    a(f"buffer_store_dwordx4 v[40:43], v9, s[16:19], s23 offen sc1\nL_{tag}_nox8:")
    a(f"buffer_store_dwordx4 v[24:27], v9, s[16:19], s22 offen sc1\ns_add_u32 s22, s22, {4 << 18}\nbuffer_store_dwordx4 v[32:35], v9, s[16:19], s22 offen sc1")
```

```python
import struct
from asmlib import *
from layout import *
import gemm_core as gc
import mega_ln as ln
import mega_conv as cv
from prefetch import *
import prefetch

AT_LDS = gc.LDS_RING
LN_LDS = 139264
CNT_LDS = LN_LDS + 2*ln.LN_T
LDS_TOTAL = CNT_LDS + 64
S_WS, S_X, S_DBG, S_W1, S_W2 = 4, 6, 94, 96, 98
SPIN = 0x100000
S_TAG = 100
F_SEED = 255 * 256


def f32hex(x):
    return "0x%08x" % struct.unpack("<I", struct.pack("<f", x))[0]


def div6(a, d, r, x):
    a(f"s_mul_i32 s{d}, s{x}, 10923\ns_lshr_b32 s{d}, s{d}, 16\ns_mul_i32 s{r}, s{d}, 6\ns_sub_u32 s{r}, s{x}, s{r}")


def unpk(a, x, p):
    a(f"v_lshlrev_b32 v{x}, 16, v{p}\nv_and_b32 v{x+1}, 0xffff0000, v{p}")


def poll(a, tag, rs, vaddr, soff, target, sleep=1, mask=None):
    a(f"s_mov_b32 s61, {SPIN:#x}\nL_{tag}_poll:\nbuffer_load_dword v62, v{vaddr}, s[{rs}:{rs+3}], {soff} offen sc1")
    a(f"s_sub_u32 s61, s61, 1\ns_cbranch_scc1 L_{tag}_go\ns_waitcnt vmcnt(0)")
    if mask:
        a(f"v_and_b32 v62, {mask:#x}, v62")
    a(f"v_cmp_ne_u32 vcc, {target}, v62")
    a(f"s_cmp_eq_u64 vcc, 0\ns_cbranch_scc1 L_{tag}_go")
    if sleep:
        a(f"s_sleep {sleep}")
    a(f"s_branch L_{tag}_poll\nL_{tag}_go:")


def flags_srd(a, d):
    srd_off(a, d, S_WS, WS_FLG, FLG_BYTES)


def last_wave_signals(a, tag, cnt, rs, soff, word=None, second=None):
    a(f"v_mov_b32 v58, {cnt}\nv_mov_b32 v59, 1\nv_mov_b32 v61, 0\ns_mov_b64 exec, 1\nds_add_rtn_u32 v60, v58, v59\ns_waitcnt lgkmcnt(0)")
    a(f"v_readfirstlane_b32 s23, v60\ns_cmp_lg_u32 s23, 3\ns_cbranch_scc1 L_{tag}_notlast")
    if word:
        a(f"v_mov_b32 v59, {word}\nbuffer_store_dword v59, v61, s[{rs}:{rs+3}], {soff} offen sc1")
    else:
        if second:
            a(f"buffer_atomic_add v59, v61, s[{rs}:{rs+3}], {second} offen sc1")
        a(f"buffer_atomic_add v59, v61, s[{rs}:{rs+3}], {soff} offen sc1")
    a(f"L_{tag}_notlast:\ns_mov_b64 exec, -1")


def ln_local_wait(a, tag, cnt=CNT_LDS+4):
    a(f"v_mov_b32 v58, {cnt}\nL_{tag}:\ns_sleep 2\nds_read_b32 v60, v58\ns_waitcnt lgkmcnt(0)\nv_readfirstlane_b32 s23, v60\ns_cmp_lt_u32 s23, 4\ns_cbranch_scc1 L_{tag}")


def g_pause(a, tag, o):
    if not o["pause"]:
        return
    a(f"s_lshr_b32 s23, s2, 3\ns_mul_i32 s24, s23, 43\ns_lshr_b32 s24, s24, 9\ns_mul_i32 s24, s24, 12\ns_sub_u32 s23, s23, s24\ns_lshl_b32 s23, s23, 8\ns_add_u32 s23, s23, {F_G}")
    a(f"v_mov_b32 v61, 0\ns_mov_b32 s61, {SPIN:#x}\nL_{tag}_poll:\nbuffer_load_dword v62, v61, s[36:39], s23 offen sc1\ns_sub_u32 s61, s61, 1\ns_cbranch_scc1 L_{tag}_go")
    a(f"s_waitcnt vmcnt(0)\nv_readfirstlane_b32 s24, v62\ns_cmp_ge_u32 s24, {o['pause']}\ns_cbranch_scc1 L_{tag}_go\ns_sleep 8\ns_branch L_{tag}_poll\nL_{tag}_go:")


def wait_ln(a, tag, rs, o, base=F_LNW):
    a(f"v_mul_u32_u24 v61, {o['lnw']}, v1\ns_mov_b32 s61, {SPIN:#x}\nL_{tag}_poll:")
    if o["ln_lines"] and base == F_LNW:
        for k in range(4):
            a(f"s_mov_b32 s62, {F_LNW + k*64*o['lnw']}\nbuffer_load_dword v{180+k}, v61, s[{rs}:{rs+3}], s62 offen sc1")
    else:
        a(f"s_mov_b32 s62, {base}\nbuffer_load_dwordx4 v[180:183], v61, s[{rs}:{rs+3}], s62 offen sc1")
    a(f"s_sub_u32 s61, s61, 1\ns_cbranch_scc1 L_{tag}_go\ns_waitcnt vmcnt(0)")
    a(f"v_xor_b32 v180, s{S_TAG+1}, v180\nv_xor_b32 v181, s{S_TAG+1}, v181\nv_xor_b32 v182, s{S_TAG+1}, v182\nv_xor_b32 v183, s{S_TAG+1}, v183")
    a("v_or3_b32 v180, v180, v181, v182\nv_or_b32 v180, v180, v183\nv_cmp_ne_u32 vcc, 0, v180")
    a(f"s_cmp_eq_u64 vcc, 0\ns_cbranch_scc1 L_{tag}_go\ns_sleep {o['slp']}\ns_branch L_{tag}_poll\nL_{tag}_go:")


def tile1(a):
    a("s_and_b32 s12, s2, 7\ns_lshr_b32 s13, s2, 3\ns_and_b32 s14, s12, 1\ns_mul_i32 s14, s14, 3\ns_add_u32 s13, s13, s14")
    a("s_cmp_ge_u32 s13, 27\ns_cselect_b32 s14, 27, 0\ns_sub_u32 s13, s13, s14\ns_mul_i32 s12, s12, 27\ns_add_u32 s12, s12, s13")
    div6(a, 14, 15, 12)


def tile2(a):
    a("s_lshr_b32 s13, s2, 3")
    div6(a, 12, 15, 13)
    a("s_bfe_u32 s19, s2, 0x10002\ns_and_b32 s13, s2, 3\ns_lshl_b32 s14, s13, 2\ns_add_u32 s14, s14, s12")
    a("s_mul_i32 s13, s13, 9\ns_add_u32 s13, s13, 1\ns_lshr_b32 s13, s13, 1")
    a("s_lshl_b32 s16, s14, 7\ns_lshl_b32 s17, s19, 6\ns_add_u32 s16, s16, s17")


def block_jump(kind):
    cnt, base, dst, step = (54, 56, gc.S_W0, 128*4096) if kind == "w" else (55, 57, gc.S_ACT0, 2*73728)
    return [f"s_add_u32 s{cnt}, s{cnt}, 1", f"s_add_u32 s18, s{cnt}, s12", "s_and_b32 s18, s18, 3", f"s_cmp_lt_u32 s{cnt}, 4",
            f"s_cselect_b32 s18, s18, s{cnt}", "s_add_u32 s18, s18, s13", "s_cmp_ge_u32 s18, 18", "s_cselect_b32 s17, 18, 0",
            "s_sub_u32 s18, s18, s17", f"s_mul_i32 s18, s18, {step}", f"s_add_u32 s{dst}, s18, s{base}"]


def gelu_epilogue(a, rounds, rot):
    c1 = -2.0 * 0.7978845608028654 * 1.4426950408889634
    a(f"s_mov_b32 s48, {f32hex(c1*0.044715)}\ns_mov_b32 s49, s48\nv_mov_b32 v36, {f32hex(c1)}\nv_mov_b32 v37, v36")
    for nu in range(4):
        unpk(a, 20+4*nu, 12+2*nu); unpk(a, 22+4*nu, 13+2*nu)
    a(f"s_lshr_b32 s26, s20, 1\ns_mul_i32 s26, s26, {gc.SLOT}\ns_and_b32 s27, s20, 1\ns_mul_i32 s27, s27, 6144\ns_add_u32 s26, s26, s27\ns_add_u32 s26, s26, {gc.W_BYTES}\nv_add_u32 v38, s26, v7")
    B = 112
    for dl in range(3):
        for pi in range(2):
            src = [(gc.acc(2*pi + (k >> 1), dl) + 2*(k & 1), 20 + 4*(2*pi + (k >> 1)) + 2*(k & 1)) for k in range(4)]
            U = [B + 2*k for k in range(4)]; T = [B + 8 + 2*k for k in range(4)]; P = [B + 16 + k for k in range(4)]
            O = B + 20 + 4*((2*dl + pi) % 2)
            if rounds == 2:
                for k in range(4): a(f"v_cvt_pk_bf16_f32 v{P[k]}, v{src[k][0]}, v{src[k][0]+1}")
                for k in range(4): unpk(a, U[k], P[k])
                for k in range(4): a(f"v_pk_add_f32 {vr(U[k],2)}, {vr(U[k],2)}, {vr(src[k][1],2)}")
            else:
                for k in range(4): a(f"v_pk_add_f32 {vr(U[k],2)}, {vr(src[k][0],2)}, {vr(src[k][1],2)}")
            if rounds >= 1:
                for k in range(4): a(f"v_cvt_pk_bf16_f32 v{P[k]}, v{U[k]}, v{U[k]+1}")
                for k in range(4): unpk(a, U[k], P[k])
            for k in range(4): a(f"v_pk_mul_f32 {vr(T[k],2)}, {vr(U[k],2)}, {vr(U[k],2)}")
            for k in range(4): a(f"v_pk_fma_f32 {vr(T[k],2)}, {vr(T[k],2)}, s[48:49], v[36:37]")
            for k in range(4): a(f"v_pk_mul_f32 {vr(T[k],2)}, {vr(T[k],2)}, {vr(U[k],2)}")
            for k in range(4): a(f"v_exp_f32 v{T[k]}, v{T[k]}\nv_exp_f32 v{T[k]+1}, v{T[k]+1}")
            for k in range(4): a(f"v_pk_add_f32 {vr(T[k],2)}, {vr(T[k],2)}, 1.0 op_sel_hi:[1,0]")
            for k in range(4): a(f"v_rcp_f32 v{T[k]}, v{T[k]}\nv_rcp_f32 v{T[k]+1}, v{T[k]+1}")
            for k in range(4): a(f"v_pk_mul_f32 {vr(U[k],2)}, {vr(U[k],2)}, {vr(T[k],2)}")
            for k in range(4): a(f"v_cvt_pk_bf16_f32 v{O+k}, v{U[k]}, v{U[k]+1}")
            a(f"buffer_store_dwordx4 {vr(O,4)}, v7, s[44:47], s17 offen offset:{1024*pi} sc1")
            if rot:
                a(f"ds_write_b128 v38, {vr(O,4)} offset:{(2*dl + pi)*1024}")
        a("s_add_u32 s17, s17, 2048")


def read_tag(a):
    a(f"s_add_u32 s26, s{S_WS}, {WS_FLG + F_SEED:#x}\ns_addc_u32 s27, s{S_WS+1}, 0\ns_load_dword s{S_TAG+1}, s[26:27], 0")


def make_tag(a):
    a(f"s_mul_i32 s{S_TAG+1}, s{S_TAG+1}, 0x9e3779b1\ns_add_u32 s{S_TAG+1}, s{S_TAG+1}, 0x7f4a7c15\ns_andn2_b32 s{S_TAG}, s{S_TAG+1}, 0xff")


def compute_waves(a, o):
    a("s_waitcnt lgkmcnt(0)")
    ln.ln_issue(a, S_X, o['lnx'], 80 if o['dry'] else 10)
    read_tag(a)
    a(f"s_cmp_lg_u32 s20, 0\ns_cbranch_scc1 L_m_nz\nv_mov_b32 v58, {CNT_LDS}\nv_mov_b32 v60, 0\nv_mov_b32 v61, 0\nv_mov_b32 v62, 0\nv_mov_b32 v63, 0")
    a("ds_write_b128 v58, v[60:63]\nL_m_nz:")
    if o["early_bar"]:
        a("s_waitcnt lgkmcnt(0)\ns_barrier")
    a(f"s_load_dwordx2 s[38:39], s[0:1], {KA['b1']}\ns_load_dwordx8 s[76:83], s[0:1], {KA['lar']}".replace("s[76:83]", "s[80:87]"))
    ln.ln_body(a, S_WS, LN_LDS, CNT_LDS, "ln", not o["early_bar"], o["dry"])
    if not o["split_xn"]:
        ln.xn_stores(a, "ln")
    flags_srd(a, 40)
    make_tag(a)
    a("v_mov_b32 v61, 0\ns_cmp_lg_u32 s20, 3\ns_cbranch_scc1 L_m_nozero\ns_sub_u32 s23, s2, 28\ns_cmp_ge_u32 s23, 6\ns_cbranch_scc1 L_m_nozero")
    a("s_lshl_b32 s23, s2, 8\ns_mov_b64 exec, 1\nbuffer_store_dword v61, v61, s[40:43], s23 offen sc1\ns_mov_b64 exec, -1\nL_m_nozero:")
    if o["ln_lines"]:
        a(f"s_mul_i32 s24, s2, {o['lnw']}\ns_add_u32 s24, s24, {F_LNW}")
    else:
        a(f"s_and_b32 s24, s2, 63\ns_mul_i32 s24, s24, {o['lnw']}\ns_lshr_b32 s23, s2, 6\ns_lshl_b32 s23, s23, 2\ns_add_u32 s24, s24, s23\ns_add_u32 s24, s24, {F_LNW}")
    a("s_waitcnt vmcnt(0)\n; STAMP 1")
    last_wave_signals(a, "lnd", CNT_LDS + 4, 40, "s24", word=f"s{S_TAG+1}")
    if o["split_xn"]:
        ln.xn_stores(a, "ln")
        a(f"s_and_b32 s24, s2, 63\ns_mul_i32 s24, s24, {o['lnw']}\ns_lshr_b32 s23, s2, 6\ns_lshl_b32 s23, s23, 2\ns_add_u32 s24, s24, s23\ns_add_u32 s24, s24, {F_XNW}\ns_waitcnt vmcnt(0)")
        last_wave_signals(a, "xnd", CNT_LDS + 12, 40, "s24", word=f"s{S_TAG+1}")
    a("s_cmp_ge_u32 s2, 216\ns_cbranch_scc1 L_m_conv")
    a("s_lshr_b32 s29, s2, 3\ns_lshl_b32 s29, s29, 2\ns_add_u32 s29, s29, s20")
    srd(a, 32, S_W1, W_BYTES_TOTAL)
    w1_burst(a, 32, 29, 108, o["r1"]//4*5, o["nB"])
    srd(a, 32, S_W2, W_BYTES_TOTAL)
    tile1(a)
    gc.lane_ids(a)
    gc.compute_setup(a, "A")
    srd(a, 8, 38, F*2)
    a(f"s_lshr_b32 s16, s20, 1\ns_lshl_b32 s17, s16, 7\ns_lshl_b32 s18, s14, 8\ns_add_u32 s17, s17, s18\nv_lshlrev_b32 v9, 3, v3")
    a("s_mov_b32 s22, s17")

    def b1_loads(a):
        for nu in range(4):
            a(f"buffer_load_dwordx2 {vr(12+2*nu,2)}, v9, s[8:11], s22 offen offset:{32*nu}")
    if not o["b1_late"]:
        b1_loads(a)
    for i in range(48):
        a(f"v_mov_b32 v{gc.V_ACC+i}, 0")
    srd_off(a, 44, S_WS, WS_G, G_BYTES)
    a("s_and_b32 s17, s20, 1\ns_mul_i32 s17, s17, 3\ns_mul_i32 s18, s15, 6\ns_add_u32 s17, s17, s18\ns_lshl_b32 s17, s17, 11")
    a("s_lshl_b32 s18, s14, 1\ns_add_u32 s18, s18, s16\ns_mul_i32 s18, s18, 73728\ns_add_u32 s17, s17, s18")
    a(f"s_mul_i32 s24, s15, 36\ns_add_u32 s24, s24, s14\ns_lshl_b32 s24, s24, 8\ns_add_u32 s24, s24, {F_GW}")
    a(f"s_load_dwordx4 s[52:55], s[0:1], {KA['b2']}")
    gc.compute_main(a, 32*o["rep1"], "A", False, "g1", last_barrier=True, st=(5, 2), tail_hook=b1_loads if o["b1_late"] else None)
    if o["rep1"] == 2:
        for i in range(48):
            a(f"v_mul_f32 v{gc.V_ACC+i}, 0.5, v{gc.V_ACC+i}")
    a("s_waitcnt vmcnt(0)")
    gelu_epilogue(a, o['rnd1'], o['rot'])
    a("s_cmp_lt_u32 s2, 192\ns_cbranch_scc1 L_m_g2\ns_waitcnt vmcnt(0)")
    last_wave_signals(a, "gd", CNT_LDS + 8, 40, "s24", word=f"s{S_TAG+1}")
    a("; STAMP 3\ns_branch L_m_conv1\nL_m_g2:")
    tile2(a)
    gc.compute_setup(a, "B", s_kh=19)
    srd(a, 32, S_X, X_BYTES); srd(a, 28, 52, S*2)
    a("s_lshr_b32 s17, s20, 1\ns_lshl_b32 s17, s17, 5\ns_add_u32 s17, s17, s16")
    a("s_mul_i32 s18, s15, 96\ns_and_b32 s26, s20, 1\ns_mul_i32 s26, s26, 48\ns_add_u32 s18, s18, s26")
    a("v_mul_u32_u24 v58, 1152, v2\nv_lshl_add_u32 v58, v3, 3, v58\nv_lshlrev_b32 v9, 1, v2")
    a("s_mul_i32 s56, s17, 1152\ns_lshl_b32 s26, s18, 1\ns_add_u32 s56, s56, s26\ns_add_u32 s57, s56, 18432\ns_lshl_b32 s26, s17, 1")
    a("s_mov_b32 s22, s26\nv_mov_b32 v39, v58")
    for i in range(48):
        a(f"v_mov_b32 v{gc.V_ACC+i}, 0")
    a("v_bfe_u32 v4, v1, 2, 2\nv_lshl_add_u32 v4, v3, 2, v4\nv_lshlrev_b32 v4, 7, v4\nv_and_b32 v5, 3, v1\nv_lshl_add_u32 v4, v5, 3, v4")
    a(f"s_and_b32 s26, s20, 1\ns_mul_i32 s26, s26, 6144\ns_lshr_b32 s27, s20, 1\ns_lshl_b32 s27, s27, 6\ns_add_u32 s26, s26, s27\ns_add_u32 s26, s26, {AT_LDS}\nv_add_u32 v59, s26, v4")
    a("v_mov_b32 v31, v59")
    a("s_xor_b32 s58, s2, 4\ns_lshl_b32 s26, s20, 12\ns_lshl_b32 s59, s58, 14\ns_add_u32 s59, s59, s26\ns_lshl_b32 s60, s2, 14\ns_add_u32 s60, s60, s26")
    assert o["xbf"]

    def x_loads(a):
        for nu in range(2):
            for dl in range(3):
                a(f"buffer_load_dwordx2 {vr(10+2*(3*nu+dl),2)}, v39, s[32:35], s{56+nu} offen offset:{32*dl}{o['xnt']}")
            a(f"buffer_load_ushort v{22+nu}, v9, s[28:31], s22 offen offset:{32*nu}")

    def publish_g(a):
        a("s_waitcnt vmcnt(0)")
        last_wave_signals(a, "gd2", CNT_LDS + 8, 40, "s24", word=f"s{S_TAG+1}")
        a("; STAMP 3\n; SWAIT")
        if not o["x_late"]:
            x_loads(a)

    if o["late_sig"]:
        gc.compute_main(a, 36, "B", True, "g2", st=(5, 4), first_stage1=publish_g)
    else:
        publish_g(a)
        gc.compute_main(a, 36*o["rep2"], "B", True, "g2", st=(5, 4), tail_hook=x_loads if o["x_late"] == "tail" else None)
        if o["rep2"] == 2:
            for i in range(48):
                a(f"v_mul_f32 v{gc.V_ACC+i}, 0.5, v{gc.V_ACC+i}")
    srd_off(a, 8, S_WS, WS_XCH, XCH_BYTES); srd(a, 44, 54, X_BYTES)
    a("v_mov_b32 v58, v39\nv_mov_b32 v59, v31")
    a("; STAMP 5")
    SN = 172
    NG = 4 if o["xbf"] else 8
    for k in range(NG):
        for m in range(3):
            if o["xbf"]:
                a(f"v_cvt_pk_bf16_f32 v{SN+4*k+m}, v{gc.V_ACC+24+6*k+2*m}, v{gc.V_ACC+25+6*k+2*m}")
            else:
                a(f"v_mov_b32 v{SN+4*k+m}, v{gc.V_ACC+24+3*k+m}")
        a(f"v_mov_b32 v{SN+4*k+3}, s{S_TAG+1}")
        a(f"buffer_store_dwordx4 {vr(SN+4*k,4)}, v7, s[8:11], s59 offen sc1\ns_add_u32 s59, s59, 1024")
    if o["x_late"] is True:
        x_loads(a)
    a("s_barrier")
    AR, PF = 112, 124
    for nu in range(2):
        for dl in range(3):
            a(f"ds_read_b64_tr_b16 {vr(AR+2*(3*nu+dl),2)}, v59 offset:{2048*dl + 32*nu}")
    a(f"s_waitcnt vmcnt({0 if o['x_late'] is True else NG})\nv_lshlrev_b32 v22, 16, v22\nv_lshlrev_b32 v24, 16, v23\ns_waitcnt lgkmcnt(0)")
    for t in range(6):
        for h in range(2):
            unpk(a, 26, 10+2*t+h); unpk(a, 28, AR+2*t+h)
            if o["rnd2"]:
                a("v_pk_add_f32 v[26:27], v[26:27], v[28:29]\nv_cvt_pk_bf16_f32 v30, v26, v27")
                unpk(a, PF+4*t+2*h, 30)
            else:
                b = gc.V_ACC + 4*t + 2*h
                a(f"v_pk_add_f32 v[26:27], v[26:27], v[28:29]\nv_pk_add_f32 {vr(b,2)}, {vr(b,2)}, {vr(22+2*(t//3),2)} op_sel_hi:[1,0]")
                a(f"v_pk_add_f32 {vr(b,2)}, {vr(b,2)}, v[26:27]")
    RX = 204
    if o["xwait"]:
        a("s_waitcnt vmcnt(0)")
    a(f"s_mov_b32 s61, {SPIN:#x}\ns_add_u32 s62, s60, 4096\nL_xch_poll:")
    for k in range(NG):
        a(f"buffer_load_dwordx4 {vr(RX+4*k,4)}, v7, s[8:11], s{60 + 2*(k >> 2)} offen offset:{1024*(k & 3)} sc1")
    a(f"s_sub_u32 s61, s61, 1\ns_cbranch_scc1 L_xch_go\ns_waitcnt vmcnt(0)\nv_xor_b32 v4, s{S_TAG+1}, v{RX+3}")
    for k in range(1, NG):
        a(f"v_xor_b32 v5, s{S_TAG+1}, v{RX+4*k+3}\nv_or_b32 v4, v4, v5")
    a("v_cmp_ne_u32 vcc, 0, v4\ns_cmp_eq_u64 vcc, 0\ns_cbranch_scc1 L_xch_go")
    if o["slpx"]:
        a(f"s_sleep {o['slpx']}")
    a("s_branch L_xch_poll\nL_xch_go:")
    for t in range(6):
        nu, dl = divmod(t, 3)
        b, p = gc.V_ACC + 4*t, PF + 4*t
        if o["xbf"]:
            for h in range(2):
                k, m = divmod(2*t + h, 3)
                unpk(a, 26+2*h, RX+4*k+m)
            for h in range(2): a(f"v_pk_add_f32 {vr(b+2*h,2)}, {vr(b+2*h,2)}, {vr(26+2*h,2)}")
        else:
            for e in range(4):
                k, m = divmod(4*t + e, 3)
                a(f"v_add_f32 v{b+e}, v{b+e}, v{RX+4*k+m}")
        if o['rnd2']:
            for h in range(2): a(f"v_cvt_pk_bf16_f32 v{26+h}, v{b+2*h}, v{b+2*h+1}")
            for h in range(2): unpk(a, b+2*h, 26+h)
            for h in range(2): a(f"v_pk_add_f32 {vr(b+2*h,2)}, {vr(b+2*h,2)}, {vr(22+2*nu,2)} op_sel_hi:[1,0]")
            for h in range(2): a(f"v_cvt_pk_bf16_f32 v{26+h}, v{b+2*h}, v{b+2*h+1}")
            for h in range(2): unpk(a, b+2*h, 26+h)
            for h in range(2): a(f"v_pk_add_f32 {vr(b+2*h,2)}, {vr(b+2*h,2)}, {vr(p+2*h,2)}")
        for h in range(2): a(f"v_cvt_pk_bf16_f32 v{10+2*t+h}, v{b+2*h}, v{b+2*h+1}")
        a(f"buffer_store_dwordx2 {vr(10+2*t,2)}, v58, s[44:47], s{56+nu} offen offset:{32*dl}{o['ont']}")
    a("s_endpgm")
    a("L_m_conv1:\ns_mov_b32 s30, 1\ns_sub_u32 s31, s2, 72\ns_lshl_b32 s31, s31, 2\ns_add_u32 s31, s31, s20\ns_branch L_m_conv2")
    a("L_m_conv:\ns_mov_b32 s30, 3\ns_sub_u32 s31, s2, 216\ns_lshl_b32 s31, s31, 2\ns_add_u32 s31, s31, s20\ns_mul_i32 s31, s31, 3\nL_m_conv2:")
    a("s_mul_i32 s29, s31, 683\ns_lshr_b32 s29, s29, 16")
    a(f"s_load_dwordx4 s[32:35], s[0:1], {KA['ldt']}\ns_waitcnt lgkmcnt(0)")
    cv.param_loads(a, 80, 32, 34)

    def signal(a):
        a("s_lshl_b32 s36, s29, 8")
        a(f"s_add_u32 s36, s36, {F_CONV}\nv_mov_b32 v4, 1\nv_mov_b32 v5, 0\ns_mov_b64 exec, 1\nbuffer_atomic_add v4, v5, s[8:11], s36 offen sc1")
    flags_srd(a, 8)
    cv.conv_role(a, "cv", S_WS, lambda a, t: wait_ln(a, "cvln" + t, 8, o, F_XNW if o["split_xn"] else F_LNW), signal)
    a("s_endpgm")


def fifth_wave(a, o):
    if o["prio"]:
        a(f"s_setprio {o['prio']}")
    a(f"s_load_dwordx2 s[48:49], s[0:1], {KA['out']}\ns_load_dwordx8 s[80:87], s[0:1], {KA['lar']}\ns_load_dwordx4 s[52:55], s[0:1], {KA['ldt']}")
    a(f"s_load_dwordx2 s[56:57], s[0:1], {KA['b1']}\ns_load_dwordx2 s[58:59], s[0:1], {KA['b2']}")
    a("s_waitcnt lgkmcnt(0)")
    flags_srd(a, 36)
    read_tag(a)
    if o["tlb"] >= 4:
        srd(a, 8, S_WS, WS_G); srd(a, 16, S_W1, 5 << 20)
        a("v_lshlrev_b32 v4, 21, v1\nbuffer_load_dword v100, v4, s[8:11], 0 offen sc1\nbuffer_load_dword v104, v4, s[16:19], 0 offen")
        srd(a, 8, 56, 4)
        a("buffer_load_dword v105, v4, s[8:11], 0 offen")
    elif o["tlb"]:
        srd(a, 8, S_WS, WS_END); srd(a, 16, S_W2, W_BYTES_TOTAL)
        a("v_lshlrev_b32 v4, 20, v1\nbuffer_load_dword v100, v4, s[8:11], 0 offen sc1\nbuffer_load_dword v101, v4, s[16:19], 0 offen")
        srd(a, 8, 48, X_BYTES); srd(a, 16, S_W1, W_BYTES_TOTAL)
        a("buffer_load_dword v102, v4, s[8:11], 0 offen")
        if o["tlb"] >= 2:
            a("buffer_load_dword v104, v4, s[16:19], 0 offen")
            small = [80, 82, 84, 86, 52, 54, 56, 58]
            for k, p in enumerate(small):
                if o["tlb"] == 3:
                    a(f"s_bfe_u32 s23, s2, 0x30003\ns_cmp_lg_u32 s23, {k}\ns_cbranch_scc1 L_m_tl{k}")
                if k < 6 or not o["bias_pf"]:
                    srd(a, 8, p, 4)
                    a(f"buffer_load_dword v{105+k}, v4, s[8:11], 0 offen")
                else:
                    srd(a, 8, p, F*2 if k == 6 else S*2)
                    a(f"v_lshlrev_b32 v5, 7, v1\nbuffer_load_dword v{105+k}, v5, s[8:11], 0 offen")
                    if k == 6:
                        a("s_mov_b32 s23, 8192\nbuffer_load_dword v113, v5, s[8:11], s23 offen")
                a(f"L_m_tl{k}:")
    if o["touch"]:
        todo = [F_LNW + k*64*o["lnw"] for k in range(4 if o["ln_lines"] else 1)] + [F_XNW] + ([F_REL] if o["agg"] else [])
        for k, off in enumerate(todo):
            a(f"s_cmp_lg_u32 s2, {5*k if k < 2 else 4+k}\ns_cbranch_scc1 L_m_nt{k}\nv_mul_u32_u24 v5, {o['lnw']}, v1\ns_mov_b32 s23, {off}\nbuffer_load_dword v103, v5, s[36:39], s23 offen\nL_m_nt{k}:")
    if o["touch_g"]:
        a(f"s_sub_u32 s23, s2, 1\ns_cmp_ge_u32 s23, 4\ns_cbranch_scc1 L_m_notouch2\nv_lshlrev_b32 v5, 8, v1\ns_lshl_b32 s23, s23, 14\ns_add_u32 s23, s23, {F_GW}")
        a("buffer_load_dword v103, v5, s[36:39], s23 offen\nL_m_notouch2:")
    srd(a, gc.SRD_W, S_W1, W_BYTES_TOTAL)
    if o["early_bar"]:
        a("s_barrier")
    a("s_lshr_b32 s30, s2, 3")
    if o["code_pf"]:
        a("s_getpc_b64 s[12:13]\nL_m_pc:\ns_sub_u32 s12, s12, L_m_pc-L_m_base\ns_subb_u32 s13, s13, 0")
        a("s_mov_b32 s14, L_m_last-L_m_base\ns_mov_b32 s15, 0x20000\nv_lshlrev_b32 v4, 4, v1\ns_lshl_b32 s23, s30, 10")
        a("buffer_load_dwordx4 v[96:99], v4, s[12:15], s23 offen\ns_add_u32 s23, s23, 32768\nbuffer_load_dwordx4 v[96:99], v4, s[12:15], s23 offen")
    w1_stream(a, "m0", gc.SRD_W, 30, 32, o["r0"], o["r1"], o["win1"])
    if o["extra23"]:
        a("s_and_b32 s23, s2, 6\ns_cmp_lg_u32 s23, 2\ns_cbranch_scc1 L_m_nox23")
        w1_stream(a, "m23", gc.SRD_W, 30, 32, 2048 - o["extra23"], 2048, o["win1"])
        a("L_m_nox23:")
    a("s_waitcnt lgkmcnt(0)")
    make_tag(a)
    if not o["early_bar"]:
        a("s_barrier")
    a("; STAMP 0\ns_cmp_ge_u32 s2, 216\ns_cbranch_scc1 L_m_helper")
    tile1(a)
    gc.lane_ids(a)
    a(f"s_mul_i32 s{gc.S_ACT0}, s15, 12288\ns_lshl_b32 s{gc.S_W0}, s14, 8")
    gc.loader_setup(a, 0, 9216, "A")
    srd_off(a, gc.SRD_ACT, S_WS, WS_HT, HT_BYTES)
    ln_local_wait(a, "lw1")
    a("; STAMP 0")
    gc.w_prefill(a, range(4), 0, 9216)
    a("; STAMP 1")
    if o["agg"]:
        a(f"s_and_b32 s23, s2, 7\ns_lshl_b32 s23, s23, 8\ns_add_u32 s23, s23, {F_REL}\ns_cmp_ge_u32 s2, 8\ns_cbranch_scc1 L_m_follow")
        wait_ln(a, "l1", 36, dict(o, slp=o["slpa"]))
        a(f"v_mov_b32 v4, s{S_TAG+1}\nv_mov_b32 v5, 0\ns_mov_b64 exec, 1\nbuffer_store_dword v4, v5, s[36:39], s23 offen sc1\ns_mov_b64 exec, -1\ns_branch L_l1f_go\nL_m_follow:\nv_mov_b32 v61, 0")
        poll(a, "l1f", 36, 61, "s23", f"s{S_TAG+1}", sleep=o["slp"])
    else:
        wait_ln(a, "l1", 36, o)
    a(f"; STAMP 2\ns_cmp_lg_u32 s2, 0\ns_cbranch_scc1 L_m_noseed\nv_mov_b32 v4, s{S_TAG+1}\nv_mov_b32 v5, {F_SEED}\ns_mov_b64 exec, 1")
    a("buffer_store_dword v4, v5, s[36:39], 0 offen sc1\ns_mov_b64 exec, -1\nL_m_noseed:")
    gc.loader_after_prefill(a, 32*o["rep1"], 0, 9216, "g1", o["aflags"], tail=lambda a: None, wrap=(2048*9216, 32*73728) if o["rep1"] == 2 else None)
    srd(a, gc.SRD_W, S_W2, W_BYTES_TOTAL)
    a("s_cmp_lt_u32 s2, 192\ns_cbranch_scc1 L_m_l2")
    a("s_waitcnt vmcnt(28)\ns_barrier\ns_waitcnt vmcnt(0)\ns_barrier\ns_barrier\ns_sub_u32 s30, s2, 152\ns_lshr_b32 s30, s30, 3")
    ln_local_wait(a, "lw3", CNT_LDS+8)
    if o["x_pf"] == "early":
        srd(a, 8, S_X, X_BYTES); a("s_sub_u32 s31, s30, 5\ns_mul_i32 s31, s31, 3")
        for k in range(3):
            if k == 2:
                a("s_cmp_eq_u32 s31, 8\ns_cbranch_scc1 L_m_nox")
            x_stream(a, f"xe{k}", 8, 31)
            a("s_add_u32 s31, s31, 1")
        a("L_m_nox:")
    g_pause(a, "gp3", o)
    w2_stream(a, "m3", gc.SRD_W, 30, 8, o["r2"] + 96*o["nC"], 2304, o["win3"])
    if o["x_pf"] is True:
        srd(a, 8, S_X, X_BYTES); x_stream(a, "x3", 8, 30)
    a("s_endpgm\nL_m_l2:")
    tile2(a)
    a(f"s_mul_i32 s57, s15, 12288\ns_mul_i32 s18, s19, {36*73728}\ns_add_u32 s57, s57, s18")
    a(f"s_lshl_b32 s56, s14, 8\ns_mul_i32 s18, s19, {HALF2}\ns_add_u32 s56, s56, s18\ns_mov_b32 s54, -1\ns_mov_b32 s55, -1")
    jump = block_jump if o["rot"] else None
    if o["rot"]:
        a.extend(block_jump("w") + block_jump("a"))
    else:
        a(f"s_mov_b32 s{gc.S_W0}, s56\ns_mov_b32 s{gc.S_ACT0}, s57")
    gc.loader_setup(a, 0, 4096, "B")
    srd_off(a, gc.SRD_ACT, S_WS, WS_G, G_BYTES)
    e2 = o["early2"]
    for j, vm in enumerate((28, 0, None)):
        if j < e2:
            gc.w_prefill(a, [j], 0, 4096, jump)
        if vm is not None:
            a(f"s_waitcnt vmcnt({vm + 16*min(j+1, e2)})")
        a("s_barrier")
    a("; STAMP 5")
    gc.w_prefill(a, range(min(e2, 3), 4), 0, 4096, jump)
    a("v_mov_b32 v61, 0\n; STAMP 3")

    def wait_slot(a):
        a(f"s_mul_i32 s23, s15, 36\ns_mul_i32 s24, s19, 18\ns_add_u32 s23, s23, s24\ns_lshl_b32 s23, s23, 8\ns_add_u32 s23, s23, {F_GW}")
        a("v_and_b32 v60, 3, v1\nv_add_u32 v60, s13, v60\nv_lshlrev_b32 v60, 8, v60")
        poll(a, "l2a", 36, 60, "s23", f"s{S_TAG+1}")
        a("; STAMP 4\nv_min_u32 v60, 17, v1\nv_lshlrev_b32 v60, 8, v60\ns_mov_b32 s53, s23")

    def wait_half(a):
        poll(a, "l2b", 36, 60, "s53", f"s{S_TAG+1}", sleep=o["slpg"])

    def at_dma(a):
        for e in range(12):
            a(f"s_mov_b32 m0, {AT_LDS + 1024*e}\nbuffer_load_dwordx4 v8, s[48:51], s26 offen sc1 lds\ns_add_u32 s26, s26, 32768")

    def at_early(a):
        srd_off(a, 48, S_WS, WS_AT, AT_BYTES)
        a(f"s_lshl_b32 s23, s15, 8\ns_add_u32 s23, s23, {F_CONV}\nbuffer_load_dword v62, v61, s[36:39], s23 offen sc1")
        a("v_lshrrev_b32 v8, 3, v1\nv_lshlrev_b32 v8, 12, v8\nv_and_b32 v9, 7, v1\nv_lshl_add_u32 v8, v9, 4, v8")
        a(f"s_mul_i32 s26, s15, {96*4096}\ns_lshl_b32 s27, s16, 1\ns_add_u32 s26, s26, s27")
        a("s_cmp_eq_u32 s15, 5\ns_cselect_b32 s24, 96, 32\ns_waitcnt vmcnt(0)\nv_readfirstlane_b32 s27, v62")
        a("s_cmp_lg_u32 s27, s24\ns_cbranch_scc1 L_at_skip")
        at_dma(a)
        a("L_at_skip:")
    if o["rot"]:
        gc.loader_after_prefill(a, 36, 0, 4096, "g2", o["aflags"], before_last=at_early, jump=block_jump, wait2=wait_slot, wait8=wait_half)
    else:
        ln_local_wait(a, "lw4", CNT_LDS+8)
        a(f"s_mul_i32 s53, s15, 36\ns_mul_i32 s24, s19, 18\ns_add_u32 s53, s53, s24\ns_lshl_b32 s53, s53, 8\ns_add_u32 s53, s53, {F_GW}")
        a("v_min_u32 v60, 17, v1\nv_lshlrev_b32 v60, 8, v60")
        wait_half(a)
        a("; STAMP 4")
        gc.loader_after_prefill(a, 36*o["rep2"], 0, 4096, "g2", o["aflags"], before_last=at_early, wrap=(HALF2, 36*73728) if o["rep2"] == 2 else None)
    a("s_cmp_eq_u32 s27, s24\ns_cbranch_scc1 L_at_done")
    poll(a, "at", 36, 61, "s23", "s24")
    at_dma(a)
    a("L_at_done:\ns_waitcnt vmcnt(0)\ns_barrier\ns_endpgm")
    a("L_m_helper:\ns_sub_u32 s30, s2, 216\ns_lshr_b32 s30, s30, 3")
    ln_local_wait(a, "lw2", CNT_LDS + (12 if o["split_xn"] else 4))
    if o["tlb"] >= 4:
        M2 = 2 << 20
        items = [(S_W1, k*M2) for k in range(3, 9)] + [(S_W1, W_BYTES_TOTAL - 4)] + [(p, 0) for p in (80, 82, 84, 86, 52, 54)]
        items += [(S_WS, k*M2) for k in range(WS_G//M2 + 1, (WS_END - 1)//M2 + 1)] + [(S_W2, k*M2) for k in range(9)] + [(S_W2, W_BYTES_TOTAL - 4)]
        items += [(48, 0), (48, X_BYTES - 4), (58, 0)]
        for h in range(5):
            a(f"s_cmp_lg_u32 s30, {h}\ns_cbranch_scc1 L_m_st{h}")
            for k, (p, off) in enumerate(items[h::5]):
                a(f"s_add_u32 s8, s{p}, {off:#x}\ns_addc_u32 s9, s{p+1}, 0\ns_load_dword s{12+k}, s[8:9], 0")
            a(f"L_m_st{h}:")
    if o["b1_late"]:
        srd(a, 8, 56, F*2); srd(a, 12, 58, S*2)
        a("v_lshlrev_b32 v5, 7, v1\ns_mov_b32 s23, 8192\nbuffer_load_dword v105, v5, s[8:11], 0 offen\nbuffer_load_dword v106, v5, s[8:11], s23 offen\nbuffer_load_dword v107, v5, s[12:15], 0 offen")
    w1_stream(a, "m1", gc.SRD_W, 30, 5, o["r1"] + 108*o["nB"]//5*4, 2048, o["win2"], short23=o["extra23"])
    a("; STAMP 1")
    srd(a, gc.SRD_W, S_W2, W_BYTES_TOTAL)
    if o["rot"]:
        w2_head(a, "mh", gc.SRD_W, 30, 5, o["win2"])
    w2_stream(a, "m2", gc.SRD_W, 30, 5, 512 if o["rot"] else o["r20"], o["r2"], o["win2"])
    a("; STAMP 2")
    g_pause(a, "gp4", o)
    w2_stream(a, "m4", gc.SRD_W, 30, 8, o["r2"] + 96*o["nC"], 2304, o["win3"])
    if o["x_pf"] is True:
        srd(a, 8, S_X, X_BYTES); x_stream(a, "x4", 8, 30)


def mega(a, name, **opt):
    o = dict(agg=False, slpa=0, split_xn=True, slpg=1, slpx=0, lead=7, dry=False, b1_late=False, lnx=' nt', bias_pf=False, touch_g=True, xwait=True, early_bar=False, extra23=0, r0=0, r20=0, rep1=1, rep2=1, uflags='', rot=False, x_pf=True, ln_lines=False, x_late='tail', late_sig=False, pause=0, xbf=True, rnd1=0, rnd2=0, prio=0, lnw=256, slp=4, touch=True, tlb=4, early2=3, xnt='', ont='', prefill_late=True, r1=384, nB=2, r2=400, nC=0, win1=20, win2=40, win3=40, aflags=" sc1", code_pf=9)
    o.update(opt)
    prefetch.ROT = o["rot"]
    cv.UFLAGS = o["uflags"]
    gc.LEAD = o["lead"]
    a(f".globl {name}\n.p2align 8\n.type {name},@function\n{name}:\nL_m_base:")
    a("s_cmp_ge_u32 s2, 256\ns_cbranch_scc1 L_m_end")
    a(f"s_load_dwordx2 s[{S_X}:{S_X+1}], s[0:1], {KA['x']}\ns_load_dwordx2 s[{S_WS}:{S_WS+1}], s[0:1], {KA['ws']}")
    a(f"s_load_dwordx2 s[{S_W1}:{S_W1+1}], s[0:1], {KA['w1']}\ns_load_dwordx2 s[{S_W2}:{S_W2+1}], s[0:1], {KA['w2']}")
    a("v_lshrrev_b32 v1, 6, v0\nv_readfirstlane_b32 s20, v1\nv_and_b32 v1, 63, v0")
    a("s_cmp_eq_u32 s20, 4\ns_cbranch_scc1 L_m_w4")
    compute_waves(a, o)
    a("L_m_w4:")
    fifth_wave(a, o)
    a("L_m_end:\ns_endpgm\nL_m_last:")


def warm_kernel(a, name, rows, w2rows, main, window=63):
    a(f".globl {name}\n.p2align 8\n.type {name},@function\n{name}:")
    a("s_cmp_ge_u32 s2, 256\ns_cbranch_scc1 L_pre_end")
    if rows >= 0:
        a(f"s_load_dwordx2 s[4:5], s[0:1], {KA['ws']}\ns_load_dwordx2 s[6:7], s[0:1], {KA['x']}\ns_load_dwordx2 s[20:21], s[0:1], {KA['w1']}")
        a(f"s_load_dwordx2 s[22:23], s[0:1], {KA['w2']}\ns_load_dwordx2 s[24:25], s[0:1], {KA['out']}")
        a("v_and_b32 v1, 63, v0\ns_lshr_b32 s30, s2, 3\nv_lshlrev_b32 v4, 20, v1\ns_waitcnt lgkmcnt(0)")
        srd(a, 8, 4, WS_FLG + FLG_BYTES); srd(a, 12, 6, X_BYTES); srd(a, 16, 22, W_BYTES_TOTAL); srd(a, 32, 20, W_BYTES_TOTAL); srd(a, 48, 24, X_BYTES)
        for k, rs in enumerate((8, 12, 16, 48)):
            a(f"buffer_load_dword v{100+k}, v4, s[{rs}:{rs+3}], 0 offen sc1")
        a(f"s_getpc_b64 s[12:13]\nL_pre_pc:\ns_sub_u32 s12, s12, L_pre_pc-L_m_base\ns_subb_u32 s13, s13, 0")
        a("s_mov_b32 s14, L_m_last-L_m_base\ns_mov_b32 s15, 0x20000\nv_lshlrev_b32 v4, 4, v1\ns_lshl_b32 s23, s30, 10")
        a("buffer_load_dwordx4 v[96:99], v4, s[12:15], s23 offen\ns_add_u32 s23, s23, 32768\nbuffer_load_dwordx4 v[96:99], v4, s[12:15], s23 offen")
        w1_stream(a, "pre", 32, 30, 32, 0, rows, window)
        w2_stream(a, "pre", 16, 30, 32, 0, w2rows, window)
    a("L_pre_end:\ns_endpgm")
```

```python
import struct
from asmlib import *
from layout import *
import gemm_core as gc
import mega_ln as ln
import mega_conv as cv
from prefetch import *
import prefetch

AT_LDS = gc.LDS_RING
LN_LDS = 139264
CNT_LDS = LN_LDS + 2*ln.LN_T
LDS_TOTAL = CNT_LDS + 64
S_WS, S_X, S_DBG, S_W1, S_W2 = 4, 6, 94, 96, 98
SPIN = 0x100000
S_TAG = 100
F_SEED = 255 * 256


def f32hex(x):
    return "0x%08x" % struct.unpack("<I", struct.pack("<f", x))[0]


def div6(a, d, r, x):
    a(f"s_mul_i32 s{d}, s{x}, 10923\ns_lshr_b32 s{d}, s{d}, 16\ns_mul_i32 s{r}, s{d}, 6\ns_sub_u32 s{r}, s{x}, s{r}")


def unpk(a, x, p):
    a(f"v_lshlrev_b32 v{x}, 16, v{p}\nv_and_b32 v{x+1}, 0xffff0000, v{p}")


def poll(a, tag, rs, vaddr, soff, target, sleep=1, mask=None):
    a(f"s_mov_b32 s61, {SPIN:#x}\nL_{tag}_poll:\nbuffer_load_dword v62, v{vaddr}, s[{rs}:{rs+3}], {soff} offen sc1")
    a(f"s_sub_u32 s61, s61, 1\ns_cbranch_scc1 L_{tag}_go\ns_waitcnt vmcnt(0)")
    if mask:
        a(f"v_and_b32 v62, {mask:#x}, v62")
    a(f"v_cmp_ne_u32 vcc, {target}, v62")
    a(f"s_cmp_eq_u64 vcc, 0\ns_cbranch_scc1 L_{tag}_go")
    if sleep:
        a(f"s_sleep {sleep}")
    a(f"s_branch L_{tag}_poll\nL_{tag}_go:")


def flags_srd(a, d):
    srd_off(a, d, S_WS, WS_FLG, FLG_BYTES)


def last_wave_signals(a, tag, cnt, rs, soff, word=None, second=None):
    a(f"v_mov_b32 v58, {cnt}\nv_mov_b32 v59, 1\nv_mov_b32 v61, 0\ns_mov_b64 exec, 1\nds_add_rtn_u32 v60, v58, v59\ns_waitcnt lgkmcnt(0)")
    a(f"v_readfirstlane_b32 s23, v60\ns_cmp_lg_u32 s23, 3\ns_cbranch_scc1 L_{tag}_notlast")
    if word:
        a(f"v_mov_b32 v59, {word}\nbuffer_store_dword v59, v61, s[{rs}:{rs+3}], {soff} offen sc1")
    else:
        if second:
            a(f"buffer_atomic_add v59, v61, s[{rs}:{rs+3}], {second} offen sc1")
        a(f"buffer_atomic_add v59, v61, s[{rs}:{rs+3}], {soff} offen sc1")
    a(f"L_{tag}_notlast:\ns_mov_b64 exec, -1")


def ln_local_wait(a, tag, cnt=CNT_LDS+4):
    a(f"v_mov_b32 v58, {cnt}\nL_{tag}:\ns_sleep 2\nds_read_b32 v60, v58\ns_waitcnt lgkmcnt(0)\nv_readfirstlane_b32 s23, v60\ns_cmp_lt_u32 s23, 4\ns_cbranch_scc1 L_{tag}")


def g_pause(a, tag, o):
    if not o["pause"]:
        return
    a(f"s_lshr_b32 s23, s2, 3\ns_mul_i32 s24, s23, 43\ns_lshr_b32 s24, s24, 9\ns_mul_i32 s24, s24, 12\ns_sub_u32 s23, s23, s24\ns_lshl_b32 s23, s23, 8\ns_add_u32 s23, s23, {F_G}")
    a(f"v_mov_b32 v61, 0\ns_mov_b32 s61, {SPIN:#x}\nL_{tag}_poll:\nbuffer_load_dword v62, v61, s[36:39], s23 offen sc1\ns_sub_u32 s61, s61, 1\ns_cbranch_scc1 L_{tag}_go")
    a(f"s_waitcnt vmcnt(0)\nv_readfirstlane_b32 s24, v62\ns_cmp_ge_u32 s24, {o['pause']}\ns_cbranch_scc1 L_{tag}_go\ns_sleep 8\ns_branch L_{tag}_poll\nL_{tag}_go:")


def wait_ln(a, tag, rs, o, base=F_LNW):
    a(f"v_mul_u32_u24 v61, {o['lnw']}, v1\ns_mov_b32 s61, {SPIN:#x}\nL_{tag}_poll:")
    if o["ln_lines"] and base == F_LNW:
        for k in range(4):
            a(f"s_mov_b32 s62, {F_LNW + k*64*o['lnw']}\nbuffer_load_dword v{180+k}, v61, s[{rs}:{rs+3}], s62 offen sc1")
    else:
        a(f"s_mov_b32 s62, {base}\nbuffer_load_dwordx4 v[180:183], v61, s[{rs}:{rs+3}], s62 offen sc1")
    a(f"s_sub_u32 s61, s61, 1\ns_cbranch_scc1 L_{tag}_go\ns_waitcnt vmcnt(0)")
    a(f"v_xor_b32 v180, s{S_TAG+1}, v180\nv_xor_b32 v181, s{S_TAG+1}, v181\nv_xor_b32 v182, s{S_TAG+1}, v182\nv_xor_b32 v183, s{S_TAG+1}, v183")
    a("v_or3_b32 v180, v180, v181, v182\nv_or_b32 v180, v180, v183\nv_cmp_ne_u32 vcc, 0, v180")
    a(f"s_cmp_eq_u64 vcc, 0\ns_cbranch_scc1 L_{tag}_go\ns_sleep {o['slp']}\ns_branch L_{tag}_poll\nL_{tag}_go:")


def tile1(a):
    a("s_and_b32 s12, s2, 7\ns_lshr_b32 s13, s2, 3\ns_and_b32 s14, s12, 1\ns_mul_i32 s14, s14, 3\ns_add_u32 s13, s13, s14")
    a("s_cmp_ge_u32 s13, 27\ns_cselect_b32 s14, 27, 0\ns_sub_u32 s13, s13, s14\ns_mul_i32 s12, s12, 27\ns_add_u32 s12, s12, s13")
    div6(a, 14, 15, 12)


def tile2(a):
    a("s_lshr_b32 s13, s2, 3")
    div6(a, 12, 15, 13)
    a("s_bfe_u32 s19, s2, 0x10002\ns_and_b32 s13, s2, 3\ns_lshl_b32 s14, s13, 2\ns_add_u32 s14, s14, s12")
    a("s_mul_i32 s13, s13, 9\ns_add_u32 s13, s13, 1\ns_lshr_b32 s13, s13, 1")
    a("s_lshl_b32 s16, s14, 7\ns_lshl_b32 s17, s19, 6\ns_add_u32 s16, s16, s17")


def block_jump(kind):
    cnt, base, dst, step = (54, 56, gc.S_W0, 128*4096) if kind == "w" else (55, 57, gc.S_ACT0, 2*73728)
    return [f"s_add_u32 s{cnt}, s{cnt}, 1", f"s_add_u32 s18, s{cnt}, s12", "s_and_b32 s18, s18, 3", f"s_cmp_lt_u32 s{cnt}, 4",
            f"s_cselect_b32 s18, s18, s{cnt}", "s_add_u32 s18, s18, s13", "s_cmp_ge_u32 s18, 18", "s_cselect_b32 s17, 18, 0",
            "s_sub_u32 s18, s18, s17", f"s_mul_i32 s18, s18, {step}", f"s_add_u32 s{dst}, s18, s{base}"]


def gelu_epilogue(a, rounds, rot):
    c1 = -2.0 * 0.7978845608028654 * 1.4426950408889634
    a(f"s_mov_b32 s48, {f32hex(c1*0.044715)}\ns_mov_b32 s49, s48\nv_mov_b32 v36, {f32hex(c1)}\nv_mov_b32 v37, v36")
    for nu in range(4):
        unpk(a, 20+4*nu, 12+2*nu); unpk(a, 22+4*nu, 13+2*nu)
    a(f"s_lshr_b32 s26, s20, 1\ns_mul_i32 s26, s26, {gc.SLOT}\ns_and_b32 s27, s20, 1\ns_mul_i32 s27, s27, 6144\ns_add_u32 s26, s26, s27\ns_add_u32 s26, s26, {gc.W_BYTES}\nv_add_u32 v38, s26, v7")
    B = 112
    for dl in range(3):
        for pi in range(2):
            src = [(gc.acc(2*pi + (k >> 1), dl) + 2*(k & 1), 20 + 4*(2*pi + (k >> 1)) + 2*(k & 1)) for k in range(4)]
            U = [B + 2*k for k in range(4)]; T = [B + 8 + 2*k for k in range(4)]; P = [B + 16 + k for k in range(4)]
            O = B + 20 + 4*((2*dl + pi) % 2)
            if rounds == 2:
                for k in range(4): a(f"v_cvt_pk_bf16_f32 v{P[k]}, v{src[k][0]}, v{src[k][0]+1}")
                for k in range(4): unpk(a, U[k], P[k])
                for k in range(4): a(f"v_pk_add_f32 {vr(U[k],2)}, {vr(U[k],2)}, {vr(src[k][1],2)}")
            else:
                for k in range(4): a(f"v_pk_add_f32 {vr(U[k],2)}, {vr(src[k][0],2)}, {vr(src[k][1],2)}")
            if rounds >= 1:
                for k in range(4): a(f"v_cvt_pk_bf16_f32 v{P[k]}, v{U[k]}, v{U[k]+1}")
                for k in range(4): unpk(a, U[k], P[k])
            for k in range(4): a(f"v_pk_mul_f32 {vr(T[k],2)}, {vr(U[k],2)}, {vr(U[k],2)}")
            for k in range(4): a(f"v_pk_fma_f32 {vr(T[k],2)}, {vr(T[k],2)}, s[48:49], v[36:37]")
            for k in range(4): a(f"v_pk_mul_f32 {vr(T[k],2)}, {vr(T[k],2)}, {vr(U[k],2)}")
            for k in range(4): a(f"v_exp_f32 v{T[k]}, v{T[k]}\nv_exp_f32 v{T[k]+1}, v{T[k]+1}")
            for k in range(4): a(f"v_pk_add_f32 {vr(T[k],2)}, {vr(T[k],2)}, 1.0 op_sel_hi:[1,0]")
            for k in range(4): a(f"v_rcp_f32 v{T[k]}, v{T[k]}\nv_rcp_f32 v{T[k]+1}, v{T[k]+1}")
            for k in range(4): a(f"v_pk_mul_f32 {vr(U[k],2)}, {vr(U[k],2)}, {vr(T[k],2)}")
            for k in range(4): a(f"v_cvt_pk_bf16_f32 v{O+k}, v{U[k]}, v{U[k]+1}")
            a(f"buffer_store_dwordx4 {vr(O,4)}, v7, s[44:47], s17 offen offset:{1024*pi} sc1")
            if rot:
                a(f"ds_write_b128 v38, {vr(O,4)} offset:{(2*dl + pi)*1024}")
        a("s_add_u32 s17, s17, 2048")


def read_tag(a):
    a(f"s_add_u32 s26, s{S_WS}, {WS_FLG + F_SEED:#x}\ns_addc_u32 s27, s{S_WS+1}, 0\ns_load_dword s{S_TAG+1}, s[26:27], 0")


def make_tag(a):
    a(f"s_mul_i32 s{S_TAG+1}, s{S_TAG+1}, 0x9e3779b1\ns_add_u32 s{S_TAG+1}, s{S_TAG+1}, 0x7f4a7c15\ns_andn2_b32 s{S_TAG}, s{S_TAG+1}, 0xff")


def compute_waves(a, o):
    a("s_waitcnt lgkmcnt(0)")
    ln.ln_issue(a, S_X, o['lnx'], 80 if o['dry'] else 10)
    read_tag(a)
    a(f"s_cmp_lg_u32 s20, 0\ns_cbranch_scc1 L_m_nz\nv_mov_b32 v58, {CNT_LDS}\nv_mov_b32 v60, 0\nv_mov_b32 v61, 0\nv_mov_b32 v62, 0\nv_mov_b32 v63, 0")
    a("ds_write_b128 v58, v[60:63]\nL_m_nz:")
    if o["early_bar"]:
        a("s_waitcnt lgkmcnt(0)\ns_barrier")
    a(f"s_load_dwordx2 s[38:39], s[0:1], {KA['b1']}\ns_load_dwordx8 s[76:83], s[0:1], {KA['lar']}".replace("s[76:83]", "s[80:87]"))
    ln.ln_body(a, S_WS, LN_LDS, CNT_LDS, "ln", not o["early_bar"], o["dry"])
    if not o["split_xn"]:
        ln.xn_stores(a, "ln")
    flags_srd(a, 40)
    make_tag(a)
    a("v_mov_b32 v61, 0\ns_cmp_lg_u32 s20, 3\ns_cbranch_scc1 L_m_nozero\ns_sub_u32 s23, s2, 28\ns_cmp_ge_u32 s23, 6\ns_cbranch_scc1 L_m_nozero")
    a("s_lshl_b32 s23, s2, 8\ns_mov_b64 exec, 1\nbuffer_store_dword v61, v61, s[40:43], s23 offen sc1\ns_mov_b64 exec, -1\nL_m_nozero:")
    if o["ln_lines"]:
        a(f"s_mul_i32 s24, s2, {o['lnw']}\ns_add_u32 s24, s24, {F_LNW}")
    else:
        a(f"s_and_b32 s24, s2, 63\ns_mul_i32 s24, s24, {o['lnw']}\ns_lshr_b32 s23, s2, 6\ns_lshl_b32 s23, s23, 2\ns_add_u32 s24, s24, s23\ns_add_u32 s24, s24, {F_LNW}")
    a("s_waitcnt vmcnt(0)\n; STAMP 1")
    last_wave_signals(a, "lnd", CNT_LDS + 4, 40, "s24", word=f"s{S_TAG+1}")
    a("s_lshr_b32 s29, s2, 3\ns_lshl_b32 s29, s29, 2\ns_add_u32 s29, s29, s20")
    srd(a, 32, S_W1, W_BYTES_TOTAL)
    if o["split_xn"]:
        ln.xn_stores(a, "ln")
        a(f"s_and_b32 s24, s2, 63\ns_mul_i32 s24, s24, {o['lnw']}\ns_lshr_b32 s23, s2, 6\ns_lshl_b32 s23, s23, 2\ns_add_u32 s24, s24, s23\ns_add_u32 s24, s24, {F_XNW}")
        if o["b_first"]:
            a("s_cmp_ge_u32 s2, 216\ns_cbranch_scc1 L_m_nob")
            w1_burst(a, 32, 29, 108, o["r1"]//4*5, o["nB"])
            a(f"s_waitcnt vmcnt({o['nB']})\ns_branch L_m_hadb\nL_m_nob:\ns_waitcnt vmcnt(0)\nL_m_hadb:")
        else:
            a("s_waitcnt vmcnt(0)")
        last_wave_signals(a, "xnd", CNT_LDS + 12, 40, "s24", word=f"s{S_TAG+1}")
    a("s_cmp_ge_u32 s2, 216\ns_cbranch_scc1 L_m_conv")
    if not (o["split_xn"] and o["b_first"]):
        w1_burst(a, 32, 29, 108, o["r1"]//4*5, o["nB"])
    srd(a, 32, S_W2, W_BYTES_TOTAL)
    tile1(a)
    gc.lane_ids(a)
    gc.compute_setup(a, "A")
    srd(a, 8, 38, F*2)
    a(f"s_lshr_b32 s16, s20, 1\ns_lshl_b32 s17, s16, 7\ns_lshl_b32 s18, s14, 8\ns_add_u32 s17, s17, s18\nv_lshlrev_b32 v9, 3, v3")
    a("s_mov_b32 s22, s17")

    def b1_loads(a):
        for nu in range(4):
            a(f"buffer_load_dwordx2 {vr(12+2*nu,2)}, v9, s[8:11], s22 offen offset:{32*nu}")
    if not o["b1_late"]:
        b1_loads(a)
    for i in range(48):
        a(f"v_mov_b32 v{gc.V_ACC+i}, 0")
    srd_off(a, 44, S_WS, WS_G, G_BYTES)
    a("s_and_b32 s17, s20, 1\ns_mul_i32 s17, s17, 3\ns_mul_i32 s18, s15, 6\ns_add_u32 s17, s17, s18\ns_lshl_b32 s17, s17, 11")
    a("s_lshl_b32 s18, s14, 1\ns_add_u32 s18, s18, s16\ns_mul_i32 s18, s18, 73728\ns_add_u32 s17, s17, s18")
    a(f"s_mul_i32 s24, s15, 36\ns_add_u32 s24, s24, s14\ns_lshl_b32 s24, s24, 8\ns_add_u32 s24, s24, {F_GW}")
    a(f"s_load_dwordx4 s[52:55], s[0:1], {KA['b2']}")
    gc.compute_main(a, 32*o["rep1"], "A", False, "g1", last_barrier=True, st=(5, 2), tail_hook=b1_loads if o["b1_late"] else None)
    if o["rep1"] == 2:
        for i in range(48):
            a(f"v_mul_f32 v{gc.V_ACC+i}, 0.5, v{gc.V_ACC+i}")
    a("s_waitcnt vmcnt(0)")
    gelu_epilogue(a, o['rnd1'], o['rot'])
    a("s_cmp_lt_u32 s2, 192\ns_cbranch_scc1 L_m_g2\ns_waitcnt vmcnt(0)")
    last_wave_signals(a, "gd", CNT_LDS + 8, 40, "s24", word=f"s{S_TAG+1}")
    a("; STAMP 3\ns_branch L_m_conv1\nL_m_g2:")
    tile2(a)
    gc.compute_setup(a, "B", s_kh=19)
    srd(a, 32, S_X, X_BYTES); srd(a, 28, 52, S*2)
    a("s_lshr_b32 s17, s20, 1\ns_lshl_b32 s17, s17, 5\ns_add_u32 s17, s17, s16")
    a("s_mul_i32 s18, s15, 96\ns_and_b32 s26, s20, 1\ns_mul_i32 s26, s26, 48\ns_add_u32 s18, s18, s26")
    a("v_mul_u32_u24 v58, 1152, v2\nv_lshl_add_u32 v58, v3, 3, v58\nv_lshlrev_b32 v9, 1, v2")
    a("s_mul_i32 s56, s17, 1152\ns_lshl_b32 s26, s18, 1\ns_add_u32 s56, s56, s26\ns_add_u32 s57, s56, 18432\ns_lshl_b32 s26, s17, 1")
    a("s_mov_b32 s22, s26\nv_mov_b32 v39, v58")
    for i in range(48):
        a(f"v_mov_b32 v{gc.V_ACC+i}, 0")
    a("v_bfe_u32 v4, v1, 2, 2\nv_lshl_add_u32 v4, v3, 2, v4\nv_lshlrev_b32 v4, 7, v4\nv_and_b32 v5, 3, v1\nv_lshl_add_u32 v4, v5, 3, v4")
    a(f"s_and_b32 s26, s20, 1\ns_mul_i32 s26, s26, 6144\ns_lshr_b32 s27, s20, 1\ns_lshl_b32 s27, s27, 6\ns_add_u32 s26, s26, s27\ns_add_u32 s26, s26, {AT_LDS}\nv_add_u32 v59, s26, v4")
    a("v_mov_b32 v31, v59")
    a("s_xor_b32 s58, s2, 4\ns_lshl_b32 s26, s20, 12\ns_lshl_b32 s59, s58, 14\ns_add_u32 s59, s59, s26\ns_lshl_b32 s60, s2, 14\ns_add_u32 s60, s60, s26")
    assert o["xbf"]

    def x_loads(a):
        for nu in range(2):
            for dl in range(3):
                a(f"buffer_load_dwordx2 {vr(10+2*(3*nu+dl),2)}, v39, s[32:35], s{56+nu} offen offset:{32*dl}{o['xnt']}")
            a(f"buffer_load_ushort v{22+nu}, v9, s[28:31], s22 offen offset:{32*nu}")

    def publish_g(a):
        a("s_waitcnt vmcnt(0)")
        last_wave_signals(a, "gd2", CNT_LDS + 8, 40, "s24", word=f"s{S_TAG+1}")
        a("; STAMP 3\n; SWAIT")
        if not o["x_late"]:
            x_loads(a)

    if o["late_sig"]:
        gc.compute_main(a, 36, "B", True, "g2", st=(5, 4), first_stage1=publish_g)
    else:
        publish_g(a)
        gc.compute_main(a, 36*o["rep2"], "B", True, "g2", st=(5, 4), tail_hook=x_loads if o["x_late"] == "tail" else None)
        if o["rep2"] == 2:
            for i in range(48):
                a(f"v_mul_f32 v{gc.V_ACC+i}, 0.5, v{gc.V_ACC+i}")
    srd_off(a, 8, S_WS, WS_XCH, XCH_BYTES); srd(a, 44, 54, X_BYTES)
    a("v_mov_b32 v58, v39\nv_mov_b32 v59, v31")
    a("; STAMP 5")
    SN = 172
    NG = 4 if o["xbf"] else 8
    for k in range(NG):
        for m in range(3):
            if o["xbf"]:
                a(f"v_cvt_pk_bf16_f32 v{SN+4*k+m}, v{gc.V_ACC+24+6*k+2*m}, v{gc.V_ACC+25+6*k+2*m}")
            else:
                a(f"v_mov_b32 v{SN+4*k+m}, v{gc.V_ACC+24+3*k+m}")
        a(f"v_mov_b32 v{SN+4*k+3}, s{S_TAG+1}")
        a(f"buffer_store_dwordx4 {vr(SN+4*k,4)}, v7, s[8:11], s59 offen sc1\ns_add_u32 s59, s59, 1024")
    if o["x_late"] is True:
        x_loads(a)
    a("s_barrier")
    AR, PF = 112, 124
    for nu in range(2):
        for dl in range(3):
            a(f"ds_read_b64_tr_b16 {vr(AR+2*(3*nu+dl),2)}, v59 offset:{2048*dl + 32*nu}")
    a(f"s_waitcnt vmcnt({0 if o['x_late'] is True else NG})\nv_lshlrev_b32 v22, 16, v22\nv_lshlrev_b32 v24, 16, v23\ns_waitcnt lgkmcnt(0)")
    for t in range(6):
        for h in range(2):
            unpk(a, 26, 10+2*t+h); unpk(a, 28, AR+2*t+h)
            if o["rnd2"]:
                a("v_pk_add_f32 v[26:27], v[26:27], v[28:29]\nv_cvt_pk_bf16_f32 v30, v26, v27")
                unpk(a, PF+4*t+2*h, 30)
            else:
                b = gc.V_ACC + 4*t + 2*h
                a(f"v_pk_add_f32 v[26:27], v[26:27], v[28:29]\nv_pk_add_f32 {vr(b,2)}, {vr(b,2)}, {vr(22+2*(t//3),2)} op_sel_hi:[1,0]")
                a(f"v_pk_add_f32 {vr(b,2)}, {vr(b,2)}, v[26:27]")
    RX = 204
    if o["xwait"]:
        a("s_waitcnt vmcnt(0)")
    a(f"s_mov_b32 s61, {SPIN:#x}\ns_add_u32 s62, s60, 4096\nL_xch_poll:")
    for k in range(NG):
        a(f"buffer_load_dwordx4 {vr(RX+4*k,4)}, v7, s[8:11], s{60 + 2*(k >> 2)} offen offset:{1024*(k & 3)} sc1")
    a(f"s_sub_u32 s61, s61, 1\ns_cbranch_scc1 L_xch_go\ns_waitcnt vmcnt(0)\nv_xor_b32 v4, s{S_TAG+1}, v{RX+3}")
    for k in range(1, NG):
        a(f"v_xor_b32 v5, s{S_TAG+1}, v{RX+4*k+3}\nv_or_b32 v4, v4, v5")
    a("v_cmp_ne_u32 vcc, 0, v4\ns_cmp_eq_u64 vcc, 0\ns_cbranch_scc1 L_xch_go")
    if o["slpx"]:
        a(f"s_sleep {o['slpx']}")
    a("s_branch L_xch_poll\nL_xch_go:")
    for t in range(6):
        nu, dl = divmod(t, 3)
        b, p = gc.V_ACC + 4*t, PF + 4*t
        if o["xbf"]:
            for h in range(2):
                k, m = divmod(2*t + h, 3)
                unpk(a, 26+2*h, RX+4*k+m)
            for h in range(2): a(f"v_pk_add_f32 {vr(b+2*h,2)}, {vr(b+2*h,2)}, {vr(26+2*h,2)}")
        else:
            for e in range(4):
                k, m = divmod(4*t + e, 3)
                a(f"v_add_f32 v{b+e}, v{b+e}, v{RX+4*k+m}")
        if o['rnd2']:
            for h in range(2): a(f"v_cvt_pk_bf16_f32 v{26+h}, v{b+2*h}, v{b+2*h+1}")
            for h in range(2): unpk(a, b+2*h, 26+h)
            for h in range(2): a(f"v_pk_add_f32 {vr(b+2*h,2)}, {vr(b+2*h,2)}, {vr(22+2*nu,2)} op_sel_hi:[1,0]")
            for h in range(2): a(f"v_cvt_pk_bf16_f32 v{26+h}, v{b+2*h}, v{b+2*h+1}")
            for h in range(2): unpk(a, b+2*h, 26+h)
            for h in range(2): a(f"v_pk_add_f32 {vr(b+2*h,2)}, {vr(b+2*h,2)}, {vr(p+2*h,2)}")
        for h in range(2): a(f"v_cvt_pk_bf16_f32 v{10+2*t+h}, v{b+2*h}, v{b+2*h+1}")
        a(f"buffer_store_dwordx2 {vr(10+2*t,2)}, v58, s[44:47], s{56+nu} offen offset:{32*dl}{o['ont']}")
    a("s_endpgm")
    a("L_m_conv1:\ns_mov_b32 s30, 1\ns_sub_u32 s31, s2, 72\ns_lshl_b32 s31, s31, 2\ns_add_u32 s31, s31, s20\ns_branch L_m_conv2")
    a("L_m_conv:\ns_mov_b32 s30, 3\ns_sub_u32 s31, s2, 216\ns_lshl_b32 s31, s31, 2\ns_add_u32 s31, s31, s20\ns_mul_i32 s31, s31, 3\nL_m_conv2:")
    a("s_mul_i32 s29, s31, 683\ns_lshr_b32 s29, s29, 16")
    a(f"s_load_dwordx4 s[32:35], s[0:1], {KA['ldt']}\ns_waitcnt lgkmcnt(0)")
    cv.param_loads(a, 80, 32, 34)

    def signal(a):
        a("s_lshl_b32 s36, s29, 8")
        a(f"s_add_u32 s36, s36, {F_CONV}\nv_mov_b32 v4, 1\nv_mov_b32 v5, 0\ns_mov_b64 exec, 1\nbuffer_atomic_add v4, v5, s[8:11], s36 offen sc1")
    flags_srd(a, 8)
    cv.conv_role(a, "cv", S_WS, lambda a, t: wait_ln(a, "cvln" + t, 8, o, F_XNW if o["split_xn"] else F_LNW), signal)
    a("s_endpgm")


def fifth_wave(a, o):
    if o["prio"]:
        a(f"s_setprio {o['prio']}")
    a(f"s_load_dwordx2 s[48:49], s[0:1], {KA['out']}\ns_load_dwordx8 s[80:87], s[0:1], {KA['lar']}\ns_load_dwordx4 s[52:55], s[0:1], {KA['ldt']}")
    a(f"s_load_dwordx2 s[56:57], s[0:1], {KA['b1']}\ns_load_dwordx2 s[58:59], s[0:1], {KA['b2']}")
    a("s_waitcnt lgkmcnt(0)")
    flags_srd(a, 36)
    read_tag(a)
    if o["tlb"] >= 4:
        srd(a, 8, S_WS, WS_G); srd(a, 16, S_W1, 5 << 20)
        a("v_lshlrev_b32 v4, 21, v1\nbuffer_load_dword v100, v4, s[8:11], 0 offen sc1\nbuffer_load_dword v104, v4, s[16:19], 0 offen")
        srd(a, 8, 56, 4)
        a("buffer_load_dword v105, v4, s[8:11], 0 offen")
    elif o["tlb"]:
        srd(a, 8, S_WS, WS_END); srd(a, 16, S_W2, W_BYTES_TOTAL)
        a("v_lshlrev_b32 v4, 20, v1\nbuffer_load_dword v100, v4, s[8:11], 0 offen sc1\nbuffer_load_dword v101, v4, s[16:19], 0 offen")
        srd(a, 8, 48, X_BYTES); srd(a, 16, S_W1, W_BYTES_TOTAL)
        a("buffer_load_dword v102, v4, s[8:11], 0 offen")
        if o["tlb"] >= 2:
            a("buffer_load_dword v104, v4, s[16:19], 0 offen")
            small = [80, 82, 84, 86, 52, 54, 56, 58]
            for k, p in enumerate(small):
                if o["tlb"] == 3:
                    a(f"s_bfe_u32 s23, s2, 0x30003\ns_cmp_lg_u32 s23, {k}\ns_cbranch_scc1 L_m_tl{k}")
                if k < 6 or not o["bias_pf"]:
                    srd(a, 8, p, 4)
                    a(f"buffer_load_dword v{105+k}, v4, s[8:11], 0 offen")
                else:
                    srd(a, 8, p, F*2 if k == 6 else S*2)
                    a(f"v_lshlrev_b32 v5, 7, v1\nbuffer_load_dword v{105+k}, v5, s[8:11], 0 offen")
                    if k == 6:
                        a("s_mov_b32 s23, 8192\nbuffer_load_dword v113, v5, s[8:11], s23 offen")
                a(f"L_m_tl{k}:")
    if o["touch"]:
        todo = [F_LNW + k*64*o["lnw"] for k in range(4 if o["ln_lines"] else 1)] + [F_XNW] + ([F_REL] if o["agg"] else [])
        for k, off in enumerate(todo):
            a(f"s_cmp_lg_u32 s2, {5*k if k < 2 else 4+k}\ns_cbranch_scc1 L_m_nt{k}\nv_mul_u32_u24 v5, {o['lnw']}, v1\ns_mov_b32 s23, {off}\nbuffer_load_dword v103, v5, s[36:39], s23 offen\nL_m_nt{k}:")
    if o["touch_g"]:
        a(f"s_sub_u32 s23, s2, 1\ns_cmp_ge_u32 s23, 4\ns_cbranch_scc1 L_m_notouch2\nv_lshlrev_b32 v5, 8, v1\ns_lshl_b32 s23, s23, 14\ns_add_u32 s23, s23, {F_GW}")
        a("buffer_load_dword v103, v5, s[36:39], s23 offen\nL_m_notouch2:")
    srd(a, gc.SRD_W, S_W1, W_BYTES_TOTAL)
    if o["early_bar"]:
        a("s_barrier")
    a("s_lshr_b32 s30, s2, 3")
    if o["code_pf"]:
        a("s_getpc_b64 s[12:13]\nL_m_pc:\ns_sub_u32 s12, s12, L_m_pc-L_m_base\ns_subb_u32 s13, s13, 0")
        a("s_mov_b32 s14, L_m_last-L_m_base\ns_mov_b32 s15, 0x20000\nv_lshlrev_b32 v4, 4, v1\ns_lshl_b32 s23, s30, 10")
        a("buffer_load_dwordx4 v[96:99], v4, s[12:15], s23 offen\ns_add_u32 s23, s23, 32768\nbuffer_load_dwordx4 v[96:99], v4, s[12:15], s23 offen")
    w1_stream(a, "m0", gc.SRD_W, 30, 32, o["r0"], o["r1"], o["win1"])
    if o["extra23"]:
        a("s_and_b32 s23, s2, 6\ns_cmp_lg_u32 s23, 2\ns_cbranch_scc1 L_m_nox23")
        w1_stream(a, "m23", gc.SRD_W, 30, 32, 2048 - o["extra23"], 2048, o["win1"])
        a("L_m_nox23:")
    a("s_waitcnt lgkmcnt(0)")
    make_tag(a)
    if not o["early_bar"]:
        a("s_barrier")
    a("; STAMP 0\ns_cmp_ge_u32 s2, 216\ns_cbranch_scc1 L_m_helper")
    tile1(a)
    gc.lane_ids(a)
    a(f"s_mul_i32 s{gc.S_ACT0}, s15, 12288\ns_lshl_b32 s{gc.S_W0}, s14, 8")
    gc.loader_setup(a, 0, 9216, "A")
    srd_off(a, gc.SRD_ACT, S_WS, WS_HT, HT_BYTES)
    ln_local_wait(a, "lw1")
    a("; STAMP 0")
    gc.w_prefill(a, range(4), 0, 9216)
    a("; STAMP 1")
    if o["agg"]:
        a(f"s_and_b32 s23, s2, 7\ns_lshl_b32 s23, s23, 8\ns_add_u32 s23, s23, {F_REL}\ns_cmp_ge_u32 s2, 8\ns_cbranch_scc1 L_m_follow")
        wait_ln(a, "l1", 36, dict(o, slp=o["slpa"]))
        a(f"v_mov_b32 v4, s{S_TAG+1}\nv_mov_b32 v5, 0\ns_mov_b64 exec, 1\nbuffer_store_dword v4, v5, s[36:39], s23 offen sc1\ns_mov_b64 exec, -1\ns_branch L_l1f_go\nL_m_follow:\nv_mov_b32 v61, 0")
        poll(a, "l1f", 36, 61, "s23", f"s{S_TAG+1}", sleep=o["slp"])
    else:
        wait_ln(a, "l1", 36, o)
    a(f"; STAMP 2\ns_cmp_lg_u32 s2, 0\ns_cbranch_scc1 L_m_noseed\nv_mov_b32 v4, s{S_TAG+1}\nv_mov_b32 v5, {F_SEED}\ns_mov_b64 exec, 1")
    a("buffer_store_dword v4, v5, s[36:39], 0 offen sc1\ns_mov_b64 exec, -1\nL_m_noseed:")
    gc.loader_after_prefill(a, 32*o["rep1"], 0, 9216, "g1", o["aflags"], tail=lambda a: None, wrap=(2048*9216, 32*73728) if o["rep1"] == 2 else None)
    srd(a, gc.SRD_W, S_W2, W_BYTES_TOTAL)
    a("s_cmp_lt_u32 s2, 192\ns_cbranch_scc1 L_m_l2")
    a("s_waitcnt vmcnt(28)\ns_barrier\ns_waitcnt vmcnt(0)\ns_barrier\ns_barrier\ns_sub_u32 s30, s2, 152\ns_lshr_b32 s30, s30, 3")
    ln_local_wait(a, "lw3", CNT_LDS+8)
    if o["x_pf"] == "early":
        srd(a, 8, S_X, X_BYTES); a("s_sub_u32 s31, s30, 5\ns_mul_i32 s31, s31, 3")
        for k in range(3):
            if k == 2:
                a("s_cmp_eq_u32 s31, 8\ns_cbranch_scc1 L_m_nox")
            x_stream(a, f"xe{k}", 8, 31)
            a("s_add_u32 s31, s31, 1")
        a("L_m_nox:")
    g_pause(a, "gp3", o)
    w2_stream(a, "m3", gc.SRD_W, 30, 8, o["r2"] + 96*o["nC"], 2304, o["win3"])
    if o["x_pf"] is True:
        srd(a, 8, S_X, X_BYTES); x_stream(a, "x3", 8, 30)
    a("s_endpgm\nL_m_l2:")
    tile2(a)
    a(f"s_mul_i32 s57, s15, 12288\ns_mul_i32 s18, s19, {36*73728}\ns_add_u32 s57, s57, s18")
    a(f"s_lshl_b32 s56, s14, 8\ns_mul_i32 s18, s19, {HALF2}\ns_add_u32 s56, s56, s18\ns_mov_b32 s54, -1\ns_mov_b32 s55, -1")
    jump = block_jump if o["rot"] else None
    if o["rot"]:
        a.extend(block_jump("w") + block_jump("a"))
    else:
        a(f"s_mov_b32 s{gc.S_W0}, s56\ns_mov_b32 s{gc.S_ACT0}, s57")
    gc.loader_setup(a, 0, 4096, "B")
    srd_off(a, gc.SRD_ACT, S_WS, WS_G, G_BYTES)
    e2 = o["early2"]
    for j, vm in enumerate((28, 0, None)):
        if j < e2:
            gc.w_prefill(a, [j], 0, 4096, jump)
        if vm is not None:
            a(f"s_waitcnt vmcnt({vm + 16*min(j+1, e2)})")
        a("s_barrier")
    a("; STAMP 5")
    gc.w_prefill(a, range(min(e2, 3), 4), 0, 4096, jump)
    a("v_mov_b32 v61, 0\n; STAMP 3")

    def wait_slot(a):
        a(f"s_mul_i32 s23, s15, 36\ns_mul_i32 s24, s19, 18\ns_add_u32 s23, s23, s24\ns_lshl_b32 s23, s23, 8\ns_add_u32 s23, s23, {F_GW}")
        a("v_and_b32 v60, 3, v1\nv_add_u32 v60, s13, v60\nv_lshlrev_b32 v60, 8, v60")
        poll(a, "l2a", 36, 60, "s23", f"s{S_TAG+1}")
        a("; STAMP 4\nv_min_u32 v60, 17, v1\nv_lshlrev_b32 v60, 8, v60\ns_mov_b32 s53, s23")

    def wait_half(a):
        poll(a, "l2b", 36, 60, "s53", f"s{S_TAG+1}", sleep=o["slpg"])

    def at_dma(a):
        for e in range(12):
            a(f"s_mov_b32 m0, {AT_LDS + 1024*e}\nbuffer_load_dwordx4 v8, s[48:51], s26 offen sc1 lds\ns_add_u32 s26, s26, 32768")

    def at_early(a):
        srd_off(a, 48, S_WS, WS_AT, AT_BYTES)
        a(f"s_lshl_b32 s23, s15, 8\ns_add_u32 s23, s23, {F_CONV}\nbuffer_load_dword v62, v61, s[36:39], s23 offen sc1")
        a("v_lshrrev_b32 v8, 3, v1\nv_lshlrev_b32 v8, 12, v8\nv_and_b32 v9, 7, v1\nv_lshl_add_u32 v8, v9, 4, v8")
        a(f"s_mul_i32 s26, s15, {96*4096}\ns_lshl_b32 s27, s16, 1\ns_add_u32 s26, s26, s27")
        a("s_cmp_eq_u32 s15, 5\ns_cselect_b32 s24, 96, 32\ns_waitcnt vmcnt(0)\nv_readfirstlane_b32 s27, v62")
        a("s_cmp_lg_u32 s27, s24\ns_cbranch_scc1 L_at_skip")
        at_dma(a)
        a("L_at_skip:")
    if o["rot"]:
        gc.loader_after_prefill(a, 36, 0, 4096, "g2", o["aflags"], before_last=at_early, jump=block_jump, wait2=wait_slot, wait8=wait_half)
    else:
        ln_local_wait(a, "lw4", CNT_LDS+8)
        a(f"s_mul_i32 s53, s15, 36\ns_mul_i32 s24, s19, 18\ns_add_u32 s53, s53, s24\ns_lshl_b32 s53, s53, 8\ns_add_u32 s53, s53, {F_GW}")
        a("v_min_u32 v60, 17, v1\nv_lshlrev_b32 v60, 8, v60")
        wait_half(a)
        a("; STAMP 4")
        gc.loader_after_prefill(a, 36*o["rep2"], 0, 4096, "g2", o["aflags"], before_last=at_early, wrap=(HALF2, 36*73728) if o["rep2"] == 2 else None)
    a("s_cmp_eq_u32 s27, s24\ns_cbranch_scc1 L_at_done")
    poll(a, "at", 36, 61, "s23", "s24")
    at_dma(a)
    a("L_at_done:\ns_waitcnt vmcnt(0)\ns_barrier\ns_endpgm")
    a("L_m_helper:\ns_sub_u32 s30, s2, 216\ns_lshr_b32 s30, s30, 3")
    ln_local_wait(a, "lw2", CNT_LDS + (12 if o["split_xn"] and not o["h_early"] else 4))
    if o["tlb"] >= 4:
        M2 = 2 << 20
        items = [(S_W1, k*M2) for k in range(3, 9)] + [(S_W1, W_BYTES_TOTAL - 4)] + [(p, 0) for p in (80, 82, 84, 86, 52, 54)]
        items += [(S_WS, k*M2) for k in range(WS_G//M2 + 1, (WS_END - 1)//M2 + 1)] + [(S_W2, k*M2) for k in range(9)] + [(S_W2, W_BYTES_TOTAL - 4)]
        items += [(48, 0), (48, X_BYTES - 4), (58, 0)]
        for h in range(5):
            a(f"s_cmp_lg_u32 s30, {h}\ns_cbranch_scc1 L_m_st{h}")
            for k, (p, off) in enumerate(items[h::5]):
                a(f"s_add_u32 s8, s{p}, {off:#x}\ns_addc_u32 s9, s{p+1}, 0\ns_load_dword s{12+k}, s[8:9], 0")
            a(f"L_m_st{h}:")
    if o["b1_late"]:
        srd(a, 8, 56, F*2); srd(a, 12, 58, S*2)
        a("v_lshlrev_b32 v5, 7, v1\ns_mov_b32 s23, 8192\nbuffer_load_dword v105, v5, s[8:11], 0 offen\nbuffer_load_dword v106, v5, s[8:11], s23 offen\nbuffer_load_dword v107, v5, s[12:15], 0 offen")
    w1_stream(a, "m1", gc.SRD_W, 30, 5, o["r1"] + 108*o["nB"]//5*4, 2048, o["win2"], short23=o["extra23"])
    a("; STAMP 1")
    srd(a, gc.SRD_W, S_W2, W_BYTES_TOTAL)
    if o["rot"]:
        w2_head(a, "mh", gc.SRD_W, 30, 5, o["win2"])
    w2_stream(a, "m2", gc.SRD_W, 30, 5, 512 if o["rot"] else o["r20"], o["r2"], o["win2"])
    a("; STAMP 2")
    g_pause(a, "gp4", o)
    w2_stream(a, "m4", gc.SRD_W, 30, 8, o["r2"] + 96*o["nC"], 2304, o["win3"])
    if o["x_pf"] is True:
        srd(a, 8, S_X, X_BYTES); x_stream(a, "x4", 8, 30)


def mega(a, name, **opt):
    o = dict(b_first=True, h_early=True, agg=False, slpa=0, split_xn=True, slpg=1, slpx=0, lead=7, dry=False, b1_late=False, lnx=' nt', bias_pf=False, touch_g=True, xwait=True, early_bar=False, extra23=0, r0=0, r20=0, rep1=1, rep2=1, uflags='', rot=False, x_pf=True, ln_lines=False, x_late='tail', late_sig=False, pause=0, xbf=True, rnd1=0, rnd2=0, prio=0, lnw=256, slp=4, touch=True, tlb=4, early2=3, xnt='', ont='', prefill_late=True, r1=384, nB=2, r2=400, nC=0, win1=20, win2=40, win3=40, aflags=" sc1", code_pf=9)
    o.update(opt)
    prefetch.ROT = o["rot"]
    cv.UFLAGS = o["uflags"]
    gc.LEAD = o["lead"]
    a(f".globl {name}\n.p2align 8\n.type {name},@function\n{name}:\nL_m_base:")
    a("s_cmp_ge_u32 s2, 256\ns_cbranch_scc1 L_m_end")
    a(f"s_load_dwordx2 s[{S_X}:{S_X+1}], s[0:1], {KA['x']}\ns_load_dwordx2 s[{S_WS}:{S_WS+1}], s[0:1], {KA['ws']}")
    a(f"s_load_dwordx2 s[{S_W1}:{S_W1+1}], s[0:1], {KA['w1']}\ns_load_dwordx2 s[{S_W2}:{S_W2+1}], s[0:1], {KA['w2']}")
    a("v_lshrrev_b32 v1, 6, v0\nv_readfirstlane_b32 s20, v1\nv_and_b32 v1, 63, v0")
    a("s_cmp_eq_u32 s20, 4\ns_cbranch_scc1 L_m_w4")
    compute_waves(a, o)
    a("L_m_w4:")
    fifth_wave(a, o)
    a("L_m_end:\ns_endpgm\nL_m_last:")


def warm_kernel(a, name, rows, w2rows, main, window=63):
    a(f".globl {name}\n.p2align 8\n.type {name},@function\n{name}:")
    a("s_cmp_ge_u32 s2, 256\ns_cbranch_scc1 L_pre_end")
    if rows >= 0:
        a(f"s_load_dwordx2 s[4:5], s[0:1], {KA['ws']}\ns_load_dwordx2 s[6:7], s[0:1], {KA['x']}\ns_load_dwordx2 s[20:21], s[0:1], {KA['w1']}")
        a(f"s_load_dwordx2 s[22:23], s[0:1], {KA['w2']}\ns_load_dwordx2 s[24:25], s[0:1], {KA['out']}")
        a("v_and_b32 v1, 63, v0\ns_lshr_b32 s30, s2, 3\nv_lshlrev_b32 v4, 20, v1\ns_waitcnt lgkmcnt(0)")
        srd(a, 8, 4, WS_FLG + FLG_BYTES); srd(a, 12, 6, X_BYTES); srd(a, 16, 22, W_BYTES_TOTAL); srd(a, 32, 20, W_BYTES_TOTAL); srd(a, 48, 24, X_BYTES)
        for k, rs in enumerate((8, 12, 16, 48)):
            a(f"buffer_load_dword v{100+k}, v4, s[{rs}:{rs+3}], 0 offen sc1")
        a(f"s_getpc_b64 s[12:13]\nL_pre_pc:\ns_sub_u32 s12, s12, L_pre_pc-L_m_base\ns_subb_u32 s13, s13, 0")
        a("s_mov_b32 s14, L_m_last-L_m_base\ns_mov_b32 s15, 0x20000\nv_lshlrev_b32 v4, 4, v1\ns_lshl_b32 s23, s30, 10")
        a("buffer_load_dwordx4 v[96:99], v4, s[12:15], s23 offen\ns_add_u32 s23, s23, 32768\nbuffer_load_dwordx4 v[96:99], v4, s[12:15], s23 offen")
        w1_stream(a, "pre", 32, 30, 32, 0, rows, window)
        w2_stream(a, "pre", 16, 30, 32, 0, w2rows, window)
    a("L_pre_end:\ns_endpgm")
```

```python
import sys
sys.path.insert(0, "dev")
from asmlib import *
from layout import *
import hazard, k1 as K1, k23

HEADER = open(f"cdna_kernels/{NAME}.s.ref").read().split("; Override launch geometry")[0]


def descriptor(name, vgpr, sgpr=96):
    return (f".p2align 6\n.amdhsa_kernel {name}\n  .amdhsa_next_free_vgpr {vgpr}\n  .amdhsa_next_free_sgpr {sgpr}\n"
            f"  .amdhsa_accum_offset {vgpr}\n  .amdhsa_group_segment_fixed_size 0\n  .amdhsa_kernarg_size 120\n"
            "  .amdhsa_user_sgpr_count 2\n  .amdhsa_user_sgpr_kernarg_segment_ptr 1\n  .amdhsa_system_sgpr_workgroup_id_x 1\n"
            ".end_amdhsa_kernel\n")


WS_STAMP = 0x2000000


def add_stamps(lines, names, cyc=True):
    out, k = [], -1
    for ln in lines:
        t = ln.strip()
        if t.endswith(":") and t[:-1] in names:
            k = names.index(t[:-1])
            out += [ln, "  s_memrealtime s[78:79]", "  s_load_dwordx2 s[76:77], s[0:1], 112", "  v_lshrrev_b32 v255, 6, v0".replace("v255", "v127"),
                    "  s_nop 0", "  v_readfirstlane_b32 s95, v127", "  s_lshl_b32 s94, s2, 4", "  s_add_u32 s95, s95, s94", "  s_lshl_b32 s95, s95, 5", "  s_waitcnt lgkmcnt(0)"]
            out += [f"  s_mov_b32 s{64+2*i}, s78" for i in range(6)]
            continue
        if t.startswith("; STAMP"):
            i = int(t.split()[2])
            if i < 6:
                out += [f"  s_memrealtime s[{64+2*i}:{65+2*i}]"]
            continue
        if t == "; SWAIT":
            out.append("  s_waitcnt lgkmcnt(0)")
            continue
        if t.startswith("; CYC"):
            i = int(t.split()[2])
            continue
        if t == "s_endpgm":
            if cyc:
                out += ["  s_waitcnt lgkmcnt(0)", "  s_sub_u32 s74, s78, s76", "  s_add_u32 s74, s74, s78"]
            out += ["  s_waitcnt vmcnt(0) lgkmcnt(0)", "  s_memrealtime s[92:93]",
                    f"  s_add_u32 s80, s76, {WS_STAMP + k*0x40000:#x}", "  s_addc_u32 s81, s77, 0", "  s_mov_b32 s82, 0x40000", "  s_mov_b32 s83, 0x20000",
                    "  s_waitcnt lgkmcnt(0)", "  s_mov_b64 exec, 1", "  v_mov_b32 v120, s78", "  v_mov_b32 v121, s92", "  v_mov_b32 v122, s64", "  v_mov_b32 v123, s66",
                    "  v_mov_b32 v124, 0", "  buffer_store_dwordx4 v[120:123], v124, s[80:83], s95 offen",
                    "  v_mov_b32 v116, s68", "  v_mov_b32 v117, s70", "  v_mov_b32 v118, s72", "  v_mov_b32 v119, s74",
                    "  buffer_store_dwordx4 v[116:119], v124, s[80:83], s95 offen offset:16"]
        out.append(ln)
    return out


def build(pf=(2, 4, 6, 6), r2=768, r3=0, same_xcd=False, extra_launches=(), stamps=False, **opt):
    launches = [("ln_kgen_kernel", 256, 896, K1.K1_LDS, 128),
                ("gemm1_conv_kernel", 256, 320, k23.K2_LDS, 256),
                ("gemm2_kernel", 256, 320, k23.K3_LDS, 256)]
    a = Asm()
    r1 = opt.get('r1', pf[3]*256//5*4)
    K1.k1(a, launches[0][0], pf)
    k23.k2(a, launches[1][0], r1, r2, opt.get('win2', 40))
    k23.k3(a, launches[2][0], r3, same_xcd, opt.get('win3', 40))
    if opt.get("empties"):
        a(".globl empty_kernel\n.p2align 8\n.type empty_kernel,@function\nempty_kernel:\ns_endpgm")
        launches += [("empty_kernel", 256, 256, 0, 8)] * opt["empties"]
    for i, fl in enumerate(opt.get("pre_reads", ())):
        n = f"pre{i}_kernel"
        a(f".globl {n}\n.p2align 8\n.type {n},@function\n{n}:\ns_cmp_ge_u32 s2, 256\ns_cbranch_scc1 L_pre{i}_end")
        a(f"s_load_dwordx2 s[4:5], s[0:1], {KA['w1']}\ns_load_dwordx2 s[6:7], s[0:1], {KA['w2']}\nv_lshlrev_b32 v1, 4, v0\ns_lshl_b32 s20, s2, 13\ns_waitcnt lgkmcnt(0)")
        srd(a, 8, 4, W_BYTES_TOTAL); srd(a, 12, 6, W_BYTES_TOTAL)
        for j in range(9):
            a(f"buffer_load_dwordx4 v[{8+8*j}:{11+8*j}], v1, s[8:11], s20 offen{fl}\nbuffer_load_dwordx4 v[{12+8*j}:{15+8*j}], v1, s[12:15], s20 offen{fl}\ns_add_u32 s20, s20, {2048*1024}")
        a(f"s_waitcnt vmcnt(0)\nL_pre{i}_end:\ns_endpgm")
        launches.insert(i, (n, 256, 512, 0, 96))
    pk = opt.get("pre_kind")
    if pk:
        n = "prek_kernel"
        a(f".globl {n}\n.p2align 8\n.type {n},@function\n{n}:\ns_cmp_ge_u32 s2, 256\ns_cbranch_scc1 L_prek_end")
        if pk == "ws":
            a(f"s_load_dwordx2 s[4:5], s[0:1], {KA['ws']}\nv_lshlrev_b32 v1, 4, v0\ns_lshl_b32 s20, s2, 13\ns_waitcnt lgkmcnt(0)")
            srd_off(a, 8, 4, 0x4000000, 0x4000000)
            for j in range(18):
                a(f"buffer_load_dwordx4 v[{8+4*j}:{11+4*j}], v1, s[8:11], s20 offen nt\ns_add_u32 s20, s20, {2048*1024}")
        elif pk.startswith("tlb"):
            step = int(pk[3:])
            a(f"s_load_dwordx2 s[4:5], s[0:1], {KA['w1']}\ns_load_dwordx2 s[6:7], s[0:1], {KA['w2']}\ns_load_dwordx2 s[16:17], s[0:1], {KA['ws']}")
            a(f"s_lshr_b32 s20, s2, 3\ns_lshl_b32 s20, s20, 9\nv_add_u32 v1, s20, v0\nv_lshlrev_b32 v1, {step}, v1\ns_waitcnt lgkmcnt(0)")
            srd(a, 8, 4, W_BYTES_TOTAL); srd(a, 12, 6, W_BYTES_TOTAL); srd(a, 24, 16, 0x1600000)
            a("buffer_load_dword v2, v1, s[8:11], 0 offen nt\nbuffer_load_dword v3, v1, s[12:15], 0 offen nt\nbuffer_load_dword v4, v1, s[24:27], 0 offen nt")
        a(f"s_waitcnt vmcnt(0)\nL_prek_end:\ns_endpgm")
        launches.insert(0, (n, 256, 512, 0, 96))
    if opt.get("scramble"):
        out = []
        for ln in a.lines:
            out.append(ln)
            if ln.strip().startswith("s_cbranch_scc1 L_k") and ln.strip().endswith("_end") and out[-2].strip() == "s_cmp_ge_u32 s2, 256":
                out += ["  s_and_b32 s3, s2, 31", "  s_lshl_b32 s3, s3, 3", "  s_lshr_b32 s2, s2, 5", "  s_or_b32 s2, s2, s3"]
        a.lines = out
    rep = []
    if stamps:
        a.lines = add_stamps(a.lines, [l[0] for l in launches])
    lines = hazard.fix(a.lines, report=rep)
    bad = hazard.check_loops(lines)
    assert not bad, bad
    head = HEADER
    for n, g, b, lds, _ in launches:
        head += f"; @launch kernel={n} grid=({g},1,1) block=({b},1,1) lds={lds}\n"
    for n, g, b, lds in extra_launches:
        head += f"; @launch kernel={n} grid=({g},1,1) block=({b},1,1) lds={lds}\n"
    text = head + '.amdgcn_target "amdgcn-amd-amdhsa--gfx950"\n.text\n' + "\n".join(lines) + "\n"
    text += '.section .rodata,"a"\n' + "".join(descriptor(n, v) for n, v in dict((l[0], l[4]) for l in launches).items())
    return text, launches, rep


if __name__ == "__main__":
    kw = dict(x.split("=") for x in sys.argv[2:])
    kw = {k: eval(v) for k, v in kw.items()}
    text, launches, rep = build(**kw)
    out = sys.argv[1] if len(sys.argv) > 1 else f"cdna_kernels/{NAME}.s"
    open(out, "w").write(text)
    print(len(text), "bytes;", len(rep), "pads inserted")
```

```python
import struct
from asmlib import *
from layout import *
import gemm_core as gc
import mega_ln as ln
import mega_conv as cv
from prefetch import *
import prefetch

AT_LDS = gc.LDS_RING
LN_LDS = 139264
CNT_LDS = LN_LDS + 2*ln.LN_T
LDS_TOTAL = CNT_LDS + 64
S_WS, S_X, S_DBG, S_W1, S_W2 = 4, 6, 94, 96, 98
SPIN = 0x100000
S_TAG = 100
F_SEED = 255 * 256


def f32hex(x):
    return "0x%08x" % struct.unpack("<I", struct.pack("<f", x))[0]


def div6(a, d, r, x):
    a(f"s_mul_i32 s{d}, s{x}, 10923\ns_lshr_b32 s{d}, s{d}, 16\ns_mul_i32 s{r}, s{d}, 6\ns_sub_u32 s{r}, s{x}, s{r}")


def unpk(a, x, p):
    a(f"v_lshlrev_b32 v{x}, 16, v{p}\nv_and_b32 v{x+1}, 0xffff0000, v{p}")


def poll(a, tag, rs, vaddr, soff, target, sleep=1, mask=None):
    a(f"s_mov_b32 s61, {SPIN:#x}\nL_{tag}_poll:\nbuffer_load_dword v62, v{vaddr}, s[{rs}:{rs+3}], {soff} offen sc1")
    a(f"s_sub_u32 s61, s61, 1\ns_cbranch_scc1 L_{tag}_go\ns_waitcnt vmcnt(0)")
    if mask:
        a(f"v_and_b32 v62, {mask:#x}, v62")
    a(f"v_cmp_ne_u32 vcc, {target}, v62")
    a(f"s_cmp_eq_u64 vcc, 0\ns_cbranch_scc1 L_{tag}_go")
    if sleep:
        a(f"s_sleep {sleep}")
    a(f"s_branch L_{tag}_poll\nL_{tag}_go:")


def flags_srd(a, d):
    srd_off(a, d, S_WS, WS_FLG, FLG_BYTES)


def last_wave_signals(a, tag, cnt, rs, soff, word=None, second=None):
    a(f"v_mov_b32 v58, {cnt}\nv_mov_b32 v59, 1\nv_mov_b32 v61, 0\ns_mov_b64 exec, 1\nds_add_rtn_u32 v60, v58, v59\ns_waitcnt lgkmcnt(0)")
    a(f"v_readfirstlane_b32 s23, v60\ns_cmp_lg_u32 s23, 3\ns_cbranch_scc1 L_{tag}_notlast")
    if word:
        a(f"v_mov_b32 v59, {word}\nbuffer_store_dword v59, v61, s[{rs}:{rs+3}], {soff} offen sc1")
    else:
        if second:
            a(f"buffer_atomic_add v59, v61, s[{rs}:{rs+3}], {second} offen sc1")
        a(f"buffer_atomic_add v59, v61, s[{rs}:{rs+3}], {soff} offen sc1")
    a(f"L_{tag}_notlast:\ns_mov_b64 exec, -1")


def ln_local_wait(a, tag, cnt=CNT_LDS+4):
    a(f"v_mov_b32 v58, {cnt}\nL_{tag}:\ns_sleep 2\nds_read_b32 v60, v58\ns_waitcnt lgkmcnt(0)\nv_readfirstlane_b32 s23, v60\ns_cmp_lt_u32 s23, 4\ns_cbranch_scc1 L_{tag}")


def g_pause(a, tag, o):
    if not o["pause"]:
        return
    a(f"s_lshr_b32 s23, s2, 3\ns_mul_i32 s24, s23, 43\ns_lshr_b32 s24, s24, 9\ns_mul_i32 s24, s24, 12\ns_sub_u32 s23, s23, s24\ns_lshl_b32 s23, s23, 8\ns_add_u32 s23, s23, {F_G}")
    a(f"v_mov_b32 v61, 0\ns_mov_b32 s61, {SPIN:#x}\nL_{tag}_poll:\nbuffer_load_dword v62, v61, s[36:39], s23 offen sc1\ns_sub_u32 s61, s61, 1\ns_cbranch_scc1 L_{tag}_go")
    a(f"s_waitcnt vmcnt(0)\nv_readfirstlane_b32 s24, v62\ns_cmp_ge_u32 s24, {o['pause']}\ns_cbranch_scc1 L_{tag}_go\ns_sleep 8\ns_branch L_{tag}_poll\nL_{tag}_go:")


def wait_ln(a, tag, rs, o, base=F_LNW):
    a(f"v_mul_u32_u24 v61, {o['lnw']}, v1\ns_mov_b32 s61, {SPIN:#x}\nL_{tag}_poll:")
    if o["ln_lines"] and base == F_LNW:
        for k in range(4):
            a(f"s_mov_b32 s62, {F_LNW + k*64*o['lnw']}\nbuffer_load_dword v{180+k}, v61, s[{rs}:{rs+3}], s62 offen sc1")
    else:
        a(f"s_mov_b32 s62, {base}\nbuffer_load_dwordx4 v[180:183], v61, s[{rs}:{rs+3}], s62 offen sc1")
    a(f"s_sub_u32 s61, s61, 1\ns_cbranch_scc1 L_{tag}_go\ns_waitcnt vmcnt(0)")
    a(f"v_xor_b32 v180, s{S_TAG+1}, v180\nv_xor_b32 v181, s{S_TAG+1}, v181\nv_xor_b32 v182, s{S_TAG+1}, v182\nv_xor_b32 v183, s{S_TAG+1}, v183")
    a("v_or3_b32 v180, v180, v181, v182\nv_or_b32 v180, v180, v183\nv_cmp_ne_u32 vcc, 0, v180")
    a(f"s_cmp_eq_u64 vcc, 0\ns_cbranch_scc1 L_{tag}_go\ns_sleep {o['slp']}\ns_branch L_{tag}_poll\nL_{tag}_go:")


def tile1(a):
    a("s_and_b32 s12, s2, 7\ns_lshr_b32 s13, s2, 3\ns_and_b32 s14, s12, 1\ns_mul_i32 s14, s14, 3\ns_add_u32 s13, s13, s14")
    a("s_cmp_ge_u32 s13, 27\ns_cselect_b32 s14, 27, 0\ns_sub_u32 s13, s13, s14\ns_mul_i32 s12, s12, 27\ns_add_u32 s12, s12, s13")
    div6(a, 14, 15, 12)


def tile2(a):
    a("s_lshr_b32 s13, s2, 3")
    div6(a, 12, 15, 13)
    a("s_bfe_u32 s19, s2, 0x10002\ns_and_b32 s13, s2, 3\ns_lshl_b32 s14, s13, 2\ns_add_u32 s14, s14, s12")
    a("s_mul_i32 s13, s13, 9\ns_add_u32 s13, s13, 1\ns_lshr_b32 s13, s13, 1")
    a("s_lshl_b32 s16, s14, 7\ns_lshl_b32 s17, s19, 6\ns_add_u32 s16, s16, s17")


def block_jump(kind):
    cnt, base, dst, step = (54, 56, gc.S_W0, 128*4096) if kind == "w" else (55, 57, gc.S_ACT0, 2*73728)
    return [f"s_add_u32 s{cnt}, s{cnt}, 1", f"s_add_u32 s18, s{cnt}, s12", "s_and_b32 s18, s18, 3", f"s_cmp_lt_u32 s{cnt}, 4",
            f"s_cselect_b32 s18, s18, s{cnt}", "s_add_u32 s18, s18, s13", "s_cmp_ge_u32 s18, 18", "s_cselect_b32 s17, 18, 0",
            "s_sub_u32 s18, s18, s17", f"s_mul_i32 s18, s18, {step}", f"s_add_u32 s{dst}, s18, s{base}"]


def gelu_epilogue(a, rounds, rot):
    c1 = -2.0 * 0.7978845608028654 * 1.4426950408889634
    a(f"s_mov_b32 s48, {f32hex(c1*0.044715)}\ns_mov_b32 s49, s48\nv_mov_b32 v36, {f32hex(c1)}\nv_mov_b32 v37, v36")
    for nu in range(4):
        unpk(a, 20+4*nu, 12+2*nu); unpk(a, 22+4*nu, 13+2*nu)
    a(f"s_lshr_b32 s26, s20, 1\ns_mul_i32 s26, s26, {gc.SLOT}\ns_and_b32 s27, s20, 1\ns_mul_i32 s27, s27, 6144\ns_add_u32 s26, s26, s27\ns_add_u32 s26, s26, {gc.W_BYTES}\nv_add_u32 v38, s26, v7")
    B = 112
    for dl in range(3):
        for pi in range(2):
            src = [(gc.acc(2*pi + (k >> 1), dl) + 2*(k & 1), 20 + 4*(2*pi + (k >> 1)) + 2*(k & 1)) for k in range(4)]
            U = [B + 2*k for k in range(4)]; T = [B + 8 + 2*k for k in range(4)]; P = [B + 16 + k for k in range(4)]
            O = B + 20 + 4*((2*dl + pi) % 2)
            if rounds == 2:
                for k in range(4): a(f"v_cvt_pk_bf16_f32 v{P[k]}, v{src[k][0]}, v{src[k][0]+1}")
                for k in range(4): unpk(a, U[k], P[k])
                for k in range(4): a(f"v_pk_add_f32 {vr(U[k],2)}, {vr(U[k],2)}, {vr(src[k][1],2)}")
            else:
                for k in range(4): a(f"v_pk_add_f32 {vr(U[k],2)}, {vr(src[k][0],2)}, {vr(src[k][1],2)}")
            if rounds >= 1:
                for k in range(4): a(f"v_cvt_pk_bf16_f32 v{P[k]}, v{U[k]}, v{U[k]+1}")
                for k in range(4): unpk(a, U[k], P[k])
            for k in range(4): a(f"v_pk_mul_f32 {vr(T[k],2)}, {vr(U[k],2)}, {vr(U[k],2)}")
            for k in range(4): a(f"v_pk_fma_f32 {vr(T[k],2)}, {vr(T[k],2)}, s[48:49], v[36:37]")
            for k in range(4): a(f"v_pk_mul_f32 {vr(T[k],2)}, {vr(T[k],2)}, {vr(U[k],2)}")
            for k in range(4): a(f"v_exp_f32 v{T[k]}, v{T[k]}\nv_exp_f32 v{T[k]+1}, v{T[k]+1}")
            for k in range(4): a(f"v_pk_add_f32 {vr(T[k],2)}, {vr(T[k],2)}, 1.0 op_sel_hi:[1,0]")
            for k in range(4): a(f"v_rcp_f32 v{T[k]}, v{T[k]}\nv_rcp_f32 v{T[k]+1}, v{T[k]+1}")
            for k in range(4): a(f"v_pk_mul_f32 {vr(U[k],2)}, {vr(U[k],2)}, {vr(T[k],2)}")
            for k in range(4): a(f"v_cvt_pk_bf16_f32 v{O+k}, v{U[k]}, v{U[k]+1}")
            a(f"buffer_store_dwordx4 {vr(O,4)}, v7, s[44:47], s17 offen offset:{1024*pi} sc1")
            if rot:
                a(f"ds_write_b128 v38, {vr(O,4)} offset:{(2*dl + pi)*1024}")
        a("s_add_u32 s17, s17, 2048")


def read_tag(a):
    a(f"s_add_u32 s26, s{S_WS}, {WS_FLG + F_SEED:#x}\ns_addc_u32 s27, s{S_WS+1}, 0\ns_load_dword s{S_TAG+1}, s[26:27], 0")


def make_tag(a):
    a(f"s_mul_i32 s{S_TAG+1}, s{S_TAG+1}, 0x9e3779b1\ns_add_u32 s{S_TAG+1}, s{S_TAG+1}, 0x7f4a7c15\ns_andn2_b32 s{S_TAG}, s{S_TAG+1}, 0xff")


def compute_waves(a, o):
    a("s_waitcnt lgkmcnt(0)")
    ln.ln_issue(a, S_X, o['lnx'], 80 if o['dry'] else 10)
    read_tag(a)
    a(f"s_cmp_lg_u32 s20, 0\ns_cbranch_scc1 L_m_nz\nv_mov_b32 v58, {CNT_LDS}\nv_mov_b32 v60, 0\nv_mov_b32 v61, 0\nv_mov_b32 v62, 0\nv_mov_b32 v63, 0")
    a("ds_write_b128 v58, v[60:63]\nL_m_nz:")
    if o["early_bar"]:
        a("s_waitcnt lgkmcnt(0)\ns_barrier")
    a(f"s_load_dwordx2 s[38:39], s[0:1], {KA['b1']}\ns_load_dwordx8 s[80:87], s[0:1], {KA['lar']}\ns_load_dwordx4 s[88:91], s[0:1], {KA['ldt']}")
    ln.ln_body(a, S_WS, LN_LDS, CNT_LDS, "ln", not o["early_bar"], o["dry"])
    if not o["split_xn"]:
        ln.xn_stores(a, "ln")
    flags_srd(a, 40)
    make_tag(a)
    a("v_mov_b32 v61, 0\ns_cmp_lg_u32 s20, 3\ns_cbranch_scc1 L_m_nozero\ns_sub_u32 s23, s2, 28\ns_cmp_ge_u32 s23, 6\ns_cbranch_scc1 L_m_nozero")
    a("s_lshl_b32 s23, s2, 8\ns_mov_b64 exec, 1\nbuffer_store_dword v61, v61, s[40:43], s23 offen sc1\ns_mov_b64 exec, -1\nL_m_nozero:")
    if o["ln_lines"]:
        a(f"s_mul_i32 s24, s2, {o['lnw']}\ns_add_u32 s24, s24, {F_LNW}")
    else:
        a(f"s_and_b32 s24, s2, 63\ns_mul_i32 s24, s24, {o['lnw']}\ns_lshr_b32 s23, s2, 6\ns_lshl_b32 s23, s23, 2\ns_add_u32 s24, s24, s23\ns_add_u32 s24, s24, {F_LNW}")
    a("s_waitcnt vmcnt(0)\n; STAMP 1")
    last_wave_signals(a, "lnd", CNT_LDS + 4, 40, "s24", word=f"s{S_TAG+1}")
    a("s_lshr_b32 s29, s2, 3\ns_lshl_b32 s29, s29, 2\ns_add_u32 s29, s29, s20")
    srd(a, 32, S_W1, W_BYTES_TOTAL)
    if o["split_xn"]:
        ln.xn_stores(a, "ln")
        a(f"s_and_b32 s24, s2, 63\ns_mul_i32 s24, s24, {o['lnw']}\ns_lshr_b32 s23, s2, 6\ns_lshl_b32 s23, s23, 2\ns_add_u32 s24, s24, s23\ns_add_u32 s24, s24, {F_XNW}")
        if o["b_first"]:
            a("s_cmp_ge_u32 s2, 216\ns_cbranch_scc1 L_m_nob")
            w1_burst(a, 32, 29, 108, o["r1"]//4*5, o["nB"])
            a(f"s_waitcnt vmcnt({o['nB']})\ns_branch L_m_hadb\nL_m_nob:")
            a("s_sub_u32 s31, s2, 216\ns_lshl_b32 s31, s31, 2\ns_add_u32 s31, s31, s20\ns_mul_i32 s31, s31, 3\ns_mov_b32 s28, s24")
            cv.param_loads(a, 80, 88, 90)
            a("s_mov_b32 s24, s28\ns_waitcnt vmcnt(14)\nL_m_hadb:")
        else:
            a("s_waitcnt vmcnt(0)")
        last_wave_signals(a, "xnd", CNT_LDS + 12, 40, "s24", word=f"s{S_TAG+1}")
    a("s_cmp_ge_u32 s2, 216\ns_cbranch_scc1 L_m_conv")
    if not (o["split_xn"] and o["b_first"]):
        w1_burst(a, 32, 29, 108, o["r1"]//4*5, o["nB"])
    srd(a, 32, S_W2, W_BYTES_TOTAL)
    tile1(a)
    gc.lane_ids(a)
    gc.compute_setup(a, "A")
    srd(a, 8, 38, F*2)
    a(f"s_lshr_b32 s16, s20, 1\ns_lshl_b32 s17, s16, 7\ns_lshl_b32 s18, s14, 8\ns_add_u32 s17, s17, s18\nv_lshlrev_b32 v9, 3, v3")
    a("s_mov_b32 s22, s17")

    def b1_loads(a):
        for nu in range(4):
            a(f"buffer_load_dwordx2 {vr(12+2*nu,2)}, v9, s[8:11], s22 offen offset:{32*nu}")
    if not o["b1_late"]:
        b1_loads(a)
    for i in range(48):
        a(f"v_mov_b32 v{gc.V_ACC+i}, 0")
    srd_off(a, 44, S_WS, WS_G, G_BYTES)
    a("s_and_b32 s17, s20, 1\ns_mul_i32 s17, s17, 3\ns_mul_i32 s18, s15, 6\ns_add_u32 s17, s17, s18\ns_lshl_b32 s17, s17, 11")
    a("s_lshl_b32 s18, s14, 1\ns_add_u32 s18, s18, s16\ns_mul_i32 s18, s18, 73728\ns_add_u32 s17, s17, s18")
    a(f"s_mul_i32 s24, s15, 36\ns_add_u32 s24, s24, s14\ns_lshl_b32 s24, s24, 8\ns_add_u32 s24, s24, {F_GW}")
    a(f"s_load_dwordx4 s[52:55], s[0:1], {KA['b2']}")
    gc.compute_main(a, 32*o["rep1"], "A", False, "g1", last_barrier=True, st=(5, 2), tail_hook=b1_loads if o["b1_late"] else None)
    if o["rep1"] == 2:
        for i in range(48):
            a(f"v_mul_f32 v{gc.V_ACC+i}, 0.5, v{gc.V_ACC+i}")
    a("s_waitcnt vmcnt(0)")
    gelu_epilogue(a, o['rnd1'], o['rot'])
    a("s_cmp_lt_u32 s2, 192\ns_cbranch_scc1 L_m_g2\ns_waitcnt vmcnt(0)")
    last_wave_signals(a, "gd", CNT_LDS + 8, 40, "s24", word=f"s{S_TAG+1}")
    a("; STAMP 3\ns_branch L_m_conv1\nL_m_g2:")
    tile2(a)
    gc.compute_setup(a, "B", s_kh=19)
    srd(a, 32, S_X, X_BYTES); srd(a, 28, 52, S*2)
    a("s_lshr_b32 s17, s20, 1\ns_lshl_b32 s17, s17, 5\ns_add_u32 s17, s17, s16")
    a("s_mul_i32 s18, s15, 96\ns_and_b32 s26, s20, 1\ns_mul_i32 s26, s26, 48\ns_add_u32 s18, s18, s26")
    a("v_mul_u32_u24 v58, 1152, v2\nv_lshl_add_u32 v58, v3, 3, v58\nv_lshlrev_b32 v9, 1, v2")
    a("s_mul_i32 s56, s17, 1152\ns_lshl_b32 s26, s18, 1\ns_add_u32 s56, s56, s26\ns_add_u32 s57, s56, 18432\ns_lshl_b32 s26, s17, 1")
    a("s_mov_b32 s22, s26\nv_mov_b32 v39, v58")
    for i in range(48):
        a(f"v_mov_b32 v{gc.V_ACC+i}, 0")
    a("v_bfe_u32 v4, v1, 2, 2\nv_lshl_add_u32 v4, v3, 2, v4\nv_lshlrev_b32 v4, 7, v4\nv_and_b32 v5, 3, v1\nv_lshl_add_u32 v4, v5, 3, v4")
    a(f"s_and_b32 s26, s20, 1\ns_mul_i32 s26, s26, 6144\ns_lshr_b32 s27, s20, 1\ns_lshl_b32 s27, s27, 6\ns_add_u32 s26, s26, s27\ns_add_u32 s26, s26, {AT_LDS}\nv_add_u32 v59, s26, v4")
    a("v_mov_b32 v31, v59")
    a("s_xor_b32 s58, s2, 4\ns_lshl_b32 s26, s20, 12\ns_lshl_b32 s59, s58, 14\ns_add_u32 s59, s59, s26\ns_lshl_b32 s60, s2, 14\ns_add_u32 s60, s60, s26")
    assert o["xbf"]

    def x_loads(a):
        for nu in range(2):
            for dl in range(3):
                a(f"buffer_load_dwordx2 {vr(10+2*(3*nu+dl),2)}, v39, s[32:35], s{56+nu} offen offset:{32*dl}{o['xnt']}")
            a(f"buffer_load_ushort v{22+nu}, v9, s[28:31], s22 offen offset:{32*nu}")

    def publish_g(a):
        a("s_waitcnt vmcnt(0)")
        last_wave_signals(a, "gd2", CNT_LDS + 8, 40, "s24", word=f"s{S_TAG+1}")
        a("; STAMP 3\n; SWAIT")
        if not o["x_late"]:
            x_loads(a)

    if o["late_sig"]:
        gc.compute_main(a, 36, "B", True, "g2", st=(5, 4), first_stage1=publish_g)
    else:
        publish_g(a)
        gc.compute_main(a, 36*o["rep2"], "B", True, "g2", st=(5, 4), tail_hook=x_loads if o["x_late"] == "tail" else None)
        if o["rep2"] == 2:
            for i in range(48):
                a(f"v_mul_f32 v{gc.V_ACC+i}, 0.5, v{gc.V_ACC+i}")
    srd_off(a, 8, S_WS, WS_XCH, XCH_BYTES); srd(a, 44, 54, X_BYTES)
    a("v_mov_b32 v58, v39\nv_mov_b32 v59, v31")
    a("; STAMP 5")
    SN = 172
    NG = 4 if o["xbf"] else 8
    for k in range(NG):
        for m in range(3):
            if o["xbf"]:
                a(f"v_cvt_pk_bf16_f32 v{SN+4*k+m}, v{gc.V_ACC+24+6*k+2*m}, v{gc.V_ACC+25+6*k+2*m}")
            else:
                a(f"v_mov_b32 v{SN+4*k+m}, v{gc.V_ACC+24+3*k+m}")
        a(f"v_mov_b32 v{SN+4*k+3}, s{S_TAG+1}")
        a(f"buffer_store_dwordx4 {vr(SN+4*k,4)}, v7, s[8:11], s59 offen sc1\ns_add_u32 s59, s59, 1024")
    if o["x_late"] is True:
        x_loads(a)
    a("s_barrier")
    AR, PF = 112, 124
    for nu in range(2):
        for dl in range(3):
            a(f"ds_read_b64_tr_b16 {vr(AR+2*(3*nu+dl),2)}, v59 offset:{2048*dl + 32*nu}")
    a(f"s_waitcnt vmcnt({0 if o['x_late'] is True else NG})\nv_lshlrev_b32 v22, 16, v22\nv_lshlrev_b32 v24, 16, v23\ns_waitcnt lgkmcnt(0)")
    for t in range(6):
        for h in range(2):
            unpk(a, 26, 10+2*t+h); unpk(a, 28, AR+2*t+h)
            if o["rnd2"]:
                a("v_pk_add_f32 v[26:27], v[26:27], v[28:29]\nv_cvt_pk_bf16_f32 v30, v26, v27")
                unpk(a, PF+4*t+2*h, 30)
            else:
                b = gc.V_ACC + 4*t + 2*h
                a(f"v_pk_add_f32 v[26:27], v[26:27], v[28:29]\nv_pk_add_f32 {vr(b,2)}, {vr(b,2)}, {vr(22+2*(t//3),2)} op_sel_hi:[1,0]")
                a(f"v_pk_add_f32 {vr(b,2)}, {vr(b,2)}, v[26:27]")
    RX = 204
    if o["xwait"]:
        a("s_waitcnt vmcnt(0)")
    a(f"s_mov_b32 s61, {SPIN:#x}\ns_add_u32 s62, s60, 4096\nL_xch_poll:")
    for k in range(NG):
        a(f"buffer_load_dwordx4 {vr(RX+4*k,4)}, v7, s[8:11], s{60 + 2*(k >> 2)} offen offset:{1024*(k & 3)} sc1")
    a(f"s_sub_u32 s61, s61, 1\ns_cbranch_scc1 L_xch_go\ns_waitcnt vmcnt(0)\nv_xor_b32 v4, s{S_TAG+1}, v{RX+3}")
    for k in range(1, NG):
        a(f"v_xor_b32 v5, s{S_TAG+1}, v{RX+4*k+3}\nv_or_b32 v4, v4, v5")
    a("v_cmp_ne_u32 vcc, 0, v4\ns_cmp_eq_u64 vcc, 0\ns_cbranch_scc1 L_xch_go")
    if o["slpx"]:
        a(f"s_sleep {o['slpx']}")
    a("s_branch L_xch_poll\nL_xch_go:")
    for t in range(6):
        nu, dl = divmod(t, 3)
        b, p = gc.V_ACC + 4*t, PF + 4*t
        if o["xbf"]:
            for h in range(2):
                k, m = divmod(2*t + h, 3)
                unpk(a, 26+2*h, RX+4*k+m)
            for h in range(2): a(f"v_pk_add_f32 {vr(b+2*h,2)}, {vr(b+2*h,2)}, {vr(26+2*h,2)}")
        else:
            for e in range(4):
                k, m = divmod(4*t + e, 3)
                a(f"v_add_f32 v{b+e}, v{b+e}, v{RX+4*k+m}")
        if o['rnd2']:
            for h in range(2): a(f"v_cvt_pk_bf16_f32 v{26+h}, v{b+2*h}, v{b+2*h+1}")
            for h in range(2): unpk(a, b+2*h, 26+h)
            for h in range(2): a(f"v_pk_add_f32 {vr(b+2*h,2)}, {vr(b+2*h,2)}, {vr(22+2*nu,2)} op_sel_hi:[1,0]")
            for h in range(2): a(f"v_cvt_pk_bf16_f32 v{26+h}, v{b+2*h}, v{b+2*h+1}")
            for h in range(2): unpk(a, b+2*h, 26+h)
            for h in range(2): a(f"v_pk_add_f32 {vr(b+2*h,2)}, {vr(b+2*h,2)}, {vr(p+2*h,2)}")
        for h in range(2): a(f"v_cvt_pk_bf16_f32 v{10+2*t+h}, v{b+2*h}, v{b+2*h+1}")
        a(f"buffer_store_dwordx2 {vr(10+2*t,2)}, v58, s[44:47], s{56+nu} offen offset:{32*dl}{o['ont']}")
    a("s_endpgm")
    a("L_m_conv1:\ns_mov_b32 s30, 1\ns_sub_u32 s31, s2, 72\ns_lshl_b32 s31, s31, 2\ns_add_u32 s31, s31, s20")
    cv.param_loads(a, 80, 88, 90)
    a("s_branch L_m_conv2\nL_m_conv:\ns_mov_b32 s30, 3\nL_m_conv2:")
    a("s_mul_i32 s29, s31, 683\ns_lshr_b32 s29, s29, 16")
    assert o["split_xn"] and o["b_first"]

    def signal(a):
        a("s_lshl_b32 s36, s29, 8")
        a(f"s_add_u32 s36, s36, {F_CONV}\nv_mov_b32 v4, 1\nv_mov_b32 v5, 0\ns_mov_b64 exec, 1\nbuffer_atomic_add v4, v5, s[8:11], s36 offen sc1")
    flags_srd(a, 8)
    cv.conv_role(a, "cv", S_WS, lambda a, t: wait_ln(a, "cvln" + t, 8, o, F_XNW if o["split_xn"] else F_LNW), signal)
    a("s_endpgm")


def fifth_wave(a, o):
    if o["prio"]:
        a(f"s_setprio {o['prio']}")
    a(f"s_load_dwordx2 s[48:49], s[0:1], {KA['out']}\ns_load_dwordx8 s[80:87], s[0:1], {KA['lar']}\ns_load_dwordx4 s[52:55], s[0:1], {KA['ldt']}")
    a(f"s_load_dwordx2 s[56:57], s[0:1], {KA['b1']}\ns_load_dwordx2 s[58:59], s[0:1], {KA['b2']}")
    a("s_waitcnt lgkmcnt(0)")
    flags_srd(a, 36)
    read_tag(a)
    if o["tlb"] >= 4:
        srd(a, 8, S_WS, WS_G); srd(a, 16, S_W1, 5 << 20)
        a("v_lshlrev_b32 v4, 21, v1\nbuffer_load_dword v100, v4, s[8:11], 0 offen sc1\nbuffer_load_dword v104, v4, s[16:19], 0 offen")
        srd(a, 8, 56, 4)
        a("buffer_load_dword v105, v4, s[8:11], 0 offen")
    elif o["tlb"]:
        srd(a, 8, S_WS, WS_END); srd(a, 16, S_W2, W_BYTES_TOTAL)
        a("v_lshlrev_b32 v4, 20, v1\nbuffer_load_dword v100, v4, s[8:11], 0 offen sc1\nbuffer_load_dword v101, v4, s[16:19], 0 offen")
        srd(a, 8, 48, X_BYTES); srd(a, 16, S_W1, W_BYTES_TOTAL)
        a("buffer_load_dword v102, v4, s[8:11], 0 offen")
        if o["tlb"] >= 2:
            a("buffer_load_dword v104, v4, s[16:19], 0 offen")
            small = [80, 82, 84, 86, 52, 54, 56, 58]
            for k, p in enumerate(small):
                if o["tlb"] == 3:
                    a(f"s_bfe_u32 s23, s2, 0x30003\ns_cmp_lg_u32 s23, {k}\ns_cbranch_scc1 L_m_tl{k}")
                if k < 6 or not o["bias_pf"]:
                    srd(a, 8, p, 4)
                    a(f"buffer_load_dword v{105+k}, v4, s[8:11], 0 offen")
                else:
                    srd(a, 8, p, F*2 if k == 6 else S*2)
                    a(f"v_lshlrev_b32 v5, 7, v1\nbuffer_load_dword v{105+k}, v5, s[8:11], 0 offen")
                    if k == 6:
                        a("s_mov_b32 s23, 8192\nbuffer_load_dword v113, v5, s[8:11], s23 offen")
                a(f"L_m_tl{k}:")
    if o["touch"]:
        todo = [F_LNW + k*64*o["lnw"] for k in range(4 if o["ln_lines"] else 1)] + [F_XNW] + ([F_REL] if o["agg"] else [])
        for k, off in enumerate(todo):
            a(f"s_cmp_lg_u32 s2, {5*k if k < 2 else 4+k}\ns_cbranch_scc1 L_m_nt{k}\nv_mul_u32_u24 v5, {o['lnw']}, v1\ns_mov_b32 s23, {off}\nbuffer_load_dword v103, v5, s[36:39], s23 offen\nL_m_nt{k}:")
    if o["touch_g"]:
        a(f"s_sub_u32 s23, s2, 1\ns_cmp_ge_u32 s23, 4\ns_cbranch_scc1 L_m_notouch2\nv_lshlrev_b32 v5, 8, v1\ns_lshl_b32 s23, s23, 14\ns_add_u32 s23, s23, {F_GW}")
        a("buffer_load_dword v103, v5, s[36:39], s23 offen\nL_m_notouch2:")
    srd(a, gc.SRD_W, S_W1, W_BYTES_TOTAL)
    if o["early_bar"]:
        a("s_barrier")
    a("s_lshr_b32 s30, s2, 3")
    if o["code_pf"]:
        a("s_getpc_b64 s[12:13]\nL_m_pc:\ns_sub_u32 s12, s12, L_m_pc-L_m_base\ns_subb_u32 s13, s13, 0")
        a("s_mov_b32 s14, L_m_last-L_m_base\ns_mov_b32 s15, 0x20000\nv_lshlrev_b32 v4, 4, v1\ns_lshl_b32 s23, s30, 10")
        a("buffer_load_dwordx4 v[96:99], v4, s[12:15], s23 offen\ns_add_u32 s23, s23, 32768\nbuffer_load_dwordx4 v[96:99], v4, s[12:15], s23 offen")
    w1_stream(a, "m0", gc.SRD_W, 30, 32, o["r0"], o["r1"], o["win1"])
    if o["extra23"]:
        a("s_and_b32 s23, s2, 6\ns_cmp_lg_u32 s23, 2\ns_cbranch_scc1 L_m_nox23")
        w1_stream(a, "m23", gc.SRD_W, 30, 32, 2048 - o["extra23"], 2048, o["win1"])
        a("L_m_nox23:")
    a("s_waitcnt lgkmcnt(0)")
    make_tag(a)
    if not o["early_bar"]:
        a("s_barrier")
    a("; STAMP 0\ns_cmp_ge_u32 s2, 216\ns_cbranch_scc1 L_m_helper")
    tile1(a)
    gc.lane_ids(a)
    a(f"s_mul_i32 s{gc.S_ACT0}, s15, 12288\ns_lshl_b32 s{gc.S_W0}, s14, 8")
    gc.loader_setup(a, 0, 9216, "A")
    srd_off(a, gc.SRD_ACT, S_WS, WS_HT, HT_BYTES)
    ln_local_wait(a, "lw1")
    a("; STAMP 0")
    gc.w_prefill(a, range(4), 0, 9216)
    a("; STAMP 1")
    if o["agg"]:
        a(f"s_and_b32 s23, s2, 7\ns_lshl_b32 s23, s23, 8\ns_add_u32 s23, s23, {F_REL}\ns_cmp_ge_u32 s2, 8\ns_cbranch_scc1 L_m_follow")
        wait_ln(a, "l1", 36, dict(o, slp=o["slpa"]))
        a(f"v_mov_b32 v4, s{S_TAG+1}\nv_mov_b32 v5, 0\ns_mov_b64 exec, 1\nbuffer_store_dword v4, v5, s[36:39], s23 offen sc1\ns_mov_b64 exec, -1\ns_branch L_l1f_go\nL_m_follow:\nv_mov_b32 v61, 0")
        poll(a, "l1f", 36, 61, "s23", f"s{S_TAG+1}", sleep=o["slp"])
    else:
        wait_ln(a, "l1", 36, o)
    a(f"; STAMP 2\ns_cmp_lg_u32 s2, 0\ns_cbranch_scc1 L_m_noseed\nv_mov_b32 v4, s{S_TAG+1}\nv_mov_b32 v5, {F_SEED}\ns_mov_b64 exec, 1")
    a("buffer_store_dword v4, v5, s[36:39], 0 offen sc1\ns_mov_b64 exec, -1\nL_m_noseed:")
    gc.loader_after_prefill(a, 32*o["rep1"], 0, 9216, "g1", o["aflags"], tail=lambda a: None, wrap=(2048*9216, 32*73728) if o["rep1"] == 2 else None)
    srd(a, gc.SRD_W, S_W2, W_BYTES_TOTAL)
    a("s_cmp_lt_u32 s2, 192\ns_cbranch_scc1 L_m_l2")
    a("s_waitcnt vmcnt(28)\ns_barrier\ns_waitcnt vmcnt(0)\ns_barrier\ns_barrier\ns_sub_u32 s30, s2, 152\ns_lshr_b32 s30, s30, 3")
    ln_local_wait(a, "lw3", CNT_LDS+8)
    if o["x_pf"] == "early":
        srd(a, 8, S_X, X_BYTES); a("s_sub_u32 s31, s30, 5\ns_mul_i32 s31, s31, 3")
        for k in range(3):
            if k == 2:
                a("s_cmp_eq_u32 s31, 8\ns_cbranch_scc1 L_m_nox")
            x_stream(a, f"xe{k}", 8, 31)
            a("s_add_u32 s31, s31, 1")
        a("L_m_nox:")
    g_pause(a, "gp3", o)
    w2_stream(a, "m3", gc.SRD_W, 30, 8, o["r2"] + 96*o["nC"], 2304, o["win3"])
    if o["x_pf"] is True:
        srd(a, 8, S_X, X_BYTES); x_stream(a, "x3", 8, 30)
    a("s_endpgm\nL_m_l2:")
    tile2(a)
    a(f"s_mul_i32 s57, s15, 12288\ns_mul_i32 s18, s19, {36*73728}\ns_add_u32 s57, s57, s18")
    a(f"s_lshl_b32 s56, s14, 8\ns_mul_i32 s18, s19, {HALF2}\ns_add_u32 s56, s56, s18\ns_mov_b32 s54, -1\ns_mov_b32 s55, -1")
    jump = block_jump if o["rot"] else None
    if o["rot"]:
        a.extend(block_jump("w") + block_jump("a"))
    else:
        a(f"s_mov_b32 s{gc.S_W0}, s56\ns_mov_b32 s{gc.S_ACT0}, s57")
    gc.loader_setup(a, 0, 4096, "B")
    srd_off(a, gc.SRD_ACT, S_WS, WS_G, G_BYTES)
    e2 = o["early2"]
    for j, vm in enumerate((28, 0, None)):
        if j < e2:
            gc.w_prefill(a, [j], 0, 4096, jump)
        if vm is not None:
            a(f"s_waitcnt vmcnt({vm + 16*min(j+1, e2)})")
        a("s_barrier")
    a("; STAMP 5")
    gc.w_prefill(a, range(min(e2, 3), 4), 0, 4096, jump)
    a("v_mov_b32 v61, 0\n; STAMP 3")

    def wait_slot(a):
        a(f"s_mul_i32 s23, s15, 36\ns_mul_i32 s24, s19, 18\ns_add_u32 s23, s23, s24\ns_lshl_b32 s23, s23, 8\ns_add_u32 s23, s23, {F_GW}")
        a("v_and_b32 v60, 3, v1\nv_add_u32 v60, s13, v60\nv_lshlrev_b32 v60, 8, v60")
        poll(a, "l2a", 36, 60, "s23", f"s{S_TAG+1}")
        a("; STAMP 4\nv_min_u32 v60, 17, v1\nv_lshlrev_b32 v60, 8, v60\ns_mov_b32 s53, s23")

    def wait_half(a):
        poll(a, "l2b", 36, 60, "s53", f"s{S_TAG+1}", sleep=o["slpg"])

    def at_dma(a):
        for e in range(12):
            a(f"s_mov_b32 m0, {AT_LDS + 1024*e}\nbuffer_load_dwordx4 v8, s[48:51], s26 offen sc1 lds\ns_add_u32 s26, s26, 32768")

    def at_early(a):
        srd_off(a, 48, S_WS, WS_AT, AT_BYTES)
        a(f"s_lshl_b32 s23, s15, 8\ns_add_u32 s23, s23, {F_CONV}\nbuffer_load_dword v62, v61, s[36:39], s23 offen sc1")
        a("v_lshrrev_b32 v8, 3, v1\nv_lshlrev_b32 v8, 12, v8\nv_and_b32 v9, 7, v1\nv_lshl_add_u32 v8, v9, 4, v8")
        a(f"s_mul_i32 s26, s15, {96*4096}\ns_lshl_b32 s27, s16, 1\ns_add_u32 s26, s26, s27")
        a("s_cmp_eq_u32 s15, 5\ns_cselect_b32 s24, 96, 32\ns_waitcnt vmcnt(0)\nv_readfirstlane_b32 s27, v62")
        a("s_cmp_lg_u32 s27, s24\ns_cbranch_scc1 L_at_skip")
        at_dma(a)
        a("L_at_skip:")
    if o["rot"]:
        gc.loader_after_prefill(a, 36, 0, 4096, "g2", o["aflags"], before_last=at_early, jump=block_jump, wait2=wait_slot, wait8=wait_half)
    else:
        ln_local_wait(a, "lw4", CNT_LDS+8)
        a(f"s_mul_i32 s53, s15, 36\ns_mul_i32 s24, s19, 18\ns_add_u32 s53, s53, s24\ns_lshl_b32 s53, s53, 8\ns_add_u32 s53, s53, {F_GW}")
        a("v_min_u32 v60, 17, v1\nv_lshlrev_b32 v60, 8, v60")
        wait_half(a)
        a("; STAMP 4")
        gc.loader_after_prefill(a, 36*o["rep2"], 0, 4096, "g2", o["aflags"], before_last=at_early, wrap=(HALF2, 36*73728) if o["rep2"] == 2 else None)
    a("s_cmp_eq_u32 s27, s24\ns_cbranch_scc1 L_at_done")
    poll(a, "at", 36, 61, "s23", "s24")
    at_dma(a)
    a("L_at_done:\ns_waitcnt vmcnt(0)\ns_barrier\ns_endpgm")
    a("L_m_helper:\ns_sub_u32 s30, s2, 216\ns_lshr_b32 s30, s30, 3")
    ln_local_wait(a, "lw2", CNT_LDS + (12 if o["split_xn"] and not o["h_early"] else 4))
    if o["tlb"] >= 4:
        M2 = 2 << 20
        items = [(S_W1, k*M2) for k in range(3, 9)] + [(S_W1, W_BYTES_TOTAL - 4)] + [(p, 0) for p in (80, 82, 84, 86, 52, 54)]
        items += [(S_WS, k*M2) for k in range(WS_G//M2 + 1, (WS_END - 1)//M2 + 1)] + [(S_W2, k*M2) for k in range(9)] + [(S_W2, W_BYTES_TOTAL - 4)]
        items += [(48, 0), (48, X_BYTES - 4), (58, 0)]
        for h in range(5):
            a(f"s_cmp_lg_u32 s30, {h}\ns_cbranch_scc1 L_m_st{h}")
            for k, (p, off) in enumerate(items[h::5]):
                a(f"s_add_u32 s8, s{p}, {off:#x}\ns_addc_u32 s9, s{p+1}, 0\ns_load_dword s{12+k}, s[8:9], 0")
            a(f"L_m_st{h}:")
    if o["b1_late"]:
        srd(a, 8, 56, F*2); srd(a, 12, 58, S*2)
        a("v_lshlrev_b32 v5, 7, v1\ns_mov_b32 s23, 8192\nbuffer_load_dword v105, v5, s[8:11], 0 offen\nbuffer_load_dword v106, v5, s[8:11], s23 offen\nbuffer_load_dword v107, v5, s[12:15], 0 offen")
    w1_stream(a, "m1", gc.SRD_W, 30, 5, o["r1"] + 108*o["nB"]//5*4, 2048, o["win2"], short23=o["extra23"])
    a("; STAMP 1")
    srd(a, gc.SRD_W, S_W2, W_BYTES_TOTAL)
    if o["rot"]:
        w2_head(a, "mh", gc.SRD_W, 30, 5, o["win2"])
    w2_stream(a, "m2", gc.SRD_W, 30, 5, 512 if o["rot"] else o["r20"], o["r2"], o["win2"])
    a("; STAMP 2")
    g_pause(a, "gp4", o)
    w2_stream(a, "m4", gc.SRD_W, 30, 8, o["r2"] + 96*o["nC"], 2304, o["win3"])
    if o["x_pf"] is True:
        srd(a, 8, S_X, X_BYTES); x_stream(a, "x4", 8, 30)


def mega(a, name, **opt):
    o = dict(b_first=True, h_early=True, agg=False, slpa=0, split_xn=True, slpg=1, slpx=0, lead=7, dry=False, b1_late=False, lnx=' nt', bias_pf=False, touch_g=True, xwait=True, early_bar=False, extra23=0, r0=0, r20=0, rep1=1, rep2=1, uflags='', rot=False, x_pf=True, ln_lines=False, x_late='tail', late_sig=False, pause=0, xbf=True, rnd1=0, rnd2=0, prio=0, lnw=256, slp=4, touch=True, tlb=4, early2=3, xnt='', ont='', prefill_late=True, r1=384, nB=2, r2=400, nC=0, win1=20, win2=56, win3=56, aflags=" sc1", code_pf=9)
    o.update(opt)
    prefetch.ROT = o["rot"]
    cv.UFLAGS = o["uflags"]
    gc.LEAD = o["lead"]
    a(f".globl {name}\n.p2align 8\n.type {name},@function\n{name}:\nL_m_base:")
    a("s_cmp_ge_u32 s2, 256\ns_cbranch_scc1 L_m_end")
    a(f"s_load_dwordx2 s[{S_X}:{S_X+1}], s[0:1], {KA['x']}\ns_load_dwordx2 s[{S_WS}:{S_WS+1}], s[0:1], {KA['ws']}")
    a(f"s_load_dwordx2 s[{S_W1}:{S_W1+1}], s[0:1], {KA['w1']}\ns_load_dwordx2 s[{S_W2}:{S_W2+1}], s[0:1], {KA['w2']}")
    a("v_lshrrev_b32 v1, 6, v0\nv_readfirstlane_b32 s20, v1\nv_and_b32 v1, 63, v0")
    a("s_cmp_eq_u32 s20, 4\ns_cbranch_scc1 L_m_w4")
    compute_waves(a, o)
    a("L_m_w4:")
    fifth_wave(a, o)
    a("L_m_end:\ns_endpgm\nL_m_last:")


def warm_kernel(a, name, rows, w2rows, main, window=63):
    a(f".globl {name}\n.p2align 8\n.type {name},@function\n{name}:")
    a("s_cmp_ge_u32 s2, 256\ns_cbranch_scc1 L_pre_end")
    if rows >= 0:
        a(f"s_load_dwordx2 s[4:5], s[0:1], {KA['ws']}\ns_load_dwordx2 s[6:7], s[0:1], {KA['x']}\ns_load_dwordx2 s[20:21], s[0:1], {KA['w1']}")
        a(f"s_load_dwordx2 s[22:23], s[0:1], {KA['w2']}\ns_load_dwordx2 s[24:25], s[0:1], {KA['out']}")
        a("v_and_b32 v1, 63, v0\ns_lshr_b32 s30, s2, 3\nv_lshlrev_b32 v4, 20, v1\ns_waitcnt lgkmcnt(0)")
        srd(a, 8, 4, WS_FLG + FLG_BYTES); srd(a, 12, 6, X_BYTES); srd(a, 16, 22, W_BYTES_TOTAL); srd(a, 32, 20, W_BYTES_TOTAL); srd(a, 48, 24, X_BYTES)
        for k, rs in enumerate((8, 12, 16, 48)):
            a(f"buffer_load_dword v{100+k}, v4, s[{rs}:{rs+3}], 0 offen sc1")
        a(f"s_getpc_b64 s[12:13]\nL_pre_pc:\ns_sub_u32 s12, s12, L_pre_pc-L_m_base\ns_subb_u32 s13, s13, 0")
        a("s_mov_b32 s14, L_m_last-L_m_base\ns_mov_b32 s15, 0x20000\nv_lshlrev_b32 v4, 4, v1\ns_lshl_b32 s23, s30, 10")
        a("buffer_load_dwordx4 v[96:99], v4, s[12:15], s23 offen\ns_add_u32 s23, s23, 32768\nbuffer_load_dwordx4 v[96:99], v4, s[12:15], s23 offen")
        w1_stream(a, "pre", 32, 30, 32, 0, rows, window)
        w2_stream(a, "pre", 16, 30, 32, 0, w2rows, window)
    a("L_pre_end:\ns_endpgm")
```

```python
import sys
sys.path.insert(0, "dev")
from asmlib import *
from layout import *
import hazard, mega
from gen import HEADER, descriptor, add_stamps


def build(stamps=False, pre=None, scramble=None, jitter=0, **opt):
    name = NAME + "_kernel"
    a = Asm()
    mega.mega(a, name, **opt)
    if pre is not None:
        mega.warm_kernel(a, "warm_kernel", pre[0], pre[1], name)
    if scramble or jitter:
        out = []
        for ln in a.lines:
            out.append(ln)
            t = ln.strip()
            if scramble and t == "s_cbranch_scc1 L_m_end" and out[-2].strip() == "s_cmp_ge_u32 s2, 256":
                if scramble == "transpose":
                    out += ["  s_and_b32 s3, s2, 31", "  s_lshl_b32 s3, s3, 3", "  s_lshr_b32 s2, s2, 5", "  s_or_b32 s2, s2, s3"]
                else:
                    out += ["  s_mul_i32 s2, s2, 77", "  s_add_u32 s2, s2, 13", "  s_and_b32 s2, s2, 255"]
            if jitter and (t.startswith("; STAMP") or t.endswith("_lloop:") or t.endswith("_round:")):
                n = len(out)
                out += ["  s_mul_i32 s3, s2, 0x9e3779b1", f"  s_add_u32 s3, s3, {n*2654435761 & 0x7fffffff}", "  s_add_u32 s3, s3, s20", "  s_mul_i32 s3, s3, 0x85ebca6b",
                        f"  s_lshr_b32 s3, s3, {32 - jitter}", f"L_jit{n}:", "  s_sleep 8", "  s_sub_u32 s3, s3, 1", f"  s_cbranch_scc0 L_jit{n}"]
        a.lines = out
    if stamps:
        a.lines = add_stamps(a.lines, [name], cyc=False)
    if stamps == "iter":
        out = []
        for ln in a.lines:
            t = ln.strip()
            if t.startswith("s_memtime s[7"):
                continue
            if t == "; ITER":
                out += ["  s_memrealtime s[76:77]", "  s_waitcnt lgkmcnt(0)", "  s_mov_b32 m0, s78", "  s_nop 0", "  v_writelane_b32 v250, s76, m0", "  s_add_u32 s78, s78, 1"]
                continue
            if t == "s_endpgm":
                out += ["  s_mov_b64 exec, -1", "  v_and_b32 v251, 63, v0", "  v_lshlrev_b32 v251, 2, v251", "  s_lshl_b32 s84, s2, 10", "  s_lshl_b32 s85, s20, 7",
                        "  s_add_u32 s84, s84, s85", "  s_add_u32 s80, s80, 0x80000", "  s_addc_u32 s81, s81, 0", "  s_mov_b32 exec_hi, 0", "  buffer_store_dword v250, v251, s[80:83], s84 offen"]
            out.append(ln)
        a.lines = out
    if stamps == "dbg":
        out, n = [], 0
        for ln in a.lines:
            if ln.strip() == "s_endpgm":
                n += 1
                out += ["  s_cmp_lg_u32 s2, 100", f"  s_cbranch_scc1 L_dbg{n}", "  s_and_b32 s84, s20, 3", "  s_cmp_lg_u32 s84, 0", f"  s_cbranch_scc1 L_dbg{n}",
                        "  s_load_dwordx2 s[80:81], s[0:1], 104", "  s_waitcnt lgkmcnt(0)", "  s_mov_b32 s82, 256", "  s_mov_b32 s83, 0x20000",
                        "  s_lshl_b32 s84, s20, 3", "  s_sub_u32 s84, s84, s20", "  s_add_u32 s84, s84, 4"]
                for k, sreg in enumerate((64, 66, 68, 70, 72, 74, 92)):
                    out += [f"  s_sub_u32 s85, s{sreg}, s90", "  v_mov_b32 v120, s85", f"  buffer_store_dword v120, v124, s[80:83], s84 offen offset:{4*k}"]
                out += [f"L_dbg{n}:"]
            out.append(ln)
        a.lines = out
    rep = []
    lines = hazard.fix(a.lines, report=rep)
    bad = hazard.check_loops(lines)
    assert not bad, bad
    text = HEADER + f"; @launch grid=(256,1,1) block=(320,1,1) lds={mega.LDS_TOTAL}\n"
    if pre is not None:
        text = HEADER + "; @launch kernel=warm_kernel grid=(256,1,1) block=(64,1,1) lds=0\n"
        text += f"; @launch kernel={name} grid=(256,1,1) block=(320,1,1) lds={mega.LDS_TOTAL}\n"
    text += '.amdgcn_target "amdgcn-amd-amdhsa--gfx950"\n.text\n' + "\n".join(lines) + "\n"
    text += '.section .rodata,"a"\n' + descriptor(name, 256, 102) + (descriptor("warm_kernel", 128, 96) if pre is not None else "")
    return text, rep


if __name__ == "__main__":
    kw = {k: eval(v) for k, v in (x.split("=", 1) for x in sys.argv[2:])}
    text, rep = build(**kw)
    open(sys.argv[1], "w").write(text)
    print(len(text), "bytes;", len(rep), "pads inserted")
```

```python
import sys
sys.path.insert(0, "dev")
from asmlib import *
from layout import *
import hazard, mega
from gen import HEADER, descriptor, add_stamps


ABOUT = """; One persistent launch, one workgroup of five waves per CU.
"""


def build(stamps=False, pre=None, scramble=None, jitter=0, **opt):
    name = NAME + "_kernel"
    a = Asm()
    mega.mega(a, name, **opt)
    if pre is not None:
        mega.warm_kernel(a, "warm_kernel", pre[0], pre[1], name)
    if scramble or jitter:
        out = []
        for ln in a.lines:
            out.append(ln)
            t = ln.strip()
            if scramble and t == "s_cbranch_scc1 L_m_end" and out[-2].strip() == "s_cmp_ge_u32 s2, 256":
                if scramble == "transpose":
                    out += ["  s_and_b32 s3, s2, 31", "  s_lshl_b32 s3, s3, 3", "  s_lshr_b32 s2, s2, 5", "  s_or_b32 s2, s2, s3"]
                else:
                    out += ["  s_mul_i32 s2, s2, 77", "  s_add_u32 s2, s2, 13", "  s_and_b32 s2, s2, 255"]
            if jitter and (t.startswith("; STAMP") or t.endswith("_lloop:") or t.endswith("_round:")):
                n = len(out)
                out += ["  s_mul_i32 s3, s2, 0x9e3779b1", f"  s_add_u32 s3, s3, {n*2654435761 & 0x7fffffff}", "  s_add_u32 s3, s3, s20", "  s_mul_i32 s3, s3, 0x85ebca6b",
                        f"  s_lshr_b32 s3, s3, {32 - jitter}", f"L_jit{n}:", "  s_sleep 8", "  s_sub_u32 s3, s3, 1", f"  s_cbranch_scc0 L_jit{n}"]
        a.lines = out
    if stamps:
        a.lines = add_stamps(a.lines, [name], cyc=False)
    if stamps == "iter":
        out = []
        for ln in a.lines:
            t = ln.strip()
            if t == "L_m_base:":
                out += [ln, "  s_mov_b32 s94, 0"]
                continue
            if t == "; ITER":
                out += ["  s_memrealtime s[92:93]", "  s_waitcnt lgkmcnt(0)", "  s_mov_b32 m0, s94", "  s_nop 0", "  v_writelane_b32 v250, s92, m0", "  s_add_u32 s94, s94, 1"]
                continue
            if t == "s_endpgm":
                out += ["  s_mov_b64 exec, -1", "  v_and_b32 v251, 63, v0", "  v_lshlrev_b32 v251, 2, v251", "  s_lshl_b32 s84, s2, 10", "  s_lshl_b32 s85, s20, 7",
                        "  s_add_u32 s84, s84, s85", "  s_add_u32 s80, s80, 0x80000", "  s_addc_u32 s81, s81, 0", "  s_mov_b32 exec_hi, 0", "  buffer_store_dword v250, v251, s[80:83], s84 offen"]
            out.append(ln)
        a.lines = out
    if stamps == "dbg":
        out, n = [], 0
        for ln in a.lines:
            if ln.strip() == "s_endpgm":
                n += 1
                out += ["  s_cmp_lg_u32 s2, 100", f"  s_cbranch_scc1 L_dbg{n}", "  s_and_b32 s84, s20, 3", "  s_cmp_lg_u32 s84, 0", f"  s_cbranch_scc1 L_dbg{n}",
                        "  s_load_dwordx2 s[80:81], s[0:1], 104", "  s_waitcnt lgkmcnt(0)", "  s_mov_b32 s82, 256", "  s_mov_b32 s83, 0x20000",
                        "  s_lshl_b32 s84, s20, 3", "  s_sub_u32 s84, s84, s20", "  s_add_u32 s84, s84, 4"]
                for k, sreg in enumerate((64, 66, 68, 70, 72, 74, 92)):
                    out += [f"  s_sub_u32 s85, s{sreg}, s90", "  v_mov_b32 v120, s85", f"  buffer_store_dword v120, v124, s[80:83], s84 offen offset:{4*k}"]
                out += [f"L_dbg{n}:"]
            out.append(ln)
        a.lines = out
    a.lines = [ln for ln in a.lines if not ln.strip().startswith(("; STAMP", "; ITER", "; CYC", "; SWAIT"))]
    rep = []
    lines = hazard.fix(a.lines, report=rep)
    bad = hazard.check_loops(lines)
    assert not bad, bad
    text = HEADER + f"; @launch grid=(256,1,1) block=(320,1,1) lds={mega.LDS_TOTAL}\n"
    if pre is not None:
        text = HEADER + "; @launch kernel=warm_kernel grid=(256,1,1) block=(64,1,1) lds=0\n"
        text += f"; @launch kernel={name} grid=(256,1,1) block=(320,1,1) lds={mega.LDS_TOTAL}\n"
    text += ABOUT
    text += '.amdgcn_target "amdgcn-amd-amdhsa--gfx950"\n.text\n' + "\n".join(lines) + "\n"
    text += '.section .rodata,"a"\n' + descriptor(name, 256, 102) + (descriptor("warm_kernel", 128, 96) if pre is not None else "")
    return text, rep


if __name__ == "__main__":
    kw = {k: eval(v) for k, v in (x.split("=", 1) for x in sys.argv[2:])}
    text, rep = build(**kw)
    open(sys.argv[1], "w").write(text)
    print(len(text), "bytes;", len(rep), "pads inserted")
```

```python
from asmlib import *

SLOT = 28672
W_BYTES = 16384
NSLOT = 4
LDS_RING = SLOT * NSLOT

V_ACC = 64
V_SET = (112, 140)
V_DW = 40
V_DA = 44
V_RW = 48
V_RA = 56

S_WAVE = 20
S_ACT0 = 21
S_W0 = 22
S_CNT = 25
SRD_ACT = 28
SRD_W = 32
SCHED = 0
UNROLL_C = False
UNROLL_L = False
LEAD = 3


def acc(nu, dl):
    return V_ACC + 4 * (nu * 3 + dl)


def wfrag(s, nu):
    return V_SET[s] + 4 * nu


def afrag(s, dl):
    return V_SET[s] + 16 + 4 * dl


def lane_ids(a):
    a("v_and_b32 v1, 63, v0\nv_and_b32 v2, 15, v1\nv_lshrrev_b32 v3, 4, v1\nv_lshlrev_b32 v7, 4, v1")


def loader_setup(a, dt_stride, w_stride, kmap):
    a(f"v_mul_u32_u24 v4, {w_stride}, v3\nv_lshlrev_b32 v5, 1, v3\nv_xor_b32 v5, v5, v2")
    a("v_lshl_add_u32 v6, v5, 4, v4\nv_xor_b32 v5, 8, v5\nv_lshl_add_u32 v8, v5, 4, v4")
    for e in range(4):
        hi = (e >> 1) & 1 if kmap == "A" else e & 1
        a(f"v_add_u32 v{V_DW+e}, {e*(4*w_stride - 1024)}, v{8 if hi else 6}")
    if dt_stride:
        for e in range(4):
            a(f"v_add_u32 v{V_DA+e}, {(e >> 1)*(dt_stride - 2048)}, v7")


def compute_setup(a, kmap, s_kh=None):
    a("v_bfe_u32 v4, v1, 2, 2")
    if kmap == "A":
        a("v_lshl_add_u32 v5, v3, 3, v4\nv_and_b32 v6, 1, v3\nv_lshl_add_u32 v6, v6, 2, v4")
    else:
        a("v_lshl_add_u32 v5, v3, 2, v4\nv_and_b32 v6, 7, v5")
    a("v_lshlrev_b32 v5, 8, v5\nv_and_b32 v8, 3, v1\nv_lshl_add_u32 v5, v8, 3, v5")
    if s_kh is None:
        a(f"s_lshr_b32 s26, s{S_WAVE}, 1\ns_lshl_b32 s26, s26, 2")
    else:
        a(f"s_and_b32 s26, s{S_WAVE}, 2\ns_lshl_b32 s27, s{s_kh}, 2\ns_add_u32 s26, s26, s27")
    for nu in range(4):
        if s_kh is None:
            a(f"s_add_u32 s27, s26, {nu}")
        else:
            a(f"s_add_u32 s27, s26, {nu & 1}\ns_xor_b32 s27, s27, {4*(nu >> 1)}")
        a(f"v_xor_b32 v8, s27, v6\nv_lshl_add_u32 v{V_RW+nu}, v8, 5, v5\nv_add_u32 v{V_RW+4+nu}, {2*SLOT}, v{V_RW+nu}")
    a(f"s_and_b32 s26, s{S_WAVE}, 1\ns_mul_i32 s26, s26, 6144\ns_add_u32 s26, s26, {W_BYTES}")
    a(f"v_add_u32 v{V_RA}, s26, v7\nv_add_u32 v{V_RA+1}, {2*SLOT}, v{V_RA}")


def dma_groups(slot, dt_stride, w_stride, aflags="", wflags="", jump=None):
    out = []
    for kind, E in (("a", 0), ("w", 0), ("w", 1), ("a", 1), ("w", 2), ("a", 2), ("w", 3)):
        if kind == "w":
            g = [f"s_mov_b32 m0, {slot*SLOT + 4096*E}"]
            g += [f"buffer_load_dwordx4 v{V_DW+e}, s[{SRD_W}:{SRD_W+3}], s{S_W0} offen offset:{1024*e}{wflags} lds" for e in range(4)]
            g += [f"s_add_u32 s{S_W0}, s{S_W0}, {16*w_stride}"]
        elif not dt_stride:
            g = [f"s_mov_b32 m0, {slot*SLOT + W_BYTES + 4096*E}"]
            g += [f"buffer_load_dwordx4 v7, s[{SRD_ACT}:{SRD_ACT+3}], s{S_ACT0} offen offset:{1024*e}{aflags} lds" for e in range(4)]
            g += [f"s_add_u32 s{S_ACT0}, s{S_ACT0}, {4096 if E < 2 else 36*2048 - 8192}"]
        else:
            g = [f"s_mov_b32 m0, {slot*SLOT + W_BYTES + 4096*E}"]
            g += [f"buffer_load_dwordx4 v{V_DA+e}, s[{SRD_ACT}:{SRD_ACT+3}], s{S_ACT0} offen offset:{1024*e}{aflags} lds" for e in range(4)]
            g += [f"s_add_u32 s{S_ACT0}, s{S_ACT0}, {2*dt_stride}" if E < 2 else f"s_sub_u32 s{S_ACT0}, s{S_ACT0}, {4*dt_stride - 2048}"]
        if jump and slot % 2 == 1 and E == (3 if kind == "w" else 2):
            g = g[:-1] + jump(kind)
        out.append(g)
    return out


def loader_main(a, nstages, dt_stride, w_stride, tag, aflags="", wflags="", before_last=None, tail=None):
    assert nstages % 4 == 0
    G = lambda j: dma_groups(j % NSLOT, dt_stride, w_stride, aflags, wflags)
    flat = lambda gs: [x for g in gs for x in g]
    vm = 28 + 4*LEAD
    a.extend(flat(G(0)) + flat(G(1)[:LEAD]))
    a(f"s_waitcnt vmcnt({4*LEAD})\ns_barrier")
    a.extend(flat(G(1)[LEAD:]) + flat(G(2)) + flat(G(3)[:LEAD]))
    a(f"s_waitcnt vmcnt({vm})\ns_barrier")
    a.extend(flat(G(3)[LEAD:]))
    a(f"s_mov_b32 s{S_CNT}, {nstages//4 - 1}\nL_{tag}_lloop:")
    for slot in range(4):
        if s_group is not None:
            assert LEAD == 7
            W = [x for g in G(slot) if f"s[{SRD_W}:" in g[1] for x in g]
            a(f"s_cmp_eq_u32 s{s_group}, {slot}\ns_cbranch_scc1 L_{tag}_lead{slot}")
            a.extend(W + A(slot))
            a(f"s_branch L_{tag}_join{slot}\nL_{tag}_lead{slot}:")
            a.extend(A(slot) + W)
            a(f"L_{tag}_join{slot}:\ns_waitcnt vmcnt({vm})\ns_barrier")
            continue
        a.extend(flat(G(slot)[:LEAD]))
        a(f"s_waitcnt vmcnt({vm})\ns_barrier")
        a.extend(flat(G(slot)[LEAD:]))
    a(f"s_sub_u32 s{S_CNT}, s{S_CNT}, 1\ns_cmp_lg_u32 s{S_CNT}, 0\ns_cbranch_scc1 L_{tag}_lloop")
    if tail:
        tail(a)
        return
    a("s_waitcnt vmcnt(28)\ns_barrier")
    if before_last:
        before_last(a)
    else:
        a("s_waitcnt vmcnt(0)")
    a("s_barrier")


def reads(s, slot, ks, kmap):
    win, so = slot >> 1, (slot & 1) * SLOT
    hoff = 4 * 256 if kmap == "A" else 16 * 256
    ra = lambda dl: f"ds_read_b128 {vr(afrag(s, dl), 4)}, v{V_RA+win} offset:{so + (2*dl + ks)*1024}"
    rw = lambda nu, h: f"ds_read_b64_tr_b16 {vr(wfrag(s, nu)+2*h, 2)}, v{V_RW+4*win+nu} offset:{so + ks*8192 + h*hoff}"
    return [ra(0), rw(0, 0), rw(0, 1), ra(1), ra(2), rw(1, 0), rw(1, 1), rw(2, 0), rw(2, 1), rw(3, 0), rw(3, 1)]


def mfmas(s, swap):
    out = []
    for nu in range(4):
        for dl in (range(3) if nu % 2 == 0 else range(2, -1, -1)):
            w, x = vr(wfrag(s, nu), 4), vr(afrag(s, dl), 4)
            p, q = (x, w) if swap else (w, x)
            out.append(f"v_mfma_f32_16x16x32_bf16 {vr(acc(nu, dl), 4)}, {p}, {q}, {vr(acc(nu, dl), 4)}")
    return out


def stage(a, slot, kmap, swap, last, last_barrier=False, pre_barrier=None):
    m = mfmas(0, swap)
    rd = reads(1, slot, 1, kmap)
    gaps = [[] for _ in range(12)]
    a("s_waitcnt lgkmcnt(6)")
    if SCHED == 0:
        gaps[0] = [rd[0], rd[1]]
        gaps[1] = [rd[2], rd[3]]
        gaps[2] = ["s_waitcnt lgkmcnt(8)", rd[4]]
        gaps[3] = [rd[5], rd[6]]
        gaps[4] = [rd[7], rd[8]]
        gaps[5] = ["s_waitcnt lgkmcnt(9)", rd[9]]
        gaps[6] = [rd[10]]
    elif SCHED == 1:
        a.lines[-1] = "  s_waitcnt lgkmcnt(0)"
        for g, items in enumerate(([0, 1], [2], [3], [4], [5, 6], [7], [8], [9], [10])):
            gaps[g] = [rd[i] for i in items]
    elif SCHED == 2:
        a.lines[-1] = "  s_waitcnt lgkmcnt(0)"
        for g in range(5):
            gaps[g] = [rd[2*g], rd[2*g+1]]
        gaps[5] = [rd[10]]
    elif SCHED == 3:
        gaps[0] = [rd[0]]
        gaps[1] = [rd[1], rd[2]]
        gaps[2] = ["s_waitcnt lgkmcnt(3)", rd[3]]
        for g, items in enumerate(([4], [5, 6], [7], [8], [9], [10])):
            gaps[3+g] = [rd[i] for i in items]
    gaps[11] = ["s_waitcnt lgkmcnt(0)"]
    a.extend(interleave(m, gaps))
    if pre_barrier:
        pre_barrier(a)
    if not last or last_barrier:
        a("s_barrier")
    m = mfmas(1, swap)
    gaps = [[] for _ in range(12)]
    if not last:
        rd = reads(0, (slot + 1) % NSLOT, 0, kmap)
        if SCHED in (0, 2):
            for g in range(5):
                gaps[g] = [rd[2*g], rd[2*g+1]]
            gaps[5] = [rd[10]]
        else:
            for g, items in enumerate(([0, 1], [2], [3], [4], [5, 6], [7], [8], [9], [10])):
                gaps[g] = [rd[i] for i in items]
    a.extend(interleave(m, gaps))


def compute_main(a, nstages, kmap, swap, tag, hook=None, last_barrier=False, st=(0, 1), first_stage1=None, tail_hook=None):
    a(f"; STAMP {st[0]}\ns_waitcnt lgkmcnt(0)\ns_barrier\n; CYC 0\n; SWAIT")
    a.extend(reads(0, 0, 0, kmap))
    a(f"s_mov_b32 s{S_CNT}, {nstages//4 - 1}")
    a(f".p2align 6\nL_{tag}_loop:")
    if hook:
        hook(a)
    a("; ITER")

    def once(a):
        a(f"s_cmp_lg_u32 s{S_CNT}, {nstages//4 - 1}\ns_cbranch_scc1 L_{tag}_once")
        first_stage1(a)
        a(f"L_{tag}_once:")
    for rep in range(nstages//4 - 1 if UNROLL_C else 1):
        for slot in range(4):
            stage(a, slot, kmap, swap, False, pre_barrier=once if (first_stage1 and slot == 1) else None)
    if not UNROLL_C:
        a(f"s_sub_u32 s{S_CNT}, s{S_CNT}, 1\ns_cmp_lg_u32 s{S_CNT}, 0\ns_cbranch_scc1 L_{tag}_loop")
    for slot in range(4):
        stage(a, slot, kmap, swap, slot == 3, last_barrier, pre_barrier=tail_hook if slot == 2 else None)
    a("; CYC 1")


def w_prefill(a, stages, dt_stride, w_stride, jump=None):
    for j in stages:
        for g in dma_groups(j, dt_stride, w_stride, jump=jump):
            if f"s[{SRD_W}:" in g[1]:
                a.extend(g)


def loader_after_prefill(a, nstages, dt_stride, w_stride, tag, aflags, before_last=None, tail=None, jump=None, wait2=None, wait8=None, wrap=None, s_group=None):
    G = lambda j: dma_groups(j % NSLOT, dt_stride, w_stride, aflags, jump=jump)
    A = lambda j: [x for g in G(j) if f"s[{SRD_ACT}:" in g[1] for x in g]
    flat = lambda gs: [x for g in gs for x in g]
    vm = 28 + 4*LEAD
    if not wait2:
        a.extend(A(0) + A(1))
        a("s_waitcnt vmcnt(12)\ns_barrier")
    if wait2:
        a.extend(jump("a"))
        a("s_waitcnt vmcnt(32)\ns_barrier\ns_barrier")
        wait2(a)
        a.extend(A(2) + A(3))
        a("s_waitcnt vmcnt(12)")
    else:
        a.extend(A(2) + A(3))
        a("s_waitcnt vmcnt(12)\ns_barrier")
    a(f"s_mov_b32 s{S_CNT}, {nstages//4 - 1}\nL_{tag}_lloop:")
    if wrap:
        a(f"s_cmp_lg_u32 s{S_CNT}, {nstages//8}\ns_cbranch_scc1 L_{tag}_nowrap\ns_sub_u32 s{S_W0}, s{S_W0}, {wrap[0]}\ns_sub_u32 s{S_ACT0}, s{S_ACT0}, {wrap[1]}\nL_{tag}_nowrap:")
    if wait8:
        a(f"s_cmp_lg_u32 s{S_CNT}, {nstages//4 - 2}\ns_cbranch_scc1 L_{tag}_no8")
        wait8(a)
        a(f"L_{tag}_no8:")
    for slot in list(range(4)) * (nstages//4 - 1 if UNROLL_L else 1):
        if s_group is not None:
            assert LEAD == 7
            W = [x for g in G(slot) if f"s[{SRD_W}:" in g[1] for x in g]
            a(f"s_cmp_eq_u32 s{s_group}, {slot}\ns_cbranch_scc1 L_{tag}_lead{slot}")
            a.extend(W + A(slot))
            a(f"s_branch L_{tag}_join{slot}\nL_{tag}_lead{slot}:")
            a.extend(A(slot) + W)
            a(f"L_{tag}_join{slot}:\ns_waitcnt vmcnt({vm})\ns_barrier")
            continue
        a.extend(flat(G(slot)[:LEAD]))
        a(f"s_waitcnt vmcnt({vm})\ns_barrier")
        a.extend(flat(G(slot)[LEAD:]))
    if not UNROLL_L:
        a(f"s_sub_u32 s{S_CNT}, s{S_CNT}, 1\ns_cmp_lg_u32 s{S_CNT}, 0\ns_cbranch_scc1 L_{tag}_lloop")
    if tail:
        tail(a)
        return
    a("s_waitcnt vmcnt(28)\ns_barrier")
    if before_last:
        before_last(a)
    else:
        a("s_waitcnt vmcnt(0)")
    a("s_barrier")
```

```python
import struct
from asmlib import *
from layout import *
import gemm_core as gc
import mega_ln as ln
import mega_conv as cv
from prefetch import *
import prefetch

AT_LDS = gc.LDS_RING
LN_LDS = 139264
CNT_LDS = LN_LDS + 2*ln.LN_T
LDS_TOTAL = CNT_LDS + 64
S_WS, S_X, S_DBG, S_W1, S_W2 = 4, 6, 94, 96, 98
SPIN = 0x100000
S_TAG = 100
F_SEED = 255 * 256


def f32hex(x):
    return "0x%08x" % struct.unpack("<I", struct.pack("<f", x))[0]


def div6(a, d, r, x):
    a(f"s_mul_i32 s{d}, s{x}, 10923\ns_lshr_b32 s{d}, s{d}, 16\ns_mul_i32 s{r}, s{d}, 6\ns_sub_u32 s{r}, s{x}, s{r}")


def unpk(a, x, p):
    a(f"v_lshlrev_b32 v{x}, 16, v{p}\nv_and_b32 v{x+1}, 0xffff0000, v{p}")


def poll(a, tag, rs, vaddr, soff, target, sleep=1, mask=None):
    a(f"s_mov_b32 s61, {SPIN:#x}\nL_{tag}_poll:\nbuffer_load_dword v62, v{vaddr}, s[{rs}:{rs+3}], {soff} offen sc1")
    a(f"s_sub_u32 s61, s61, 1\ns_cbranch_scc1 L_{tag}_go\ns_waitcnt vmcnt(0)")
    if mask:
        a(f"v_and_b32 v62, {mask:#x}, v62")
    a(f"v_cmp_ne_u32 vcc, {target}, v62")
    a(f"s_cmp_eq_u64 vcc, 0\ns_cbranch_scc1 L_{tag}_go")
    if sleep:
        a(f"s_sleep {sleep}")
    a(f"s_branch L_{tag}_poll\nL_{tag}_go:")


def flags_srd(a, d):
    srd_off(a, d, S_WS, WS_FLG, FLG_BYTES)


def last_wave_signals(a, tag, cnt, rs, soff, word=None, second=None):
    a(f"v_mov_b32 v58, {cnt}\nv_mov_b32 v59, 1\nv_mov_b32 v61, 0\ns_mov_b64 exec, 1\nds_add_rtn_u32 v60, v58, v59\ns_waitcnt lgkmcnt(0)")
    a(f"v_readfirstlane_b32 s23, v60\ns_cmp_lg_u32 s23, 3\ns_cbranch_scc1 L_{tag}_notlast")
    if word:
        a(f"v_mov_b32 v59, {word}\nbuffer_store_dword v59, v61, s[{rs}:{rs+3}], {soff} offen sc1")
    else:
        if second:
            a(f"buffer_atomic_add v59, v61, s[{rs}:{rs+3}], {second} offen sc1")
        a(f"buffer_atomic_add v59, v61, s[{rs}:{rs+3}], {soff} offen sc1")
    a(f"L_{tag}_notlast:\ns_mov_b64 exec, -1")


def ln_local_wait(a, tag, cnt=CNT_LDS+4):
    a(f"v_mov_b32 v58, {cnt}\nL_{tag}:\ns_sleep 2\nds_read_b32 v60, v58\ns_waitcnt lgkmcnt(0)\nv_readfirstlane_b32 s23, v60\ns_cmp_lt_u32 s23, 4\ns_cbranch_scc1 L_{tag}")


def g_pause(a, tag, o):
    if not o["pause"]:
        return
    a(f"s_lshr_b32 s23, s2, 3\ns_mul_i32 s24, s23, 43\ns_lshr_b32 s24, s24, 9\ns_mul_i32 s24, s24, 12\ns_sub_u32 s23, s23, s24\ns_lshl_b32 s23, s23, 8\ns_add_u32 s23, s23, {F_G}")
    a(f"v_mov_b32 v61, 0\ns_mov_b32 s61, {SPIN:#x}\nL_{tag}_poll:\nbuffer_load_dword v62, v61, s[36:39], s23 offen sc1\ns_sub_u32 s61, s61, 1\ns_cbranch_scc1 L_{tag}_go")
    a(f"s_waitcnt vmcnt(0)\nv_readfirstlane_b32 s24, v62\ns_cmp_ge_u32 s24, {o['pause']}\ns_cbranch_scc1 L_{tag}_go\ns_sleep 8\ns_branch L_{tag}_poll\nL_{tag}_go:")


def wait_ln(a, tag, rs, o, base=F_LNW):
    a(f"v_mul_u32_u24 v61, {o['lnw']}, v1\ns_mov_b32 s61, {SPIN:#x}\nL_{tag}_poll:")
    if o["ln_lines"] and base == F_LNW:
        for k in range(4):
            a(f"s_mov_b32 s62, {F_LNW + k*64*o['lnw']}\nbuffer_load_dword v{180+k}, v61, s[{rs}:{rs+3}], s62 offen sc1")
    else:
        a(f"s_mov_b32 s62, {base}\nbuffer_load_dwordx4 v[180:183], v61, s[{rs}:{rs+3}], s62 offen sc1")
    a(f"s_sub_u32 s61, s61, 1\ns_cbranch_scc1 L_{tag}_go\ns_waitcnt vmcnt(0)")
    a(f"v_xor_b32 v180, s{S_TAG+1}, v180\nv_xor_b32 v181, s{S_TAG+1}, v181\nv_xor_b32 v182, s{S_TAG+1}, v182\nv_xor_b32 v183, s{S_TAG+1}, v183")
    a("v_or3_b32 v180, v180, v181, v182\nv_or_b32 v180, v180, v183\nv_cmp_ne_u32 vcc, 0, v180")
    a(f"s_cmp_eq_u64 vcc, 0\ns_cbranch_scc1 L_{tag}_go\ns_sleep {o['slp']}\ns_branch L_{tag}_poll\nL_{tag}_go:")


def tile1(a):
    a("s_and_b32 s12, s2, 7\ns_lshr_b32 s13, s2, 3\ns_and_b32 s14, s12, 1\ns_mul_i32 s14, s14, 3\ns_add_u32 s13, s13, s14")
    a("s_cmp_ge_u32 s13, 27\ns_cselect_b32 s14, 27, 0\ns_sub_u32 s13, s13, s14\ns_mul_i32 s12, s12, 27\ns_add_u32 s12, s12, s13")
    div6(a, 14, 15, 12)


def tile2(a):
    a("s_lshr_b32 s13, s2, 3")
    div6(a, 12, 15, 13)
    a("s_bfe_u32 s19, s2, 0x10002\ns_and_b32 s13, s2, 3\ns_lshl_b32 s14, s13, 2\ns_add_u32 s14, s14, s12")
    a("s_mul_i32 s13, s13, 9\ns_add_u32 s13, s13, 1\ns_lshr_b32 s13, s13, 1")
    a("s_lshl_b32 s16, s14, 7\ns_lshl_b32 s17, s19, 6\ns_add_u32 s16, s16, s17")


def block_jump(kind):
    cnt, base, dst, step = (54, 56, gc.S_W0, 128*4096) if kind == "w" else (55, 57, gc.S_ACT0, 2*73728)
    return [f"s_add_u32 s{cnt}, s{cnt}, 1", f"s_add_u32 s18, s{cnt}, s12", "s_and_b32 s18, s18, 3", f"s_cmp_lt_u32 s{cnt}, 4",
            f"s_cselect_b32 s18, s18, s{cnt}", "s_add_u32 s18, s18, s13", "s_cmp_ge_u32 s18, 18", "s_cselect_b32 s17, 18, 0",
            "s_sub_u32 s18, s18, s17", f"s_mul_i32 s18, s18, {step}", f"s_add_u32 s{dst}, s18, s{base}"]


def gelu_epilogue(a, rounds, rot):
    c1 = -2.0 * 0.7978845608028654 * 1.4426950408889634
    a(f"s_mov_b32 s48, {f32hex(c1*0.044715)}\ns_mov_b32 s49, s48\nv_mov_b32 v36, {f32hex(c1)}\nv_mov_b32 v37, v36")
    for nu in range(4):
        unpk(a, 20+4*nu, 12+2*nu); unpk(a, 22+4*nu, 13+2*nu)
    a(f"s_lshr_b32 s26, s20, 1\ns_mul_i32 s26, s26, {gc.SLOT}\ns_and_b32 s27, s20, 1\ns_mul_i32 s27, s27, 6144\ns_add_u32 s26, s26, s27\ns_add_u32 s26, s26, {gc.W_BYTES}\nv_add_u32 v38, s26, v7")
    B = 112
    for dl in range(3):
        for pi in range(2):
            src = [(gc.acc(2*pi + (k >> 1), dl) + 2*(k & 1), 20 + 4*(2*pi + (k >> 1)) + 2*(k & 1)) for k in range(4)]
            U = [B + 2*k for k in range(4)]; T = [B + 8 + 2*k for k in range(4)]; P = [B + 16 + k for k in range(4)]
            O = B + 20 + 4*((2*dl + pi) % 2)
            if rounds == 2:
                for k in range(4): a(f"v_cvt_pk_bf16_f32 v{P[k]}, v{src[k][0]}, v{src[k][0]+1}")
                for k in range(4): unpk(a, U[k], P[k])
                for k in range(4): a(f"v_pk_add_f32 {vr(U[k],2)}, {vr(U[k],2)}, {vr(src[k][1],2)}")
            else:
                for k in range(4): a(f"v_pk_add_f32 {vr(U[k],2)}, {vr(src[k][0],2)}, {vr(src[k][1],2)}")
            if rounds >= 1:
                for k in range(4): a(f"v_cvt_pk_bf16_f32 v{P[k]}, v{U[k]}, v{U[k]+1}")
                for k in range(4): unpk(a, U[k], P[k])
            for k in range(4): a(f"v_pk_mul_f32 {vr(T[k],2)}, {vr(U[k],2)}, {vr(U[k],2)}")
            for k in range(4): a(f"v_pk_fma_f32 {vr(T[k],2)}, {vr(T[k],2)}, s[48:49], v[36:37]")
            for k in range(4): a(f"v_pk_mul_f32 {vr(T[k],2)}, {vr(T[k],2)}, {vr(U[k],2)}")
            for k in range(4): a(f"v_exp_f32 v{T[k]}, v{T[k]}\nv_exp_f32 v{T[k]+1}, v{T[k]+1}")
            for k in range(4): a(f"v_pk_add_f32 {vr(T[k],2)}, {vr(T[k],2)}, 1.0 op_sel_hi:[1,0]")
            for k in range(4): a(f"v_rcp_f32 v{T[k]}, v{T[k]}\nv_rcp_f32 v{T[k]+1}, v{T[k]+1}")
            for k in range(4): a(f"v_pk_mul_f32 {vr(U[k],2)}, {vr(U[k],2)}, {vr(T[k],2)}")
            for k in range(4): a(f"v_cvt_pk_bf16_f32 v{O+k}, v{U[k]}, v{U[k]+1}")
            a(f"buffer_store_dwordx4 {vr(O,4)}, v7, s[44:47], s17 offen offset:{1024*pi} sc1")
            if rot:
                a(f"ds_write_b128 v38, {vr(O,4)} offset:{(2*dl + pi)*1024}")
        a("s_add_u32 s17, s17, 2048")


def read_tag(a):
    a(f"s_add_u32 s26, s{S_WS}, {WS_FLG + F_SEED:#x}\ns_addc_u32 s27, s{S_WS+1}, 0\ns_load_dword s{S_TAG+1}, s[26:27], 0")


def make_tag(a):
    a(f"s_mul_i32 s{S_TAG+1}, s{S_TAG+1}, 0x9e3779b1\ns_add_u32 s{S_TAG+1}, s{S_TAG+1}, 0x7f4a7c15\ns_andn2_b32 s{S_TAG}, s{S_TAG+1}, 0xff")


def compute_waves(a, o):
    a("s_waitcnt lgkmcnt(0)")
    ln.ln_issue(a, S_X, o['lnx'], 80 if o['dry'] else 10)
    read_tag(a)
    a(f"s_cmp_lg_u32 s20, 0\ns_cbranch_scc1 L_m_nz\nv_mov_b32 v58, {CNT_LDS}\nv_mov_b32 v60, 0\nv_mov_b32 v61, 0\nv_mov_b32 v62, 0\nv_mov_b32 v63, 0")
    a("ds_write_b128 v58, v[60:63]\nL_m_nz:")
    if o["early_bar"]:
        a("s_waitcnt lgkmcnt(0)\ns_barrier")
    a(f"s_load_dwordx2 s[38:39], s[0:1], {KA['b1']}\ns_load_dwordx8 s[80:87], s[0:1], {KA['lar']}\ns_load_dwordx4 s[88:91], s[0:1], {KA['ldt']}")
    ln.ln_body(a, S_WS, LN_LDS, CNT_LDS, "ln", not o["early_bar"], o["dry"])
    if not o["split_xn"]:
        ln.xn_stores(a, "ln")
    flags_srd(a, 40)
    make_tag(a)
    a("v_mov_b32 v61, 0\ns_cmp_lg_u32 s20, 3\ns_cbranch_scc1 L_m_nozero\ns_sub_u32 s23, s2, 28\ns_cmp_ge_u32 s23, 6\ns_cbranch_scc1 L_m_nozero")
    a("s_lshl_b32 s23, s2, 8\ns_mov_b64 exec, 1\nbuffer_store_dword v61, v61, s[40:43], s23 offen sc1\ns_mov_b64 exec, -1\nL_m_nozero:")
    if o["ln_lines"]:
        a(f"s_mul_i32 s24, s2, {o['lnw']}\ns_add_u32 s24, s24, {F_LNW}")
    else:
        a(f"s_and_b32 s24, s2, 63\ns_mul_i32 s24, s24, {o['lnw']}\ns_lshr_b32 s23, s2, 6\ns_lshl_b32 s23, s23, 2\ns_add_u32 s24, s24, s23\ns_add_u32 s24, s24, {F_LNW}")
    a("s_waitcnt vmcnt(0)\n; STAMP 1")
    last_wave_signals(a, "lnd", CNT_LDS + 4, 40, "s24", word=f"s{S_TAG+1}")
    a("s_lshr_b32 s29, s2, 3\ns_lshl_b32 s29, s29, 2\ns_add_u32 s29, s29, s20")
    srd(a, 32, S_W1, W_BYTES_TOTAL)
    if o["split_xn"]:
        ln.xn_stores(a, "ln")
        a(f"s_and_b32 s24, s2, 63\ns_mul_i32 s24, s24, {o['lnw']}\ns_lshr_b32 s23, s2, 6\ns_lshl_b32 s23, s23, 2\ns_add_u32 s24, s24, s23\ns_add_u32 s24, s24, {F_XNW}")
        if o["b_first"]:
            a("s_cmp_ge_u32 s2, 216\ns_cbranch_scc1 L_m_nob")
            w1_burst(a, 32, 29, 108, o["r1"]//4*5, o["nB"])
            a(f"s_waitcnt vmcnt({o['nB']})\ns_branch L_m_hadb\nL_m_nob:")
            a("s_sub_u32 s31, s2, 216\ns_lshl_b32 s31, s31, 2\ns_add_u32 s31, s31, s20\ns_mul_i32 s31, s31, 3\ns_mov_b32 s28, s24")
            cv.param_loads(a, 80, 88, 90)
            a("s_mov_b32 s24, s28\ns_waitcnt vmcnt(14)\nL_m_hadb:")
        else:
            a("s_waitcnt vmcnt(0)")
        last_wave_signals(a, "xnd", CNT_LDS + 12, 40, "s24", word=f"s{S_TAG+1}")
    a("s_cmp_ge_u32 s2, 216\ns_cbranch_scc1 L_m_conv")
    if not (o["split_xn"] and o["b_first"]):
        w1_burst(a, 32, 29, 108, o["r1"]//4*5, o["nB"])
    srd(a, 32, S_W2, W_BYTES_TOTAL)
    tile1(a)
    gc.lane_ids(a)
    gc.compute_setup(a, "A")
    srd(a, 8, 38, F*2)
    a(f"s_lshr_b32 s16, s20, 1\ns_lshl_b32 s17, s16, 7\ns_lshl_b32 s18, s14, 8\ns_add_u32 s17, s17, s18\nv_lshlrev_b32 v9, 3, v3")
    a("s_mov_b32 s22, s17")

    def b1_loads(a):
        for nu in range(4):
            a(f"buffer_load_dwordx2 {vr(12+2*nu,2)}, v9, s[8:11], s22 offen offset:{32*nu}")
    if not o["b1_late"]:
        b1_loads(a)
    for i in range(48):
        a(f"v_mov_b32 v{gc.V_ACC+i}, 0")
    srd_off(a, 44, S_WS, WS_G, G_BYTES)
    a("s_and_b32 s17, s20, 1\ns_mul_i32 s17, s17, 3\ns_mul_i32 s18, s15, 6\ns_add_u32 s17, s17, s18\ns_lshl_b32 s17, s17, 11")
    a("s_lshl_b32 s18, s14, 1\ns_add_u32 s18, s18, s16\ns_mul_i32 s18, s18, 73728\ns_add_u32 s17, s17, s18")
    a(f"s_mul_i32 s24, s15, 36\ns_add_u32 s24, s24, s14\ns_lshl_b32 s24, s24, 8\ns_add_u32 s24, s24, {F_GW}")
    a(f"s_load_dwordx4 s[52:55], s[0:1], {KA['b2']}")
    gc.compute_main(a, 32*o["rep1"], "A", False, "g1", last_barrier=True, st=(5, 2), tail_hook=b1_loads if o["b1_late"] else None)
    if o["rep1"] == 2:
        for i in range(48):
            a(f"v_mul_f32 v{gc.V_ACC+i}, 0.5, v{gc.V_ACC+i}")
    a("s_waitcnt vmcnt(0)")
    gelu_epilogue(a, o['rnd1'], o['rot'])
    a("s_cmp_lt_u32 s2, 192\ns_cbranch_scc1 L_m_g2\ns_waitcnt vmcnt(0)")
    last_wave_signals(a, "gd", CNT_LDS + 8, 40, "s24", word=f"s{S_TAG+1}")
    a("; STAMP 3\ns_branch L_m_conv1\nL_m_g2:")
    tile2(a)
    gc.compute_setup(a, "B", s_kh=19)
    srd(a, 32, S_X, X_BYTES); srd(a, 28, 52, S*2)
    a("s_lshr_b32 s17, s20, 1\ns_lshl_b32 s17, s17, 5\ns_add_u32 s17, s17, s16")
    a("s_mul_i32 s18, s15, 96\ns_and_b32 s26, s20, 1\ns_mul_i32 s26, s26, 48\ns_add_u32 s18, s18, s26")
    a("v_mul_u32_u24 v58, 1152, v2\nv_lshl_add_u32 v58, v3, 3, v58\nv_lshlrev_b32 v9, 1, v2")
    a("s_mul_i32 s56, s17, 1152\ns_lshl_b32 s26, s18, 1\ns_add_u32 s56, s56, s26\ns_add_u32 s57, s56, 18432\ns_lshl_b32 s26, s17, 1")
    a("s_mov_b32 s22, s26\nv_mov_b32 v39, v58")
    for i in range(48):
        a(f"v_mov_b32 v{gc.V_ACC+i}, 0")
    a("v_bfe_u32 v4, v1, 2, 2\nv_lshl_add_u32 v4, v3, 2, v4\nv_lshlrev_b32 v4, 7, v4\nv_and_b32 v5, 3, v1\nv_lshl_add_u32 v4, v5, 3, v4")
    a(f"s_and_b32 s26, s20, 1\ns_mul_i32 s26, s26, 6144\ns_lshr_b32 s27, s20, 1\ns_lshl_b32 s27, s27, 6\ns_add_u32 s26, s26, s27\ns_add_u32 s26, s26, {AT_LDS}\nv_add_u32 v59, s26, v4")
    a("v_mov_b32 v31, v59")
    a("s_xor_b32 s58, s2, 4\ns_lshl_b32 s26, s20, 12\ns_lshl_b32 s59, s58, 14\ns_add_u32 s59, s59, s26\ns_lshl_b32 s60, s2, 14\ns_add_u32 s60, s60, s26")
    assert o["xbf"]

    def x_loads(a):
        for nu in range(2):
            for dl in range(3):
                a(f"buffer_load_dwordx2 {vr(10+2*(3*nu+dl),2)}, v39, s[32:35], s{56+nu} offen offset:{32*dl}{o['xnt']}")
            a(f"buffer_load_ushort v{22+nu}, v9, s[28:31], s22 offen offset:{32*nu}")

    def publish_g(a):
        a("s_waitcnt vmcnt(0)")
        last_wave_signals(a, "gd2", CNT_LDS + 8, 40, "s24", word=f"s{S_TAG+1}")
        a("; STAMP 3\n; SWAIT")
        if not o["x_late"]:
            x_loads(a)

    if o["late_sig"]:
        gc.compute_main(a, 36, "B", True, "g2", st=(5, 4), first_stage1=publish_g)
    else:
        publish_g(a)
        gc.compute_main(a, 36*o["rep2"], "B", True, "g2", st=(5, 4), tail_hook=x_loads if o["x_late"] == "tail" else None)
        if o["rep2"] == 2:
            for i in range(48):
                a(f"v_mul_f32 v{gc.V_ACC+i}, 0.5, v{gc.V_ACC+i}")
    srd_off(a, 8, S_WS, WS_XCH, XCH_BYTES); srd(a, 44, 54, X_BYTES)
    a("v_mov_b32 v58, v39\nv_mov_b32 v59, v31")
    a("; STAMP 5")
    SN = 172
    NG = 4 if o["xbf"] else 8
    for k in range(NG):
        for m in range(3):
            if o["xbf"]:
                a(f"v_cvt_pk_bf16_f32 v{SN+4*k+m}, v{gc.V_ACC+24+6*k+2*m}, v{gc.V_ACC+25+6*k+2*m}")
            else:
                a(f"v_mov_b32 v{SN+4*k+m}, v{gc.V_ACC+24+3*k+m}")
        a(f"v_mov_b32 v{SN+4*k+3}, s{S_TAG+1}")
        a(f"buffer_store_dwordx4 {vr(SN+4*k,4)}, v7, s[8:11], s59 offen sc1\ns_add_u32 s59, s59, 1024")
    if o["x_late"] is True:
        x_loads(a)
    a("s_barrier")
    AR, PF = 112, 124
    for nu in range(2):
        for dl in range(3):
            a(f"ds_read_b64_tr_b16 {vr(AR+2*(3*nu+dl),2)}, v59 offset:{2048*dl + 32*nu}")
    a(f"s_waitcnt vmcnt({0 if o['x_late'] is True else NG})\nv_lshlrev_b32 v22, 16, v22\nv_lshlrev_b32 v24, 16, v23\ns_waitcnt lgkmcnt(0)")
    for t in range(6):
        for h in range(2):
            unpk(a, 26, 10+2*t+h); unpk(a, 28, AR+2*t+h)
            if o["rnd2"]:
                a("v_pk_add_f32 v[26:27], v[26:27], v[28:29]\nv_cvt_pk_bf16_f32 v30, v26, v27")
                unpk(a, PF+4*t+2*h, 30)
            else:
                b = gc.V_ACC + 4*t + 2*h
                a(f"v_pk_add_f32 v[26:27], v[26:27], v[28:29]\nv_pk_add_f32 {vr(b,2)}, {vr(b,2)}, {vr(22+2*(t//3),2)} op_sel_hi:[1,0]")
                a(f"v_pk_add_f32 {vr(b,2)}, {vr(b,2)}, v[26:27]")
    RX = 204
    if o["xwait"]:
        a("s_waitcnt vmcnt(0)")
    a(f"s_mov_b32 s61, {SPIN:#x}\ns_add_u32 s62, s60, 4096\nL_xch_poll:")
    for k in range(NG):
        a(f"buffer_load_dwordx4 {vr(RX+4*k,4)}, v7, s[8:11], s{60 + 2*(k >> 2)} offen offset:{1024*(k & 3)} sc1")
    a(f"s_sub_u32 s61, s61, 1\ns_cbranch_scc1 L_xch_go\ns_waitcnt vmcnt(0)\nv_xor_b32 v4, s{S_TAG+1}, v{RX+3}")
    for k in range(1, NG):
        a(f"v_xor_b32 v5, s{S_TAG+1}, v{RX+4*k+3}\nv_or_b32 v4, v4, v5")
    a("v_cmp_ne_u32 vcc, 0, v4\ns_cmp_eq_u64 vcc, 0\ns_cbranch_scc1 L_xch_go")
    if o["slpx"]:
        a(f"s_sleep {o['slpx']}")
    a("s_branch L_xch_poll\nL_xch_go:")
    for t in range(6):
        nu, dl = divmod(t, 3)
        b, p = gc.V_ACC + 4*t, PF + 4*t
        if o["xbf"]:
            for h in range(2):
                k, m = divmod(2*t + h, 3)
                unpk(a, 26+2*h, RX+4*k+m)
            for h in range(2): a(f"v_pk_add_f32 {vr(b+2*h,2)}, {vr(b+2*h,2)}, {vr(26+2*h,2)}")
        else:
            for e in range(4):
                k, m = divmod(4*t + e, 3)
                a(f"v_add_f32 v{b+e}, v{b+e}, v{RX+4*k+m}")
        if o['rnd2']:
            for h in range(2): a(f"v_cvt_pk_bf16_f32 v{26+h}, v{b+2*h}, v{b+2*h+1}")
            for h in range(2): unpk(a, b+2*h, 26+h)
            for h in range(2): a(f"v_pk_add_f32 {vr(b+2*h,2)}, {vr(b+2*h,2)}, {vr(22+2*nu,2)} op_sel_hi:[1,0]")
            for h in range(2): a(f"v_cvt_pk_bf16_f32 v{26+h}, v{b+2*h}, v{b+2*h+1}")
            for h in range(2): unpk(a, b+2*h, 26+h)
            for h in range(2): a(f"v_pk_add_f32 {vr(b+2*h,2)}, {vr(b+2*h,2)}, {vr(p+2*h,2)}")
        for h in range(2): a(f"v_cvt_pk_bf16_f32 v{10+2*t+h}, v{b+2*h}, v{b+2*h+1}")
        a(f"buffer_store_dwordx2 {vr(10+2*t,2)}, v58, s[44:47], s{56+nu} offen offset:{32*dl}{o['ont']}")
    a("s_endpgm")
    a("L_m_conv1:\ns_mov_b32 s30, 1\ns_sub_u32 s31, s2, 72\ns_lshl_b32 s31, s31, 2\ns_add_u32 s31, s31, s20")
    cv.param_loads(a, 80, 88, 90)
    a("s_branch L_m_conv2\nL_m_conv:\ns_mov_b32 s30, 3\nL_m_conv2:")
    a("s_mul_i32 s29, s31, 683\ns_lshr_b32 s29, s29, 16")
    assert o["split_xn"] and o["b_first"]

    def signal(a):
        a("s_lshl_b32 s36, s29, 8")
        a(f"s_add_u32 s36, s36, {F_CONV}\nv_mov_b32 v4, 1\nv_mov_b32 v5, 0\ns_mov_b64 exec, 1\nbuffer_atomic_add v4, v5, s[8:11], s36 offen sc1")
    flags_srd(a, 8)
    cv.conv_role(a, "cv", S_WS, lambda a, t: wait_ln(a, "cvln" + t, 8, o, F_XNW if o["split_xn"] else F_LNW), signal)
    a("s_endpgm")


def fifth_wave(a, o):
    if o["prio"]:
        a(f"s_setprio {o['prio']}")
    a(f"s_load_dwordx2 s[48:49], s[0:1], {KA['out']}\ns_load_dwordx8 s[80:87], s[0:1], {KA['lar']}\ns_load_dwordx4 s[52:55], s[0:1], {KA['ldt']}")
    a(f"s_load_dwordx2 s[56:57], s[0:1], {KA['b1']}\ns_load_dwordx2 s[58:59], s[0:1], {KA['b2']}")
    a("s_waitcnt lgkmcnt(0)")
    flags_srd(a, 36)
    read_tag(a)
    if o["tlb"] >= 4:
        srd(a, 8, S_WS, WS_G); srd(a, 16, S_W1, 5 << 20)
        a("v_lshlrev_b32 v4, 21, v1\nbuffer_load_dword v100, v4, s[8:11], 0 offen sc1\nbuffer_load_dword v104, v4, s[16:19], 0 offen")
        srd(a, 8, 56, 4)
        a("buffer_load_dword v105, v4, s[8:11], 0 offen")
    elif o["tlb"]:
        srd(a, 8, S_WS, WS_END); srd(a, 16, S_W2, W_BYTES_TOTAL)
        a("v_lshlrev_b32 v4, 20, v1\nbuffer_load_dword v100, v4, s[8:11], 0 offen sc1\nbuffer_load_dword v101, v4, s[16:19], 0 offen")
        srd(a, 8, 48, X_BYTES); srd(a, 16, S_W1, W_BYTES_TOTAL)
        a("buffer_load_dword v102, v4, s[8:11], 0 offen")
        if o["tlb"] >= 2:
            a("buffer_load_dword v104, v4, s[16:19], 0 offen")
            small = [80, 82, 84, 86, 52, 54, 56, 58]
            for k, p in enumerate(small):
                if o["tlb"] == 3:
                    a(f"s_bfe_u32 s23, s2, 0x30003\ns_cmp_lg_u32 s23, {k}\ns_cbranch_scc1 L_m_tl{k}")
                if k < 6 or not o["bias_pf"]:
                    srd(a, 8, p, 4)
                    a(f"buffer_load_dword v{105+k}, v4, s[8:11], 0 offen")
                else:
                    srd(a, 8, p, F*2 if k == 6 else S*2)
                    a(f"v_lshlrev_b32 v5, 7, v1\nbuffer_load_dword v{105+k}, v5, s[8:11], 0 offen")
                    if k == 6:
                        a("s_mov_b32 s23, 8192\nbuffer_load_dword v113, v5, s[8:11], s23 offen")
                a(f"L_m_tl{k}:")
    if o["touch"]:
        todo = [F_LNW + k*64*o["lnw"] for k in range(4 if o["ln_lines"] else 1)] + [F_XNW] + ([F_REL] if o["agg"] else [])
        for k, off in enumerate(todo):
            a(f"s_cmp_lg_u32 s2, {5*k if k < 2 else 4+k}\ns_cbranch_scc1 L_m_nt{k}\nv_mul_u32_u24 v5, {o['lnw']}, v1\ns_mov_b32 s23, {off}\nbuffer_load_dword v103, v5, s[36:39], s23 offen\nL_m_nt{k}:")
    if o["touch_g"]:
        a(f"s_sub_u32 s23, s2, 1\ns_cmp_ge_u32 s23, 4\ns_cbranch_scc1 L_m_notouch2\nv_lshlrev_b32 v5, 8, v1\ns_lshl_b32 s23, s23, 14\ns_add_u32 s23, s23, {F_GW}")
        a("buffer_load_dword v103, v5, s[36:39], s23 offen\nL_m_notouch2:")
    srd(a, gc.SRD_W, S_W1, W_BYTES_TOTAL)
    if o["early_bar"]:
        a("s_barrier")
    a("s_lshr_b32 s30, s2, 3")
    if o["code_pf"]:
        a("s_getpc_b64 s[12:13]\nL_m_pc:\ns_sub_u32 s12, s12, L_m_pc-L_m_base\ns_subb_u32 s13, s13, 0")
        a("s_mov_b32 s14, L_m_last-L_m_base\ns_mov_b32 s15, 0x20000\nv_lshlrev_b32 v4, 4, v1\ns_lshl_b32 s23, s30, 10")
        for k in range(o["code_n"]):
            a("buffer_load_dwordx4 v[96:99], v4, s[12:15], s23 offen\ns_add_u32 s23, s23, 32768")
    w1_stream(a, "m0", gc.SRD_W, 30, 32, o["r0"], o["r1"], o["win1"])
    if o["extra23"]:
        a("s_and_b32 s23, s2, 6\ns_cmp_lg_u32 s23, 2\ns_cbranch_scc1 L_m_nox23")
        w1_stream(a, "m23", gc.SRD_W, 30, 32, 2048 - o["extra23"], 2048, o["win1"])
        a("L_m_nox23:")
    a("s_waitcnt lgkmcnt(0)")
    make_tag(a)
    if not o["early_bar"]:
        a("s_barrier")
    a("; STAMP 0\ns_cmp_ge_u32 s2, 216\ns_cbranch_scc1 L_m_helper")
    tile1(a)
    gc.lane_ids(a)
    a(f"s_mul_i32 s{gc.S_ACT0}, s15, 12288\ns_lshl_b32 s{gc.S_W0}, s14, 8")
    gc.loader_setup(a, 0, 9216, "A")
    srd_off(a, gc.SRD_ACT, S_WS, WS_HT, HT_BYTES)
    a("s_lshr_b32 s60, s2, 3\ns_mul_i32 s60, s60, 10923\ns_lshr_b32 s60, s60, 16")
    ln_local_wait(a, "lw1")
    a("; STAMP 0")
    gc.w_prefill(a, range(4), 0, 9216)
    a("; STAMP 1")
    if o["agg"]:
        a(f"s_and_b32 s23, s2, 7\ns_lshl_b32 s23, s23, 8\ns_add_u32 s23, s23, {F_REL}\ns_cmp_ge_u32 s2, 8\ns_cbranch_scc1 L_m_follow")
        wait_ln(a, "l1", 36, dict(o, slp=o["slpa"]))
        a(f"v_mov_b32 v4, s{S_TAG+1}\nv_mov_b32 v5, 0\ns_mov_b64 exec, 1\nbuffer_store_dword v4, v5, s[36:39], s23 offen sc1\ns_mov_b64 exec, -1\ns_branch L_l1f_go\nL_m_follow:\nv_mov_b32 v61, 0")
        poll(a, "l1f", 36, 61, "s23", f"s{S_TAG+1}", sleep=o["slp"])
    else:
        wait_ln(a, "l1", 36, o)
    a(f"; STAMP 2\ns_cmp_lg_u32 s2, 0\ns_cbranch_scc1 L_m_noseed\nv_mov_b32 v4, s{S_TAG+1}\nv_mov_b32 v5, {F_SEED}\ns_mov_b64 exec, 1")
    a("buffer_store_dword v4, v5, s[36:39], 0 offen sc1\ns_mov_b64 exec, -1\nL_m_noseed:")
    gc.loader_after_prefill(a, 32*o["rep1"], 0, 9216, "g1", o["aflags"], tail=lambda a: None, wrap=(2048*9216, 32*73728) if o["rep1"] == 2 else None,
                            s_group=60 if o["lead1"] else None)
    srd(a, gc.SRD_W, S_W2, W_BYTES_TOTAL)
    a("s_cmp_lt_u32 s2, 192\ns_cbranch_scc1 L_m_l2")
    a("s_waitcnt vmcnt(28)\ns_barrier\ns_waitcnt vmcnt(0)\ns_barrier\ns_barrier\ns_sub_u32 s30, s2, 152\ns_lshr_b32 s30, s30, 3")
    ln_local_wait(a, "lw3", CNT_LDS+8)
    if o["x_pf"] == "early":
        srd(a, 8, S_X, X_BYTES); a("s_sub_u32 s31, s30, 5\ns_mul_i32 s31, s31, 3")
        for k in range(3):
            if k == 2:
                a("s_cmp_eq_u32 s31, 8\ns_cbranch_scc1 L_m_nox")
            x_stream(a, f"xe{k}", 8, 31)
            a("s_add_u32 s31, s31, 1")
        a("L_m_nox:")
    g_pause(a, "gp3", o)
    w2_stream(a, "m3", gc.SRD_W, 30, 8, o["r2"] + 96*o["nC"], 2304, o["win3"])
    if o["x_pf"] is True:
        srd(a, 8, S_X, X_BYTES); x_stream(a, "x3", 8, 30)
    a("s_endpgm\nL_m_l2:")
    tile2(a)
    a(f"s_mul_i32 s57, s15, 12288\ns_mul_i32 s18, s19, {36*73728}\ns_add_u32 s57, s57, s18")
    a(f"s_lshl_b32 s56, s14, 8\ns_mul_i32 s18, s19, {HALF2}\ns_add_u32 s56, s56, s18\ns_mov_b32 s54, -1\ns_mov_b32 s55, -1")
    jump = block_jump if o["rot"] else None
    if o["rot"]:
        a.extend(block_jump("w") + block_jump("a"))
    else:
        a(f"s_mov_b32 s{gc.S_W0}, s56\ns_mov_b32 s{gc.S_ACT0}, s57")
    gc.loader_setup(a, 0, 4096, "B")
    srd_off(a, gc.SRD_ACT, S_WS, WS_G, G_BYTES)
    e2 = o["early2"]
    for j, vm in enumerate((28, 0, None)):
        if j < e2:
            gc.w_prefill(a, [j], 0, 4096, jump)
        if vm is not None:
            a(f"s_waitcnt vmcnt({vm + 16*min(j+1, e2)})")
        a("s_barrier")
    a("; STAMP 5")
    gc.w_prefill(a, range(min(e2, 3), 4), 0, 4096, jump)
    a("v_mov_b32 v61, 0\n; STAMP 3")

    def wait_slot(a):
        a(f"s_mul_i32 s23, s15, 36\ns_mul_i32 s24, s19, 18\ns_add_u32 s23, s23, s24\ns_lshl_b32 s23, s23, 8\ns_add_u32 s23, s23, {F_GW}")
        a("v_and_b32 v60, 3, v1\nv_add_u32 v60, s13, v60\nv_lshlrev_b32 v60, 8, v60")
        poll(a, "l2a", 36, 60, "s23", f"s{S_TAG+1}")
        a("; STAMP 4\nv_min_u32 v60, 17, v1\nv_lshlrev_b32 v60, 8, v60\ns_mov_b32 s53, s23")

    def wait_half(a):
        poll(a, "l2b", 36, 60, "s53", f"s{S_TAG+1}", sleep=o["slpg"])

    def at_dma(a):
        for e in range(12):
            a(f"s_mov_b32 m0, {AT_LDS + 1024*e}\nbuffer_load_dwordx4 v8, s[48:51], s26 offen sc1 lds\ns_add_u32 s26, s26, 32768")

    def at_early(a):
        srd_off(a, 48, S_WS, WS_AT, AT_BYTES)
        a(f"s_lshl_b32 s23, s15, 8\ns_add_u32 s23, s23, {F_CONV}\nbuffer_load_dword v62, v61, s[36:39], s23 offen sc1")
        a("v_lshrrev_b32 v8, 3, v1\nv_lshlrev_b32 v8, 12, v8\nv_and_b32 v9, 7, v1\nv_lshl_add_u32 v8, v9, 4, v8")
        a(f"s_mul_i32 s26, s15, {96*4096}\ns_lshl_b32 s27, s16, 1\ns_add_u32 s26, s26, s27")
        a("s_cmp_eq_u32 s15, 5\ns_cselect_b32 s24, 96, 32\ns_waitcnt vmcnt(0)\nv_readfirstlane_b32 s27, v62")
        a("s_cmp_lg_u32 s27, s24\ns_cbranch_scc1 L_at_skip")
        at_dma(a)
        a("L_at_skip:")
    if o["rot"]:
        gc.loader_after_prefill(a, 36, 0, 4096, "g2", o["aflags"], before_last=at_early, jump=block_jump, wait2=wait_slot, wait8=wait_half)
    else:
        ln_local_wait(a, "lw4", CNT_LDS+8)
        a(f"s_mul_i32 s53, s15, 36\ns_mul_i32 s24, s19, 18\ns_add_u32 s53, s53, s24\ns_lshl_b32 s53, s53, 8\ns_add_u32 s53, s53, {F_GW}")
        a("v_min_u32 v60, 17, v1\nv_lshlrev_b32 v60, 8, v60")
        wait_half(a)
        a("; STAMP 4")
        gc.loader_after_prefill(a, 36*o["rep2"], 0, 4096, "g2", o["aflags"], before_last=at_early, wrap=(HALF2, 36*73728) if o["rep2"] == 2 else None,
                                s_group=60 if o["lead2"] else None)
    a("s_cmp_eq_u32 s27, s24\ns_cbranch_scc1 L_at_done")
    poll(a, "at", 36, 61, "s23", "s24")
    at_dma(a)
    a("L_at_done:\ns_waitcnt vmcnt(0)\ns_barrier\ns_endpgm")
    a("L_m_helper:\ns_sub_u32 s30, s2, 216\ns_lshr_b32 s30, s30, 3")
    ln_local_wait(a, "lw2", CNT_LDS + (12 if o["split_xn"] and not o["h_early"] else 4))
    if o["tlb"] >= 4:
        M2 = 2 << 20
        items = [(S_W1, k*M2) for k in range(3, 9)] + [(S_W1, W_BYTES_TOTAL - 4)] + [(p, 0) for p in (80, 82, 84, 86, 52, 54)]
        items += [(S_WS, k*M2) for k in range(WS_G//M2 + 1, (WS_END - 1)//M2 + 1)] + [(S_W2, k*M2) for k in range(9)] + [(S_W2, W_BYTES_TOTAL - 4)]
        items += [(48, 0), (48, X_BYTES - 4), (58, 0)]
        for h in range(5):
            a(f"s_cmp_lg_u32 s30, {h}\ns_cbranch_scc1 L_m_st{h}")
            for k, (p, off) in enumerate(items[h::5]):
                a(f"s_add_u32 s8, s{p}, {off:#x}\ns_addc_u32 s9, s{p+1}, 0\ns_load_dword s{12+k}, s[8:9], 0")
            a(f"L_m_st{h}:")
    if o["b1_late"]:
        srd(a, 8, 56, F*2); srd(a, 12, 58, S*2)
        a("v_lshlrev_b32 v5, 7, v1\ns_mov_b32 s23, 8192\nbuffer_load_dword v105, v5, s[8:11], 0 offen\nbuffer_load_dword v106, v5, s[8:11], s23 offen\nbuffer_load_dword v107, v5, s[12:15], 0 offen")
    w1_stream(a, "m1", gc.SRD_W, 30, 5, o["r1"] + 108*o["nB"]//5*4, 2048, o["win2"], short23=o["extra23"])
    a("; STAMP 1")
    srd(a, gc.SRD_W, S_W2, W_BYTES_TOTAL)
    if o["rot"]:
        w2_head(a, "mh", gc.SRD_W, 30, 5, o["win2"])
    w2_stream(a, "m2", gc.SRD_W, 30, 5, 512 if o["rot"] else o["r20"], o["r2"], o["win2"])
    a("; STAMP 2")
    g_pause(a, "gp4", o)
    w2_stream(a, "m4", gc.SRD_W, 30, 8, o["r2"] + 96*o["nC"], 2304, o["win3"])
    if o["x_pf"] is True:
        srd(a, 8, S_X, X_BYTES); x_stream(a, "x4", 8, 30)


def mega(a, name, **opt):
    o = dict(code_n=2, unc=False, unl=False, lead1=False, lead2=False, b_first=True, h_early=True, agg=False, slpa=0, split_xn=True, slpg=1, slpx=0, lead=7, dry=False, b1_late=False, lnx=' nt', bias_pf=False, touch_g=True, xwait=True, early_bar=False, extra23=0, r0=0, r20=0, rep1=1, rep2=1, uflags='', rot=False, x_pf=True, ln_lines=False, x_late='tail', late_sig=False, pause=0, xbf=True, rnd1=0, rnd2=0, prio=0, lnw=256, slp=4, touch=True, tlb=4, early2=3, xnt='', ont='', prefill_late=True, r1=384, nB=2, r2=400, nC=0, win1=20, win2=56, win3=56, aflags=" sc1", code_pf=9)
    o.update(opt)
    prefetch.ROT = o["rot"]
    cv.UFLAGS = o["uflags"]
    gc.LEAD = o["lead"]
    gc.UNROLL_C, gc.UNROLL_L = o["unc"], o["unl"]
    a(f".globl {name}\n.p2align 8\n.type {name},@function\n{name}:\nL_m_base:")
    a("s_cmp_ge_u32 s2, 256\ns_cbranch_scc1 L_m_end")
    a(f"s_load_dwordx2 s[{S_X}:{S_X+1}], s[0:1], {KA['x']}\ns_load_dwordx2 s[{S_WS}:{S_WS+1}], s[0:1], {KA['ws']}")
    a(f"s_load_dwordx2 s[{S_W1}:{S_W1+1}], s[0:1], {KA['w1']}\ns_load_dwordx2 s[{S_W2}:{S_W2+1}], s[0:1], {KA['w2']}")
    a("v_lshrrev_b32 v1, 6, v0\nv_readfirstlane_b32 s20, v1\nv_and_b32 v1, 63, v0")
    a("s_cmp_eq_u32 s20, 4\ns_cbranch_scc1 L_m_w4")
    compute_waves(a, o)
    a("L_m_w4:")
    fifth_wave(a, o)
    a("L_m_end:\ns_endpgm\nL_m_last:")


def warm_kernel(a, name, rows, w2rows, main, window=63):
    a(f".globl {name}\n.p2align 8\n.type {name},@function\n{name}:")
    a("s_cmp_ge_u32 s2, 256\ns_cbranch_scc1 L_pre_end")
    if rows >= 0:
        a(f"s_load_dwordx2 s[4:5], s[0:1], {KA['ws']}\ns_load_dwordx2 s[6:7], s[0:1], {KA['x']}\ns_load_dwordx2 s[20:21], s[0:1], {KA['w1']}")
        a(f"s_load_dwordx2 s[22:23], s[0:1], {KA['w2']}\ns_load_dwordx2 s[24:25], s[0:1], {KA['out']}")
        a("v_and_b32 v1, 63, v0\ns_lshr_b32 s30, s2, 3\nv_lshlrev_b32 v4, 20, v1\ns_waitcnt lgkmcnt(0)")
        srd(a, 8, 4, WS_FLG + FLG_BYTES); srd(a, 12, 6, X_BYTES); srd(a, 16, 22, W_BYTES_TOTAL); srd(a, 32, 20, W_BYTES_TOTAL); srd(a, 48, 24, X_BYTES)
        for k, rs in enumerate((8, 12, 16, 48)):
            a(f"buffer_load_dword v{100+k}, v4, s[{rs}:{rs+3}], 0 offen sc1")
        a(f"s_getpc_b64 s[12:13]\nL_pre_pc:\ns_sub_u32 s12, s12, L_pre_pc-L_m_base\ns_subb_u32 s13, s13, 0")
        a("s_mov_b32 s14, L_m_last-L_m_base\ns_mov_b32 s15, 0x20000\nv_lshlrev_b32 v4, 4, v1\ns_lshl_b32 s23, s30, 10")
        for k in range(o["code_n"]):
            a("buffer_load_dwordx4 v[96:99], v4, s[12:15], s23 offen\ns_add_u32 s23, s23, 32768")
        w1_stream(a, "pre", 32, 30, 32, 0, rows, window)
        w2_stream(a, "pre", 16, 30, 32, 0, w2rows, window)
    a("L_pre_end:\ns_endpgm")
```

```python
from asmlib import *

SLOT = 28672
W_BYTES = 16384
NSLOT = 4
LDS_RING = SLOT * NSLOT

V_ACC = 64
V_SET = (112, 140)
V_DW = 40
V_DA = 44
V_RW = 48
V_RA = 56

S_WAVE = 20
S_ACT0 = 21
S_W0 = 22
S_CNT = 25
SRD_ACT = 28
SRD_W = 32
SCHED = 0
UNROLL_C = False
UNROLL_L = False
LEAD = 3


def acc(nu, dl):
    return V_ACC + 4 * (nu * 3 + dl)


def wfrag(s, nu):
    return V_SET[s] + 4 * nu


def afrag(s, dl):
    return V_SET[s] + 16 + 4 * dl


def lane_ids(a):
    a("v_and_b32 v1, 63, v0\nv_and_b32 v2, 15, v1\nv_lshrrev_b32 v3, 4, v1\nv_lshlrev_b32 v7, 4, v1")


def loader_setup(a, dt_stride, w_stride, kmap):
    a(f"v_mul_u32_u24 v4, {w_stride}, v3\nv_lshlrev_b32 v5, 1, v3\nv_xor_b32 v5, v5, v2")
    a("v_lshl_add_u32 v6, v5, 4, v4\nv_xor_b32 v5, 8, v5\nv_lshl_add_u32 v8, v5, 4, v4")
    for e in range(4):
        hi = (e >> 1) & 1 if kmap == "A" else e & 1
        a(f"v_add_u32 v{V_DW+e}, {e*(4*w_stride - 1024)}, v{8 if hi else 6}")
    if dt_stride:
        for e in range(4):
            a(f"v_add_u32 v{V_DA+e}, {(e >> 1)*(dt_stride - 2048)}, v7")


def compute_setup(a, kmap, s_kh=None):
    a("v_bfe_u32 v4, v1, 2, 2")
    if kmap == "A":
        a("v_lshl_add_u32 v5, v3, 3, v4\nv_and_b32 v6, 1, v3\nv_lshl_add_u32 v6, v6, 2, v4")
    else:
        a("v_lshl_add_u32 v5, v3, 2, v4\nv_and_b32 v6, 7, v5")
    a("v_lshlrev_b32 v5, 8, v5\nv_and_b32 v8, 3, v1\nv_lshl_add_u32 v5, v8, 3, v5")
    if s_kh is None:
        a(f"s_lshr_b32 s26, s{S_WAVE}, 1\ns_lshl_b32 s26, s26, 2")
    else:
        a(f"s_and_b32 s26, s{S_WAVE}, 2\ns_lshl_b32 s27, s{s_kh}, 2\ns_add_u32 s26, s26, s27")
    for nu in range(4):
        if s_kh is None:
            a(f"s_add_u32 s27, s26, {nu}")
        else:
            a(f"s_add_u32 s27, s26, {nu & 1}\ns_xor_b32 s27, s27, {4*(nu >> 1)}")
        a(f"v_xor_b32 v8, s27, v6\nv_lshl_add_u32 v{V_RW+nu}, v8, 5, v5\nv_add_u32 v{V_RW+4+nu}, {2*SLOT}, v{V_RW+nu}")
    a(f"s_and_b32 s26, s{S_WAVE}, 1\ns_mul_i32 s26, s26, 6144\ns_add_u32 s26, s26, {W_BYTES}")
    a(f"v_add_u32 v{V_RA}, s26, v7\nv_add_u32 v{V_RA+1}, {2*SLOT}, v{V_RA}")


def dma_groups(slot, dt_stride, w_stride, aflags="", wflags="", jump=None):
    out = []
    for kind, E in (("a", 0), ("w", 0), ("w", 1), ("a", 1), ("w", 2), ("a", 2), ("w", 3)):
        if kind == "w":
            g = [f"s_mov_b32 m0, {slot*SLOT + 4096*E}"]
            g += [f"buffer_load_dwordx4 v{V_DW+e}, s[{SRD_W}:{SRD_W+3}], s{S_W0} offen offset:{1024*e}{wflags} lds" for e in range(4)]
            g += [f"s_add_u32 s{S_W0}, s{S_W0}, {16*w_stride}"]
        elif not dt_stride:
            g = [f"s_mov_b32 m0, {slot*SLOT + W_BYTES + 4096*E}"]
            g += [f"buffer_load_dwordx4 v7, s[{SRD_ACT}:{SRD_ACT+3}], s{S_ACT0} offen offset:{1024*e}{aflags} lds" for e in range(4)]
            g += [f"s_add_u32 s{S_ACT0}, s{S_ACT0}, {4096 if E < 2 else 36*2048 - 8192}"]
        else:
            g = [f"s_mov_b32 m0, {slot*SLOT + W_BYTES + 4096*E}"]
            g += [f"buffer_load_dwordx4 v{V_DA+e}, s[{SRD_ACT}:{SRD_ACT+3}], s{S_ACT0} offen offset:{1024*e}{aflags} lds" for e in range(4)]
            g += [f"s_add_u32 s{S_ACT0}, s{S_ACT0}, {2*dt_stride}" if E < 2 else f"s_sub_u32 s{S_ACT0}, s{S_ACT0}, {4*dt_stride - 2048}"]
        if jump and slot % 2 == 1 and E == (3 if kind == "w" else 2):
            g = g[:-1] + jump(kind)
        out.append(g)
    return out


def loader_main(a, nstages, dt_stride, w_stride, tag, aflags="", wflags="", before_last=None, tail=None):
    assert nstages % 4 == 0
    G = lambda j: dma_groups(j % NSLOT, dt_stride, w_stride, aflags, wflags)
    flat = lambda gs: [x for g in gs for x in g]
    vm = 28 + 4*LEAD
    a.extend(flat(G(0)) + flat(G(1)[:LEAD]))
    a(f"s_waitcnt vmcnt({4*LEAD})\ns_barrier")
    a.extend(flat(G(1)[LEAD:]) + flat(G(2)) + flat(G(3)[:LEAD]))
    a(f"s_waitcnt vmcnt({vm})\ns_barrier")
    a.extend(flat(G(3)[LEAD:]))
    a(f"s_mov_b32 s{S_CNT}, {nstages//4 - 1}\nL_{tag}_lloop:")
    for slot in range(4):
        if s_group is not None:
            assert LEAD == 7
            W = [x for g in G(slot) if f"s[{SRD_W}:" in g[1] for x in g]
            a(f"s_cmp_eq_u32 s{s_group}, {slot}\ns_cbranch_scc1 L_{tag}_lead{slot}")
            a.extend(W + A(slot))
            a(f"s_branch L_{tag}_join{slot}\nL_{tag}_lead{slot}:")
            a.extend(A(slot) + W)
            a(f"L_{tag}_join{slot}:\ns_waitcnt vmcnt({vm})\ns_barrier")
            continue
        a.extend(flat(G(slot)[:LEAD]))
        a(f"s_waitcnt vmcnt({vm})\ns_barrier")
        a.extend(flat(G(slot)[LEAD:]))
    a(f"s_sub_u32 s{S_CNT}, s{S_CNT}, 1\ns_cmp_lg_u32 s{S_CNT}, 0\ns_cbranch_scc1 L_{tag}_lloop")
    if tail:
        tail(a)
        return
    a("s_waitcnt vmcnt(28)\ns_barrier")
    if before_last:
        before_last(a)
    else:
        a("s_waitcnt vmcnt(0)")
    a("s_barrier")


def reads(s, slot, ks, kmap):
    win, so = slot >> 1, (slot & 1) * SLOT
    hoff = 4 * 256 if kmap == "A" else 16 * 256
    ra = lambda dl: f"ds_read_b128 {vr(afrag(s, dl), 4)}, v{V_RA+win} offset:{so + (2*dl + ks)*1024}"
    rw = lambda nu, h: f"ds_read_b64_tr_b16 {vr(wfrag(s, nu)+2*h, 2)}, v{V_RW+4*win+nu} offset:{so + ks*8192 + h*hoff}"
    return [ra(0), rw(0, 0), rw(0, 1), ra(1), ra(2), rw(1, 0), rw(1, 1), rw(2, 0), rw(2, 1), rw(3, 0), rw(3, 1)]


def mfmas(s, swap):
    out = []
    for nu in range(4):
        for dl in (range(3) if nu % 2 == 0 else range(2, -1, -1)):
            w, x = vr(wfrag(s, nu), 4), vr(afrag(s, dl), 4)
            p, q = (x, w) if swap else (w, x)
            out.append(f"v_mfma_f32_16x16x32_bf16 {vr(acc(nu, dl), 4)}, {p}, {q}, {vr(acc(nu, dl), 4)}")
    return out


def stage(a, slot, kmap, swap, last, last_barrier=False, pre_barrier=None):
    m = mfmas(0, swap)
    rd = reads(1, slot, 1, kmap)
    gaps = [[] for _ in range(12)]
    a("s_waitcnt lgkmcnt(6)")
    if SCHED == 0:
        gaps[0] = [rd[0], rd[1]]
        gaps[1] = [rd[2], rd[3]]
        gaps[2] = ["s_waitcnt lgkmcnt(8)", rd[4]]
        gaps[3] = [rd[5], rd[6]]
        gaps[4] = [rd[7], rd[8]]
        gaps[5] = ["s_waitcnt lgkmcnt(9)", rd[9]]
        gaps[6] = [rd[10]]
    elif SCHED == 1:
        a.lines[-1] = "  s_waitcnt lgkmcnt(0)"
        for g, items in enumerate(([0, 1], [2], [3], [4], [5, 6], [7], [8], [9], [10])):
            gaps[g] = [rd[i] for i in items]
    elif SCHED == 2:
        a.lines[-1] = "  s_waitcnt lgkmcnt(0)"
        for g in range(5):
            gaps[g] = [rd[2*g], rd[2*g+1]]
        gaps[5] = [rd[10]]
    elif SCHED == 3:
        gaps[0] = [rd[0]]
        gaps[1] = [rd[1], rd[2]]
        gaps[2] = ["s_waitcnt lgkmcnt(3)", rd[3]]
        for g, items in enumerate(([4], [5, 6], [7], [8], [9], [10])):
            gaps[3+g] = [rd[i] for i in items]
    gaps[11] = ["s_waitcnt lgkmcnt(0)"]
    a.extend(interleave(m, gaps))
    if pre_barrier:
        pre_barrier(a)
    if not last or last_barrier:
        a("s_barrier")
    m = mfmas(1, swap)
    gaps = [[] for _ in range(12)]
    if not last:
        rd = reads(0, (slot + 1) % NSLOT, 0, kmap)
        if SCHED in (0, 2):
            for g in range(5):
                gaps[g] = [rd[2*g], rd[2*g+1]]
            gaps[5] = [rd[10]]
        else:
            for g, items in enumerate(([0, 1], [2], [3], [4], [5, 6], [7], [8], [9], [10])):
                gaps[g] = [rd[i] for i in items]
    a.extend(interleave(m, gaps))


def compute_main(a, nstages, kmap, swap, tag, hook=None, last_barrier=False, st=(0, 1), first_stage1=None, tail_hook=None, split_tail=None):
    a(f"; STAMP {st[0]}\ns_waitcnt lgkmcnt(0)\ns_barrier\n; CYC 0\n; SWAIT")
    a.extend(reads(0, 0, 0, kmap))
    a(f"s_mov_b32 s{S_CNT}, {nstages//4 - 1}")
    a(f".p2align 6\nL_{tag}_loop:")
    if hook:
        hook(a)
    a("; ITER")

    def once(a):
        a(f"s_cmp_lg_u32 s{S_CNT}, {nstages//4 - 1}\ns_cbranch_scc1 L_{tag}_once")
        first_stage1(a)
        a(f"L_{tag}_once:")
    for rep in range(nstages//4 - 1 if UNROLL_C else 1):
        for slot in range(4):
            stage(a, slot, kmap, swap, False, pre_barrier=once if (first_stage1 and slot == 1) else None)
    if not UNROLL_C:
        a(f"s_sub_u32 s{S_CNT}, s{S_CNT}, 1\ns_cmp_lg_u32 s{S_CNT}, 0\ns_cbranch_scc1 L_{tag}_loop")
    if split_tail:
        for slot in range(2):
            stage(a, slot, kmap, swap, False)
        n0 = len(a.lines)
        stage(a, 2, kmap, swap, False, pre_barrier=tail_hook)
        cut = max(i for i in range(n0, len(a.lines)) if a.lines[i].strip() == "s_barrier")
        del a.lines[cut+1:]
        global V_SET
        V_SET = V_SET[:2] + (220,)
        rd = reads(0, 3, 0, kmap) + reads(2, 3, 1, kmap)
        order = lambda r: [r[0], r[3], r[4], r[7], r[8], r[9], r[10], r[1], r[2], r[5], r[6]]
        rd = order(rd[:11]) + order(rd[11:])
        hi = lambda s: mfmas(s, swap)[6:]
        lo = lambda s: mfmas(s, swap)[:6]
        gaps = [[rd[2*g], rd[2*g+1]] for g in range(6)]
        gaps[5] += ["s_waitcnt lgkmcnt(5)"]
        a.extend(interleave(hi(1), gaps))
        gaps = [[rd[12+2*g], rd[13+2*g]] for g in range(5)] + [["s_waitcnt lgkmcnt(4)"]]
        a.extend(interleave(hi(0), gaps))
        a.extend(hi(2) + lo(1)[:3])
        split_tail(a)
        a("s_waitcnt lgkmcnt(0)")
        a.extend(lo(1)[3:] + lo(0) + lo(2))
        V_SET = V_SET[:2]
    for slot in range(4 if not split_tail else 0):
        stage(a, slot, kmap, swap, slot == 3, last_barrier, pre_barrier=tail_hook if slot == 2 else None)
    a("; CYC 1")


def w_prefill(a, stages, dt_stride, w_stride, jump=None):
    for j in stages:
        for g in dma_groups(j, dt_stride, w_stride, jump=jump):
            if f"s[{SRD_W}:" in g[1]:
                a.extend(g)


def loader_after_prefill(a, nstages, dt_stride, w_stride, tag, aflags, before_last=None, tail=None, jump=None, wait2=None, wait8=None, wrap=None, s_group=None):
    G = lambda j: dma_groups(j % NSLOT, dt_stride, w_stride, aflags, jump=jump)
    A = lambda j: [x for g in G(j) if f"s[{SRD_ACT}:" in g[1] for x in g]
    flat = lambda gs: [x for g in gs for x in g]
    vm = 28 + 4*LEAD
    if not wait2:
        a.extend(A(0) + A(1))
        a("s_waitcnt vmcnt(12)\ns_barrier")
    if wait2:
        a.extend(jump("a"))
        a("s_waitcnt vmcnt(32)\ns_barrier\ns_barrier")
        wait2(a)
        a.extend(A(2) + A(3))
        a("s_waitcnt vmcnt(12)")
    else:
        a.extend(A(2) + A(3))
        a("s_waitcnt vmcnt(12)\ns_barrier")
    a(f"s_mov_b32 s{S_CNT}, {nstages//4 - 1}\nL_{tag}_lloop:")
    if wrap:
        a(f"s_cmp_lg_u32 s{S_CNT}, {nstages//8}\ns_cbranch_scc1 L_{tag}_nowrap\ns_sub_u32 s{S_W0}, s{S_W0}, {wrap[0]}\ns_sub_u32 s{S_ACT0}, s{S_ACT0}, {wrap[1]}\nL_{tag}_nowrap:")
    if wait8:
        a(f"s_cmp_lg_u32 s{S_CNT}, {nstages//4 - 2}\ns_cbranch_scc1 L_{tag}_no8")
        wait8(a)
        a(f"L_{tag}_no8:")
    for slot in list(range(4)) * (nstages//4 - 1 if UNROLL_L else 1):
        if s_group is not None:
            assert LEAD == 7
            W = [x for g in G(slot) if f"s[{SRD_W}:" in g[1] for x in g]
            a(f"s_cmp_eq_u32 s{s_group}, {slot}\ns_cbranch_scc1 L_{tag}_lead{slot}")
            a.extend(W + A(slot))
            a(f"s_branch L_{tag}_join{slot}\nL_{tag}_lead{slot}:")
            a.extend(A(slot) + W)
            a(f"L_{tag}_join{slot}:\ns_waitcnt vmcnt({vm})\ns_barrier")
            continue
        a.extend(flat(G(slot)[:LEAD]))
        a(f"s_waitcnt vmcnt({vm})\ns_barrier")
        a.extend(flat(G(slot)[LEAD:]))
    if not UNROLL_L:
        a(f"s_sub_u32 s{S_CNT}, s{S_CNT}, 1\ns_cmp_lg_u32 s{S_CNT}, 0\ns_cbranch_scc1 L_{tag}_lloop")
    if tail:
        tail(a)
        return
    a("s_waitcnt vmcnt(28)\ns_barrier")
    if before_last:
        before_last(a)
    else:
        a("s_waitcnt vmcnt(0)")
    a("s_barrier")
```

```python
import struct
from asmlib import *
from layout import *
import gemm_core as gc
import mega_ln as ln
import mega_conv as cv
from prefetch import *
import prefetch

AT_LDS = gc.LDS_RING
LN_LDS = 139264
CNT_LDS = LN_LDS + 2*ln.LN_T
LDS_TOTAL = CNT_LDS + 64
S_WS, S_X, S_DBG, S_W1, S_W2 = 4, 6, 94, 96, 98
SPIN = 0x100000
S_TAG = 100
F_SEED = 255 * 256


def f32hex(x):
    return "0x%08x" % struct.unpack("<I", struct.pack("<f", x))[0]


def div6(a, d, r, x):
    a(f"s_mul_i32 s{d}, s{x}, 10923\ns_lshr_b32 s{d}, s{d}, 16\ns_mul_i32 s{r}, s{d}, 6\ns_sub_u32 s{r}, s{x}, s{r}")


def unpk(a, x, p):
    a(f"v_lshlrev_b32 v{x}, 16, v{p}\nv_and_b32 v{x+1}, 0xffff0000, v{p}")


def poll(a, tag, rs, vaddr, soff, target, sleep=1, mask=None):
    a(f"s_mov_b32 s61, {SPIN:#x}\nL_{tag}_poll:\nbuffer_load_dword v62, v{vaddr}, s[{rs}:{rs+3}], {soff} offen sc1")
    a(f"s_sub_u32 s61, s61, 1\ns_cbranch_scc1 L_{tag}_go\ns_waitcnt vmcnt(0)")
    if mask:
        a(f"v_and_b32 v62, {mask:#x}, v62")
    a(f"v_cmp_ne_u32 vcc, {target}, v62")
    a(f"s_cmp_eq_u64 vcc, 0\ns_cbranch_scc1 L_{tag}_go")
    if sleep:
        a(f"s_sleep {sleep}")
    a(f"s_branch L_{tag}_poll\nL_{tag}_go:")


def flags_srd(a, d):
    srd_off(a, d, S_WS, WS_FLG, FLG_BYTES)


def last_wave_signals(a, tag, cnt, rs, soff, word=None, second=None):
    a(f"v_mov_b32 v58, {cnt}\nv_mov_b32 v59, 1\nv_mov_b32 v61, 0\ns_mov_b64 exec, 1\nds_add_rtn_u32 v60, v58, v59\ns_waitcnt lgkmcnt(0)")
    a(f"v_readfirstlane_b32 s23, v60\ns_cmp_lg_u32 s23, 3\ns_cbranch_scc1 L_{tag}_notlast")
    if word:
        a(f"v_mov_b32 v59, {word}\nbuffer_store_dword v59, v61, s[{rs}:{rs+3}], {soff} offen sc1")
    else:
        if second:
            a(f"buffer_atomic_add v59, v61, s[{rs}:{rs+3}], {second} offen sc1")
        a(f"buffer_atomic_add v59, v61, s[{rs}:{rs+3}], {soff} offen sc1")
    a(f"L_{tag}_notlast:\ns_mov_b64 exec, -1")


def ln_local_wait(a, tag, cnt=CNT_LDS+4):
    a(f"v_mov_b32 v58, {cnt}\nL_{tag}:\ns_sleep 2\nds_read_b32 v60, v58\ns_waitcnt lgkmcnt(0)\nv_readfirstlane_b32 s23, v60\ns_cmp_lt_u32 s23, 4\ns_cbranch_scc1 L_{tag}")


def g_pause(a, tag, o):
    if not o["pause"]:
        return
    a(f"s_lshr_b32 s23, s2, 3\ns_mul_i32 s24, s23, 43\ns_lshr_b32 s24, s24, 9\ns_mul_i32 s24, s24, 12\ns_sub_u32 s23, s23, s24\ns_lshl_b32 s23, s23, 8\ns_add_u32 s23, s23, {F_G}")
    a(f"v_mov_b32 v61, 0\ns_mov_b32 s61, {SPIN:#x}\nL_{tag}_poll:\nbuffer_load_dword v62, v61, s[36:39], s23 offen sc1\ns_sub_u32 s61, s61, 1\ns_cbranch_scc1 L_{tag}_go")
    a(f"s_waitcnt vmcnt(0)\nv_readfirstlane_b32 s24, v62\ns_cmp_ge_u32 s24, {o['pause']}\ns_cbranch_scc1 L_{tag}_go\ns_sleep 8\ns_branch L_{tag}_poll\nL_{tag}_go:")


def wait_ln(a, tag, rs, o, base=F_LNW):
    a(f"v_mul_u32_u24 v61, {o['lnw']}, v1\ns_mov_b32 s61, {SPIN:#x}\nL_{tag}_poll:")
    if o["ln_lines"] and base == F_LNW:
        for k in range(4):
            a(f"s_mov_b32 s62, {F_LNW + k*64*o['lnw']}\nbuffer_load_dword v{180+k}, v61, s[{rs}:{rs+3}], s62 offen sc1")
    else:
        a(f"s_mov_b32 s62, {base}\nbuffer_load_dwordx4 v[180:183], v61, s[{rs}:{rs+3}], s62 offen sc1")
    a(f"s_sub_u32 s61, s61, 1\ns_cbranch_scc1 L_{tag}_go\ns_waitcnt vmcnt(0)")
    a(f"v_xor_b32 v180, s{S_TAG+1}, v180\nv_xor_b32 v181, s{S_TAG+1}, v181\nv_xor_b32 v182, s{S_TAG+1}, v182\nv_xor_b32 v183, s{S_TAG+1}, v183")
    a("v_or3_b32 v180, v180, v181, v182\nv_or_b32 v180, v180, v183\nv_cmp_ne_u32 vcc, 0, v180")
    a(f"s_cmp_eq_u64 vcc, 0\ns_cbranch_scc1 L_{tag}_go\ns_sleep {o['slp']}\ns_branch L_{tag}_poll\nL_{tag}_go:")


def tile1(a):
    a("s_and_b32 s12, s2, 7\ns_lshr_b32 s13, s2, 3\ns_and_b32 s14, s12, 1\ns_mul_i32 s14, s14, 3\ns_add_u32 s13, s13, s14")
    a("s_cmp_ge_u32 s13, 27\ns_cselect_b32 s14, 27, 0\ns_sub_u32 s13, s13, s14\ns_mul_i32 s12, s12, 27\ns_add_u32 s12, s12, s13")
    div6(a, 14, 15, 12)


def tile2(a):
    a("s_lshr_b32 s13, s2, 3")
    div6(a, 12, 15, 13)
    a("s_bfe_u32 s19, s2, 0x10002\ns_and_b32 s13, s2, 3\ns_lshl_b32 s14, s13, 2\ns_add_u32 s14, s14, s12")
    a("s_mul_i32 s13, s13, 9\ns_add_u32 s13, s13, 1\ns_lshr_b32 s13, s13, 1")
    a("s_lshl_b32 s16, s14, 7\ns_lshl_b32 s17, s19, 6\ns_add_u32 s16, s16, s17")


def block_jump(kind):
    cnt, base, dst, step = (54, 56, gc.S_W0, 128*4096) if kind == "w" else (55, 57, gc.S_ACT0, 2*73728)
    return [f"s_add_u32 s{cnt}, s{cnt}, 1", f"s_add_u32 s18, s{cnt}, s12", "s_and_b32 s18, s18, 3", f"s_cmp_lt_u32 s{cnt}, 4",
            f"s_cselect_b32 s18, s18, s{cnt}", "s_add_u32 s18, s18, s13", "s_cmp_ge_u32 s18, 18", "s_cselect_b32 s17, 18, 0",
            "s_sub_u32 s18, s18, s17", f"s_mul_i32 s18, s18, {step}", f"s_add_u32 s{dst}, s18, s{base}"]


def gelu_epilogue(a, rounds, rot):
    c1 = -2.0 * 0.7978845608028654 * 1.4426950408889634
    a(f"s_mov_b32 s48, {f32hex(c1*0.044715)}\ns_mov_b32 s49, s48\nv_mov_b32 v36, {f32hex(c1)}\nv_mov_b32 v37, v36")
    for nu in range(4):
        unpk(a, 20+4*nu, 12+2*nu); unpk(a, 22+4*nu, 13+2*nu)
    a(f"s_lshr_b32 s26, s20, 1\ns_mul_i32 s26, s26, {gc.SLOT}\ns_and_b32 s27, s20, 1\ns_mul_i32 s27, s27, 6144\ns_add_u32 s26, s26, s27\ns_add_u32 s26, s26, {gc.W_BYTES}\nv_add_u32 v38, s26, v7")
    B = 112
    for dl in range(3):
        for pi in range(2):
            src = [(gc.acc(2*pi + (k >> 1), dl) + 2*(k & 1), 20 + 4*(2*pi + (k >> 1)) + 2*(k & 1)) for k in range(4)]
            U = [B + 2*k for k in range(4)]; T = [B + 8 + 2*k for k in range(4)]; P = [B + 16 + k for k in range(4)]
            O = B + 20 + 4*((2*dl + pi) % 2)
            if rounds == 2:
                for k in range(4): a(f"v_cvt_pk_bf16_f32 v{P[k]}, v{src[k][0]}, v{src[k][0]+1}")
                for k in range(4): unpk(a, U[k], P[k])
                for k in range(4): a(f"v_pk_add_f32 {vr(U[k],2)}, {vr(U[k],2)}, {vr(src[k][1],2)}")
            else:
                for k in range(4): a(f"v_pk_add_f32 {vr(U[k],2)}, {vr(src[k][0],2)}, {vr(src[k][1],2)}")
            if rounds >= 1:
                for k in range(4): a(f"v_cvt_pk_bf16_f32 v{P[k]}, v{U[k]}, v{U[k]+1}")
                for k in range(4): unpk(a, U[k], P[k])
            for k in range(4): a(f"v_pk_mul_f32 {vr(T[k],2)}, {vr(U[k],2)}, {vr(U[k],2)}")
            for k in range(4): a(f"v_pk_fma_f32 {vr(T[k],2)}, {vr(T[k],2)}, s[48:49], v[36:37]")
            for k in range(4): a(f"v_pk_mul_f32 {vr(T[k],2)}, {vr(T[k],2)}, {vr(U[k],2)}")
            for k in range(4): a(f"v_exp_f32 v{T[k]}, v{T[k]}\nv_exp_f32 v{T[k]+1}, v{T[k]+1}")
            for k in range(4): a(f"v_pk_add_f32 {vr(T[k],2)}, {vr(T[k],2)}, 1.0 op_sel_hi:[1,0]")
            for k in range(4): a(f"v_rcp_f32 v{T[k]}, v{T[k]}\nv_rcp_f32 v{T[k]+1}, v{T[k]+1}")
            for k in range(4): a(f"v_pk_mul_f32 {vr(U[k],2)}, {vr(U[k],2)}, {vr(T[k],2)}")
            for k in range(4): a(f"v_cvt_pk_bf16_f32 v{O+k}, v{U[k]}, v{U[k]+1}")
            a(f"buffer_store_dwordx4 {vr(O,4)}, v7, s[44:47], s17 offen offset:{1024*pi} sc1")
            if rot:
                a(f"ds_write_b128 v38, {vr(O,4)} offset:{(2*dl + pi)*1024}")
        a("s_add_u32 s17, s17, 2048")


def read_tag(a):
    a(f"s_add_u32 s26, s{S_WS}, {WS_FLG + F_SEED:#x}\ns_addc_u32 s27, s{S_WS+1}, 0\ns_load_dword s{S_TAG+1}, s[26:27], 0")


def make_tag(a):
    a(f"s_mul_i32 s{S_TAG+1}, s{S_TAG+1}, 0x9e3779b1\ns_add_u32 s{S_TAG+1}, s{S_TAG+1}, 0x7f4a7c15\ns_andn2_b32 s{S_TAG}, s{S_TAG+1}, 0xff")


def compute_waves(a, o):
    a("s_waitcnt lgkmcnt(0)")
    ln.ln_issue(a, S_X, o['lnx'], 80 if o['dry'] else 10)
    read_tag(a)
    a(f"s_cmp_lg_u32 s20, 0\ns_cbranch_scc1 L_m_nz\nv_mov_b32 v58, {CNT_LDS}\nv_mov_b32 v60, 0\nv_mov_b32 v61, 0\nv_mov_b32 v62, 0\nv_mov_b32 v63, 0")
    a("ds_write_b128 v58, v[60:63]\nL_m_nz:")
    if o["early_bar"]:
        a("s_waitcnt lgkmcnt(0)\ns_barrier")
    a(f"s_load_dwordx2 s[38:39], s[0:1], {KA['b1']}\ns_load_dwordx8 s[80:87], s[0:1], {KA['lar']}\ns_load_dwordx4 s[88:91], s[0:1], {KA['ldt']}")
    ln.ln_body(a, S_WS, LN_LDS, CNT_LDS, "ln", not o["early_bar"], o["dry"])
    if not o["split_xn"]:
        ln.xn_stores(a, "ln")
    flags_srd(a, 40)
    make_tag(a)
    a("v_mov_b32 v61, 0\ns_cmp_lg_u32 s20, 3\ns_cbranch_scc1 L_m_nozero\ns_sub_u32 s23, s2, 28\ns_cmp_ge_u32 s23, 6\ns_cbranch_scc1 L_m_nozero")
    a("s_lshl_b32 s23, s2, 8\ns_mov_b64 exec, 1\nbuffer_store_dword v61, v61, s[40:43], s23 offen sc1\ns_mov_b64 exec, -1\nL_m_nozero:")
    if o["ln_lines"]:
        a(f"s_mul_i32 s24, s2, {o['lnw']}\ns_add_u32 s24, s24, {F_LNW}")
    else:
        a(f"s_and_b32 s24, s2, 63\ns_mul_i32 s24, s24, {o['lnw']}\ns_lshr_b32 s23, s2, 6\ns_lshl_b32 s23, s23, 2\ns_add_u32 s24, s24, s23\ns_add_u32 s24, s24, {F_LNW}")
    a("s_waitcnt vmcnt(0)\n; STAMP 1")
    last_wave_signals(a, "lnd", CNT_LDS + 4, 40, "s24", word=f"s{S_TAG+1}")
    a("s_lshr_b32 s29, s2, 3\ns_lshl_b32 s29, s29, 2\ns_add_u32 s29, s29, s20")
    srd(a, 32, S_W1, W_BYTES_TOTAL)
    if o["split_xn"]:
        ln.xn_stores(a, "ln")
        a(f"s_and_b32 s24, s2, 63\ns_mul_i32 s24, s24, {o['lnw']}\ns_lshr_b32 s23, s2, 6\ns_lshl_b32 s23, s23, 2\ns_add_u32 s24, s24, s23\ns_add_u32 s24, s24, {F_XNW}")
        if o["b_first"]:
            a("s_cmp_ge_u32 s2, 216\ns_cbranch_scc1 L_m_nob")
            w1_burst(a, 32, 29, 108, o["r1"]//4*5, o["nB"])
            a(f"s_waitcnt vmcnt({o['nB']})\ns_branch L_m_hadb\nL_m_nob:")
            a("s_sub_u32 s31, s2, 216\ns_lshl_b32 s31, s31, 2\ns_add_u32 s31, s31, s20\ns_mul_i32 s31, s31, 3\ns_mov_b32 s28, s24")
            cv.param_loads(a, 80, 88, 90)
            a("s_mov_b32 s24, s28\ns_waitcnt vmcnt(14)\nL_m_hadb:")
        else:
            a("s_waitcnt vmcnt(0)")
        last_wave_signals(a, "xnd", CNT_LDS + 12, 40, "s24", word=f"s{S_TAG+1}")
    a("s_cmp_ge_u32 s2, 216\ns_cbranch_scc1 L_m_conv")
    if not (o["split_xn"] and o["b_first"]):
        w1_burst(a, 32, 29, 108, o["r1"]//4*5, o["nB"])
    srd(a, 32, S_W2, W_BYTES_TOTAL)
    tile1(a)
    gc.lane_ids(a)
    gc.compute_setup(a, "A")
    srd(a, 8, 38, F*2)
    a(f"s_lshr_b32 s16, s20, 1\ns_lshl_b32 s17, s16, 7\ns_lshl_b32 s18, s14, 8\ns_add_u32 s17, s17, s18\nv_lshlrev_b32 v9, 3, v3")
    a("s_mov_b32 s22, s17")

    def b1_loads(a):
        for nu in range(4):
            a(f"buffer_load_dwordx2 {vr(12+2*nu,2)}, v9, s[8:11], s22 offen offset:{32*nu}")
    if not o["b1_late"]:
        b1_loads(a)
    for i in range(48):
        a(f"v_mov_b32 v{gc.V_ACC+i}, 0")
    srd_off(a, 44, S_WS, WS_G, G_BYTES)
    a("s_and_b32 s17, s20, 1\ns_mul_i32 s17, s17, 3\ns_mul_i32 s18, s15, 6\ns_add_u32 s17, s17, s18\ns_lshl_b32 s17, s17, 11")
    a("s_lshl_b32 s18, s14, 1\ns_add_u32 s18, s18, s16\ns_mul_i32 s18, s18, 73728\ns_add_u32 s17, s17, s18")
    a(f"s_mul_i32 s24, s15, 36\ns_add_u32 s24, s24, s14\ns_lshl_b32 s24, s24, 8\ns_add_u32 s24, s24, {F_GW}")
    a(f"s_load_dwordx4 s[52:55], s[0:1], {KA['b2']}")
    gc.compute_main(a, 32*o["rep1"], "A", False, "g1", last_barrier=True, st=(5, 2), tail_hook=b1_loads if o["b1_late"] else None)
    if o["rep1"] == 2:
        for i in range(48):
            a(f"v_mul_f32 v{gc.V_ACC+i}, 0.5, v{gc.V_ACC+i}")
    a("s_waitcnt vmcnt(0)")
    gelu_epilogue(a, o['rnd1'], o['rot'])
    a("s_cmp_lt_u32 s2, 192\ns_cbranch_scc1 L_m_g2\ns_waitcnt vmcnt(0)")
    last_wave_signals(a, "gd", CNT_LDS + 8, 40, "s24", word=f"s{S_TAG+1}")
    a("; STAMP 3\ns_branch L_m_conv1\nL_m_g2:")
    tile2(a)
    gc.compute_setup(a, "B", s_kh=19)
    srd(a, 32, S_X, X_BYTES); srd(a, 28, 52, S*2)
    a("s_lshr_b32 s17, s20, 1\ns_lshl_b32 s17, s17, 5\ns_add_u32 s17, s17, s16")
    a("s_mul_i32 s18, s15, 96\ns_and_b32 s26, s20, 1\ns_mul_i32 s26, s26, 48\ns_add_u32 s18, s18, s26")
    a("v_mul_u32_u24 v58, 1152, v2\nv_lshl_add_u32 v58, v3, 3, v58\nv_lshlrev_b32 v9, 1, v2")
    a("s_mul_i32 s56, s17, 1152\ns_lshl_b32 s26, s18, 1\ns_add_u32 s56, s56, s26\ns_add_u32 s57, s56, 18432\ns_lshl_b32 s26, s17, 1")
    a("s_mov_b32 s22, s26\nv_mov_b32 v39, v58")
    for i in range(48):
        a(f"v_mov_b32 v{gc.V_ACC+i}, 0")
    a("v_bfe_u32 v4, v1, 2, 2\nv_lshl_add_u32 v4, v3, 2, v4\nv_lshlrev_b32 v4, 7, v4\nv_and_b32 v5, 3, v1\nv_lshl_add_u32 v4, v5, 3, v4")
    a(f"s_and_b32 s26, s20, 1\ns_mul_i32 s26, s26, 6144\ns_lshr_b32 s27, s20, 1\ns_lshl_b32 s27, s27, 6\ns_add_u32 s26, s26, s27\ns_add_u32 s26, s26, {AT_LDS}\nv_add_u32 v59, s26, v4")
    a("v_mov_b32 v31, v59")
    a("s_xor_b32 s58, s2, 4\ns_lshl_b32 s26, s20, 12\ns_lshl_b32 s59, s58, 14\ns_add_u32 s59, s59, s26\ns_lshl_b32 s60, s2, 14\ns_add_u32 s60, s60, s26")
    assert o["xbf"]

    SN = 172
    NG = 4 if o["xbf"] else 8
    srd_off(a, 8, S_WS, WS_XCH, XCH_BYTES)

    def send_partials(a):
        for k in range(NG):
            for m in range(3):
                if o["xbf"]:
                    a(f"v_cvt_pk_bf16_f32 v{SN+4*k+m}, v{gc.V_ACC+24+6*k+2*m}, v{gc.V_ACC+25+6*k+2*m}")
                else:
                    a(f"v_mov_b32 v{SN+4*k+m}, v{gc.V_ACC+24+3*k+m}")
            a(f"v_mov_b32 v{SN+4*k+3}, s{S_TAG+1}")
            a(f"buffer_store_dwordx4 {vr(SN+4*k,4)}, v7, s[8:11], s59 offen sc1\ns_add_u32 s59, s59, 1024")

    def x_loads(a):
        for nu in range(2):
            for dl in range(3):
                a(f"buffer_load_dwordx2 {vr(10+2*(3*nu+dl),2)}, v39, s[32:35], s{56+nu} offen offset:{32*dl}{o['xnt']}")
            a(f"buffer_load_ushort v{22+nu}, v9, s[28:31], s22 offen offset:{32*nu}")

    def publish_g(a):
        a("s_waitcnt vmcnt(0)")
        last_wave_signals(a, "gd2", CNT_LDS + 8, 40, "s24", word=f"s{S_TAG+1}")
        a("; STAMP 3\n; SWAIT")
        if not o["x_late"]:
            x_loads(a)

    if o["late_sig"]:
        gc.compute_main(a, 36, "B", True, "g2", st=(5, 4), first_stage1=publish_g)
    else:
        publish_g(a)
        gc.compute_main(a, 36*o["rep2"], "B", True, "g2", st=(5, 4), tail_hook=x_loads if o["x_late"] == "tail" else None,
                        split_tail=send_partials if o["xfirst"] else None)
        if o["rep2"] == 2:
            for i in range(48):
                a(f"v_mul_f32 v{gc.V_ACC+i}, 0.5, v{gc.V_ACC+i}")
    srd(a, 44, 54, X_BYTES)
    a("v_mov_b32 v58, v39\nv_mov_b32 v59, v31")
    a("; STAMP 5")
    if not o["xfirst"]:
        send_partials(a)
    if o["x_late"] is True:
        x_loads(a)
    a("s_barrier")
    AR, PF = 112, 124
    for nu in range(2):
        for dl in range(3):
            a(f"ds_read_b64_tr_b16 {vr(AR+2*(3*nu+dl),2)}, v59 offset:{2048*dl + 32*nu}")
    a(f"s_waitcnt vmcnt({0 if o['x_late'] is True else NG})\nv_lshlrev_b32 v22, 16, v22\nv_lshlrev_b32 v24, 16, v23\ns_waitcnt lgkmcnt(0)")
    for t in range(6):
        for h in range(2):
            unpk(a, 26, 10+2*t+h); unpk(a, 28, AR+2*t+h)
            if o["rnd2"]:
                a("v_pk_add_f32 v[26:27], v[26:27], v[28:29]\nv_cvt_pk_bf16_f32 v30, v26, v27")
                unpk(a, PF+4*t+2*h, 30)
            else:
                b = gc.V_ACC + 4*t + 2*h
                a(f"v_pk_add_f32 v[26:27], v[26:27], v[28:29]\nv_pk_add_f32 {vr(b,2)}, {vr(b,2)}, {vr(22+2*(t//3),2)} op_sel_hi:[1,0]")
                a(f"v_pk_add_f32 {vr(b,2)}, {vr(b,2)}, v[26:27]")
    RX = 204
    if o["xwait"]:
        a("s_waitcnt vmcnt(0)")
    a(f"s_mov_b32 s61, {SPIN:#x}\ns_add_u32 s62, s60, 4096\nL_xch_poll:")
    for k in range(NG):
        a(f"buffer_load_dwordx4 {vr(RX+4*k,4)}, v7, s[8:11], s{60 + 2*(k >> 2)} offen offset:{1024*(k & 3)} sc1")
    a(f"s_sub_u32 s61, s61, 1\ns_cbranch_scc1 L_xch_go\ns_waitcnt vmcnt(0)\nv_xor_b32 v4, s{S_TAG+1}, v{RX+3}")
    for k in range(1, NG):
        a(f"v_xor_b32 v5, s{S_TAG+1}, v{RX+4*k+3}\nv_or_b32 v4, v4, v5")
    a("v_cmp_ne_u32 vcc, 0, v4\ns_cmp_eq_u64 vcc, 0\ns_cbranch_scc1 L_xch_go")
    if o["slpx"]:
        a(f"s_sleep {o['slpx']}")
    a("s_branch L_xch_poll\nL_xch_go:")
    for t in range(6):
        nu, dl = divmod(t, 3)
        b, p = gc.V_ACC + 4*t, PF + 4*t
        if o["xbf"]:
            for h in range(2):
                k, m = divmod(2*t + h, 3)
                unpk(a, 26+2*h, RX+4*k+m)
            for h in range(2): a(f"v_pk_add_f32 {vr(b+2*h,2)}, {vr(b+2*h,2)}, {vr(26+2*h,2)}")
        else:
            for e in range(4):
                k, m = divmod(4*t + e, 3)
                a(f"v_add_f32 v{b+e}, v{b+e}, v{RX+4*k+m}")
        if o['rnd2']:
            for h in range(2): a(f"v_cvt_pk_bf16_f32 v{26+h}, v{b+2*h}, v{b+2*h+1}")
            for h in range(2): unpk(a, b+2*h, 26+h)
            for h in range(2): a(f"v_pk_add_f32 {vr(b+2*h,2)}, {vr(b+2*h,2)}, {vr(22+2*nu,2)} op_sel_hi:[1,0]")
            for h in range(2): a(f"v_cvt_pk_bf16_f32 v{26+h}, v{b+2*h}, v{b+2*h+1}")
            for h in range(2): unpk(a, b+2*h, 26+h)
            for h in range(2): a(f"v_pk_add_f32 {vr(b+2*h,2)}, {vr(b+2*h,2)}, {vr(p+2*h,2)}")
        for h in range(2): a(f"v_cvt_pk_bf16_f32 v{10+2*t+h}, v{b+2*h}, v{b+2*h+1}")
        a(f"buffer_store_dwordx2 {vr(10+2*t,2)}, v58, s[44:47], s{56+nu} offen offset:{32*dl}{o['ont']}")
    a("s_endpgm")
    a("L_m_conv1:\ns_mov_b32 s30, 1\ns_sub_u32 s31, s2, 72\ns_lshl_b32 s31, s31, 2\ns_add_u32 s31, s31, s20")
    cv.param_loads(a, 80, 88, 90)
    a("s_branch L_m_conv2\nL_m_conv:\ns_mov_b32 s30, 3\nL_m_conv2:")
    a("s_mul_i32 s29, s31, 683\ns_lshr_b32 s29, s29, 16")
    assert o["split_xn"] and o["b_first"]

    def signal(a):
        a("s_lshl_b32 s36, s29, 8")
        a(f"s_add_u32 s36, s36, {F_CONV}\nv_mov_b32 v4, 1\nv_mov_b32 v5, 0\ns_mov_b64 exec, 1\nbuffer_atomic_add v4, v5, s[8:11], s36 offen sc1")
    flags_srd(a, 8)
    cv.conv_role(a, "cv", S_WS, lambda a, t: wait_ln(a, "cvln" + t, 8, o, F_XNW if o["split_xn"] else F_LNW), signal)
    a("s_endpgm")


def fifth_wave(a, o):
    if o["prio"]:
        a(f"s_setprio {o['prio']}")
    a(f"s_load_dwordx2 s[48:49], s[0:1], {KA['out']}\ns_load_dwordx8 s[80:87], s[0:1], {KA['lar']}\ns_load_dwordx4 s[52:55], s[0:1], {KA['ldt']}")
    a(f"s_load_dwordx2 s[56:57], s[0:1], {KA['b1']}\ns_load_dwordx2 s[58:59], s[0:1], {KA['b2']}")
    a("s_waitcnt lgkmcnt(0)")
    flags_srd(a, 36)
    read_tag(a)
    if o["tlb"] >= 4:
        srd(a, 8, S_WS, WS_G); srd(a, 16, S_W1, 5 << 20)
        a("v_lshlrev_b32 v4, 21, v1\nbuffer_load_dword v100, v4, s[8:11], 0 offen sc1\nbuffer_load_dword v104, v4, s[16:19], 0 offen")
        srd(a, 8, 56, 4)
        a("buffer_load_dword v105, v4, s[8:11], 0 offen")
    elif o["tlb"]:
        srd(a, 8, S_WS, WS_END); srd(a, 16, S_W2, W_BYTES_TOTAL)
        a("v_lshlrev_b32 v4, 20, v1\nbuffer_load_dword v100, v4, s[8:11], 0 offen sc1\nbuffer_load_dword v101, v4, s[16:19], 0 offen")
        srd(a, 8, 48, X_BYTES); srd(a, 16, S_W1, W_BYTES_TOTAL)
        a("buffer_load_dword v102, v4, s[8:11], 0 offen")
        if o["tlb"] >= 2:
            a("buffer_load_dword v104, v4, s[16:19], 0 offen")
            small = [80, 82, 84, 86, 52, 54, 56, 58]
            for k, p in enumerate(small):
                if o["tlb"] == 3:
                    a(f"s_bfe_u32 s23, s2, 0x30003\ns_cmp_lg_u32 s23, {k}\ns_cbranch_scc1 L_m_tl{k}")
                if k < 6 or not o["bias_pf"]:
                    srd(a, 8, p, 4)
                    a(f"buffer_load_dword v{105+k}, v4, s[8:11], 0 offen")
                else:
                    srd(a, 8, p, F*2 if k == 6 else S*2)
                    a(f"v_lshlrev_b32 v5, 7, v1\nbuffer_load_dword v{105+k}, v5, s[8:11], 0 offen")
                    if k == 6:
                        a("s_mov_b32 s23, 8192\nbuffer_load_dword v113, v5, s[8:11], s23 offen")
                a(f"L_m_tl{k}:")
    if o["touch"]:
        todo = [F_LNW + k*64*o["lnw"] for k in range(4 if o["ln_lines"] else 1)] + [F_XNW] + ([F_REL] if o["agg"] else [])
        for k, off in enumerate(todo):
            a(f"s_cmp_lg_u32 s2, {5*k if k < 2 else 4+k}\ns_cbranch_scc1 L_m_nt{k}\nv_mul_u32_u24 v5, {o['lnw']}, v1\ns_mov_b32 s23, {off}\nbuffer_load_dword v103, v5, s[36:39], s23 offen\nL_m_nt{k}:")
    if o["touch_g"]:
        a(f"s_sub_u32 s23, s2, 1\ns_cmp_ge_u32 s23, 4\ns_cbranch_scc1 L_m_notouch2\nv_lshlrev_b32 v5, 8, v1\ns_lshl_b32 s23, s23, 14\ns_add_u32 s23, s23, {F_GW}")
        a("buffer_load_dword v103, v5, s[36:39], s23 offen\nL_m_notouch2:")
    srd(a, gc.SRD_W, S_W1, W_BYTES_TOTAL)
    if o["early_bar"]:
        a("s_barrier")
    a("s_lshr_b32 s30, s2, 3")
    if o["code_pf"]:
        a("s_getpc_b64 s[12:13]\nL_m_pc:\ns_sub_u32 s12, s12, L_m_pc-L_m_base\ns_subb_u32 s13, s13, 0")
        a("s_mov_b32 s14, L_m_last-L_m_base\ns_mov_b32 s15, 0x20000\nv_lshlrev_b32 v4, 4, v1\ns_lshl_b32 s23, s30, 10")
        for k in range(o["code_n"]):
            a("buffer_load_dwordx4 v[96:99], v4, s[12:15], s23 offen\ns_add_u32 s23, s23, 32768")
    w1_stream(a, "m0", gc.SRD_W, 30, 32, o["r0"], o["r1"], o["win1"])
    if o["extra23"]:
        a("s_and_b32 s23, s2, 6\ns_cmp_lg_u32 s23, 2\ns_cbranch_scc1 L_m_nox23")
        w1_stream(a, "m23", gc.SRD_W, 30, 32, 2048 - o["extra23"], 2048, o["win1"])
        a("L_m_nox23:")
    a("s_waitcnt lgkmcnt(0)")
    make_tag(a)
    if not o["early_bar"]:
        a("s_barrier")
    a("; STAMP 0\ns_cmp_ge_u32 s2, 216\ns_cbranch_scc1 L_m_helper")
    tile1(a)
    gc.lane_ids(a)
    a(f"s_mul_i32 s{gc.S_ACT0}, s15, 12288\ns_lshl_b32 s{gc.S_W0}, s14, 8")
    gc.loader_setup(a, 0, 9216, "A")
    srd_off(a, gc.SRD_ACT, S_WS, WS_HT, HT_BYTES)
    a("s_lshr_b32 s60, s2, 3\ns_mul_i32 s60, s60, 10923\ns_lshr_b32 s60, s60, 16")
    ln_local_wait(a, "lw1")
    a("; STAMP 0")
    gc.w_prefill(a, range(4), 0, 9216)
    a("; STAMP 1")
    if o["agg"]:
        a(f"s_and_b32 s23, s2, 7\ns_lshl_b32 s23, s23, 8\ns_add_u32 s23, s23, {F_REL}\ns_cmp_ge_u32 s2, 8\ns_cbranch_scc1 L_m_follow")
        wait_ln(a, "l1", 36, dict(o, slp=o["slpa"]))
        a(f"v_mov_b32 v4, s{S_TAG+1}\nv_mov_b32 v5, 0\ns_mov_b64 exec, 1\nbuffer_store_dword v4, v5, s[36:39], s23 offen sc1\ns_mov_b64 exec, -1\ns_branch L_l1f_go\nL_m_follow:\nv_mov_b32 v61, 0")
        poll(a, "l1f", 36, 61, "s23", f"s{S_TAG+1}", sleep=o["slp"])
    else:
        wait_ln(a, "l1", 36, o)
    a(f"; STAMP 2\ns_cmp_lg_u32 s2, 0\ns_cbranch_scc1 L_m_noseed\nv_mov_b32 v4, s{S_TAG+1}\nv_mov_b32 v5, {F_SEED}\ns_mov_b64 exec, 1")
    a("buffer_store_dword v4, v5, s[36:39], 0 offen sc1\ns_mov_b64 exec, -1\nL_m_noseed:")
    gc.loader_after_prefill(a, 32*o["rep1"], 0, 9216, "g1", o["aflags"], tail=lambda a: None, wrap=(2048*9216, 32*73728) if o["rep1"] == 2 else None,
                            s_group=60 if o["lead1"] else None)
    srd(a, gc.SRD_W, S_W2, W_BYTES_TOTAL)
    a("s_cmp_lt_u32 s2, 192\ns_cbranch_scc1 L_m_l2")
    a("s_waitcnt vmcnt(28)\ns_barrier\ns_waitcnt vmcnt(0)\ns_barrier\ns_barrier\ns_sub_u32 s30, s2, 152\ns_lshr_b32 s30, s30, 3")
    ln_local_wait(a, "lw3", CNT_LDS+8)
    if o["x_pf"] == "early":
        srd(a, 8, S_X, X_BYTES); a("s_sub_u32 s31, s30, 5\ns_mul_i32 s31, s31, 3")
        for k in range(3):
            if k == 2:
                a("s_cmp_eq_u32 s31, 8\ns_cbranch_scc1 L_m_nox")
            x_stream(a, f"xe{k}", 8, 31)
            a("s_add_u32 s31, s31, 1")
        a("L_m_nox:")
    g_pause(a, "gp3", o)
    w2_stream(a, "m3", gc.SRD_W, 30, 8, o["r2"] + 96*o["nC"], 2304, o["win3"])
    if o["x_pf"] is True:
        srd(a, 8, S_X, X_BYTES); x_stream(a, "x3", 8, 30)
    a("s_endpgm\nL_m_l2:")
    tile2(a)
    a(f"s_mul_i32 s57, s15, 12288\ns_mul_i32 s18, s19, {36*73728}\ns_add_u32 s57, s57, s18")
    a(f"s_lshl_b32 s56, s14, 8\ns_mul_i32 s18, s19, {HALF2}\ns_add_u32 s56, s56, s18\ns_mov_b32 s54, -1\ns_mov_b32 s55, -1")
    jump = block_jump if o["rot"] else None
    if o["rot"]:
        a.extend(block_jump("w") + block_jump("a"))
    else:
        a(f"s_mov_b32 s{gc.S_W0}, s56\ns_mov_b32 s{gc.S_ACT0}, s57")
    gc.loader_setup(a, 0, 4096, "B")
    srd_off(a, gc.SRD_ACT, S_WS, WS_G, G_BYTES)
    e2 = o["early2"]
    for j, vm in enumerate((28, 0, None)):
        if j < e2:
            gc.w_prefill(a, [j], 0, 4096, jump)
        if vm is not None:
            a(f"s_waitcnt vmcnt({vm + 16*min(j+1, e2)})")
        a("s_barrier")
    a("; STAMP 5")
    gc.w_prefill(a, range(min(e2, 3), 4), 0, 4096, jump)
    a("v_mov_b32 v61, 0\n; STAMP 3")

    def wait_slot(a):
        a(f"s_mul_i32 s23, s15, 36\ns_mul_i32 s24, s19, 18\ns_add_u32 s23, s23, s24\ns_lshl_b32 s23, s23, 8\ns_add_u32 s23, s23, {F_GW}")
        a("v_and_b32 v60, 3, v1\nv_add_u32 v60, s13, v60\nv_lshlrev_b32 v60, 8, v60")
        poll(a, "l2a", 36, 60, "s23", f"s{S_TAG+1}")
        a("; STAMP 4\nv_min_u32 v60, 17, v1\nv_lshlrev_b32 v60, 8, v60\ns_mov_b32 s53, s23")

    def wait_half(a):
        poll(a, "l2b", 36, 60, "s53", f"s{S_TAG+1}", sleep=o["slpg"])

    def at_dma(a):
        for e in range(12):
            a(f"s_mov_b32 m0, {AT_LDS + 1024*e}\nbuffer_load_dwordx4 v8, s[48:51], s26 offen sc1 lds\ns_add_u32 s26, s26, 32768")

    def at_early(a):
        srd_off(a, 48, S_WS, WS_AT, AT_BYTES)
        a(f"s_lshl_b32 s23, s15, 8\ns_add_u32 s23, s23, {F_CONV}\nbuffer_load_dword v62, v61, s[36:39], s23 offen sc1")
        a("v_lshrrev_b32 v8, 3, v1\nv_lshlrev_b32 v8, 12, v8\nv_and_b32 v9, 7, v1\nv_lshl_add_u32 v8, v9, 4, v8")
        a(f"s_mul_i32 s26, s15, {96*4096}\ns_lshl_b32 s27, s16, 1\ns_add_u32 s26, s26, s27")
        a("s_cmp_eq_u32 s15, 5\ns_cselect_b32 s24, 96, 32\ns_waitcnt vmcnt(0)\nv_readfirstlane_b32 s27, v62")
        a("s_cmp_lg_u32 s27, s24\ns_cbranch_scc1 L_at_skip")
        at_dma(a)
        a("L_at_skip:")
    if o["rot"]:
        gc.loader_after_prefill(a, 36, 0, 4096, "g2", o["aflags"], before_last=at_early, jump=block_jump, wait2=wait_slot, wait8=wait_half)
    else:
        ln_local_wait(a, "lw4", CNT_LDS+8)
        a(f"s_mul_i32 s53, s15, 36\ns_mul_i32 s24, s19, 18\ns_add_u32 s53, s53, s24\ns_lshl_b32 s53, s53, 8\ns_add_u32 s53, s53, {F_GW}")
        a("v_min_u32 v60, 17, v1\nv_lshlrev_b32 v60, 8, v60")
        wait_half(a)
        a("; STAMP 4")
        gc.loader_after_prefill(a, 36*o["rep2"], 0, 4096, "g2", o["aflags"], before_last=at_early, wrap=(HALF2, 36*73728) if o["rep2"] == 2 else None,
                                s_group=60 if o["lead2"] else None)
    a("s_cmp_eq_u32 s27, s24\ns_cbranch_scc1 L_at_done")
    poll(a, "at", 36, 61, "s23", "s24")
    at_dma(a)
    a("L_at_done:\ns_waitcnt vmcnt(0)\ns_barrier\ns_endpgm")
    a("L_m_helper:\ns_sub_u32 s30, s2, 216\ns_lshr_b32 s30, s30, 3")
    ln_local_wait(a, "lw2", CNT_LDS + (12 if o["split_xn"] and not o["h_early"] else 4))
    if o["tlb"] >= 4:
        M2 = 2 << 20
        items = [(S_W1, k*M2) for k in range(3, 9)] + [(S_W1, W_BYTES_TOTAL - 4)] + [(p, 0) for p in (80, 82, 84, 86, 52, 54)]
        items += [(S_WS, k*M2) for k in range(WS_G//M2 + 1, (WS_END - 1)//M2 + 1)] + [(S_W2, k*M2) for k in range(9)] + [(S_W2, W_BYTES_TOTAL - 4)]
        items += [(48, 0), (48, X_BYTES - 4), (58, 0)]
        for h in range(5):
            a(f"s_cmp_lg_u32 s30, {h}\ns_cbranch_scc1 L_m_st{h}")
            for k, (p, off) in enumerate(items[h::5]):
                a(f"s_add_u32 s8, s{p}, {off:#x}\ns_addc_u32 s9, s{p+1}, 0\ns_load_dword s{12+k}, s[8:9], 0")
            a(f"L_m_st{h}:")
    if o["b1_late"]:
        srd(a, 8, 56, F*2); srd(a, 12, 58, S*2)
        a("v_lshlrev_b32 v5, 7, v1\ns_mov_b32 s23, 8192\nbuffer_load_dword v105, v5, s[8:11], 0 offen\nbuffer_load_dword v106, v5, s[8:11], s23 offen\nbuffer_load_dword v107, v5, s[12:15], 0 offen")
    w1_stream(a, "m1", gc.SRD_W, 30, 5, o["r1"] + 108*o["nB"]//5*4, 2048, o["win2"], short23=o["extra23"])
    a("; STAMP 1")
    srd(a, gc.SRD_W, S_W2, W_BYTES_TOTAL)
    if o["rot"]:
        w2_head(a, "mh", gc.SRD_W, 30, 5, o["win2"])
    w2_stream(a, "m2", gc.SRD_W, 30, 5, 512 if o["rot"] else o["r20"], o["r2"], o["win2"])
    a("; STAMP 2")
    g_pause(a, "gp4", o)
    w2_stream(a, "m4", gc.SRD_W, 30, 8, o["r2"] + 96*o["nC"], 2304, o["win3"])
    if o["x_pf"] is True:
        srd(a, 8, S_X, X_BYTES); x_stream(a, "x4", 8, 30)


def mega(a, name, **opt):
    o = dict(xfirst=False, code_n=2, unc=False, unl=True, lead1=False, lead2=False, b_first=True, h_early=True, agg=False, slpa=0, split_xn=True, slpg=1, slpx=0, lead=7, dry=False, b1_late=False, lnx=' nt', bias_pf=False, touch_g=True, xwait=True, early_bar=False, extra23=0, r0=0, r20=0, rep1=1, rep2=1, uflags='', rot=False, x_pf=True, ln_lines=False, x_late='tail', late_sig=False, pause=0, xbf=True, rnd1=0, rnd2=0, prio=0, lnw=256, slp=4, touch=True, tlb=4, early2=3, xnt='', ont='', prefill_late=True, r1=384, nB=2, r2=400, nC=0, win1=20, win2=56, win3=56, aflags=" sc1", code_pf=9)
    o.update(opt)
    prefetch.ROT = o["rot"]
    cv.UFLAGS = o["uflags"]
    gc.LEAD = o["lead"]
    gc.UNROLL_C, gc.UNROLL_L = o["unc"], o["unl"]
    a(f".globl {name}\n.p2align 8\n.type {name},@function\n{name}:\nL_m_base:")
    a("s_cmp_ge_u32 s2, 256\ns_cbranch_scc1 L_m_end")
    a(f"s_load_dwordx2 s[{S_X}:{S_X+1}], s[0:1], {KA['x']}\ns_load_dwordx2 s[{S_WS}:{S_WS+1}], s[0:1], {KA['ws']}")
    a(f"s_load_dwordx2 s[{S_W1}:{S_W1+1}], s[0:1], {KA['w1']}\ns_load_dwordx2 s[{S_W2}:{S_W2+1}], s[0:1], {KA['w2']}")
    a("v_lshrrev_b32 v1, 6, v0\nv_readfirstlane_b32 s20, v1\nv_and_b32 v1, 63, v0")
    a("s_cmp_eq_u32 s20, 4\ns_cbranch_scc1 L_m_w4")
    compute_waves(a, o)
    a("L_m_w4:")
    fifth_wave(a, o)
    a("L_m_end:\ns_endpgm\nL_m_last:")


def warm_kernel(a, name, rows, w2rows, main, window=63):
    a(f".globl {name}\n.p2align 8\n.type {name},@function\n{name}:")
    a("s_cmp_ge_u32 s2, 256\ns_cbranch_scc1 L_pre_end")
    if rows >= 0:
        a(f"s_load_dwordx2 s[4:5], s[0:1], {KA['ws']}\ns_load_dwordx2 s[6:7], s[0:1], {KA['x']}\ns_load_dwordx2 s[20:21], s[0:1], {KA['w1']}")
        a(f"s_load_dwordx2 s[22:23], s[0:1], {KA['w2']}\ns_load_dwordx2 s[24:25], s[0:1], {KA['out']}")
        a("v_and_b32 v1, 63, v0\ns_lshr_b32 s30, s2, 3\nv_lshlrev_b32 v4, 20, v1\ns_waitcnt lgkmcnt(0)")
        srd(a, 8, 4, WS_FLG + FLG_BYTES); srd(a, 12, 6, X_BYTES); srd(a, 16, 22, W_BYTES_TOTAL); srd(a, 32, 20, W_BYTES_TOTAL); srd(a, 48, 24, X_BYTES)
        for k, rs in enumerate((8, 12, 16, 48)):
            a(f"buffer_load_dword v{100+k}, v4, s[{rs}:{rs+3}], 0 offen sc1")
        a(f"s_getpc_b64 s[12:13]\nL_pre_pc:\ns_sub_u32 s12, s12, L_pre_pc-L_m_base\ns_subb_u32 s13, s13, 0")
        a("s_mov_b32 s14, L_m_last-L_m_base\ns_mov_b32 s15, 0x20000\nv_lshlrev_b32 v4, 4, v1\ns_lshl_b32 s23, s30, 10")
        for k in range(o["code_n"]):
            a("buffer_load_dwordx4 v[96:99], v4, s[12:15], s23 offen\ns_add_u32 s23, s23, 32768")
        w1_stream(a, "pre", 32, 30, 32, 0, rows, window)
        w2_stream(a, "pre", 16, 30, 32, 0, w2rows, window)
    a("L_pre_end:\ns_endpgm")
```

```python
import struct
from asmlib import *
from layout import *
import gemm_core as gc
import mega_ln as ln
import mega_conv as cv
from prefetch import *
import prefetch

AT_LDS = gc.LDS_RING
LN_LDS = 139264
CNT_LDS = LN_LDS + 2*ln.LN_T
LDS_TOTAL = CNT_LDS + 64
S_WS, S_X, S_DBG, S_W1, S_W2 = 4, 6, 94, 96, 98
SPIN = 0x100000
S_TAG = 100
F_SEED = 255 * 256


def f32hex(x):
    return "0x%08x" % struct.unpack("<I", struct.pack("<f", x))[0]


def div6(a, d, r, x):
    a(f"s_mul_i32 s{d}, s{x}, 10923\ns_lshr_b32 s{d}, s{d}, 16\ns_mul_i32 s{r}, s{d}, 6\ns_sub_u32 s{r}, s{x}, s{r}")


def unpk(a, x, p):
    a(f"v_lshlrev_b32 v{x}, 16, v{p}\nv_and_b32 v{x+1}, 0xffff0000, v{p}")


def poll(a, tag, rs, vaddr, soff, target, sleep=1, mask=None):
    a(f"s_mov_b32 s61, {SPIN:#x}\nL_{tag}_poll:\nbuffer_load_dword v62, v{vaddr}, s[{rs}:{rs+3}], {soff} offen sc1")
    a(f"s_sub_u32 s61, s61, 1\ns_cbranch_scc1 L_{tag}_go\ns_waitcnt vmcnt(0)")
    if mask:
        a(f"v_and_b32 v62, {mask:#x}, v62")
    a(f"v_cmp_ne_u32 vcc, {target}, v62")
    a(f"s_cmp_eq_u64 vcc, 0\ns_cbranch_scc1 L_{tag}_go")
    if sleep:
        a(f"s_sleep {sleep}")
    a(f"s_branch L_{tag}_poll\nL_{tag}_go:")


def flags_srd(a, d):
    srd_off(a, d, S_WS, WS_FLG, FLG_BYTES)


def last_wave_signals(a, tag, cnt, rs, soff, word=None, second=None):
    a(f"v_mov_b32 v58, {cnt}\nv_mov_b32 v59, 1\nv_mov_b32 v61, 0\ns_mov_b64 exec, 1\nds_add_rtn_u32 v60, v58, v59\ns_waitcnt lgkmcnt(0)")
    a(f"v_readfirstlane_b32 s23, v60\ns_cmp_lg_u32 s23, 3\ns_cbranch_scc1 L_{tag}_notlast")
    if word:
        a(f"v_mov_b32 v59, {word}\nbuffer_store_dword v59, v61, s[{rs}:{rs+3}], {soff} offen sc1")
    else:
        if second:
            a(f"buffer_atomic_add v59, v61, s[{rs}:{rs+3}], {second} offen sc1")
        a(f"buffer_atomic_add v59, v61, s[{rs}:{rs+3}], {soff} offen sc1")
    a(f"L_{tag}_notlast:\ns_mov_b64 exec, -1")


def ln_local_wait(a, tag, cnt=CNT_LDS+4):
    a(f"v_mov_b32 v58, {cnt}\nL_{tag}:\ns_sleep 2\nds_read_b32 v60, v58\ns_waitcnt lgkmcnt(0)\nv_readfirstlane_b32 s23, v60\ns_cmp_lt_u32 s23, 4\ns_cbranch_scc1 L_{tag}")


def g_pause(a, tag, o):
    if not o["pause"]:
        return
    a(f"s_lshr_b32 s23, s2, 3\ns_mul_i32 s24, s23, 43\ns_lshr_b32 s24, s24, 9\ns_mul_i32 s24, s24, 12\ns_sub_u32 s23, s23, s24\ns_lshl_b32 s23, s23, 8\ns_add_u32 s23, s23, {F_G}")
    a(f"v_mov_b32 v61, 0\ns_mov_b32 s61, {SPIN:#x}\nL_{tag}_poll:\nbuffer_load_dword v62, v61, s[36:39], s23 offen sc1\ns_sub_u32 s61, s61, 1\ns_cbranch_scc1 L_{tag}_go")
    a(f"s_waitcnt vmcnt(0)\nv_readfirstlane_b32 s24, v62\ns_cmp_ge_u32 s24, {o['pause']}\ns_cbranch_scc1 L_{tag}_go\ns_sleep 8\ns_branch L_{tag}_poll\nL_{tag}_go:")


def wait_ln(a, tag, rs, o, base=F_LNW):
    a(f"v_mul_u32_u24 v61, {o['lnw']}, v1\ns_mov_b32 s61, {SPIN:#x}\nL_{tag}_poll:")
    if o["ln_lines"] and base == F_LNW:
        for k in range(4):
            a(f"s_mov_b32 s62, {F_LNW + k*64*o['lnw']}\nbuffer_load_dword v{180+k}, v61, s[{rs}:{rs+3}], s62 offen sc1")
    else:
        a(f"s_mov_b32 s62, {base}\nbuffer_load_dwordx4 v[180:183], v61, s[{rs}:{rs+3}], s62 offen sc1")
    a(f"s_sub_u32 s61, s61, 1\ns_cbranch_scc1 L_{tag}_go\ns_waitcnt vmcnt(0)")
    a(f"v_xor_b32 v180, s{S_TAG+1}, v180\nv_xor_b32 v181, s{S_TAG+1}, v181\nv_xor_b32 v182, s{S_TAG+1}, v182\nv_xor_b32 v183, s{S_TAG+1}, v183")
    a("v_or3_b32 v180, v180, v181, v182\nv_or_b32 v180, v180, v183\nv_cmp_ne_u32 vcc, 0, v180")
    a(f"s_cmp_eq_u64 vcc, 0\ns_cbranch_scc1 L_{tag}_go\ns_sleep {o['slp']}\ns_branch L_{tag}_poll\nL_{tag}_go:")


def tile1(a):
    a("s_and_b32 s12, s2, 7\ns_lshr_b32 s13, s2, 3\ns_and_b32 s14, s12, 1\ns_mul_i32 s14, s14, 3\ns_add_u32 s13, s13, s14")
    a("s_cmp_ge_u32 s13, 27\ns_cselect_b32 s14, 27, 0\ns_sub_u32 s13, s13, s14\ns_mul_i32 s12, s12, 27\ns_add_u32 s12, s12, s13")
    div6(a, 14, 15, 12)


def tile2(a):
    a("s_lshr_b32 s13, s2, 3")
    div6(a, 12, 15, 13)
    a("s_bfe_u32 s19, s2, 0x10002\ns_and_b32 s13, s2, 3\ns_lshl_b32 s14, s13, 2\ns_add_u32 s14, s14, s12")
    a("s_mul_i32 s13, s13, 9\ns_add_u32 s13, s13, 1\ns_lshr_b32 s13, s13, 1")
    a("s_lshl_b32 s16, s14, 7\ns_lshl_b32 s17, s19, 6\ns_add_u32 s16, s16, s17")


def block_jump(kind):
    cnt, base, dst, step = (54, 56, gc.S_W0, 128*4096) if kind == "w" else (55, 57, gc.S_ACT0, 2*73728)
    return [f"s_add_u32 s{cnt}, s{cnt}, 1", f"s_add_u32 s18, s{cnt}, s12", "s_and_b32 s18, s18, 3", f"s_cmp_lt_u32 s{cnt}, 4",
            f"s_cselect_b32 s18, s18, s{cnt}", "s_add_u32 s18, s18, s13", "s_cmp_ge_u32 s18, 18", "s_cselect_b32 s17, 18, 0",
            "s_sub_u32 s18, s18, s17", f"s_mul_i32 s18, s18, {step}", f"s_add_u32 s{dst}, s18, s{base}"]


def gelu_epilogue(a, rounds, rot):
    c1 = -2.0 * 0.7978845608028654 * 1.4426950408889634
    a(f"s_mov_b32 s48, {f32hex(c1*0.044715)}\ns_mov_b32 s49, s48\nv_mov_b32 v36, {f32hex(c1)}\nv_mov_b32 v37, v36")
    for nu in range(4):
        unpk(a, 20+4*nu, 12+2*nu); unpk(a, 22+4*nu, 13+2*nu)
    a(f"s_lshr_b32 s26, s20, 1\ns_mul_i32 s26, s26, {gc.SLOT}\ns_and_b32 s27, s20, 1\ns_mul_i32 s27, s27, 6144\ns_add_u32 s26, s26, s27\ns_add_u32 s26, s26, {gc.W_BYTES}\nv_add_u32 v38, s26, v7")
    B = 112
    for dl in range(3):
        for pi in range(2):
            src = [(gc.acc(2*pi + (k >> 1), dl) + 2*(k & 1), 20 + 4*(2*pi + (k >> 1)) + 2*(k & 1)) for k in range(4)]
            U = [B + 2*k for k in range(4)]; T = [B + 8 + 2*k for k in range(4)]; P = [B + 16 + k for k in range(4)]
            O = B + 20 + 4*((2*dl + pi) % 2)
            if rounds == 2:
                for k in range(4): a(f"v_cvt_pk_bf16_f32 v{P[k]}, v{src[k][0]}, v{src[k][0]+1}")
                for k in range(4): unpk(a, U[k], P[k])
                for k in range(4): a(f"v_pk_add_f32 {vr(U[k],2)}, {vr(U[k],2)}, {vr(src[k][1],2)}")
            else:
                for k in range(4): a(f"v_pk_add_f32 {vr(U[k],2)}, {vr(src[k][0],2)}, {vr(src[k][1],2)}")
            if rounds >= 1:
                for k in range(4): a(f"v_cvt_pk_bf16_f32 v{P[k]}, v{U[k]}, v{U[k]+1}")
                for k in range(4): unpk(a, U[k], P[k])
            for k in range(4): a(f"v_pk_mul_f32 {vr(T[k],2)}, {vr(U[k],2)}, {vr(U[k],2)}")
            for k in range(4): a(f"v_pk_fma_f32 {vr(T[k],2)}, {vr(T[k],2)}, s[48:49], v[36:37]")
            for k in range(4): a(f"v_pk_mul_f32 {vr(T[k],2)}, {vr(T[k],2)}, {vr(U[k],2)}")
            for k in range(4): a(f"v_exp_f32 v{T[k]}, v{T[k]}\nv_exp_f32 v{T[k]+1}, v{T[k]+1}")
            for k in range(4): a(f"v_pk_add_f32 {vr(T[k],2)}, {vr(T[k],2)}, 1.0 op_sel_hi:[1,0]")
            for k in range(4): a(f"v_rcp_f32 v{T[k]}, v{T[k]}\nv_rcp_f32 v{T[k]+1}, v{T[k]+1}")
            for k in range(4): a(f"v_pk_mul_f32 {vr(U[k],2)}, {vr(U[k],2)}, {vr(T[k],2)}")
            for k in range(4): a(f"v_cvt_pk_bf16_f32 v{O+k}, v{U[k]}, v{U[k]+1}")
            a(f"buffer_store_dwordx4 {vr(O,4)}, v7, s[44:47], s17 offen offset:{1024*pi} sc1")
            if rot:
                a(f"ds_write_b128 v38, {vr(O,4)} offset:{(2*dl + pi)*1024}")
        a("s_add_u32 s17, s17, 2048")


def read_tag(a):
    a(f"s_add_u32 s26, s{S_WS}, {WS_FLG + F_SEED:#x}\ns_addc_u32 s27, s{S_WS+1}, 0\ns_load_dword s{S_TAG+1}, s[26:27], 0")


def make_tag(a):
    a(f"s_mul_i32 s{S_TAG+1}, s{S_TAG+1}, 0x9e3779b1\ns_add_u32 s{S_TAG+1}, s{S_TAG+1}, 0x7f4a7c15\ns_andn2_b32 s{S_TAG}, s{S_TAG+1}, 0xff")


def compute_waves(a, o):
    a("s_waitcnt lgkmcnt(0)")
    ln.ln_issue(a, S_X, o['lnx'], 80 if o['dry'] else 10)
    read_tag(a)
    a(f"s_cmp_lg_u32 s20, 0\ns_cbranch_scc1 L_m_nz\nv_mov_b32 v58, {CNT_LDS}\nv_mov_b32 v60, 0\nv_mov_b32 v61, 0\nv_mov_b32 v62, 0\nv_mov_b32 v63, 0")
    a("ds_write_b128 v58, v[60:63]\nL_m_nz:")
    if o["early_bar"]:
        a("s_waitcnt lgkmcnt(0)\ns_barrier")
    a(f"s_load_dwordx2 s[38:39], s[0:1], {KA['b1']}\ns_load_dwordx8 s[80:87], s[0:1], {KA['lar']}\ns_load_dwordx4 s[88:91], s[0:1], {KA['ldt']}")
    ln.ln_body(a, S_WS, LN_LDS, CNT_LDS, "ln", not o["early_bar"], o["dry"])
    if not o["split_xn"]:
        ln.xn_stores(a, "ln")
    flags_srd(a, 40)
    make_tag(a)
    a("v_mov_b32 v61, 0\ns_cmp_lg_u32 s20, 3\ns_cbranch_scc1 L_m_nozero\ns_sub_u32 s23, s2, 28\ns_cmp_ge_u32 s23, 6\ns_cbranch_scc1 L_m_nozero")
    a("s_lshl_b32 s23, s2, 8\ns_mov_b64 exec, 1\nbuffer_store_dword v61, v61, s[40:43], s23 offen sc1\ns_mov_b64 exec, -1\nL_m_nozero:")
    if o["ln_lines"]:
        a(f"s_mul_i32 s24, s2, {o['lnw']}\ns_add_u32 s24, s24, {F_LNW}")
    else:
        a(f"s_and_b32 s24, s2, 63\ns_mul_i32 s24, s24, {o['lnw']}\ns_lshr_b32 s23, s2, 6\ns_lshl_b32 s23, s23, 2\ns_add_u32 s24, s24, s23\ns_add_u32 s24, s24, {F_LNW}")
    a("s_waitcnt vmcnt(0)\n; STAMP 1")
    last_wave_signals(a, "lnd", CNT_LDS + 4, 40, "s24", word=f"s{S_TAG+1}")
    a("s_lshr_b32 s29, s2, 3\ns_lshl_b32 s29, s29, 2\ns_add_u32 s29, s29, s20")
    srd(a, 32, S_W1, W_BYTES_TOTAL)
    if o["split_xn"]:
        ln.xn_stores(a, "ln")
        a(f"s_and_b32 s24, s2, 63\ns_mul_i32 s24, s24, {o['lnw']}\ns_lshr_b32 s23, s2, 6\ns_lshl_b32 s23, s23, 2\ns_add_u32 s24, s24, s23\ns_add_u32 s24, s24, {F_XNW}")
        if o["b_first"]:
            a("s_cmp_ge_u32 s2, 216\ns_cbranch_scc1 L_m_nob")
            w1_burst(a, 32, 29, 108, o["r1"]//4*5, o["nB"])
            a(f"s_waitcnt vmcnt({o['nB']})\ns_branch L_m_hadb\nL_m_nob:")
            a("s_sub_u32 s31, s2, 216\ns_lshl_b32 s31, s31, 2\ns_add_u32 s31, s31, s20\ns_mul_i32 s31, s31, 3\ns_mov_b32 s28, s24")
            cv.param_loads(a, 80, 88, 90)
            a("s_mov_b32 s24, s28\ns_waitcnt vmcnt(14)\nL_m_hadb:")
        else:
            a("s_waitcnt vmcnt(0)")
        last_wave_signals(a, "xnd", CNT_LDS + 12, 40, "s24", word=f"s{S_TAG+1}")
    a("s_cmp_ge_u32 s2, 216\ns_cbranch_scc1 L_m_conv")
    if not (o["split_xn"] and o["b_first"]):
        w1_burst(a, 32, 29, 108, o["r1"]//4*5, o["nB"])
    srd(a, 32, S_W2, W_BYTES_TOTAL)
    tile1(a)
    gc.lane_ids(a)
    gc.compute_setup(a, "A")
    srd(a, 8, 38, F*2)
    a(f"s_lshr_b32 s16, s20, 1\ns_lshl_b32 s17, s16, 7\ns_lshl_b32 s18, s14, 8\ns_add_u32 s17, s17, s18\nv_lshlrev_b32 v9, 3, v3")
    a("s_mov_b32 s22, s17")

    def b1_loads(a):
        for nu in range(4):
            a(f"buffer_load_dwordx2 {vr(12+2*nu,2)}, v9, s[8:11], s22 offen offset:{32*nu}")
    if not o["b1_late"]:
        b1_loads(a)
    for i in range(48):
        a(f"v_mov_b32 v{gc.V_ACC+i}, 0")
    srd_off(a, 44, S_WS, WS_G, G_BYTES)
    a("s_and_b32 s17, s20, 1\ns_mul_i32 s17, s17, 3\ns_mul_i32 s18, s15, 6\ns_add_u32 s17, s17, s18\ns_lshl_b32 s17, s17, 11")
    a("s_lshl_b32 s18, s14, 1\ns_add_u32 s18, s18, s16\ns_mul_i32 s18, s18, 73728\ns_add_u32 s17, s17, s18")
    a(f"s_mul_i32 s24, s15, 36\ns_add_u32 s24, s24, s14\ns_lshl_b32 s24, s24, 8\ns_add_u32 s24, s24, {F_GW}")
    a(f"s_load_dwordx4 s[52:55], s[0:1], {KA['b2']}")
    gc.compute_main(a, 32*o["rep1"], "A", False, "g1", last_barrier=True, st=(5, 2), tail_hook=b1_loads if o["b1_late"] else None)
    if o["rep1"] == 2:
        for i in range(48):
            a(f"v_mul_f32 v{gc.V_ACC+i}, 0.5, v{gc.V_ACC+i}")
    a("s_waitcnt vmcnt(0)")
    gelu_epilogue(a, o['rnd1'], o['rot'])
    a("s_cmp_lt_u32 s2, 192\ns_cbranch_scc1 L_m_g2\ns_waitcnt vmcnt(0)")
    last_wave_signals(a, "gd", CNT_LDS + 8, 40, "s24", word=f"s{S_TAG+1}")
    a("; STAMP 3\ns_branch L_m_conv1\nL_m_g2:")
    tile2(a)
    gc.compute_setup(a, "B", s_kh=19)
    srd(a, 32, S_X, X_BYTES); srd(a, 28, 52, S*2)
    a("s_lshr_b32 s17, s20, 1\ns_lshl_b32 s17, s17, 5\ns_add_u32 s17, s17, s16")
    a("s_mul_i32 s18, s15, 96\ns_and_b32 s26, s20, 1\ns_mul_i32 s26, s26, 48\ns_add_u32 s18, s18, s26")
    a("v_mul_u32_u24 v58, 1152, v2\nv_lshl_add_u32 v58, v3, 3, v58\nv_lshlrev_b32 v9, 1, v2")
    a("s_mul_i32 s56, s17, 1152\ns_lshl_b32 s26, s18, 1\ns_add_u32 s56, s56, s26\ns_add_u32 s57, s56, 18432\ns_lshl_b32 s26, s17, 1")
    a("s_mov_b32 s22, s26\nv_mov_b32 v39, v58")
    for i in range(48):
        a(f"v_mov_b32 v{gc.V_ACC+i}, 0")
    a("v_bfe_u32 v4, v1, 2, 2\nv_lshl_add_u32 v4, v3, 2, v4\nv_lshlrev_b32 v4, 7, v4\nv_and_b32 v5, 3, v1\nv_lshl_add_u32 v4, v5, 3, v4")
    a(f"s_and_b32 s26, s20, 1\ns_mul_i32 s26, s26, 6144\ns_lshr_b32 s27, s20, 1\ns_lshl_b32 s27, s27, 6\ns_add_u32 s26, s26, s27\ns_add_u32 s26, s26, {AT_LDS}\nv_add_u32 v59, s26, v4")
    a("v_mov_b32 v31, v59")
    a("s_xor_b32 s58, s2, 4\ns_lshl_b32 s26, s20, 12\ns_lshl_b32 s59, s58, 14\ns_add_u32 s59, s59, s26\ns_lshl_b32 s60, s2, 14\ns_add_u32 s60, s60, s26")
    assert o["xbf"]

    SN = 172
    NG = 4 if o["xbf"] else 8
    srd_off(a, 8, S_WS, WS_XCH, XCH_BYTES)

    def send_partials(a):
        for k in range(NG):
            for m in range(3):
                if o["xbf"]:
                    a(f"v_cvt_pk_bf16_f32 v{SN+4*k+m}, v{gc.V_ACC+24+6*k+2*m}, v{gc.V_ACC+25+6*k+2*m}")
                else:
                    a(f"v_mov_b32 v{SN+4*k+m}, v{gc.V_ACC+24+3*k+m}")
            a(f"v_mov_b32 v{SN+4*k+3}, s{S_TAG+1}")
            a(f"buffer_store_dwordx4 {vr(SN+4*k,4)}, v7, s[8:11], s59 offen sc1\ns_add_u32 s59, s59, 1024")

    def x_loads(a):
        for nu in range(2):
            for dl in range(3):
                a(f"buffer_load_dwordx2 {vr(10+2*(3*nu+dl),2)}, v39, s[32:35], s{56+nu} offen offset:{32*dl}{o['xnt']}")
            a(f"buffer_load_ushort v{22+nu}, v9, s[28:31], s22 offen offset:{32*nu}")

    def publish_g(a):
        a("s_waitcnt vmcnt(0)")
        last_wave_signals(a, "gd2", CNT_LDS + 8, 40, "s24", word=f"s{S_TAG+1}")
        a("; STAMP 3\n; SWAIT")
        if not o["x_late"]:
            x_loads(a)

    if o["late_sig"]:
        gc.compute_main(a, 36, "B", True, "g2", st=(5, 4), first_stage1=publish_g)
    else:
        publish_g(a)
        gc.compute_main(a, 36*o["rep2"], "B", True, "g2", st=(5, 4), tail_hook=x_loads if o["x_late"] == "tail" else None,
                        split_tail=send_partials if o["xfirst"] else None)
        if o["rep2"] == 2:
            for i in range(48):
                a(f"v_mul_f32 v{gc.V_ACC+i}, 0.5, v{gc.V_ACC+i}")
    srd(a, 44, 54, X_BYTES)
    a("v_mov_b32 v58, v39\nv_mov_b32 v59, v31")
    a("; STAMP 5")
    if not o["xfirst"]:
        send_partials(a)
    if o["x_late"] is True:
        x_loads(a)
    a("s_barrier")
    AR, PF = 112, 124
    for nu in range(2):
        for dl in range(3):
            a(f"ds_read_b64_tr_b16 {vr(AR+2*(3*nu+dl),2)}, v59 offset:{2048*dl + 32*nu}")
    a(f"s_waitcnt vmcnt({0 if o['x_late'] is True else NG})\nv_lshlrev_b32 v22, 16, v22\nv_lshlrev_b32 v24, 16, v23\ns_waitcnt lgkmcnt(0)")
    for t in range(6):
        for h in range(2):
            unpk(a, 26, 10+2*t+h); unpk(a, 28, AR+2*t+h)
            if o["rnd2"]:
                a("v_pk_add_f32 v[26:27], v[26:27], v[28:29]\nv_cvt_pk_bf16_f32 v30, v26, v27")
                unpk(a, PF+4*t+2*h, 30)
            else:
                b = gc.V_ACC + 4*t + 2*h
                a(f"v_pk_add_f32 v[26:27], v[26:27], v[28:29]\nv_pk_add_f32 {vr(b,2)}, {vr(b,2)}, {vr(22+2*(t//3),2)} op_sel_hi:[1,0]")
                a(f"v_pk_add_f32 {vr(b,2)}, {vr(b,2)}, v[26:27]")
    RX = 204
    if o["xwait"]:
        a("s_waitcnt vmcnt(0)")
    a(f"s_mov_b32 s61, {SPIN:#x}\ns_add_u32 s62, s60, 4096\nL_xch_poll:")
    for k in range(NG):
        a(f"buffer_load_dwordx4 {vr(RX+4*k,4)}, v7, s[8:11], s{60 + 2*(k >> 2)} offen offset:{1024*(k & 3)} sc1")
    a(f"s_sub_u32 s61, s61, 1\ns_cbranch_scc1 L_xch_go\ns_waitcnt vmcnt(0)\nv_xor_b32 v4, s{S_TAG+1}, v{RX+3}")
    for k in range(1, NG):
        a(f"v_xor_b32 v5, s{S_TAG+1}, v{RX+4*k+3}\nv_or_b32 v4, v4, v5")
    a("v_cmp_ne_u32 vcc, 0, v4\ns_cmp_eq_u64 vcc, 0\ns_cbranch_scc1 L_xch_go")
    if o["slpx"]:
        a(f"s_sleep {o['slpx']}")
    a("s_branch L_xch_poll\nL_xch_go:")
    for t in range(6):
        nu, dl = divmod(t, 3)
        b, p = gc.V_ACC + 4*t, PF + 4*t
        if o["xbf"]:
            for h in range(2):
                k, m = divmod(2*t + h, 3)
                unpk(a, 26+2*h, RX+4*k+m)
            for h in range(2): a(f"v_pk_add_f32 {vr(b+2*h,2)}, {vr(b+2*h,2)}, {vr(26+2*h,2)}")
        else:
            for e in range(4):
                k, m = divmod(4*t + e, 3)
                a(f"v_add_f32 v{b+e}, v{b+e}, v{RX+4*k+m}")
        if o['rnd2']:
            for h in range(2): a(f"v_cvt_pk_bf16_f32 v{26+h}, v{b+2*h}, v{b+2*h+1}")
            for h in range(2): unpk(a, b+2*h, 26+h)
            for h in range(2): a(f"v_pk_add_f32 {vr(b+2*h,2)}, {vr(b+2*h,2)}, {vr(22+2*nu,2)} op_sel_hi:[1,0]")
            for h in range(2): a(f"v_cvt_pk_bf16_f32 v{26+h}, v{b+2*h}, v{b+2*h+1}")
            for h in range(2): unpk(a, b+2*h, 26+h)
            for h in range(2): a(f"v_pk_add_f32 {vr(b+2*h,2)}, {vr(b+2*h,2)}, {vr(p+2*h,2)}")
        for h in range(2): a(f"v_cvt_pk_bf16_f32 v{10+2*t+h}, v{b+2*h}, v{b+2*h+1}")
        a(f"buffer_store_dwordx2 {vr(10+2*t,2)}, v58, s[44:47], s{56+nu} offen offset:{32*dl}{o['ont']}")
    a("s_endpgm")
    a("L_m_conv1:\ns_mov_b32 s30, 1\ns_sub_u32 s31, s2, 72\ns_lshl_b32 s31, s31, 2\ns_add_u32 s31, s31, s20")
    cv.param_loads(a, 80, 88, 90)
    a("s_branch L_m_conv2\nL_m_conv:\ns_mov_b32 s30, 3\nL_m_conv2:")
    a("s_mul_i32 s29, s31, 683\ns_lshr_b32 s29, s29, 16")
    assert o["split_xn"] and o["b_first"]

    def signal(a):
        a("s_lshl_b32 s36, s29, 8")
        a(f"s_add_u32 s36, s36, {F_CONV}\nv_mov_b32 v4, 1\nv_mov_b32 v5, 0\ns_mov_b64 exec, 1\nbuffer_atomic_add v4, v5, s[8:11], s36 offen sc1")
    flags_srd(a, 8)
    cv.conv_role(a, "cv", S_WS, lambda a, t: wait_ln(a, "cvln" + t, 8, o, F_XNW if o["split_xn"] else F_LNW), signal)
    a("s_endpgm")


def fifth_wave(a, o):
    if o["prio"]:
        a(f"s_setprio {o['prio']}")
    a(f"s_load_dwordx2 s[48:49], s[0:1], {KA['out']}\ns_load_dwordx8 s[80:87], s[0:1], {KA['lar']}\ns_load_dwordx4 s[52:55], s[0:1], {KA['ldt']}")
    a(f"s_load_dwordx2 s[56:57], s[0:1], {KA['b1']}\ns_load_dwordx2 s[58:59], s[0:1], {KA['b2']}")
    a("s_waitcnt lgkmcnt(0)")
    flags_srd(a, 36)
    read_tag(a)
    if o["tlb"] >= 4:
        srd(a, 8, S_WS, WS_G); srd(a, 16, S_W1, 5 << 20)
        a("v_lshlrev_b32 v4, 21, v1\nbuffer_load_dword v100, v4, s[8:11], 0 offen sc1\nbuffer_load_dword v104, v4, s[16:19], 0 offen")
        srd(a, 8, 56, 4)
        a("buffer_load_dword v105, v4, s[8:11], 0 offen")
    elif o["tlb"]:
        srd(a, 8, S_WS, WS_END); srd(a, 16, S_W2, W_BYTES_TOTAL)
        a("v_lshlrev_b32 v4, 20, v1\nbuffer_load_dword v100, v4, s[8:11], 0 offen sc1\nbuffer_load_dword v101, v4, s[16:19], 0 offen")
        srd(a, 8, 48, X_BYTES); srd(a, 16, S_W1, W_BYTES_TOTAL)
        a("buffer_load_dword v102, v4, s[8:11], 0 offen")
        if o["tlb"] >= 2:
            a("buffer_load_dword v104, v4, s[16:19], 0 offen")
            small = [80, 82, 84, 86, 52, 54, 56, 58]
            for k, p in enumerate(small):
                if o["tlb"] == 3:
                    a(f"s_bfe_u32 s23, s2, 0x30003\ns_cmp_lg_u32 s23, {k}\ns_cbranch_scc1 L_m_tl{k}")
                if k < 6 or not o["bias_pf"]:
                    srd(a, 8, p, 4)
                    a(f"buffer_load_dword v{105+k}, v4, s[8:11], 0 offen")
                else:
                    srd(a, 8, p, F*2 if k == 6 else S*2)
                    a(f"v_lshlrev_b32 v5, 7, v1\nbuffer_load_dword v{105+k}, v5, s[8:11], 0 offen")
                    if k == 6:
                        a("s_mov_b32 s23, 8192\nbuffer_load_dword v113, v5, s[8:11], s23 offen")
                a(f"L_m_tl{k}:")
    if o["touch"]:
        todo = [F_LNW + k*64*o["lnw"] for k in range(4 if o["ln_lines"] else 1)] + [F_XNW] + ([F_REL] if o["agg"] else []) + ([F_CONV] if o["touch_c"] else [])
        for k, off in enumerate(todo):
            a(f"s_cmp_lg_u32 s2, {5*k if k < 2 else 4+k}\ns_cbranch_scc1 L_m_nt{k}\nv_mul_u32_u24 v5, {o['lnw']}, v1\ns_mov_b32 s23, {off}")
            if off == F_CONV:
                a(f"v_min_u32 v5, {5*o['lnw']}, v5")
            a(f"buffer_load_dword v103, v5, s[36:39], s23 offen\nL_m_nt{k}:")
    if o["touch_g"]:
        a(f"s_sub_u32 s23, s2, 1\ns_cmp_ge_u32 s23, 4\ns_cbranch_scc1 L_m_notouch2\nv_lshlrev_b32 v5, 8, v1\ns_lshl_b32 s23, s23, 14\ns_add_u32 s23, s23, {F_GW}")
        a("buffer_load_dword v103, v5, s[36:39], s23 offen\nL_m_notouch2:")
    srd(a, gc.SRD_W, S_W1, W_BYTES_TOTAL)
    if o["early_bar"]:
        a("s_barrier")
    a("s_lshr_b32 s30, s2, 3")
    if o["code_pf"]:
        a("s_getpc_b64 s[12:13]\nL_m_pc:\ns_sub_u32 s12, s12, L_m_pc-L_m_base\ns_subb_u32 s13, s13, 0")
        a("s_mov_b32 s14, L_m_last-L_m_base\ns_mov_b32 s15, 0x20000\nv_lshlrev_b32 v4, 4, v1\ns_lshl_b32 s23, s30, 10")
        for k in range(o["code_n"]):
            a("buffer_load_dwordx4 v[96:99], v4, s[12:15], s23 offen\ns_add_u32 s23, s23, 32768")
    w1_stream(a, "m0", gc.SRD_W, 30, 32, o["r0"], o["r1"], o["win1"])
    if o["extra23"]:
        a("s_and_b32 s23, s2, 6\ns_cmp_lg_u32 s23, 2\ns_cbranch_scc1 L_m_nox23")
        w1_stream(a, "m23", gc.SRD_W, 30, 32, 2048 - o["extra23"], 2048, o["win1"])
        a("L_m_nox23:")
    a("s_waitcnt lgkmcnt(0)")
    make_tag(a)
    if not o["early_bar"]:
        a("s_barrier")
    a("; STAMP 0\ns_cmp_ge_u32 s2, 216\ns_cbranch_scc1 L_m_helper")
    tile1(a)
    gc.lane_ids(a)
    a(f"s_mul_i32 s{gc.S_ACT0}, s15, 12288\ns_lshl_b32 s{gc.S_W0}, s14, 8")
    gc.loader_setup(a, 0, 9216, "A")
    srd_off(a, gc.SRD_ACT, S_WS, WS_HT, HT_BYTES)
    a("s_lshr_b32 s60, s2, 3\ns_mul_i32 s60, s60, 10923\ns_lshr_b32 s60, s60, 16")
    ln_local_wait(a, "lw1")
    a("; STAMP 0")
    gc.w_prefill(a, range(4), 0, 9216)
    a("; STAMP 1")
    if o["agg"]:
        a(f"s_and_b32 s23, s2, 7\ns_lshl_b32 s23, s23, 8\ns_add_u32 s23, s23, {F_REL}\ns_cmp_ge_u32 s2, 8\ns_cbranch_scc1 L_m_follow")
        wait_ln(a, "l1", 36, dict(o, slp=o["slpa"]))
        a(f"v_mov_b32 v4, s{S_TAG+1}\nv_mov_b32 v5, 0\ns_mov_b64 exec, 1\nbuffer_store_dword v4, v5, s[36:39], s23 offen sc1\ns_mov_b64 exec, -1\ns_branch L_l1f_go\nL_m_follow:\nv_mov_b32 v61, 0")
        poll(a, "l1f", 36, 61, "s23", f"s{S_TAG+1}", sleep=o["slp"])
    else:
        wait_ln(a, "l1", 36, o)
    a(f"; STAMP 2\ns_cmp_lg_u32 s2, 0\ns_cbranch_scc1 L_m_noseed\nv_mov_b32 v4, s{S_TAG+1}\nv_mov_b32 v5, {F_SEED}\ns_mov_b64 exec, 1")
    a("buffer_store_dword v4, v5, s[36:39], 0 offen sc1\ns_mov_b64 exec, -1\nL_m_noseed:")
    gc.loader_after_prefill(a, 32*o["rep1"], 0, 9216, "g1", o["aflags"], tail=lambda a: None, wrap=(2048*9216, 32*73728) if o["rep1"] == 2 else None,
                            s_group=60 if o["lead1"] else None)
    srd(a, gc.SRD_W, S_W2, W_BYTES_TOTAL)
    a("s_cmp_lt_u32 s2, 192\ns_cbranch_scc1 L_m_l2")
    a("s_waitcnt vmcnt(28)\ns_barrier\ns_waitcnt vmcnt(0)\ns_barrier\ns_barrier\ns_sub_u32 s30, s2, 152\ns_lshr_b32 s30, s30, 3")
    ln_local_wait(a, "lw3", CNT_LDS+8)
    if o["x_pf"] == "early":
        srd(a, 8, S_X, X_BYTES); a("s_sub_u32 s31, s30, 5\ns_mul_i32 s31, s31, 3")
        for k in range(3):
            if k == 2:
                a("s_cmp_eq_u32 s31, 8\ns_cbranch_scc1 L_m_nox")
            x_stream(a, f"xe{k}", 8, 31)
            a("s_add_u32 s31, s31, 1")
        a("L_m_nox:")
    g_pause(a, "gp3", o)
    w2_stream(a, "m3", gc.SRD_W, 30, 8, o["r2"] + 96*o["nC"], 2304, o["win3"])
    if o["x_pf"] is True:
        srd(a, 8, S_X, X_BYTES); x_stream(a, "x3", 8, 30)
    a("s_endpgm\nL_m_l2:")
    tile2(a)
    a(f"s_mul_i32 s57, s15, 12288\ns_mul_i32 s18, s19, {36*73728}\ns_add_u32 s57, s57, s18")
    a(f"s_lshl_b32 s56, s14, 8\ns_mul_i32 s18, s19, {HALF2}\ns_add_u32 s56, s56, s18\ns_mov_b32 s54, -1\ns_mov_b32 s55, -1")
    jump = block_jump if o["rot"] else None
    if o["rot"]:
        a.extend(block_jump("w") + block_jump("a"))
    else:
        a(f"s_mov_b32 s{gc.S_W0}, s56\ns_mov_b32 s{gc.S_ACT0}, s57")
    gc.loader_setup(a, 0, 4096, "B")
    srd_off(a, gc.SRD_ACT, S_WS, WS_G, G_BYTES)
    e2 = o["early2"]
    for j, vm in enumerate((28, 0, None)):
        if j < e2:
            gc.w_prefill(a, [j], 0, 4096, jump)
        if vm is not None:
            a(f"s_waitcnt vmcnt({vm + 16*min(j+1, e2)})")
        a("s_barrier")
    a("; STAMP 5")
    gc.w_prefill(a, range(min(e2, 3), 4), 0, 4096, jump)
    a("v_mov_b32 v61, 0\n; STAMP 3")

    def wait_slot(a):
        a(f"s_mul_i32 s23, s15, 36\ns_mul_i32 s24, s19, 18\ns_add_u32 s23, s23, s24\ns_lshl_b32 s23, s23, 8\ns_add_u32 s23, s23, {F_GW}")
        a("v_and_b32 v60, 3, v1\nv_add_u32 v60, s13, v60\nv_lshlrev_b32 v60, 8, v60")
        poll(a, "l2a", 36, 60, "s23", f"s{S_TAG+1}")
        a("; STAMP 4\nv_min_u32 v60, 17, v1\nv_lshlrev_b32 v60, 8, v60\ns_mov_b32 s53, s23")

    def wait_half(a):
        poll(a, "l2b", 36, 60, "s53", f"s{S_TAG+1}", sleep=o["slpg"])

    def at_dma(a):
        for e in range(12):
            a(f"s_mov_b32 m0, {AT_LDS + 1024*e}\nbuffer_load_dwordx4 v8, s[48:51], s26 offen sc1 lds\ns_add_u32 s26, s26, 32768")

    def at_early(a):
        srd_off(a, 48, S_WS, WS_AT, AT_BYTES)
        a(f"s_lshl_b32 s23, s15, 8\ns_add_u32 s23, s23, {F_CONV}\nbuffer_load_dword v62, v61, s[36:39], s23 offen sc1")
        a("v_lshrrev_b32 v8, 3, v1\nv_lshlrev_b32 v8, 12, v8\nv_and_b32 v9, 7, v1\nv_lshl_add_u32 v8, v9, 4, v8")
        a(f"s_mul_i32 s26, s15, {96*4096}\ns_lshl_b32 s27, s16, 1\ns_add_u32 s26, s26, s27")
        a("s_cmp_eq_u32 s15, 5\ns_cselect_b32 s24, 96, 32\ns_waitcnt vmcnt(0)\nv_readfirstlane_b32 s27, v62")
        a("s_cmp_lg_u32 s27, s24\ns_cbranch_scc1 L_at_skip")
        at_dma(a)
        a("L_at_skip:")
    if o["rot"]:
        gc.loader_after_prefill(a, 36, 0, 4096, "g2", o["aflags"], before_last=at_early, jump=block_jump, wait2=wait_slot, wait8=wait_half)
    else:
        ln_local_wait(a, "lw4", CNT_LDS+8)
        a(f"s_mul_i32 s53, s15, 36\ns_mul_i32 s24, s19, 18\ns_add_u32 s53, s53, s24\ns_lshl_b32 s53, s53, 8\ns_add_u32 s53, s53, {F_GW}")
        a("v_min_u32 v60, 17, v1\nv_lshlrev_b32 v60, 8, v60")
        wait_half(a)
        a("; STAMP 4")
        gc.loader_after_prefill(a, 36*o["rep2"], 0, 4096, "g2", o["aflags"], before_last=at_early, wrap=(HALF2, 36*73728) if o["rep2"] == 2 else None,
                                s_group=60 if o["lead2"] else None)
    a("s_cmp_eq_u32 s27, s24\ns_cbranch_scc1 L_at_done")
    poll(a, "at", 36, 61, "s23", "s24")
    at_dma(a)
    a("L_at_done:\ns_waitcnt vmcnt(0)\ns_barrier\ns_endpgm")
    a("L_m_helper:\ns_sub_u32 s30, s2, 216\ns_lshr_b32 s30, s30, 3")
    ln_local_wait(a, "lw2", CNT_LDS + (12 if o["split_xn"] and not o["h_early"] else 4))
    if o["tlb"] >= 4:
        M2 = 2 << 20
        items = [(S_W1, k*M2) for k in range(3, 9)] + [(S_W1, W_BYTES_TOTAL - 4)] + [(p, 0) for p in (80, 82, 84, 86, 52, 54)]
        items += [(S_WS, k*M2) for k in range(WS_G//M2 + 1, (WS_END - 1)//M2 + 1)] + [(S_W2, k*M2) for k in range(9)] + [(S_W2, W_BYTES_TOTAL - 4)]
        items += [(48, 0), (48, X_BYTES - 4), (58, 0)]
        for h in range(5):
            a(f"s_cmp_lg_u32 s30, {h}\ns_cbranch_scc1 L_m_st{h}")
            for k, (p, off) in enumerate(items[h::5]):
                a(f"s_add_u32 s8, s{p}, {off:#x}\ns_addc_u32 s9, s{p+1}, 0\ns_load_dword s{12+k}, s[8:9], 0")
            a(f"L_m_st{h}:")
    if o["b1_late"]:
        srd(a, 8, 56, F*2); srd(a, 12, 58, S*2)
        a("v_lshlrev_b32 v5, 7, v1\ns_mov_b32 s23, 8192\nbuffer_load_dword v105, v5, s[8:11], 0 offen\nbuffer_load_dword v106, v5, s[8:11], s23 offen\nbuffer_load_dword v107, v5, s[12:15], 0 offen")
    w1_stream(a, "m1", gc.SRD_W, 30, 5, o["r1"] + 108*o["nB"]//5*4, 2048, o["win2"], short23=o["extra23"])
    a("; STAMP 1")
    srd(a, gc.SRD_W, S_W2, W_BYTES_TOTAL)
    if o["rot"]:
        w2_head(a, "mh", gc.SRD_W, 30, 5, o["win2"])
    w2_stream(a, "m2", gc.SRD_W, 30, 5, 512 if o["rot"] else o["r20"], o["r2"], o["win2"])
    a("; STAMP 2")
    g_pause(a, "gp4", o)
    w2_stream(a, "m4", gc.SRD_W, 30, 8, o["r2"] + 96*o["nC"], 2304, o["win3"])
    if o["x_pf"] is True:
        srd(a, 8, S_X, X_BYTES); x_stream(a, "x4", 8, 30)


def mega(a, name, **opt):
    o = dict(touch_c=True, xfirst=False, code_n=2, unc=False, unl=False, lead1=False, lead2=False, b_first=True, h_early=True, agg=False, slpa=0, split_xn=True, slpg=1, slpx=0, lead=7, dry=False, b1_late=False, lnx=' nt', bias_pf=False, touch_g=True, xwait=True, early_bar=False, extra23=0, r0=0, r20=0, rep1=1, rep2=1, uflags='', rot=False, x_pf=True, ln_lines=False, x_late='tail', late_sig=False, pause=0, xbf=True, rnd1=0, rnd2=0, prio=0, lnw=256, slp=4, touch=True, tlb=4, early2=3, xnt='', ont='', prefill_late=True, r1=384, nB=2, r2=400, nC=0, win1=20, win2=56, win3=56, aflags=" sc1", code_pf=9)
    o.update(opt)
    prefetch.ROT = o["rot"]
    cv.UFLAGS = o["uflags"]
    gc.LEAD = o["lead"]
    gc.UNROLL_C, gc.UNROLL_L = o["unc"], o["unl"]
    a(f".globl {name}\n.p2align 8\n.type {name},@function\n{name}:\nL_m_base:")
    a("s_cmp_ge_u32 s2, 256\ns_cbranch_scc1 L_m_end")
    a(f"s_load_dwordx2 s[{S_X}:{S_X+1}], s[0:1], {KA['x']}\ns_load_dwordx2 s[{S_WS}:{S_WS+1}], s[0:1], {KA['ws']}")
    a(f"s_load_dwordx2 s[{S_W1}:{S_W1+1}], s[0:1], {KA['w1']}\ns_load_dwordx2 s[{S_W2}:{S_W2+1}], s[0:1], {KA['w2']}")
    a("v_lshrrev_b32 v1, 6, v0\nv_readfirstlane_b32 s20, v1\nv_and_b32 v1, 63, v0")
    a("s_cmp_eq_u32 s20, 4\ns_cbranch_scc1 L_m_w4")
    compute_waves(a, o)
    a("L_m_w4:")
    fifth_wave(a, o)
    a("L_m_end:\ns_endpgm\nL_m_last:")


def warm_kernel(a, name, rows, w2rows, main, window=63):
    a(f".globl {name}\n.p2align 8\n.type {name},@function\n{name}:")
    a("s_cmp_ge_u32 s2, 256\ns_cbranch_scc1 L_pre_end")
    if rows >= 0:
        a(f"s_load_dwordx2 s[4:5], s[0:1], {KA['ws']}\ns_load_dwordx2 s[6:7], s[0:1], {KA['x']}\ns_load_dwordx2 s[20:21], s[0:1], {KA['w1']}")
        a(f"s_load_dwordx2 s[22:23], s[0:1], {KA['w2']}\ns_load_dwordx2 s[24:25], s[0:1], {KA['out']}")
        a("v_and_b32 v1, 63, v0\ns_lshr_b32 s30, s2, 3\nv_lshlrev_b32 v4, 20, v1\ns_waitcnt lgkmcnt(0)")
        srd(a, 8, 4, WS_FLG + FLG_BYTES); srd(a, 12, 6, X_BYTES); srd(a, 16, 22, W_BYTES_TOTAL); srd(a, 32, 20, W_BYTES_TOTAL); srd(a, 48, 24, X_BYTES)
        for k, rs in enumerate((8, 12, 16, 48)):
            a(f"buffer_load_dword v{100+k}, v4, s[{rs}:{rs+3}], 0 offen sc1")
        a(f"s_getpc_b64 s[12:13]\nL_pre_pc:\ns_sub_u32 s12, s12, L_pre_pc-L_m_base\ns_subb_u32 s13, s13, 0")
        a("s_mov_b32 s14, L_m_last-L_m_base\ns_mov_b32 s15, 0x20000\nv_lshlrev_b32 v4, 4, v1\ns_lshl_b32 s23, s30, 10")
        for k in range(o["code_n"]):
            a("buffer_load_dwordx4 v[96:99], v4, s[12:15], s23 offen\ns_add_u32 s23, s23, 32768")
        w1_stream(a, "pre", 32, 30, 32, 0, rows, window)
        w2_stream(a, "pre", 16, 30, 32, 0, w2rows, window)
    a("L_pre_end:\ns_endpgm")
```

```python
from asmlib import *

SLOT = 28672
W_BYTES = 16384
NSLOT = 4
LDS_RING = SLOT * NSLOT

V_ACC = 64
V_SET = (112, 140)
V_DW = 40
V_DA = 44
V_RW = 48
V_RA = 56

S_WAVE = 20
S_ACT0 = 21
S_W0 = 22
S_CNT = 25
SRD_ACT = 28
SRD_W = 32
SCHED = 0
UNROLL_C = False
UNROLL_L = False
LEAD = 3


def acc(nu, dl):
    return V_ACC + 4 * (nu * 3 + dl)


def wfrag(s, nu):
    return V_SET[s] + 4 * nu


def afrag(s, dl):
    return V_SET[s] + 16 + 4 * dl


def lane_ids(a):
    a("v_and_b32 v1, 63, v0\nv_and_b32 v2, 15, v1\nv_lshrrev_b32 v3, 4, v1\nv_lshlrev_b32 v7, 4, v1")


def loader_setup(a, dt_stride, w_stride, kmap):
    a(f"v_mul_u32_u24 v4, {w_stride}, v3\nv_lshlrev_b32 v5, 1, v3\nv_xor_b32 v5, v5, v2")
    a("v_lshl_add_u32 v6, v5, 4, v4\nv_xor_b32 v5, 8, v5\nv_lshl_add_u32 v8, v5, 4, v4")
    for e in range(4):
        hi = (e >> 1) & 1 if kmap == "A" else e & 1
        a(f"v_add_u32 v{V_DW+e}, {e*(4*w_stride - 1024)}, v{8 if hi else 6}")
    if dt_stride:
        for e in range(4):
            a(f"v_add_u32 v{V_DA+e}, {(e >> 1)*(dt_stride - 2048)}, v7")


def compute_setup(a, kmap, s_kh=None):
    a("v_bfe_u32 v4, v1, 2, 2")
    if kmap == "A":
        a("v_lshl_add_u32 v5, v3, 3, v4\nv_and_b32 v6, 1, v3\nv_lshl_add_u32 v6, v6, 2, v4")
    else:
        a("v_lshl_add_u32 v5, v3, 2, v4\nv_and_b32 v6, 7, v5")
    a("v_lshlrev_b32 v5, 8, v5\nv_and_b32 v8, 3, v1\nv_lshl_add_u32 v5, v8, 3, v5")
    if s_kh is None:
        a(f"s_lshr_b32 s26, s{S_WAVE}, 1\ns_lshl_b32 s26, s26, 2")
    else:
        a(f"s_and_b32 s26, s{S_WAVE}, 2\ns_lshl_b32 s27, s{s_kh}, 2\ns_add_u32 s26, s26, s27")
    for nu in range(4):
        if s_kh is None:
            a(f"s_add_u32 s27, s26, {nu}")
        else:
            a(f"s_add_u32 s27, s26, {nu & 1}\ns_xor_b32 s27, s27, {4*(nu >> 1)}")
        a(f"v_xor_b32 v8, s27, v6\nv_lshl_add_u32 v{V_RW+nu}, v8, 5, v5\nv_add_u32 v{V_RW+4+nu}, {2*SLOT}, v{V_RW+nu}")
    a(f"s_and_b32 s26, s{S_WAVE}, 1\ns_mul_i32 s26, s26, 6144\ns_add_u32 s26, s26, {W_BYTES}")
    a(f"v_add_u32 v{V_RA}, s26, v7\nv_add_u32 v{V_RA+1}, {2*SLOT}, v{V_RA}")


def dma_groups(slot, dt_stride, w_stride, aflags="", wflags="", jump=None):
    out = []
    for kind, E in (("a", 0), ("w", 0), ("w", 1), ("a", 1), ("w", 2), ("a", 2), ("w", 3)):
        if kind == "w":
            g = [f"s_mov_b32 m0, {slot*SLOT + 4096*E}"]
            g += [f"buffer_load_dwordx4 v{V_DW+e}, s[{SRD_W}:{SRD_W+3}], s{S_W0} offen offset:{1024*e}{wflags} lds" for e in range(4)]
            g += [f"s_add_u32 s{S_W0}, s{S_W0}, {16*w_stride}"]
        elif not dt_stride:
            g = [f"s_mov_b32 m0, {slot*SLOT + W_BYTES + 4096*E}"]
            g += [f"buffer_load_dwordx4 v7, s[{SRD_ACT}:{SRD_ACT+3}], s{S_ACT0} offen offset:{1024*e}{aflags} lds" for e in range(4)]
            g += [f"s_add_u32 s{S_ACT0}, s{S_ACT0}, {4096 if E < 2 else 36*2048 - 8192}"]
        else:
            g = [f"s_mov_b32 m0, {slot*SLOT + W_BYTES + 4096*E}"]
            g += [f"buffer_load_dwordx4 v{V_DA+e}, s[{SRD_ACT}:{SRD_ACT+3}], s{S_ACT0} offen offset:{1024*e}{aflags} lds" for e in range(4)]
            g += [f"s_add_u32 s{S_ACT0}, s{S_ACT0}, {2*dt_stride}" if E < 2 else f"s_sub_u32 s{S_ACT0}, s{S_ACT0}, {4*dt_stride - 2048}"]
        if jump and slot % 2 == 1 and E == (3 if kind == "w" else 2):
            g = g[:-1] + jump(kind)
        out.append(g)
    return out


def loader_main(a, nstages, dt_stride, w_stride, tag, aflags="", wflags="", before_last=None, tail=None):
    assert nstages % 4 == 0
    G = lambda j: dma_groups(j % NSLOT, dt_stride, w_stride, aflags, wflags)
    flat = lambda gs: [x for g in gs for x in g]
    vm = 28 + 4*LEAD
    a.extend(flat(G(0)) + flat(G(1)[:LEAD]))
    a(f"s_waitcnt vmcnt({4*LEAD})\ns_barrier")
    a.extend(flat(G(1)[LEAD:]) + flat(G(2)) + flat(G(3)[:LEAD]))
    a(f"s_waitcnt vmcnt({vm})\ns_barrier")
    a.extend(flat(G(3)[LEAD:]))
    a(f"s_mov_b32 s{S_CNT}, {nstages//4 - 1}\nL_{tag}_lloop:")
    for slot in range(4):
        if s_group is not None:
            assert LEAD == 7
            W = [x for g in G(slot) if f"s[{SRD_W}:" in g[1] for x in g]
            a(f"s_cmp_eq_u32 s{s_group}, {slot}\ns_cbranch_scc1 L_{tag}_lead{slot}")
            a.extend(W + A(slot))
            a(f"s_branch L_{tag}_join{slot}\nL_{tag}_lead{slot}:")
            a.extend(A(slot) + W)
            a(f"L_{tag}_join{slot}:\ns_waitcnt vmcnt({vm})\ns_barrier")
            continue
        a.extend(flat(G(slot)[:LEAD]))
        a(f"s_waitcnt vmcnt({vm})\ns_barrier")
        a.extend(flat(G(slot)[LEAD:]))
    a(f"s_sub_u32 s{S_CNT}, s{S_CNT}, 1\ns_cmp_lg_u32 s{S_CNT}, 0\ns_cbranch_scc1 L_{tag}_lloop")
    if tail:
        tail(a)
        return
    a("s_waitcnt vmcnt(28)\ns_barrier")
    if before_last:
        before_last(a)
    else:
        a("s_waitcnt vmcnt(0)")
    a("s_barrier")


def reads(s, slot, ks, kmap):
    win, so = slot >> 1, (slot & 1) * SLOT
    hoff = 4 * 256 if kmap == "A" else 16 * 256
    ra = lambda dl: f"ds_read_b128 {vr(afrag(s, dl), 4)}, v{V_RA+win} offset:{so + (2*dl + ks)*1024}"
    rw = lambda nu, h: f"ds_read_b64_tr_b16 {vr(wfrag(s, nu)+2*h, 2)}, v{V_RW+4*win+nu} offset:{so + ks*8192 + h*hoff}"
    return [ra(0), rw(0, 0), rw(0, 1), ra(1), ra(2), rw(1, 0), rw(1, 1), rw(2, 0), rw(2, 1), rw(3, 0), rw(3, 1)]


def mfmas(s, swap):
    out = []
    for nu in range(4):
        for dl in (range(3) if nu % 2 == 0 else range(2, -1, -1)):
            w, x = vr(wfrag(s, nu), 4), vr(afrag(s, dl), 4)
            p, q = (x, w) if swap else (w, x)
            out.append(f"v_mfma_f32_16x16x32_bf16 {vr(acc(nu, dl), 4)}, {p}, {q}, {vr(acc(nu, dl), 4)}")
    return out


def stage(a, slot, kmap, swap, last, last_barrier=False, pre_barrier=None):
    m = mfmas(0, swap)
    rd = reads(1, slot, 1, kmap)
    gaps = [[] for _ in range(12)]
    a("s_waitcnt lgkmcnt(6)")
    if SCHED == 0:
        gaps[0] = [rd[0], rd[1]]
        gaps[1] = [rd[2], rd[3]]
        gaps[2] = ["s_waitcnt lgkmcnt(8)", rd[4]]
        gaps[3] = [rd[5], rd[6]]
        gaps[4] = [rd[7], rd[8]]
        gaps[5] = ["s_waitcnt lgkmcnt(9)", rd[9]]
        gaps[6] = [rd[10]]
    elif SCHED == 1:
        a.lines[-1] = "  s_waitcnt lgkmcnt(0)"
        for g, items in enumerate(([0, 1], [2], [3], [4], [5, 6], [7], [8], [9], [10])):
            gaps[g] = [rd[i] for i in items]
    elif SCHED == 2:
        a.lines[-1] = "  s_waitcnt lgkmcnt(0)"
        for g in range(5):
            gaps[g] = [rd[2*g], rd[2*g+1]]
        gaps[5] = [rd[10]]
    elif SCHED == 3:
        gaps[0] = [rd[0]]
        gaps[1] = [rd[1], rd[2]]
        gaps[2] = ["s_waitcnt lgkmcnt(3)", rd[3]]
        for g, items in enumerate(([4], [5, 6], [7], [8], [9], [10])):
            gaps[3+g] = [rd[i] for i in items]
    gaps[11] = ["s_waitcnt lgkmcnt(0)"]
    a.extend(interleave(m, gaps))
    if pre_barrier:
        pre_barrier(a)
    if not last or last_barrier:
        a("s_barrier")
    m = mfmas(1, swap)
    gaps = [[] for _ in range(12)]
    if not last:
        rd = reads(0, (slot + 1) % NSLOT, 0, kmap)
        if SCHED in (0, 2):
            for g in range(5):
                gaps[g] = [rd[2*g], rd[2*g+1]]
            gaps[5] = [rd[10]]
        else:
            for g, items in enumerate(([0, 1], [2], [3], [4], [5, 6], [7], [8], [9], [10])):
                gaps[g] = [rd[i] for i in items]
    a.extend(interleave(m, gaps))


def compute_main(a, nstages, kmap, swap, tag, hook=None, last_barrier=False, st=(0, 1), first_stage1=None, tail_hook=None, split_tail=None):
    a(f"; STAMP {st[0]}\ns_waitcnt lgkmcnt(0)\ns_barrier\n; CYC 0\n; SWAIT")
    a.extend(reads(0, 0, 0, kmap))
    a(f"s_mov_b32 s{S_CNT}, {nstages//4 - 1}")
    a(f".p2align 6\nL_{tag}_loop:")
    if hook:
        hook(a)
    a("; ITER")

    def once(a):
        a(f"s_cmp_lg_u32 s{S_CNT}, {nstages//4 - 1}\ns_cbranch_scc1 L_{tag}_once")
        first_stage1(a)
        a(f"L_{tag}_once:")
    for rep in range(nstages//4 - 1 if UNROLL_C else 1):
        for slot in range(4):
            stage(a, slot, kmap, swap, False, pre_barrier=once if (first_stage1 and slot == 1) else None)
    if not UNROLL_C:
        a(f"s_sub_u32 s{S_CNT}, s{S_CNT}, 1\ns_cmp_lg_u32 s{S_CNT}, 0\ns_cbranch_scc1 L_{tag}_loop")
    if split_tail:
        for slot in range(2):
            stage(a, slot, kmap, swap, False)
        n0 = len(a.lines)
        stage(a, 2, kmap, swap, False, pre_barrier=tail_hook)
        cut = max(i for i in range(n0, len(a.lines)) if a.lines[i].strip() == "s_barrier")
        del a.lines[cut+1:]
        global V_SET
        V_SET = V_SET[:2] + (220,)
        rd = reads(0, 3, 0, kmap) + reads(2, 3, 1, kmap)
        order = lambda r: [r[0], r[3], r[4], r[7], r[8], r[9], r[10], r[1], r[2], r[5], r[6]]
        rd = order(rd[:11]) + order(rd[11:])
        hi = lambda s: mfmas(s, swap)[6:]
        lo = lambda s: mfmas(s, swap)[:6]
        gaps = [[rd[2*g], rd[2*g+1]] for g in range(6)]
        gaps[5] += ["s_waitcnt lgkmcnt(5)"]
        a.extend(interleave(hi(1), gaps))
        gaps = [[rd[12+2*g], rd[13+2*g]] for g in range(5)] + [["s_waitcnt lgkmcnt(4)"]]
        a.extend(interleave(hi(0), gaps))
        a.extend(hi(2) + lo(1)[:3])
        split_tail(a)
        a("s_waitcnt lgkmcnt(0)")
        a.extend(lo(1)[3:] + lo(0) + lo(2))
        V_SET = V_SET[:2]
    for slot in range(4 if not split_tail else 0):
        stage(a, slot, kmap, swap, slot == 3, last_barrier, pre_barrier=tail_hook if slot == 2 else None)
    a("; CYC 1")


def w_prefill(a, stages, dt_stride, w_stride, jump=None):
    for j in stages:
        for g in dma_groups(j, dt_stride, w_stride, jump=jump):
            if f"s[{SRD_W}:" in g[1]:
                a.extend(g)


def loader_after_prefill(a, nstages, dt_stride, w_stride, tag, aflags, before_last=None, tail=None, jump=None, wait2=None, wait8=None, wrap=None, s_group=None, peek8=None):
    G = lambda j: dma_groups(j % NSLOT, dt_stride, w_stride, aflags, jump=jump)
    A = lambda j: [x for g in G(j) if f"s[{SRD_ACT}:" in g[1] for x in g]
    flat = lambda gs: [x for g in gs for x in g]
    vm = 28 + 4*LEAD
    if not wait2:
        a.extend(A(0) + A(1))
        a("s_waitcnt vmcnt(12)\ns_barrier")
    if wait2:
        a.extend(jump("a"))
        a("s_waitcnt vmcnt(32)\ns_barrier\ns_barrier")
        wait2(a)
        a.extend(A(2) + A(3))
        a("s_waitcnt vmcnt(12)")
    else:
        a.extend(A(2) + A(3))
        a("s_waitcnt vmcnt(12)\ns_barrier")
    a(f"s_mov_b32 s{S_CNT}, {nstages//4 - 1}\nL_{tag}_lloop:")
    if wrap:
        a(f"s_cmp_lg_u32 s{S_CNT}, {nstages//8}\ns_cbranch_scc1 L_{tag}_nowrap\ns_sub_u32 s{S_W0}, s{S_W0}, {wrap[0]}\ns_sub_u32 s{S_ACT0}, s{S_ACT0}, {wrap[1]}\nL_{tag}_nowrap:")
    if wait8:
        a(f"s_cmp_lg_u32 s{S_CNT}, {nstages//4 - 2}\ns_cbranch_scc1 L_{tag}_no8")
        wait8(a)
        a(f"L_{tag}_no8:")
    for slot in list(range(4)) * (nstages//4 - 1 if UNROLL_L else 1):
        if s_group is not None:
            assert LEAD == 7
            W = [x for g in G(slot) if f"s[{SRD_W}:" in g[1] for x in g]
            a(f"s_cmp_eq_u32 s{s_group}, {slot}\ns_cbranch_scc1 L_{tag}_lead{slot}")
            a.extend(W + A(slot))
            a(f"s_branch L_{tag}_join{slot}\nL_{tag}_lead{slot}:")
            a.extend(A(slot) + W)
            a(f"L_{tag}_join{slot}:\ns_waitcnt vmcnt({vm})\ns_barrier")
            continue
        a.extend(flat(G(slot)[:LEAD]))
        a(f"s_waitcnt vmcnt({vm})\ns_barrier")
        a.extend(flat(G(slot)[LEAD:]))
        if peek8 and slot == 1:
            assert LEAD == 7
            a(f"s_cmp_lg_u32 s{S_CNT}, {nstages//4 - 1}\ns_cbranch_scc1 L_{tag}_nopeek")
            peek8(a)
            a(f"L_{tag}_nopeek:")
    if not UNROLL_L:
        a(f"s_sub_u32 s{S_CNT}, s{S_CNT}, 1\ns_cmp_lg_u32 s{S_CNT}, 0\ns_cbranch_scc1 L_{tag}_lloop")
    if tail:
        tail(a)
        return
    a("s_waitcnt vmcnt(28)\ns_barrier")
    if before_last:
        before_last(a)
    else:
        a("s_waitcnt vmcnt(0)")
    a("s_barrier")
```

```python
import struct
from asmlib import *
from layout import *
import gemm_core as gc
import mega_ln as ln
import mega_conv as cv
from prefetch import *
import prefetch

AT_LDS = gc.LDS_RING
LN_LDS = 139264
CNT_LDS = LN_LDS + 2*ln.LN_T
LDS_TOTAL = CNT_LDS + 64
S_WS, S_X, S_DBG, S_W1, S_W2 = 4, 6, 94, 96, 98
SPIN = 0x100000
S_TAG = 100
F_SEED = 255 * 256


def f32hex(x):
    return "0x%08x" % struct.unpack("<I", struct.pack("<f", x))[0]


def div6(a, d, r, x):
    a(f"s_mul_i32 s{d}, s{x}, 10923\ns_lshr_b32 s{d}, s{d}, 16\ns_mul_i32 s{r}, s{d}, 6\ns_sub_u32 s{r}, s{x}, s{r}")


def unpk(a, x, p):
    a(f"v_lshlrev_b32 v{x}, 16, v{p}\nv_and_b32 v{x+1}, 0xffff0000, v{p}")


def poll(a, tag, rs, vaddr, soff, target, sleep=1, mask=None):
    a(f"s_mov_b32 s61, {SPIN:#x}\nL_{tag}_poll:\nbuffer_load_dword v62, v{vaddr}, s[{rs}:{rs+3}], {soff} offen sc1")
    a(f"s_sub_u32 s61, s61, 1\ns_cbranch_scc1 L_{tag}_go\ns_waitcnt vmcnt(0)")
    if mask:
        a(f"v_and_b32 v62, {mask:#x}, v62")
    a(f"v_cmp_ne_u32 vcc, {target}, v62")
    a(f"s_cmp_eq_u64 vcc, 0\ns_cbranch_scc1 L_{tag}_go")
    if sleep:
        a(f"s_sleep {sleep}")
    a(f"s_branch L_{tag}_poll\nL_{tag}_go:")


def flags_srd(a, d):
    srd_off(a, d, S_WS, WS_FLG, FLG_BYTES)


def last_wave_signals(a, tag, cnt, rs, soff, word=None, second=None):
    a(f"v_mov_b32 v58, {cnt}\nv_mov_b32 v59, 1\nv_mov_b32 v61, 0\ns_mov_b64 exec, 1\nds_add_rtn_u32 v60, v58, v59\ns_waitcnt lgkmcnt(0)")
    a(f"v_readfirstlane_b32 s23, v60\ns_cmp_lg_u32 s23, 3\ns_cbranch_scc1 L_{tag}_notlast")
    if word:
        a(f"v_mov_b32 v59, {word}\nbuffer_store_dword v59, v61, s[{rs}:{rs+3}], {soff} offen sc1")
    else:
        if second:
            a(f"buffer_atomic_add v59, v61, s[{rs}:{rs+3}], {second} offen sc1")
        a(f"buffer_atomic_add v59, v61, s[{rs}:{rs+3}], {soff} offen sc1")
    a(f"L_{tag}_notlast:\ns_mov_b64 exec, -1")


def ln_local_wait(a, tag, cnt=CNT_LDS+4):
    a(f"v_mov_b32 v58, {cnt}\nL_{tag}:\ns_sleep 2\nds_read_b32 v60, v58\ns_waitcnt lgkmcnt(0)\nv_readfirstlane_b32 s23, v60\ns_cmp_lt_u32 s23, 4\ns_cbranch_scc1 L_{tag}")


def g_pause(a, tag, o):
    if not o["pause"]:
        return
    a(f"s_lshr_b32 s23, s2, 3\ns_mul_i32 s24, s23, 43\ns_lshr_b32 s24, s24, 9\ns_mul_i32 s24, s24, 12\ns_sub_u32 s23, s23, s24\ns_lshl_b32 s23, s23, 8\ns_add_u32 s23, s23, {F_G}")
    a(f"v_mov_b32 v61, 0\ns_mov_b32 s61, {SPIN:#x}\nL_{tag}_poll:\nbuffer_load_dword v62, v61, s[36:39], s23 offen sc1\ns_sub_u32 s61, s61, 1\ns_cbranch_scc1 L_{tag}_go")
    a(f"s_waitcnt vmcnt(0)\nv_readfirstlane_b32 s24, v62\ns_cmp_ge_u32 s24, {o['pause']}\ns_cbranch_scc1 L_{tag}_go\ns_sleep 8\ns_branch L_{tag}_poll\nL_{tag}_go:")


def wait_ln(a, tag, rs, o, base=F_LNW):
    a(f"v_mul_u32_u24 v61, {o['lnw']}, v1\ns_mov_b32 s61, {SPIN:#x}\nL_{tag}_poll:")
    if o["ln_lines"] and base == F_LNW:
        for k in range(4):
            a(f"s_mov_b32 s62, {F_LNW + k*64*o['lnw']}\nbuffer_load_dword v{180+k}, v61, s[{rs}:{rs+3}], s62 offen sc1")
    else:
        a(f"s_mov_b32 s62, {base}\nbuffer_load_dwordx4 v[180:183], v61, s[{rs}:{rs+3}], s62 offen sc1")
    a(f"s_sub_u32 s61, s61, 1\ns_cbranch_scc1 L_{tag}_go\ns_waitcnt vmcnt(0)")
    a(f"v_xor_b32 v180, s{S_TAG+1}, v180\nv_xor_b32 v181, s{S_TAG+1}, v181\nv_xor_b32 v182, s{S_TAG+1}, v182\nv_xor_b32 v183, s{S_TAG+1}, v183")
    a("v_or3_b32 v180, v180, v181, v182\nv_or_b32 v180, v180, v183\nv_cmp_ne_u32 vcc, 0, v180")
    a(f"s_cmp_eq_u64 vcc, 0\ns_cbranch_scc1 L_{tag}_go\ns_sleep {o['slp']}\ns_branch L_{tag}_poll\nL_{tag}_go:")


def tile1(a):
    a("s_and_b32 s12, s2, 7\ns_lshr_b32 s13, s2, 3\ns_and_b32 s14, s12, 1\ns_mul_i32 s14, s14, 3\ns_add_u32 s13, s13, s14")
    a("s_cmp_ge_u32 s13, 27\ns_cselect_b32 s14, 27, 0\ns_sub_u32 s13, s13, s14\ns_mul_i32 s12, s12, 27\ns_add_u32 s12, s12, s13")
    div6(a, 14, 15, 12)


def tile2(a):
    a("s_lshr_b32 s13, s2, 3")
    div6(a, 12, 15, 13)
    a("s_bfe_u32 s19, s2, 0x10002\ns_and_b32 s13, s2, 3\ns_lshl_b32 s14, s13, 2\ns_add_u32 s14, s14, s12")
    a("s_mul_i32 s13, s13, 9\ns_add_u32 s13, s13, 1\ns_lshr_b32 s13, s13, 1")
    a("s_lshl_b32 s16, s14, 7\ns_lshl_b32 s17, s19, 6\ns_add_u32 s16, s16, s17")


def block_jump(kind):
    cnt, base, dst, step = (54, 56, gc.S_W0, 128*4096) if kind == "w" else (55, 57, gc.S_ACT0, 2*73728)
    return [f"s_add_u32 s{cnt}, s{cnt}, 1", f"s_add_u32 s18, s{cnt}, s12", "s_and_b32 s18, s18, 3", f"s_cmp_lt_u32 s{cnt}, 4",
            f"s_cselect_b32 s18, s18, s{cnt}", "s_add_u32 s18, s18, s13", "s_cmp_ge_u32 s18, 18", "s_cselect_b32 s17, 18, 0",
            "s_sub_u32 s18, s18, s17", f"s_mul_i32 s18, s18, {step}", f"s_add_u32 s{dst}, s18, s{base}"]


def gelu_epilogue(a, rounds, rot):
    c1 = -2.0 * 0.7978845608028654 * 1.4426950408889634
    a(f"s_mov_b32 s48, {f32hex(c1*0.044715)}\ns_mov_b32 s49, s48\nv_mov_b32 v36, {f32hex(c1)}\nv_mov_b32 v37, v36")
    for nu in range(4):
        unpk(a, 20+4*nu, 12+2*nu); unpk(a, 22+4*nu, 13+2*nu)
    a(f"s_lshr_b32 s26, s20, 1\ns_mul_i32 s26, s26, {gc.SLOT}\ns_and_b32 s27, s20, 1\ns_mul_i32 s27, s27, 6144\ns_add_u32 s26, s26, s27\ns_add_u32 s26, s26, {gc.W_BYTES}")
    a(f"s_cmp_ge_u32 s2, 192\ns_cselect_b32 s26, {LN_LDS}, s26\nv_add_u32 v38, s26, v7")
    B = 112
    for dl in range(3):
        for pi in range(2):
            src = [(gc.acc(2*pi + (k >> 1), dl) + 2*(k & 1), 20 + 4*(2*pi + (k >> 1)) + 2*(k & 1)) for k in range(4)]
            U = [B + 2*k for k in range(4)]; T = [B + 8 + 2*k for k in range(4)]; P = [B + 16 + k for k in range(4)]
            O = B + 20 + 4*((2*dl + pi) % 2)
            if rounds == 2:
                for k in range(4): a(f"v_cvt_pk_bf16_f32 v{P[k]}, v{src[k][0]}, v{src[k][0]+1}")
                for k in range(4): unpk(a, U[k], P[k])
                for k in range(4): a(f"v_pk_add_f32 {vr(U[k],2)}, {vr(U[k],2)}, {vr(src[k][1],2)}")
            else:
                for k in range(4): a(f"v_pk_add_f32 {vr(U[k],2)}, {vr(src[k][0],2)}, {vr(src[k][1],2)}")
            if rounds >= 1:
                for k in range(4): a(f"v_cvt_pk_bf16_f32 v{P[k]}, v{U[k]}, v{U[k]+1}")
                for k in range(4): unpk(a, U[k], P[k])
            for k in range(4): a(f"v_pk_mul_f32 {vr(T[k],2)}, {vr(U[k],2)}, {vr(U[k],2)}")
            for k in range(4): a(f"v_pk_fma_f32 {vr(T[k],2)}, {vr(T[k],2)}, s[48:49], v[36:37]")
            for k in range(4): a(f"v_pk_mul_f32 {vr(T[k],2)}, {vr(T[k],2)}, {vr(U[k],2)}")
            for k in range(4): a(f"v_exp_f32 v{T[k]}, v{T[k]}\nv_exp_f32 v{T[k]+1}, v{T[k]+1}")
            for k in range(4): a(f"v_pk_add_f32 {vr(T[k],2)}, {vr(T[k],2)}, 1.0 op_sel_hi:[1,0]")
            for k in range(4): a(f"v_rcp_f32 v{T[k]}, v{T[k]}\nv_rcp_f32 v{T[k]+1}, v{T[k]+1}")
            for k in range(4): a(f"v_pk_mul_f32 {vr(U[k],2)}, {vr(U[k],2)}, {vr(T[k],2)}")
            for k in range(4): a(f"v_cvt_pk_bf16_f32 v{O+k}, v{U[k]}, v{U[k]+1}")
            a(f"buffer_store_dwordx4 {vr(O,4)}, v7, s[44:47], s17 offen offset:{1024*pi} sc1")
            if rot:
                a(f"ds_write_b128 v38, {vr(O,4)} offset:{(2*dl + pi)*1024}")
        a("s_add_u32 s17, s17, 2048")


def read_tag(a):
    a(f"s_add_u32 s26, s{S_WS}, {WS_FLG + F_SEED:#x}\ns_addc_u32 s27, s{S_WS+1}, 0\ns_load_dword s{S_TAG+1}, s[26:27], 0")


def make_tag(a):
    a(f"s_mul_i32 s{S_TAG+1}, s{S_TAG+1}, 0x9e3779b1\ns_add_u32 s{S_TAG+1}, s{S_TAG+1}, 0x7f4a7c15\ns_andn2_b32 s{S_TAG}, s{S_TAG+1}, 0xff")


def compute_waves(a, o):
    a("s_waitcnt lgkmcnt(0)")
    ln.ln_issue(a, S_X, o['lnx'], 80 if o['dry'] else 10)
    read_tag(a)
    a(f"s_cmp_lg_u32 s20, 0\ns_cbranch_scc1 L_m_nz\nv_mov_b32 v58, {CNT_LDS}\nv_mov_b32 v60, 0\nv_mov_b32 v61, 0\nv_mov_b32 v62, 0\nv_mov_b32 v63, 0")
    a("ds_write_b128 v58, v[60:63]\nL_m_nz:")
    if o["early_bar"]:
        a("s_waitcnt lgkmcnt(0)\ns_barrier")
    a(f"s_load_dwordx2 s[38:39], s[0:1], {KA['b1']}\ns_load_dwordx8 s[80:87], s[0:1], {KA['lar']}\ns_load_dwordx4 s[88:91], s[0:1], {KA['ldt']}")
    ln.ln_body(a, S_WS, LN_LDS, CNT_LDS, "ln", not o["early_bar"], o["dry"])
    if not o["split_xn"]:
        ln.xn_stores(a, "ln")
    flags_srd(a, 40)
    make_tag(a)
    a("v_mov_b32 v61, 0\ns_cmp_lg_u32 s20, 3\ns_cbranch_scc1 L_m_nozero\ns_sub_u32 s23, s2, 28\ns_cmp_ge_u32 s23, 6\ns_cbranch_scc1 L_m_nozero")
    a("s_lshl_b32 s23, s2, 8\ns_mov_b64 exec, 1\nbuffer_store_dword v61, v61, s[40:43], s23 offen sc1\ns_mov_b64 exec, -1\nL_m_nozero:")
    if o["ln_lines"]:
        a(f"s_mul_i32 s24, s2, {o['lnw']}\ns_add_u32 s24, s24, {F_LNW}")
    else:
        a(f"s_and_b32 s24, s2, 63\ns_mul_i32 s24, s24, {o['lnw']}\ns_lshr_b32 s23, s2, 6\ns_lshl_b32 s23, s23, 2\ns_add_u32 s24, s24, s23\ns_add_u32 s24, s24, {F_LNW}")
    a("s_waitcnt vmcnt(0)\n; STAMP 1")
    last_wave_signals(a, "lnd", CNT_LDS + 4, 40, "s24", word=f"s{S_TAG+1}")
    a("s_lshr_b32 s29, s2, 3\ns_lshl_b32 s29, s29, 2\ns_add_u32 s29, s29, s20")
    srd(a, 32, S_W1, W_BYTES_TOTAL)
    if o["split_xn"]:
        ln.xn_stores(a, "ln")
        a(f"s_and_b32 s24, s2, 63\ns_mul_i32 s24, s24, {o['lnw']}\ns_lshr_b32 s23, s2, 6\ns_lshl_b32 s23, s23, 2\ns_add_u32 s24, s24, s23\ns_add_u32 s24, s24, {F_XNW}")
        if o["b_first"]:
            a("s_cmp_ge_u32 s2, 216\ns_cbranch_scc1 L_m_nob")
            w1_burst(a, 32, 29, 108, o["r1"]//4*5, o["nB"])
            a(f"s_waitcnt vmcnt({o['nB']})\ns_branch L_m_hadb\nL_m_nob:")
            a("s_sub_u32 s31, s2, 216\ns_lshl_b32 s31, s31, 2\ns_add_u32 s31, s31, s20\ns_mul_i32 s31, s31, 3\ns_mov_b32 s28, s24")
            cv.param_loads(a, 80, 88, 90)
            a("s_mov_b32 s24, s28\ns_waitcnt vmcnt(14)\nL_m_hadb:")
        else:
            a("s_waitcnt vmcnt(0)")
        last_wave_signals(a, "xnd", CNT_LDS + 12, 40, "s24", word=f"s{S_TAG+1}")
    a("s_cmp_ge_u32 s2, 216\ns_cbranch_scc1 L_m_conv")
    if not (o["split_xn"] and o["b_first"]):
        w1_burst(a, 32, 29, 108, o["r1"]//4*5, o["nB"])
    srd(a, 32, S_W2, W_BYTES_TOTAL)
    tile1(a)
    gc.lane_ids(a)
    gc.compute_setup(a, "A")
    srd(a, 8, 38, F*2)
    a(f"s_lshr_b32 s16, s20, 1\ns_lshl_b32 s17, s16, 7\ns_lshl_b32 s18, s14, 8\ns_add_u32 s17, s17, s18\nv_lshlrev_b32 v9, 3, v3")
    a("s_mov_b32 s22, s17")

    def b1_loads(a):
        for nu in range(4):
            a(f"buffer_load_dwordx2 {vr(12+2*nu,2)}, v9, s[8:11], s22 offen offset:{32*nu}")
    if not o["b1_late"]:
        b1_loads(a)
    for i in range(48):
        a(f"v_mov_b32 v{gc.V_ACC+i}, 0")
    srd_off(a, 44, S_WS, WS_G, G_BYTES)
    a("s_and_b32 s17, s20, 1\ns_mul_i32 s17, s17, 3\ns_mul_i32 s18, s15, 6\ns_add_u32 s17, s17, s18\ns_lshl_b32 s17, s17, 11")
    a("s_lshl_b32 s18, s14, 1\ns_add_u32 s18, s18, s16\ns_mul_i32 s18, s18, 73728\ns_add_u32 s17, s17, s18")
    a(f"s_mul_i32 s24, s15, 36\ns_add_u32 s24, s24, s14\ns_lshl_b32 s24, s24, 8\ns_add_u32 s24, s24, {F_GW}")
    a(f"s_load_dwordx4 s[52:55], s[0:1], {KA['b2']}")
    gc.compute_main(a, 32*o["rep1"], "A", False, "g1", last_barrier=True, st=(5, 2), tail_hook=b1_loads if o["b1_late"] else None)
    if o["rep1"] == 2:
        for i in range(48):
            a(f"v_mul_f32 v{gc.V_ACC+i}, 0.5, v{gc.V_ACC+i}")
    a("s_waitcnt vmcnt(0)")
    a("; STAMP 9")
    gelu_epilogue(a, o['rnd1'], o['rot'])
    a("s_cmp_lt_u32 s2, 192\ns_cbranch_scc1 L_m_g2\ns_waitcnt vmcnt(0)")
    last_wave_signals(a, "gd", CNT_LDS + 8, 40, "s24", word=f"s{S_TAG+1}")
    a("; STAMP 3\ns_branch L_m_conv1\nL_m_g2:")
    tile2(a)
    gc.compute_setup(a, "B", s_kh=19)
    srd(a, 32, S_X, X_BYTES); srd(a, 28, 52, S*2)
    a("s_lshr_b32 s17, s20, 1\ns_lshl_b32 s17, s17, 5\ns_add_u32 s17, s17, s16")
    a("s_mul_i32 s18, s15, 96\ns_and_b32 s26, s20, 1\ns_mul_i32 s26, s26, 48\ns_add_u32 s18, s18, s26")
    a("v_mul_u32_u24 v58, 1152, v2\nv_lshl_add_u32 v58, v3, 3, v58\nv_lshlrev_b32 v9, 1, v2")
    a("s_mul_i32 s56, s17, 1152\ns_lshl_b32 s26, s18, 1\ns_add_u32 s56, s56, s26\ns_add_u32 s57, s56, 18432\ns_lshl_b32 s26, s17, 1")
    a("s_mov_b32 s22, s26\nv_mov_b32 v39, v58")
    for i in range(48):
        a(f"v_mov_b32 v{gc.V_ACC+i}, 0")
    a("v_bfe_u32 v4, v1, 2, 2\nv_lshl_add_u32 v4, v3, 2, v4\nv_lshlrev_b32 v4, 7, v4\nv_and_b32 v5, 3, v1\nv_lshl_add_u32 v4, v5, 3, v4")
    a(f"s_and_b32 s26, s20, 1\ns_mul_i32 s26, s26, 6144\ns_lshr_b32 s27, s20, 1\ns_lshl_b32 s27, s27, 6\ns_add_u32 s26, s26, s27\ns_add_u32 s26, s26, {AT_LDS}\nv_add_u32 v59, s26, v4")
    a("v_mov_b32 v31, v59")
    a("s_xor_b32 s58, s2, 4\ns_lshl_b32 s26, s20, 12\ns_lshl_b32 s59, s58, 14\ns_add_u32 s59, s59, s26\ns_lshl_b32 s60, s2, 14\ns_add_u32 s60, s60, s26")
    assert o["xbf"]

    SN = 172
    NG = 4 if o["xbf"] else 8
    srd_off(a, 8, S_WS, WS_XCH, XCH_BYTES)

    def send_partials(a):
        for k in range(NG):
            for m in range(3):
                if o["xbf"]:
                    a(f"v_cvt_pk_bf16_f32 v{SN+4*k+m}, v{gc.V_ACC+24+6*k+2*m}, v{gc.V_ACC+25+6*k+2*m}")
                else:
                    a(f"v_mov_b32 v{SN+4*k+m}, v{gc.V_ACC+24+3*k+m}")
            a(f"v_mov_b32 v{SN+4*k+3}, s{S_TAG+1}")
            a(f"buffer_store_dwordx4 {vr(SN+4*k,4)}, v7, s[8:11], s59 offen sc1\ns_add_u32 s59, s59, 1024")

    def x_loads(a):
        for nu in range(2):
            for dl in range(3):
                a(f"buffer_load_dwordx2 {vr(10+2*(3*nu+dl),2)}, v39, s[32:35], s{56+nu} offen offset:{32*dl}{o['xnt']}")
            a(f"buffer_load_ushort v{22+nu}, v9, s[28:31], s22 offen offset:{32*nu}")

    def publish_g(a):
        a("s_waitcnt vmcnt(0)")
        last_wave_signals(a, "gd2", CNT_LDS + 8, 40, "s24", word=f"s{S_TAG+1}")
        a("; STAMP 3\n; SWAIT")
        if not o["x_late"]:
            x_loads(a)

    if o["late_sig"]:
        gc.compute_main(a, 36, "B", True, "g2", st=(5, 4), first_stage1=publish_g)
    else:
        publish_g(a)
        gc.compute_main(a, 36*o["rep2"], "B", True, "g2", st=(5, 4), tail_hook=x_loads if o["x_late"] == "tail" else None,
                        split_tail=send_partials if o["xfirst"] else None)
        if o["rep2"] == 2:
            for i in range(48):
                a(f"v_mul_f32 v{gc.V_ACC+i}, 0.5, v{gc.V_ACC+i}")
    srd(a, 44, 54, X_BYTES)
    a("v_mov_b32 v58, v39\nv_mov_b32 v59, v31")
    a("; STAMP 5")
    if not o["xfirst"]:
        send_partials(a)
    if o["x_late"] is True:
        x_loads(a)
    a("s_barrier")
    AR, PF = 112, 124
    for nu in range(2):
        for dl in range(3):
            a(f"ds_read_b64_tr_b16 {vr(AR+2*(3*nu+dl),2)}, v59 offset:{2048*dl + 32*nu}")
    a(f"s_waitcnt vmcnt({0 if o['x_late'] is True else NG})\nv_lshlrev_b32 v22, 16, v22\nv_lshlrev_b32 v24, 16, v23\ns_waitcnt lgkmcnt(0)")
    for t in range(6):
        for h in range(2):
            unpk(a, 26, 10+2*t+h); unpk(a, 28, AR+2*t+h)
            if o["rnd2"]:
                a("v_pk_add_f32 v[26:27], v[26:27], v[28:29]\nv_cvt_pk_bf16_f32 v30, v26, v27")
                unpk(a, PF+4*t+2*h, 30)
            else:
                b = gc.V_ACC + 4*t + 2*h
                a(f"v_pk_add_f32 v[26:27], v[26:27], v[28:29]\nv_pk_add_f32 {vr(b,2)}, {vr(b,2)}, {vr(22+2*(t//3),2)} op_sel_hi:[1,0]")
                a(f"v_pk_add_f32 {vr(b,2)}, {vr(b,2)}, v[26:27]")
    RX = 204
    if o["xwait"]:
        a("s_waitcnt vmcnt(0)")
    a(f"s_mov_b32 s61, {SPIN:#x}\ns_add_u32 s62, s60, 4096\nL_xch_poll:")
    for k in range(NG):
        a(f"buffer_load_dwordx4 {vr(RX+4*k,4)}, v7, s[8:11], s{60 + 2*(k >> 2)} offen offset:{1024*(k & 3)} sc1")
    a(f"s_sub_u32 s61, s61, 1\ns_cbranch_scc1 L_xch_go\ns_waitcnt vmcnt(0)\nv_xor_b32 v4, s{S_TAG+1}, v{RX+3}")
    for k in range(1, NG):
        a(f"v_xor_b32 v5, s{S_TAG+1}, v{RX+4*k+3}\nv_or_b32 v4, v4, v5")
    a("v_cmp_ne_u32 vcc, 0, v4\ns_cmp_eq_u64 vcc, 0\ns_cbranch_scc1 L_xch_go")
    if o["slpx"]:
        a(f"s_sleep {o['slpx']}")
    a("s_branch L_xch_poll\nL_xch_go:")
    for t in range(6):
        nu, dl = divmod(t, 3)
        b, p = gc.V_ACC + 4*t, PF + 4*t
        if o["xbf"]:
            for h in range(2):
                k, m = divmod(2*t + h, 3)
                unpk(a, 26+2*h, RX+4*k+m)
            for h in range(2): a(f"v_pk_add_f32 {vr(b+2*h,2)}, {vr(b+2*h,2)}, {vr(26+2*h,2)}")
        else:
            for e in range(4):
                k, m = divmod(4*t + e, 3)
                a(f"v_add_f32 v{b+e}, v{b+e}, v{RX+4*k+m}")
        if o['rnd2']:
            for h in range(2): a(f"v_cvt_pk_bf16_f32 v{26+h}, v{b+2*h}, v{b+2*h+1}")
            for h in range(2): unpk(a, b+2*h, 26+h)
            for h in range(2): a(f"v_pk_add_f32 {vr(b+2*h,2)}, {vr(b+2*h,2)}, {vr(22+2*nu,2)} op_sel_hi:[1,0]")
            for h in range(2): a(f"v_cvt_pk_bf16_f32 v{26+h}, v{b+2*h}, v{b+2*h+1}")
            for h in range(2): unpk(a, b+2*h, 26+h)
            for h in range(2): a(f"v_pk_add_f32 {vr(b+2*h,2)}, {vr(b+2*h,2)}, {vr(p+2*h,2)}")
        for h in range(2): a(f"v_cvt_pk_bf16_f32 v{10+2*t+h}, v{b+2*h}, v{b+2*h+1}")
        a(f"buffer_store_dwordx2 {vr(10+2*t,2)}, v58, s[44:47], s{56+nu} offen offset:{32*dl}{o['ont']}")
    a("s_endpgm")
    a("L_m_conv1:\ns_mov_b32 s30, 1\ns_sub_u32 s31, s2, 72\ns_lshl_b32 s31, s31, 2\ns_add_u32 s31, s31, s20")
    cv.param_loads(a, 80, 88, 90)
    a("s_branch L_m_conv2\nL_m_conv:\ns_mov_b32 s30, 3\nL_m_conv2:")
    a("s_mul_i32 s29, s31, 683\ns_lshr_b32 s29, s29, 16")
    assert o["split_xn"] and o["b_first"]

    def signal(a):
        a("s_lshl_b32 s36, s29, 8")
        a(f"s_add_u32 s36, s36, {F_CONV}\nv_mov_b32 v4, 1\nv_mov_b32 v5, 0\ns_mov_b64 exec, 1\nbuffer_atomic_add v4, v5, s[8:11], s36 offen sc1")
    flags_srd(a, 8)
    cv.conv_role(a, "cv", S_WS, lambda a, t: wait_ln(a, "cvln" + t, 8, o, F_XNW if o["split_xn"] else F_LNW), signal)
    a("s_endpgm")


def fifth_wave(a, o):
    if o["prio"]:
        a(f"s_setprio {o['prio']}")
    a(f"s_load_dwordx2 s[48:49], s[0:1], {KA['out']}\ns_load_dwordx8 s[80:87], s[0:1], {KA['lar']}\ns_load_dwordx4 s[52:55], s[0:1], {KA['ldt']}")
    a(f"s_load_dwordx2 s[56:57], s[0:1], {KA['b1']}\ns_load_dwordx2 s[58:59], s[0:1], {KA['b2']}")
    a("s_waitcnt lgkmcnt(0)")
    flags_srd(a, 36)
    read_tag(a)
    if o["tlb"] >= 4:
        srd(a, 8, S_WS, WS_G); srd(a, 16, S_W1, 5 << 20)
        a("v_lshlrev_b32 v4, 21, v1\nbuffer_load_dword v100, v4, s[8:11], 0 offen sc1\nbuffer_load_dword v104, v4, s[16:19], 0 offen")
        srd(a, 8, 56, 4)
        a("buffer_load_dword v105, v4, s[8:11], 0 offen")
    elif o["tlb"]:
        srd(a, 8, S_WS, WS_END); srd(a, 16, S_W2, W_BYTES_TOTAL)
        a("v_lshlrev_b32 v4, 20, v1\nbuffer_load_dword v100, v4, s[8:11], 0 offen sc1\nbuffer_load_dword v101, v4, s[16:19], 0 offen")
        srd(a, 8, 48, X_BYTES); srd(a, 16, S_W1, W_BYTES_TOTAL)
        a("buffer_load_dword v102, v4, s[8:11], 0 offen")
        if o["tlb"] >= 2:
            a("buffer_load_dword v104, v4, s[16:19], 0 offen")
            small = [80, 82, 84, 86, 52, 54, 56, 58]
            for k, p in enumerate(small):
                if o["tlb"] == 3:
                    a(f"s_bfe_u32 s23, s2, 0x30003\ns_cmp_lg_u32 s23, {k}\ns_cbranch_scc1 L_m_tl{k}")
                if k < 6 or not o["bias_pf"]:
                    srd(a, 8, p, 4)
                    a(f"buffer_load_dword v{105+k}, v4, s[8:11], 0 offen")
                else:
                    srd(a, 8, p, F*2 if k == 6 else S*2)
                    a(f"v_lshlrev_b32 v5, 7, v1\nbuffer_load_dword v{105+k}, v5, s[8:11], 0 offen")
                    if k == 6:
                        a("s_mov_b32 s23, 8192\nbuffer_load_dword v113, v5, s[8:11], s23 offen")
                a(f"L_m_tl{k}:")
    if o["touch"]:
        todo = [F_LNW + k*64*o["lnw"] for k in range(4 if o["ln_lines"] else 1)] + [F_XNW] + ([F_REL] if o["agg"] else []) + ([F_CONV] if o["touch_c"] else [])
        for k, off in enumerate(todo):
            a(f"s_cmp_lg_u32 s2, {5*k if k < 2 else 4+k}\ns_cbranch_scc1 L_m_nt{k}\nv_mul_u32_u24 v5, {o['lnw']}, v1\ns_mov_b32 s23, {off}")
            if off == F_CONV:
                a(f"v_min_u32 v5, {5*o['lnw']}, v5")
            a(f"buffer_load_dword v103, v5, s[36:39], s23 offen\nL_m_nt{k}:")
    if o["touch_g"]:
        a(f"s_sub_u32 s23, s2, 1\ns_cmp_ge_u32 s23, 4\ns_cbranch_scc1 L_m_notouch2\nv_lshlrev_b32 v5, 8, v1\ns_lshl_b32 s23, s23, 14\ns_add_u32 s23, s23, {F_GW}")
        a("buffer_load_dword v103, v5, s[36:39], s23 offen\nL_m_notouch2:")
    srd(a, gc.SRD_W, S_W1, W_BYTES_TOTAL)
    if o["early_bar"]:
        a("s_barrier")
    a("s_lshr_b32 s30, s2, 3")
    if o["code_pf"]:
        a("s_getpc_b64 s[12:13]\nL_m_pc:\ns_sub_u32 s12, s12, L_m_pc-L_m_base\ns_subb_u32 s13, s13, 0")
        a("s_mov_b32 s14, L_m_last-L_m_base\ns_mov_b32 s15, 0x20000\nv_lshlrev_b32 v4, 4, v1\ns_lshl_b32 s23, s30, 10")
        for k in range(o["code_n"]):
            a("buffer_load_dwordx4 v[96:99], v4, s[12:15], s23 offen\ns_add_u32 s23, s23, 32768")
    w1_stream(a, "m0", gc.SRD_W, 30, 32, o["r0"], o["r1"], o["win1"])
    if o["extra23"]:
        a("s_and_b32 s23, s2, 6\ns_cmp_lg_u32 s23, 2\ns_cbranch_scc1 L_m_nox23")
        w1_stream(a, "m23", gc.SRD_W, 30, 32, 2048 - o["extra23"], 2048, o["win1"])
        a("L_m_nox23:")
    a("s_waitcnt lgkmcnt(0)")
    make_tag(a)
    if not o["early_bar"]:
        a("s_barrier")
    a("; STAMP 0\ns_cmp_ge_u32 s2, 216\ns_cbranch_scc1 L_m_helper")
    tile1(a)
    gc.lane_ids(a)
    a(f"s_mul_i32 s{gc.S_ACT0}, s15, 12288\ns_lshl_b32 s{gc.S_W0}, s14, 8")
    gc.loader_setup(a, 0, 9216, "A")
    srd_off(a, gc.SRD_ACT, S_WS, WS_HT, HT_BYTES)
    a("s_lshr_b32 s60, s2, 3\ns_mul_i32 s60, s60, 10923\ns_lshr_b32 s60, s60, 16")
    ln_local_wait(a, "lw1")
    a("; STAMP 0")
    gc.w_prefill(a, range(4), 0, 9216)
    a("; STAMP 1")
    if o["agg"]:
        a(f"s_and_b32 s23, s2, 7\ns_lshl_b32 s23, s23, 8\ns_add_u32 s23, s23, {F_REL}\ns_cmp_ge_u32 s2, 8\ns_cbranch_scc1 L_m_follow")
        wait_ln(a, "l1", 36, dict(o, slp=o["slpa"]))
        a(f"v_mov_b32 v4, s{S_TAG+1}\nv_mov_b32 v5, 0\ns_mov_b64 exec, 1\nbuffer_store_dword v4, v5, s[36:39], s23 offen sc1\ns_mov_b64 exec, -1\ns_branch L_l1f_go\nL_m_follow:\nv_mov_b32 v61, 0")
        poll(a, "l1f", 36, 61, "s23", f"s{S_TAG+1}", sleep=o["slp"])
    else:
        wait_ln(a, "l1", 36, o)
    a(f"; STAMP 2\ns_cmp_lg_u32 s2, 0\ns_cbranch_scc1 L_m_noseed\nv_mov_b32 v4, s{S_TAG+1}\nv_mov_b32 v5, {F_SEED}\ns_mov_b64 exec, 1")
    a("buffer_store_dword v4, v5, s[36:39], 0 offen sc1\ns_mov_b64 exec, -1\nL_m_noseed:")
    gc.loader_after_prefill(a, 32*o["rep1"], 0, 9216, "g1", o["aflags"], tail=lambda a: None, wrap=(2048*9216, 32*73728) if o["rep1"] == 2 else None,
                            s_group=60 if o["lead1"] else None)
    srd(a, gc.SRD_W, S_W2, W_BYTES_TOTAL)
    a("s_cmp_lt_u32 s2, 192\ns_cbranch_scc1 L_m_l2")
    a("s_waitcnt vmcnt(28)\ns_barrier\ns_waitcnt vmcnt(0)\ns_barrier\ns_barrier\ns_sub_u32 s30, s2, 152\ns_lshr_b32 s30, s30, 3")
    ln_local_wait(a, "lw3", CNT_LDS+8)
    if o["x_pf"] == "early":
        srd(a, 8, S_X, X_BYTES); a("s_sub_u32 s31, s30, 5\ns_mul_i32 s31, s31, 3")
        for k in range(3):
            if k == 2:
                a("s_cmp_eq_u32 s31, 8\ns_cbranch_scc1 L_m_nox")
            x_stream(a, f"xe{k}", 8, 31)
            a("s_add_u32 s31, s31, 1")
        a("L_m_nox:")
    g_pause(a, "gp3", o)
    w2_stream(a, "m3", gc.SRD_W, 30, 8, o["r2"] + 96*o["nC"], 2304, o["win3"])
    if o["x_pf"] is True:
        srd(a, 8, S_X, X_BYTES); x_stream(a, "x3", 8, 30)
    a("s_endpgm\nL_m_l2:")
    tile2(a)
    a(f"s_mul_i32 s57, s15, 12288\ns_mul_i32 s18, s19, {36*73728}\ns_add_u32 s57, s57, s18")
    a(f"s_lshl_b32 s56, s14, 8\ns_mul_i32 s18, s19, {HALF2}\ns_add_u32 s56, s56, s18\ns_mov_b32 s54, -1\ns_mov_b32 s55, -1")
    jump = block_jump if o["rot"] else None
    if o["rot"]:
        a.extend(block_jump("w") + block_jump("a"))
    else:
        a(f"s_mov_b32 s{gc.S_W0}, s56\ns_mov_b32 s{gc.S_ACT0}, s57")
    gc.loader_setup(a, 0, 4096, "B")
    srd_off(a, gc.SRD_ACT, S_WS, WS_G, G_BYTES)
    e2 = o["early2"]
    for j, vm in enumerate((28, 0, None)):
        if j < e2:
            gc.w_prefill(a, [j], 0, 4096, jump)
        if vm is not None:
            a(f"s_waitcnt vmcnt({vm + 16*min(j+1, e2)})")
        a("s_barrier")
    a("; STAMP 5")
    gc.w_prefill(a, range(min(e2, 3), 4), 0, 4096, jump)
    a("v_mov_b32 v61, 0\n; STAMP 3")

    def wait_slot(a):
        a(f"s_mul_i32 s23, s15, 36\ns_mul_i32 s24, s19, 18\ns_add_u32 s23, s23, s24\ns_lshl_b32 s23, s23, 8\ns_add_u32 s23, s23, {F_GW}")
        a("v_and_b32 v60, 3, v1\nv_add_u32 v60, s13, v60\nv_lshlrev_b32 v60, 8, v60")
        poll(a, "l2a", 36, 60, "s23", f"s{S_TAG+1}", sleep=o["slpg"])
        a("; STAMP 4\nv_min_u32 v60, 17, v1\nv_lshlrev_b32 v60, 8, v60\ns_mov_b32 s53, s23")

    def peek_half(a):
        a("buffer_load_dword v63, v60, s[36:39], s53 offen sc1")

    def wait_half(a):
        if o["rot"] and o["peek"]:
            a(f"v_cmp_ne_u32 vcc, s{S_TAG+1}, v63\ns_cmp_eq_u64 vcc, 0\ns_cbranch_scc1 L_l2b_go")
        poll(a, "l2b", 36, 60, "s53", f"s{S_TAG+1}", sleep=o["slpg"])

    def at_dma(a):
        for e in range(12):
            a(f"s_mov_b32 m0, {AT_LDS + 1024*e}\nbuffer_load_dwordx4 v8, s[48:51], s26 offen sc1 lds\ns_add_u32 s26, s26, 32768")

    def at_early(a):
        srd_off(a, 48, S_WS, WS_AT, AT_BYTES)
        a(f"s_lshl_b32 s23, s15, 8\ns_add_u32 s23, s23, {F_CONV}\nbuffer_load_dword v62, v61, s[36:39], s23 offen sc1")
        a("v_lshrrev_b32 v8, 3, v1\nv_lshlrev_b32 v8, 12, v8\nv_and_b32 v9, 7, v1\nv_lshl_add_u32 v8, v9, 4, v8")
        a(f"s_mul_i32 s26, s15, {96*4096}\ns_lshl_b32 s27, s16, 1\ns_add_u32 s26, s26, s27")
        a("s_cmp_eq_u32 s15, 5\ns_cselect_b32 s24, 96, 32\ns_waitcnt vmcnt(0)\nv_readfirstlane_b32 s27, v62")
        a("s_cmp_lg_u32 s27, s24\ns_cbranch_scc1 L_at_skip")
        at_dma(a)
        a("L_at_skip:")
    if o["rot"]:
        gc.loader_after_prefill(a, 36, 0, 4096, "g2", o["aflags"], before_last=at_early, jump=block_jump, wait2=wait_slot, wait8=wait_half, peek8=peek_half if o['peek'] else None)
    else:
        ln_local_wait(a, "lw4", CNT_LDS+8)
        a(f"s_mul_i32 s53, s15, 36\ns_mul_i32 s24, s19, 18\ns_add_u32 s53, s53, s24\ns_lshl_b32 s53, s53, 8\ns_add_u32 s53, s53, {F_GW}")
        a("v_min_u32 v60, 17, v1\nv_lshlrev_b32 v60, 8, v60")
        wait_half(a)
        a("; STAMP 4")
        gc.loader_after_prefill(a, 36*o["rep2"], 0, 4096, "g2", o["aflags"], before_last=at_early, wrap=(HALF2, 36*73728) if o["rep2"] == 2 else None,
                                s_group=60 if o["lead2"] else None)
    a("s_cmp_eq_u32 s27, s24\ns_cbranch_scc1 L_at_done")
    poll(a, "at", 36, 61, "s23", "s24")
    at_dma(a)
    a("L_at_done:\ns_waitcnt vmcnt(0)\ns_barrier\ns_endpgm")
    a("L_m_helper:\ns_sub_u32 s30, s2, 216\ns_lshr_b32 s30, s30, 3")
    ln_local_wait(a, "lw2", CNT_LDS + (12 if o["split_xn"] and not o["h_early"] else 4))
    if o["tlb"] >= 4:
        M2 = 2 << 20
        items = [(S_W1, k*M2) for k in range(3, 9)] + [(S_W1, W_BYTES_TOTAL - 4)] + [(p, 0) for p in (80, 82, 84, 86, 52, 54)]
        items += [(S_WS, k*M2) for k in range(WS_G//M2 + 1, (WS_END - 1)//M2 + 1)] + [(S_W2, k*M2) for k in range(9)] + [(S_W2, W_BYTES_TOTAL - 4)]
        items += [(48, 0), (48, X_BYTES - 4), (58, 0)]
        for h in range(5):
            a(f"s_cmp_lg_u32 s30, {h}\ns_cbranch_scc1 L_m_st{h}")
            for k, (p, off) in enumerate(items[h::5]):
                a(f"s_add_u32 s8, s{p}, {off:#x}\ns_addc_u32 s9, s{p+1}, 0\ns_load_dword s{12+k}, s[8:9], 0")
            a(f"L_m_st{h}:")
    if o["b1_late"]:
        srd(a, 8, 56, F*2); srd(a, 12, 58, S*2)
        a("v_lshlrev_b32 v5, 7, v1\ns_mov_b32 s23, 8192\nbuffer_load_dword v105, v5, s[8:11], 0 offen\nbuffer_load_dword v106, v5, s[8:11], s23 offen\nbuffer_load_dword v107, v5, s[12:15], 0 offen")
    w1_stream(a, "m1", gc.SRD_W, 30, 5, o["r1"] + 108*o["nB"]//5*4, 2048, o["win2"], short23=o["extra23"])
    a("; STAMP 1")
    srd(a, gc.SRD_W, S_W2, W_BYTES_TOTAL)
    if o["rot"]:
        w2_head(a, "mh", gc.SRD_W, 30, 5, o["win2"])
    w2_stream(a, "m2", gc.SRD_W, 30, 5, 512 if o["rot"] else o["r20"], o["r2"], o["win2"])
    a("; STAMP 2")
    g_pause(a, "gp4", o)
    w2_stream(a, "m4", gc.SRD_W, 30, 8, o["r2"] + 96*o["nC"], 2304, o["win3"])
    if o["x_pf"] is True:
        srd(a, 8, S_X, X_BYTES); x_stream(a, "x4", 8, 30)


def mega(a, name, **opt):
    o = dict(peek=True, touch_c=True, xfirst=False, code_n=2, unc=False, unl=False, lead1=False, lead2=False, b_first=True, h_early=True, agg=False, slpa=0, split_xn=True, slpg=1, slpx=0, lead=7, dry=False, b1_late=False, lnx=' nt', bias_pf=False, touch_g=True, xwait=True, early_bar=False, extra23=0, r0=0, r20=0, rep1=1, rep2=1, uflags='', rot=True, x_pf=True, ln_lines=False, x_late='tail', late_sig=False, pause=0, xbf=True, rnd1=0, rnd2=0, prio=0, lnw=256, slp=4, touch=True, tlb=4, early2=3, xnt='', ont='', prefill_late=True, r1=384, nB=3, r2=512, nC=0, win1=20, win2=56, win3=56, aflags=" sc1", code_pf=9)
    o.update(opt)
    prefetch.ROT = o["rot"]
    cv.UFLAGS = o["uflags"]
    gc.LEAD = o["lead"]
    gc.UNROLL_C, gc.UNROLL_L = o["unc"], o["unl"]
    a(f".globl {name}\n.p2align 8\n.type {name},@function\n{name}:\nL_m_base:")
    a("s_cmp_ge_u32 s2, 256\ns_cbranch_scc1 L_m_end")
    a(f"s_load_dwordx2 s[{S_X}:{S_X+1}], s[0:1], {KA['x']}\ns_load_dwordx2 s[{S_WS}:{S_WS+1}], s[0:1], {KA['ws']}")
    a(f"s_load_dwordx2 s[{S_W1}:{S_W1+1}], s[0:1], {KA['w1']}\ns_load_dwordx2 s[{S_W2}:{S_W2+1}], s[0:1], {KA['w2']}")
    a("v_lshrrev_b32 v1, 6, v0\nv_readfirstlane_b32 s20, v1\nv_and_b32 v1, 63, v0")
    a("s_cmp_eq_u32 s20, 4\ns_cbranch_scc1 L_m_w4")
    compute_waves(a, o)
    a("L_m_w4:")
    fifth_wave(a, o)
    a("L_m_end:\ns_endpgm\nL_m_last:")


def warm_kernel(a, name, rows, w2rows, main, window=63):
    a(f".globl {name}\n.p2align 8\n.type {name},@function\n{name}:")
    a("s_cmp_ge_u32 s2, 256\ns_cbranch_scc1 L_pre_end")
    if rows >= 0:
        a(f"s_load_dwordx2 s[4:5], s[0:1], {KA['ws']}\ns_load_dwordx2 s[6:7], s[0:1], {KA['x']}\ns_load_dwordx2 s[20:21], s[0:1], {KA['w1']}")
        a(f"s_load_dwordx2 s[22:23], s[0:1], {KA['w2']}\ns_load_dwordx2 s[24:25], s[0:1], {KA['out']}")
        a("v_and_b32 v1, 63, v0\ns_lshr_b32 s30, s2, 3\nv_lshlrev_b32 v4, 20, v1\ns_waitcnt lgkmcnt(0)")
        srd(a, 8, 4, WS_FLG + FLG_BYTES); srd(a, 12, 6, X_BYTES); srd(a, 16, 22, W_BYTES_TOTAL); srd(a, 32, 20, W_BYTES_TOTAL); srd(a, 48, 24, X_BYTES)
        for k, rs in enumerate((8, 12, 16, 48)):
            a(f"buffer_load_dword v{100+k}, v4, s[{rs}:{rs+3}], 0 offen sc1")
        a(f"s_getpc_b64 s[12:13]\nL_pre_pc:\ns_sub_u32 s12, s12, L_pre_pc-L_m_base\ns_subb_u32 s13, s13, 0")
        a("s_mov_b32 s14, L_m_last-L_m_base\ns_mov_b32 s15, 0x20000\nv_lshlrev_b32 v4, 4, v1\ns_lshl_b32 s23, s30, 10")
        for k in range(o["code_n"]):
            a("buffer_load_dwordx4 v[96:99], v4, s[12:15], s23 offen\ns_add_u32 s23, s23, 32768")
        w1_stream(a, "pre", 32, 30, 32, 0, rows, window)
        w2_stream(a, "pre", 16, 30, 32, 0, w2rows, window)
    a("L_pre_end:\ns_endpgm")
```

```python
import struct
from asmlib import *
from layout import *
import gemm_core as gc
import mega_ln as ln
import mega_conv as cv
from prefetch import *
import prefetch

AT_LDS = gc.LDS_RING
LN_LDS = 139264
CNT_LDS = LN_LDS + 2*ln.LN_T
LDS_TOTAL = CNT_LDS + 64
S_WS, S_X, S_DBG, S_W1, S_W2 = 4, 6, 94, 96, 98
SPIN = 0x100000
S_TAG = 100
F_SEED = 255 * 256


def f32hex(x):
    return "0x%08x" % struct.unpack("<I", struct.pack("<f", x))[0]


def div6(a, d, r, x):
    a(f"s_mul_i32 s{d}, s{x}, 10923\ns_lshr_b32 s{d}, s{d}, 16\ns_mul_i32 s{r}, s{d}, 6\ns_sub_u32 s{r}, s{x}, s{r}")


def unpk(a, x, p):
    a(f"v_lshlrev_b32 v{x}, 16, v{p}\nv_and_b32 v{x+1}, 0xffff0000, v{p}")


def poll(a, tag, rs, vaddr, soff, target, sleep=1, mask=None):
    a(f"s_mov_b32 s61, {SPIN:#x}\nL_{tag}_poll:\nbuffer_load_dword v62, v{vaddr}, s[{rs}:{rs+3}], {soff} offen sc1")
    a(f"s_sub_u32 s61, s61, 1\ns_cbranch_scc1 L_{tag}_go\ns_waitcnt vmcnt(0)")
    if mask:
        a(f"v_and_b32 v62, {mask:#x}, v62")
    a(f"v_cmp_ne_u32 vcc, {target}, v62")
    a(f"s_cmp_eq_u64 vcc, 0\ns_cbranch_scc1 L_{tag}_go")
    if sleep:
        a(f"s_sleep {sleep}")
    a(f"s_branch L_{tag}_poll\nL_{tag}_go:")


def flags_srd(a, d):
    srd_off(a, d, S_WS, WS_FLG, FLG_BYTES)


def last_wave_signals(a, tag, cnt, rs, soff, word=None, second=None):
    a(f"v_mov_b32 v58, {cnt}\nv_mov_b32 v59, 1\nv_mov_b32 v61, 0\ns_mov_b64 exec, 1\nds_add_rtn_u32 v60, v58, v59\ns_waitcnt lgkmcnt(0)")
    a(f"v_readfirstlane_b32 s23, v60\ns_cmp_lg_u32 s23, 3\ns_cbranch_scc1 L_{tag}_notlast")
    if word:
        a(f"v_mov_b32 v59, {word}\nbuffer_store_dword v59, v61, s[{rs}:{rs+3}], {soff} offen sc1")
    else:
        if second:
            a(f"buffer_atomic_add v59, v61, s[{rs}:{rs+3}], {second} offen sc1")
        a(f"buffer_atomic_add v59, v61, s[{rs}:{rs+3}], {soff} offen sc1")
    a(f"L_{tag}_notlast:\ns_mov_b64 exec, -1")


def ln_local_wait(a, tag, cnt=CNT_LDS+4):
    a(f"v_mov_b32 v58, {cnt}\nL_{tag}:\ns_sleep 2\nds_read_b32 v60, v58\ns_waitcnt lgkmcnt(0)\nv_readfirstlane_b32 s23, v60\ns_cmp_lt_u32 s23, 4\ns_cbranch_scc1 L_{tag}")


def g_pause(a, tag, o):
    if not o["pause"]:
        return
    a(f"s_lshr_b32 s23, s2, 3\ns_mul_i32 s24, s23, 43\ns_lshr_b32 s24, s24, 9\ns_mul_i32 s24, s24, 12\ns_sub_u32 s23, s23, s24\ns_lshl_b32 s23, s23, 8\ns_add_u32 s23, s23, {F_G}")
    a(f"v_mov_b32 v61, 0\ns_mov_b32 s61, {SPIN:#x}\nL_{tag}_poll:\nbuffer_load_dword v62, v61, s[36:39], s23 offen sc1\ns_sub_u32 s61, s61, 1\ns_cbranch_scc1 L_{tag}_go")
    a(f"s_waitcnt vmcnt(0)\nv_readfirstlane_b32 s24, v62\ns_cmp_ge_u32 s24, {o['pause']}\ns_cbranch_scc1 L_{tag}_go\ns_sleep 8\ns_branch L_{tag}_poll\nL_{tag}_go:")


def wait_ln(a, tag, rs, o, base=F_LNW):
    a(f"v_mul_u32_u24 v61, {o['lnw']}, v1\ns_mov_b32 s61, {SPIN:#x}\nL_{tag}_poll:")
    if o["ln_lines"] and base == F_LNW:
        for k in range(4):
            a(f"s_mov_b32 s62, {F_LNW + k*64*o['lnw']}\nbuffer_load_dword v{180+k}, v61, s[{rs}:{rs+3}], s62 offen sc1")
    else:
        a(f"s_mov_b32 s62, {base}\nbuffer_load_dwordx4 v[180:183], v61, s[{rs}:{rs+3}], s62 offen sc1")
    a(f"s_sub_u32 s61, s61, 1\ns_cbranch_scc1 L_{tag}_go\ns_waitcnt vmcnt(0)")
    a(f"v_xor_b32 v180, s{S_TAG+1}, v180\nv_xor_b32 v181, s{S_TAG+1}, v181\nv_xor_b32 v182, s{S_TAG+1}, v182\nv_xor_b32 v183, s{S_TAG+1}, v183")
    a("v_or3_b32 v180, v180, v181, v182\nv_or_b32 v180, v180, v183\nv_cmp_ne_u32 vcc, 0, v180")
    a(f"s_cmp_eq_u64 vcc, 0\ns_cbranch_scc1 L_{tag}_go\ns_sleep {o['slp']}\ns_branch L_{tag}_poll\nL_{tag}_go:")


def tile1(a):
    a("s_and_b32 s12, s2, 7\ns_lshr_b32 s13, s2, 3\ns_and_b32 s14, s12, 1\ns_mul_i32 s14, s14, 3\ns_add_u32 s13, s13, s14")
    a("s_cmp_ge_u32 s13, 27\ns_cselect_b32 s14, 27, 0\ns_sub_u32 s13, s13, s14\ns_mul_i32 s12, s12, 27\ns_add_u32 s12, s12, s13")
    div6(a, 14, 15, 12)


def tile2(a):
    a("s_lshr_b32 s13, s2, 3")
    div6(a, 12, 15, 13)
    a("s_bfe_u32 s19, s2, 0x10002\ns_and_b32 s13, s2, 3\ns_lshl_b32 s14, s13, 2\ns_add_u32 s14, s14, s12")
    a("s_mul_i32 s13, s13, 9\ns_add_u32 s13, s13, 1\ns_lshr_b32 s13, s13, 1")
    a("s_lshl_b32 s16, s14, 7\ns_lshl_b32 s17, s19, 6\ns_add_u32 s16, s16, s17")


def block_jump(kind):
    cnt, base, dst, step = (54, 56, gc.S_W0, 128*4096) if kind == "w" else (55, 57, gc.S_ACT0, 2*73728)
    return [f"s_add_u32 s{cnt}, s{cnt}, 1", f"s_add_u32 s18, s{cnt}, s12", "s_and_b32 s18, s18, 3", f"s_cmp_lt_u32 s{cnt}, 4",
            f"s_cselect_b32 s18, s18, s{cnt}", "s_add_u32 s18, s18, s13", "s_cmp_ge_u32 s18, 18", "s_cselect_b32 s17, 18, 0",
            "s_sub_u32 s18, s18, s17", f"s_mul_i32 s18, s18, {step}", f"s_add_u32 s{dst}, s18, s{base}"]


def gelu_epilogue(a, rounds, rot):
    c1 = -2.0 * 0.7978845608028654 * 1.4426950408889634
    a(f"s_mov_b32 s48, {f32hex(c1*0.044715)}\ns_mov_b32 s49, s48\nv_mov_b32 v36, {f32hex(c1)}\nv_mov_b32 v37, v36")
    for nu in range(4):
        unpk(a, 20+4*nu, 12+2*nu); unpk(a, 22+4*nu, 13+2*nu)
    a(f"s_lshr_b32 s26, s20, 1\ns_mul_i32 s26, s26, {gc.SLOT}\ns_and_b32 s27, s20, 1\ns_mul_i32 s27, s27, 6144\ns_add_u32 s26, s26, s27\ns_add_u32 s26, s26, {gc.W_BYTES}")
    a(f"s_cmp_ge_u32 s2, 192\ns_cselect_b32 s26, {LN_LDS}, s26\nv_add_u32 v38, s26, v7")
    B = 112
    for dl in range(3):
        for pi in range(2):
            src = [(gc.acc(2*pi + (k >> 1), dl) + 2*(k & 1), 20 + 4*(2*pi + (k >> 1)) + 2*(k & 1)) for k in range(4)]
            U = [B + 2*k for k in range(4)]; T = [B + 8 + 2*k for k in range(4)]; P = [B + 16 + k for k in range(4)]
            O = B + 20 + 4*((2*dl + pi) % 2)
            if rounds == 2:
                for k in range(4): a(f"v_cvt_pk_bf16_f32 v{P[k]}, v{src[k][0]}, v{src[k][0]+1}")
                for k in range(4): unpk(a, U[k], P[k])
                for k in range(4): a(f"v_pk_add_f32 {vr(U[k],2)}, {vr(U[k],2)}, {vr(src[k][1],2)}")
            else:
                for k in range(4): a(f"v_pk_add_f32 {vr(U[k],2)}, {vr(src[k][0],2)}, {vr(src[k][1],2)}")
            if rounds >= 1:
                for k in range(4): a(f"v_cvt_pk_bf16_f32 v{P[k]}, v{U[k]}, v{U[k]+1}")
                for k in range(4): unpk(a, U[k], P[k])
            for k in range(4): a(f"v_pk_mul_f32 {vr(T[k],2)}, {vr(U[k],2)}, {vr(U[k],2)}")
            for k in range(4): a(f"v_pk_fma_f32 {vr(T[k],2)}, {vr(T[k],2)}, s[48:49], v[36:37]")
            for k in range(4): a(f"v_pk_mul_f32 {vr(T[k],2)}, {vr(T[k],2)}, {vr(U[k],2)}")
            for k in range(4): a(f"v_exp_f32 v{T[k]}, v{T[k]}\nv_exp_f32 v{T[k]+1}, v{T[k]+1}")
            for k in range(4): a(f"v_pk_add_f32 {vr(T[k],2)}, {vr(T[k],2)}, 1.0 op_sel_hi:[1,0]")
            for k in range(4): a(f"v_rcp_f32 v{T[k]}, v{T[k]}\nv_rcp_f32 v{T[k]+1}, v{T[k]+1}")
            for k in range(4): a(f"v_pk_mul_f32 {vr(U[k],2)}, {vr(U[k],2)}, {vr(T[k],2)}")
            for k in range(4): a(f"v_cvt_pk_bf16_f32 v{O+k}, v{U[k]}, v{U[k]+1}")
            a(f"buffer_store_dwordx4 {vr(O,4)}, v7, s[44:47], s17 offen offset:{1024*pi} sc1")
            if rot:
                a(f"ds_write_b128 v38, {vr(O,4)} offset:{(2*dl + pi)*1024}")
        a("s_add_u32 s17, s17, 2048")


def read_tag(a):
    a(f"s_add_u32 s26, s{S_WS}, {WS_FLG + F_SEED:#x}\ns_addc_u32 s27, s{S_WS+1}, 0\ns_load_dword s{S_TAG+1}, s[26:27], 0")


def make_tag(a):
    a(f"s_mul_i32 s{S_TAG+1}, s{S_TAG+1}, 0x9e3779b1\ns_add_u32 s{S_TAG+1}, s{S_TAG+1}, 0x7f4a7c15\ns_andn2_b32 s{S_TAG}, s{S_TAG+1}, 0xff")


def compute_waves(a, o):
    a("s_waitcnt lgkmcnt(0)")
    ln.ln_issue(a, S_X, o['lnx'], 80 if o['dry'] else 10)
    read_tag(a)
    a(f"s_cmp_lg_u32 s20, 0\ns_cbranch_scc1 L_m_nz\nv_mov_b32 v58, {CNT_LDS}\nv_mov_b32 v60, 0\nv_mov_b32 v61, 0\nv_mov_b32 v62, 0\nv_mov_b32 v63, 0")
    a("ds_write_b128 v58, v[60:63]\nL_m_nz:")
    if o["early_bar"]:
        a("s_waitcnt lgkmcnt(0)\ns_barrier")
    a(f"s_load_dwordx2 s[38:39], s[0:1], {KA['b1']}\ns_load_dwordx8 s[80:87], s[0:1], {KA['lar']}\ns_load_dwordx4 s[88:91], s[0:1], {KA['ldt']}")
    ln.ln_body(a, S_WS, LN_LDS, CNT_LDS, "ln", not o["early_bar"], o["dry"])
    if not o["split_xn"]:
        ln.xn_stores(a, "ln")
    flags_srd(a, 40)
    make_tag(a)
    a("v_mov_b32 v61, 0\ns_cmp_lg_u32 s20, 3\ns_cbranch_scc1 L_m_nozero\ns_sub_u32 s23, s2, 28\ns_cmp_ge_u32 s23, 6\ns_cbranch_scc1 L_m_nozero")
    a("s_lshl_b32 s23, s2, 8\ns_mov_b64 exec, 1\nbuffer_store_dword v61, v61, s[40:43], s23 offen sc1\ns_mov_b64 exec, -1\nL_m_nozero:")
    if o["ln_lines"]:
        a(f"s_mul_i32 s24, s2, {o['lnw']}\ns_add_u32 s24, s24, {F_LNW}")
    else:
        a(f"s_and_b32 s24, s2, 63\ns_mul_i32 s24, s24, {o['lnw']}\ns_lshr_b32 s23, s2, 6\ns_lshl_b32 s23, s23, 2\ns_add_u32 s24, s24, s23\ns_add_u32 s24, s24, {F_LNW}")
    a("s_waitcnt vmcnt(0)\n; STAMP 1")
    last_wave_signals(a, "lnd", CNT_LDS + 4, 40, "s24", word=f"s{S_TAG+1}")
    a("s_lshr_b32 s29, s2, 3\ns_lshl_b32 s29, s29, 2\ns_add_u32 s29, s29, s20")
    srd(a, 32, S_W1, W_BYTES_TOTAL)
    if o["split_xn"]:
        ln.xn_stores(a, "ln")
        a(f"s_and_b32 s24, s2, 63\ns_mul_i32 s24, s24, {o['lnw']}\ns_lshr_b32 s23, s2, 6\ns_lshl_b32 s23, s23, 2\ns_add_u32 s24, s24, s23\ns_add_u32 s24, s24, {F_XNW}")
        if o["b_first"]:
            a("s_cmp_ge_u32 s2, 216\ns_cbranch_scc1 L_m_nob")
            w1_burst(a, 32, 29, 108, o["r1"]//4*5, o["nB"])
            a(f"s_waitcnt vmcnt({o['nB']})\ns_branch L_m_hadb\nL_m_nob:")
            a("s_sub_u32 s31, s2, 216\ns_lshl_b32 s31, s31, 2\ns_add_u32 s31, s31, s20\ns_mul_i32 s31, s31, 3\ns_mov_b32 s28, s24")
            cv.param_loads(a, 80, 88, 90)
            a("s_mov_b32 s24, s28\ns_waitcnt vmcnt(14)\nL_m_hadb:")
        else:
            a("s_waitcnt vmcnt(0)")
        last_wave_signals(a, "xnd", CNT_LDS + 12, 40, "s24", word=f"s{S_TAG+1}")
    a("s_cmp_ge_u32 s2, 216\ns_cbranch_scc1 L_m_conv")
    if not (o["split_xn"] and o["b_first"]):
        w1_burst(a, 32, 29, 108, o["r1"]//4*5, o["nB"])
    srd(a, 32, S_W2, W_BYTES_TOTAL)
    tile1(a)
    gc.lane_ids(a)
    gc.compute_setup(a, "A")
    srd(a, 8, 38, F*2)
    a(f"s_lshr_b32 s16, s20, 1\ns_lshl_b32 s17, s16, 7\ns_lshl_b32 s18, s14, 8\ns_add_u32 s17, s17, s18\nv_lshlrev_b32 v9, 3, v3")
    a("s_mov_b32 s22, s17")

    def b1_loads(a):
        for nu in range(4):
            a(f"buffer_load_dwordx2 {vr(12+2*nu,2)}, v9, s[8:11], s22 offen offset:{32*nu}")
    if not o["b1_late"]:
        b1_loads(a)
    for i in range(48):
        a(f"v_mov_b32 v{gc.V_ACC+i}, 0")
    srd_off(a, 44, S_WS, WS_G, G_BYTES)
    a("s_and_b32 s17, s20, 1\ns_mul_i32 s17, s17, 3\ns_mul_i32 s18, s15, 6\ns_add_u32 s17, s17, s18\ns_lshl_b32 s17, s17, 11")
    a("s_lshl_b32 s18, s14, 1\ns_add_u32 s18, s18, s16\ns_mul_i32 s18, s18, 73728\ns_add_u32 s17, s17, s18")
    a(f"s_mul_i32 s24, s15, 36\ns_add_u32 s24, s24, s14\ns_lshl_b32 s24, s24, 8\ns_add_u32 s24, s24, {F_GW}")
    a(f"s_load_dwordx4 s[52:55], s[0:1], {KA['b2']}")
    gc.compute_main(a, 32*o["rep1"], "A", False, "g1", last_barrier=True, st=(5, 2), tail_hook=b1_loads if o["b1_late"] else None)
    if o["rep1"] == 2:
        for i in range(48):
            a(f"v_mul_f32 v{gc.V_ACC+i}, 0.5, v{gc.V_ACC+i}")
    a("s_waitcnt vmcnt(0)")
    a("; STAMP 9")
    gelu_epilogue(a, o['rnd1'], o['rot'])
    a("s_cmp_lt_u32 s2, 192\ns_cbranch_scc1 L_m_g2\ns_waitcnt vmcnt(0)")
    last_wave_signals(a, "gd", CNT_LDS + 8, 40, "s24", word=f"s{S_TAG+1}")
    a("; STAMP 3\ns_branch L_m_conv1\nL_m_g2:")
    tile2(a)
    gc.compute_setup(a, "B", s_kh=19)
    srd(a, 32, S_X, X_BYTES); srd(a, 28, 52, S*2)
    a("s_lshr_b32 s17, s20, 1\ns_lshl_b32 s17, s17, 5\ns_add_u32 s17, s17, s16")
    a("s_mul_i32 s18, s15, 96\ns_and_b32 s26, s20, 1\ns_mul_i32 s26, s26, 48\ns_add_u32 s18, s18, s26")
    a("v_mul_u32_u24 v58, 1152, v2\nv_lshl_add_u32 v58, v3, 3, v58\nv_lshlrev_b32 v9, 1, v2")
    a("s_mul_i32 s56, s17, 1152\ns_lshl_b32 s26, s18, 1\ns_add_u32 s56, s56, s26\ns_add_u32 s57, s56, 18432\ns_lshl_b32 s26, s17, 1")
    a("s_mov_b32 s22, s26\nv_mov_b32 v39, v58")
    for i in range(48):
        a(f"v_mov_b32 v{gc.V_ACC+i}, 0")
    a("v_bfe_u32 v4, v1, 2, 2\nv_lshl_add_u32 v4, v3, 2, v4\nv_lshlrev_b32 v4, 7, v4\nv_and_b32 v5, 3, v1\nv_lshl_add_u32 v4, v5, 3, v4")
    a(f"s_and_b32 s26, s20, 1\ns_mul_i32 s26, s26, 6144\ns_lshr_b32 s27, s20, 1\ns_lshl_b32 s27, s27, 6\ns_add_u32 s26, s26, s27\ns_add_u32 s26, s26, {AT_LDS}\nv_add_u32 v59, s26, v4")
    a("v_mov_b32 v31, v59")
    a("s_xor_b32 s58, s2, 4\ns_lshl_b32 s26, s20, 12\ns_lshl_b32 s59, s58, 14\ns_add_u32 s59, s59, s26\ns_lshl_b32 s60, s2, 14\ns_add_u32 s60, s60, s26")
    assert o["xbf"]

    SN = 172
    NG = 4 if o["xbf"] else 8
    srd_off(a, 8, S_WS, WS_XCH, XCH_BYTES)

    def send_partials(a):
        for k in range(NG):
            for m in range(3):
                if o["xbf"]:
                    a(f"v_cvt_pk_bf16_f32 v{SN+4*k+m}, v{gc.V_ACC+24+6*k+2*m}, v{gc.V_ACC+25+6*k+2*m}")
                else:
                    a(f"v_mov_b32 v{SN+4*k+m}, v{gc.V_ACC+24+3*k+m}")
            a(f"v_mov_b32 v{SN+4*k+3}, s{S_TAG+1}")
            a(f"buffer_store_dwordx4 {vr(SN+4*k,4)}, v7, s[8:11], s59 offen sc1\ns_add_u32 s59, s59, 1024")

    def x_loads(a):
        for nu in range(2):
            for dl in range(3):
                a(f"buffer_load_dwordx2 {vr(10+2*(3*nu+dl),2)}, v39, s[32:35], s{56+nu} offen offset:{32*dl}{o['xnt']}")
            a(f"buffer_load_ushort v{22+nu}, v9, s[28:31], s22 offen offset:{32*nu}")

    def publish_g(a):
        a("s_waitcnt vmcnt(0)")
        last_wave_signals(a, "gd2", CNT_LDS + 8, 40, "s24", word=f"s{S_TAG+1}")
        a("; STAMP 3\n; SWAIT")
        if not o["x_late"]:
            x_loads(a)

    if o["late_sig"]:
        gc.compute_main(a, 36, "B", True, "g2", st=(5, 4), first_stage1=publish_g)
    else:
        publish_g(a)
        gc.compute_main(a, 36*o["rep2"], "B", True, "g2", st=(5, 4), tail_hook=x_loads if o["x_late"] == "tail" else None,
                        split_tail=send_partials if o["xfirst"] else None)
        if o["rep2"] == 2:
            for i in range(48):
                a(f"v_mul_f32 v{gc.V_ACC+i}, 0.5, v{gc.V_ACC+i}")
    srd(a, 44, 54, X_BYTES)
    a("v_mov_b32 v58, v39\nv_mov_b32 v59, v31")
    a("; STAMP 5")
    if not o["xfirst"]:
        send_partials(a)
    if o["x_late"] is True:
        x_loads(a)
    a("s_barrier")
    AR, PF = 112, 124
    for nu in range(2):
        for dl in range(3):
            a(f"ds_read_b64_tr_b16 {vr(AR+2*(3*nu+dl),2)}, v59 offset:{2048*dl + 32*nu}")
    a(f"s_waitcnt vmcnt({0 if o['x_late'] is True else NG})\nv_lshlrev_b32 v22, 16, v22\nv_lshlrev_b32 v24, 16, v23\ns_waitcnt lgkmcnt(0)")
    for t in range(6):
        for h in range(2):
            unpk(a, 26, 10+2*t+h); unpk(a, 28, AR+2*t+h)
            if o["rnd2"]:
                a("v_pk_add_f32 v[26:27], v[26:27], v[28:29]\nv_cvt_pk_bf16_f32 v30, v26, v27")
                unpk(a, PF+4*t+2*h, 30)
            else:
                b = gc.V_ACC + 4*t + 2*h
                a(f"v_pk_add_f32 v[26:27], v[26:27], v[28:29]\nv_pk_add_f32 {vr(b,2)}, {vr(b,2)}, {vr(22+2*(t//3),2)} op_sel_hi:[1,0]")
                a(f"v_pk_add_f32 {vr(b,2)}, {vr(b,2)}, v[26:27]")
    RX = 204
    if o["xwait"]:
        a("s_waitcnt vmcnt(0)")
    a(f"s_mov_b32 s61, {SPIN:#x}\ns_add_u32 s62, s60, 4096\nL_xch_poll:")
    for k in range(NG):
        a(f"buffer_load_dwordx4 {vr(RX+4*k,4)}, v7, s[8:11], s{60 + 2*(k >> 2)} offen offset:{1024*(k & 3)} sc1")
    a(f"s_sub_u32 s61, s61, 1\ns_cbranch_scc1 L_xch_go\ns_waitcnt vmcnt(0)\nv_xor_b32 v4, s{S_TAG+1}, v{RX+3}")
    for k in range(1, NG):
        a(f"v_xor_b32 v5, s{S_TAG+1}, v{RX+4*k+3}\nv_or_b32 v4, v4, v5")
    a("v_cmp_ne_u32 vcc, 0, v4\ns_cmp_eq_u64 vcc, 0\ns_cbranch_scc1 L_xch_go")
    if o["slpx"]:
        a(f"s_sleep {o['slpx']}")
    a("s_branch L_xch_poll\nL_xch_go:")
    for t in range(6):
        nu, dl = divmod(t, 3)
        b, p = gc.V_ACC + 4*t, PF + 4*t
        if o["xbf"]:
            for h in range(2):
                k, m = divmod(2*t + h, 3)
                unpk(a, 26+2*h, RX+4*k+m)
            for h in range(2): a(f"v_pk_add_f32 {vr(b+2*h,2)}, {vr(b+2*h,2)}, {vr(26+2*h,2)}")
        else:
            for e in range(4):
                k, m = divmod(4*t + e, 3)
                a(f"v_add_f32 v{b+e}, v{b+e}, v{RX+4*k+m}")
        if o['rnd2']:
            for h in range(2): a(f"v_cvt_pk_bf16_f32 v{26+h}, v{b+2*h}, v{b+2*h+1}")
            for h in range(2): unpk(a, b+2*h, 26+h)
            for h in range(2): a(f"v_pk_add_f32 {vr(b+2*h,2)}, {vr(b+2*h,2)}, {vr(22+2*nu,2)} op_sel_hi:[1,0]")
            for h in range(2): a(f"v_cvt_pk_bf16_f32 v{26+h}, v{b+2*h}, v{b+2*h+1}")
            for h in range(2): unpk(a, b+2*h, 26+h)
            for h in range(2): a(f"v_pk_add_f32 {vr(b+2*h,2)}, {vr(b+2*h,2)}, {vr(p+2*h,2)}")
        for h in range(2): a(f"v_cvt_pk_bf16_f32 v{10+2*t+h}, v{b+2*h}, v{b+2*h+1}")
        a(f"buffer_store_dwordx2 {vr(10+2*t,2)}, v58, s[44:47], s{56+nu} offen offset:{32*dl}{o['ont']}")
    a("s_endpgm")
    a("L_m_conv1:\ns_mov_b32 s30, 1\ns_sub_u32 s31, s2, 72\ns_lshl_b32 s31, s31, 2\ns_add_u32 s31, s31, s20")
    cv.param_loads(a, 80, 88, 90)
    a("s_branch L_m_conv2\nL_m_conv:\ns_mov_b32 s30, 3\nL_m_conv2:")
    a("s_mul_i32 s29, s31, 683\ns_lshr_b32 s29, s29, 16")
    assert o["split_xn"] and o["b_first"]

    def signal(a):
        a("s_lshl_b32 s36, s29, 8")
        a(f"s_add_u32 s36, s36, {F_CONV}\nv_mov_b32 v4, 1\nv_mov_b32 v5, 0\ns_mov_b64 exec, 1\nbuffer_atomic_add v4, v5, s[8:11], s36 offen sc1")
    flags_srd(a, 8)
    cv.conv_role(a, "cv", S_WS, lambda a, t: wait_ln(a, "cvln" + t, 8, o, F_XNW if o["split_xn"] else F_LNW), signal)
    a("s_endpgm")


def fifth_wave(a, o):
    if o["prio"]:
        a(f"s_setprio {o['prio']}")
    a(f"s_load_dwordx2 s[48:49], s[0:1], {KA['out']}\ns_load_dwordx8 s[80:87], s[0:1], {KA['lar']}\ns_load_dwordx4 s[52:55], s[0:1], {KA['ldt']}")
    a(f"s_load_dwordx2 s[56:57], s[0:1], {KA['b1']}\ns_load_dwordx2 s[58:59], s[0:1], {KA['b2']}")
    a("s_waitcnt lgkmcnt(0)")
    flags_srd(a, 36)
    read_tag(a)
    if o["tlb"] >= 4:
        srd(a, 8, S_WS, WS_G); srd(a, 16, S_W1, 5 << 20)
        a("v_lshlrev_b32 v4, 21, v1\nbuffer_load_dword v100, v4, s[8:11], 0 offen sc1\nbuffer_load_dword v104, v4, s[16:19], 0 offen")
        srd(a, 8, 56, 4)
        a("buffer_load_dword v105, v4, s[8:11], 0 offen")
    elif o["tlb"]:
        srd(a, 8, S_WS, WS_END); srd(a, 16, S_W2, W_BYTES_TOTAL)
        a("v_lshlrev_b32 v4, 20, v1\nbuffer_load_dword v100, v4, s[8:11], 0 offen sc1\nbuffer_load_dword v101, v4, s[16:19], 0 offen")
        srd(a, 8, 48, X_BYTES); srd(a, 16, S_W1, W_BYTES_TOTAL)
        a("buffer_load_dword v102, v4, s[8:11], 0 offen")
        if o["tlb"] >= 2:
            a("buffer_load_dword v104, v4, s[16:19], 0 offen")
            small = [80, 82, 84, 86, 52, 54, 56, 58]
            for k, p in enumerate(small):
                if o["tlb"] == 3:
                    a(f"s_bfe_u32 s23, s2, 0x30003\ns_cmp_lg_u32 s23, {k}\ns_cbranch_scc1 L_m_tl{k}")
                if k < 6 or not o["bias_pf"]:
                    srd(a, 8, p, 4)
                    a(f"buffer_load_dword v{105+k}, v4, s[8:11], 0 offen")
                else:
                    srd(a, 8, p, F*2 if k == 6 else S*2)
                    a(f"v_lshlrev_b32 v5, 7, v1\nbuffer_load_dword v{105+k}, v5, s[8:11], 0 offen")
                    if k == 6:
                        a("s_mov_b32 s23, 8192\nbuffer_load_dword v113, v5, s[8:11], s23 offen")
                a(f"L_m_tl{k}:")
    if o["touch"]:
        todo = [F_LNW + k*64*o["lnw"] for k in range(4 if o["ln_lines"] else 1)] + [F_XNW] + ([F_REL] if o["agg"] else []) + ([F_CONV] if o["touch_c"] else [])
        for k, off in enumerate(todo):
            a(f"s_cmp_lg_u32 s2, {5*k if k < 2 else 4+k}\ns_cbranch_scc1 L_m_nt{k}\nv_mul_u32_u24 v5, {o['lnw']}, v1\ns_mov_b32 s23, {off}")
            if off == F_CONV:
                a(f"v_min_u32 v5, {5*o['lnw']}, v5")
            a(f"buffer_load_dword v103, v5, s[36:39], s23 offen\nL_m_nt{k}:")
    if o["touch_g"]:
        a(f"s_sub_u32 s23, s2, 1\ns_cmp_ge_u32 s23, 4\ns_cbranch_scc1 L_m_notouch2\nv_lshlrev_b32 v5, 8, v1\ns_lshl_b32 s23, s23, 14\ns_add_u32 s23, s23, {F_GW}")
        a("buffer_load_dword v103, v5, s[36:39], s23 offen\nL_m_notouch2:")
    srd(a, gc.SRD_W, S_W1, W_BYTES_TOTAL)
    if o["early_bar"]:
        a("s_barrier")
    a("s_lshr_b32 s30, s2, 3")
    if o["code_pf"] and not o["code_first"]:
        code_prefetch(a, o)
    w1_stream(a, "m0", gc.SRD_W, 30, 32, o["r0"], o["r1"], o["win1"])
    if o["extra23"]:
        a("s_and_b32 s23, s2, 6\ns_cmp_lg_u32 s23, 2\ns_cbranch_scc1 L_m_nox23")
        w1_stream(a, "m23", gc.SRD_W, 30, 32, 2048 - o["extra23"], 2048, o["win1"])
        a("L_m_nox23:")
    a("s_waitcnt lgkmcnt(0)")
    make_tag(a)
    if not o["early_bar"]:
        a("s_barrier")
    a("; STAMP 0\ns_cmp_ge_u32 s2, 216\ns_cbranch_scc1 L_m_helper")
    tile1(a)
    gc.lane_ids(a)
    a(f"s_mul_i32 s{gc.S_ACT0}, s15, 12288\ns_lshl_b32 s{gc.S_W0}, s14, 8")
    gc.loader_setup(a, 0, 9216, "A")
    srd_off(a, gc.SRD_ACT, S_WS, WS_HT, HT_BYTES)
    a("s_lshr_b32 s60, s2, 3\ns_mul_i32 s60, s60, 10923\ns_lshr_b32 s60, s60, 16")
    ln_local_wait(a, "lw1")
    a("; STAMP 0")
    gc.w_prefill(a, range(4), 0, 9216)
    a("; STAMP 1")
    if o["agg"]:
        a(f"s_and_b32 s23, s2, 7\ns_lshl_b32 s23, s23, 8\ns_add_u32 s23, s23, {F_REL}\ns_cmp_ge_u32 s2, 8\ns_cbranch_scc1 L_m_follow")
        wait_ln(a, "l1", 36, dict(o, slp=o["slpa"]))
        a(f"v_mov_b32 v4, s{S_TAG+1}\nv_mov_b32 v5, 0\ns_mov_b64 exec, 1\nbuffer_store_dword v4, v5, s[36:39], s23 offen sc1\ns_mov_b64 exec, -1\ns_branch L_l1f_go\nL_m_follow:\nv_mov_b32 v61, 0")
        poll(a, "l1f", 36, 61, "s23", f"s{S_TAG+1}", sleep=o["slp"])
    else:
        wait_ln(a, "l1", 36, o)
    a(f"; STAMP 2\ns_cmp_lg_u32 s2, 0\ns_cbranch_scc1 L_m_noseed\nv_mov_b32 v4, s{S_TAG+1}\nv_mov_b32 v5, {F_SEED}\ns_mov_b64 exec, 1")
    a("buffer_store_dword v4, v5, s[36:39], 0 offen sc1\ns_mov_b64 exec, -1\nL_m_noseed:")
    gc.loader_after_prefill(a, 32*o["rep1"], 0, 9216, "g1", o["aflags"], tail=lambda a: None, wrap=(2048*9216, 32*73728) if o["rep1"] == 2 else None,
                            s_group=60 if o["lead1"] else None)
    srd(a, gc.SRD_W, S_W2, W_BYTES_TOTAL)
    a("s_cmp_lt_u32 s2, 192\ns_cbranch_scc1 L_m_l2")
    a("s_waitcnt vmcnt(28)\ns_barrier\ns_waitcnt vmcnt(0)\ns_barrier\ns_barrier\ns_sub_u32 s30, s2, 152\ns_lshr_b32 s30, s30, 3")
    ln_local_wait(a, "lw3", CNT_LDS+8)
    if o["x_pf"] == "early":
        srd(a, 8, S_X, X_BYTES); a("s_sub_u32 s31, s30, 5\ns_mul_i32 s31, s31, 3")
        for k in range(3):
            if k == 2:
                a("s_cmp_eq_u32 s31, 8\ns_cbranch_scc1 L_m_nox")
            x_stream(a, f"xe{k}", 8, 31)
            a("s_add_u32 s31, s31, 1")
        a("L_m_nox:")
    g_pause(a, "gp3", o)
    w2_stream(a, "m3", gc.SRD_W, 30, 8, o["r2"] + 96*o["nC"], 2304, o["win3"])
    if o["x_pf"] is True:
        srd(a, 8, S_X, X_BYTES); x_stream(a, "x3", 8, 30)
    a("s_endpgm\nL_m_l2:")
    tile2(a)
    a(f"s_mul_i32 s57, s15, 12288\ns_mul_i32 s18, s19, {36*73728}\ns_add_u32 s57, s57, s18")
    a(f"s_lshl_b32 s56, s14, 8\ns_mul_i32 s18, s19, {HALF2}\ns_add_u32 s56, s56, s18\ns_mov_b32 s54, -1\ns_mov_b32 s55, -1")
    jump = block_jump if o["rot"] else None
    if o["rot"]:
        a.extend(block_jump("w") + block_jump("a"))
    else:
        a(f"s_mov_b32 s{gc.S_W0}, s56\ns_mov_b32 s{gc.S_ACT0}, s57")
    gc.loader_setup(a, 0, 4096, "B")
    srd_off(a, gc.SRD_ACT, S_WS, WS_G, G_BYTES)
    e2 = o["early2"]
    for j, vm in enumerate((28, 0, None)):
        if j < e2:
            gc.w_prefill(a, [j], 0, 4096, jump)
        if vm is not None:
            a(f"s_waitcnt vmcnt({vm + 16*min(j+1, e2)})")
        a("s_barrier")
    a("; STAMP 5")
    gc.w_prefill(a, range(min(e2, 3), 4), 0, 4096, jump)
    a("v_mov_b32 v61, 0\n; STAMP 3")

    def wait_slot(a):
        a(f"s_mul_i32 s23, s15, 36\ns_mul_i32 s24, s19, 18\ns_add_u32 s23, s23, s24\ns_lshl_b32 s23, s23, 8\ns_add_u32 s23, s23, {F_GW}")
        a("v_and_b32 v60, 3, v1\nv_add_u32 v60, s13, v60\nv_lshlrev_b32 v60, 8, v60")
        poll(a, "l2a", 36, 60, "s23", f"s{S_TAG+1}", sleep=o["slpg"])
        a("; STAMP 4\nv_min_u32 v60, 17, v1\nv_lshlrev_b32 v60, 8, v60\ns_mov_b32 s53, s23")

    def peek_half(a):
        a("buffer_load_dword v63, v60, s[36:39], s53 offen sc1")

    def wait_half(a):
        if o["rot"] and o["peek"]:
            a(f"v_cmp_ne_u32 vcc, s{S_TAG+1}, v63\ns_cmp_eq_u64 vcc, 0\ns_cbranch_scc1 L_l2b_go")
        poll(a, "l2b", 36, 60, "s53", f"s{S_TAG+1}", sleep=o["slpg"])

    def at_dma(a):
        for e in range(12):
            a(f"s_mov_b32 m0, {AT_LDS + 1024*e}\nbuffer_load_dwordx4 v8, s[48:51], s26 offen sc1 lds\ns_add_u32 s26, s26, 32768")

    def at_early(a):
        srd_off(a, 48, S_WS, WS_AT, AT_BYTES)
        a(f"s_lshl_b32 s23, s15, 8\ns_add_u32 s23, s23, {F_CONV}\nbuffer_load_dword v62, v61, s[36:39], s23 offen sc1")
        a("v_lshrrev_b32 v8, 3, v1\nv_lshlrev_b32 v8, 12, v8\nv_and_b32 v9, 7, v1\nv_lshl_add_u32 v8, v9, 4, v8")
        a(f"s_mul_i32 s26, s15, {96*4096}\ns_lshl_b32 s27, s16, 1\ns_add_u32 s26, s26, s27")
        a("s_cmp_eq_u32 s15, 5\ns_cselect_b32 s24, 96, 32\ns_waitcnt vmcnt(0)\nv_readfirstlane_b32 s27, v62")
        a("s_cmp_lg_u32 s27, s24\ns_cbranch_scc1 L_at_skip")
        at_dma(a)
        a("L_at_skip:")
    if o["rot"]:
        gc.loader_after_prefill(a, 36, 0, 4096, "g2", o["aflags"], before_last=at_early, jump=block_jump, wait2=wait_slot, wait8=wait_half, peek8=peek_half if o['peek'] else None)
    else:
        ln_local_wait(a, "lw4", CNT_LDS+8)
        a(f"s_mul_i32 s53, s15, 36\ns_mul_i32 s24, s19, 18\ns_add_u32 s53, s53, s24\ns_lshl_b32 s53, s53, 8\ns_add_u32 s53, s53, {F_GW}")
        a("v_min_u32 v60, 17, v1\nv_lshlrev_b32 v60, 8, v60")
        wait_half(a)
        a("; STAMP 4")
        gc.loader_after_prefill(a, 36*o["rep2"], 0, 4096, "g2", o["aflags"], before_last=at_early, wrap=(HALF2, 36*73728) if o["rep2"] == 2 else None,
                                s_group=60 if o["lead2"] else None)
    a("s_cmp_eq_u32 s27, s24\ns_cbranch_scc1 L_at_done")
    poll(a, "at", 36, 61, "s23", "s24")
    at_dma(a)
    a("L_at_done:\ns_waitcnt vmcnt(0)\ns_barrier\ns_endpgm")
    a("L_m_helper:\ns_sub_u32 s30, s2, 216\ns_lshr_b32 s30, s30, 3")
    ln_local_wait(a, "lw2", CNT_LDS + (12 if o["split_xn"] and not o["h_early"] else 4))
    if o["tlb"] >= 4:
        M2 = 2 << 20
        items = [(S_W1, k*M2) for k in range(3, 9)] + [(S_W1, W_BYTES_TOTAL - 4)] + [(p, 0) for p in (80, 82, 84, 86, 52, 54)]
        items += [(S_WS, k*M2) for k in range(WS_G//M2 + 1, (WS_END - 1)//M2 + 1)] + [(S_W2, k*M2) for k in range(9)] + [(S_W2, W_BYTES_TOTAL - 4)]
        items += [(48, 0), (48, X_BYTES - 4), (58, 0)]
        for h in range(5):
            a(f"s_cmp_lg_u32 s30, {h}\ns_cbranch_scc1 L_m_st{h}")
            for k, (p, off) in enumerate(items[h::5]):
                a(f"s_add_u32 s8, s{p}, {off:#x}\ns_addc_u32 s9, s{p+1}, 0\ns_load_dword s{12+k}, s[8:9], 0")
            a(f"L_m_st{h}:")
    if o["b1_late"]:
        srd(a, 8, 56, F*2); srd(a, 12, 58, S*2)
        a("v_lshlrev_b32 v5, 7, v1\ns_mov_b32 s23, 8192\nbuffer_load_dword v105, v5, s[8:11], 0 offen\nbuffer_load_dword v106, v5, s[8:11], s23 offen\nbuffer_load_dword v107, v5, s[12:15], 0 offen")
    w1_stream(a, "m1", gc.SRD_W, 30, 5, o["r1"] + 108*o["nB"]//5*4, 2048, o["win2"], short23=o["extra23"])
    a("; STAMP 1")
    srd(a, gc.SRD_W, S_W2, W_BYTES_TOTAL)
    if o["rot"]:
        w2_head(a, "mh", gc.SRD_W, 30, 5, o["win2"])
    w2_stream(a, "m2", gc.SRD_W, 30, 5, 512 if o["rot"] else o["r20"], o["r2"], o["win2"])
    a("; STAMP 2")
    g_pause(a, "gp4", o)
    w2_stream(a, "m4", gc.SRD_W, 30, 8, o["r2"] + 96*o["nC"], 2304, o["win3"])
    if o["x_pf"] is True:
        srd(a, 8, S_X, X_BYTES); x_stream(a, "x4", 8, 30)
    if o["b2_pf"]:
        srd(a, 8, 58, S*2)
        a("v_lshlrev_b32 v5, 7, v1\nbuffer_load_dword v107, v5, s[8:11], 0 offen")


def code_prefetch(a, o):
    a("s_getpc_b64 s[12:13]\nL_m_pc:\ns_sub_u32 s12, s12, L_m_pc-L_m_base\ns_subb_u32 s13, s13, 0")
    a("s_mov_b32 s14, L_m_last-L_m_base\ns_mov_b32 s15, 0x20000\nv_lshlrev_b32 v4, 4, v1\ns_lshr_b32 s23, s2, 3\ns_lshl_b32 s23, s23, 10")
    for k in range(o["code_n"]):
        a("buffer_load_dwordx4 v[96:99], v4, s[12:15], s23 offen\ns_add_u32 s23, s23, 32768")


def mega(a, name, **opt):
    o = dict(code_first=5, b2_pf=True, peek=True, touch_c=True, xfirst=False, code_n=2, unc=False, unl=False, lead1=False, lead2=False, b_first=True, h_early=True, agg=False, slpa=0, split_xn=True, slpg=1, slpx=0, lead=7, dry=False, b1_late=False, lnx=' nt', bias_pf=False, touch_g=True, xwait=True, early_bar=False, extra23=0, r0=0, r20=0, rep1=1, rep2=1, uflags='', rot=True, x_pf=True, ln_lines=False, x_late='tail', late_sig=False, pause=0, xbf=True, rnd1=0, rnd2=0, prio=0, lnw=256, slp=4, touch=True, tlb=4, early2=3, xnt='', ont='', prefill_late=True, r1=384, nB=3, r2=512, nC=0, win1=12, win2=56, win3=56, aflags=" sc1", code_pf=9)
    o.update(opt)
    prefetch.ROT = o["rot"]
    cv.UFLAGS = o["uflags"]
    gc.LEAD = o["lead"]
    gc.UNROLL_C, gc.UNROLL_L = o["unc"], o["unl"]
    a(f".globl {name}\n.p2align 8\n.type {name},@function\n{name}:\nL_m_base:")
    a("s_cmp_ge_u32 s2, 256\ns_cbranch_scc1 L_m_end")
    a(f"s_load_dwordx2 s[{S_X}:{S_X+1}], s[0:1], {KA['x']}\ns_load_dwordx2 s[{S_WS}:{S_WS+1}], s[0:1], {KA['ws']}")
    a(f"s_load_dwordx2 s[{S_W1}:{S_W1+1}], s[0:1], {KA['w1']}\ns_load_dwordx2 s[{S_W2}:{S_W2+1}], s[0:1], {KA['w2']}")
    a("v_lshrrev_b32 v1, 6, v0\nv_readfirstlane_b32 s20, v1\nv_and_b32 v1, 63, v0")
    if o["code_first"]:
        a(f"s_cmp_lg_u32 s20, {o['code_first'] - 1}\ns_cbranch_scc1 L_m_nocode")
        code_prefetch(a, o)
        a("L_m_nocode:")
    a("s_cmp_eq_u32 s20, 4\ns_cbranch_scc1 L_m_w4")
    compute_waves(a, o)
    a("L_m_w4:")
    fifth_wave(a, o)
    a("L_m_end:\ns_endpgm\nL_m_last:")


def warm_kernel(a, name, rows, w2rows, main, window=63):
    a(f".globl {name}\n.p2align 8\n.type {name},@function\n{name}:")
    a("s_cmp_ge_u32 s2, 256\ns_cbranch_scc1 L_pre_end")
    if rows >= 0:
        a(f"s_load_dwordx2 s[4:5], s[0:1], {KA['ws']}\ns_load_dwordx2 s[6:7], s[0:1], {KA['x']}\ns_load_dwordx2 s[20:21], s[0:1], {KA['w1']}")
        a(f"s_load_dwordx2 s[22:23], s[0:1], {KA['w2']}\ns_load_dwordx2 s[24:25], s[0:1], {KA['out']}")
        a("v_and_b32 v1, 63, v0\ns_lshr_b32 s30, s2, 3\nv_lshlrev_b32 v4, 20, v1\ns_waitcnt lgkmcnt(0)")
        srd(a, 8, 4, WS_FLG + FLG_BYTES); srd(a, 12, 6, X_BYTES); srd(a, 16, 22, W_BYTES_TOTAL); srd(a, 32, 20, W_BYTES_TOTAL); srd(a, 48, 24, X_BYTES)
        for k, rs in enumerate((8, 12, 16, 48)):
            a(f"buffer_load_dword v{100+k}, v4, s[{rs}:{rs+3}], 0 offen sc1")
        a(f"s_getpc_b64 s[12:13]\nL_pre_pc:\ns_sub_u32 s12, s12, L_pre_pc-L_m_base\ns_subb_u32 s13, s13, 0")
        a("s_mov_b32 s14, L_m_last-L_m_base\ns_mov_b32 s15, 0x20000\nv_lshlrev_b32 v4, 4, v1\ns_lshl_b32 s23, s30, 10")
        for k in range(o["code_n"]):
            a("buffer_load_dwordx4 v[96:99], v4, s[12:15], s23 offen\ns_add_u32 s23, s23, 32768")
        w1_stream(a, "pre", 32, 30, 32, 0, rows, window)
        w2_stream(a, "pre", 16, 30, 32, 0, w2rows, window)
    a("L_pre_end:\ns_endpgm")
```

```python
import struct
from asmlib import *
from layout import *
import gemm_core as gc
import mega_ln as ln
import mega_conv as cv
from prefetch import *
import prefetch

AT_LDS = gc.LDS_RING
LN_LDS = 139264
CNT_LDS = LN_LDS + 2*ln.LN_T
LDS_TOTAL = CNT_LDS + 64
S_WS, S_X, S_DBG, S_W1, S_W2 = 4, 6, 94, 96, 98
SPIN = 0x100000
S_TAG = 100
F_SEED = 255 * 256


def f32hex(x):
    return "0x%08x" % struct.unpack("<I", struct.pack("<f", x))[0]


def div6(a, d, r, x):
    a(f"s_mul_i32 s{d}, s{x}, 10923\ns_lshr_b32 s{d}, s{d}, 16\ns_mul_i32 s{r}, s{d}, 6\ns_sub_u32 s{r}, s{x}, s{r}")


def unpk(a, x, p):
    a(f"v_lshlrev_b32 v{x}, 16, v{p}\nv_and_b32 v{x+1}, 0xffff0000, v{p}")


def poll(a, tag, rs, vaddr, soff, target, sleep=1, mask=None):
    a(f"s_mov_b32 s61, {SPIN:#x}\nL_{tag}_poll:\nbuffer_load_dword v62, v{vaddr}, s[{rs}:{rs+3}], {soff} offen sc1")
    a(f"s_sub_u32 s61, s61, 1\ns_cbranch_scc1 L_{tag}_go\ns_waitcnt vmcnt(0)")
    if mask:
        a(f"v_and_b32 v62, {mask:#x}, v62")
    a(f"v_cmp_ne_u32 vcc, {target}, v62")
    a(f"s_cmp_eq_u64 vcc, 0\ns_cbranch_scc1 L_{tag}_go")
    if sleep:
        a(f"s_sleep {sleep}")
    a(f"s_branch L_{tag}_poll\nL_{tag}_go:")


def flags_srd(a, d):
    srd_off(a, d, S_WS, WS_FLG, FLG_BYTES)


def last_wave_signals(a, tag, cnt, rs, soff, word=None, second=None):
    a(f"v_mov_b32 v58, {cnt}\nv_mov_b32 v59, 1\nv_mov_b32 v61, 0\ns_mov_b64 exec, 1\nds_add_rtn_u32 v60, v58, v59\ns_waitcnt lgkmcnt(0)")
    a(f"v_readfirstlane_b32 s23, v60\ns_cmp_lg_u32 s23, 3\ns_cbranch_scc1 L_{tag}_notlast")
    if word:
        a(f"v_mov_b32 v59, {word}\nbuffer_store_dword v59, v61, s[{rs}:{rs+3}], {soff} offen sc1")
    else:
        if second:
            a(f"buffer_atomic_add v59, v61, s[{rs}:{rs+3}], {second} offen sc1")
        a(f"buffer_atomic_add v59, v61, s[{rs}:{rs+3}], {soff} offen sc1")
    a(f"L_{tag}_notlast:\ns_mov_b64 exec, -1")


def ln_local_wait(a, tag, cnt=CNT_LDS+4):
    a(f"v_mov_b32 v58, {cnt}\nL_{tag}:\ns_sleep 2\nds_read_b32 v60, v58\ns_waitcnt lgkmcnt(0)\nv_readfirstlane_b32 s23, v60\ns_cmp_lt_u32 s23, 4\ns_cbranch_scc1 L_{tag}")


def g_pause(a, tag, o):
    if not o["pause"]:
        return
    a(f"s_lshr_b32 s23, s2, 3\ns_mul_i32 s24, s23, 43\ns_lshr_b32 s24, s24, 9\ns_mul_i32 s24, s24, 12\ns_sub_u32 s23, s23, s24\ns_lshl_b32 s23, s23, 8\ns_add_u32 s23, s23, {F_G}")
    a(f"v_mov_b32 v61, 0\ns_mov_b32 s61, {SPIN:#x}\nL_{tag}_poll:\nbuffer_load_dword v62, v61, s[36:39], s23 offen sc1\ns_sub_u32 s61, s61, 1\ns_cbranch_scc1 L_{tag}_go")
    a(f"s_waitcnt vmcnt(0)\nv_readfirstlane_b32 s24, v62\ns_cmp_ge_u32 s24, {o['pause']}\ns_cbranch_scc1 L_{tag}_go\ns_sleep 8\ns_branch L_{tag}_poll\nL_{tag}_go:")


def wait_ln(a, tag, rs, o, base=F_LNW):
    a(f"v_mul_u32_u24 v61, {o['lnw']}, v1\ns_mov_b32 s61, {SPIN:#x}\nL_{tag}_poll:")
    if o["ln_lines"] and base == F_LNW:
        for k in range(4):
            a(f"s_mov_b32 s62, {F_LNW + k*64*o['lnw']}\nbuffer_load_dword v{180+k}, v61, s[{rs}:{rs+3}], s62 offen sc1")
    else:
        a(f"s_mov_b32 s62, {base}\nbuffer_load_dwordx4 v[180:183], v61, s[{rs}:{rs+3}], s62 offen sc1")
    a(f"s_sub_u32 s61, s61, 1\ns_cbranch_scc1 L_{tag}_go\ns_waitcnt vmcnt(0)")
    a(f"v_xor_b32 v180, s{S_TAG+1}, v180\nv_xor_b32 v181, s{S_TAG+1}, v181\nv_xor_b32 v182, s{S_TAG+1}, v182\nv_xor_b32 v183, s{S_TAG+1}, v183")
    a("v_or3_b32 v180, v180, v181, v182\nv_or_b32 v180, v180, v183\nv_cmp_ne_u32 vcc, 0, v180")
    a(f"s_cmp_eq_u64 vcc, 0\ns_cbranch_scc1 L_{tag}_go\ns_sleep {o['slp']}\ns_branch L_{tag}_poll\nL_{tag}_go:")


def tile1(a):
    a("s_and_b32 s12, s2, 7\ns_lshr_b32 s13, s2, 3\ns_and_b32 s14, s12, 1\ns_mul_i32 s14, s14, 3\ns_add_u32 s13, s13, s14")
    a("s_cmp_ge_u32 s13, 27\ns_cselect_b32 s14, 27, 0\ns_sub_u32 s13, s13, s14\ns_mul_i32 s12, s12, 27\ns_add_u32 s12, s12, s13")
    div6(a, 14, 15, 12)


def tile2(a):
    a("s_lshr_b32 s13, s2, 3")
    div6(a, 12, 15, 13)
    a("s_bfe_u32 s19, s2, 0x10002\ns_and_b32 s13, s2, 3\ns_lshl_b32 s14, s13, 2\ns_add_u32 s14, s14, s12")
    a("s_mul_i32 s13, s13, 9\ns_add_u32 s13, s13, 1\ns_lshr_b32 s13, s13, 1")
    a("s_lshl_b32 s16, s14, 7\ns_lshl_b32 s17, s19, 6\ns_add_u32 s16, s16, s17")


def block_jump(kind):
    cnt, base, dst, step = (54, 56, gc.S_W0, 128*4096) if kind == "w" else (55, 57, gc.S_ACT0, 2*73728)
    return [f"s_add_u32 s{cnt}, s{cnt}, 1", f"s_add_u32 s18, s{cnt}, s12", "s_and_b32 s18, s18, 3", f"s_cmp_lt_u32 s{cnt}, 4",
            f"s_cselect_b32 s18, s18, s{cnt}", "s_add_u32 s18, s18, s13", "s_cmp_ge_u32 s18, 18", "s_cselect_b32 s17, 18, 0",
            "s_sub_u32 s18, s18, s17", f"s_mul_i32 s18, s18, {step}", f"s_add_u32 s{dst}, s18, s{base}"]


def gelu_epilogue(a, rounds, rot):
    c1 = -2.0 * 0.7978845608028654 * 1.4426950408889634
    a(f"s_mov_b32 s48, {f32hex(c1*0.044715)}\ns_mov_b32 s49, s48\nv_mov_b32 v36, {f32hex(c1)}\nv_mov_b32 v37, v36")
    for nu in range(4):
        unpk(a, 20+4*nu, 12+2*nu); unpk(a, 22+4*nu, 13+2*nu)
    a(f"s_lshr_b32 s26, s20, 1\ns_mul_i32 s26, s26, {gc.SLOT}\ns_and_b32 s27, s20, 1\ns_mul_i32 s27, s27, 6144\ns_add_u32 s26, s26, s27\ns_add_u32 s26, s26, {gc.W_BYTES}")
    a(f"s_cmp_ge_u32 s2, 192\ns_cselect_b32 s26, {LN_LDS}, s26\nv_add_u32 v38, s26, v7")
    B = 112
    for dl in range(3):
        for pi in range(2):
            src = [(gc.acc(2*pi + (k >> 1), dl) + 2*(k & 1), 20 + 4*(2*pi + (k >> 1)) + 2*(k & 1)) for k in range(4)]
            U = [B + 2*k for k in range(4)]; T = [B + 8 + 2*k for k in range(4)]; P = [B + 16 + k for k in range(4)]
            O = B + 20 + 4*((2*dl + pi) % 2)
            if rounds == 2:
                for k in range(4): a(f"v_cvt_pk_bf16_f32 v{P[k]}, v{src[k][0]}, v{src[k][0]+1}")
                for k in range(4): unpk(a, U[k], P[k])
                for k in range(4): a(f"v_pk_add_f32 {vr(U[k],2)}, {vr(U[k],2)}, {vr(src[k][1],2)}")
            else:
                for k in range(4): a(f"v_pk_add_f32 {vr(U[k],2)}, {vr(src[k][0],2)}, {vr(src[k][1],2)}")
            if rounds >= 1:
                for k in range(4): a(f"v_cvt_pk_bf16_f32 v{P[k]}, v{U[k]}, v{U[k]+1}")
                for k in range(4): unpk(a, U[k], P[k])
            for k in range(4): a(f"v_pk_mul_f32 {vr(T[k],2)}, {vr(U[k],2)}, {vr(U[k],2)}")
            for k in range(4): a(f"v_pk_fma_f32 {vr(T[k],2)}, {vr(T[k],2)}, s[48:49], v[36:37]")
            for k in range(4): a(f"v_pk_mul_f32 {vr(T[k],2)}, {vr(T[k],2)}, {vr(U[k],2)}")
            for k in range(4): a(f"v_exp_f32 v{T[k]}, v{T[k]}\nv_exp_f32 v{T[k]+1}, v{T[k]+1}")
            for k in range(4): a(f"v_pk_add_f32 {vr(T[k],2)}, {vr(T[k],2)}, 1.0 op_sel_hi:[1,0]")
            for k in range(4): a(f"v_rcp_f32 v{T[k]}, v{T[k]}\nv_rcp_f32 v{T[k]+1}, v{T[k]+1}")
            for k in range(4): a(f"v_pk_mul_f32 {vr(U[k],2)}, {vr(U[k],2)}, {vr(T[k],2)}")
            for k in range(4): a(f"v_cvt_pk_bf16_f32 v{O+k}, v{U[k]}, v{U[k]+1}")
            a(f"buffer_store_dwordx4 {vr(O,4)}, v7, s[44:47], s17 offen offset:{1024*pi} sc1")
            if rot:
                a(f"ds_write_b128 v38, {vr(O,4)} offset:{(2*dl + pi)*1024}")
        a("s_add_u32 s17, s17, 2048")


def read_tag(a):
    a(f"s_add_u32 s26, s{S_WS}, {WS_FLG + F_SEED:#x}\ns_addc_u32 s27, s{S_WS+1}, 0\ns_load_dword s{S_TAG+1}, s[26:27], 0")


def make_tag(a):
    a(f"s_mul_i32 s{S_TAG+1}, s{S_TAG+1}, 0x9e3779b1\ns_add_u32 s{S_TAG+1}, s{S_TAG+1}, 0x7f4a7c15\ns_andn2_b32 s{S_TAG}, s{S_TAG+1}, 0xff")


def compute_waves(a, o):
    a("s_waitcnt lgkmcnt(0)")
    for k in range(o["hops"]):
        a(f"s_branch L_hop{k}\n.fill 127, 4, 0xbf800000\nL_hop{k}:")
    ln.ln_issue(a, S_X, o['lnx'], 80 if o['dry'] else 10)
    read_tag(a)
    a(f"s_cmp_lg_u32 s20, 0\ns_cbranch_scc1 L_m_nz\nv_mov_b32 v58, {CNT_LDS}\nv_mov_b32 v60, 0\nv_mov_b32 v61, 0\nv_mov_b32 v62, 0\nv_mov_b32 v63, 0")
    a("ds_write_b128 v58, v[60:63]\nL_m_nz:")
    if o["early_bar"]:
        a("s_waitcnt lgkmcnt(0)\ns_barrier")
    a(f"s_load_dwordx2 s[38:39], s[0:1], {KA['b1']}\ns_load_dwordx8 s[80:87], s[0:1], {KA['lar']}\ns_load_dwordx4 s[88:91], s[0:1], {KA['ldt']}")
    ln.ln_body(a, S_WS, LN_LDS, CNT_LDS, "ln", not o["early_bar"], o["dry"])
    if not o["split_xn"]:
        ln.xn_stores(a, "ln")
    flags_srd(a, 40)
    make_tag(a)
    a("v_mov_b32 v61, 0\ns_cmp_lg_u32 s20, 3\ns_cbranch_scc1 L_m_nozero\ns_sub_u32 s23, s2, 28\ns_cmp_ge_u32 s23, 6\ns_cbranch_scc1 L_m_nozero")
    a("s_lshl_b32 s23, s2, 8\ns_mov_b64 exec, 1\nbuffer_store_dword v61, v61, s[40:43], s23 offen sc1\ns_mov_b64 exec, -1\nL_m_nozero:")
    if o["ln_lines"]:
        a(f"s_mul_i32 s24, s2, {o['lnw']}\ns_add_u32 s24, s24, {F_LNW}")
    else:
        a(f"s_and_b32 s24, s2, 63\ns_mul_i32 s24, s24, {o['lnw']}\ns_lshr_b32 s23, s2, 6\ns_lshl_b32 s23, s23, 2\ns_add_u32 s24, s24, s23\ns_add_u32 s24, s24, {F_LNW}")
    a("s_waitcnt vmcnt(0)\n; STAMP 1")
    last_wave_signals(a, "lnd", CNT_LDS + 4, 40, "s24", word=f"s{S_TAG+1}")
    a("s_lshr_b32 s29, s2, 3\ns_lshl_b32 s29, s29, 2\ns_add_u32 s29, s29, s20")
    srd(a, 32, S_W1, W_BYTES_TOTAL)
    if o["split_xn"]:
        ln.xn_stores(a, "ln")
        a(f"s_and_b32 s24, s2, 63\ns_mul_i32 s24, s24, {o['lnw']}\ns_lshr_b32 s23, s2, 6\ns_lshl_b32 s23, s23, 2\ns_add_u32 s24, s24, s23\ns_add_u32 s24, s24, {F_XNW}")
        a("s_cmp_ge_u32 s2, 216\ns_cbranch_scc1 L_m_conv")
        w1_burst(a, 32, 29, 108, o["r1"]//4*5, o["nB"])
        a(f"s_waitcnt vmcnt({o['nB']})")
        last_wave_signals(a, "xnd", CNT_LDS + 12, 40, "s24", word=f"s{S_TAG+1}")
    if not (o["split_xn"] and o["b_first"]):
        w1_burst(a, 32, 29, 108, o["r1"]//4*5, o["nB"])
    srd(a, 32, S_W2, W_BYTES_TOTAL)
    tile1(a)
    gc.lane_ids(a)
    gc.compute_setup(a, "A")
    srd(a, 8, 38, F*2)
    a(f"s_lshr_b32 s16, s20, 1\ns_lshl_b32 s17, s16, 7\ns_lshl_b32 s18, s14, 8\ns_add_u32 s17, s17, s18\nv_lshlrev_b32 v9, 3, v3")
    a("s_mov_b32 s22, s17")

    def b1_loads(a):
        for nu in range(4):
            a(f"buffer_load_dwordx2 {vr(12+2*nu,2)}, v9, s[8:11], s22 offen offset:{32*nu}")
    if not o["b1_late"]:
        b1_loads(a)
    for i in range(48):
        a(f"v_mov_b32 v{gc.V_ACC+i}, 0")
    srd_off(a, 44, S_WS, WS_G, G_BYTES)
    a("s_and_b32 s17, s20, 1\ns_mul_i32 s17, s17, 3\ns_mul_i32 s18, s15, 6\ns_add_u32 s17, s17, s18\ns_lshl_b32 s17, s17, 11")
    a("s_lshl_b32 s18, s14, 1\ns_add_u32 s18, s18, s16\ns_mul_i32 s18, s18, 73728\ns_add_u32 s17, s17, s18")
    a(f"s_mul_i32 s24, s15, 36\ns_add_u32 s24, s24, s14\ns_lshl_b32 s24, s24, 8\ns_add_u32 s24, s24, {F_GW}")
    a(f"s_load_dwordx4 s[52:55], s[0:1], {KA['b2']}")
    gc.compute_main(a, 32*o["rep1"], "A", False, "g1", last_barrier=True, st=(5, 2), tail_hook=b1_loads if o["b1_late"] else None)
    if o["rep1"] == 2:
        for i in range(48):
            a(f"v_mul_f32 v{gc.V_ACC+i}, 0.5, v{gc.V_ACC+i}")
    a("s_waitcnt vmcnt(0)")
    a("; STAMP 9")
    gelu_epilogue(a, o['rnd1'], o['rot'])
    a("s_cmp_ge_u32 s2, 192\ns_cbranch_scc1 L_m_conv1")
    tile2(a)
    gc.compute_setup(a, "B", s_kh=19)
    srd(a, 32, S_X, X_BYTES); srd(a, 28, 52, S*2)
    a("s_lshr_b32 s17, s20, 1\ns_lshl_b32 s17, s17, 5\ns_add_u32 s17, s17, s16")
    a("s_mul_i32 s18, s15, 96\ns_and_b32 s26, s20, 1\ns_mul_i32 s26, s26, 48\ns_add_u32 s18, s18, s26")
    a("v_mul_u32_u24 v58, 1152, v2\nv_lshl_add_u32 v58, v3, 3, v58\nv_lshlrev_b32 v9, 1, v2")
    a("s_mul_i32 s56, s17, 1152\ns_lshl_b32 s26, s18, 1\ns_add_u32 s56, s56, s26\ns_add_u32 s57, s56, 18432\ns_lshl_b32 s26, s17, 1")
    a("s_mov_b32 s22, s26\nv_mov_b32 v39, v58")
    for i in range(48):
        a(f"v_mov_b32 v{gc.V_ACC+i}, 0")
    a("v_bfe_u32 v4, v1, 2, 2\nv_lshl_add_u32 v4, v3, 2, v4\nv_lshlrev_b32 v4, 7, v4\nv_and_b32 v5, 3, v1\nv_lshl_add_u32 v4, v5, 3, v4")
    a(f"s_and_b32 s26, s20, 1\ns_mul_i32 s26, s26, 6144\ns_lshr_b32 s27, s20, 1\ns_lshl_b32 s27, s27, 6\ns_add_u32 s26, s26, s27\ns_add_u32 s26, s26, {AT_LDS}\nv_add_u32 v59, s26, v4")
    a("v_mov_b32 v31, v59")
    a("s_xor_b32 s58, s2, 4\ns_lshl_b32 s26, s20, 12\ns_lshl_b32 s59, s58, 14\ns_add_u32 s59, s59, s26\ns_lshl_b32 s60, s2, 14\ns_add_u32 s60, s60, s26")
    assert o["xbf"]

    SN = 172
    NG = 4 if o["xbf"] else 8
    srd_off(a, 8, S_WS, WS_XCH, XCH_BYTES)

    def send_partials(a):
        for k in range(NG):
            for m in range(3):
                if o["xbf"]:
                    a(f"v_cvt_pk_bf16_f32 v{SN+4*k+m}, v{gc.V_ACC+24+6*k+2*m}, v{gc.V_ACC+25+6*k+2*m}")
                else:
                    a(f"v_mov_b32 v{SN+4*k+m}, v{gc.V_ACC+24+3*k+m}")
            a(f"v_mov_b32 v{SN+4*k+3}, s{S_TAG+1}")
            a(f"buffer_store_dwordx4 {vr(SN+4*k,4)}, v7, s[8:11], s59 offen sc1\ns_add_u32 s59, s59, 1024")

    def x_loads(a):
        for nu in range(2):
            for dl in range(3):
                a(f"buffer_load_dwordx2 {vr(10+2*(3*nu+dl),2)}, v39, s[32:35], s{56+nu} offen offset:{32*dl}{o['xnt']}")
            a(f"buffer_load_ushort v{22+nu}, v9, s[28:31], s22 offen offset:{32*nu}")

    def publish_g(a):
        a("s_waitcnt vmcnt(0)")
        last_wave_signals(a, "gd2", CNT_LDS + 8, 40, "s24", word=f"s{S_TAG+1}")
        a("; STAMP 3\n; SWAIT")
        if not o["x_late"]:
            x_loads(a)

    if o["late_sig"]:
        gc.compute_main(a, 36, "B", True, "g2", st=(5, 4), first_stage1=publish_g)
    else:
        publish_g(a)
        gc.compute_main(a, 36*o["rep2"], "B", True, "g2", st=(5, 4), tail_hook=x_loads if o["x_late"] == "tail" else None,
                        split_tail=send_partials if o["xfirst"] else None)
        if o["rep2"] == 2:
            for i in range(48):
                a(f"v_mul_f32 v{gc.V_ACC+i}, 0.5, v{gc.V_ACC+i}")
    srd(a, 44, 54, X_BYTES)
    a("v_mov_b32 v58, v39\nv_mov_b32 v59, v31")
    a("; STAMP 5")
    if not o["xfirst"]:
        send_partials(a)
    if o["x_late"] is True:
        x_loads(a)
    a("s_barrier")
    AR, PF = 112, 124
    for nu in range(2):
        for dl in range(3):
            a(f"ds_read_b64_tr_b16 {vr(AR+2*(3*nu+dl),2)}, v59 offset:{2048*dl + 32*nu}")
    a(f"s_waitcnt vmcnt({0 if o['x_late'] is True else NG})\nv_lshlrev_b32 v22, 16, v22\nv_lshlrev_b32 v24, 16, v23\ns_waitcnt lgkmcnt(0)")
    for t in range(6):
        for h in range(2):
            unpk(a, 26, 10+2*t+h); unpk(a, 28, AR+2*t+h)
            if o["rnd2"]:
                a("v_pk_add_f32 v[26:27], v[26:27], v[28:29]\nv_cvt_pk_bf16_f32 v30, v26, v27")
                unpk(a, PF+4*t+2*h, 30)
            else:
                b = gc.V_ACC + 4*t + 2*h
                a(f"v_pk_add_f32 v[26:27], v[26:27], v[28:29]\nv_pk_add_f32 {vr(b,2)}, {vr(b,2)}, {vr(22+2*(t//3),2)} op_sel_hi:[1,0]")
                a(f"v_pk_add_f32 {vr(b,2)}, {vr(b,2)}, v[26:27]")
    RX = 204
    if o["xwait"]:
        a("s_waitcnt vmcnt(0)")
    a(f"s_mov_b32 s61, {SPIN:#x}\ns_add_u32 s62, s60, 4096\nL_xch_poll:")
    for k in range(NG):
        a(f"buffer_load_dwordx4 {vr(RX+4*k,4)}, v7, s[8:11], s{60 + 2*(k >> 2)} offen offset:{1024*(k & 3)} sc1")
    a(f"s_sub_u32 s61, s61, 1\ns_cbranch_scc1 L_xch_go\ns_waitcnt vmcnt(0)\nv_xor_b32 v4, s{S_TAG+1}, v{RX+3}")
    for k in range(1, NG):
        a(f"v_xor_b32 v5, s{S_TAG+1}, v{RX+4*k+3}\nv_or_b32 v4, v4, v5")
    a("v_cmp_ne_u32 vcc, 0, v4\ns_cmp_eq_u64 vcc, 0\ns_cbranch_scc1 L_xch_go")
    if o["slpx"]:
        a(f"s_sleep {o['slpx']}")
    a("s_branch L_xch_poll\nL_xch_go:")
    for t in range(6):
        nu, dl = divmod(t, 3)
        b, p = gc.V_ACC + 4*t, PF + 4*t
        if o["xbf"]:
            for h in range(2):
                k, m = divmod(2*t + h, 3)
                unpk(a, 26+2*h, RX+4*k+m)
            for h in range(2): a(f"v_pk_add_f32 {vr(b+2*h,2)}, {vr(b+2*h,2)}, {vr(26+2*h,2)}")
        else:
            for e in range(4):
                k, m = divmod(4*t + e, 3)
                a(f"v_add_f32 v{b+e}, v{b+e}, v{RX+4*k+m}")
        if o['rnd2']:
            for h in range(2): a(f"v_cvt_pk_bf16_f32 v{26+h}, v{b+2*h}, v{b+2*h+1}")
            for h in range(2): unpk(a, b+2*h, 26+h)
            for h in range(2): a(f"v_pk_add_f32 {vr(b+2*h,2)}, {vr(b+2*h,2)}, {vr(22+2*nu,2)} op_sel_hi:[1,0]")
            for h in range(2): a(f"v_cvt_pk_bf16_f32 v{26+h}, v{b+2*h}, v{b+2*h+1}")
            for h in range(2): unpk(a, b+2*h, 26+h)
            for h in range(2): a(f"v_pk_add_f32 {vr(b+2*h,2)}, {vr(b+2*h,2)}, {vr(p+2*h,2)}")
        for h in range(2): a(f"v_cvt_pk_bf16_f32 v{10+2*t+h}, v{b+2*h}, v{b+2*h+1}")
        a(f"buffer_store_dwordx2 {vr(10+2*t,2)}, v58, s[44:47], s{56+nu} offen offset:{32*dl}{o['ont']}")
    a("s_endpgm")
    a("L_m_conv1:\ns_waitcnt vmcnt(0)")
    last_wave_signals(a, "gd", CNT_LDS + 8, 40, "s24", word=f"s{S_TAG+1}")
    a("; STAMP 3\ns_mov_b32 s30, 1\ns_sub_u32 s31, s2, 72\ns_lshl_b32 s31, s31, 2\ns_add_u32 s31, s31, s20")
    cv.param_loads(a, 80, 88, 90)
    a("s_branch L_m_conv2\nL_m_conv:")
    a("s_sub_u32 s31, s2, 216\ns_lshl_b32 s31, s31, 2\ns_add_u32 s31, s31, s20\ns_mul_i32 s31, s31, 3\ns_mov_b32 s28, s24")
    cv.param_loads(a, 80, 88, 90)
    a("s_waitcnt vmcnt(14)")
    last_wave_signals(a, "xnd2", CNT_LDS + 12, 40, "s28", word=f"s{S_TAG+1}")
    a("s_mov_b32 s30, 3\nL_m_conv2:")
    a("s_mul_i32 s29, s31, 683\ns_lshr_b32 s29, s29, 16")
    assert o["split_xn"] and o["b_first"]

    def signal(a):
        a("s_lshl_b32 s36, s29, 8")
        a(f"s_add_u32 s36, s36, {F_CONV}\nv_mov_b32 v4, 1\nv_mov_b32 v5, 0\ns_mov_b64 exec, 1\nbuffer_atomic_add v4, v5, s[8:11], s36 offen sc1")
    flags_srd(a, 8)
    cv.conv_role(a, "cv", S_WS, lambda a, t: wait_ln(a, "cvln" + t, 8, o, F_XNW if o["split_xn"] else F_LNW), signal)
    a("s_endpgm")


def fifth_wave(a, o):
    if o["prio"]:
        a(f"s_setprio {o['prio']}")
    a(f"s_load_dwordx2 s[48:49], s[0:1], {KA['out']}\ns_load_dwordx8 s[80:87], s[0:1], {KA['lar']}\ns_load_dwordx4 s[52:55], s[0:1], {KA['ldt']}")
    a(f"s_load_dwordx2 s[56:57], s[0:1], {KA['b1']}\ns_load_dwordx2 s[58:59], s[0:1], {KA['b2']}")
    a("s_waitcnt lgkmcnt(0)")
    flags_srd(a, 36)
    read_tag(a)
    if o["tlb"] >= 4:
        srd(a, 8, S_WS, WS_G); srd(a, 16, S_W1, 5 << 20)
        a("v_lshlrev_b32 v4, 21, v1\nbuffer_load_dword v100, v4, s[8:11], 0 offen sc1\nbuffer_load_dword v104, v4, s[16:19], 0 offen")
        srd(a, 8, 56, 4)
        a("buffer_load_dword v105, v4, s[8:11], 0 offen")
    elif o["tlb"]:
        srd(a, 8, S_WS, WS_END); srd(a, 16, S_W2, W_BYTES_TOTAL)
        a("v_lshlrev_b32 v4, 20, v1\nbuffer_load_dword v100, v4, s[8:11], 0 offen sc1\nbuffer_load_dword v101, v4, s[16:19], 0 offen")
        srd(a, 8, 48, X_BYTES); srd(a, 16, S_W1, W_BYTES_TOTAL)
        a("buffer_load_dword v102, v4, s[8:11], 0 offen")
        if o["tlb"] >= 2:
            a("buffer_load_dword v104, v4, s[16:19], 0 offen")
            small = [80, 82, 84, 86, 52, 54, 56, 58]
            for k, p in enumerate(small):
                if o["tlb"] == 3:
                    a(f"s_bfe_u32 s23, s2, 0x30003\ns_cmp_lg_u32 s23, {k}\ns_cbranch_scc1 L_m_tl{k}")
                if k < 6 or not o["bias_pf"]:
                    srd(a, 8, p, 4)
                    a(f"buffer_load_dword v{105+k}, v4, s[8:11], 0 offen")
                else:
                    srd(a, 8, p, F*2 if k == 6 else S*2)
                    a(f"v_lshlrev_b32 v5, 7, v1\nbuffer_load_dword v{105+k}, v5, s[8:11], 0 offen")
                    if k == 6:
                        a("s_mov_b32 s23, 8192\nbuffer_load_dword v113, v5, s[8:11], s23 offen")
                a(f"L_m_tl{k}:")
    if o["touch"]:
        todo = [F_LNW + k*64*o["lnw"] for k in range(4 if o["ln_lines"] else 1)] + [F_XNW] + ([F_REL] if o["agg"] else []) + ([F_CONV] if o["touch_c"] else [])
        for k, off in enumerate(todo):
            a(f"s_cmp_lg_u32 s2, {5*k if k < 2 else 4+k}\ns_cbranch_scc1 L_m_nt{k}\nv_mul_u32_u24 v5, {o['lnw']}, v1\ns_mov_b32 s23, {off}")
            if off == F_CONV:
                a(f"v_min_u32 v5, {5*o['lnw']}, v5")
            a(f"buffer_load_dword v103, v5, s[36:39], s23 offen\nL_m_nt{k}:")
    if o["touch_g"]:
        a(f"s_sub_u32 s23, s2, 1\ns_cmp_ge_u32 s23, 4\ns_cbranch_scc1 L_m_notouch2\nv_lshlrev_b32 v5, 8, v1\ns_lshl_b32 s23, s23, 14\ns_add_u32 s23, s23, {F_GW}")
        a("buffer_load_dword v103, v5, s[36:39], s23 offen\nL_m_notouch2:")
    srd(a, gc.SRD_W, S_W1, W_BYTES_TOTAL)
    if o["early_bar"]:
        a("s_barrier")
    a("s_lshr_b32 s30, s2, 3")
    if o["code_pf"] and not o["code_first"]:
        code_prefetch(a, o)
    w1_stream(a, "m0", gc.SRD_W, 30, 32, o["r0"], o["r1"], o["win1"])
    if o["extra23"]:
        a("s_and_b32 s23, s2, 6\ns_cmp_lg_u32 s23, 2\ns_cbranch_scc1 L_m_nox23")
        w1_stream(a, "m23", gc.SRD_W, 30, 32, 2048 - o["extra23"], 2048, o["win1"])
        a("L_m_nox23:")
    a("s_waitcnt lgkmcnt(0)")
    make_tag(a)
    if not o["early_bar"]:
        a("s_barrier")
    a("; STAMP 0\ns_cmp_ge_u32 s2, 216\ns_cbranch_scc1 L_m_helper")
    tile1(a)
    gc.lane_ids(a)
    a(f"s_mul_i32 s{gc.S_ACT0}, s15, 12288\ns_lshl_b32 s{gc.S_W0}, s14, 8")
    gc.loader_setup(a, 0, 9216, "A")
    srd_off(a, gc.SRD_ACT, S_WS, WS_HT, HT_BYTES)
    a("s_lshr_b32 s60, s2, 3\ns_mul_i32 s60, s60, 10923\ns_lshr_b32 s60, s60, 16")
    ln_local_wait(a, "lw1")
    a("; STAMP 0")
    gc.w_prefill(a, range(4), 0, 9216)
    a("; STAMP 1")
    if o["agg"]:
        a(f"s_and_b32 s23, s2, 7\ns_lshl_b32 s23, s23, 8\ns_add_u32 s23, s23, {F_REL}\ns_cmp_ge_u32 s2, 8\ns_cbranch_scc1 L_m_follow")
        wait_ln(a, "l1", 36, dict(o, slp=o["slpa"]))
        a(f"v_mov_b32 v4, s{S_TAG+1}\nv_mov_b32 v5, 0\ns_mov_b64 exec, 1\nbuffer_store_dword v4, v5, s[36:39], s23 offen sc1\ns_mov_b64 exec, -1\ns_branch L_l1f_go\nL_m_follow:\nv_mov_b32 v61, 0")
        poll(a, "l1f", 36, 61, "s23", f"s{S_TAG+1}", sleep=o["slp"])
    else:
        wait_ln(a, "l1", 36, o)
    a(f"; STAMP 2\ns_cmp_lg_u32 s2, 0\ns_cbranch_scc1 L_m_noseed\nv_mov_b32 v4, s{S_TAG+1}\nv_mov_b32 v5, {F_SEED}\ns_mov_b64 exec, 1")
    a("buffer_store_dword v4, v5, s[36:39], 0 offen sc1\ns_mov_b64 exec, -1\nL_m_noseed:")
    gc.loader_after_prefill(a, 32*o["rep1"], 0, 9216, "g1", o["aflags"], tail=lambda a: None, wrap=(2048*9216, 32*73728) if o["rep1"] == 2 else None,
                            s_group=60 if o["lead1"] else None)
    srd(a, gc.SRD_W, S_W2, W_BYTES_TOTAL)
    a("s_cmp_ge_u32 s2, 192\ns_cbranch_scc1 L_m_late")
    tile2(a)
    a(f"s_mul_i32 s57, s15, 12288\ns_mul_i32 s18, s19, {36*73728}\ns_add_u32 s57, s57, s18")
    a(f"s_lshl_b32 s56, s14, 8\ns_mul_i32 s18, s19, {HALF2}\ns_add_u32 s56, s56, s18\ns_mov_b32 s54, -1\ns_mov_b32 s55, -1")
    jump = block_jump if o["rot"] else None
    if o["rot"]:
        a.extend(block_jump("w") + block_jump("a"))
    else:
        a(f"s_mov_b32 s{gc.S_W0}, s56\ns_mov_b32 s{gc.S_ACT0}, s57")
    gc.loader_setup(a, 0, 4096, "B")
    srd_off(a, gc.SRD_ACT, S_WS, WS_G, G_BYTES)
    e2 = o["early2"]
    for j, vm in enumerate((28, 0, None)):
        if j < e2:
            gc.w_prefill(a, [j], 0, 4096, jump)
        if vm is not None:
            a(f"s_waitcnt vmcnt({vm + 16*min(j+1, e2)})")
        a("s_barrier")
    a("; STAMP 5")
    gc.w_prefill(a, range(min(e2, 3), 4), 0, 4096, jump)
    a("v_mov_b32 v61, 0\n; STAMP 3")

    def wait_slot(a):
        a(f"s_mul_i32 s23, s15, 36\ns_mul_i32 s24, s19, 18\ns_add_u32 s23, s23, s24\ns_lshl_b32 s23, s23, 8\ns_add_u32 s23, s23, {F_GW}")
        a("v_and_b32 v60, 3, v1\nv_add_u32 v60, s13, v60\nv_lshlrev_b32 v60, 8, v60")
        poll(a, "l2a", 36, 60, "s23", f"s{S_TAG+1}", sleep=o["slpg"])
        a("; STAMP 4\nv_min_u32 v60, 17, v1\nv_lshlrev_b32 v60, 8, v60\ns_mov_b32 s53, s23")

    def peek_half(a):
        a("buffer_load_dword v63, v60, s[36:39], s53 offen sc1")

    def wait_half(a):
        if o["rot"] and o["peek"]:
            a(f"v_cmp_ne_u32 vcc, s{S_TAG+1}, v63\ns_cmp_eq_u64 vcc, 0\ns_cbranch_scc1 L_l2b_go")
        poll(a, "l2b", 36, 60, "s53", f"s{S_TAG+1}", sleep=o["slpg"])

    def at_dma(a):
        for e in range(12):
            a(f"s_mov_b32 m0, {AT_LDS + 1024*e}\nbuffer_load_dwordx4 v8, s[48:51], s26 offen sc1 lds\ns_add_u32 s26, s26, 32768")

    def at_early(a):
        srd_off(a, 48, S_WS, WS_AT, AT_BYTES)
        a(f"s_lshl_b32 s23, s15, 8\ns_add_u32 s23, s23, {F_CONV}\nbuffer_load_dword v62, v61, s[36:39], s23 offen sc1")
        a("v_lshrrev_b32 v8, 3, v1\nv_lshlrev_b32 v8, 12, v8\nv_and_b32 v9, 7, v1\nv_lshl_add_u32 v8, v9, 4, v8")
        a(f"s_mul_i32 s26, s15, {96*4096}\ns_lshl_b32 s27, s16, 1\ns_add_u32 s26, s26, s27")
        a("s_cmp_eq_u32 s15, 5\ns_cselect_b32 s24, 96, 32\ns_waitcnt vmcnt(0)\nv_readfirstlane_b32 s27, v62")
        a("s_cmp_lg_u32 s27, s24\ns_cbranch_scc1 L_at_skip")
        at_dma(a)
        a("L_at_skip:")
    if o["rot"]:
        gc.loader_after_prefill(a, 36, 0, 4096, "g2", o["aflags"], before_last=at_early, jump=block_jump, wait2=wait_slot, wait8=wait_half, peek8=peek_half if o['peek'] else None)
    else:
        ln_local_wait(a, "lw4", CNT_LDS+8)
        a(f"s_mul_i32 s53, s15, 36\ns_mul_i32 s24, s19, 18\ns_add_u32 s53, s53, s24\ns_lshl_b32 s53, s53, 8\ns_add_u32 s53, s53, {F_GW}")
        a("v_min_u32 v60, 17, v1\nv_lshlrev_b32 v60, 8, v60")
        wait_half(a)
        a("; STAMP 4")
        gc.loader_after_prefill(a, 36*o["rep2"], 0, 4096, "g2", o["aflags"], before_last=at_early, wrap=(HALF2, 36*73728) if o["rep2"] == 2 else None,
                                s_group=60 if o["lead2"] else None)
    a("s_cmp_lg_u32 s27, s24\ns_cbranch_scc1 L_at_late\ns_waitcnt vmcnt(0)\ns_barrier\ns_endpgm\nL_at_late:")
    poll(a, "at", 36, 61, "s23", "s24")
    at_dma(a)
    a("s_waitcnt vmcnt(0)\ns_barrier\ns_endpgm")
    a("L_m_late:")
    a("s_waitcnt vmcnt(28)\ns_barrier\ns_waitcnt vmcnt(0)\ns_barrier\ns_barrier\ns_sub_u32 s30, s2, 152\ns_lshr_b32 s30, s30, 3")
    ln_local_wait(a, "lw3", CNT_LDS+8)
    if o["x_pf"] == "early":
        srd(a, 8, S_X, X_BYTES); a("s_sub_u32 s31, s30, 5\ns_mul_i32 s31, s31, 3")
        for k in range(3):
            if k == 2:
                a("s_cmp_eq_u32 s31, 8\ns_cbranch_scc1 L_m_nox")
            x_stream(a, f"xe{k}", 8, 31)
            a("s_add_u32 s31, s31, 1")
        a("L_m_nox:")
    g_pause(a, "gp3", o)
    w2_stream(a, "m3", gc.SRD_W, 30, 8, o["r2"] + 96*o["nC"], 2304, o["win3"])
    if o["x_pf"] is True:
        srd(a, 8, S_X, X_BYTES); x_stream(a, "x3", 8, 30)
    a("s_endpgm")
    a("L_m_helper:\ns_sub_u32 s30, s2, 216\ns_lshr_b32 s30, s30, 3")
    ln_local_wait(a, "lw2", CNT_LDS + (12 if o["split_xn"] and not o["h_early"] else 4))
    if o["tlb"] >= 4:
        M2 = 2 << 20
        items = [(S_W1, k*M2) for k in range(3, 9)] + [(S_W1, W_BYTES_TOTAL - 4)] + [(p, 0) for p in (80, 82, 84, 86, 52, 54)]
        items += [(S_WS, k*M2) for k in range(WS_G//M2 + 1, (WS_END - 1)//M2 + 1)] + [(S_W2, k*M2) for k in range(9)] + [(S_W2, W_BYTES_TOTAL - 4)]
        items += [(48, 0), (48, X_BYTES - 4), (58, 0)]
        for h in range(5):
            a(f"s_cmp_lg_u32 s30, {h}\ns_cbranch_scc1 L_m_st{h}")
            for k, (p, off) in enumerate(items[h::5]):
                a(f"s_add_u32 s8, s{p}, {off:#x}\ns_addc_u32 s9, s{p+1}, 0\ns_load_dword s{12+k}, s[8:9], 0")
            a(f"L_m_st{h}:")
    if o["b1_late"]:
        srd(a, 8, 56, F*2); srd(a, 12, 58, S*2)
        a("v_lshlrev_b32 v5, 7, v1\ns_mov_b32 s23, 8192\nbuffer_load_dword v105, v5, s[8:11], 0 offen\nbuffer_load_dword v106, v5, s[8:11], s23 offen\nbuffer_load_dword v107, v5, s[12:15], 0 offen")
    w1_stream(a, "m1", gc.SRD_W, 30, 5, o["r1"] + 108*o["nB"]//5*4, 2048, o["win2"], short23=o["extra23"])
    a("; STAMP 1")
    srd(a, gc.SRD_W, S_W2, W_BYTES_TOTAL)
    if o["rot"]:
        w2_head(a, "mh", gc.SRD_W, 30, 5, o["win2"])
    w2_stream(a, "m2", gc.SRD_W, 30, 5, 512 if o["rot"] else o["r20"], o["r2"], o["win2"])
    a("; STAMP 2")
    g_pause(a, "gp4", o)
    w2_stream(a, "m4", gc.SRD_W, 30, 8, o["r2"] + 96*o["nC"], 2304, o["win3"])
    if o["x_pf"] is True:
        srd(a, 8, S_X, X_BYTES); x_stream(a, "x4", 8, 30)
    if o["b2_pf"]:
        srd(a, 8, 58, S*2)
        a("v_lshlrev_b32 v5, 7, v1\nbuffer_load_dword v107, v5, s[8:11], 0 offen")


def code_prefetch(a, o):
    a("s_getpc_b64 s[12:13]\nL_m_pc:\ns_sub_u32 s12, s12, L_m_pc-L_m_base\ns_subb_u32 s13, s13, 0")
    a("s_mov_b32 s14, L_m_last-L_m_base\ns_mov_b32 s15, 0x20000\nv_lshlrev_b32 v4, 4, v1\ns_lshr_b32 s23, s2, 3\ns_lshl_b32 s23, s23, 10")
    for k in range(o["code_n"]):
        a("buffer_load_dwordx4 v[96:99], v4, s[12:15], s23 offen\ns_add_u32 s23, s23, 32768")


def mega(a, name, **opt):
    o = dict(hops=0, code_first=1, b2_pf=True, peek=True, touch_c=True, xfirst=False, code_n=2, unc=False, unl=False, lead1=False, lead2=False, b_first=True, h_early=True, agg=False, slpa=0, split_xn=True, slpg=1, slpx=0, lead=7, dry=False, b1_late=False, lnx=' nt', bias_pf=False, touch_g=True, xwait=True, early_bar=False, extra23=0, r0=0, r20=0, rep1=1, rep2=1, uflags='', rot=True, x_pf=True, ln_lines=False, x_late='tail', late_sig=False, pause=0, xbf=True, rnd1=0, rnd2=0, prio=0, lnw=256, slp=4, touch=True, tlb=4, early2=3, xnt='', ont='', prefill_late=True, r1=384, nB=3, r2=512, nC=0, win1=12, win2=56, win3=56, aflags=" sc1", code_pf=9)
    o.update(opt)
    prefetch.ROT = o["rot"]
    cv.UFLAGS = o["uflags"]
    gc.LEAD = o["lead"]
    gc.UNROLL_C, gc.UNROLL_L = o["unc"], o["unl"]
    a(f".globl {name}\n.p2align 8\n.type {name},@function\n{name}:\nL_m_base:")
    a("s_cmp_ge_u32 s2, 256\ns_cbranch_scc1 L_m_end")
    a(f"s_load_dwordx2 s[{S_X}:{S_X+1}], s[0:1], {KA['x']}\ns_load_dwordx2 s[{S_WS}:{S_WS+1}], s[0:1], {KA['ws']}")
    a(f"s_load_dwordx2 s[{S_W1}:{S_W1+1}], s[0:1], {KA['w1']}\ns_load_dwordx2 s[{S_W2}:{S_W2+1}], s[0:1], {KA['w2']}")
    a("v_lshrrev_b32 v1, 6, v0\nv_readfirstlane_b32 s20, v1\nv_and_b32 v1, 63, v0")
    if o["code_first"]:
        a(f"s_cmp_lg_u32 s20, {o['code_first'] - 1}\ns_cbranch_scc1 L_m_nocode")
        code_prefetch(a, o)
        a("L_m_nocode:")
    a("s_cmp_eq_u32 s20, 4\ns_cbranch_scc1 L_m_w4")
    compute_waves(a, o)
    a("L_m_w4:")
    fifth_wave(a, o)
    a("L_m_end:\ns_endpgm\nL_m_last:")


def warm_kernel(a, name, rows, w2rows, main, window=63):
    a(f".globl {name}\n.p2align 8\n.type {name},@function\n{name}:")
    a("s_cmp_ge_u32 s2, 256\ns_cbranch_scc1 L_pre_end")
    if rows >= 0:
        a(f"s_load_dwordx2 s[4:5], s[0:1], {KA['ws']}\ns_load_dwordx2 s[6:7], s[0:1], {KA['x']}\ns_load_dwordx2 s[20:21], s[0:1], {KA['w1']}")
        a(f"s_load_dwordx2 s[22:23], s[0:1], {KA['w2']}\ns_load_dwordx2 s[24:25], s[0:1], {KA['out']}")
        a("v_and_b32 v1, 63, v0\ns_lshr_b32 s30, s2, 3\nv_lshlrev_b32 v4, 20, v1\ns_waitcnt lgkmcnt(0)")
        srd(a, 8, 4, WS_FLG + FLG_BYTES); srd(a, 12, 6, X_BYTES); srd(a, 16, 22, W_BYTES_TOTAL); srd(a, 32, 20, W_BYTES_TOTAL); srd(a, 48, 24, X_BYTES)
        for k, rs in enumerate((8, 12, 16, 48)):
            a(f"buffer_load_dword v{100+k}, v4, s[{rs}:{rs+3}], 0 offen sc1")
        a(f"s_getpc_b64 s[12:13]\nL_pre_pc:\ns_sub_u32 s12, s12, L_pre_pc-L_m_base\ns_subb_u32 s13, s13, 0")
        a("s_mov_b32 s14, L_m_last-L_m_base\ns_mov_b32 s15, 0x20000\nv_lshlrev_b32 v4, 4, v1\ns_lshl_b32 s23, s30, 10")
        for k in range(o["code_n"]):
            a("buffer_load_dwordx4 v[96:99], v4, s[12:15], s23 offen\ns_add_u32 s23, s23, 32768")
        w1_stream(a, "pre", 32, 30, 32, 0, rows, window)
        w2_stream(a, "pre", 16, 30, 32, 0, w2rows, window)
    a("L_pre_end:\ns_endpgm")
```

```python
import struct
from asmlib import *
from layout import *
import gemm_core as gc
import mega_ln as ln
import mega_conv as cv
from prefetch import *
import prefetch

AT_LDS = gc.LDS_RING
LN_LDS = int(__import__("os").environ.get("LN_LDS", 139264))
CNT_LDS = LN_LDS + 2*ln.LN_T
LDS_TOTAL = CNT_LDS + 64
S_WS, S_X, S_DBG, S_W1, S_W2 = 4, 6, 94, 96, 98
SPIN = 0x100000
S_TAG = 100
F_SEED = 255 * 256


def f32hex(x):
    return "0x%08x" % struct.unpack("<I", struct.pack("<f", x))[0]


def div6(a, d, r, x):
    a(f"s_mul_i32 s{d}, s{x}, 10923\ns_lshr_b32 s{d}, s{d}, 16\ns_mul_i32 s{r}, s{d}, 6\ns_sub_u32 s{r}, s{x}, s{r}")


def unpk(a, x, p):
    a(f"v_lshlrev_b32 v{x}, 16, v{p}\nv_and_b32 v{x+1}, 0xffff0000, v{p}")


def poll(a, tag, rs, vaddr, soff, target, sleep=1, mask=None):
    a(f"s_mov_b32 s61, {SPIN:#x}\nL_{tag}_poll:\nbuffer_load_dword v62, v{vaddr}, s[{rs}:{rs+3}], {soff} offen sc1")
    a(f"s_sub_u32 s61, s61, 1\ns_cbranch_scc1 L_{tag}_go\ns_waitcnt vmcnt(0)")
    if mask:
        a(f"v_and_b32 v62, {mask:#x}, v62")
    a(f"v_cmp_ne_u32 vcc, {target}, v62")
    a(f"s_cmp_eq_u64 vcc, 0\ns_cbranch_scc1 L_{tag}_go")
    if sleep:
        a(f"s_sleep {sleep}")
    a(f"s_branch L_{tag}_poll\nL_{tag}_go:")


def flags_srd(a, d):
    srd_off(a, d, S_WS, WS_FLG, FLG_BYTES)


def last_wave_signals(a, tag, cnt, rs, soff, word=None, second=None):
    a(f"v_mov_b32 v58, {cnt}\nv_mov_b32 v59, 1\nv_mov_b32 v61, 0\ns_mov_b64 exec, 1\nds_add_rtn_u32 v60, v58, v59\ns_waitcnt lgkmcnt(0)")
    a(f"v_readfirstlane_b32 s23, v60\ns_cmp_lg_u32 s23, 3\ns_cbranch_scc1 L_{tag}_notlast")
    if word:
        a(f"v_mov_b32 v59, {word}\nbuffer_store_dword v59, v61, s[{rs}:{rs+3}], {soff} offen sc1")
    else:
        if second:
            a(f"buffer_atomic_add v59, v61, s[{rs}:{rs+3}], {second} offen sc1")
        a(f"buffer_atomic_add v59, v61, s[{rs}:{rs+3}], {soff} offen sc1")
    a(f"L_{tag}_notlast:\ns_mov_b64 exec, -1")


def ln_local_wait(a, tag, cnt=CNT_LDS+4):
    a(f"v_mov_b32 v58, {cnt}\nL_{tag}:\ns_sleep 2\nds_read_b32 v60, v58\ns_waitcnt lgkmcnt(0)\nv_readfirstlane_b32 s23, v60\ns_cmp_lt_u32 s23, 4\ns_cbranch_scc1 L_{tag}")


def g_pause(a, tag, o):
    if not o["pause"]:
        return
    a(f"s_lshr_b32 s23, s2, 3\ns_mul_i32 s24, s23, 43\ns_lshr_b32 s24, s24, 9\ns_mul_i32 s24, s24, 12\ns_sub_u32 s23, s23, s24\ns_lshl_b32 s23, s23, 8\ns_add_u32 s23, s23, {F_G}")
    a(f"v_mov_b32 v61, 0\ns_mov_b32 s61, {SPIN:#x}\nL_{tag}_poll:\nbuffer_load_dword v62, v61, s[36:39], s23 offen sc1\ns_sub_u32 s61, s61, 1\ns_cbranch_scc1 L_{tag}_go")
    a(f"s_waitcnt vmcnt(0)\nv_readfirstlane_b32 s24, v62\ns_cmp_ge_u32 s24, {o['pause']}\ns_cbranch_scc1 L_{tag}_go\ns_sleep 8\ns_branch L_{tag}_poll\nL_{tag}_go:")


def wait_ln(a, tag, rs, o, base=F_LNW):
    a(f"v_mul_u32_u24 v61, {o['lnw']}, v1\ns_mov_b32 s61, {SPIN:#x}\nL_{tag}_poll:")
    if o["ln_lines"] and base == F_LNW:
        for k in range(4):
            a(f"s_mov_b32 s62, {F_LNW + k*64*o['lnw']}\nbuffer_load_dword v{180+k}, v61, s[{rs}:{rs+3}], s62 offen sc1")
    else:
        a(f"s_mov_b32 s62, {base}\nbuffer_load_dwordx4 v[180:183], v61, s[{rs}:{rs+3}], s62 offen sc1")
    a(f"s_sub_u32 s61, s61, 1\ns_cbranch_scc1 L_{tag}_go\ns_waitcnt vmcnt(0)")
    a(f"v_xor_b32 v180, s{S_TAG+1}, v180\nv_xor_b32 v181, s{S_TAG+1}, v181\nv_xor_b32 v182, s{S_TAG+1}, v182\nv_xor_b32 v183, s{S_TAG+1}, v183")
    a("v_or3_b32 v180, v180, v181, v182\nv_or_b32 v180, v180, v183\nv_cmp_ne_u32 vcc, 0, v180")
    a(f"s_cmp_eq_u64 vcc, 0\ns_cbranch_scc1 L_{tag}_go\ns_sleep {o['slp']}\ns_branch L_{tag}_poll\nL_{tag}_go:")


def tile1(a):
    a("s_and_b32 s12, s2, 7\ns_lshr_b32 s13, s2, 3\ns_and_b32 s14, s12, 1\ns_mul_i32 s14, s14, 3\ns_add_u32 s13, s13, s14")
    a("s_cmp_ge_u32 s13, 27\ns_cselect_b32 s14, 27, 0\ns_sub_u32 s13, s13, s14\ns_mul_i32 s12, s12, 27\ns_add_u32 s12, s12, s13")
    div6(a, 14, 15, 12)


def tile2(a):
    a("s_lshr_b32 s13, s2, 3")
    div6(a, 12, 15, 13)
    a("s_bfe_u32 s19, s2, 0x10002\ns_and_b32 s13, s2, 3\ns_lshl_b32 s14, s13, 2\ns_add_u32 s14, s14, s12")
    a("s_mul_i32 s13, s13, 9\ns_add_u32 s13, s13, 1\ns_lshr_b32 s13, s13, 1")
    a("s_lshl_b32 s16, s14, 7\ns_lshl_b32 s17, s19, 6\ns_add_u32 s16, s16, s17")


def block_jump(kind):
    cnt, base, dst, step = (54, 56, gc.S_W0, 128*4096) if kind == "w" else (55, 57, gc.S_ACT0, 2*73728)
    return [f"s_add_u32 s{cnt}, s{cnt}, 1", f"s_add_u32 s18, s{cnt}, s12", "s_and_b32 s18, s18, 3", f"s_cmp_lt_u32 s{cnt}, 4",
            f"s_cselect_b32 s18, s18, s{cnt}", "s_add_u32 s18, s18, s13", "s_cmp_ge_u32 s18, 18", "s_cselect_b32 s17, 18, 0",
            "s_sub_u32 s18, s18, s17", f"s_mul_i32 s18, s18, {step}", f"s_add_u32 s{dst}, s18, s{base}"]


def gelu_epilogue(a, rounds, rot):
    c1 = -2.0 * 0.7978845608028654 * 1.4426950408889634
    a(f"s_mov_b32 s48, {f32hex(c1*0.044715)}\ns_mov_b32 s49, s48\nv_mov_b32 v36, {f32hex(c1)}\nv_mov_b32 v37, v36")
    for nu in range(4):
        unpk(a, 20+4*nu, 12+2*nu); unpk(a, 22+4*nu, 13+2*nu)
    a(f"s_lshr_b32 s26, s20, 1\ns_mul_i32 s26, s26, {gc.SLOT}\ns_and_b32 s27, s20, 1\ns_mul_i32 s27, s27, 6144\ns_add_u32 s26, s26, s27\ns_add_u32 s26, s26, {gc.W_BYTES}")
    a(f"s_cmp_ge_u32 s2, 192\ns_cselect_b32 s26, {LN_LDS}, s26\nv_add_u32 v38, s26, v7")
    B = 112
    for dl in range(3):
        for pi in range(2):
            src = [(gc.acc(2*pi + (k >> 1), dl) + 2*(k & 1), 20 + 4*(2*pi + (k >> 1)) + 2*(k & 1)) for k in range(4)]
            U = [B + 2*k for k in range(4)]; T = [B + 8 + 2*k for k in range(4)]; P = [B + 16 + k for k in range(4)]
            O = B + 20 + 4*((2*dl + pi) % 2)
            if rounds == 2:
                for k in range(4): a(f"v_cvt_pk_bf16_f32 v{P[k]}, v{src[k][0]}, v{src[k][0]+1}")
                for k in range(4): unpk(a, U[k], P[k])
                for k in range(4): a(f"v_pk_add_f32 {vr(U[k],2)}, {vr(U[k],2)}, {vr(src[k][1],2)}")
            else:
                for k in range(4): a(f"v_pk_add_f32 {vr(U[k],2)}, {vr(src[k][0],2)}, {vr(src[k][1],2)}")
            if rounds >= 1:
                for k in range(4): a(f"v_cvt_pk_bf16_f32 v{P[k]}, v{U[k]}, v{U[k]+1}")
                for k in range(4): unpk(a, U[k], P[k])
            for k in range(4): a(f"v_pk_mul_f32 {vr(T[k],2)}, {vr(U[k],2)}, {vr(U[k],2)}")
            for k in range(4): a(f"v_pk_fma_f32 {vr(T[k],2)}, {vr(T[k],2)}, s[48:49], v[36:37]")
            for k in range(4): a(f"v_pk_mul_f32 {vr(T[k],2)}, {vr(T[k],2)}, {vr(U[k],2)}")
            for k in range(4): a(f"v_exp_f32 v{T[k]}, v{T[k]}\nv_exp_f32 v{T[k]+1}, v{T[k]+1}")
            for k in range(4): a(f"v_pk_add_f32 {vr(T[k],2)}, {vr(T[k],2)}, 1.0 op_sel_hi:[1,0]")
            for k in range(4): a(f"v_rcp_f32 v{T[k]}, v{T[k]}\nv_rcp_f32 v{T[k]+1}, v{T[k]+1}")
            for k in range(4): a(f"v_pk_mul_f32 {vr(U[k],2)}, {vr(U[k],2)}, {vr(T[k],2)}")
            for k in range(4): a(f"v_cvt_pk_bf16_f32 v{O+k}, v{U[k]}, v{U[k]+1}")
            a(f"buffer_store_dwordx4 {vr(O,4)}, v7, s[44:47], s17 offen offset:{1024*pi} sc1")
            if rot:
                a(f"ds_write_b128 v38, {vr(O,4)} offset:{(2*dl + pi)*1024}")
        a("s_add_u32 s17, s17, 2048")


def read_tag(a):
    a(f"s_add_u32 s26, s{S_WS}, {WS_FLG + F_SEED:#x}\ns_addc_u32 s27, s{S_WS+1}, 0\ns_load_dword s{S_TAG+1}, s[26:27], 0")


def make_tag(a):
    a(f"s_mul_i32 s{S_TAG+1}, s{S_TAG+1}, 0x9e3779b1\ns_add_u32 s{S_TAG+1}, s{S_TAG+1}, 0x7f4a7c15\ns_andn2_b32 s{S_TAG}, s{S_TAG+1}, 0xff")


def compute_waves(a, o):
    a("s_waitcnt lgkmcnt(0)")
    for k in range(o["hops"]):
        a(f"s_branch L_hop{k}\n.fill 127, 4, 0xbf800000\nL_hop{k}:")
    if not o["fast_x"]:
        ln.ln_issue(a, S_X, o['lnx'], 80 if o['dry'] else 10)
    read_tag(a)
    a(f"s_cmp_lg_u32 s20, 0\ns_cbranch_scc1 L_m_nz\nv_mov_b32 v58, {CNT_LDS}\nv_mov_b32 v60, 0\nv_mov_b32 v61, 0\nv_mov_b32 v62, 0\nv_mov_b32 v63, 0")
    a("ds_write_b128 v58, v[60:63]\nL_m_nz:")
    if o["early_bar"]:
        a("s_waitcnt lgkmcnt(0)\ns_barrier")
    a(f"s_load_dwordx2 s[38:39], s[0:1], {KA['b1']}\ns_load_dwordx8 s[80:87], s[0:1], {KA['lar']}\ns_load_dwordx4 s[88:91], s[0:1], {KA['ldt']}")
    ln.ln_body(a, S_WS, LN_LDS, CNT_LDS, "ln", not o["early_bar"], o["dry"])
    if not o["split_xn"]:
        ln.xn_stores(a, "ln")
    flags_srd(a, 40)
    make_tag(a)
    a("v_mov_b32 v61, 0\ns_cmp_lg_u32 s20, 3\ns_cbranch_scc1 L_m_nozero\ns_sub_u32 s23, s2, 28\ns_cmp_ge_u32 s23, 6\ns_cbranch_scc1 L_m_nozero")
    a("s_lshl_b32 s23, s2, 8\ns_mov_b64 exec, 1\nbuffer_store_dword v61, v61, s[40:43], s23 offen sc1\ns_mov_b64 exec, -1\nL_m_nozero:")
    if o["ln_lines"]:
        a(f"s_mul_i32 s24, s2, {o['lnw']}\ns_add_u32 s24, s24, {F_LNW}")
    else:
        a(f"s_and_b32 s24, s2, 63\ns_mul_i32 s24, s24, {o['lnw']}\ns_lshr_b32 s23, s2, 6\ns_lshl_b32 s23, s23, 2\ns_add_u32 s24, s24, s23\ns_add_u32 s24, s24, {F_LNW}")
    a("s_waitcnt vmcnt(0)\n; STAMP 1")
    last_wave_signals(a, "lnd", CNT_LDS + 4, 40, "s24", word=f"s{S_TAG+1}")
    a("s_lshr_b32 s29, s2, 3\ns_lshl_b32 s29, s29, 2\ns_add_u32 s29, s29, s20")
    srd(a, 32, S_W1, W_BYTES_TOTAL)
    if o["split_xn"]:
        ln.xn_stores(a, "ln")
        a(f"s_and_b32 s24, s2, 63\ns_mul_i32 s24, s24, {o['lnw']}\ns_lshr_b32 s23, s2, 6\ns_lshl_b32 s23, s23, 2\ns_add_u32 s24, s24, s23\ns_add_u32 s24, s24, {F_XNW}")
        a("s_cmp_ge_u32 s2, 216\ns_cbranch_scc1 L_m_conv")
        w1_burst(a, 32, 29, 108, o["r1"]//4*5, o["nB"])
        a(f"s_waitcnt vmcnt({o['nB']})")
        last_wave_signals(a, "xnd", CNT_LDS + 12, 40, "s24", word=f"s{S_TAG+1}")
    if not (o["split_xn"] and o["b_first"]):
        w1_burst(a, 32, 29, 108, o["r1"]//4*5, o["nB"])
    srd(a, 32, S_W2, W_BYTES_TOTAL)
    tile1(a)
    gc.lane_ids(a)
    gc.compute_setup(a, "A")
    srd(a, 8, 38, F*2)
    a(f"s_lshr_b32 s16, s20, 1\ns_lshl_b32 s17, s16, 7\ns_lshl_b32 s18, s14, 8\ns_add_u32 s17, s17, s18\nv_lshlrev_b32 v9, 3, v3")
    a("s_mov_b32 s22, s17")

    def b1_loads(a):
        for nu in range(4):
            a(f"buffer_load_dwordx2 {vr(12+2*nu,2)}, v9, s[8:11], s22 offen offset:{32*nu}")
    if not o["b1_late"]:
        b1_loads(a)
    for i in range(48):
        a(f"v_mov_b32 v{gc.V_ACC+i}, 0")
    srd_off(a, 44, S_WS, WS_G, G_BYTES)
    a("s_and_b32 s17, s20, 1\ns_mul_i32 s17, s17, 3\ns_mul_i32 s18, s15, 6\ns_add_u32 s17, s17, s18\ns_lshl_b32 s17, s17, 11")
    a("s_lshl_b32 s18, s14, 1\ns_add_u32 s18, s18, s16\ns_mul_i32 s18, s18, 73728\ns_add_u32 s17, s17, s18")
    a(f"s_mul_i32 s24, s15, 36\ns_add_u32 s24, s24, s14\ns_lshl_b32 s24, s24, 8\ns_add_u32 s24, s24, {F_GW}")
    a(f"s_load_dwordx4 s[52:55], s[0:1], {KA['b2']}")
    gc.compute_main(a, 32*o["rep1"], "A", False, "g1", last_barrier=True, st=(5, 2), tail_hook=b1_loads if o["b1_late"] else None)
    if o["rep1"] == 2:
        for i in range(48):
            a(f"v_mul_f32 v{gc.V_ACC+i}, 0.5, v{gc.V_ACC+i}")
    a("s_waitcnt vmcnt(0)")
    a("; STAMP 9")
    gelu_epilogue(a, o['rnd1'], o['rot'])
    a("s_cmp_ge_u32 s2, 192\ns_cbranch_scc1 L_m_conv1")
    tile2(a)
    gc.compute_setup(a, "B", s_kh=19)
    srd(a, 32, S_X, X_BYTES); srd(a, 28, 52, S*2)
    a("s_lshr_b32 s17, s20, 1\ns_lshl_b32 s17, s17, 5\ns_add_u32 s17, s17, s16")
    a("s_mul_i32 s18, s15, 96\ns_and_b32 s26, s20, 1\ns_mul_i32 s26, s26, 48\ns_add_u32 s18, s18, s26")
    a("v_mul_u32_u24 v58, 1152, v2\nv_lshl_add_u32 v58, v3, 3, v58\nv_lshlrev_b32 v9, 1, v2")
    a("s_mul_i32 s56, s17, 1152\ns_lshl_b32 s26, s18, 1\ns_add_u32 s56, s56, s26\ns_add_u32 s57, s56, 18432\ns_lshl_b32 s26, s17, 1")
    a("s_mov_b32 s22, s26\nv_mov_b32 v39, v58")
    for i in range(48):
        a(f"v_mov_b32 v{gc.V_ACC+i}, 0")
    a("v_bfe_u32 v4, v1, 2, 2\nv_lshl_add_u32 v4, v3, 2, v4\nv_lshlrev_b32 v4, 7, v4\nv_and_b32 v5, 3, v1\nv_lshl_add_u32 v4, v5, 3, v4")
    a(f"s_and_b32 s26, s20, 1\ns_mul_i32 s26, s26, 6144\ns_lshr_b32 s27, s20, 1\ns_lshl_b32 s27, s27, 6\ns_add_u32 s26, s26, s27\ns_add_u32 s26, s26, {AT_LDS}\nv_add_u32 v59, s26, v4")
    a("v_mov_b32 v31, v59")
    a("s_xor_b32 s58, s2, 4\ns_lshl_b32 s26, s20, 12\ns_lshl_b32 s59, s58, 14\ns_add_u32 s59, s59, s26\ns_lshl_b32 s60, s2, 14\ns_add_u32 s60, s60, s26")
    assert o["xbf"]

    SN = 172
    NG = 4 if o["xbf"] else 8
    srd_off(a, 8, S_WS, WS_XCH, XCH_BYTES)

    def send_partials(a):
        for k in range(NG):
            for m in range(3):
                if o["xbf"]:
                    a(f"v_cvt_pk_bf16_f32 v{SN+4*k+m}, v{gc.V_ACC+24+6*k+2*m}, v{gc.V_ACC+25+6*k+2*m}")
                else:
                    a(f"v_mov_b32 v{SN+4*k+m}, v{gc.V_ACC+24+3*k+m}")
            a(f"v_mov_b32 v{SN+4*k+3}, s{S_TAG+1}")
            a(f"buffer_store_dwordx4 {vr(SN+4*k,4)}, v7, s[8:11], s59 offen sc1\ns_add_u32 s59, s59, 1024")

    def x_loads(a):
        for nu in range(2):
            for dl in range(3):
                a(f"buffer_load_dwordx2 {vr(10+2*(3*nu+dl),2)}, v39, s[32:35], s{56+nu} offen offset:{32*dl}{o['xnt']}")
            a(f"buffer_load_ushort v{22+nu}, v9, s[28:31], s22 offen offset:{32*nu}")

    def publish_g(a):
        a("s_waitcnt vmcnt(0)")
        last_wave_signals(a, "gd2", CNT_LDS + 8, 40, "s24", word=f"s{S_TAG+1}")
        a("; STAMP 3\n; SWAIT")
        if not o["x_late"]:
            x_loads(a)

    if o["late_sig"]:
        gc.compute_main(a, 36, "B", True, "g2", st=(5, 4), first_stage1=publish_g)
    else:
        publish_g(a)
        gc.compute_main(a, 36*o["rep2"], "B", True, "g2", st=(5, 4), tail_hook=x_loads if o["x_late"] == "tail" else None,
                        split_tail=send_partials if o["xfirst"] else None)
        if o["rep2"] == 2:
            for i in range(48):
                a(f"v_mul_f32 v{gc.V_ACC+i}, 0.5, v{gc.V_ACC+i}")
    srd(a, 44, 54, X_BYTES)
    a("v_mov_b32 v58, v39\nv_mov_b32 v59, v31")
    a("; STAMP 5")
    if not o["xfirst"]:
        send_partials(a)
    if o["x_late"] is True:
        x_loads(a)
    a("s_barrier")
    AR, PF = 112, 124
    for nu in range(2):
        for dl in range(3):
            a(f"ds_read_b64_tr_b16 {vr(AR+2*(3*nu+dl),2)}, v59 offset:{2048*dl + 32*nu}")
    a(f"s_waitcnt vmcnt({0 if o['x_late'] is True else NG})\nv_lshlrev_b32 v22, 16, v22\nv_lshlrev_b32 v24, 16, v23\ns_waitcnt lgkmcnt(0)")
    for t in range(6):
        for h in range(2):
            unpk(a, 26, 10+2*t+h); unpk(a, 28, AR+2*t+h)
            if o["rnd2"]:
                a("v_pk_add_f32 v[26:27], v[26:27], v[28:29]\nv_cvt_pk_bf16_f32 v30, v26, v27")
                unpk(a, PF+4*t+2*h, 30)
            else:
                b = gc.V_ACC + 4*t + 2*h
                a(f"v_pk_add_f32 v[26:27], v[26:27], v[28:29]\nv_pk_add_f32 {vr(b,2)}, {vr(b,2)}, {vr(22+2*(t//3),2)} op_sel_hi:[1,0]")
                a(f"v_pk_add_f32 {vr(b,2)}, {vr(b,2)}, v[26:27]")
    RX = 204
    if o["xwait"]:
        a("s_waitcnt vmcnt(0)")
    a(f"s_mov_b32 s61, {SPIN:#x}\ns_add_u32 s62, s60, 4096\nL_xch_poll:")
    for k in range(NG):
        a(f"buffer_load_dwordx4 {vr(RX+4*k,4)}, v7, s[8:11], s{60 + 2*(k >> 2)} offen offset:{1024*(k & 3)} sc1")
    a(f"s_sub_u32 s61, s61, 1\ns_cbranch_scc1 L_xch_go\ns_waitcnt vmcnt(0)\nv_xor_b32 v4, s{S_TAG+1}, v{RX+3}")
    for k in range(1, NG):
        a(f"v_xor_b32 v5, s{S_TAG+1}, v{RX+4*k+3}\nv_or_b32 v4, v4, v5")
    a("v_cmp_ne_u32 vcc, 0, v4\ns_cmp_eq_u64 vcc, 0\ns_cbranch_scc1 L_xch_go")
    if o["slpx"]:
        a(f"s_sleep {o['slpx']}")
    a("s_branch L_xch_poll\nL_xch_go:")
    for t in range(6):
        nu, dl = divmod(t, 3)
        b, p = gc.V_ACC + 4*t, PF + 4*t
        if o["xbf"]:
            for h in range(2):
                k, m = divmod(2*t + h, 3)
                unpk(a, 26+2*h, RX+4*k+m)
            for h in range(2): a(f"v_pk_add_f32 {vr(b+2*h,2)}, {vr(b+2*h,2)}, {vr(26+2*h,2)}")
        else:
            for e in range(4):
                k, m = divmod(4*t + e, 3)
                a(f"v_add_f32 v{b+e}, v{b+e}, v{RX+4*k+m}")
        if o['rnd2']:
            for h in range(2): a(f"v_cvt_pk_bf16_f32 v{26+h}, v{b+2*h}, v{b+2*h+1}")
            for h in range(2): unpk(a, b+2*h, 26+h)
            for h in range(2): a(f"v_pk_add_f32 {vr(b+2*h,2)}, {vr(b+2*h,2)}, {vr(22+2*nu,2)} op_sel_hi:[1,0]")
            for h in range(2): a(f"v_cvt_pk_bf16_f32 v{26+h}, v{b+2*h}, v{b+2*h+1}")
            for h in range(2): unpk(a, b+2*h, 26+h)
            for h in range(2): a(f"v_pk_add_f32 {vr(b+2*h,2)}, {vr(b+2*h,2)}, {vr(p+2*h,2)}")
        for h in range(2): a(f"v_cvt_pk_bf16_f32 v{10+2*t+h}, v{b+2*h}, v{b+2*h+1}")
        a(f"buffer_store_dwordx2 {vr(10+2*t,2)}, v58, s[44:47], s{56+nu} offen offset:{32*dl}{o['ont']}")
    a("s_endpgm")
    a("L_m_conv1:\ns_waitcnt vmcnt(0)")
    last_wave_signals(a, "gd", CNT_LDS + 8, 40, "s24", word=f"s{S_TAG+1}")
    a("; STAMP 3\ns_mov_b32 s30, 1\ns_sub_u32 s31, s2, 72\ns_lshl_b32 s31, s31, 2\ns_add_u32 s31, s31, s20")
    cv.param_loads(a, 80, 88, 90)
    a("s_branch L_m_conv2\nL_m_conv:")
    a("s_sub_u32 s31, s2, 216\ns_lshl_b32 s31, s31, 2\ns_add_u32 s31, s31, s20\ns_mul_i32 s31, s31, 3\ns_mov_b32 s28, s24")
    cv.param_loads(a, 80, 88, 90)
    a("s_waitcnt vmcnt(14)")
    last_wave_signals(a, "xnd2", CNT_LDS + 12, 40, "s28", word=f"s{S_TAG+1}")
    a("s_mov_b32 s30, 3\nL_m_conv2:")
    a("s_mul_i32 s29, s31, 683\ns_lshr_b32 s29, s29, 16")
    assert o["split_xn"] and o["b_first"]

    def signal(a):
        a("s_lshl_b32 s36, s29, 8")
        a(f"s_add_u32 s36, s36, {F_CONV}\nv_mov_b32 v4, 1\nv_mov_b32 v5, 0\ns_mov_b64 exec, 1\nbuffer_atomic_add v4, v5, s[8:11], s36 offen sc1")
    flags_srd(a, 8)
    cv.conv_role(a, "cv", S_WS, lambda a, t: wait_ln(a, "cvln" + t, 8, o, F_XNW if o["split_xn"] else F_LNW), signal)
    a("s_endpgm")


def fifth_wave(a, o):
    if o["prio"]:
        a(f"s_setprio {o['prio']}")
    a(f"s_load_dwordx2 s[48:49], s[0:1], {KA['out']}\ns_load_dwordx8 s[80:87], s[0:1], {KA['lar']}\ns_load_dwordx4 s[52:55], s[0:1], {KA['ldt']}")
    a(f"s_load_dwordx2 s[56:57], s[0:1], {KA['b1']}\ns_load_dwordx2 s[58:59], s[0:1], {KA['b2']}")
    a("s_waitcnt lgkmcnt(0)")
    flags_srd(a, 36)
    read_tag(a)
    if o["tlb"] >= 4:
        srd(a, 8, S_WS, WS_G); srd(a, 16, S_W1, 5 << 20)
        a("v_lshlrev_b32 v4, 21, v1\nbuffer_load_dword v100, v4, s[8:11], 0 offen sc1\nbuffer_load_dword v104, v4, s[16:19], 0 offen")
        srd(a, 8, 56, 4)
        a("buffer_load_dword v105, v4, s[8:11], 0 offen")
    elif o["tlb"]:
        srd(a, 8, S_WS, WS_END); srd(a, 16, S_W2, W_BYTES_TOTAL)
        a("v_lshlrev_b32 v4, 20, v1\nbuffer_load_dword v100, v4, s[8:11], 0 offen sc1\nbuffer_load_dword v101, v4, s[16:19], 0 offen")
        srd(a, 8, 48, X_BYTES); srd(a, 16, S_W1, W_BYTES_TOTAL)
        a("buffer_load_dword v102, v4, s[8:11], 0 offen")
        if o["tlb"] >= 2:
            a("buffer_load_dword v104, v4, s[16:19], 0 offen")
            small = [80, 82, 84, 86, 52, 54, 56, 58]
            for k, p in enumerate(small):
                if o["tlb"] == 3:
                    a(f"s_bfe_u32 s23, s2, 0x30003\ns_cmp_lg_u32 s23, {k}\ns_cbranch_scc1 L_m_tl{k}")
                if k < 6 or not o["bias_pf"]:
                    srd(a, 8, p, 4)
                    a(f"buffer_load_dword v{105+k}, v4, s[8:11], 0 offen")
                else:
                    srd(a, 8, p, F*2 if k == 6 else S*2)
                    a(f"v_lshlrev_b32 v5, 7, v1\nbuffer_load_dword v{105+k}, v5, s[8:11], 0 offen")
                    if k == 6:
                        a("s_mov_b32 s23, 8192\nbuffer_load_dword v113, v5, s[8:11], s23 offen")
                a(f"L_m_tl{k}:")
    if o["touch"]:
        todo = [F_LNW + k*64*o["lnw"] for k in range(4 if o["ln_lines"] else 1)] + [F_XNW] + ([F_REL] if o["agg"] else []) + ([F_CONV] if o["touch_c"] else [])
        for k, off in enumerate(todo):
            a(f"s_cmp_lg_u32 s2, {5*k if k < 2 else 4+k}\ns_cbranch_scc1 L_m_nt{k}\nv_mul_u32_u24 v5, {o['lnw']}, v1\ns_mov_b32 s23, {off}")
            if off == F_CONV:
                a(f"v_min_u32 v5, {5*o['lnw']}, v5")
            a(f"buffer_load_dword v103, v5, s[36:39], s23 offen\nL_m_nt{k}:")
    if o["touch_g"]:
        a(f"s_sub_u32 s23, s2, 1\ns_cmp_ge_u32 s23, 4\ns_cbranch_scc1 L_m_notouch2\nv_lshlrev_b32 v5, 8, v1\ns_lshl_b32 s23, s23, 14\ns_add_u32 s23, s23, {F_GW}")
        a("buffer_load_dword v103, v5, s[36:39], s23 offen\nL_m_notouch2:")
    srd(a, gc.SRD_W, S_W1, W_BYTES_TOTAL)
    if o["early_bar"]:
        a("s_barrier")
    a("s_lshr_b32 s30, s2, 3")
    if o["code_pf"] and not o["code_first"] and not o["fast_x"]:
        code_prefetch(a, o)
    w1_stream(a, "m0", gc.SRD_W, 30, 32, o["r0"], o["r1"], o["win1"], both=o["both_a"])
    if o["extra23"]:
        a("s_and_b32 s23, s2, 6\ns_cmp_lg_u32 s23, 2\ns_cbranch_scc1 L_m_nox23")
        w1_stream(a, "m23", gc.SRD_W, 30, 32, 2048 - o["extra23"], 2048, o["win1"])
        a("L_m_nox23:")
    a("s_waitcnt lgkmcnt(0)")
    make_tag(a)
    if not o["early_bar"]:
        a("s_barrier")
    a("; STAMP 0\ns_cmp_ge_u32 s2, 216\ns_cbranch_scc1 L_m_helper")
    tile1(a)
    gc.lane_ids(a)
    a(f"s_mul_i32 s{gc.S_ACT0}, s15, 12288\ns_lshl_b32 s{gc.S_W0}, s14, 8")
    gc.loader_setup(a, 0, 9216, "A")
    srd_off(a, gc.SRD_ACT, S_WS, WS_HT, HT_BYTES)
    a("s_lshr_b32 s60, s2, 3\ns_mul_i32 s60, s60, 10923\ns_lshr_b32 s60, s60, 16")
    ln_local_wait(a, "lw1")
    a("; STAMP 0")
    gc.w_prefill(a, range(4), 0, 9216)
    a("; STAMP 1")
    if o["agg"]:
        a(f"s_and_b32 s23, s2, 7\ns_lshl_b32 s23, s23, 8\ns_add_u32 s23, s23, {F_REL}\ns_cmp_ge_u32 s2, 8\ns_cbranch_scc1 L_m_follow")
        wait_ln(a, "l1", 36, dict(o, slp=o["slpa"]))
        a(f"v_mov_b32 v4, s{S_TAG+1}\nv_mov_b32 v5, 0\ns_mov_b64 exec, 1\nbuffer_store_dword v4, v5, s[36:39], s23 offen sc1\ns_mov_b64 exec, -1\ns_branch L_l1f_go\nL_m_follow:\nv_mov_b32 v61, 0")
        poll(a, "l1f", 36, 61, "s23", f"s{S_TAG+1}", sleep=o["slp"])
    else:
        wait_ln(a, "l1", 36, o)
    a(f"; STAMP 2\ns_cmp_lg_u32 s2, 0\ns_cbranch_scc1 L_m_noseed\nv_mov_b32 v4, s{S_TAG+1}\nv_mov_b32 v5, {F_SEED}\ns_mov_b64 exec, 1")
    a("buffer_store_dword v4, v5, s[36:39], 0 offen sc1\ns_mov_b64 exec, -1\nL_m_noseed:")
    gc.loader_after_prefill(a, 32*o["rep1"], 0, 9216, "g1", o["aflags"], tail=lambda a: None, wrap=(2048*9216, 32*73728) if o["rep1"] == 2 else None,
                            s_group=60 if o["lead1"] else None)
    srd(a, gc.SRD_W, S_W2, W_BYTES_TOTAL)
    a("s_cmp_ge_u32 s2, 192\ns_cbranch_scc1 L_m_late")
    tile2(a)
    a(f"s_mul_i32 s57, s15, 12288\ns_mul_i32 s18, s19, {36*73728}\ns_add_u32 s57, s57, s18")
    a(f"s_lshl_b32 s56, s14, 8\ns_mul_i32 s18, s19, {HALF2}\ns_add_u32 s56, s56, s18\ns_mov_b32 s54, -1\ns_mov_b32 s55, -1")
    jump = block_jump if o["rot"] else None
    if o["rot"]:
        a.extend(block_jump("w") + block_jump("a"))
    else:
        a(f"s_mov_b32 s{gc.S_W0}, s56\ns_mov_b32 s{gc.S_ACT0}, s57")
    gc.loader_setup(a, 0, 4096, "B")
    srd_off(a, gc.SRD_ACT, S_WS, WS_G, G_BYTES)
    e2 = o["early2"]
    for j, vm in enumerate((28, 0, None)):
        if j < e2:
            gc.w_prefill(a, [j], 0, 4096, jump)
        if vm is not None:
            a(f"s_waitcnt vmcnt({vm + 16*min(j+1, e2)})")
        a("s_barrier")
    a("; STAMP 5")
    gc.w_prefill(a, range(min(e2, 3), 4), 0, 4096, jump)
    a("v_mov_b32 v61, 0\n; STAMP 3")

    def wait_slot(a):
        a(f"s_mul_i32 s23, s15, 36\ns_mul_i32 s24, s19, 18\ns_add_u32 s23, s23, s24\ns_lshl_b32 s23, s23, 8\ns_add_u32 s23, s23, {F_GW}")
        a("v_and_b32 v60, 3, v1\nv_add_u32 v60, s13, v60\nv_lshlrev_b32 v60, 8, v60")
        poll(a, "l2a", 36, 60, "s23", f"s{S_TAG+1}", sleep=o["slpg"])
        a("; STAMP 4\nv_min_u32 v60, 17, v1\nv_lshlrev_b32 v60, 8, v60\ns_mov_b32 s53, s23")

    def peek_half(a):
        a("buffer_load_dword v63, v60, s[36:39], s53 offen sc1")

    def wait_half(a):
        if o["rot"] and o["peek"]:
            a(f"v_cmp_ne_u32 vcc, s{S_TAG+1}, v63\ns_cmp_eq_u64 vcc, 0\ns_cbranch_scc1 L_l2b_go")
        poll(a, "l2b", 36, 60, "s53", f"s{S_TAG+1}", sleep=o["slpg"])

    def at_dma(a):
        for e in range(12):
            a(f"s_mov_b32 m0, {AT_LDS + 1024*e}\nbuffer_load_dwordx4 v8, s[48:51], s26 offen sc1 lds\ns_add_u32 s26, s26, 32768")

    def at_early(a):
        srd_off(a, 48, S_WS, WS_AT, AT_BYTES)
        a(f"s_lshl_b32 s23, s15, 8\ns_add_u32 s23, s23, {F_CONV}\nbuffer_load_dword v62, v61, s[36:39], s23 offen sc1")
        a("v_lshrrev_b32 v8, 3, v1\nv_lshlrev_b32 v8, 12, v8\nv_and_b32 v9, 7, v1\nv_lshl_add_u32 v8, v9, 4, v8")
        a(f"s_mul_i32 s26, s15, {96*4096}\ns_lshl_b32 s27, s16, 1\ns_add_u32 s26, s26, s27")
        a("s_cmp_eq_u32 s15, 5\ns_cselect_b32 s24, 96, 32\ns_waitcnt vmcnt(0)\nv_readfirstlane_b32 s27, v62")
        a("s_cmp_lg_u32 s27, s24\ns_cbranch_scc1 L_at_skip")
        at_dma(a)
        a("L_at_skip:")
    if o["rot"]:
        gc.loader_after_prefill(a, 36, 0, 4096, "g2", o["aflags"], before_last=at_early, jump=block_jump, wait2=wait_slot, wait8=wait_half, peek8=peek_half if o['peek'] else None)
    else:
        ln_local_wait(a, "lw4", CNT_LDS+8)
        a(f"s_mul_i32 s53, s15, 36\ns_mul_i32 s24, s19, 18\ns_add_u32 s53, s53, s24\ns_lshl_b32 s53, s53, 8\ns_add_u32 s53, s53, {F_GW}")
        a("v_min_u32 v60, 17, v1\nv_lshlrev_b32 v60, 8, v60")
        wait_half(a)
        a("; STAMP 4")
        gc.loader_after_prefill(a, 36*o["rep2"], 0, 4096, "g2", o["aflags"], before_last=at_early, wrap=(HALF2, 36*73728) if o["rep2"] == 2 else None,
                                s_group=60 if o["lead2"] else None)
    a("s_cmp_lg_u32 s27, s24\ns_cbranch_scc1 L_at_late\ns_waitcnt vmcnt(0)\ns_barrier\ns_endpgm\nL_at_late:")
    poll(a, "at", 36, 61, "s23", "s24")
    at_dma(a)
    a("s_waitcnt vmcnt(0)\ns_barrier\ns_endpgm")
    a("L_m_late:")
    a("s_waitcnt vmcnt(28)\ns_barrier\ns_waitcnt vmcnt(0)\ns_barrier\ns_barrier\ns_sub_u32 s30, s2, 152\ns_lshr_b32 s30, s30, 3")
    ln_local_wait(a, "lw3", CNT_LDS+8)
    if o["x_pf"] == "early":
        srd(a, 8, S_X, X_BYTES); a("s_sub_u32 s31, s30, 5\ns_mul_i32 s31, s31, 3")
        for k in range(3):
            if k == 2:
                a("s_cmp_eq_u32 s31, 8\ns_cbranch_scc1 L_m_nox")
            x_stream(a, f"xe{k}", 8, 31)
            a("s_add_u32 s31, s31, 1")
        a("L_m_nox:")
    g_pause(a, "gp3", o)
    w2_stream(a, "m3", gc.SRD_W, 30, 8, o["r2"] + 96*o["nC"], 2304, o["win3"])
    if o["x_pf"] is True:
        srd(a, 8, S_X, X_BYTES); x_stream(a, "x3", 8, 30)
    a("s_endpgm")
    a("L_m_helper:\ns_sub_u32 s30, s2, 216\ns_lshr_b32 s30, s30, 3")
    ln_local_wait(a, "lw2", CNT_LDS + (12 if o["split_xn"] and not o["h_early"] else 4))
    if o["tlb"] >= 4:
        M2 = 2 << 20
        items = [(S_W1, k*M2) for k in range(3, 9)] + [(S_W1, W_BYTES_TOTAL - 4)] + [(p, 0) for p in (80, 82, 84, 86, 52, 54)]
        items += [(S_WS, k*M2) for k in range(WS_G//M2 + 1, (WS_END - 1)//M2 + 1)] + [(S_W2, k*M2) for k in range(9)] + [(S_W2, W_BYTES_TOTAL - 4)]
        items += [(48, 0), (48, X_BYTES - 4), (58, 0)]
        for h in range(5):
            a(f"s_cmp_lg_u32 s30, {h}\ns_cbranch_scc1 L_m_st{h}")
            for k, (p, off) in enumerate(items[h::5]):
                a(f"s_add_u32 s8, s{p}, {off:#x}\ns_addc_u32 s9, s{p+1}, 0\ns_load_dword s{12+k}, s[8:9], 0")
            a(f"L_m_st{h}:")
    if o["b1_late"]:
        srd(a, 8, 56, F*2); srd(a, 12, 58, S*2)
        a("v_lshlrev_b32 v5, 7, v1\ns_mov_b32 s23, 8192\nbuffer_load_dword v105, v5, s[8:11], 0 offen\nbuffer_load_dword v106, v5, s[8:11], s23 offen\nbuffer_load_dword v107, v5, s[12:15], 0 offen")
    w1_stream(a, "m1", gc.SRD_W, 30, 5, o["r1"] + 108*o["nB"]//5*4, 2048, o["win2"], both=o["both_h"], short23=o["extra23"])
    a("; STAMP 1")
    srd(a, gc.SRD_W, S_W2, W_BYTES_TOTAL)
    if o["rot"]:
        w2_head(a, "mh", gc.SRD_W, 30, 5, o["win2"])
    w2_stream(a, "m2", gc.SRD_W, 30, 5, 512 if o["rot"] else o["r20"], o["r2"], o["win2"])
    a("; STAMP 2")
    g_pause(a, "gp4", o)
    w2_stream(a, "m4", gc.SRD_W, 30, 8, o["r2"] + 96*o["nC"], 2304, o["win3"])
    if o["x_pf"] is True:
        srd(a, 8, S_X, X_BYTES); x_stream(a, "x4", 8, 30)
    if o["b2_pf"]:
        srd(a, 8, 58, S*2)
        a("v_lshlrev_b32 v5, 7, v1\nbuffer_load_dword v107, v5, s[8:11], 0 offen")


def code_prefetch(a, o):
    a("s_getpc_b64 s[12:13]\nL_m_pc:\ns_sub_u32 s12, s12, L_m_pc-L_m_base\ns_subb_u32 s13, s13, 0")
    a("s_mov_b32 s14, L_m_last-L_m_base\ns_mov_b32 s15, 0x20000\nv_lshlrev_b32 v4, 4, v1\ns_lshr_b32 s23, s2, 3\ns_lshl_b32 s23, s23, 10")
    for k in range(o["code_n"]):
        a("buffer_load_dwordx4 v[96:99], v4, s[12:15], s23 offen\ns_add_u32 s23, s23, 32768")


def mega(a, name, **opt):
    o = dict(sched=0, ramp=(), both_h='not23', both_a=True, eager=True, fast_x=0, hops=0, code_first=1, b2_pf=True, peek=True, touch_c=True, xfirst=False, code_n=2, unc=False, unl=False, lead1=False, lead2=False, b_first=True, h_early=True, agg=False, slpa=0, split_xn=True, slpg=1, slpx=0, lead=7, dry=False, b1_late=False, lnx=' nt', bias_pf=False, touch_g=True, xwait=True, early_bar=False, extra23=0, r0=0, r20=0, rep1=1, rep2=1, uflags='', rot=True, x_pf=True, ln_lines=False, x_late='tail', late_sig=False, pause=0, xbf=True, rnd1=0, rnd2=0, prio=0, lnw=256, slp=4, touch=True, tlb=4, early2=3, xnt='', ont='', prefill_late=True, r1=384, nB=3, r2=512, nC=0, win1=12, win2=56, win3=56, aflags=" sc1", code_pf=9)
    o.update(opt)
    prefetch.ROT = o["rot"]
    cv.UFLAGS = o["uflags"]
    gc.LEAD = o["lead"]
    gc.EAGER = o["eager"]
    gc.RAMP = o["ramp"]
    gc.SCHED = o["sched"]
    gc.UNROLL_C, gc.UNROLL_L = o["unc"], o["unl"]
    a(f".globl {name}\n.p2align 8\n.type {name},@function\n{name}:\nL_m_base:")
    if o["fast_x"]:
        a(f"s_load_dwordx2 s[8:9], s[0:1], {KA['x']}\ns_load_dwordx2 s[{S_WS}:{S_WS+1}], s[0:1], {KA['ws']}\ns_cmp_ge_u32 s2, 256\ns_cbranch_scc1 L_m_end")
        if o["fast_x"] == 2:
            a("s_getpc_b64 s[12:13]\nL_m_pc:\ns_mov_b32 s14, L_m_last-L_m_pc\ns_mov_b32 s15, 0x20000\ns_lshr_b32 s23, s2, 3\ns_mul_i32 s23, s23, 5120")
            a("v_lshlrev_b32 v4, 4, v0\nbuffer_load_dwordx4 v[96:99], v4, s[12:15], s23 offen")
        a(f"s_mul_i32 s22, s2, 9216\ns_mov_b32 s10, {X_BYTES:#x}\ns_mov_b32 s11, 0x20000")
        a("v_lshrrev_b32 v4, 5, v0\nv_and_b32 v5, 31, v0\nv_mul_u32_u24 v6, 1152, v4\nv_cmp_gt_u32 vcc, 8, v4\nv_lshl_add_u32 v2, v5, 4, v6\nv_lshl_add_u32 v3, v5, 2, v6")
        a("s_waitcnt lgkmcnt(0)\ns_cbranch_vccz L_m_nox")
        fl = o["lnx"]
        a(f"buffer_load_dwordx4 v[10:13], v2, s[8:11], s22 offen{fl}\nbuffer_load_dwordx4 v[14:17], v2, s[8:11], s22 offen offset:512{fl}")
        a(f"buffer_load_dword v18, v3, s[8:11], s22 offen offset:1024{fl}\nL_m_nox:")
        a(f"s_load_dwordx2 s[{S_W1}:{S_W1+1}], s[0:1], {KA['w1']}\ns_load_dwordx2 s[{S_W2}:{S_W2+1}], s[0:1], {KA['w2']}")
        a(f"s_mov_b64 s[{S_X}:{S_X+1}], s[8:9]\nv_lshrrev_b32 v1, 6, v0\nv_and_b32 v4, 1, v4\nv_readfirstlane_b32 s20, v1\nv_and_b32 v1, 63, v0")
        if o["fast_x"] == 1:
            a("s_cmp_lg_u32 s20, 0\ns_cbranch_scc1 L_m_nocode")
            a("v_mov_b32 v100, v4")
            code_prefetch(a, o)
            a("v_mov_b32 v4, v100\nL_m_nocode:")
        a("s_cmp_eq_u32 s20, 4\ns_cbranch_scc1 L_m_w4")
    else:
        a("s_cmp_ge_u32 s2, 256\ns_cbranch_scc1 L_m_end")
        a(f"s_load_dwordx2 s[{S_X}:{S_X+1}], s[0:1], {KA['x']}\ns_load_dwordx2 s[{S_WS}:{S_WS+1}], s[0:1], {KA['ws']}")
        a(f"s_load_dwordx2 s[{S_W1}:{S_W1+1}], s[0:1], {KA['w1']}\ns_load_dwordx2 s[{S_W2}:{S_W2+1}], s[0:1], {KA['w2']}")
        a("v_lshrrev_b32 v1, 6, v0\nv_readfirstlane_b32 s20, v1\nv_and_b32 v1, 63, v0")
        if o["code_first"]:
            a(f"s_cmp_lg_u32 s20, {o['code_first'] - 1}\ns_cbranch_scc1 L_m_nocode")
            code_prefetch(a, o)
            a("L_m_nocode:")
        a("s_cmp_eq_u32 s20, 4\ns_cbranch_scc1 L_m_w4")
    compute_waves(a, o)
    a("L_m_w4:")
    fifth_wave(a, o)
    a("L_m_end:\ns_endpgm\nL_m_last:")


def warm_kernel(a, name, rows, w2rows, main, window=63):
    a(f".globl {name}\n.p2align 8\n.type {name},@function\n{name}:")
    a("s_cmp_ge_u32 s2, 256\ns_cbranch_scc1 L_pre_end")
    if rows >= 0:
        a(f"s_load_dwordx2 s[4:5], s[0:1], {KA['ws']}\ns_load_dwordx2 s[6:7], s[0:1], {KA['x']}\ns_load_dwordx2 s[20:21], s[0:1], {KA['w1']}")
        a(f"s_load_dwordx2 s[22:23], s[0:1], {KA['w2']}\ns_load_dwordx2 s[24:25], s[0:1], {KA['out']}")
        a("v_and_b32 v1, 63, v0\ns_lshr_b32 s30, s2, 3\nv_lshlrev_b32 v4, 20, v1\ns_waitcnt lgkmcnt(0)")
        srd(a, 8, 4, WS_FLG + FLG_BYTES); srd(a, 12, 6, X_BYTES); srd(a, 16, 22, W_BYTES_TOTAL); srd(a, 32, 20, W_BYTES_TOTAL); srd(a, 48, 24, X_BYTES)
        for k, rs in enumerate((8, 12, 16, 48)):
            a(f"buffer_load_dword v{100+k}, v4, s[{rs}:{rs+3}], 0 offen sc1")
        a(f"s_getpc_b64 s[12:13]\nL_pre_pc:\ns_sub_u32 s12, s12, L_pre_pc-L_m_base\ns_subb_u32 s13, s13, 0")
        a("s_mov_b32 s14, L_m_last-L_m_base\ns_mov_b32 s15, 0x20000\nv_lshlrev_b32 v4, 4, v1\ns_lshl_b32 s23, s30, 10")
        for k in range(o["code_n"]):
            a("buffer_load_dwordx4 v[96:99], v4, s[12:15], s23 offen\ns_add_u32 s23, s23, 32768")
        w1_stream(a, "pre", 32, 30, 32, 0, rows, window)
        w2_stream(a, "pre", 16, 30, 32, 0, w2rows, window)
    a("L_pre_end:\ns_endpgm")
```

```python
from asmlib import *

SLOT = 28672
W_BYTES = 16384
NSLOT = 4
LDS_RING = SLOT * NSLOT

V_ACC = 64
V_SET = (112, 140)
V_DW = 40
V_DA = 44
V_RW = 48
V_RA = 56

S_WAVE = 20
S_ACT0 = 21
S_W0 = 22
S_CNT = 25
SRD_ACT = 28
SRD_W = 32
SCHED = 0
EAGER = True
UNROLL_C = False
UNROLL_L = False
LEAD = 3


def acc(nu, dl):
    return V_ACC + 4 * (nu * 3 + dl)


def wfrag(s, nu):
    return V_SET[s] + 4 * nu


def afrag(s, dl):
    return V_SET[s] + 16 + 4 * dl


def lane_ids(a):
    a("v_and_b32 v1, 63, v0\nv_and_b32 v2, 15, v1\nv_lshrrev_b32 v3, 4, v1\nv_lshlrev_b32 v7, 4, v1")


def loader_setup(a, dt_stride, w_stride, kmap):
    a(f"v_mul_u32_u24 v4, {w_stride}, v3\nv_lshlrev_b32 v5, 1, v3\nv_xor_b32 v5, v5, v2")
    a("v_lshl_add_u32 v6, v5, 4, v4\nv_xor_b32 v5, 8, v5\nv_lshl_add_u32 v8, v5, 4, v4")
    for e in range(4):
        hi = (e >> 1) & 1 if kmap == "A" else e & 1
        a(f"v_add_u32 v{V_DW+e}, {e*(4*w_stride - 1024)}, v{8 if hi else 6}")
    if dt_stride:
        for e in range(4):
            a(f"v_add_u32 v{V_DA+e}, {(e >> 1)*(dt_stride - 2048)}, v7")


def compute_setup(a, kmap, s_kh=None):
    a("v_bfe_u32 v4, v1, 2, 2")
    if kmap == "A":
        a("v_lshl_add_u32 v5, v3, 3, v4\nv_and_b32 v6, 1, v3\nv_lshl_add_u32 v6, v6, 2, v4")
    else:
        a("v_lshl_add_u32 v5, v3, 2, v4\nv_and_b32 v6, 7, v5")
    a("v_lshlrev_b32 v5, 8, v5\nv_and_b32 v8, 3, v1\nv_lshl_add_u32 v5, v8, 3, v5")
    if s_kh is None:
        a(f"s_lshr_b32 s26, s{S_WAVE}, 1\ns_lshl_b32 s26, s26, 2")
    else:
        a(f"s_and_b32 s26, s{S_WAVE}, 2\ns_lshl_b32 s27, s{s_kh}, 2\ns_add_u32 s26, s26, s27")
    for nu in range(4):
        if s_kh is None:
            a(f"s_add_u32 s27, s26, {nu}")
        else:
            a(f"s_add_u32 s27, s26, {nu & 1}\ns_xor_b32 s27, s27, {4*(nu >> 1)}")
        a(f"v_xor_b32 v8, s27, v6\nv_lshl_add_u32 v{V_RW+nu}, v8, 5, v5\nv_add_u32 v{V_RW+4+nu}, {2*SLOT}, v{V_RW+nu}")
    a(f"s_and_b32 s26, s{S_WAVE}, 1\ns_mul_i32 s26, s26, 6144\ns_add_u32 s26, s26, {W_BYTES}")
    a(f"v_add_u32 v{V_RA}, s26, v7\nv_add_u32 v{V_RA+1}, {2*SLOT}, v{V_RA}")


def dma_groups(slot, dt_stride, w_stride, aflags="", wflags="", jump=None):
    out = []
    for kind, E in (("a", 0), ("w", 0), ("w", 1), ("a", 1), ("w", 2), ("a", 2), ("w", 3)):
        if kind == "w":
            g = [f"s_mov_b32 m0, {slot*SLOT + 4096*E}"]
            g += [f"buffer_load_dwordx4 v{V_DW+e}, s[{SRD_W}:{SRD_W+3}], s{S_W0} offen offset:{1024*e}{wflags} lds" for e in range(4)]
            g += [f"s_add_u32 s{S_W0}, s{S_W0}, {16*w_stride}"]
        elif not dt_stride:
            g = [f"s_mov_b32 m0, {slot*SLOT + W_BYTES + 4096*E}"]
            g += [f"buffer_load_dwordx4 v7, s[{SRD_ACT}:{SRD_ACT+3}], s{S_ACT0} offen offset:{1024*e}{aflags} lds" for e in range(4)]
            g += [f"s_add_u32 s{S_ACT0}, s{S_ACT0}, {4096 if E < 2 else 36*2048 - 8192}"]
        else:
            g = [f"s_mov_b32 m0, {slot*SLOT + W_BYTES + 4096*E}"]
            g += [f"buffer_load_dwordx4 v{V_DA+e}, s[{SRD_ACT}:{SRD_ACT+3}], s{S_ACT0} offen offset:{1024*e}{aflags} lds" for e in range(4)]
            g += [f"s_add_u32 s{S_ACT0}, s{S_ACT0}, {2*dt_stride}" if E < 2 else f"s_sub_u32 s{S_ACT0}, s{S_ACT0}, {4*dt_stride - 2048}"]
        if jump and slot % 2 == 1 and E == (3 if kind == "w" else 2):
            g = g[:-1] + jump(kind)
        out.append(g)
    return out


def loader_main(a, nstages, dt_stride, w_stride, tag, aflags="", wflags="", before_last=None, tail=None):
    assert nstages % 4 == 0
    G = lambda j: dma_groups(j % NSLOT, dt_stride, w_stride, aflags, wflags)
    flat = lambda gs: [x for g in gs for x in g]
    vm = 28 + 4*LEAD
    a.extend(flat(G(0)) + flat(G(1)[:LEAD]))
    a(f"s_waitcnt vmcnt({4*LEAD})\ns_barrier")
    a.extend(flat(G(1)[LEAD:]) + flat(G(2)) + flat(G(3)[:LEAD]))
    a(f"s_waitcnt vmcnt({vm})\ns_barrier")
    a.extend(flat(G(3)[LEAD:]))
    a(f"s_mov_b32 s{S_CNT}, {nstages//4 - 1}\nL_{tag}_lloop:")
    for slot in range(4):
        if s_group is not None:
            assert LEAD == 7
            W = [x for g in G(slot) if f"s[{SRD_W}:" in g[1] for x in g]
            a(f"s_cmp_eq_u32 s{s_group}, {slot}\ns_cbranch_scc1 L_{tag}_lead{slot}")
            a.extend(W + A(slot))
            a(f"s_branch L_{tag}_join{slot}\nL_{tag}_lead{slot}:")
            a.extend(A(slot) + W)
            a(f"L_{tag}_join{slot}:\ns_waitcnt vmcnt({vm})\ns_barrier")
            continue
        a.extend(flat(G(slot)[:LEAD]))
        a(f"s_waitcnt vmcnt({vm})\ns_barrier")
        a.extend(flat(G(slot)[LEAD:]))
    a(f"s_sub_u32 s{S_CNT}, s{S_CNT}, 1\ns_cmp_lg_u32 s{S_CNT}, 0\ns_cbranch_scc1 L_{tag}_lloop")
    if tail:
        tail(a)
        return
    a("s_waitcnt vmcnt(28)\ns_barrier")
    if before_last:
        before_last(a)
    else:
        a("s_waitcnt vmcnt(0)")
    a("s_barrier")


def reads(s, slot, ks, kmap):
    win, so = slot >> 1, (slot & 1) * SLOT
    hoff = 4 * 256 if kmap == "A" else 16 * 256
    ra = lambda dl: f"ds_read_b128 {vr(afrag(s, dl), 4)}, v{V_RA+win} offset:{so + (2*dl + ks)*1024}"
    rw = lambda nu, h: f"ds_read_b64_tr_b16 {vr(wfrag(s, nu)+2*h, 2)}, v{V_RW+4*win+nu} offset:{so + ks*8192 + h*hoff}"
    return [ra(0), rw(0, 0), rw(0, 1), ra(1), ra(2), rw(1, 0), rw(1, 1), rw(2, 0), rw(2, 1), rw(3, 0), rw(3, 1)]


def mfmas(s, swap):
    out = []
    for nu in range(4):
        for dl in (range(3) if nu % 2 == 0 else range(2, -1, -1)):
            w, x = vr(wfrag(s, nu), 4), vr(afrag(s, dl), 4)
            p, q = (x, w) if swap else (w, x)
            out.append(f"v_mfma_f32_16x16x32_bf16 {vr(acc(nu, dl), 4)}, {p}, {q}, {vr(acc(nu, dl), 4)}")
    return out


def stage(a, slot, kmap, swap, last, last_barrier=False, pre_barrier=None):
    m = mfmas(0, swap)
    rd = reads(1, slot, 1, kmap)
    gaps = [[] for _ in range(12)]
    a("s_waitcnt lgkmcnt(6)")
    if SCHED == 0:
        gaps[0] = [rd[0], rd[1]]
        gaps[1] = [rd[2], rd[3]]
        gaps[2] = ["s_waitcnt lgkmcnt(8)", rd[4]]
        gaps[3] = [rd[5], rd[6]]
        gaps[4] = [rd[7], rd[8]]
        gaps[5] = ["s_waitcnt lgkmcnt(9)", rd[9]]
        gaps[6] = [rd[10]]
    elif SCHED == 1:
        a.lines[-1] = "  s_waitcnt lgkmcnt(0)"
        for g, items in enumerate(([0, 1], [2], [3], [4], [5, 6], [7], [8], [9], [10])):
            gaps[g] = [rd[i] for i in items]
    elif SCHED == 2:
        a.lines[-1] = "  s_waitcnt lgkmcnt(0)"
        for g in range(5):
            gaps[g] = [rd[2*g], rd[2*g+1]]
        gaps[5] = [rd[10]]
    elif SCHED == 3:
        gaps[0] = [rd[0]]
        gaps[1] = [rd[1], rd[2]]
        gaps[2] = ["s_waitcnt lgkmcnt(3)", rd[3]]
        for g, items in enumerate(([4], [5, 6], [7], [8], [9], [10])):
            gaps[3+g] = [rd[i] for i in items]
    gaps[11] = ["s_waitcnt lgkmcnt(0)"]
    a.extend(interleave(m, gaps))
    if pre_barrier:
        pre_barrier(a)
    if not last or last_barrier:
        a("s_barrier")
    m = mfmas(1, swap)
    gaps = [[] for _ in range(12)]
    if not last:
        rd = reads(0, (slot + 1) % NSLOT, 0, kmap)
        if SCHED in (0, 2):
            for g in range(5):
                gaps[g] = [rd[2*g], rd[2*g+1]]
            gaps[5] = [rd[10]]
        else:
            for g, items in enumerate(([0, 1], [2], [3], [4], [5, 6], [7], [8], [9], [10])):
                gaps[g] = [rd[i] for i in items]
    a.extend(interleave(m, gaps))


def compute_main(a, nstages, kmap, swap, tag, hook=None, last_barrier=False, st=(0, 1), first_stage1=None, tail_hook=None, split_tail=None):
    a(f"; STAMP {st[0]}\ns_waitcnt lgkmcnt(0)\ns_barrier\n; CYC 0\n; SWAIT")
    a.extend(reads(0, 0, 0, kmap))
    a(f"s_mov_b32 s{S_CNT}, {nstages//4 - 1}")
    a(f".p2align 6\nL_{tag}_loop:")
    if hook:
        hook(a)
    a("; ITER")

    def once(a):
        a(f"s_cmp_lg_u32 s{S_CNT}, {nstages//4 - 1}\ns_cbranch_scc1 L_{tag}_once")
        first_stage1(a)
        a(f"L_{tag}_once:")
    for rep in range(nstages//4 - 1 if UNROLL_C else 1):
        for slot in range(4):
            stage(a, slot, kmap, swap, False, pre_barrier=once if (first_stage1 and slot == 1) else None)
    if not UNROLL_C:
        a(f"s_sub_u32 s{S_CNT}, s{S_CNT}, 1\ns_cmp_lg_u32 s{S_CNT}, 0\ns_cbranch_scc1 L_{tag}_loop")
    if split_tail:
        for slot in range(2):
            stage(a, slot, kmap, swap, False)
        n0 = len(a.lines)
        stage(a, 2, kmap, swap, False, pre_barrier=tail_hook)
        cut = max(i for i in range(n0, len(a.lines)) if a.lines[i].strip() == "s_barrier")
        del a.lines[cut+1:]
        global V_SET
        V_SET = V_SET[:2] + (220,)
        rd = reads(0, 3, 0, kmap) + reads(2, 3, 1, kmap)
        order = lambda r: [r[0], r[3], r[4], r[7], r[8], r[9], r[10], r[1], r[2], r[5], r[6]]
        rd = order(rd[:11]) + order(rd[11:])
        hi = lambda s: mfmas(s, swap)[6:]
        lo = lambda s: mfmas(s, swap)[:6]
        gaps = [[rd[2*g], rd[2*g+1]] for g in range(6)]
        gaps[5] += ["s_waitcnt lgkmcnt(5)"]
        a.extend(interleave(hi(1), gaps))
        gaps = [[rd[12+2*g], rd[13+2*g]] for g in range(5)] + [["s_waitcnt lgkmcnt(4)"]]
        a.extend(interleave(hi(0), gaps))
        a.extend(hi(2) + lo(1)[:3])
        split_tail(a)
        a("s_waitcnt lgkmcnt(0)")
        a.extend(lo(1)[3:] + lo(0) + lo(2))
        V_SET = V_SET[:2]
    for slot in range(4 if not split_tail else 0):
        stage(a, slot, kmap, swap, slot == 3, last_barrier, pre_barrier=tail_hook if slot == 2 else None)
    a("; CYC 1")


def w_prefill(a, stages, dt_stride, w_stride, jump=None):
    for j in stages:
        for g in dma_groups(j, dt_stride, w_stride, jump=jump):
            if f"s[{SRD_W}:" in g[1]:
                a.extend(g)


def loader_after_prefill(a, nstages, dt_stride, w_stride, tag, aflags, before_last=None, tail=None, jump=None, wait2=None, wait8=None, wrap=None, s_group=None, peek8=None):
    G = lambda j: dma_groups(j % NSLOT, dt_stride, w_stride, aflags, jump=jump)
    A = lambda j: [x for g in G(j) if f"s[{SRD_ACT}:" in g[1] for x in g]
    flat = lambda gs: [x for g in gs for x in g]
    vm = 28 + 4*LEAD
    eager = EAGER and LEAD == 7
    if wait2:
        a.extend(jump("a"))
        a("s_waitcnt vmcnt(32)\ns_barrier\ns_barrier")
        wait2(a)
        a.extend(A(2) + A(3))
        if not eager:
            a("s_waitcnt vmcnt(12)")
    elif eager:
        a.extend(A(0) + A(1) + A(2) + A(3))
        a("s_waitcnt vmcnt(36)\ns_barrier\ns_waitcnt vmcnt(24)\ns_barrier")
    else:
        a.extend(A(0) + A(1))
        a("s_waitcnt vmcnt(12)\ns_barrier")
        a.extend(A(2) + A(3))
        a("s_waitcnt vmcnt(12)\ns_barrier")
    a(f"s_mov_b32 s{S_CNT}, {nstages//4 - 1}\nL_{tag}_lloop:")
    if wrap:
        a(f"s_cmp_lg_u32 s{S_CNT}, {nstages//8}\ns_cbranch_scc1 L_{tag}_nowrap\ns_sub_u32 s{S_W0}, s{S_W0}, {wrap[0]}\ns_sub_u32 s{S_ACT0}, s{S_ACT0}, {wrap[1]}\nL_{tag}_nowrap:")
    if wait8:
        a(f"s_cmp_lg_u32 s{S_CNT}, {nstages//4 - 2}\ns_cbranch_scc1 L_{tag}_no8")
        wait8(a)
        a(f"L_{tag}_no8:")
    for slot in list(range(4)) * (nstages//4 - 1 if UNROLL_L else 1):
        if s_group is not None:
            assert LEAD == 7
            W = [x for g in G(slot) if f"s[{SRD_W}:" in g[1] for x in g]
            a(f"s_cmp_eq_u32 s{s_group}, {slot}\ns_cbranch_scc1 L_{tag}_lead{slot}")
            a.extend(W + A(slot))
            a(f"s_branch L_{tag}_join{slot}\nL_{tag}_lead{slot}:")
            a.extend(A(slot) + W)
            a(f"L_{tag}_join{slot}:\ns_waitcnt vmcnt({vm})\ns_barrier")
            continue
        a.extend(flat(G(slot)[:LEAD]))
        if eager and slot == 0:
            a(f"s_cmp_lg_u32 s{S_CNT}, {nstages//4 - 1}\ns_cbranch_scc1 L_{tag}_steady\ns_waitcnt vmcnt(40)\nL_{tag}_steady:")
        a(f"s_waitcnt vmcnt({vm})\ns_barrier")
        a.extend(flat(G(slot)[LEAD:]))
        if peek8 and slot == 1:
            assert LEAD == 7
            a(f"s_cmp_lg_u32 s{S_CNT}, {nstages//4 - 1}\ns_cbranch_scc1 L_{tag}_nopeek")
            peek8(a)
            a(f"L_{tag}_nopeek:")
    if not UNROLL_L:
        a(f"s_sub_u32 s{S_CNT}, s{S_CNT}, 1\ns_cmp_lg_u32 s{S_CNT}, 0\ns_cbranch_scc1 L_{tag}_lloop")
    if tail:
        tail(a)
        return
    a("s_waitcnt vmcnt(28)\ns_barrier")
    if before_last:
        before_last(a)
    else:
        a("s_waitcnt vmcnt(0)")
    a("s_barrier")
```

```python
from asmlib import *

SLOT = 28672
W_BYTES = 16384
NSLOT = 4
LDS_RING = SLOT * NSLOT

V_ACC = 64
V_SET = (112, 140)
V_DW = 40
V_DA = 44
V_RW = 48
V_RA = 56

S_WAVE = 20
S_ACT0 = 21
S_W0 = 22
S_CNT = 25
SRD_ACT = 28
SRD_W = 32
SCHED = 0
EAGER = True
RAMP = ()
UNROLL_C = False
UNROLL_L = False
LEAD = 3


def acc(nu, dl):
    return V_ACC + 4 * (nu * 3 + dl)


def wfrag(s, nu):
    return V_SET[s] + 4 * nu


def afrag(s, dl):
    return V_SET[s] + 16 + 4 * dl


def lane_ids(a):
    a("v_and_b32 v1, 63, v0\nv_and_b32 v2, 15, v1\nv_lshrrev_b32 v3, 4, v1\nv_lshlrev_b32 v7, 4, v1")


def loader_setup(a, dt_stride, w_stride, kmap):
    a(f"v_mul_u32_u24 v4, {w_stride}, v3\nv_lshlrev_b32 v5, 1, v3\nv_xor_b32 v5, v5, v2")
    a("v_lshl_add_u32 v6, v5, 4, v4\nv_xor_b32 v5, 8, v5\nv_lshl_add_u32 v8, v5, 4, v4")
    for e in range(4):
        hi = (e >> 1) & 1 if kmap == "A" else e & 1
        a(f"v_add_u32 v{V_DW+e}, {e*(4*w_stride - 1024)}, v{8 if hi else 6}")
    if dt_stride:
        for e in range(4):
            a(f"v_add_u32 v{V_DA+e}, {(e >> 1)*(dt_stride - 2048)}, v7")


def compute_setup(a, kmap, s_kh=None):
    a("v_bfe_u32 v4, v1, 2, 2")
    if kmap == "A":
        a("v_lshl_add_u32 v5, v3, 3, v4\nv_and_b32 v6, 1, v3\nv_lshl_add_u32 v6, v6, 2, v4")
    else:
        a("v_lshl_add_u32 v5, v3, 2, v4\nv_and_b32 v6, 7, v5")
    a("v_lshlrev_b32 v5, 8, v5\nv_and_b32 v8, 3, v1\nv_lshl_add_u32 v5, v8, 3, v5")
    if s_kh is None:
        a(f"s_lshr_b32 s26, s{S_WAVE}, 1\ns_lshl_b32 s26, s26, 2")
    else:
        a(f"s_and_b32 s26, s{S_WAVE}, 2\ns_lshl_b32 s27, s{s_kh}, 2\ns_add_u32 s26, s26, s27")
    for nu in range(4):
        if s_kh is None:
            a(f"s_add_u32 s27, s26, {nu}")
        else:
            a(f"s_add_u32 s27, s26, {nu & 1}\ns_xor_b32 s27, s27, {4*(nu >> 1)}")
        a(f"v_xor_b32 v8, s27, v6\nv_lshl_add_u32 v{V_RW+nu}, v8, 5, v5\nv_add_u32 v{V_RW+4+nu}, {2*SLOT}, v{V_RW+nu}")
    a(f"s_and_b32 s26, s{S_WAVE}, 1\ns_mul_i32 s26, s26, 6144\ns_add_u32 s26, s26, {W_BYTES}")
    a(f"v_add_u32 v{V_RA}, s26, v7\nv_add_u32 v{V_RA+1}, {2*SLOT}, v{V_RA}")


def dma_groups(slot, dt_stride, w_stride, aflags="", wflags="", jump=None):
    out = []
    for kind, E in (("a", 0), ("w", 0), ("w", 1), ("a", 1), ("w", 2), ("a", 2), ("w", 3)):
        if kind == "w":
            g = [f"s_mov_b32 m0, {slot*SLOT + 4096*E}"]
            g += [f"buffer_load_dwordx4 v{V_DW+e}, s[{SRD_W}:{SRD_W+3}], s{S_W0} offen offset:{1024*e}{wflags} lds" for e in range(4)]
            g += [f"s_add_u32 s{S_W0}, s{S_W0}, {16*w_stride}"]
        elif not dt_stride:
            g = [f"s_mov_b32 m0, {slot*SLOT + W_BYTES + 4096*E}"]
            g += [f"buffer_load_dwordx4 v7, s[{SRD_ACT}:{SRD_ACT+3}], s{S_ACT0} offen offset:{1024*e}{aflags} lds" for e in range(4)]
            g += [f"s_add_u32 s{S_ACT0}, s{S_ACT0}, {4096 if E < 2 else 36*2048 - 8192}"]
        else:
            g = [f"s_mov_b32 m0, {slot*SLOT + W_BYTES + 4096*E}"]
            g += [f"buffer_load_dwordx4 v{V_DA+e}, s[{SRD_ACT}:{SRD_ACT+3}], s{S_ACT0} offen offset:{1024*e}{aflags} lds" for e in range(4)]
            g += [f"s_add_u32 s{S_ACT0}, s{S_ACT0}, {2*dt_stride}" if E < 2 else f"s_sub_u32 s{S_ACT0}, s{S_ACT0}, {4*dt_stride - 2048}"]
        if jump and slot % 2 == 1 and E == (3 if kind == "w" else 2):
            g = g[:-1] + jump(kind)
        out.append(g)
    return out


def loader_main(a, nstages, dt_stride, w_stride, tag, aflags="", wflags="", before_last=None, tail=None):
    assert nstages % 4 == 0
    G = lambda j: dma_groups(j % NSLOT, dt_stride, w_stride, aflags, wflags)
    flat = lambda gs: [x for g in gs for x in g]
    vm = 28 + 4*LEAD
    a.extend(flat(G(0)) + flat(G(1)[:LEAD]))
    a(f"s_waitcnt vmcnt({4*LEAD})\ns_barrier")
    a.extend(flat(G(1)[LEAD:]) + flat(G(2)) + flat(G(3)[:LEAD]))
    a(f"s_waitcnt vmcnt({vm})\ns_barrier")
    a.extend(flat(G(3)[LEAD:]))
    a(f"s_mov_b32 s{S_CNT}, {nstages//4 - 1}\nL_{tag}_lloop:")
    for slot in range(4):
        if s_group is not None:
            assert LEAD == 7
            W = [x for g in G(slot) if f"s[{SRD_W}:" in g[1] for x in g]
            a(f"s_cmp_eq_u32 s{s_group}, {slot}\ns_cbranch_scc1 L_{tag}_lead{slot}")
            a.extend(W + A(slot))
            a(f"s_branch L_{tag}_join{slot}\nL_{tag}_lead{slot}:")
            a.extend(A(slot) + W)
            a(f"L_{tag}_join{slot}:\ns_waitcnt vmcnt({vm})\ns_barrier")
            continue
        a.extend(flat(G(slot)[:LEAD]))
        a(f"s_waitcnt vmcnt({vm})\ns_barrier")
        a.extend(flat(G(slot)[LEAD:]))
    a(f"s_sub_u32 s{S_CNT}, s{S_CNT}, 1\ns_cmp_lg_u32 s{S_CNT}, 0\ns_cbranch_scc1 L_{tag}_lloop")
    if tail:
        tail(a)
        return
    a("s_waitcnt vmcnt(28)\ns_barrier")
    if before_last:
        before_last(a)
    else:
        a("s_waitcnt vmcnt(0)")
    a("s_barrier")


def reads(s, slot, ks, kmap):
    win, so = slot >> 1, (slot & 1) * SLOT
    hoff = 4 * 256 if kmap == "A" else 16 * 256
    ra = lambda dl: f"ds_read_b128 {vr(afrag(s, dl), 4)}, v{V_RA+win} offset:{so + (2*dl + ks)*1024}"
    rw = lambda nu, h: f"ds_read_b64_tr_b16 {vr(wfrag(s, nu)+2*h, 2)}, v{V_RW+4*win+nu} offset:{so + ks*8192 + h*hoff}"
    return [ra(0), rw(0, 0), rw(0, 1), ra(1), ra(2), rw(1, 0), rw(1, 1), rw(2, 0), rw(2, 1), rw(3, 0), rw(3, 1)]


def mfmas(s, swap):
    out = []
    for nu in range(4):
        for dl in (range(3) if nu % 2 == 0 else range(2, -1, -1)):
            w, x = vr(wfrag(s, nu), 4), vr(afrag(s, dl), 4)
            p, q = (x, w) if swap else (w, x)
            out.append(f"v_mfma_f32_16x16x32_bf16 {vr(acc(nu, dl), 4)}, {p}, {q}, {vr(acc(nu, dl), 4)}")
    return out


def stage(a, slot, kmap, swap, last, last_barrier=False, pre_barrier=None):
    m = mfmas(0, swap)
    rd = reads(1, slot, 1, kmap)
    gaps = [[] for _ in range(12)]
    a("s_waitcnt lgkmcnt(6)")
    if SCHED == 0:
        gaps[0] = [rd[0], rd[1]]
        gaps[1] = [rd[2], rd[3]]
        gaps[2] = ["s_waitcnt lgkmcnt(8)", rd[4]]
        gaps[3] = [rd[5], rd[6]]
        gaps[4] = [rd[7], rd[8]]
        gaps[5] = ["s_waitcnt lgkmcnt(9)", rd[9]]
        gaps[6] = [rd[10]]
    elif SCHED == 1:
        a.lines[-1] = "  s_waitcnt lgkmcnt(0)"
        for g, items in enumerate(([0, 1], [2], [3], [4], [5, 6], [7], [8], [9], [10])):
            gaps[g] = [rd[i] for i in items]
    elif SCHED == 2:
        a.lines[-1] = "  s_waitcnt lgkmcnt(0)"
        for g in range(5):
            gaps[g] = [rd[2*g], rd[2*g+1]]
        gaps[5] = [rd[10]]
    elif SCHED == 3:
        gaps[0] = [rd[0]]
        gaps[1] = [rd[1], rd[2]]
        gaps[2] = ["s_waitcnt lgkmcnt(3)", rd[3]]
        for g, items in enumerate(([4], [5, 6], [7], [8], [9], [10])):
            gaps[3+g] = [rd[i] for i in items]
    gaps[11] = ["s_waitcnt lgkmcnt(0)"]
    a.extend(interleave(m, gaps))
    if pre_barrier:
        pre_barrier(a)
    if not last or last_barrier:
        a("s_barrier")
    m = mfmas(1, swap)
    gaps = [[] for _ in range(12)]
    if not last:
        rd = reads(0, (slot + 1) % NSLOT, 0, kmap)
        if SCHED in (0, 2):
            for g in range(5):
                gaps[g] = [rd[2*g], rd[2*g+1]]
            gaps[5] = [rd[10]]
        else:
            for g, items in enumerate(([0, 1], [2], [3], [4], [5, 6], [7], [8], [9], [10])):
                gaps[g] = [rd[i] for i in items]
    a.extend(interleave(m, gaps))


def compute_main(a, nstages, kmap, swap, tag, hook=None, last_barrier=False, st=(0, 1), first_stage1=None, tail_hook=None, split_tail=None):
    a(f"; STAMP {st[0]}\ns_waitcnt lgkmcnt(0)\ns_barrier\n; CYC 0\n; SWAIT")
    a.extend(reads(0, 0, 0, kmap))
    a(f"s_mov_b32 s{S_CNT}, {nstages//4 - 1}")
    a(f".p2align 6\nL_{tag}_loop:")
    if hook:
        hook(a)
    a("; ITER")

    def once(a):
        a(f"s_cmp_lg_u32 s{S_CNT}, {nstages//4 - 1}\ns_cbranch_scc1 L_{tag}_once")
        first_stage1(a)
        a(f"L_{tag}_once:")
    for rep in range(nstages//4 - 1 if UNROLL_C else 1):
        for slot in range(4):
            stage(a, slot, kmap, swap, False, pre_barrier=once if (first_stage1 and slot == 1) else None)
    if not UNROLL_C:
        a(f"s_sub_u32 s{S_CNT}, s{S_CNT}, 1\ns_cmp_lg_u32 s{S_CNT}, 0\ns_cbranch_scc1 L_{tag}_loop")
    if split_tail:
        for slot in range(2):
            stage(a, slot, kmap, swap, False)
        n0 = len(a.lines)
        stage(a, 2, kmap, swap, False, pre_barrier=tail_hook)
        cut = max(i for i in range(n0, len(a.lines)) if a.lines[i].strip() == "s_barrier")
        del a.lines[cut+1:]
        global V_SET
        V_SET = V_SET[:2] + (220,)
        rd = reads(0, 3, 0, kmap) + reads(2, 3, 1, kmap)
        order = lambda r: [r[0], r[3], r[4], r[7], r[8], r[9], r[10], r[1], r[2], r[5], r[6]]
        rd = order(rd[:11]) + order(rd[11:])
        hi = lambda s: mfmas(s, swap)[6:]
        lo = lambda s: mfmas(s, swap)[:6]
        gaps = [[rd[2*g], rd[2*g+1]] for g in range(6)]
        gaps[5] += ["s_waitcnt lgkmcnt(5)"]
        a.extend(interleave(hi(1), gaps))
        gaps = [[rd[12+2*g], rd[13+2*g]] for g in range(5)] + [["s_waitcnt lgkmcnt(4)"]]
        a.extend(interleave(hi(0), gaps))
        a.extend(hi(2) + lo(1)[:3])
        split_tail(a)
        a("s_waitcnt lgkmcnt(0)")
        a.extend(lo(1)[3:] + lo(0) + lo(2))
        V_SET = V_SET[:2]
    for slot in range(4 if not split_tail else 0):
        stage(a, slot, kmap, swap, slot == 3, last_barrier, pre_barrier=tail_hook if slot == 2 else None)
    a("; CYC 1")


def w_prefill(a, stages, dt_stride, w_stride, jump=None):
    for j in stages:
        for g in dma_groups(j, dt_stride, w_stride, jump=jump):
            if f"s[{SRD_W}:" in g[1]:
                a.extend(g)


def loader_after_prefill(a, nstages, dt_stride, w_stride, tag, aflags, before_last=None, tail=None, jump=None, wait2=None, wait8=None, wrap=None, s_group=None, peek8=None):
    G = lambda j: dma_groups(j % NSLOT, dt_stride, w_stride, aflags, jump=jump)
    A = lambda j: [x for g in G(j) if f"s[{SRD_ACT}:" in g[1] for x in g]
    flat = lambda gs: [x for g in gs for x in g]
    vm = 28 + 4*LEAD
    eager = EAGER and LEAD == 7
    trips = nstages//4 - 1 - len(RAMP)//4
    if wait2:
        a.extend(jump("a"))
        a("s_waitcnt vmcnt(32)\ns_barrier\ns_barrier")
        wait2(a)
        a.extend(A(2) + A(3))
        if not eager:
            a("s_waitcnt vmcnt(12)")
    elif eager:
        a.extend(A(0) + A(1) + A(2) + A(3))
        a("s_waitcnt vmcnt(36)\ns_barrier\ns_waitcnt vmcnt(24)\ns_barrier")
    else:
        a.extend(A(0) + A(1))
        a("s_waitcnt vmcnt(12)\ns_barrier")
        a.extend(A(2) + A(3))
        a("s_waitcnt vmcnt(12)\ns_barrier")
    a(f"s_mov_b32 s{S_CNT}, {trips}\nL_{tag}_lloop:")
    if wrap:
        a(f"s_cmp_lg_u32 s{S_CNT}, {nstages//8}\ns_cbranch_scc1 L_{tag}_nowrap\ns_sub_u32 s{S_W0}, s{S_W0}, {wrap[0]}\ns_sub_u32 s{S_ACT0}, s{S_ACT0}, {wrap[1]}\nL_{tag}_nowrap:")
    if wait8:
        a(f"s_cmp_lg_u32 s{S_CNT}, {trips - 1}\ns_cbranch_scc1 L_{tag}_no8")
        wait8(a)
        a(f"L_{tag}_no8:")
    for slot in list(range(4)) * (nstages//4 - 1 if UNROLL_L else 1):
        if s_group is not None:
            assert LEAD == 7
            W = [x for g in G(slot) if f"s[{SRD_W}:" in g[1] for x in g]
            a(f"s_cmp_eq_u32 s{s_group}, {slot}\ns_cbranch_scc1 L_{tag}_lead{slot}")
            a.extend(W + A(slot))
            a(f"s_branch L_{tag}_join{slot}\nL_{tag}_lead{slot}:")
            a.extend(A(slot) + W)
            a(f"L_{tag}_join{slot}:\ns_waitcnt vmcnt({vm})\ns_barrier")
            continue
        a.extend(flat(G(slot)[:LEAD]))
        if eager and slot == 0:
            a(f"s_cmp_lg_u32 s{S_CNT}, {trips}\ns_cbranch_scc1 L_{tag}_steady\ns_waitcnt vmcnt(40)\nL_{tag}_steady:")
        a(f"s_waitcnt vmcnt({vm})\ns_barrier")
        a.extend(flat(G(slot)[LEAD:]))
        if peek8 and slot == 1:
            assert LEAD == 7
            a(f"s_cmp_lg_u32 s{S_CNT}, {trips}\ns_cbranch_scc1 L_{tag}_nopeek")
            peek8(a)
            a(f"L_{tag}_nopeek:")
    if not UNROLL_L:
        a(f"s_sub_u32 s{S_CNT}, s{S_CNT}, 1\ns_cmp_lg_u32 s{S_CNT}, 0\ns_cbranch_scc1 L_{tag}_lloop")
    for k, lead in enumerate(RAMP):
        a.extend(flat(G(k)[:lead]))
        a(f"s_waitcnt vmcnt({28 + 4*lead})\ns_barrier")
        a.extend(flat(G(k)[lead:]))
    if tail:
        tail(a)
        return
    a("s_waitcnt vmcnt(28)\ns_barrier")
    if before_last:
        before_last(a)
    else:
        a("s_waitcnt vmcnt(0)")
    a("s_barrier")
```

```python
from asmlib import *

SLOT = 28672
W_BYTES = 16384
NSLOT = 4
LDS_RING = SLOT * NSLOT

V_ACC = 64
V_SET = (112, 140)
V_DW = 40
V_DA = 44
V_RW = 48
V_RA = 56

S_WAVE = 20
S_ACT0 = 21
S_W0 = 22
S_CNT = 25
SRD_ACT = 28
SRD_W = 32
SCHED = 0
EAGER = True
RAMP = ()
UNROLL_C = False
UNROLL_L = False
LEAD = 3


def acc(nu, dl):
    return V_ACC + 4 * (nu * 3 + dl)


def wfrag(s, nu):
    return V_SET[s] + 4 * nu


def afrag(s, dl):
    return V_SET[s] + 16 + 4 * dl


def lane_ids(a):
    a("v_and_b32 v1, 63, v0\nv_and_b32 v2, 15, v1\nv_lshrrev_b32 v3, 4, v1\nv_lshlrev_b32 v7, 4, v1")


def loader_setup(a, dt_stride, w_stride, kmap):
    a(f"v_mul_u32_u24 v4, {w_stride}, v3\nv_lshlrev_b32 v5, 1, v3\nv_xor_b32 v5, v5, v2")
    a("v_lshl_add_u32 v6, v5, 4, v4\nv_xor_b32 v5, 8, v5\nv_lshl_add_u32 v8, v5, 4, v4")
    for e in range(4):
        hi = (e >> 1) & 1 if kmap == "A" else e & 1
        a(f"v_add_u32 v{V_DW+e}, {e*(4*w_stride - 1024)}, v{8 if hi else 6}")
    if dt_stride:
        for e in range(4):
            a(f"v_add_u32 v{V_DA+e}, {(e >> 1)*(dt_stride - 2048)}, v7")


def compute_setup(a, kmap, s_kh=None):
    a("v_bfe_u32 v4, v1, 2, 2")
    if kmap == "A":
        a("v_lshl_add_u32 v5, v3, 3, v4\nv_and_b32 v6, 1, v3\nv_lshl_add_u32 v6, v6, 2, v4")
    else:
        a("v_lshl_add_u32 v5, v3, 2, v4\nv_and_b32 v6, 7, v5")
    a("v_lshlrev_b32 v5, 8, v5\nv_and_b32 v8, 3, v1\nv_lshl_add_u32 v5, v8, 3, v5")
    if s_kh is None:
        a(f"s_lshr_b32 s26, s{S_WAVE}, 1\ns_lshl_b32 s26, s26, 2")
    else:
        a(f"s_and_b32 s26, s{S_WAVE}, 2\ns_lshl_b32 s27, s{s_kh}, 2\ns_add_u32 s26, s26, s27")
    for nu in range(4):
        if s_kh is None:
            a(f"s_add_u32 s27, s26, {nu}")
        else:
            a(f"s_add_u32 s27, s26, {nu & 1}\ns_xor_b32 s27, s27, {4*(nu >> 1)}")
        a(f"v_xor_b32 v8, s27, v6\nv_lshl_add_u32 v{V_RW+nu}, v8, 5, v5\nv_add_u32 v{V_RW+4+nu}, {2*SLOT}, v{V_RW+nu}")
    a(f"s_and_b32 s26, s{S_WAVE}, 1\ns_mul_i32 s26, s26, 6144\ns_add_u32 s26, s26, {W_BYTES}")
    a(f"v_add_u32 v{V_RA}, s26, v7\nv_add_u32 v{V_RA+1}, {2*SLOT}, v{V_RA}")


def dma_groups(slot, dt_stride, w_stride, aflags="", wflags="", jump=None):
    out = []
    for kind, E in (("a", 0), ("w", 0), ("w", 1), ("a", 1), ("w", 2), ("a", 2), ("w", 3)):
        if kind == "w":
            g = [f"s_mov_b32 m0, {slot*SLOT + 4096*E}"]
            g += [f"buffer_load_dwordx4 v{V_DW+e}, s[{SRD_W}:{SRD_W+3}], s{S_W0} offen offset:{1024*e}{wflags} lds" for e in range(4)]
            g += [f"s_add_u32 s{S_W0}, s{S_W0}, {16*w_stride}"]
        elif not dt_stride:
            g = [f"s_mov_b32 m0, {slot*SLOT + W_BYTES + 4096*E}"]
            g += [f"buffer_load_dwordx4 v7, s[{SRD_ACT}:{SRD_ACT+3}], s{S_ACT0} offen offset:{1024*e}{aflags} lds" for e in range(4)]
            g += [f"s_add_u32 s{S_ACT0}, s{S_ACT0}, {4096 if E < 2 else 36*2048 - 8192}"]
        else:
            g = [f"s_mov_b32 m0, {slot*SLOT + W_BYTES + 4096*E}"]
            g += [f"buffer_load_dwordx4 v{V_DA+e}, s[{SRD_ACT}:{SRD_ACT+3}], s{S_ACT0} offen offset:{1024*e}{aflags} lds" for e in range(4)]
            g += [f"s_add_u32 s{S_ACT0}, s{S_ACT0}, {2*dt_stride}" if E < 2 else f"s_sub_u32 s{S_ACT0}, s{S_ACT0}, {4*dt_stride - 2048}"]
        if jump and slot % 2 == 1 and E == (3 if kind == "w" else 2):
            g = g[:-1] + jump(kind)
        out.append(g)
    return out


def loader_main(a, nstages, dt_stride, w_stride, tag, aflags="", wflags="", before_last=None, tail=None, s_group=None):
    assert nstages % 4 == 0
    G = lambda j: dma_groups(j % NSLOT, dt_stride, w_stride, aflags, wflags)
    flat = lambda gs: [x for g in gs for x in g]
    vm = 28 + 4*LEAD
    a.extend(flat(G(0)) + flat(G(1)[:LEAD]))
    a(f"s_waitcnt vmcnt({4*LEAD})\ns_barrier")
    a.extend(flat(G(1)[LEAD:]) + flat(G(2)) + flat(G(3)[:LEAD]))
    a(f"s_waitcnt vmcnt({vm})\ns_barrier")
    a.extend(flat(G(3)[LEAD:]))
    a(f"s_mov_b32 s{S_CNT}, {nstages//4 - 1}\nL_{tag}_lloop:")
    for slot in range(4):
        if s_group is not None:
            assert LEAD == 7
            W = [x for g in G(slot) if f"s[{SRD_W}:" in g[1] for x in g]
            a(f"s_cmp_eq_u32 s{s_group}, {slot}\ns_cbranch_scc1 L_{tag}_lead{slot}")
            a.extend(W + A(slot))
            a(f"s_branch L_{tag}_join{slot}\nL_{tag}_lead{slot}:")
            a.extend(A(slot) + W)
            a(f"L_{tag}_join{slot}:\ns_waitcnt vmcnt({vm})\ns_barrier")
            continue
        a.extend(flat(G(slot)[:LEAD]))
        a(f"s_waitcnt vmcnt({vm})\ns_barrier")
        a.extend(flat(G(slot)[LEAD:]))
    a(f"s_sub_u32 s{S_CNT}, s{S_CNT}, 1\ns_cmp_lg_u32 s{S_CNT}, 0\ns_cbranch_scc1 L_{tag}_lloop")
    if tail:
        tail(a)
        return
    a("s_waitcnt vmcnt(28)\ns_barrier")
    if before_last:
        before_last(a)
    else:
        a("s_waitcnt vmcnt(0)")
    a("s_barrier")


def reads(s, slot, ks, kmap):
    win, so = slot >> 1, (slot & 1) * SLOT
    hoff = 4 * 256 if kmap == "A" else 16 * 256
    ra = lambda dl: f"ds_read_b128 {vr(afrag(s, dl), 4)}, v{V_RA+win} offset:{so + (2*dl + ks)*1024}"
    rw = lambda nu, h: f"ds_read_b64_tr_b16 {vr(wfrag(s, nu)+2*h, 2)}, v{V_RW+4*win+nu} offset:{so + ks*8192 + h*hoff}"
    return [ra(0), rw(0, 0), rw(0, 1), ra(1), ra(2), rw(1, 0), rw(1, 1), rw(2, 0), rw(2, 1), rw(3, 0), rw(3, 1)]


def mfmas(s, swap):
    out = []
    for nu in range(4):
        for dl in (range(3) if nu % 2 == 0 else range(2, -1, -1)):
            w, x = vr(wfrag(s, nu), 4), vr(afrag(s, dl), 4)
            p, q = (x, w) if swap else (w, x)
            out.append(f"v_mfma_f32_16x16x32_bf16 {vr(acc(nu, dl), 4)}, {p}, {q}, {vr(acc(nu, dl), 4)}")
    return out


PLANS = {
    0: None,
    4: (([0], [1], [2], [3], [4], [5], [6], [7], [8], [9], [10]), ([0], [1], [2], [3], [4], [5], [6], [7], [8], [9], [10]), 0),
    5: (([0], [1, 2], [3], [4], [5, 6], [7, 8], [9, 10]), ([0], [1, 2], [3], [4], [5, 6], [7, 8], [9, 10]), 0),
    6: (([0], [1], [2], [3], [4], [5], [6], [7], [8], [9], [10]), ([], [], [0], [1, 2], [3], [4], [5, 6], [7], [8], [9], [10]), 2),
    7: (([0], [1, 2], [3], [4], [5], [6], [7], [8], [9, 10]), ([], [0], [1, 2], [3], [4], [5], [6], [7], [8], [9, 10]), 1),
    8: (([0], [1], [2], [3], [4], [5], [6], [7], [8], [9], [10]), ([], [], [], [0, 1], [2], [3], [4], [5, 6], [7, 8], [9], [10]), 3),
    9: (([0], [1, 2], [3], [4], [5, 6], [7], [8], [9], [10]), ([0], [1, 2], [3], [4], [5, 6], [7], [8], [9], [10]), 0),
    10: (([0], [1], [2], [3], [4], [5], [6], [7], [8], [9], [10]), ([], [], [0], [1, 2], [3], [4], [5], [6], [7], [8], [9], [10]), 2),
    11: (([0], [1], [2], [3], [4], [5], [6], [7], [8], [9], [10]), ([], [], [], [0], [1, 2], [3], [4], [5, 6], [7], [8], [9], [10]), 3),
    12: (([0], [1, 2], [3], [4], [5], [6], [7], [8], [9], [10]), ([], [0], [1], [2], [3], [4], [5], [6], [7], [8], [9], [10]), 1),
    13: (([0], [1, 2], [3], [4], [5], [6], [7], [8], [9], [10]), ([], [], [0], [1, 2], [3], [4], [5], [6], [7], [8], [9], [10]), 2),
    14: (([0], [1], [2], [3], [4], [5], [6], [7], [8], [9], [10]), ([], [0], [1], [2], [3], [4], [5], [6], [7], [8], [9], [10]), 1),
}
NEED = {0: 3, 1: 4, 2: 5, 3: 7, 6: 9, 9: 11}


def planned_phase(a, m, own_after, rd, plan, extra):
    landed = 11 - own_after
    issued = 0
    for g, mf in enumerate(m):
        for pre in extra.get(g, ()):
            pre(a) if callable(pre) else a(pre)
            if pre == "s_waitcnt lgkmcnt(0)":
                landed = 11
        need = NEED.get(g, 0)
        if need > landed:
            take = min(11, max(need, NEED.get(min((k for k in NEED if k > g), default=g), need) if WAIT_MERGE else need))
            a(f"s_waitcnt lgkmcnt({11 - take + issued})")
            landed = take
        a(mf)
        for i in (plan[g] if g < len(plan) and rd else ()):
            a(rd[i]); issued += 1


WAIT_MERGE = True


def stage_planned(a, slot, kmap, swap, last, last_barrier, pre_barrier):
    pa, pb, bpos = PLANS[SCHED]
    planned_phase(a, mfmas(0, swap), 11, reads(1, slot, 1, kmap), pa, {})
    bar = ["s_waitcnt lgkmcnt(0)"] + ([pre_barrier] if pre_barrier else []) + (["s_barrier"] if not last or last_barrier else [])
    planned_phase(a, mfmas(1, swap), 11, None if last else reads(0, (slot + 1) % NSLOT, 0, kmap), pb, {bpos: bar})


def stage(a, slot, kmap, swap, last, last_barrier=False, pre_barrier=None):
    if SCHED >= 4:
        return stage_planned(a, slot, kmap, swap, last, last_barrier, pre_barrier)
    m = mfmas(0, swap)
    rd = reads(1, slot, 1, kmap)
    gaps = [[] for _ in range(12)]
    a("s_waitcnt lgkmcnt(6)")
    if SCHED == 0:
        gaps[0] = [rd[0], rd[1]]
        gaps[1] = [rd[2], rd[3]]
        gaps[2] = ["s_waitcnt lgkmcnt(8)", rd[4]]
        gaps[3] = [rd[5], rd[6]]
        gaps[4] = [rd[7], rd[8]]
        gaps[5] = ["s_waitcnt lgkmcnt(9)", rd[9]]
        gaps[6] = [rd[10]]
    elif SCHED == 1:
        a.lines[-1] = "  s_waitcnt lgkmcnt(0)"
        for g, items in enumerate(([0, 1], [2], [3], [4], [5, 6], [7], [8], [9], [10])):
            gaps[g] = [rd[i] for i in items]
    elif SCHED == 2:
        a.lines[-1] = "  s_waitcnt lgkmcnt(0)"
        for g in range(5):
            gaps[g] = [rd[2*g], rd[2*g+1]]
        gaps[5] = [rd[10]]
    elif SCHED == 3:
        gaps[0] = [rd[0]]
        gaps[1] = [rd[1], rd[2]]
        gaps[2] = ["s_waitcnt lgkmcnt(3)", rd[3]]
        for g, items in enumerate(([4], [5, 6], [7], [8], [9], [10])):
            gaps[3+g] = [rd[i] for i in items]
    gaps[11] = ["s_waitcnt lgkmcnt(0)"]
    a.extend(interleave(m, gaps))
    if pre_barrier:
        pre_barrier(a)
    if not last or last_barrier:
        a("s_barrier")
    m = mfmas(1, swap)
    gaps = [[] for _ in range(12)]
    if not last:
        rd = reads(0, (slot + 1) % NSLOT, 0, kmap)
        if SCHED in (0, 2):
            for g in range(5):
                gaps[g] = [rd[2*g], rd[2*g+1]]
            gaps[5] = [rd[10]]
        else:
            for g, items in enumerate(([0, 1], [2], [3], [4], [5, 6], [7], [8], [9], [10])):
                gaps[g] = [rd[i] for i in items]
    a.extend(interleave(m, gaps))


def compute_main(a, nstages, kmap, swap, tag, hook=None, last_barrier=False, st=(0, 1), first_stage1=None, tail_hook=None, split_tail=None):
    a(f"; STAMP {st[0]}\ns_waitcnt lgkmcnt(0)\ns_barrier\n; CYC 0\n; SWAIT")
    a.extend(reads(0, 0, 0, kmap))
    a(f"s_mov_b32 s{S_CNT}, {nstages//4 - 1}")
    a(f".p2align 6\nL_{tag}_loop:")
    if hook:
        hook(a)
    a("; ITER")

    def once(a):
        a(f"s_cmp_lg_u32 s{S_CNT}, {nstages//4 - 1}\ns_cbranch_scc1 L_{tag}_once")
        first_stage1(a)
        a(f"L_{tag}_once:")
    for rep in range(nstages//4 - 1 if UNROLL_C else 1):
        for slot in range(4):
            stage(a, slot, kmap, swap, False, pre_barrier=once if (first_stage1 and slot == 1) else None)
    if not UNROLL_C:
        a(f"s_sub_u32 s{S_CNT}, s{S_CNT}, 1\ns_cmp_lg_u32 s{S_CNT}, 0\ns_cbranch_scc1 L_{tag}_loop")
    if split_tail:
        for slot in range(2):
            stage(a, slot, kmap, swap, False)
        n0 = len(a.lines)
        stage(a, 2, kmap, swap, False, pre_barrier=tail_hook)
        cut = max(i for i in range(n0, len(a.lines)) if a.lines[i].strip() == "s_barrier")
        del a.lines[cut+1:]
        global V_SET
        V_SET = V_SET[:2] + (220,)
        rd = reads(0, 3, 0, kmap) + reads(2, 3, 1, kmap)
        order = lambda r: [r[0], r[3], r[4], r[7], r[8], r[9], r[10], r[1], r[2], r[5], r[6]]
        rd = order(rd[:11]) + order(rd[11:])
        hi = lambda s: mfmas(s, swap)[6:]
        lo = lambda s: mfmas(s, swap)[:6]
        gaps = [[rd[2*g], rd[2*g+1]] for g in range(6)]
        gaps[5] += ["s_waitcnt lgkmcnt(5)"]
        a.extend(interleave(hi(1), gaps))
        gaps = [[rd[12+2*g], rd[13+2*g]] for g in range(5)] + [["s_waitcnt lgkmcnt(4)"]]
        a.extend(interleave(hi(0), gaps))
        a.extend(hi(2) + lo(1)[:3])
        split_tail(a)
        a("s_waitcnt lgkmcnt(0)")
        a.extend(lo(1)[3:] + lo(0) + lo(2))
        V_SET = V_SET[:2]
    for slot in range(4 if not split_tail else 0):
        stage(a, slot, kmap, swap, slot == 3, last_barrier, pre_barrier=tail_hook if slot == 2 else None)
    a("; CYC 1")


def w_prefill(a, stages, dt_stride, w_stride, jump=None):
    for j in stages:
        for g in dma_groups(j, dt_stride, w_stride, jump=jump):
            if f"s[{SRD_W}:" in g[1]:
                a.extend(g)


def loader_after_prefill(a, nstages, dt_stride, w_stride, tag, aflags, before_last=None, tail=None, jump=None, wait2=None, wait8=None, wrap=None, s_group=None, peek8=None):
    G = lambda j: dma_groups(j % NSLOT, dt_stride, w_stride, aflags, jump=jump)
    A = lambda j: [x for g in G(j) if f"s[{SRD_ACT}:" in g[1] for x in g]
    flat = lambda gs: [x for g in gs for x in g]
    vm = 28 + 4*LEAD
    eager = EAGER and LEAD == 7
    trips = nstages//4 - 1 - len(RAMP)//4
    if wait2:
        a.extend(jump("a"))
        a("s_waitcnt vmcnt(32)\ns_barrier\ns_barrier")
        wait2(a)
        a.extend(A(2) + A(3))
        if not eager:
            a("s_waitcnt vmcnt(12)")
    elif eager:
        a.extend(A(0) + A(1) + A(2) + A(3))
        a("s_waitcnt vmcnt(36)\ns_barrier\ns_waitcnt vmcnt(24)\ns_barrier")
    else:
        a.extend(A(0) + A(1))
        a("s_waitcnt vmcnt(12)\ns_barrier")
        a.extend(A(2) + A(3))
        a("s_waitcnt vmcnt(12)\ns_barrier")
    a(f"s_mov_b32 s{S_CNT}, {trips}\nL_{tag}_lloop:")
    if wrap:
        a(f"s_cmp_lg_u32 s{S_CNT}, {nstages//8}\ns_cbranch_scc1 L_{tag}_nowrap\ns_sub_u32 s{S_W0}, s{S_W0}, {wrap[0]}\ns_sub_u32 s{S_ACT0}, s{S_ACT0}, {wrap[1]}\nL_{tag}_nowrap:")
    if wait8:
        a(f"s_cmp_lg_u32 s{S_CNT}, {trips - 1}\ns_cbranch_scc1 L_{tag}_no8")
        wait8(a)
        a(f"L_{tag}_no8:")
    for slot in list(range(4)) * (nstages//4 - 1 if UNROLL_L else 1):
        if s_group is not None:
            assert LEAD == 7
            W = [x for g in G(slot) if f"s[{SRD_W}:" in g[1] for x in g]
            a(f"s_cmp_eq_u32 s{s_group}, {slot}\ns_cbranch_scc1 L_{tag}_lead{slot}")
            a.extend(W + A(slot))
            a(f"s_branch L_{tag}_join{slot}\nL_{tag}_lead{slot}:")
            a.extend(A(slot) + W)
            a(f"L_{tag}_join{slot}:\ns_waitcnt vmcnt({vm})\ns_barrier")
            continue
        a.extend(flat(G(slot)[:LEAD]))
        if eager and slot == 0:
            a(f"s_cmp_lg_u32 s{S_CNT}, {trips}\ns_cbranch_scc1 L_{tag}_steady\ns_waitcnt vmcnt(40)\nL_{tag}_steady:")
        a(f"s_waitcnt vmcnt({vm})\ns_barrier")
        a.extend(flat(G(slot)[LEAD:]))
        if peek8 and slot == 1:
            assert LEAD == 7
            a(f"s_cmp_lg_u32 s{S_CNT}, {trips}\ns_cbranch_scc1 L_{tag}_nopeek")
            peek8(a)
            a(f"L_{tag}_nopeek:")
    if not UNROLL_L:
        a(f"s_sub_u32 s{S_CNT}, s{S_CNT}, 1\ns_cmp_lg_u32 s{S_CNT}, 0\ns_cbranch_scc1 L_{tag}_lloop")
    for k, lead in enumerate(RAMP):
        a.extend(flat(G(k)[:lead]))
        a(f"s_waitcnt vmcnt({28 + 4*lead})\ns_barrier")
        a.extend(flat(G(k)[lead:]))
    if tail:
        tail(a)
        return
    a("s_waitcnt vmcnt(28)\ns_barrier")
    if before_last:
        before_last(a)
    else:
        a("s_waitcnt vmcnt(0)")
    a("s_barrier")
```

```python
from asmlib import *
from layout import *

HALF2 = 2304 * 4096


def w1_stream(a, tag, rs, hid, nh, row0, row1, window, both=True, short23=0):
    n = -(-(row1 - row0) // (4 * nh))
    if n <= 0:
        return
    a("v_and_b32 v1, 63, v0\nv_lshrrev_b32 v30, 4, v1\nv_mul_u32_u24 v30, 9216, v30\nv_and_b32 v31, 15, v1\nv_lshl_add_u32 v30, v31, 4, v30")
    a("s_and_b32 s42, s2, 1\ns_and_b32 s40, s2, 7\ns_mul_i32 s40, s40, 9\ns_add_u32 s40, s40, 1\ns_lshr_b32 s40, s40, 1\ns_lshl_b32 s40, s40, 8")
    a(f"s_mul_i32 s41, s{hid}, 36864\ns_add_u32 s40, s40, s41\ns_add_u32 s40, s40, {row0*9216}")
    a(f"s_mul_i32 s43, s42, 1280\ns_sub_u32 s43, 1024, s43\ns_add_u32 s42, s42, s{hid}")
    a(f"s_mov_b32 s44, {n}")
    if both == "not23":
        a("s_and_b32 s45, s2, 6\ns_cmp_eq_u32 s45, 2\ns_cselect_b32 s45, 1, 0")
    if short23:
        a(f"s_and_b32 s41, s2, 6\ns_cmp_eq_u32 s41, 2\ns_cselect_b32 s44, {-(-(row1 - short23 - row0) // (4 * nh))}, s44")
    a(f"L_{tag}_pw1:")
    for i in range(4):
        a(f"buffer_load_dwordx4 v[{64+4*i}:{67+4*i}], v30, s[{rs}:{rs+3}], s40 offen offset:{256*i}")
    if both == "not23":
        a(f"s_and_b32 s41, s42, s45\ns_cbranch_scc1 L_{tag}_sk1")
    elif not both:
        a(f"s_bitcmp1_b32 s42, 0\ns_cbranch_scc1 L_{tag}_sk1")
    a(f"s_add_u32 s41, s40, s43\nbuffer_load_dwordx4 v[80:83], v30, s[{rs}:{rs+3}], s41 offen\nL_{tag}_sk1:")
    a(f"s_add_u32 s42, s42, {nh | 1}\ns_add_u32 s40, s40, {nh*36864}\ns_waitcnt vmcnt({window})\ns_sub_u32 s44, s44, 1\ns_cmp_lg_u32 s44, 0\ns_cbranch_scc1 L_{tag}_pw1")


ROT = True


def w2_start(a, d, hid, row0):
    a(f"s_and_b32 s41, s2, 3\ns_lshl_b32 s42, s41, 10\ns_mul_i32 s41, s41, 9\ns_add_u32 s41, s41, 1\ns_lshr_b32 s41, s41, 1\ns_lshl_b32 s41, s41, 7")
    if not ROT:
        a("s_mov_b32 s41, 0")
    a(f"s_add_u32 s41, s41, s{hid}\ns_add_u32 s41, s41, {row0}\ns_cmp_ge_u32 s41, 2304\ns_cselect_b32 s43, 2304, 0\ns_sub_u32 s41, s41, s43\ns_lshl_b32 s41, s41, 12")
    a(f"s_bfe_u32 s43, s2, 0x10002\ns_mul_i32 s43, s43, {HALF2}\ns_add_u32 s42, s42, s43\ns_add_u32 s{d}, s41, s42\ns_add_u32 s42, s42, {HALF2}")


def w2_stream(a, tag, rs, hid, nh, row0, row1, window):
    n = -(-(row1 - row0) // (4 * nh))
    if n <= 0:
        return
    a("v_and_b32 v1, 63, v0\nv_lshlrev_b32 v30, 4, v1")
    w2_start(a, 40, hid, row0)
    a(f"s_mov_b32 s44, {n}\nL_{tag}_pw2:")
    for i in range(4):
        a(f"buffer_load_dwordx4 v[{64+4*i}:{67+4*i}], v30, s[{rs}:{rs+3}], s40 offen\ns_add_u32 s40, s40, {nh*4096}")
        a(f"s_cmp_ge_u32 s40, s42\ns_cselect_b32 s43, {HALF2}, 0\ns_sub_u32 s40, s40, s43")
    a(f"s_waitcnt vmcnt({window})\ns_sub_u32 s44, s44, 1\ns_cmp_lg_u32 s44, 0\ns_cbranch_scc1 L_{tag}_pw2")


def w1_burst(a, rs, widx, nw, load0, n, vdst=168):
    if n <= 0:
        return
    a("v_lshrrev_b32 v30, 4, v1\nv_mul_u32_u24 v30, 9216, v30\nv_and_b32 v31, 15, v1\nv_lshl_add_u32 v30, v31, 4, v30")
    a("s_and_b32 s44, s2, 7\ns_mul_i32 s44, s44, 9\ns_lshr_b32 s44, s44, 1\ns_lshl_b32 s44, s44, 8")
    for b in range(n):
        a(f"s_add_u32 s46, s{widx}, {load0 + nw*b}\ns_mul_i32 s47, s46, 13108\ns_lshr_b32 s47, s47, 16\ns_mul_i32 s45, s47, 5\ns_sub_u32 s46, s46, s45")
        a("s_mul_i32 s47, s47, 36864\ns_lshl_b32 s46, s46, 8\ns_add_u32 s47, s47, s46\ns_add_u32 s47, s47, s44")
        a(f"buffer_load_dwordx4 v[{vdst}:{vdst+3}], v30, s[{rs}:{rs+3}], s47 offen")


def w1_lane_addr(a):
    a("v_lshrrev_b32 v30, 4, v1\nv_mul_u32_u24 v30, 9216, v30\nv_and_b32 v31, 15, v1\nv_lshl_add_u32 v30, v31, 4, v30")
    a("s_and_b32 s42, s2, 1\ns_and_b32 s40, s2, 7\ns_mul_i32 s40, s40, 9\ns_add_u32 s40, s40, 1\ns_lshr_b32 s40, s40, 1\ns_lshl_b32 s40, s40, 8")
    a("s_mul_i32 s43, s42, 1280\ns_sub_u32 s43, 1024, s43")


def w1_pairs(a, tag, rs, hid, win0, win1, window):
    w1_lane_addr(a)
    a(f"s_mul_i32 s41, s{hid}, {2*36864}\ns_add_u32 s40, s40, s41\ns_add_u32 s40, s40, {win0*64*9216}")
    a(f"s_mul_i32 s42, s42, 36864\ns_add_u32 s43, s43, s42\ns_mov_b32 s44, {win1 - win0}\nL_{tag}_pp:")
    for i in range(4):
        a(f"buffer_load_dwordx4 v[{64+4*i}:{67+4*i}], v30, s[{rs}:{rs+3}], s40 offen offset:{256*i}")
    a(f"s_add_u32 s41, s40, s43\nbuffer_load_dwordx4 v[80:83], v30, s[{rs}:{rs+3}], s41 offen\ns_add_u32 s41, s40, 36864")
    for i in range(4):
        a(f"buffer_load_dwordx4 v[{84+4*i}:{87+4*i}], v30, s[{rs}:{rs+3}], s41 offen offset:{256*i}")
    a(f"s_add_u32 s40, s40, {64*9216}\ns_waitcnt vmcnt({window})\ns_sub_u32 s44, s44, 1\ns_cmp_lg_u32 s44, 0\ns_cbranch_scc1 L_{tag}_pp")


def w1_unit(a, hid, win0):
    w1_lane_addr(a)
    a(f"s_mul_i32 s45, s{hid}, 7282\ns_lshr_b32 s45, s45, 16\ns_mul_i32 s46, s45, 9\ns_sub_u32 s46, s{hid}, s46")
    a("s_lshr_b32 s47, s46, 2\ns_mul_i32 s47, s47, 36864\ns_and_b32 s41, s46, 3\ns_lshl_b32 s41, s41, 8\ns_add_u32 s47, s47, s41")
    a("s_mul_i32 s42, s42, 36864\ns_add_u32 s43, s43, s42\ns_cmp_eq_u32 s46, 8\ns_cselect_b32 s47, s43, s47")
    a(f"s_mul_i32 s45, s45, {2*36864}\ns_add_u32 s40, s40, s45\ns_add_u32 s40, s40, s47\ns_add_u32 s40, s40, {(win0*16 + 10)*36864}")


def w2_head(a, tag, rs, hid, nh, window):
    n = -(-512 // (4 * nh))
    a("v_and_b32 v1, 63, v0\nv_lshrrev_b32 v31, 4, v1\nv_lshlrev_b32 v31, 7, v31\nv_lshlrev_b32 v29, 4, v1")
    a(f"v_add_u32 v31, s{hid}, v31\ns_mov_b32 s45, 0")
    w2_start(a, 40, 45, 0)
    a(f"s_mov_b32 s44, {n}\nL_{tag}_ph:")
    for i in range(4):
        a(f"v_lshl_add_u32 v30, v31, 12, v29\nv_add_u32 v31, {nh}, v31\nbuffer_load_dwordx4 v[{64+4*i}:{67+4*i}], v30, s[{rs}:{rs+3}], s40 offen\nv_and_b32 v31, 511, v31")
    a(f"s_waitcnt vmcnt({window})\ns_sub_u32 s44, s44, 1\ns_cmp_lg_u32 s44, 0\ns_cbranch_scc1 L_{tag}_ph")


def x_stream(a, tag, rs, hid):
    a("v_and_b32 v1, 63, v0\nv_lshlrev_b32 v30, 4, v1")
    a(f"s_and_b32 s40, s2, 3\ns_lshl_b32 s40, s40, 2\ns_lshr_b32 s41, s{hid}, 1\ns_add_u32 s40, s40, s41\ns_lshl_b32 s40, s40, 7")
    a(f"s_bfe_u32 s41, s2, 0x10002\ns_lshl_b32 s41, s41, 6\ns_add_u32 s40, s40, s41\ns_and_b32 s41, s{hid}, 1\ns_lshl_b32 s41, s41, 5\ns_add_u32 s40, s40, s41")
    a(f"s_mul_i32 s40, s40, 1152\ns_mov_b32 s44, 9\nL_{tag}_px:")
    for i in range(4):
        a(f"buffer_load_dwordx4 v[{64+4*i}:{67+4*i}], v30, s[{rs}:{rs+3}], s40 offen offset:{1024*i}")
    a(f"s_add_u32 s40, s40, 4096\ns_sub_u32 s44, s44, 1\ns_cmp_lg_u32 s44, 0\ns_cbranch_scc1 L_{tag}_px")
```
